```python
import torch

def _softmax(x, axis=-1):
    return torch.softmax(x, dim=axis)

def _gelu(x):
    return torch.nn.functional.gelu(x, approximate='tanh')

def _silu(x):
    return torch.nn.functional.silu(x)

def _sigmoid(x):
    return torch.sigmoid(x)

def _layernorm(x, axis=-1, eps=1e-05):
    m = x.mean(dim=axis, keepdim=True)
    v = x.var(dim=axis, keepdim=True, unbiased=False)
    return (x - m) / torch.sqrt(v + eps)

def _scatter_add(tgt, idx, src, axis=0):
    return tgt.clone().index_add_(axis, idx, src)

def _segment_sum(src, seg, n):
    out = torch.zeros((n,) + src.shape[1:], dtype=src.dtype)
    return out.index_add_(0, seg, src)

def _pad(x, pw):
    flat = tuple((v for pair in reversed(pw) for v in pair))
    return torch.nn.functional.pad(x, flat)
kernel_name = 'adaLN_cond__spectral_gfnet__mixer_channel_mlp__prompt'

def setup_inputs():

    _w = lambda a: (lambda t: t.to(torch.bfloat16) if t.is_floating_point() else t)(torch.as_tensor(a))

    def _A_setup():
        B, S, D = (1, 2048, 1024)
        Df = D // 2 + 1
        return {'x': _w((lambda *s: torch.randn(*s, dtype=torch.bfloat16) * 0.05)(B, S, D)), 'w_r': _w((lambda *s: torch.randn(*s, dtype=torch.bfloat16) * 1.6)(S, Df) * 0.02), 'w_i': _w((lambda *s: torch.randn(*s, dtype=torch.bfloat16) * 1.6)(S, Df) * 0.02)}
    _A_in = _A_setup()

    def _B_setup():
        B, S, D, F = (1, 2048, 1024, 3584)
        return {'x': _w((lambda *s: torch.randn(*s, dtype=torch.bfloat16) * 0.05)(B, S, D)), 'w1': _w((lambda *s: torch.randn(*s, dtype=torch.bfloat16) * 3.2)(D, F) * D ** (-0.5)), 'b1': _w((lambda *s: torch.randn(*s, dtype=torch.bfloat16) * 0.8)(F)), 'w2': _w((lambda *s: torch.randn(*s, dtype=torch.bfloat16) * 0.05)(F, D) * F ** (-0.5)), 'b2': _w((lambda *s: torch.randn(*s, dtype=torch.bfloat16) * 0.1)(D))}
    _B_in = _B_setup()
    return {'A_x': _A_in['x'], 'A_w_r': _A_in['w_r'], 'A_w_i': _A_in['w_i'], 'B_x': _B_in['x'], 'B_w1': _B_in['w1'], 'B_b1': _B_in['b1'], 'B_w2': _B_in['w2'], 'B_b2': _B_in['b2'], 'c': _w((lambda *s: torch.randn(*s, dtype=torch.bfloat16) * 0.2)(1, 1024) * 8.0), 'w_mod': _w((lambda *s: torch.randn(*s, dtype=torch.bfloat16) * 0.2)(1024, 6 * 1024) * 1024 ** (-0.5) * 8.0)}

def reference(A_x, A_w_r, A_w_i, B_x, B_w1, B_b1, B_w2, B_b2, c, w_mod):

    def _A_ref(x, w_r, w_i):
        B, S, D = x.shape
        X = (lambda x, axes=(-2, -1): torch.fft.rfft2(x.float(), dim=axes))(x, axes=(-2, -1))
        W = w_r + 1j * w_i
        X = X * W
        y = (lambda x, s, axes=(-2, -1): torch.fft.irfft2(x, s=s, dim=axes).to(torch.bfloat16))(X, (S, D), axes=(-2, -1))
        return y

    def _B_ref(x, w1, b1, w2, b2):
        y = _layernorm(x, axis=-1)
        h = _gelu(torch.einsum('bsd,df->bsf', y, w1) + b1)
        return torch.einsum('bsf,fd->bsd', h, w2) + b2
    x = A_x
    mod = (_silu(c) @ w_mod).reshape(c.shape[0], 6, 1, -1)
    sa, ca, ga, sb, cb, gb = (mod[:, 0].clone(), mod[:, 1].clone(), mod[:, 2].clone(), mod[:, 3].clone(), mod[:, 4].clone(), mod[:, 5].clone())
    h = _layernorm(x, axis=-1) * (1 + ca) + sa
    x = x + ga * _A_ref(h, A_w_r, A_w_i)
    h = _layernorm(x, axis=-1) * (1 + cb) + sb
    x = x + gb * _B_ref(h, B_w1, B_b1, B_w2, B_b2)
    return x
```

```python
import re, struct

TRANS = ("v_exp_f32", "v_log_f32", "v_rcp_f32", "v_rsq_f32", "v_sqrt_f32", "v_sin_f32", "v_cos_f32", "v_rcp_iflag_f32")
RMW = ("v_fmac_f32", "v_pk_fmac_f16", "v_dot2c_f32_bf16", "v_fmac_f16")

def fbits(x):
    return "0x%08x" % struct.unpack("<I", struct.pack("<f", x))[0]

_reg_re = re.compile(r"^(-|abs\(|\|)*([vsa])(\d+|\[(\d+):(\d+)\])\)?\|?$")
def parse_reg(tok):
    tok = tok.strip()
    if tok in ("vcc",): return ("s", 106, 107)
    if tok == "vcc_lo": return ("s", 106, 106)
    if tok == "vcc_hi": return ("s", 107, 107)
    if tok == "exec": return ("x", 0, 1)
    if tok == "m0": return ("m", 0, 0)
    m = _reg_re.match(tok)
    if not m: return None
    if m.group(4) is not None:
        return (m.group(2), int(m.group(4)), int(m.group(5)))
    return (m.group(2), int(m.group(3)), int(m.group(3)))

def regs(r):
    return [(r[0], i) for i in range(r[1], r[2] + 1)]

class Ins:
    def __init__(self, text):
        self.text = text
        t = text.split(";")[0].strip()
        self.label = t.endswith(":")
        self.directive = t.startswith(".")
        self.empty = (t == "")
        self.op = ""; self.dst = []; self.src = []
        self.ops = []
        if self.label or self.directive or self.empty: return
        parts = t.split(None, 1)
        self.op = parts[0]
        rest = parts[1] if len(parts) > 1 else ""
        toks = []; depth = 0; cur = ""
        for ch in rest:
            if ch in "[(": depth += 1
            if ch in "])": depth -= 1
            if ch == "," and depth == 0:
                toks.append(cur.strip()); cur = ""
            else: cur += ch
        if cur.strip(): toks.append(cur.strip())
        mods = ""
        if toks:
            sp = toks[-1].split(None, 1)
            toks[-1] = sp[0]
            mods = sp[1] if len(sp) > 1 else ""
        self.mods = mods
        self.ops = [parse_reg(x) for x in toks]
        op = self.op
        base = re.sub(r"_(e32|e64|dpp|sdwa)$", "", op)
        self.base = base
        self.is_mfma = op.startswith("v_mfma")
        self.is_valu = op.startswith("v_") and not self.is_mfma
        self.is_trans = base in TRANS
        self.is_dpp = self.is_valu and any(k in mods for k in ("row_", "quad_perm", "wave_"))
        self.is_vmem = op.startswith(("buffer_", "global_", "flat_"))
        self.is_ds = op.startswith("ds_")
        self.is_salu = op.startswith("s_")
        self.is_branch = op.startswith(("s_cbranch", "s_branch", "s_setpc", "s_swappc"))
        self.is_lds_dma = self.is_vmem and (" lds" in " " + mods or "load_lds" in op)
        R = [r for r in self.ops]
        def add(lst, r):
            if r is not None: lst.extend(regs(r))
        if self.is_mfma:
            add(self.dst, R[0]); add(self.src, R[1]); add(self.src, R[2]); add(self.src, R[3])
            self.passes = 8 if "32x32" in op else 4
        elif self.is_valu:
            if base.startswith("v_permlane") or base == "v_swap_b32":
                for r in R[:2]: add(self.dst, r); add(self.src, r)
            elif base in ("v_add_co_u32", "v_sub_co_u32", "v_subrev_co_u32", "v_addc_co_u32", "v_subb_co_u32", "v_mad_u64_u32"):
                add(self.dst, R[0]); add(self.dst, R[1])
                for r in R[2:]: add(self.src, r)
            elif base == "v_nop":
                pass
            else:
                add(self.dst, R[0])
                for r in R[1:]: add(self.src, r)
                if base in RMW or self.is_dpp or "sdwa" in op or base == "v_writelane_b32": add(self.src, R[0])
        elif self.is_vmem:
            if op.startswith(("buffer_inv", "buffer_wbl2")): pass
            elif self.is_lds_dma:
                for r in R: add(self.src, r)
                self.src.append(("m", 0))
            elif "_load" in op:
                add(self.dst, R[0])
                for r in R[1:]: add(self.src, r)
                if "d16" in op: add(self.src, R[0])
            elif "atomic" in op:
                for r in R: add(self.src, r)
                if "sc0" in mods: add(self.dst, R[0])
            else:
                for r in R: add(self.src, r)
                self.store_data = regs(R[0]) if op.startswith("buffer_") else regs(R[1])
                self.wide_store = ("x4" in op or "x3" in op)
        elif self.is_ds:
            if op.startswith(("ds_read", "ds_bpermute", "ds_permute", "ds_swizzle")):
                add(self.dst, R[0])
                for r in R[1:]: add(self.src, r)
                if "d16" in op: add(self.src, R[0])
            else:
                for r in R: add(self.src, r)
        elif self.is_salu:
            if op.startswith(("s_cmp", "s_cbranch", "s_branch", "s_waitcnt", "s_barrier", "s_nop", "s_endpgm", "s_setprio", "s_sleep", "s_bitcmp", "s_setreg")):
                for r in R: add(self.src, r)
            else:
                add(self.dst, R[0])
                for r in R[1:]: add(self.src, r)
                if "saveexec" in op: self.dst += [("x", 0), ("x", 1)]
    def states(self):
        if self.op == "s_nop":
            return int(self.text.split(";")[0].split()[1], 0) + 1
        return 1

def fix_hazards(lines):
    out = []
    pos = 0
    valu_v = {}; trans_v = {}; mfma_d = {}; valu_s = {}; m0w = [-99]; stdata = {}; mfma_c = {}
    nops = 0
    for text in lines:
        I = Ins(text)
        if I.label or I.directive or I.empty:
            out.append(text); continue
        need = 0
        def req(p, ws):
            nonlocal need
            need = max(need, p + ws + 1)
        if I.is_branch or I.op == "s_endpgm" and False:
            for d, ws in ((valu_v, 2), (valu_s, 5), (stdata, 2)):
                for p in d.values(): req(p, ws)
            for (p, passes, rng, op) in mfma_d.values(): req(p, 12 if passes == 8 else 8)
            req(m0w[0], 1)
        vsrc = [r for r in I.src if r[0] in "va"]
        vdst = [r for r in I.dst if r[0] in "va"]
        ssrc = [r for r in I.src if r[0] == "s"]
        if I.is_mfma:
            A = regs(I.ops[1]); B = regs(I.ops[2]); C = regs(I.ops[3]) if I.ops[3] else []
            for r in A + B + C:
                if r in valu_v: req(valu_v[r], 2)
            for r in A + B:
                if r in mfma_d:
                    p, passes, rng, op = mfma_d[r]; req(p, 12 if passes == 8 else 8)
            for r in C + vdst:
                if r in mfma_d:
                    p, passes, rng, op = mfma_d[r]
                    if I.ops[3] == rng and I.ops[0] == rng and op == I.op: pass
                    else: req(p, 10 if passes == 8 else 6)
        else:
            for r in vsrc + vdst:
                if r in mfma_d:
                    p, passes, rng, op = mfma_d[r]; req(p, 12 if passes == 8 else 8)
        if I.is_valu:
            for r in vdst:
                if r in mfma_c:
                    p, passes = mfma_c[r]; req(p, 7 if passes == 8 else 3)
                if r in stdata: req(stdata[r], 2)
            if not I.is_trans or True:
                for r in vsrc:
                    if r in trans_v and not I.is_trans: req(trans_v[r], 1)
            if I.is_dpp or I.base.startswith("v_permlane"):
                for r in vsrc:
                    if r in valu_v: req(valu_v[r], 2)
            if I.base in ("v_readlane_b32", "v_readfirstlane_b32"):
                for r in vsrc:
                    if r in valu_v: req(valu_v[r], 1)
                for r in ssrc:
                    if r in valu_s: req(valu_s[r], 4)
            if I.base == "v_writelane_b32":
                for r in ssrc:
                    if r in valu_s: req(valu_s[r], 4)
            for r in ssrc:
                if r in valu_s: req(valu_s[r], 2)
        if I.is_vmem or I.is_ds:
            for r in ssrc:
                if r in valu_s: req(valu_s[r], 5)
            for r in vsrc:
                if r in trans_v: req(trans_v[r], 1)
            for r in vdst:
                if r in stdata: req(stdata[r], 1)
            if I.is_lds_dma: req(m0w[0], 1)
        if I.is_salu:
            for r in ssrc:
                if r in valu_s: req(valu_s[r], 1)
        if need > pos:
            n = need - pos
            while n > 0:
                k = min(n, 16)
                out.append(f"s_nop {k-1}"); pos += k; n -= k; nops += k
        out.append(text)
        if I.is_mfma:
            for r in vdst:
                mfma_d[r] = (pos, I.passes, I.ops[0], I.op); valu_v.pop(r, None); trans_v.pop(r, None)
            if I.ops[3]:
                for r in regs(I.ops[3]): mfma_c[r] = (pos, I.passes)
        elif I.is_valu:
            for r in I.dst:
                if r[0] in "va":
                    valu_v[r] = pos; mfma_d.pop(r, None)
                    if I.is_trans: trans_v[r] = pos
                    else: trans_v.pop(r, None)
                elif r[0] == "s": valu_s[r] = pos
                elif r[0] == "x": raise Exception("VALU exec write not supported: " + text)
        else:
            for r in I.dst:
                if r[0] in "va":
                    valu_v.pop(r, None); trans_v.pop(r, None); mfma_d.pop(r, None)
                elif r[0] == "s": valu_s.pop(r, None)
                elif r[0] == "m": m0w[0] = pos
            if I.is_vmem and getattr(I, "wide_store", False):
                for r in I.store_data: stdata[r] = pos
        pos += I.states()
    return out, nops

class Kern:
    def __init__(self, name, grid, block, lds):
        self.name = name; self.grid = grid; self.block = block; self.lds = lds
        self.lines = []
        self.nv = 1; self.ns = 3
        self.maxv = 1; self.maxs = 3
        self.agpr = 0
    def __call__(self, text):
        for l in text.split("\n"):
            l = l.strip()
            if l: self.lines.append(l)
    def v(self, n=1, align=None):
        a = align or (1 if n == 1 else (2 if n == 2 else 4))
        self.nv = (self.nv + a - 1) // a * a
        r = self.nv; self.nv += n; self.maxv = max(self.maxv, self.nv)
        assert self.nv <= 256, "out of arch VGPRs"
        return r
    def s(self, n=1, align=None):
        a = align or (1 if n == 1 else (2 if n == 2 else 4))
        self.ns = (self.ns + a - 1) // a * a
        r = self.ns; self.ns += n; self.maxs = max(self.maxs, self.ns)
        assert self.ns <= 100, "out of SGPRs"
        return r
    prof = None
    def stamp_init(self, idx, pWS):
        if self.prof is None: return
        self._st = []; self._stidx = idx; self._pWS = pWS
    def stamp_init2(self, idx, pWS):
        self._stidx = idx; self._pWS = pWS
    def stamp(self, early=False):
        if self.prof is None: return
        if not hasattr(self, "_st"): self._st = []
        r = 100 - 2 * (len(self._st) + 1)
        assert r >= 66
        self._st.append(r); self.maxs = 100
        self(f"s_memrealtime s[{r}:{r+1}]")
        if not early: self("s_waitcnt lgkmcnt(0)")
    def stamp_flush(self):
        if self.prof is None: return
        self.stamp()
        d = 60
        off = (64 << 20) + self._stidx * (1 << 20)
        self(f"s_add_u32 s{d}, s{self._pWS}, {off}\ns_addc_u32 s{d+1}, s{self._pWS+1}, 0\ns_mov_b32 s{d+2}, 0x100000\ns_mov_b32 s{d+3}, 0x20000")
        self(f"v_lshrrev_b32 v1, 6, v0\nv_lshlrev_b32 v1, 6, v1\ns_lshl_b32 s64, s2, 10")
        for i, r in enumerate(self._st):
            self(f"v_mov_b32 v2, s{r}\nbuffer_store_dword v2, v1, s[{d}:{d+3}], s64 offen offset:{4*i}")
    def mark(self): return (self.nv, self.ns)
    def release(self, m): self.nv, self.ns = m
    def srd(self, ptr, nbytes, off=0):
        d = self.s(4)
        if off:
            self(f"s_add_u32 s{d}, s{ptr}, {off}\ns_addc_u32 s{d+1}, s{ptr+1}, 0")
        else:
            self(f"s_mov_b32 s{d}, s{ptr}\ns_mov_b32 s{d+1}, s{ptr+1}")
        self(f"s_mov_b32 s{d+2}, {nbytes}\ns_mov_b32 s{d+3}, 0x20000")
        return d
    def text(self):
        body, nops = fix_hazards(self.lines)
        self.nops = nops
        o = [f".p2align 8", f".globl {self.name}", f".type {self.name},@function", f"{self.name}:"]
        o += [("" if l.endswith(":") else "  ") + l for l in body]
        return "\n".join(o)
    def desc(self):
        acc = (self.maxv + 3) // 4 * 4
        nfv = acc + self.agpr if self.agpr else self.maxv
        return f""".p2align 6
.amdhsa_kernel {self.name}
  .amdhsa_next_free_vgpr {nfv}
  .amdhsa_next_free_sgpr {max(self.maxs, 16)}
  .amdhsa_accum_offset {acc}
  .amdhsa_group_segment_fixed_size 0
  .amdhsa_kernarg_size 104
  .amdhsa_user_sgpr_count 2
  .amdhsa_user_sgpr_kernarg_segment_ptr 1
  .amdhsa_system_sgpr_workgroup_id_x 1
.end_amdhsa_kernel"""
    def launch(self):
        return f"; @launch kernel={self.name} grid=({self.grid},1,1) block=({self.block},1,1) lds={self.lds}"

def vr(a, n): return f"v[{a}:{a+n-1}]" if n > 1 else f"v{a}"
def sr(a, n): return f"s[{a}:{a+n-1}]" if n > 1 else f"s{a}"
def ar(a, n): return f"a[{a}:{a+n-1}]" if n > 1 else f"a{a}"

def assemble_file(kerns, header="", order=None):
    order = order or kerns
    o = [header.rstrip()] if header else []
    o += [k.launch() for k in order]
    o.append('.amdgcn_target "amdgcn-amd-amdhsa--gfx950"')
    o.append(".text")
    for k in kerns: o.append(k.text())
    o.append('.section .rodata,"a"')
    for k in kerns: o.append(k.desc())
    return "\n".join(o) + "\n"
```

```python
from asmlib import *
import math

WS_MOD = 0x0
WS_WMAX = 0x4000
WS_SCAL = 0x4400
WS_ZA = 0x100000
WS_ZB = 0x600000
WS_X1 = 0xB00000
WS_Y2 = 0x1000000
WS_H = 0x1400000
NSLOT = 258
ZA_BYTES = NSLOT * 16384
ZB_PITCH = NSLOT * 64
ZB_BYTES = 256 * ZB_PITCH
W_BYTES = 2048 * 513 * 2
LOG2E = 1.4426950408889634

DPPM = "row_mask:0xf bank_mask:0xf"

def wave_reduce(k, op, vs, sdst):
    ops = op if isinstance(op, (list, tuple)) else [op] * len(vs)
    for sh in (1, 2, 4, 8):
        for o, v in zip(ops, vs):
            k(f"{o}_dpp v{v}, v{v}, v{v} row_ror:{sh} {DPPM}")
    for o, v in zip(ops, vs):
        k(f"{o}_dpp v{v}, v{v}, v{v} row_bcast:15 row_mask:0xa bank_mask:0xf")
    for o, v in zip(ops, vs):
        k(f"{o}_dpp v{v}, v{v}, v{v} row_bcast:31 row_mask:0xc bank_mask:0xf")
    for v, s in zip(vs, sdst):
        k(f"v_readlane_b32 s{s}, v{v}, 63")

def sincos(k, c, s, vint, n, tmp):
    k(f"v_cvt_f32_u32 v{tmp}, v{vint}")
    k(f"v_mul_f32 v{tmp}, {fbits(1.0/n)}, v{tmp}")
    k(f"v_cos_f32 v{c}, v{tmp}")
    k(f"v_sin_f32 v{s}, v{tmp}")

def round_bf16(k, v, tmp=None):
    k(f"v_cvt_pk_bf16_f32 v{v}, v{v}, v{v}")
    k(f"v_lshlrev_b32 v{v}, 16, v{v}")

def unpack_bf16(k, dst, src, n, smask):
    for i in range(n):
        k(f"v_lshlrev_b32 v{dst+2*i}, 16, v{src+i}")
        k(f"v_and_b32 v{dst+2*i+1}, s{smask}, v{src+i}")

def gen_k0():
    k = Kern("k0_kernel", 256, 1024, 4096)
    pCW = k.s(4); pW = k.s(4); pWS = k.s(2)
    k(f"s_cmp_ge_u32 s2, 256\ns_cbranch_scc1 K0_end")
    k.stamp(True)
    k(f"s_load_dwordx4 {sr(pCW,4)}, s[0:1], 64")
    k(f"s_load_dwordx4 {sr(pW,4)}, s[0:1], 8")
    k(f"s_load_dwordx2 {sr(pWS,2)}, s[0:1], 96")
    sWave = k.s(); sMask = k.s()
    vL = k.v(); t0 = k.v(); t1 = k.v()
    k(f"v_lshrrev_b32 v{t0}, 6, v0")
    k(f"v_and_b32 v{vL}, 63, v0")
    k(f"v_readfirstlane_b32 s{sWave}, v{t0}")
    k(f"s_mov_b32 s{sMask}, 0xffff0000")
    k(f"s_cmp_ge_u32 s2, 192\ns_cbranch_scc1 K0_wscan")
    sStrip = k.s(); sT = k.s()
    k(f"s_and_b32 s{sStrip}, s2, 7\ns_mul_i32 s{sStrip}, s{sStrip}, 24\ns_lshr_b32 s{sT}, s2, 3\ns_add_u32 s{sStrip}, s{sStrip}, s{sT}")
    vR = k.v(); vOff = k.v(); vOffC = k.v()
    k(f"v_lshrrev_b32 v{vR}, 2, v0")
    k(f"v_mul_u32_u24 v{vOff}, 12288, v{vR}")
    k(f"v_and_b32 v{t0}, 3, v0")
    k(f"v_lshl_add_u32 v{vOff}, v{t0}, 4, v{vOff}")
    k(f"v_lshlrev_b32 v{vOffC}, 1, v{vR}")
    k("s_waitcnt lgkmcnt(0)")
    k.stamp_init2(0, pWS); k.stamp()
    dC = k.srd(pCW, 2048); dM = k.srd(pCW + 2, 1024 * 6144 * 2); dO = k.srd(pWS, 12288, WS_MOD)
    C = k.v(4); Wv = k.v(16)
    for i in range(4):
        k(f"buffer_load_ushort v{C+i}, v{vOffC}, {sr(dC,4)}, 0 offen offset:{512*i}")
    sO = k.s()
    k(f"s_lshl_b32 s{sO}, s{sStrip}, 6")
    for i in range(4):
        k(f"buffer_load_dwordx4 {vr(Wv+4*i,4)}, v{vOff}, {sr(dM,4)}, s{sO} offen nt")
        if i < 3: k(f"s_add_u32 s{sO}, s{sO}, {256*12288}")
    sAdd = k.s()
    k(f"s_lshr_b32 s{sT}, s{sStrip}, 5")
    k(f"s_cmp_eq_u32 s{sT}, 1\ns_cselect_b32 s{sAdd}, 1.0, 0")
    k(f"s_cmp_eq_u32 s{sT}, 4\ns_cselect_b32 s{sAdd}, 1.0, s{sAdd}")
    k("s_waitcnt vmcnt(4)")
    k.stamp()
    E = k.v(4)
    for i in range(4):
        k(f"v_lshlrev_b32 v{C+i}, 16, v{C+i}")
        k(f"v_mul_f32 v{E+i}, {fbits(-LOG2E)}, v{C+i}")
    for i in range(4): k(f"v_exp_f32 v{E+i}, v{E+i}")
    for i in range(4): k(f"v_add_f32 v{E+i}, 1.0, v{E+i}")
    for i in range(4): k(f"v_rcp_f32 v{E+i}, v{E+i}")
    for i in range(4): k(f"v_mul_f32 v{C+i}, v{C+i}, v{E+i}")
    for i in range(4): round_bf16(k, C + i)
    A = k.v(8)
    for i in range(4):
        k(f"s_waitcnt vmcnt({3-i})")
        for q in range(4):
            k(f"v_lshlrev_b32 v{t0}, 16, v{Wv+4*i+q}")
            k(f"v_and_b32 v{t1}, s{sMask}, v{Wv+4*i+q}")
            if i == 0:
                k(f"v_mul_f32 v{A+2*q}, v{C}, v{t0}\nv_mul_f32 v{A+2*q+1}, v{C}, v{t1}")
            else:
                k(f"v_fmac_f32 v{A+2*q}, v{C+i}, v{t0}\nv_fmac_f32 v{A+2*q+1}, v{C+i}, v{t1}")
    k.stamp()
    for q in range(4): k(f"v_permlane16_swap_b32 v{A+2*q}, v{A+2*q+1}")
    for q in range(4): k(f"v_add_f32 v{A+2*q}, v{A+2*q}, v{A+2*q+1}")
    k(f"v_permlane32_swap_b32 v{A}, v{A+2}\nv_permlane32_swap_b32 v{A+4}, v{A+6}")
    k(f"v_add_f32 v{A}, v{A}, v{A+2}\nv_add_f32 v{A+4}, v{A+4}, v{A+6}")
    for sh in (4, 8):
        k(f"v_add_f32_dpp v{A}, v{A}, v{A} row_ror:{sh} {DPPM}")
        k(f"v_add_f32_dpp v{A+4}, v{A+4}, v{A+4} row_ror:{sh} {DPPM}")
    k(f"v_and_b32 v{t0}, 3, v{vL}\nv_lshlrev_b32 v{t0}, 5, v{t0}")
    k(f"v_lshrrev_b32 v{t1}, 4, v{vL}\nv_lshl_add_u32 v{t0}, v{t1}, 2, v{t0}")
    k(f"s_lshl_b32 s{sT}, s{sWave}, 7\nv_add_u32 v{t0}, s{sT}, v{t0}")
    k(f"ds_write2_b32 v{t0}, v{A}, v{A+4} offset0:0 offset1:4")
    k("s_waitcnt lgkmcnt(0)\ns_barrier")
    k(f"s_cmp_lg_u32 s{sWave}, 0\ns_cbranch_scc1 K0_end")
    k(f"v_and_b32 v{t0}, 31, v{vL}\nv_lshlrev_b32 v{t0}, 2, v{t0}")
    k(f"v_lshrrev_b32 v{t1}, 5, v{vL}\nv_lshl_add_u32 v{t1}, v{t1}, 10, v{t0}")
    for i in range(4):
        k(f"ds_read2_b32 {vr(A+2*i,2)}, v{t1} offset0:{64*i} offset1:{64*i+32}")
    k("s_waitcnt lgkmcnt(0)")
    for i in range(4): k(f"v_add_f32 v{A+2*i}, v{A+2*i}, v{A+2*i+1}")
    k(f"v_add_f32 v{A}, v{A}, v{A+2}\nv_add_f32 v{A+4}, v{A+4}, v{A+6}\nv_add_f32 v{A}, v{A}, v{A+4}")
    k(f"v_mov_b32 v{A+1}, v{A}")
    k(f"v_permlane32_swap_b32 v{A}, v{A+1}")
    k(f"v_add_f32 v{A}, v{A}, v{A+1}")
    round_bf16(k, A)
    k(f"v_add_f32 v{A}, s{sAdd}, v{A}")
    k(f"v_cvt_pk_bf16_f32 v{A}, v{A}, v{A}")
    k(f"v_lshrrev_b32 v{t0}, 1, v{t0}")
    k(f"s_lshl_b32 s{sO}, s{sStrip}, 6")
    k(f"buffer_store_short v{A}, v{t0}, {sr(dO,4)}, s{sO} offen")
    k.stamp_flush()
    k("s_endpgm")
    k("K0_wscan:")
    k("s_waitcnt lgkmcnt(0)")
    dR = k.srd(pW, W_BYTES); dI = k.srd(pW + 2, W_BYTES); dX = k.srd(pWS, 256, WS_WMAX)
    k(f"s_sub_u32 s{sT}, s2, 192\ns_lshl_b32 s{sO}, s{sT}, 14")
    k(f"v_lshlrev_b32 v{vOff}, 4, v0")
    X = k.v(24)
    for i in range(3):
        k(f"buffer_load_dwordx4 {vr(X+8*i,4)}, v{vOff}, {sr(dR,4)}, s{sO} offen")
        k(f"buffer_load_dwordx4 {vr(X+8*i+4,4)}, v{vOff}, {sr(dI,4)}, s{sO} offen")
        if i < 2: k(f"s_add_u32 s{sO}, s{sO}, {65536*16}")
    k(f"s_mov_b32 s{sMask}, 0x7fff7fff")
    k("s_waitcnt vmcnt(0)")
    for i in range(24): k(f"v_and_b32 v{X+i}, s{sMask}, v{X+i}")
    n = 24
    while n > 1:
        h = n // 2
        for i in range(h): k(f"v_pk_max_u16 v{X+i}, v{X+i}, v{X+n-1-i}")
        n = n - h
    k(f"v_lshrrev_b32 v{t0}, 16, v{X}\nv_and_b32 v{X}, 0xffff, v{X}\nv_max_u32 v{X}, v{X}, v{t0}")
    sM = k.s()
    wave_reduce(k, "v_max_u32", [X], [sM])
    k(f"s_lshl_b32 s{sO}, s{sWave}, 2\nv_mov_b32 v{t0}, s{sO}\nv_mov_b32 v{X}, s{sM}")
    k(f"ds_write_b32 v{t0}, v{X}")
    k("s_waitcnt lgkmcnt(0)\ns_barrier")
    k(f"s_cmp_lg_u32 s{sWave}, 0\ns_cbranch_scc1 K0_end")
    k(f"v_and_b32 v{t0}, 15, v{vL}\nv_lshlrev_b32 v{t0}, 2, v{t0}")
    k(f"ds_read_b32 v{X}, v{t0}\ns_waitcnt lgkmcnt(0)")
    for sh in (1, 2, 4, 8): k(f"v_max_u32_dpp v{X}, v{X}, v{X} row_ror:{sh} {DPPM}")
    k(f"s_lshl_b32 s{sO}, s{sT}, 2\nv_mov_b32 v{t0}, 0")
    k(f"buffer_store_dword v{X}, v{t0}, {sr(dX,4)}, s{sO} offen")
    k("K0_end:\ns_endpgm")
    return k

def build_f16_consts(k, vI, vG, RE, IM, conj, tmp, scale=0.25):
    a, c, s, t = tmp, tmp + 1, tmp + 2, tmp + 3
    for v in range(4):
        k(f"v_lshl_add_u32 v{a}, v{vG}, 2, {v}")
        k(f"v_mul_u32_u24 v{a}, v{a}, v{vI}")
        k(f"v_and_b32 v{a}, 15, v{a}")
        sincos(k, c, s, a, 16, t)
        k(f"v_mul_f32 v{c}, {fbits(scale)}, v{c}\nv_mul_f32 v{s}, {fbits(scale)}, v{s}")
        if not conj:
            k(f"v_cvt_pk_f16_f32 v{RE+v}, v{c}, v{s}\nv_cvt_pk_f16_f32 v{IM+v}, -v{s}, v{c}")
        else:
            k(f"v_cvt_pk_f16_f32 v{RE+v}, v{c}, -v{s}\nv_cvt_pk_f16_f32 v{IM+v}, v{s}, v{c}")

def cmul_tw(k, re, im, c, s, conj, t):
    k(f"v_mul_f32 v{t}, v{re}, v{s}")
    k(f"v_mul_f32 v{re}, v{re}, v{c}")
    if not conj:
        k(f"v_fmac_f32 v{re}, v{im}, v{s}")
        k(f"v_fma_f32 v{im}, v{im}, v{c}, -v{t}")
    else:
        k(f"v_fma_f32 v{re}, -v{im}, v{s}, v{re}")
        k(f"v_fma_f32 v{im}, v{im}, v{c}, v{t}")

MF = "v_mfma_f32_16x16x32_f16"

def gen_a():
    k = Kern("fa_kernel", 256, 512, 8 * 2048 + 64)
    pX = k.s(2); pWS = k.s(2)
    k(f"s_cmp_ge_u32 s2, 256\ns_cbranch_scc1 A_end")
    k.stamp(True)
    k(f"s_load_dwordx2 {sr(pX,2)}, s[0:1], 0")
    k(f"s_load_dwordx2 {sr(pWS,2)}, s[0:1], 96")
    sJ = k.s(); sMask = k.s(); sT = k.s(); sRow = k.s()
    vL = k.v(); vI = k.v(); vG = k.v(); vOff = k.v()
    T = k.v(8)
    k(f"v_lshrrev_b32 v{T}, 6, v0")
    k(f"v_and_b32 v{vL}, 63, v0")
    k(f"v_readfirstlane_b32 s{sJ}, v{T}")
    k(f"v_lshlrev_b32 v{vOff}, 4, v{vL}")
    k(f"v_and_b32 v{vI}, 15, v{vL}\nv_lshrrev_b32 v{vG}, 4, v{vL}")
    k(f"s_mov_b32 s{sMask}, 0xffff0000")
    k(f"s_lshl_b32 s{sRow}, s{sJ}, 8\ns_add_u32 s{sRow}, s{sRow}, s2\ns_lshl_b32 s{sRow}, s{sRow}, 11")
    k("s_waitcnt lgkmcnt(0)")
    k.stamp_init2(1, pWS); k.stamp()
    dX = k.srd(pX, 2048 * 2048); dM = k.srd(pWS, 12288, WS_MOD)
    XP = k.v(8); SAP = k.v(8); CAP = k.v(8)
    k(f"buffer_load_dwordx4 {vr(XP,4)}, v{vOff}, {sr(dX,4)}, s{sRow} offen")
    k(f"buffer_load_dwordx4 {vr(XP+4,4)}, v{vOff}, {sr(dX,4)}, s{sRow} offen offset:1024")
    k(f"buffer_load_dwordx4 {vr(SAP,4)}, v{vOff}, {sr(dM,4)}, 0 offen")
    k(f"buffer_load_dwordx4 {vr(SAP+4,4)}, v{vOff}, {sr(dM,4)}, 0 offen offset:1024")
    k(f"buffer_load_dwordx4 {vr(CAP,4)}, v{vOff}, {sr(dM,4)}, 0 offen offset:2048")
    k(f"buffer_load_dwordx4 {vr(CAP+4,4)}, v{vOff}, {sr(dM,4)}, 0 offen offset:3072")
    dZ = k.srd(pWS, ZA_BYTES, WS_ZA); dS = k.srd(pWS, 8, WS_SCAL)
    F1 = k.v(32)
    def f1(ct, ks, ri): return F1 + ((ct * 2 + ks) * 2 + ri) * 4
    sg = 1 / math.sqrt(32)
    for e in range(4):
        k(f"v_add_u32 v{T}, {4*e}, v{vG}")
        k(f"v_mul_u32_u24 v{T}, v{T}, v{vI}")
        k(f"v_and_b32 v{T}, 31, v{T}")
        sincos(k, T + 1, T + 2, T, 32, T + 3)
        k(f"v_mul_f32 v{T+1}, {fbits(sg)}, v{T+1}\nv_mul_f32 v{T+2}, {fbits(sg)}, v{T+2}")
        k(f"v_cvt_pk_f16_f32 v{f1(0,0,0)+e}, v{T+1}, v{T+2}\nv_cvt_pk_f16_f32 v{f1(0,0,1)+e}, -v{T+2}, v{T+1}")
    sSign = k.s()
    k(f"s_mov_b32 s{sSign}, 0x80008000")
    k(f"v_and_b32 v{T}, 1, v{vG}\nv_mul_lo_u32 v{T}, v{T}, s{sSign}")
    k(f"v_and_b32 v{T+1}, 1, v{vI}\nv_mul_lo_u32 v{T+1}, v{T+1}, s{sSign}")
    k(f"v_xor_b32 v{T+2}, v{T}, v{T+1}")
    for (ct, ks, m) in ((1, 0, T), (0, 1, T + 1), (1, 1, T + 2)):
        for x in range(8):
            k(f"v_xor_b32 v{f1(ct,ks,0)+x}, v{m}, v{f1(0,0,0)+x}")
    TWC = k.v(8); TWS = k.v(8)
    for ct in range(2):
        for v in range(4):
            k(f"v_lshl_add_u32 v{T}, v{vG}, 2, {v}")
            k(f"v_add_u32 v{T+1}, {16*ct}, v{vI}")
            k(f"v_mul_u32_u24 v{T}, v{T}, v{T+1}")
            sincos(k, TWC + 4 * ct + v, TWS + 4 * ct + v, T, 512, T + 3)
    F2R = k.v(4); F2I = k.v(4)
    build_f16_consts(k, vI, vG, F2R, F2I, False, T)
    F3 = k.v(16)
    s8 = 1 / math.sqrt(8)
    vSc = k.v()
    k(f"v_lshrrev_b32 v{T}, 3, v{vI}\nv_lshrrev_b32 v{T+1}, 1, v{vG}")
    k(f"v_cmp_eq_u32 vcc, v{T}, v{T+1}")
    k(f"v_mov_b32 v{T+2}, {fbits(s8)}")
    k(f"v_cndmask_b32 v{vSc}, 0, v{T+2}, vcc")
    vRho = k.v()
    k(f"v_and_b32 v{vRho}, 7, v{vI}")
    for e in range(4):
        k(f"v_and_b32 v{T}, 1, v{vG}")
        k(f"v_lshl_add_u32 v{T}, v{T}, 2, {e}")
        k(f"v_lshl_add_u32 v{T}, v{T}, 8, s2")
        k(f"v_mul_u32_u24 v{T}, v{T}, v{vRho}")
        k(f"v_and_b32 v{T}, 0x7ff, v{T}")
        sincos(k, T + 1, T + 2, T, 2048, T + 3)
        k(f"v_mul_f32 v{T+1}, v{vSc}, v{T+1}\nv_mul_f32 v{T+2}, v{vSc}, v{T+2}")
        k(f"v_cvt_pk_f16_f32 v{F3+e}, v{T+1}, v{T+2}")
        k(f"v_cvt_pk_f16_f32 v{F3+4+e}, -v{T+2}, v{T+1}")
        k(f"v_cvt_pk_f16_f32 v{F3+8+e}, v{T+1}, -v{T+2}")
        k(f"v_cvt_pk_f16_f32 v{F3+12+e}, -v{T+2}, -v{T+1}")
    sBase = k.s()
    k(f"s_lshl_b32 s{sBase}, s{sJ}, 11\ns_lshr_b32 s{sT}, s{sJ}, 2\ns_lshl_b32 s{sT}, s{sT}, 6\ns_add_u32 s{sBase}, s{sBase}, s{sT}")
    vW1 = k.v(); vR1 = k.v(); vW2 = k.v(2); vR3 = k.v(4); vSt = k.v(2)
    k(f"v_add_u32 v{vW1}, s{sBase}, v{vOff}")
    k(f"v_lshl_add_u32 v{vR1}, v{vL}, 2, s{sBase}")
    for ct in range(2):
        k(f"v_add_u32 v{T}, {4*ct}, v{vG}")
        k(f"v_xor_b32 v{T}, v{T}, v{vRho}")
        k(f"v_lshlrev_b32 v{T}, 4, v{T}")
        k(f"v_lshl_add_u32 v{T}, v{vI}, 7, v{T}")
        k(f"v_add_u32 v{vW2+ct}, s{sBase}, v{T}")
    for q in range(2):
        for x in range(2):
            d = vR3 + 2 * q + x
            k(f"v_lshrrev_b32 v{T}, 1, v{vG}")
            k(f"v_lshl_add_u32 v{T}, v{T}, 4, v{vI}")
            k(f"s_lshl_b32 s{sT}, s{sJ}, 6\ns_add_u32 s{sT}, s{sT}, {32*q}")
            k(f"v_add_u32 v{T}, s{sT}, v{T}")
            if x: k(f"v_sub_u32 v{T}, 512, v{T}\nv_and_b32 v{T}, 511, v{T}")
            k(f"v_lshrrev_b32 v{T+1}, 3, v{T}\nv_and_b32 v{T+1}, 28, v{T+1}")
            k(f"v_xor_b32 v{T}, v{T}, v{T+1}")
            k(f"v_and_b32 v{T+1}, 1, v{vG}\nv_mul_u32_u24 v{T+1}, {4*2048+64}, v{T+1}")
            k(f"v_lshl_add_u32 v{d}, v{T}, 2, v{T+1}")
    sF = k.s(); sS0 = k.s()
    k(f"s_lshr_b32 s{sF}, s2, 2\ns_and_b32 s{sF}, s{sF}, 3\ns_lshl_b32 s{sS0}, s2, 6")
    for q in range(2):
        k(f"v_lshrrev_b32 v{T}, 3, v{vI}\nv_lshrrev_b32 v{T+1}, 1, v{vG}\nv_lshl_add_u32 v{T}, v{T}, 1, v{T+1}")
        k(f"s_lshl_b32 s{sT}, s{sJ}, 3\ns_add_u32 s{sT}, s{sT}, {4*q}")
        k(f"v_add_u32 v{T}, s{sT}, v{T}")
        k(f"v_lshlrev_b32 v{T+1}, 6, v{vRho}\nv_subrev_u32 v{T+1}, 31, v{T+1}\nv_max_i32 v{T+1}, 0, v{T+1}")
        k(f"v_add_u32 v{T+1}, v{T+1}, v{T}\nv_lshlrev_b32 v{T+1}, 14, v{T+1}")
        k(f"v_and_b32 v{T+2}, 1, v{vG}\nv_lshlrev_b32 v{T+2}, 1, v{T+2}\nv_xor_b32 v{T+2}, s{sF}, v{T+2}")
        k(f"v_lshl_add_u32 v{T+1}, v{T+2}, 4, v{T+1}")
        k(f"v_and_b32 v{T+2}, 3, v{vRho}\nv_cmp_eq_u32 vcc, 0, v{T+2}\nv_mov_b32 v{T+3}, 64\nv_cndmask_b32 v{T+3}, v{T+3}, 33, vcc")
        k(f"v_cmp_lt_u32 vcc, 4, v{vRho}\nv_cndmask_b32 v{T+3}, v{T+3}, 0, vcc")
        k(f"v_cmp_lt_u32 vcc, v{T}, v{T+3}\nv_mov_b32 v{T+2}, 0x7ffffff0\nv_cndmask_b32 v{vSt+q}, v{T+2}, v{T+1}, vcc")
    X = k.v(16); SA = k.v(16); CA = k.v(16)
    vSum = k.v(); vMax = k.v()
    k.stamp()
    k("s_waitcnt vmcnt(4)")
    k.stamp()
    unpack_bf16(k, X, XP, 8, sMask)
    k(f"v_add_f32 v{vSum}, v{X}, v{X+1}")
    for i in range(1, 8):
        k(f"v_add_f32 v{T}, v{X+2*i}, v{X+2*i+1}\nv_add_f32 v{vSum}, v{vSum}, v{T}")
    k("s_waitcnt vmcnt(0)")
    unpack_bf16(k, SA, SAP, 8, sMask); unpack_bf16(k, CA, CAP, 8, sMask)
    k(f"v_max_f32 v{vMax}, abs(v{SA}), abs(v{CA})")
    for i in range(1, 16): k(f"v_max3_f32 v{vMax}, abs(v{SA+i}), abs(v{CA+i}), v{vMax}")
    sSum = k.s(); sMax = k.s()
    wave_reduce(k, ["v_add_f32", "v_max_f32"], [vSum, vMax], [sSum, sMax])
    vM = k.v(); vDl = k.v(); vE = k.v()
    k(f"v_mov_b32 v{vDl}, {fbits(1/1024)}")
    k(f"v_mul_f32 v{vDl}, s{sSum}, v{vDl}")
    k(f"v_mov_b32 v{vM}, v{vDl}")
    round_bf16(k, vM)
    k(f"v_sub_f32 v{vDl}, v{vDl}, v{vM}")
    k(f"v_frexp_exp_i32_f32 v{vE}, s{sMax}")
    k(f"v_sub_u32 v{vE}, 3, v{vE}")
    k(f"v_mov_b32 v{T}, 100\nv_mov_b32 v{T+1}, -100\nv_med3_i32 v{vE}, v{vE}, v{T}, v{T+1}")
    for i in range(16): k(f"v_sub_f32 v{X+i}, v{X+i}, v{vM}")
    k(f"v_mul_f32 v{vSum}, v{X}, v{X}\nv_mul_f32 v{T}, v{X+1}, v{X+1}")
    for i in range(1, 8): k(f"v_fmac_f32 v{vSum}, v{X+2*i}, v{X+2*i}\nv_fmac_f32 v{T}, v{X+2*i+1}, v{X+2*i+1}")
    k(f"v_add_f32 v{vSum}, v{vSum}, v{T}")
    red = Kern("x", 0, 0, 0); wave_reduce(red, "v_add_f32", [vSum], [sSum])
    fill = [f"v_mul_f32 v{X+i}, v{X+i}, v{CA+i}" for i in range(16)] + [f"v_ldexp_f32 v{SA+i}, v{SA+i}, v{vE}" for i in range(16)]
    for l in red.lines:
        k(l)
        for _ in range(4):
            if fill: k(fill.pop(0))
    for l in fill: k(l)
    vR = k.v()
    k(f"v_mov_b32 v{vR}, {fbits(1/1024)}")
    k(f"v_mul_f32 v{vR}, s{sSum}, v{vR}")
    k(f"v_fma_f32 v{vR}, -v{vDl}, v{vDl}, v{vR}")
    k(f"v_max_f32 v{vR}, 0, v{vR}")
    round_bf16(k, vR)
    k(f"v_add_f32 v{vR}, {fbits(1e-5)}, v{vR}")
    round_bf16(k, vR)
    k(f"v_sqrt_f32 v{vR}, v{vR}")
    round_bf16(k, vR)
    k(f"v_rcp_f32 v{vR}, v{vR}")
    k(f"v_ldexp_f32 v{vR}, v{vR}, v{vE}")
    Z = XP
    for i in range(8):
        k(f"v_fma_f32 v{X+2*i}, v{X+2*i}, v{vR}, v{SA+2*i}\nv_fma_f32 v{X+2*i+1}, v{X+2*i+1}, v{vR}, v{SA+2*i+1}")
        k(f"v_cvt_pk_f16_f32 v{Z+i}, v{X+2*i}, v{X+2*i+1}")
    k(f"ds_write_b128 v{vW1}, {vr(Z,4)}\nds_write_b128 v{vW1}, {vr(Z+4,4)} offset:1024")
    k(f"s_or_b32 s{sT}, s2, s{sJ}\ns_cmp_lg_u32 s{sT}, 0\ns_cbranch_scc1 A_noscal")
    k(f"v_mov_b32 v{T}, 0\nbuffer_store_dword v{vE}, v{T}, {sr(dS,4)}, 0 offen")
    k("A_noscal:")
    k.stamp()
    k("s_waitcnt lgkmcnt(0)")
    OP = SAP
    for h in range(4):
        k(f"ds_read2st64_b32 {vr(OP+2*h,2)}, v{vR1} offset0:{2*h} offset1:{2*h+1}")
    D1 = X
    k("s_waitcnt lgkmcnt(2)")
    for ct in range(2):
        for ri in range(2):
            k(f"{MF} {vr(D1+(ct*2+ri)*4,4)}, {vr(OP,4)}, {vr(f1(ct,0,ri),4)}, 0")
    k("s_waitcnt lgkmcnt(0)")
    for ct in range(2):
        for ri in range(2):
            d = D1 + (ct * 2 + ri) * 4
            k(f"{MF} {vr(d,4)}, {vr(OP+4,4)}, {vr(f1(ct,1,ri),4)}, {vr(d,4)}")
    OP2 = CAP
    for ct in range(2):
        for v in range(4):
            re = D1 + ct * 8 + v; im = re + 4
            cmul_tw(k, re, im, TWC + 4 * ct + v, TWS + 4 * ct + v, False, T + v)
            k(f"v_cvt_pk_f16_f32 v{OP2+4*ct+v}, v{re}, v{im}")
    D2 = SA
    for ct in range(2):
        k(f"{MF} {vr(D2+ct*8,4)}, {vr(OP2+4*ct,4)}, {vr(F2R,4)}, 0")
        k(f"{MF} {vr(D2+ct*8+4,4)}, {vr(OP2+4*ct,4)}, {vr(F2I,4)}, 0")
    for ct in range(2):
        for v in range(4):
            k(f"v_cvt_pk_f16_f32 v{Z+4*ct+v}, v{D2+ct*8+v}, v{D2+ct*8+4+v}")
        k(f"ds_write_b128 v{vW2+ct}, {vr(Z+4*ct,4)}")
    k.stamp()
    k("s_waitcnt lgkmcnt(0)\ns_barrier")
    k.stamp()
    O3 = X
    for q in range(2):
        for x in range(2):
            d = O3 + (q * 2 + x) * 4
            k(f"ds_read2st64_b32 {vr(d,2)}, v{vR3+2*q+x} offset0:0 offset1:8")
            k(f"ds_read2st64_b32 {vr(d+2,2)}, v{vR3+2*q+x} offset0:16 offset1:24")
    D3 = F1
    for q in range(2):
        for x in range(2):
            k(f"s_waitcnt lgkmcnt({6-2*(2*q+x)})")
            for ri in range(2):
                d = D3 + ((q * 2 + x) * 2 + ri) * 4
                k(f"{MF} {vr(d,4)}, {vr(O3+(q*2+x)*4,4)}, {vr(F3+(x*2+ri)*4,4)}, 0")
    P = SA
    for q in range(2):
        for v in range(4):
            for x in range(2):
                d = D3 + ((q * 2 + x) * 2) * 4 + v
                k(f"v_cvt_pk_f16_f32 v{P+8*q+2*v+x}, v{d}, v{d+4}")
        k(f"buffer_store_dwordx4 {vr(P+8*q,4)}, v{vSt+q}, {sr(dZ,4)}, s{sS0} offen")
        k(f"v_xor_b32 v{T+q}, 16, v{vSt+q}")
        k(f"buffer_store_dwordx4 {vr(P+8*q+4,4)}, v{T+q}, {sr(dZ,4)}, s{sS0} offen")
    k.stamp()
    if k.prof: k("s_waitcnt vmcnt(0)")
    k.stamp_flush()
    k("A_end:\ns_endpgm")
    return k

def gen_b():
    k = Kern("fb_kernel", 264, 512, 34 * 1024)
    pW = k.s(4); pWS = k.s(2)
    sSlot = k.s(); sT = k.s(); sRho = k.s(); sC = k.s(); sU = k.s()
    k.stamp(True)
    k(f"s_load_dwordx4 {sr(pW,4)}, s[0:1], 8")
    k(f"s_load_dwordx2 {sr(pWS,2)}, s[0:1], 96")
    k(f"s_and_b32 s{sSlot}, s2, 7\ns_mul_i32 s{sSlot}, s{sSlot}, 33\ns_lshr_b32 s{sT}, s2, 3\ns_add_u32 s{sSlot}, s{sSlot}, s{sT}")
    k(f"s_cmp_ge_u32 s2, 264\ns_cbranch_scc1 B_end")
    k(f"s_cmp_ge_u32 s{sSlot}, {NSLOT}\ns_cbranch_scc1 B_end")
    k(f"s_add_u32 s{sT}, s{sSlot}, 31\ns_lshr_b32 s{sRho}, s{sT}, 6\ns_and_b32 s{sC}, s{sT}, 63")
    k(f"s_cmp_lt_u32 s{sSlot}, 33\ns_cselect_b32 s{sC}, s{sSlot}, s{sC}")
    vL = k.v(); vI = k.v(); vG = k.v(); vOff = k.v()
    T = k.v(8)
    k(f"v_lshrrev_b32 v{T}, 6, v0")
    k(f"v_and_b32 v{vL}, 63, v0")
    k(f"v_readfirstlane_b32 s{sU}, v{T}")
    k(f"v_lshlrev_b32 v{vOff}, 4, v{vL}")
    k(f"v_and_b32 v{vI}, 15, v{vL}\nv_lshrrev_b32 v{vG}, 4, v{vL}")
    vWa = k.v(); vWe = k.v(); vKs = k.v(); vNk = k.v()
    k(f"v_bfe_u32 v{T}, v0, 4, 4")
    k(f"v_lshl_add_u32 v{T}, v{vI}, 4, v{T}")
    k(f"v_lshl_add_u32 v{vKs}, v{T}, 3, s{sRho}")
    k(f"v_sub_u32 v{vNk}, 2048, v{vKs}\nv_and_b32 v{vNk}, 2047, v{vNk}")
    sCol = k.s(); sHi = k.s()
    k(f"s_lshl_b32 s{sCol}, s{sC}, 4\ns_sub_u32 s{sT}, 1010, s{sCol}")
    k(f"s_cmp_ge_u32 s{sU}, 4\ns_cselect_b32 s{sCol}, s{sT}, s{sCol}\ns_cselect_b64 vcc, -1, 0\ns_cselect_b32 s{sHi}, 1024, 0")
    k(f"v_cndmask_b32 v{T}, v{vKs}, v{vNk}, vcc\nv_cndmask_b32 v{T+1}, v{vNk}, v{vKs}, vcc")
    k(f"v_mul_u32_u24 v{vWa}, 1026, v{T}\nv_mul_u32_u24 v{vWe}, 1026, v{T+1}")
    k("s_waitcnt lgkmcnt(0)")
    k.stamp_init2(2, pWS); k.stamp()
    dZ = k.srd(pWS, ZA_BYTES, WS_ZA)
    sO = k.s()
    k(f"s_lshl_b32 s{sO}, s{sSlot}, 14\ns_lshl_b32 s{sT}, s{sU}, 11\ns_add_u32 s{sO}, s{sO}, s{sT}\ns_mov_b32 m0, s{sT}")
    k(f"buffer_load_dwordx4 v{vOff}, {sr(dZ,4)}, s{sO} offen lds")
    k(f"buffer_load_dwordx4 v{vOff}, {sr(dZ,4)}, s{sO} offen offset:1024 lds")
    dR = k.srd(pW, W_BYTES); dI = k.srd(pW + 2, W_BYTES); dX = k.srd(pWS, 256, WS_WMAX)
    WR = k.v(4); WI = k.v(4); vMx = k.v()
    k(f"v_lshlrev_b32 v{T}, 2, v{vL}")
    k(f"buffer_load_dword v{vMx}, v{T}, {sr(dX,4)}, 0 offen")
    k(f"buffer_load_dwordx4 {vr(WR,4)}, v{vWa}, {sr(dR,4)}, s{sCol} offen")
    k(f"buffer_load_dwordx4 {vr(WI,4)}, v{vWa}, {sr(dI,4)}, s{sCol} offen")
    dO = k.srd(pWS, ZB_BYTES, WS_ZB); dS = k.srd(pWS, 8, WS_SCAL)
    vCp = k.v(); vSp = k.v()
    k(f"s_lshl_b32 s{sT}, s{sC}, 3\ns_add_u32 s{sT}, s{sT}, s{sU}\ns_add_u32 s{sT}, s{sT}, 256\nv_mov_b32 v{T}, s{sT}")
    sincos(k, vCp, vSp, T, 2048, T + 1)
    k(f"v_mul_f32 v{vCp}, {fbits(0.25)}, v{vCp}\nv_mul_f32 v{vSp}, {fbits(0.25)}, v{vSp}")
    G = k.v(32)
    def g1(ks, o): return G + (ks * 4 + o) * 4
    for e2 in range(2):
        k(f"v_lshl_add_u32 v{T}, v{vG}, 1, {e2}")
        k(f"v_mul_u32_u24 v{T}, v{T}, v{vI}\nv_and_b32 v{T}, 15, v{T}")
        sincos(k, T + 1, T + 2, T, 16, T + 3)
        k(f"v_mul_f32 v{T+4}, v{vCp}, v{T+1}\nv_mul_f32 v{T+5}, v{vCp}, v{T+2}")
        k(f"v_mul_f32 v{T+6}, v{vSp}, v{T+1}\nv_mul_f32 v{T+7}, v{vSp}, v{T+2}")
        p1 = f"v{T+4}, v{T+5}"; p2 = f"-v{T+5}, v{T+4}"; p3 = f"v{T+7}, -v{T+6}"; p4 = f"v{T+6}, v{T+7}"
        for o, (pa, pb) in enumerate(((p1, p3), (p2, p4), (p3, p1), (p4, p2))):
            k(f"v_cvt_pk_f16_f32 v{g1(0,o)+2*e2}, {pa}\nv_cvt_pk_f16_f32 v{g1(0,o)+2*e2+1}, {pb}")
    sSign = k.s()
    k(f"s_mov_b32 s{sSign}, 0x80008000")
    k(f"v_and_b32 v{T}, 1, v{vI}\nv_mul_lo_u32 v{T}, v{T}, s{sSign}")
    for x in range(16): k(f"v_xor_b32 v{G+16+x}, v{T}, v{G+x}")
    TWC = k.v(4); TWS = k.v(4); FR = k.v(4); FI = k.v(4); CR = k.v(4); CI = k.v(4); H = k.v(16)
    for v in range(4):
        k(f"v_lshl_add_u32 v{T}, v{vG}, 2, {v}")
        k(f"v_mul_u32_u24 v{T}, v{T}, v{vI}")
        sincos(k, TWC + v, TWS + v, T, 256, T + 3)
        k(f"v_and_b32 v{T}, 15, v{T}")
        sincos(k, T + 1, T + 2, T, 16, T + 3)
        k(f"v_mul_f32 v{T+4}, v{vCp}, v{T+1}\nv_mul_f32 v{T+5}, v{vCp}, v{T+2}")
        k(f"v_mul_f32 v{T+6}, v{vSp}, v{T+1}\nv_mul_f32 v{T+7}, v{vSp}, v{T+2}")
        k(f"v_mul_f32 v{T+1}, {fbits(0.25)}, v{T+1}\nv_mul_f32 v{T+2}, {fbits(0.25)}, v{T+2}")
        k(f"v_cvt_pk_f16_f32 v{FR+v}, v{T+1}, v{T+2}\nv_cvt_pk_f16_f32 v{FI+v}, -v{T+2}, v{T+1}")
        k(f"v_cvt_pk_f16_f32 v{CR+v}, v{T+1}, -v{T+2}\nv_cvt_pk_f16_f32 v{CI+v}, v{T+2}, v{T+1}")
        k(f"v_cvt_pk_f16_f32 v{H+v}, v{T+4}, -v{T+5}\nv_cvt_pk_f16_f32 v{H+4+v}, v{T+5}, v{T+4}")
        k(f"v_cvt_pk_f16_f32 v{H+8+v}, v{T+7}, v{T+6}\nv_cvt_pk_f16_f32 v{H+12+v}, -v{T+6}, v{T+7}")
    vRd = k.v(); vWr = k.v(); vWw = k.v(); vWrd = k.v(); vOr = k.v(); vOs = k.v()
    k(f"s_lshr_b32 s{sT}, s{sU}, 1")
    k(f"v_lshrrev_b32 v{T}, 2, v{vI}\nv_xor_b32 v{T}, s{sT}, v{T}\nv_lshlrev_b32 v{T}, 4, v{T}")
    k(f"v_lshl_add_u32 v{T}, v{vI}, 6, v{T}")
    k(f"s_and_b32 s{sT}, s{sU}, 1\ns_lshl_b32 s{sT}, s{sT}, 3\nv_add_u32 v{T}, s{sT}, v{T}")
    k(f"v_lshl_add_u32 v{vRd}, v{vG}, 11, v{T}")
    k(f"v_lshl_add_u32 v{vWr}, v{vG}, 12, v{T}")
    k(f"v_bfe_u32 v{T}, v0, 6, 2\nv_sub_u32 v{T}, 0, v{T}\nv_and_b32 v{T}, 3, v{T}\nv_lshlrev_b32 v{T}, 2, v{T}")
    k(f"v_and_b32 v{T+1}, 255, v0\nv_xor_b32 v{T}, v{T}, v{T+1}\nv_lshlrev_b32 v{T}, 2, v{T}")
    k(f"s_lshl_b32 s{sT}, s{sHi}, 3\ns_add_u32 s{sT}, s{sT}, 16384")
    k(f"v_add_u32 v{vWw}, s{sT}, v{T}")
    k(f"v_lshrrev_b32 v{T}, 2, v{vI}\nv_sub_u32 v{T}, 0, v{T}\nv_and_b32 v{T}, 3, v{T}\nv_xor_b32 v{T}, v{T}, v{vG}\nv_lshlrev_b32 v{T}, 4, v{T}")
    k(f"v_lshl_add_u32 v{T}, v{vI}, 6, v{T}")
    k(f"s_lshl_b32 s{sT}, s{sU}, 10\ns_add_u32 s{sT}, s{sT}, 16384")
    k(f"v_add_u32 v{vWrd}, s{sT}, v{T}")
    k(f"v_lshlrev_b32 v{vOr}, 4, v0")
    k(f"v_lshrrev_b32 v{T}, 2, v0\nv_mul_u32_u24 v{T}, {ZB_PITCH}, v{T}")
    k(f"v_lshrrev_b32 v{T+1}, 4, v0\nv_xor_b32 v{T+1}, v{T+1}, v0\nv_and_b32 v{T+1}, 3, v{T+1}")
    k(f"v_lshl_add_u32 v{vOs}, v{T+1}, 4, v{T}")
    k.stamp()
    k("s_waitcnt vmcnt(3)\ns_barrier")
    k.stamp()
    OP = k.v(8)
    for ks in range(2):
        for e2 in range(2):
            k(f"ds_read_b64 {vr(OP+4*ks+2*e2,2)}, v{vRd} offset:{(8*ks+e2)*1024}")
    D = k.v(16)
    k("s_waitcnt lgkmcnt(2)")
    for o in range(4): k(f"{MF} {vr(D+4*o,4)}, {vr(OP,4)}, {vr(g1(0,o),4)}, 0")
    k("s_waitcnt lgkmcnt(0)")
    for o in range(4): k(f"{MF} {vr(D+4*o,4)}, {vr(OP+4,4)}, {vr(g1(1,o),4)}, {vr(D+4*o,4)}")
    k("s_waitcnt vmcnt(0)")
    k.stamp()
    sMx = k.s(); sPa = k.s(); sPb = k.s()
    wave_reduce(k, "v_max_u32", [vMx], [sMx])
    k(f"s_mov_b32 s{sPa}, 0x05040100\ns_mov_b32 s{sPb}, 0x07060302")
    WP = k.v(8)
    for q in range(4):
        k(f"v_perm_b32 v{WP+2*q}, v{WI+q}, v{WR+q}, s{sPa}\nv_perm_b32 v{WP+2*q+1}, v{WI+q}, v{WR+q}, s{sPb}")
    vWs = k.v()
    k(f"s_cmp_ge_u32 s{sU}, 4\ns_cbranch_scc1 B_wrev")
    for e in range(0, 8, 2): k(f"ds_write2st64_b32 v{vWw}, v{WP+e}, v{WP+e+1} offset0:{4*e} offset1:{4*e+4}")
    k("s_branch B_wdone\nB_wrev:")
    for e in range(0, 8, 2): k(f"ds_write2st64_b32 v{vWw}, v{WP+e}, v{WP+e+1} offset0:{4*(7-e)} offset1:{4*(6-e)}")
    k("B_wdone:")
    k(f"s_cmp_lg_u32 s{sC}, 0\ns_cbranch_scc1 B_noextra")
    k(f"buffer_load_ushort v{T}, v{vWe}, {sr(dR,4)}, s{sHi} offen")
    k(f"buffer_load_ushort v{T+1}, v{vWe}, {sr(dI,4)}, s{sHi} offen")
    k(f"s_mul_i32 s{sT}, s{sHi}, 7\ns_sub_u32 s{sT}, 16384, s{sT}\nv_add_u32 v{T+2}, s{sT}, v{vWw}")
    k("s_waitcnt vmcnt(0)")
    k(f"v_lshl_or_b32 v{T}, v{T+1}, 16, v{T}")
    k(f"ds_write_b32 v{T+2}, v{T}")
    k("B_noextra:")
    sE2 = k.s(); sSc = k.s()
    k(f"s_lshr_b32 s{sE2}, s{sMx}, 7\ns_sub_i32 s{sE2}, 125, s{sE2}\ns_min_i32 s{sE2}, s{sE2}, 100\ns_max_i32 s{sE2}, s{sE2}, -100")
    k(f"s_add_u32 s{sSc}, s{sE2}, 127\ns_lshl_b32 s{sSc}, s{sSc}, 23")
    OP2 = OP
    for w in range(2):
        for v in range(4):
            re = D + 8 * w + v; im = re + 4
            cmul_tw(k, re, im, TWC + v, TWS + v, False, T + 4 + v)
            k(f"v_cvt_pk_f16_f32 v{OP2+4*w+v}, v{re}, v{im}")
    k("s_waitcnt lgkmcnt(0)\ns_barrier")
    k.stamp()
    k(f"ds_read_b128 {vr(WP,4)}, v{vWrd}\nds_read_b128 {vr(WP+4,4)}, v{vWrd} offset:8192")
    for w in range(2):
        k(f"{MF} {vr(D+8*w,4)}, {vr(FR,4)}, {vr(OP2+4*w,4)}, 0")
        k(f"{MF} {vr(D+8*w+4,4)}, {vr(FI,4)}, {vr(OP2+4*w,4)}, 0")
    sMask = k.s()
    k(f"s_mov_b32 s{sMask}, 0xffff0000")
    Wf = G
    k("s_waitcnt lgkmcnt(0)")
    unpack_bf16(k, Wf, WP, 8, sMask)
    k(f"s_or_b32 s{sT}, s{sC}, s{sU}\ns_cmp_lg_u32 s{sT}, 0\ns_cbranch_scc1 B_nospec")
    k(f"ds_read_b128 {vr(WP,4)}, v{vWrd} offset:16384\nds_read_b128 {vr(WP+4,4)}, v{vWrd} offset:17408")
    k("s_waitcnt lgkmcnt(0)")
    unpack_bf16(k, Wf + 16, WP, 8, sMask)
    for i in range(8):
        k(f"v_add_f32 v{Wf+2*i}, v{Wf+2*i}, v{Wf+16+2*i}\nv_sub_f32 v{Wf+2*i+1}, v{Wf+2*i+1}, v{Wf+16+2*i+1}")
    k(f"s_sub_u32 s{sSc}, s{sSc}, {1<<23}")
    k(f"s_cmp_lg_u32 s{sSlot}, 0\ns_cbranch_scc1 B_nospec")
    k(f"v_mov_b32 v{T}, 4\nv_mov_b32 v{T+1}, s{sE2}\nbuffer_store_dword v{T+1}, v{T}, {sr(dS,4)}, 0 offen")
    k("B_nospec:")
    for i in range(16): k(f"v_mul_f32 v{Wf+i}, s{sSc}, v{Wf+i}")
    for w in range(2):
        for v in range(4):
            re = D + 8 * w + v; im = re + 4
            cmul_tw(k, re, im, Wf + 8 * w + 2 * v, Wf + 8 * w + 2 * v + 1, w == 0, T + 4 + v)
            k(f"v_cvt_pk_f16_f32 v{OP2+4*w+v}, v{re}, v{im}")
    for w in range(2):
        k(f"{MF} {vr(D+8*w,4)}, {vr(OP2+4*w,4)}, {vr(CR,4)}, 0")
        k(f"{MF} {vr(D+8*w+4,4)}, {vr(OP2+4*w,4)}, {vr(CI,4)}, 0")
    for w in range(2):
        for v in range(4):
            re = D + 8 * w + v; im = re + 4
            cmul_tw(k, re, im, TWC + v, TWS + v, True, T + 4 + v)
            k(f"v_cvt_pk_f16_f32 v{OP2+4*w+v}, v{re}, v{im}")
    for x in range(2):
        for ri in range(2):
            k(f"{MF} {vr(D+8*x+4*ri,4)}, {vr(H+8*x+4*ri,4)}, {vr(OP2,4)}, 0")
    for x in range(2):
        for ri in range(2):
            d = D + 8 * x + 4 * ri
            k(f"{MF} {vr(d,4)}, {vr(H+8*(1-x)+4*ri,4)}, {vr(OP2+4,4)}, {vr(d,4)}")
    P = WP
    for v in range(4):
        k(f"v_cvt_pk_f16_f32 v{P+2*v}, v{D+v}, v{D+4+v}\nv_cvt_pk_f16_f32 v{P+2*v+1}, v{D+8+v}, v{D+12+v}")
        k(f"ds_write_b64 v{vWr}, {vr(P+2*v,2)} offset:{v*1024}")
    k("s_waitcnt lgkmcnt(0)\ns_barrier")
    k.stamp()
    k(f"ds_read_b128 {vr(D,4)}, v{vOr}\nds_read_b128 {vr(D+4,4)}, v{vOr} offset:8192")
    k(f"s_lshl_b32 s{sO}, s{sSlot}, 6\ns_add_u32 s{sT}, s{sO}, {128*ZB_PITCH}")
    k("s_waitcnt lgkmcnt(1)")
    k(f"buffer_store_dwordx4 {vr(D,4)}, v{vOs}, {sr(dO,4)}, s{sO} offen")
    k("s_waitcnt lgkmcnt(0)")
    k(f"buffer_store_dwordx4 {vr(D+4,4)}, v{vOs}, {sr(dO,4)}, s{sT} offen")
    k.stamp()
    if k.prof: k("s_waitcnt vmcnt(0)")
    k.stamp_flush()
    k("B_end:\ns_endpgm")
    return k

def gen_c():
    TB = 17 * 1024
    TP = (512 + 4) * 4
    k = Kern("fc_kernel", 256, 512, TB + 8 * TP)
    pX = k.s(2); pWS = k.s(2)
    k(f"s_cmp_ge_u32 s2, 256\ns_cbranch_scc1 C_end")
    k.stamp(True)
    k(f"s_load_dwordx2 {sr(pX,2)}, s[0:1], 0")
    k(f"s_load_dwordx2 {sr(pWS,2)}, s[0:1], 96")
    sJ = k.s(); sMask = k.s(); sT = k.s(); sRow = k.s(); sO = k.s()
    vL = k.v(); vI = k.v(); vG = k.v(); vOff = k.v(); vXo = k.v()
    T = k.v(8)
    k(f"v_lshrrev_b32 v{T}, 6, v0")
    k(f"v_and_b32 v{vL}, 63, v0")
    k(f"v_readfirstlane_b32 s{sJ}, v{T}")
    k(f"v_lshlrev_b32 v{vOff}, 4, v{vL}")
    k(f"v_and_b32 v{vI}, 15, v{vL}\nv_lshrrev_b32 v{vG}, 4, v{vL}")
    k(f"v_lshlrev_b32 v{vXo}, 6, v{vI}\nv_lshl_add_u32 v{vXo}, v{vG}, 4, v{vXo}")
    k(f"s_mov_b32 s{sMask}, 0xffff0000")
    k(f"s_lshl_b32 s{sRow}, s{sJ}, 8\ns_add_u32 s{sRow}, s{sRow}, s2\ns_lshl_b32 s{sRow}, s{sRow}, 11")
    k("s_waitcnt lgkmcnt(0)")
    k.stamp_init2(3, pWS); k.stamp()
    sSc = k.s(2)
    k(f"s_load_dwordx2 {sr(sSc,2)}, {sr(pWS,2)}, {WS_SCAL}")
    dZ = k.srd(pWS, ZB_BYTES, WS_ZB)
    k(f"s_mul_i32 s{sO}, s2, {ZB_PITCH}")
    k(f"s_cmp_lg_u32 s{sJ}, 0\ns_cbranch_scc1 C_no17")
    k(f"s_mov_b32 m0, 16384\ns_add_u32 s{sT}, s{sO}, 16384")
    k(f"buffer_load_dwordx4 v{vOff}, {sr(dZ,4)}, s{sT} offen lds")
    k("C_no17:")
    k(f"s_lshl_b32 s{sT}, s{sJ}, 11\ns_add_u32 s{sO}, s{sO}, s{sT}\ns_mov_b32 m0, s{sT}")
    k(f"buffer_load_dwordx4 v{vOff}, {sr(dZ,4)}, s{sO} offen lds")
    k(f"buffer_load_dwordx4 v{vOff}, {sr(dZ,4)}, s{sO} offen offset:1024 lds")
    dX = k.srd(pX, 2048 * 2048); dM = k.srd(pWS, 12288, WS_MOD)
    XP = k.v(8); GAP = k.v(8); SBP = k.v(8); CBP = k.v(8)
    k(f"buffer_load_dwordx4 {vr(XP,4)}, v{vXo}, {sr(dX,4)}, s{sRow} offen")
    k(f"buffer_load_dwordx4 {vr(XP+4,4)}, v{vXo}, {sr(dX,4)}, s{sRow} offen offset:1024")
    sM4 = k.s(); sM8 = k.s()
    k(f"s_mov_b32 s{sM4}, 4096\ns_mov_b32 s{sM8}, 8192")
    k(f"buffer_load_dwordx4 {vr(GAP,4)}, v{vXo}, {sr(dM,4)}, s{sM4} offen")
    k(f"buffer_load_dwordx4 {vr(GAP+4,4)}, v{vXo}, {sr(dM,4)}, s{sM4} offen offset:1024")
    k(f"buffer_load_dwordx4 {vr(SBP,4)}, v{vXo}, {sr(dM,4)}, s{sM4} offen offset:2048")
    k(f"buffer_load_dwordx4 {vr(SBP+4,4)}, v{vXo}, {sr(dM,4)}, s{sM4} offen offset:3072")
    k(f"buffer_load_dwordx4 {vr(CBP,4)}, v{vXo}, {sr(dM,4)}, s{sM8} offen")
    k(f"buffer_load_dwordx4 {vr(CBP+4,4)}, v{vXo}, {sr(dM,4)}, s{sM8} offen offset:1024")
    dX1 = k.srd(pWS, 4 << 20, WS_X1); dY2 = k.srd(pWS, 4 << 20, WS_Y2)
    vRho = k.v(4); vXs = k.v(4)
    vY = k.v(); vHf = k.v()
    k(f"v_lshrrev_b32 v{vY}, 1, v{vG}\nv_and_b32 v{vHf}, 1, v{vG}")
    F1 = k.v(8)
    s8 = 1 / math.sqrt(8)
    vSc = k.v(); vS = k.v()
    k(f"v_lshrrev_b32 v{T}, 3, v{vI}")
    k(f"v_cmp_eq_u32 vcc, v{T}, v{vY}")
    k(f"v_mov_b32 v{T+2}, {fbits(s8)}")
    k(f"v_cndmask_b32 v{vSc}, 0, v{T+2}, vcc")
    k(f"v_and_b32 v{vS}, 7, v{vI}\nv_lshl_add_u32 v{vS}, v{vS}, 8, s2")
    sSign = k.s()
    k(f"s_mov_b32 s{sSign}, 0x80008000")
    for e in range(4):
        k(f"v_add_u32 v{vRho+e}, {e}, v{vHf}")
        if e < 3: k(f"v_xor_b32 v{vXs+e}, v{vY}, v{vHf}")
        else: k(f"v_mov_b32 v{vXs+e}, v{vY}")
        k(f"v_mul_u32_u24 v{T}, v{vS}, v{vRho+e}\nv_and_b32 v{T}, 0x7ff, v{T}")
        sincos(k, T + 1, T + 2, T, 2048, T + 3)
        k(f"v_mul_f32 v{T+1}, v{vSc}, v{T+1}\nv_mul_f32 v{T+2}, v{vSc}, v{T+2}")
        k(f"v_cvt_pk_f16_f32 v{F1+e}, v{T+1}, -v{T+2}")
        k(f"v_cvt_pk_f16_f32 v{F1+4+e}, v{T+2}, v{T+1}")
        k(f"v_mul_lo_u32 v{T}, v{vXs+e}, s{sSign}\nv_xor_b32 v{F1+4+e}, v{T}, v{F1+4+e}")
    vR1 = k.v(8)
    for q in range(2):
        k(f"s_lshl_b32 s{sT}, s{sJ}, 5\ns_add_u32 s{sT}, s{sT}, {16*q}")
        k(f"v_lshl_add_u32 v{T}, v{vY}, 8, v{vI}\nv_add_u32 v{T}, s{sT}, v{T}")
        k(f"v_sub_u32 v{T+1}, 512, v{T}\nv_and_b32 v{T+1}, 511, v{T+1}")
        k(f"v_lshlrev_b32 v{T}, 3, v{T}\nv_lshl_add_u32 v{T+1}, v{T+1}, 3, 4")
        for e in range(4):
            k(f"v_cmp_eq_u32 vcc, 0, v{vXs+e}")
            k(f"v_lshlrev_b32 v{T+2}, 6, v{vRho+e}\nv_subrev_u32 v{T+2}, 31, v{T+2}\nv_max_i32 v{T+2}, 0, v{T+2}")
            k(f"v_cndmask_b32 v{T+3}, v{T+1}, v{T}, vcc")
            k(f"v_lshl_add_u32 v{vR1+4*q+e}, v{T+2}, 6, v{T+3}")
    vW1 = k.v(2)
    for q in range(2):
        k(f"s_and_b32 s{sT}, s{sJ}, 1\ns_xor_b32 s{sT}, s{sT}, {q}\ns_lshl_b32 s{sT}, s{sT}, 6")
        k(f"s_lshl_b32 s{sO}, s{sJ}, 7\ns_add_u32 s{sT}, s{sT}, s{sO}\ns_add_u32 s{sT}, s{sT}, {TB}")
        k(f"v_and_b32 v{T}, 7, v{vI}\nv_mul_u32_u24 v{T}, {TP}, v{T}")
        k(f"v_lshrrev_b32 v{T+1}, 3, v{vI}\nv_lshl_add_u32 v{T}, v{T+1}, 10, v{T}")
        k(f"v_lshl_add_u32 v{T}, v{vG}, 4, v{T}")
        k(f"v_add_u32 v{vW1+q}, s{sT}, v{T}")
    vR2 = k.v(2)
    k(f"s_mul_i32 s{sT}, s{sJ}, {TP}\ns_add_u32 s{sT}, s{sT}, {TB}")
    for rt in range(2):
        k(f"v_xor_b32 v{T}, {rt}, v{vHf}\nv_lshl_add_u32 v{T}, v{T}, 4, v{vI}\nv_lshl_add_u32 v{T}, v{vG}, 5, v{T}")
        k(f"v_lshl_add_u32 v{vR2+rt}, v{T}, 2, s{sT}")
    F2R = k.v(4); F2I = k.v(4)
    for e in range(4):
        k(f"v_add_u32 v{T}, {4*e}, v{vG}\nv_mul_u32_u24 v{T}, v{T}, v{vI}\nv_and_b32 v{T}, 15, v{T}")
        sincos(k, T + 1, T + 2, T, 16, T + 3)
        k(f"v_mul_f32 v{T+1}, {fbits(0.25)}, v{T+1}\nv_mul_f32 v{T+2}, {fbits(0.25)}, v{T+2}")
        k(f"v_cvt_pk_f16_f32 v{F2R+e}, v{T+1}, -v{T+2}\nv_cvt_pk_f16_f32 v{F2I+e}, v{T+2}, v{T+1}")
    TWC = k.v(8); TWS = k.v(8)
    for rt in range(2):
        for v in range(4):
            k(f"v_lshl_add_u32 v{T}, v{vG}, 2, {16*rt+v}\nv_mul_u32_u24 v{T}, v{T}, v{vI}")
            sincos(k, TWC + 4 * rt + v, TWS + 4 * rt + v, T, 512, T + 3)
    F3 = k.v(32)
    def f3(ct, rt, ri): return F3 + ((ct * 2 + rt) * 2 + ri) * 4
    sg = 1 / math.sqrt(32)
    for v in range(4):
        k(f"v_lshl_add_u32 v{T}, v{vG}, 2, {v}\nv_mul_u32_u24 v{T}, v{T}, v{vI}\nv_and_b32 v{T}, 31, v{T}")
        sincos(k, T + 1, T + 2, T, 32, T + 3)
        k(f"v_mul_f32 v{T+1}, {fbits(sg)}, v{T+1}\nv_mul_f32 v{T+2}, {fbits(sg)}, v{T+2}")
        k(f"v_cvt_pk_f16_f32 v{f3(0,0,0)+v}, v{T+1}, -v{T+2}\nv_cvt_pk_f16_f32 v{f3(0,0,1)+v}, v{T+2}, v{T+1}")
    k(f"v_and_b32 v{T}, 1, v{vI}\nv_mul_lo_u32 v{T}, v{T}, s{sSign}\nv_xor_b32 v{T+1}, s{sSign}, v{T}")
    for ri in range(2):
        for v in range(4):
            src = f3(0, 0, ri) + v
            k(f"v_xor_b32 v{f3(0,1,ri)+v}, v{T}, v{src}")
            if v & 1:
                k(f"v_xor_b32 v{f3(1,0,ri)+v}, s{sSign}, v{src}\nv_xor_b32 v{f3(1,1,ri)+v}, v{T+1}, v{src}")
            else:
                k(f"v_mov_b32 v{f3(1,0,ri)+v}, v{src}\nv_xor_b32 v{f3(1,1,ri)+v}, v{T}, v{src}")
    k.stamp()
    k("s_waitcnt vmcnt(8)\ns_barrier")
    k.stamp()
    OP = k.v(8); D = k.v(16)
    for x in range(8): k(f"ds_read_b32 v{OP+x}, v{vR1+x}")
    for q in range(2):
        k(f"s_waitcnt lgkmcnt({4-4*q})") if q else k("s_waitcnt lgkmcnt(0)")
        k(f"{MF} {vr(D+8*q,4)}, {vr(OP+4*q,4)}, {vr(F1,4)}, 0")
        k(f"{MF} {vr(D+8*q+4,4)}, {vr(OP+4*q,4)}, {vr(F1+4,4)}, 0")
    for q in range(2):
        for v in range(4): k(f"v_cvt_pk_f16_f32 v{OP+4*q+v}, v{D+8*q+v}, v{D+8*q+4+v}")
        k(f"ds_write_b128 v{vW1+q}, {vr(OP+4*q,4)}")
    k("s_waitcnt lgkmcnt(0)\ns_barrier")
    for rt in range(2):
        k(f"ds_read2st64_b32 {vr(OP+4*rt,2)}, v{vR2+rt} offset0:0 offset1:2")
        k(f"ds_read2st64_b32 {vr(OP+4*rt+2,2)}, v{vR2+rt} offset0:4 offset1:6")
    for rt in range(2):
        k(f"s_waitcnt lgkmcnt({2-2*rt})")
        k(f"{MF} {vr(D+8*rt,4)}, {vr(OP+4*rt,4)}, {vr(F2R,4)}, 0")
        k(f"{MF} {vr(D+8*rt+4,4)}, {vr(OP+4*rt,4)}, {vr(F2I,4)}, 0")
    for rt in range(2):
        for v in range(4):
            re = D + 8 * rt + v; im = re + 4
            cmul_tw(k, re, im, TWC + 4 * rt + v, TWS + 4 * rt + v, True, T + v)
            k(f"v_cvt_pk_f16_f32 v{OP+4*rt+v}, v{re}, v{im}")
    for ct in range(2):
        for ri in range(2):
            k(f"{MF} {vr(D+8*ct+4*ri,4)}, {vr(OP,4)}, {vr(f3(ct,0,ri),4)}, 0")
    for ct in range(2):
        for ri in range(2):
            d = D + 8 * ct + 4 * ri
            k(f"{MF} {vr(d,4)}, {vr(OP+4,4)}, {vr(f3(ct,1,ri),4)}, {vr(d,4)}")
    def dreg(n): return D + 8 * (n >> 3) + 4 * (n & 1) + ((n & 7) >> 1)
    X = k.v(16); GA = k.v(16)
    k.stamp()
    k("s_waitcnt vmcnt(4)")
    k.stamp()
    unpack_bf16(k, X, XP, 8, sMask); unpack_bf16(k, GA, GAP, 8, sMask)
    sE = k.s()
    k(f"s_add_i32 s{sE}, s{sSc}, s{sSc+1}\ns_sub_i32 s{sE}, 0, s{sE}")
    for n in range(16): k(f"v_ldexp_f32 v{dreg(n)}, v{dreg(n)}, s{sE}")
    for i in range(8): k(f"v_cvt_pk_bf16_f32 v{OP+i}, v{dreg(2*i)}, v{dreg(2*i+1)}")
    unpack_bf16(k, D, OP, 8, sMask)
    for n in range(16): k(f"v_mul_f32 v{D+n}, v{D+n}, v{GA+n}")
    for i in range(8): k(f"v_cvt_pk_bf16_f32 v{OP+i}, v{D+2*i}, v{D+2*i+1}")
    unpack_bf16(k, D, OP, 8, sMask)
    for n in range(16): k(f"v_add_f32 v{X+n}, v{X+n}, v{D+n}")
    for i in range(8): k(f"v_cvt_pk_bf16_f32 v{XP+i}, v{X+2*i}, v{X+2*i+1}")
    sR = k.s()
    k(f"s_lshl_b32 s{sR}, s2, 3\ns_add_u32 s{sR}, s{sR}, s{sJ}\ns_lshl_b32 s{sR}, s{sR}, 11")
    k(f"buffer_store_dwordx4 {vr(XP,4)}, v{vXo}, {sr(dX1,4)}, s{sR} offen")
    k(f"buffer_store_dwordx4 {vr(XP+4,4)}, v{vXo}, {sr(dX1,4)}, s{sR} offen offset:1024")
    unpack_bf16(k, X, XP, 8, sMask)
    vSum = k.v(); vM = k.v(); vDl = k.v(); vR = k.v(); sSum = k.s()
    def layernorm(fill1, fill2):
        k(f"v_add_f32 v{vSum}, v{X}, v{X+1}\nv_add_f32 v{T}, v{X+2}, v{X+3}")
        for i in range(2, 8): k(f"v_add_f32 v{vSum}, v{vSum}, v{X+2*i}\nv_add_f32 v{T}, v{T}, v{X+2*i+1}")
        k(f"v_add_f32 v{vSum}, v{vSum}, v{T}")
        def red(fill):
            r = Kern("x", 0, 0, 0); wave_reduce(r, "v_add_f32", [vSum], [sSum])
            for l in r.lines:
                k(l)
                for _ in range(3):
                    if fill: k(fill.pop(0))
            for l in fill: k(l)
        red(fill1)
        k(f"v_mov_b32 v{vDl}, {fbits(1/1024)}\nv_mul_f32 v{vDl}, s{sSum}, v{vDl}\nv_mov_b32 v{vM}, v{vDl}")
        round_bf16(k, vM)
        k(f"v_sub_f32 v{vDl}, v{vDl}, v{vM}")
        for i in range(16): k(f"v_sub_f32 v{X+i}, v{X+i}, v{vM}")
        k(f"v_mul_f32 v{vSum}, v{X}, v{X}\nv_mul_f32 v{T}, v{X+1}, v{X+1}")
        for i in range(1, 8): k(f"v_fmac_f32 v{vSum}, v{X+2*i}, v{X+2*i}\nv_fmac_f32 v{T}, v{X+2*i+1}, v{X+2*i+1}")
        k(f"v_add_f32 v{vSum}, v{vSum}, v{T}")
        red(fill2)
        k(f"v_mov_b32 v{vR}, {fbits(1/1024)}\nv_mul_f32 v{vR}, s{sSum}, v{vR}")
        k(f"v_fma_f32 v{vR}, -v{vDl}, v{vDl}, v{vR}\nv_max_f32 v{vR}, 0, v{vR}")
        round_bf16(k, vR)
        k(f"v_add_f32 v{vR}, {fbits(1e-5)}, v{vR}")
        round_bf16(k, vR)
        k(f"v_sqrt_f32 v{vR}, v{vR}")
        round_bf16(k, vR)
        k(f"v_rcp_f32 v{vR}, v{vR}")
    SB = GA; CB = D
    k.stamp()
    k("s_waitcnt vmcnt(2)")
    k.stamp()
    u = Kern("x", 0, 0, 0); unpack_bf16(u, SB, SBP, 8, sMask); unpack_bf16(u, CB, CBP, 8, sMask)
    layernorm(list(u.lines), [f"v_mul_f32 v{X+i}, v{X+i}, v{CB+i}" for i in range(16)])
    for i in range(16): k(f"v_fma_f32 v{X+i}, v{X+i}, v{vR}, v{SB+i}")
    for i in range(8): k(f"v_cvt_pk_bf16_f32 v{OP+i}, v{X+2*i}, v{X+2*i+1}")
    unpack_bf16(k, X, OP, 8, sMask)
    layernorm([], [])
    for i in range(16): k(f"v_mul_f32 v{X+i}, v{X+i}, v{vR}")
    for i in range(8): k(f"v_cvt_pk_bf16_f32 v{OP+i}, v{X+2*i}, v{X+2*i+1}")
    k(f"buffer_store_dwordx4 {vr(OP,4)}, v{vXo}, {sr(dY2,4)}, s{sR} offen")
    k(f"buffer_store_dwordx4 {vr(OP+4,4)}, v{vXo}, {sr(dY2,4)}, s{sR} offen offset:1024")
    k.stamp()
    if k.prof: k("s_waitcnt vmcnt(0)")
    k.stamp_flush()
    k("C_end:\ns_endpgm")
    return k
```

```python
from asmlib import *
from kern_fft import *

MB = "v_mfma_f32_16x16x32_bf16"

def tile_map(k, mx, sMt, sNt, sT):
    lm = mx.bit_length() - 1
    gm = 16 // mx
    lgm = gm.bit_length() - 1
    k(f"s_and_b32 s{sMt}, s2, {gm-1}\ns_lshl_b32 s{sMt}, s{sMt}, {lm}")
    k(f"s_lshr_b32 s{sT}, s2, 3\ns_and_b32 s{sT}, s{sT}, {mx-1}\ns_add_u32 s{sMt}, s{sMt}, s{sT}")
    k(f"s_and_b32 s{sNt}, s2, 7\ns_lshr_b32 s{sNt}, s{sNt}, {lgm}\ns_lshl_b32 s{sNt}, s{sNt}, {5-lm}")
    k(f"s_lshr_b32 s{sT}, s2, {3+lm}\ns_add_u32 s{sNt}, s{sNt}, s{sT}")

def interleave(k, main, fill, start=0, every=1):
    fill = list(fill)
    for i, m in enumerate(main):
        k(m)
        if i >= start and (i - start) % every == 0 and fill:
            k(fill.pop(0))
    for f in fill: k(f)

def gen_g1(mx=8):
    NS = 16; BUF = 45056; NB = 3
    k = Kern("g1_kernel", 256, 512, NB * BUF)
    pW = k.s(4); pWS = k.s(2)
    k(f"s_cmp_ge_u32 s2, 256\ns_cbranch_scc1 G1_end")
    k.stamp(True)
    k(f"s_load_dwordx4 {sr(pW,4)}, s[0:1], 32")
    k(f"s_load_dwordx2 {sr(pWS,2)}, s[0:1], 96")
    sW = k.s(); sT = k.s(); sMt = k.s(); sNt = k.s()
    vL = k.v(); vI = k.v(); vG = k.v()
    T = k.v(4)
    k(f"v_lshrrev_b32 v{T}, 6, v0\nv_and_b32 v{vL}, 63, v0")
    k(f"v_readfirstlane_b32 s{sW}, v{T}")
    k(f"v_and_b32 v{vI}, 15, v{vL}\nv_lshrrev_b32 v{vG}, 4, v{vL}")
    tile_map(k, mx, sMt, sNt, sT)
    k(f"s_cmp_ge_u32 s{sW}, 4\ns_cbranch_scc1 G1_loader")
    m0 = k.mark()
    sWm = k.s(); sWn = k.s()
    k(f"s_and_b32 s{sWm}, s{sW}, 1\ns_lshr_b32 s{sWn}, s{sW}, 1")
    vBo = k.v()
    k(f"v_lshlrev_b32 v{vBo}, 3, v{vG}")
    sB0 = k.s(); sB6 = k.s()
    k(f"s_mul_i32 s{sB0}, s{sNt}, 448\ns_lshl_b32 s{sT}, s{sWn}, 5\ns_add_u32 s{sB6}, s{sB0}, s{sT}\ns_mul_i32 s{sT}, s{sWn}, 192\ns_add_u32 s{sB0}, s{sB0}, s{sT}")
    k("s_waitcnt lgkmcnt(0)")
    k.stamp_init2(4, pWS); k.stamp()
    dB = k.srd(pW + 2, 3584 * 2); dH = k.srd(pWS, 2048 * 3584 * 2, WS_H)
    ACC = k.v(112); FR = [k.v(44), k.v(44)]
    BP = FR[1]
    BI = ACC + 84
    for t in range(7):
        if t < 6: k(f"buffer_load_dwordx2 {vr(BP+2*t,2)}, v{vBo}, {sr(dB,4)}, s{sB0} offen offset:{32*t}")
        else: k(f"buffer_load_dwordx2 {vr(BP+2*t,2)}, v{vBo}, {sr(dB,4)}, s{sB6} offen offset:{32*12}")
    def acc(t, mt): return ACC + (mt * 7 + t) * 4
    vY = k.v(2 * NB); vWa = k.v(3 * NB)
    k(f"v_lshrrev_b32 v{T}, 1, v{vI}\nv_xor_b32 v{T}, v{T}, v{vG}\nv_lshlrev_b32 v{T}, 4, v{T}\nv_lshl_add_u32 v{T}, v{vI}, 7, v{T}")
    k(f"s_lshl_b32 s{sT}, s{sWm}, 13\nv_add_u32 v{T}, s{sT}, v{T}")
    for b in range(NB):
        k(f"v_add_u32 v{vY+2*b}, {b*BUF}, v{T}\nv_xor_b32 v{vY+2*b+1}, 64, v{vY+2*b}")
    k(f"v_lshrrev_b32 v{T}, 2, v{vI}\nv_lshl_add_u32 v{T}, v{vG}, 3, v{T}\nv_mul_u32_u24 v{T}, 448, v{T}")
    k(f"v_and_b32 v{T+1}, 3, v{vI}\nv_lshl_add_u32 v{T}, v{T+1}, 3, v{T}")
    k(f"v_and_b32 v{T+1}, 1, v{vG}\nv_lshlrev_b32 v{T+1}, 5, v{T+1}")
    k(f"s_mul_i32 s{sT}, s{sWn}, 192\ns_add_u32 s{sT}, s{sT}, 16384")
    k(f"v_add_u32 v{T+2}, s{sT}, v{T}")
    for b in range(NB):
        k(f"v_add_u32 v{T+3}, {b*BUF}, v{T+2}")
        k(f"v_add_u32 v{vWa+3*b}, v{T+3}, v{T+1}\nv_sub_u32 v{vWa+3*b+1}, v{T+3}, v{T+1}")
    k(f"s_lshl_b32 s{sT}, s{sWn}, 5\nv_xor_b32 v{T+1}, s{sT}, v{T+1}\nv_add_u32 v{T+2}, v{T}, v{T+1}")
    for b in range(NB):
        k(f"v_add_u32 v{vWa+3*b+2}, {b*BUF+16384+12*32}, v{T+2}")
    assert BUF % 128 == 0
    vHo = k.v(); sH = k.s(); sH6 = k.s()
    k(f"v_lshlrev_b32 v{vHo}, 4, v{vL}")
    k(f"s_mul_i32 s{sH}, s{sMt}, {112*8192}\ns_mul_i32 s{sT}, s{sNt}, {7*8192}\ns_add_u32 s{sH}, s{sH}, s{sT}")
    k(f"s_lshl_b32 s{sT}, s{sWm}, 12\ns_add_u32 s{sH}, s{sH}, s{sT}")
    k(f"s_lshl_b32 s{sT}, s{sWn}, 3\ns_add_u32 s{sH6}, s{sH}, s{sT}\ns_add_u32 s{sH6}, s{sH6}, {6*8192}")
    k(f"s_mul_i32 s{sT}, s{sWn}, {3*8192}\ns_add_u32 s{sH}, s{sH}, s{sT}")
    sMask = k.s()
    k(f"s_mov_b32 s{sMask}, 0xffff0000")
    k("s_waitcnt vmcnt(0)")
    for t in range(7): unpack_bf16(k, acc(t, 3), BP + 2 * t, 2, sMask)
    def reads(s, ks, F):
        b = s % NB
        r = []
        yy = [f"ds_read_b128 {vr(F+28+4*mt,4)}, v{vY+2*b+ks} offset:{2048*mt}" for mt in range(4)]
        ww = []
        for t in range(7):
            a = vWa + 3 * b + (2 if t == 6 else (t & 1))
            off = (0 if t == 6 else 32 * t) + ks * 32 * 448
            ww.append(f"ds_read_b64_tr_b16 {vr(F+4*t,2)}, v{a} offset:{off}")
            ww.append(f"ds_read_b64_tr_b16 {vr(F+4*t+2,2)}, v{a} offset:{off+4*448}")
        return yy + ww
    def mfmas(F, first):
        r = []
        for mt in range(4):
            for t in range(7):
                c = vr(acc(t, 3), 4) if first else vr(acc(t, mt), 4)
                r.append(f"{MB} {vr(acc(t,mt),4)}, {vr(F+4*t,4)}, {vr(F+28+4*mt,4)}, {c}")
        return r
    k.stamp()
    k("s_barrier")
    k.stamp()
    for l in reads(0, 0, FR[0]): k(l)
    for s in range(NS):
        k("s_waitcnt lgkmcnt(0)")
        interleave(k, mfmas(FR[0], s == 0), reads(s, 1, FR[1]))
        k("s_waitcnt lgkmcnt(0)")
        if s + 1 < NS:
            k("s_barrier")
            interleave(k, mfmas(FR[1], False), reads(s + 1, 0, FR[0]))
        else:
            for l in mfmas(FR[1], False): k(l)
    k.stamp()
    c1 = -2.0 * LOG2E * math.sqrt(2 / math.pi); c2 = c1 * 0.044715
    sC1 = k.s(); sC2 = k.s()
    k(f"s_mov_b32 s{sC1}, {fbits(c1)}\ns_mov_b32 s{sC2}, {fbits(c2)}")
    vC1 = k.v()
    k(f"v_mov_b32 v{vC1}, s{sC1}")
    E = FR[0]; P = FR[1]
    for mt in range(4):
        base = ACC + mt * 28
        for h in range(0, 28, 14):
            n = range(h, h + 14)
            for x in n: k(f"v_mul_f32 v{E+x}, v{base+x}, v{base+x}")
            for x in n: k(f"v_fma_f32 v{E+x}, v{E+x}, s{sC2}, v{vC1}")
            for x in n: k(f"v_mul_f32 v{E+x}, v{E+x}, v{base+x}")
            for x in n: k(f"v_exp_f32 v{E+x}, v{E+x}")
            for x in n: k(f"v_add_f32 v{E+x}, 1.0, v{E+x}")
            for x in n: k(f"v_rcp_f32 v{E+x}, v{E+x}")
            for x in n: k(f"v_mul_f32 v{E+x}, v{E+x}, v{base+x}")
        Q = P + 16 * (mt & 1)
        for x in range(14): k(f"v_cvt_pk_bf16_f32 v{Q+x}, v{E+2*x}, v{E+2*x+1}")
        for pr in range(3):
            k(f"s_add_u32 s{sT}, s{sH}, {pr*8192}")
            k(f"buffer_store_dwordx4 {vr(Q+4*pr,4)}, v{vHo}, {sr(dH,4)}, s{sT} offen offset:{1024*mt}")
        k(f"buffer_store_dwordx2 {vr(Q+12,2)}, v{vHo}, {sr(dH,4)}, s{sH6} offen offset:{1024*mt}")
    k.stamp()
    if k.prof: k("s_waitcnt vmcnt(0)")
    k.stamp_flush()
    k("s_endpgm")
    k.release(m0)
    k("G1_loader:")
    sLw = k.s(); sY = k.s(); sWo = k.s(); sYq = k.s(); sMy = k.s(); sMw = k.s()
    k(f"s_sub_u32 s{sLw}, s{sW}, 4")
    vYo = k.v(); vWo = k.v(7)
    k(f"s_and_b32 s{sT}, s{sLw}, 1\ns_lshl_b32 s{sT}, s{sT}, 2")
    k(f"v_add_u32 v{T}, s{sT}, v{vG}\nv_and_b32 v{T+1}, 7, v{vL}\nv_xor_b32 v{T}, v{T}, v{T+1}\nv_lshlrev_b32 v{T}, 4, v{T}")
    k(f"v_lshrrev_b32 v{T+1}, 3, v{vL}\nv_lshl_add_u32 v{vYo}, v{T+1}, 11, v{T}")
    for x in range(448): assert (x * 2341) >> 16 == x // 28
    for x in range(7):
        k(f"v_add_u32 v{T}, {64*x}, v{vL}\nv_mul_u32_u24 v{T+1}, 2341, v{T}\nv_lshrrev_b32 v{T+1}, 16, v{T+1}")
        k(f"v_mul_u32_u24 v{T+2}, 28, v{T+1}\nv_sub_u32 v{T}, v{T}, v{T+2}")
        k(f"v_lshrrev_b32 v{T+2}, 2, v{T+1}\nv_and_b32 v{T+2}, 2, v{T+2}\nv_xor_b32 v{T}, v{T}, v{T+2}")
        k(f"v_mul_u32_u24 v{T+1}, 7168, v{T+1}\nv_lshl_add_u32 v{vWo+x}, v{T}, 4, v{T+1}")
    k(f"s_lshl_b32 s{sY}, s{sMt}, 18\ns_lshl_b32 s{sT}, s{sLw}, 14\ns_add_u32 s{sY}, s{sY}, s{sT}")
    k(f"s_mul_i32 s{sWo}, s{sNt}, 448\ns_mul_i32 s{sT}, s{sLw}, {16*7168}\ns_add_u32 s{sWo}, s{sWo}, s{sT}")
    k(f"s_lshl_b32 s{sMy}, s{sLw}, 10\ns_mul_i32 s{sMw}, s{sLw}, 7168\ns_add_u32 s{sMw}, s{sMw}, 16384")
    k("s_waitcnt lgkmcnt(0)")
    dW = k.srd(pW, 1024 * 3584 * 2); dY = k.srd(pWS, 4 << 20, WS_Y2)
    def issue(s):
        b = s % NB
        for x in range(4):
            k(f"s_add_u32 m0, s{sMy}, {b*BUF + 4096*x}\ns_add_u32 s{sYq}, s{sY}, {65536*x + 128*s}")
            k(f"buffer_load_dwordx4 v{vYo}, {sr(dY,4)}, s{sYq} offen lds")
        k(f"s_add_u32 s{sYq}, s{sWo}, {64*7168*s}")
        for x in range(7):
            k(f"s_add_u32 m0, s{sMw}, {b*BUF + 1024*x}")
            k(f"buffer_load_dwordx4 v{vWo+x}, {sr(dW,4)}, s{sYq} offen lds")
    issue(0); issue(1)
    for s in range(NS):
        k(f"s_waitcnt vmcnt({11 if s + 1 < NS else 0})\ns_barrier")
        if s + 2 < NS: issue(s + 2)
    k("G1_end:\ns_endpgm")
    return k

def gen_g2(mx=4, PD=3):
    NX = 28; NSL = PD + 1
    k = Kern("g2_kernel", 256, 256, 96 * 1024)
    pW = k.s(4); pO = k.s(2); pWS = k.s(2)
    k(f"s_cmp_ge_u32 s2, 256\ns_cbranch_scc1 G2_end")
    k.stamp(True)
    k(f"s_load_dwordx4 {sr(pW,4)}, s[0:1], 48")
    k(f"s_load_dwordx2 {sr(pO,2)}, s[0:1], 80")
    k(f"s_load_dwordx2 {sr(pWS,2)}, s[0:1], 96")
    sW = k.s(); sT = k.s(); sMt = k.s(); sNt = k.s()
    vL = k.v(); vI = k.v(); vG = k.v(); T = k.v(4)
    k(f"v_lshrrev_b32 v{T}, 6, v0\nv_and_b32 v{vL}, 63, v0")
    k(f"v_readfirstlane_b32 s{sW}, v{T}")
    k(f"v_and_b32 v{vI}, 15, v{vL}\nv_lshrrev_b32 v{vG}, 4, v{vL}")
    tile_map(k, mx, sMt, sNt, sT)
    vHo = k.v(4); vWo = k.v(); vWr = k.v(2)
    for p in range(4):
        k(f"s_add_u32 s{sT}, s{sW}, {p}\ns_and_b32 s{sT}, s{sT}, 3\ns_lshl_b32 s{sT}, s{sT}, 11")
        k(f"v_lshl_add_u32 v{vHo+p}, v{vL}, 4, s{sT}")
    k(f"v_and_b32 v{T}, 1, v{vG}\nv_lshlrev_b32 v{T}, 2, v{T}\nv_and_b32 v{T+1}, 7, v{vL}\nv_xor_b32 v{T}, v{T}, v{T+1}\nv_lshlrev_b32 v{T}, 4, v{T}")
    k(f"v_lshrrev_b32 v{T+1}, 3, v{vL}\nv_lshl_add_u32 v{vWo}, v{T+1}, 11, v{T}")
    sLb = k.s()
    k(f"s_mul_i32 s{sLb}, s{sW}, {NSL*4096}")
    k(f"v_lshrrev_b32 v{T}, 2, v{vI}\nv_lshl_add_u32 v{T}, v{vG}, 2, v{T}\nv_lshlrev_b32 v{T}, 7, v{T}")
    k(f"v_and_b32 v{T+1}, 3, v{vI}\nv_lshl_add_u32 v{T}, v{T+1}, 4, v{T}")
    k(f"v_lshrrev_b32 v{T+1}, 3, v{vI}\nv_lshl_add_u32 v{T}, v{T+1}, 6, v{T}")
    k(f"v_add_u32 v{vWr}, s{sLb}, v{T}\nv_xor_b32 v{vWr+1}, 64, v{vWr}")
    sH = k.s(); sW2 = k.s(); sA = k.s(); sB = k.s()
    k(f"s_mul_i32 s{sH}, s{sMt}, {112*8192}\ns_lshl_b32 s{sT}, s{sW}, 13\ns_add_u32 s{sH}, s{sH}, s{sT}")
    k(f"s_lshl_b32 s{sW2}, s{sNt}, 7\ns_lshl_b32 s{sT}, s{sW}, 16\ns_add_u32 s{sW2}, s{sW2}, s{sT}")
    k("s_waitcnt lgkmcnt(0)")
    k.stamp_init2(5, pWS); k.stamp()
    dW = k.srd(pW, 3584 * 1024 * 2); dH = k.srd(pWS, 2048 * 3584 * 2, WS_H)
    HB = [k.v(32) for _ in range(PD)]
    WF = [k.v(16), k.v(16)]
    OWN = k.v(32)
    k.agpr = 96
    def acc(t, ms):
        if ms < 2: return vr(OWN + (ms * 4 + t) * 4, 4)
        return ar(((ms - 2) * 4 + t) * 4, 4)
    def h_loads(x):
        r = []
        for ms in range(8):
            pre = f"s_add_u32 s{sA}, s{sH}, {x*32768}\n" if ms == 0 else ""
            r.append(pre + f"buffer_load_dwordx4 {vr(HB[x%PD]+4*ms,4)}, v{vHo+(ms>>1)}, {sr(dH,4)}, s{sA} offen offset:{1024*(ms&1)}")
        return r
    def w_loads(x):
        r = []
        for q in range(4):
            r.append(f"s_add_u32 m0, s{sLb}, {(x%NSL)*4096 + 1024*q}\ns_add_u32 s{sB}, s{sW2}, {x*262144 + q*16384}\n"
                     f"buffer_load_dwordx4 v{vWo}, {sr(dW,4)}, s{sB} offen lds")
        return r
    def w_reads(x):
        r = []
        for t in range(4):
            for hf in range(2):
                r.append(f"ds_read_b64_tr_b16 {vr(WF[x&1]+4*t+2*hf,2)}, v{vWr+(t>>1)} offset:{(x%NSL)*4096 + hf*2048 + (t&1)*8}")
        return r
    for l in w_loads(0): k(l)
    for x in range(PD):
        for l in h_loads(x): k(l)
        for l in w_loads(x + 1): k(l)
    dB = k.srd(pW + 2, 2048); dM = k.srd(pWS, 12288, WS_MOD); dX1 = k.srd(pWS, 4 << 20, WS_X1); dO = k.srd(pO, 4 << 20)
    k(f"s_waitcnt vmcnt({PD*12})")
    for l in w_reads(0): k(l)
    k.stamp()
    XP = k.v(16); GP = k.v(8); BP = k.v(8); vXo = k.v(); vOo = k.v(); vNo = k.v()
    sX = k.s(); sN = k.s(); sOo = k.s(); sGb = k.s()
    extra = 0
    for x in range(NX):
        young = 0
        for y in range(x - PD + 1, x):
            young += (8 if y + PD < NX else 0) + (4 if y + PD + 1 < NX else 0) + (8 if y == NX - PD else 0)
        k(f"s_waitcnt vmcnt({young}) lgkmcnt(0)")
        hl = h_loads(x + PD) if x + PD < NX else []
        wl = w_loads(x + PD + 1) if x + PD + 1 < NX else []
        wr = w_reads(x + 1) if x + 1 < NX else []
        if x == NX - PD:
            k(f"v_lshlrev_b32 v{vNo}, 4, v{vG}\nv_lshl_add_u32 v{vXo}, v{vI}, 11, v{vNo}")
            k(f"s_lshl_b32 s{sN}, s{sNt}, 7\ns_lshl_b32 s{sX}, s{sMt}, 18\ns_lshl_b32 s{sT}, s{sW}, 16\ns_add_u32 s{sX}, s{sX}, s{sT}\ns_add_u32 s{sX}, s{sX}, s{sN}")
            k(f"s_add_u32 s{sT}, s{sX}, 32768\ns_add_u32 s{sGb}, s{sN}, 10240")
            hl = [f"buffer_load_dwordx4 {vr(XP+8*ms+4*P,4)}, v{vXo}, {sr(dX1,4)}, s{sT if ms else sX} offen offset:{64*P}" for ms in range(2) for P in range(2)]
            hl += [f"buffer_load_dwordx4 {vr(GP+4*P,4)}, v{vNo}, {sr(dM,4)}, s{sGb} offen offset:{64*P}" for P in range(2)]
            hl += [f"buffer_load_dwordx4 {vr(BP+4*P,4)}, v{vNo}, {sr(dB,4)}, s{sN} offen offset:{64*P}" for P in range(2)]
        for ms in range(8):
            for t in range(4):
                c = "0" if x == 0 else acc(t, ms)
                k(f"{MB} {acc(t,ms)}, {vr(WF[x&1]+4*t,4)}, {vr(HB[x%PD]+4*ms,4)}, {c}")
                if t == 0 and wr: k(wr.pop(0))
                if t == 1 and (ms & 1) and wl: k(wl.pop(0))
            if hl: k(hl.pop(0))
    k.stamp()
    vRw = k.v(3); vRr = k.v()
    for p in range(1, 4):
        k(f"s_add_u32 s{sT}, s{sW}, {p}\ns_and_b32 s{sT}, s{sT}, 3\ns_mul_i32 s{sT}, s{sT}, 24576\ns_add_u32 s{sT}, s{sT}, {(p-1)*8192}")
        k(f"v_lshl_add_u32 v{vRw+p-1}, v{vL}, 4, s{sT}")
    k(f"s_mul_i32 s{sT}, s{sW}, 24576\nv_lshl_add_u32 v{vRr}, v{vL}, 4, s{sT}")
    k("s_barrier")
    for p in range(1, 4):
        for q in range(8):
            k(f"ds_write_b128 v{vRw+p-1}, {ar(((p-1)*8+q)*4,4)} offset:{1024*q}")
    k(f"v_and_b32 v{T}, 7, v{vI}\nv_lshlrev_b32 v{T}, 19, v{T}\nv_lshrrev_b32 v{T+1}, 3, v{vI}\nv_lshl_add_u32 v{T}, v{T+1}, 11, v{T}\nv_add_u32 v{vOo}, v{T}, v{vNo}")
    k(f"s_lshl_b32 s{sOo}, s{sMt}, 15\ns_lshl_b32 s{sT}, s{sW}, 13\ns_add_u32 s{sOo}, s{sOo}, s{sT}\ns_add_u32 s{sOo}, s{sOo}, s{sN}")
    sMask = k.s()
    k(f"s_mov_b32 s{sMask}, 0xffff0000")
    GB = WF[0]; B2 = WF[1]
    k("s_waitcnt vmcnt(0)")
    unpack_bf16(k, GB, GP, 8, sMask); unpack_bf16(k, B2, BP, 8, sMask)
    for ms in range(2):
        for e in range(16): k(f"v_add_f32 v{OWN+16*ms+e}, v{OWN+16*ms+e}, v{B2+e}")
    k("s_waitcnt lgkmcnt(0)\ns_barrier")
    R = HB[0]
    assert PD >= 3
    for p in range(3):
        for q in range(8):
            k(f"ds_read_b128 {vr(HB[p]+4*q,4)}, v{vRr} offset:{p*8192+1024*q}")
    X = B2
    for p in range(3):
        k(f"s_waitcnt lgkmcnt({min(15, 16-8*p)})" if p < 2 else "s_waitcnt lgkmcnt(0)")
        if p == 0: k("s_waitcnt lgkmcnt(15)\ns_waitcnt lgkmcnt(8)") if False else None
        for e in range(32): k(f"v_add_f32 v{OWN+e}, v{OWN+e}, v{HB[p]+e}")
    for ms in range(2):
        unpack_bf16(k, X, XP + 8 * ms, 8, sMask)
        for e in range(16): k(f"v_fma_f32 v{X+e}, v{OWN+16*ms+e}, v{GB+e}, v{X+e}")
        for e in range(8): k(f"v_cvt_pk_bf16_f32 v{XP+8*ms+e}, v{X+2*e}, v{X+2*e+1}")
        if ms: k(f"s_add_u32 s{sOo}, s{sOo}, 4096")
        for P in range(2):
            k(f"buffer_store_dwordx4 {vr(XP+8*ms+4*P,4)}, v{vOo}, {sr(dO,4)}, s{sOo} offen offset:{64*P}")
    k.stamp()
    if k.prof: k("s_waitcnt vmcnt(0)")
    k.stamp_flush()
    k("G2_end:\ns_endpgm")
    return k
```

```python
import sys, os
from asmlib import *
import gemm2 as K
REF = "adaLN_cond__spectral_gfnet__mixer_channel_mlp__prompt.s.ref"
def header():
    out = []
    for l in open(REF):
        if not l.startswith(";"): break
        if "@launch" in l or "Override launch" in l or "grid=ceil" in l: continue
        out.append(l.rstrip())
    return "\n".join(out)
def make(path, ks, order=None):
    txt = assemble_file(ks, header(), order)
    open(path, "w").write(txt)
    for k in ks: print(k.name, "vgpr", k.maxv, "+", k.agpr, "sgpr", k.maxs, "instr", len(k.lines), "nops", k.nops)
    print(len(txt), "bytes")
if __name__ == "__main__":
    if os.environ.get('PROF'): Kern.prof = 1
    out = sys.argv[1] if len(sys.argv) > 1 else "adaLN_cond__spectral_gfnet__mixer_channel_mlp__prompt.s"
    import fused as F
    make(out, [K.gen_k0(), K.gen_a(nxt="cg_kernel"), K.gen_b(pf=(0,224), nxt=("cg_kernel", "CODE_END")), F.gen_cg()])
```

```python
from asmlib import *
from kern3 import *
MB = "v_mfma_f32_16x16x32_bf16"

def tile_map(k, mx, sMt, sNt, sT):
    lm = mx.bit_length() - 1
    gm = 16 // mx
    lgm = gm.bit_length() - 1
    k(f"s_and_b32 s{sMt}, s2, {gm-1}\ns_lshl_b32 s{sMt}, s{sMt}, {lm}")
    k(f"s_lshr_b32 s{sT}, s2, 3\ns_and_b32 s{sT}, s{sT}, {mx-1}\ns_add_u32 s{sMt}, s{sMt}, s{sT}")
    k(f"s_and_b32 s{sNt}, s2, 7\ns_lshr_b32 s{sNt}, s{sNt}, {lgm}\ns_lshl_b32 s{sNt}, s{sNt}, {5-lm}")
    k(f"s_lshr_b32 s{sT}, s2, {3+lm}\ns_add_u32 s{sNt}, s{sNt}, s{sT}")

def interleave(k, main, fill, start=0, every=1):
    fill = list(fill)
    for i, m in enumerate(main):
        k(m)
        if i >= start and (i - start) % every == 0 and fill:
            k(fill.pop(0))
    for f in fill: k(f)


def gelu_block(k, src, n, E, sC2, vC1):
    r = range(n)
    for x in r: k(f"v_mul_f32 v{E+x}, v{src[x]}, v{src[x]}")
    for x in r: k(f"v_fma_f32 v{E+x}, v{E+x}, s{sC2}, v{vC1}")
    for x in r: k(f"v_mul_f32 v{E+x}, v{E+x}, v{src[x]}")
    for x in r: k(f"v_exp_f32 v{E+x}, v{E+x}")
    for x in r: k(f"v_add_f32 v{E+x}, 1.0, v{E+x}")
    for x in r: k(f"v_rcp_f32 v{E+x}, v{E+x}")
    for x in r: k(f"v_mul_f32 v{E+x}, v{E+x}, v{src[x]}")

def gen_g1(mx=4, pfd=3, l2w=2, st_flags="sc1", noload=False, nomfma=False, noread=False):
    NS = 16; BUF = 45056; NB = 3
    nx = 32 // mx
    k = Kern("g1_kernel", 256, 512, NB * BUF)
    pW = k.s(4); pWS = k.s(2); pW2 = k.s(2)
    k(f"s_cmp_ge_u32 s2, 256\ns_cbranch_scc1 G1_end")
    k.stamp(True)
    k(f"s_load_dwordx4 {sr(pW,4)}, s[0:1], 32")
    k(f"s_load_dwordx2 {sr(pW2,2)}, s[0:1], 48")
    k(f"s_load_dwordx2 {sr(pWS,2)}, s[0:1], 96")
    vL, vI, vG, sW, T = lane_ids(k)
    sT = k.s(); sMt = k.s(); sNt = k.s(); sWm = k.s(); sWn = k.s()
    tile_map(k, mx, sMt, sNt, sT)
    k(f"s_and_b32 s{sWm}, s{sW}, 1\ns_bfe_u32 s{sWn}, s{sW}, 0x10001")
    vHo = k.v(); sH = k.s(); sC1 = k.s(); sC2 = k.s(); vC1 = k.v(); vXa = k.v()
    k(f"v_lshlrev_b32 v{vHo}, 4, v{vL}")
    k(f"s_mul_i32 s{sH}, s{sMt}, {112*8192}\ns_mul_i32 s{sT}, s{sNt}, {7*8192}\ns_add_u32 s{sH}, s{sH}, s{sT}")
    k(f"s_lshl_b32 s{sT}, s{sWm}, 12\ns_add_u32 s{sH}, s{sH}, s{sT}")
    c1 = -2.0 * LOG2E * math.sqrt(2 / math.pi); c2 = c1 * 0.044715
    k(f"s_mov_b32 s{sC2}, {fbits(c2)}\nv_mov_b32 v{vC1}, {fbits(c1)}")
    k(f"s_and_b32 s{sT}, s{sW}, 3\ns_mul_i32 s{sT}, s{sT}, 14336\nv_add_u32 v{vXa}, s{sT}, v{vHo}")
    k(f"s_cmp_ge_u32 s{sW}, 4\ns_cbranch_scc1 G1_loader")
    m0 = k.mark()
    vBo = k.v()
    k(f"v_lshlrev_b32 v{vBo}, 3, v{vG}")
    sB0 = k.s(); sB6 = k.s()
    k(f"s_mul_i32 s{sB0}, s{sNt}, 448\ns_lshl_b32 s{sT}, s{sWn}, 5\ns_add_u32 s{sB6}, s{sB0}, s{sT}\ns_mul_i32 s{sT}, s{sWn}, 192\ns_add_u32 s{sB0}, s{sB0}, s{sT}")
    k("s_waitcnt lgkmcnt(0)")
    k.stamp_init2(4, pWS); k.stamp()
    dB = k.srd(pW + 2, 3584 * 2); dH = k.srd(pWS, 2048 * 3584 * 2, WS_H)
    ACC = k.v(112); FR = [k.v(44), k.v(44)]
    BP = FR[1]
    for t in range(7):
        if t < 6: k(f"buffer_load_dwordx2 {vr(BP+2*t,2)}, v{vBo}, {sr(dB,4)}, s{sB0} offen offset:{32*t}")
        else: k(f"buffer_load_dwordx2 {vr(BP+2*t,2)}, v{vBo}, {sr(dB,4)}, s{sB6} offen offset:{32*12}")
    def acc(t, mt): return ACC + (mt * 7 + t) * 4
    vPf = k.v(); sPf = k.s(); vDum = k.v()
    dP = k.srd(pW2, WBYTES)
    k(f"v_lshlrev_b32 v{vPf}, 7, v{vL}\ns_lshl_b32 s{sPf}, s2, 2\ns_add_u32 s{sPf}, s{sPf}, s{sW}\ns_mul_i32 s{sPf}, s{sPf}, {56*128}")
    pfi = f"buffer_load_dword v{vDum}, v{vPf}, {sr(dP,4)}, s{sPf} offen"
    vY = k.v(2 * NB); vWa = k.v(3 * NB)
    k(f"v_lshrrev_b32 v{T}, 1, v{vI}\nv_xor_b32 v{T}, v{T}, v{vG}\nv_lshlrev_b32 v{T}, 4, v{T}\nv_lshl_add_u32 v{T}, v{vI}, 7, v{T}")
    k(f"s_lshl_b32 s{sT}, s{sWm}, 13\nv_add_u32 v{T}, s{sT}, v{T}")
    for b in range(NB):
        k(f"v_add_u32 v{vY+2*b}, {b*BUF}, v{T}\nv_xor_b32 v{vY+2*b+1}, 64, v{vY+2*b}")
    k(f"v_lshrrev_b32 v{T}, 2, v{vI}\nv_lshl_add_u32 v{T}, v{vG}, 3, v{T}\nv_mul_u32_u24 v{T}, 448, v{T}")
    k(f"v_and_b32 v{T+1}, 3, v{vI}\nv_lshl_add_u32 v{T}, v{T+1}, 3, v{T}")
    k(f"v_and_b32 v{T+1}, 1, v{vG}\nv_lshlrev_b32 v{T+1}, 5, v{T+1}")
    k(f"s_mul_i32 s{sT}, s{sWn}, 192\ns_add_u32 s{sT}, s{sT}, 16384\nv_add_u32 v{T+2}, s{sT}, v{T}")
    for b in range(NB):
        k(f"v_add_u32 v{T+3}, {b*BUF}, v{T+2}\nv_add_u32 v{vWa+3*b}, v{T+3}, v{T+1}\nv_sub_u32 v{vWa+3*b+1}, v{T+3}, v{T+1}")
    k(f"s_lshl_b32 s{sT}, s{sWn}, 5\nv_xor_b32 v{T+1}, s{sT}, v{T+1}\nv_add_u32 v{T+2}, v{T}, v{T+1}")
    for b in range(NB): k(f"v_add_u32 v{vWa+3*b+2}, {b*BUF+16384+12*32}, v{T+2}")
    k(f"s_mul_i32 s{sT}, s{sWn}, {3*8192}\ns_add_u32 s{sH}, s{sH}, s{sT}")
    sMask = k.s()
    k(f"s_mov_b32 s{sMask}, 0xffff0000")
    k("s_waitcnt vmcnt(0)")
    for t in range(7): unpack_bf16(k, acc(t, 3), BP + 2 * t, 2, sMask)
    def reads(s, ks, F):
        b = s % NB
        yy = [f"ds_read_b128 {vr(F+28+4*mt,4)}, v{vY+2*b+ks} offset:{2048*mt}" for mt in range(4)]
        ww = []
        for t in range(7):
            a = vWa + 3 * b + (2 if t == 6 else (t & 1))
            off = (0 if t == 6 else 32 * t) + ks * 32 * 448
            ww.append(f"ds_read_b64_tr_b16 {vr(F+4*t,2)}, v{a} offset:{off}")
            ww.append(f"ds_read_b64_tr_b16 {vr(F+4*t+2,2)}, v{a} offset:{off+4*448}")
        return [] if noread else yy[:1] + ww + yy[1:]
    def mfmas(F, first):
        r = []
        for mt in range(4):
            for t in range(7):
                c = vr(acc(t, 3), 4) if first else vr(acc(t, mt), 4)
                r.append(f"{MB} {vr(acc(t,mt),4)}, {vr(F+4*t,4)}, {vr(F+28+4*mt,4)}, {c}")
        return r[:2] if nomfma else r
    k.stamp()
    k("s_barrier")
    k.stamp()
    for l in reads(0, 0, FR[0]): k(l)
    for s in range(NS):
        k("s_waitcnt lgkmcnt(0)")
        fl = reads(s, 1, FR[1])
        if pfd and s == pfd: fl = fl + [pfi]
        interleave(k, mfmas(FR[0], s == 0), fl)
        k("s_waitcnt lgkmcnt(0)")
        k("s_barrier")
        if s + 1 < NS: interleave(k, mfmas(FR[1], False), reads(s + 1, 0, FR[0]))
        else:
            for l in mfmas(FR[1], False): k(l)
    k.stamp()
    give = [(2, 1), (2, 2), (3, 0), (3, 1), (3, 2)]
    keep = [(0, 0), (0, 1), (0, 2), (1, 0), (1, 1), (1, 2), (2, 0)]
    q = 0
    for mt in range(4):
        k(f"ds_write_b128 v{vXa}, {vr(acc(6,mt),4)} offset:{1024*(10+mt)}")
    for (mt, pr) in give:
        for h in range(2):
            k(f"ds_write_b128 v{vXa}, {vr(acc(2*pr+h,mt),4)} offset:{1024*q}"); q += 1
    k("s_waitcnt lgkmcnt(0)\ns_barrier")
    E = FR[0]; P = FR[1]
    def finish(units, regs_of, sBase):
        for u0 in range(0, len(units), 2):
            grp = units[u0:u0 + 2]
            src = []
            for u in range(len(grp)): src += regs_of(u0 + u)
            e = E + 16 * ((u0 // 2) & 1)
            gelu_block(k, src, len(src), e, sC2, vC1)
            for u, (sreg, add, imm) in enumerate(grp):
                Q = P + 4 * (u0 + u)
                for x in range(4): k(f"v_cvt_pk_bf16_f32 v{Q+x}, v{e+8*u+2*x}, v{e+8*u+2*x+1}")
                k(f"s_add_u32 s{sT}, s{sreg}, {add}")
                k(f"buffer_store_dwordx4 {vr(Q,4)}, v{vHo}, {sr(dHs[0],4)}, s{sT} offen offset:{imm} {st_flags}")
    dHs = [dH]
    finish([(sH, pr * 8192, 1024 * mt) for (mt, pr) in keep], lambda u: list(range(acc(2 * keep[u][1], keep[u][0]), acc(2 * keep[u][1], keep[u][0]) + 8)), sH)
    k.stamp()
    if k.prof: k("s_waitcnt vmcnt(0)")
    k.stamp_flush()
    k("s_endpgm")
    k.release(m0)
    k("G1_loader:")
    sLw = k.s(); sY = k.s(); sWo = k.s(); sYq = k.s(); sMy = k.s(); sMw = k.s()
    k(f"s_sub_u32 s{sLw}, s{sW}, 4")
    vYo = k.v(); vWo = k.v(7)
    for x in range(7):
        k(f"v_add_u32 v{T}, {64*x}, v{vL}\nv_mul_u32_u24 v{T+1}, 2341, v{T}\nv_lshrrev_b32 v{T+1}, 16, v{T+1}")
        k(f"v_mul_u32_u24 v{T+2}, 28, v{T+1}\nv_sub_u32 v{T}, v{T}, v{T+2}")
        k(f"v_lshrrev_b32 v{T+2}, 2, v{T+1}\nv_and_b32 v{T+2}, 2, v{T+2}\nv_xor_b32 v{T}, v{T}, v{T+2}")
        k(f"v_mul_u32_u24 v{T+1}, 7168, v{T+1}\nv_lshl_add_u32 v{vWo+x}, v{T}, 4, v{T+1}")
    k(f"s_lshl_b32 s{sY}, s{sMt}, 18\ns_lshl_b32 s{sT}, s{sLw}, 12\ns_add_u32 s{sY}, s{sY}, s{sT}")
    k(f"s_mul_i32 s{sWo}, s{sNt}, 448\ns_mul_i32 s{sT}, s{sLw}, {16*7168}\ns_add_u32 s{sWo}, s{sWo}, s{sT}")
    k(f"s_lshl_b32 s{sMy}, s{sLw}, 12\ns_mul_i32 s{sMw}, s{sLw}, 7168\ns_add_u32 s{sMw}, s{sMw}, 16384")
    k("s_waitcnt lgkmcnt(0)")
    dW = k.srd(pW, 1024 * 3584 * 2); dY = k.srd(pWS, 4 << 20, WS_Y2)
    def issue(s):
        b = s % NB
        if noload and s > 1: return
        k(f"s_add_u32 s{sT}, s{sWo}, {64*7168*s}\ns_add_u32 s{sYq}, s{sY}, {16384*s}\ns_add_u32 m0, s{sMy}, {b*BUF}")
        for x in range(4): k(f"buffer_load_dwordx4 v{vHo}, {sr(dY,4)}, s{sYq} offen offset:{1024*x} lds")
        for x in range(7):
            k(f"s_add_u32 m0, s{sMw}, {b*BUF + 1024*x}")
            k(f"buffer_load_dwordx4 v{vWo+x}, {sr(dW,4)}, s{sT} offen lds")
    issue(0); issue(1)
    dH2 = k.srd(pWS, 2048 * 3584 * 2, WS_H)
    sH6 = k.s(); vXb = k.v()
    k(f"s_lshl_b32 s{sT}, s{sWn}, 11\ns_add_u32 s{sH6}, s{sH}, s{sT}\ns_add_u32 s{sH6}, s{sH6}, {6*8192}")
    k(f"s_mul_i32 s{sT}, s{sWn}, {3*8192}\ns_add_u32 s{sH}, s{sH}, s{sT}")
    k(f"s_mul_i32 s{sT}, s{sWm}, 14336\ns_lshl_b32 s{sYq}, s{sWn}, 11\ns_add_u32 s{sT}, s{sT}, s{sYq}\nv_add_u32 v{vXb}, s{sT}, v{vHo}")
    for s in range(NS):
        k(f"s_waitcnt vmcnt({11 if s + 1 < NS else 0})\ns_barrier")
        if s + 2 < NS: issue(s + 2)
    if l2w:
        dP2 = k.srd(pW2, WBYTES)
        k(f"v_and_b32 v{T}, 255, v0\nv_lshlrev_b32 v{T}, 7, v{T}\ns_bfe_u32 s{sT}, s2, 0x10002\ns_mul_i32 s{sYq}, s{sT}, {1792*2048}\ns_lshr_b32 s{sT}, s2, 3\ns_lshl_b32 s{sT}, s{sT}, 15\ns_add_u32 s{sYq}, s{sYq}, s{sT}")
        for j in range(l2w):
            k(f"buffer_load_dword v{T+1+j}, v{T}, {sr(dP2,4)}, s{sYq} offen\ns_add_u32 s{sYq}, s{sYq}, {1<<20}")
    k("s_barrier\ns_barrier")
    IN = k.v(56); E = k.v(32); P = k.v(28)
    for q in range(10): k(f"ds_read_b128 {vr(IN+4*q,4)}, v{vXa} offset:{1024*q}")
    for j in range(2):
        for h in range(2): k(f"ds_read_b128 {vr(IN+40+8*j+4*h,4)}, v{vXb} offset:{10240 + 1024*j + 2*14336*h}")
    k("s_waitcnt lgkmcnt(0)")
    dHs[0] = dH2
    finish([(sH, pr * 8192, 1024 * mt) for (mt, pr) in give] + [(sH6, 0, 0), (sH6, 0, 1024)], lambda u: list(range(IN + 8 * u, IN + 8 * u + 8)), sH)
    k("G1_end:\ns_endpgm")
    return k

def gen_g2(pfd=0, NB=4, noload=False, nomfma=False, noread=False, noxchg=False):
    NS = 28; BUF = 32768
    k = Kern("g2_kernel", 256, 512, NB * BUF)
    pW = k.s(4); pO = k.s(2); pWS = k.s(2)
    k(f"s_cmp_ge_u32 s2, 256\ns_cbranch_scc1 G2_end")
    k.stamp(True)
    k(f"s_load_dwordx4 {sr(pW,4)}, s[0:1], 48")
    k(f"s_load_dwordx2 {sr(pO,2)}, s[0:1], 80")
    k(f"s_load_dwordx2 {sr(pWS,2)}, s[0:1], 96")
    vL, vI, vG, sW, T = lane_ids(k)
    sT = k.s(); sMt = k.s(); sNt = k.s(); sKh = k.s()
    k(f"s_and_b32 s{sMt}, s2, 3\ns_lshl_b32 s{sMt}, s{sMt}, 2\ns_bfe_u32 s{sT}, s2, 0x20003\ns_add_u32 s{sMt}, s{sMt}, s{sT}")
    k(f"s_lshr_b32 s{sNt}, s2, 5\ns_bfe_u32 s{sKh}, s2, 0x10002")
    vOff = k.v()
    k(f"v_lshlrev_b32 v{vOff}, 4, v{vL}")
    k(f"s_cmp_ge_u32 s{sW}, 4\ns_cbranch_scc1 G2_loader")
    m0 = k.mark()
    sWm = k.s(); sWn = k.s()
    k(f"s_and_b32 s{sWm}, s{sW}, 1\ns_lshr_b32 s{sWn}, s{sW}, 1")
    ACC = k.v(64); FR = [k.v(32), k.v(32)]
    def acc(t, ms): return ACC + (ms * 4 + t) * 4
    NH = (NB + 1) // 2
    vH = k.v(2 * NH); vWa = k.v(4 * NH)
    for sp in range(2):
        k(f"s_xor_b32 s{sT}, s{sKh}, {sp}\ns_lshl_b32 s{sT}, s{sT}, 11\nv_add_u32 v{vH+sp}, s{sT}, v{vOff}")
        k(f"s_lshl_b32 s{sT}, s{sWm}, 12\nv_add_u32 v{vH+sp}, s{sT}, v{vH+sp}")
        for hh in range(1, NH): k(f"v_add_u32 v{vH+2*hh+sp}, {65536*hh}, v{vH+sp}")
    k(f"v_lshrrev_b32 v{T}, 2, v{vI}\nv_lshl_add_u32 v{T}, v{vG}, 2, v{T}\nv_and_b32 v{T+1}, 7, v{T}\nv_lshlrev_b32 v{T}, 8, v{T}")
    k(f"v_and_b32 v{T+2}, 3, v{vI}\nv_lshl_add_u32 v{T}, v{T+2}, 3, v{T}\nv_add_u32 v{T}, 16384, v{T}")
    k(f"s_lshl_b32 s{sT}, s{sWn}, 2\nv_xor_b32 v{T+1}, s{sT}, v{T+1}")
    for t in range(4):
        k(f"v_xor_b32 v{T+2}, {t}, v{T+1}\nv_lshl_add_u32 v{vWa+t}, v{T+2}, 5, v{T}")
        for hh in range(1, NH): k(f"v_add_u32 v{vWa+4*hh+t}, {65536*hh}, v{vWa+t}")
    k("s_waitcnt lgkmcnt(0)")
    k.stamp_init2(5, pWS); k.stamp()
    vPf = k.v(); sPf = k.s(); vDum = k.v()
    dP = k.srd(pW, 3584 * 1024 * 2)
    if pfd:
        k(f"v_lshrrev_b32 v{T}, 5, v{vL}\nv_lshlrev_b32 v{T}, 17, v{T}\nv_bfe_u32 v{T+1}, v{vL}, 1, 4\nv_lshl_add_u32 v{T}, v{T+1}, 11, v{T}\nv_and_b32 v{T+1}, 1, v{vL}\nv_lshl_add_u32 v{vPf}, v{T+1}, 7, v{T}")
        k(f"s_mul_i32 s{sPf}, s{sKh}, {1792*2048}\ns_lshl_b32 s{sT}, s{sNt}, 8\ns_add_u32 s{sPf}, s{sPf}, s{sT}\ns_and_b32 s{sT}, s{sMt}, 3\ns_lshl_b32 s{sT}, s{sT}, 15\ns_add_u32 s{sPf}, s{sPf}, s{sT}")
        k(f"s_lshl_b32 s{sT}, s{sW}, 18\ns_add_u32 s{sPf}, s{sPf}, s{sT}")
    XP = k.v(16); GP = k.v(8); BP = k.v(8); vXo = k.v(); vOo = k.v(); vNo = k.v()
    sX = k.s(); sN = k.s(); sOo = k.s(); sR = k.s()
    dB = k.srd(pW + 2, 2048); dM = k.srd(pWS, 2048, WS_GB); dX1 = k.srd(pWS, 4 << 20, WS_X1); dO = k.srd(pO, 4 << 20)
    dPa = k.srd(pWS, 256 * 32768, WS_PART); dF = k.srd(pWS, 16384, WS_FLAG)
    k(f"v_and_b32 v{T}, 1, v{vG}\nv_lshlrev_b32 v{T}, 5, v{T}\nv_lshrrev_b32 v{T+1}, 1, v{vG}\nv_lshl_add_u32 v{vNo}, v{T+1}, 4, v{T}")
    k(f"v_lshl_add_u32 v{vXo}, v{vI}, 11, v{vNo}")
    k(f"v_and_b32 v{T}, 7, v{vI}\nv_lshlrev_b32 v{T}, 19, v{T}\nv_lshrrev_b32 v{T+1}, 3, v{vI}\nv_lshl_add_u32 v{T}, v{T+1}, 11, v{T}\nv_add_u32 v{vOo}, v{T}, v{vNo}")
    k(f"s_lshl_b32 s{sN}, s{sNt}, 8\ns_lshl_b32 s{sT}, s{sWn}, 7\ns_add_u32 s{sN}, s{sN}, s{sT}")
    k(f"s_lshl_b32 s{sR}, s{sMt}, 2\ns_lshl_b32 s{sT}, s{sWm}, 1\ns_add_u32 s{sR}, s{sR}, s{sT}\ns_add_u32 s{sR}, s{sR}, s{sKh}")
    k(f"s_lshl_b32 s{sX}, s{sR}, 16\ns_add_u32 s{sX}, s{sX}, s{sN}\ns_lshl_b32 s{sOo}, s{sR}, 13\ns_add_u32 s{sOo}, s{sOo}, s{sN}")
    sX2 = k.s(); sPs = k.s(); sPr = k.s(); sFs = k.s(); sFr = k.s()
    k(f"s_add_u32 s{sX2}, s{sX}, 32768")
    k(f"s_lshl_b32 s{sFs}, s2, 2\ns_add_u32 s{sFs}, s{sFs}, s{sW}\ns_xor_b32 s{sFr}, s{sFs}, 16")
    k(f"s_lshl_b32 s{sPs}, s{sFs}, 13\ns_lshl_b32 s{sPr}, s{sFr}, 13\ns_lshl_b32 s{sFs}, s{sFs}, 4\ns_lshl_b32 s{sFr}, s{sFr}, 4")
    epi = [f"buffer_load_dwordx4 {vr(XP+8*ms+4*P,4)}, v{vXo}, {sr(dX1,4)}, s{sX2 if ms else sX} offen offset:{64*P}" for ms in range(2) for P in range(2)]
    epi += [f"buffer_load_dwordx4 {vr(GP+4*P,4)}, v{vNo}, {sr(dM,4)}, s{sN} offen offset:{64*P}" for P in range(2)]
    epi += [f"buffer_load_dwordx4 {vr(BP+4*P,4)}, v{vNo}, {sr(dB,4)}, s{sN} offen offset:{64*P}" for P in range(2)]
    pfi = f"buffer_load_dword v{vDum}, v{vPf}, {sr(dP,4)}, s{sPf} offen\ns_add_u32 s{sPf}, s{sPf}, {4*262144}"
    if pfd: k(pfi)
    def reads(s, ks, F):
        b = s % NB; hh = b >> 1; o = (b & 1) * BUF
        hr = [f"ds_read_b128 {vr(F+16+4*ms,4)}, v{vH+2*hh+(ms>>1)} offset:{o + 8192*ks + 1024*(ms&1)}" for ms in range(4)]
        ww = []
        for t in range(4):
            for hf in range(2):
                ww.append(f"ds_read_b64_tr_b16 {vr(F+4*t+2*hf,2)}, v{vWa+4*hh+t} offset:{o + 8192*ks + 4096*hf}")
        return [] if noread else hr[:1] + ww + hr[1:]
    def mfmas(F, first):
        r = []
        for ms in range(4):
            for t in range(4):
                r.append(f"{MB} {vr(acc(t,ms),4)}, {vr(F+4*t,4)}, {vr(F+16+4*ms,4)}, {'0' if first else vr(acc(t,ms),4)}")
        return r[:2] if (nomfma and not first) else r
    k.stamp()
    k("s_barrier")
    k.stamp()
    for l in reads(0, 0, FR[0]): k(l)
    for s in range(NS):
        k("s_waitcnt lgkmcnt(0)")
        fl = reads(s, 1, FR[1])
        if pfd and s in (1, 9, 17): fl = fl + [pfi]
        if s >= NS - 9 and epi: fl = fl + [epi.pop(0)]
        interleave(k, mfmas(FR[0], s == 0), fl)
        k("s_waitcnt lgkmcnt(0)")
        if s + 1 < NS:
            k("s_barrier")
            interleave(k, mfmas(FR[1], False), reads(s + 1, 0, FR[0]))
        else:
            mm = mfmas(FR[1], False)
            for l in mm[8:] + mm[:8]: k(l)
    k.stamp()
    sMask = k.s()
    k(f"s_mov_b32 s{sMask}, 0xffff0000")
    v4k = k.v()
    k(f"v_add_u32 v{v4k}, 4096, v{vOff}")
    if not noxchg:
        for q in range(8):
            k(f"buffer_store_dwordx4 {vr(ACC+32+4*q,4)}, v{v4k if q >= 4 else vOff}, {sr(dPa,4)}, s{sPs} offen offset:{1024*(q&3)} sc1")
    k("s_waitcnt vmcnt(8)" if not noxchg else "s_waitcnt vmcnt(0)")
    for base in (XP, XP + 4, XP + 8, XP + 12, GP, GP + 4, BP, BP + 4):
        k(f"v_permlane16_swap_b32 v{base}, v{base+2}\nv_permlane16_swap_b32 v{base+1}, v{base+3}")
    GB = FR[0]; B2 = FR[0] + 16; X = FR[1]
    unpack_bf16(k, GB, GP, 8, sMask); unpack_bf16(k, B2, BP, 8, sMask); unpack_bf16(k, X, XP, 16, sMask)
    for ms in range(2):
        for e in range(16): k(f"v_add_f32 v{ACC+16*ms+e}, v{ACC+16*ms+e}, v{B2+e}")
    if not noxchg:
        k(f"v_mov_b32 v{T}, 1\nv_mov_b32 v{T+1}, 0")
        k("s_waitcnt vmcnt(0)")
        k(f"buffer_store_dword v{T}, v{T+1}, {sr(dF,4)}, s{sFs} offen sc1")
        k.stamp()
        k("G2_poll:")
        k(f"buffer_load_dword v{T+2}, v{T+1}, {sr(dF,4)}, s{sFr} offen sc1")
        k("s_waitcnt vmcnt(0)")
        k(f"v_readfirstlane_b32 s{sT}, v{T+2}")
        k(f"s_cmp_eq_u32 s{sT}, 1\ns_cbranch_scc1 G2_got\ns_sleep 1\ns_branch G2_poll")
        k("G2_got:")
        k.stamp()
        for q in range(8):
            k(f"buffer_load_dwordx4 {vr(ACC+32+4*q,4)}, v{v4k if q >= 4 else vOff}, {sr(dPa,4)}, s{sPr} offen offset:{1024*(q&3)} sc1")
    for ms in range(2):
        if not noxchg:
            k(f"s_waitcnt vmcnt({4 if ms == 0 else 2})")
            for e in range(16): k(f"v_add_f32 v{ACC+16*ms+e}, v{ACC+16*ms+e}, v{ACC+32+16*ms+e}")
        for e in range(16): k(f"v_fma_f32 v{X+16*ms+e}, v{ACC+16*ms+e}, v{GB+e}, v{X+16*ms+e}")
        for e in range(8): k(f"v_cvt_pk_bf16_f32 v{XP+8*ms+e}, v{X+16*ms+2*e}, v{X+16*ms+2*e+1}")
        for P in range(2):
            b = XP + 8 * ms + 4 * P
            k(f"v_permlane16_swap_b32 v{b}, v{b+2}\nv_permlane16_swap_b32 v{b+1}, v{b+3}")
        if ms: k(f"s_add_u32 s{sOo}, s{sOo}, 4096")
        for P in range(2):
            k(f"buffer_store_dwordx4 {vr(XP+8*ms+4*P,4)}, v{vOo}, {sr(dO,4)}, s{sOo} offen offset:{64*P}")
    k.stamp()
    if k.prof: k("s_waitcnt vmcnt(0)")
    k.stamp_flush()
    k("s_endpgm")
    k.release(m0)
    k("G2_loader:")
    sLw = k.s(); sH = k.s(); sWo = k.s(); sA = k.s(); sM = k.s()
    k(f"s_sub_u32 s{sLw}, s{sW}, 4")
    vWo = k.v(2)
    for par in range(2):
        k(f"v_add_u32 v{T}, {4*par}, v{vG}\nv_lshlrev_b32 v{T}, 1, v{T}\nv_xor_b32 v{T}, v{T}, v{vI}\nv_lshlrev_b32 v{T}, 4, v{T}\nv_lshl_add_u32 v{vWo+par}, v{vG}, 11, v{T}")
    k(f"s_mul_i32 s{sH}, s{sMt}, {112*8192}\ns_mul_i32 s{sT}, s{sKh}, {56*8192}\ns_add_u32 s{sH}, s{sH}, s{sT}\ns_lshl_b32 s{sM}, s{sLw}, 12\ns_add_u32 s{sH}, s{sH}, s{sM}")
    k(f"s_mul_i32 s{sWo}, s{sKh}, {1792*2048}\ns_lshl_b32 s{sT}, s{sNt}, 8\ns_add_u32 s{sWo}, s{sWo}, s{sT}\ns_lshl_b32 s{sT}, s{sLw}, 15\ns_add_u32 s{sWo}, s{sWo}, s{sT}")
    k("s_waitcnt lgkmcnt(0)")
    dW = k.srd(pW, 3584 * 1024 * 2); dH = k.srd(pWS, 2048 * 3584 * 2, WS_H)
    def issue(s):
        b = s % NB
        if noload and s >= NB - 1: return
        for x in range(4):
            k(f"s_add_u32 m0, s{sM}, {b*BUF + 16384 + 1024*x}\ns_add_u32 s{sA}, s{sWo}, {131072*s + 8192*x}")
            k(f"buffer_load_dwordx4 v{vWo+(x&1)}, {sr(dW,4)}, s{sA} offen lds")
        k(f"s_add_u32 m0, s{sM}, {b*BUF}\ns_add_u32 s{sA}, s{sH}, {16384*s}")
        for x in range(4):
            k(f"buffer_load_dwordx4 v{vOff}, {sr(dH,4)}, s{sA} offen offset:{1024*x} lds")
    for s in range(NB - 1): issue(s)
    for s in range(NS):
        k(f"s_waitcnt vmcnt({8*min(NB-2, NS-1-s)})\ns_barrier")
        if s + NB - 1 < NS: issue(s + NB - 1)
    k("G2_end:\ns_endpgm")
    return k
```

```python
from asmlib import *
import math

WS_MODP = 0x0
WS_GB = 0x18000
WS_WMAX = 0x44000
WS_SCAL = 0x19400
WS_TAC = 0x20000
WS_TAW = 0x24000
WS_TBC = 0x28000
WS_TCC = 0x2C000
WS_TCW = 0x30000
WS_SPC = 0x38000
WS_FLAG = 0x40000
WS_MODC = 0x48000
WS_TAS = 0x100000
WS_TCS = 0x200000
WS_ZA = 0x300000
WS_ZB = 0x800000
WS_WB = 0xD00000
WS_X1 = 0x1300000
WS_Y2 = 0x1700000
WS_H = 0x1B00000
WS_PART = 0x2A00000
NSLOT = 258
ZA_PITCH = 16640
ZA_BYTES = NSLOT * ZA_PITCH
ZB_PITCH = NSLOT * 64
ZB_BYTES = 256 * ZB_PITCH
W_BYTES = 2048 * 513 * 2
LOG2E = 1.4426950408889634
DPPM = "row_mask:0xf bank_mask:0xf"
MF = "v_mfma_f32_16x16x32_f16"
OOB = 0x7ffffff0

def wave_reduce(k, op, vs, sdst):
    ops = op if isinstance(op, (list, tuple)) else [op] * len(vs)
    for sh in (1, 2, 4, 8):
        for o, v in zip(ops, vs): k(f"{o}_dpp v{v}, v{v}, v{v} row_ror:{sh} {DPPM}")
    for o, v in zip(ops, vs): k(f"{o}_dpp v{v}, v{v}, v{v} row_bcast:15 row_mask:0xa bank_mask:0xf")
    for o, v in zip(ops, vs): k(f"{o}_dpp v{v}, v{v}, v{v} row_bcast:31 row_mask:0xc bank_mask:0xf")
    for v, s in zip(vs, sdst): k(f"v_readlane_b32 s{s}, v{v}, 63")

def with_fill(k, lines, fill, per=3):
    fill = list(fill)
    for l in lines:
        k(l)
        for _ in range(per):
            if fill: k(fill.pop(0))
    for l in fill: k(l)

def cap(fn):
    t = Kern("x", 0, 0, 0); fn(t); return list(t.lines)

def sincos(k, c, s, vint, n, tmp):
    k(f"v_cvt_f32_u32 v{tmp}, v{vint}")
    k(f"v_mul_f32 v{tmp}, {fbits(1.0/n)}, v{tmp}")
    k(f"v_cos_f32 v{c}, v{tmp}")
    k(f"v_sin_f32 v{s}, v{tmp}")

def round_bf16(k, v):
    k(f"v_cvt_pk_bf16_f32 v{v}, v{v}, v{v}")
    k(f"v_lshlrev_b32 v{v}, 16, v{v}")

def unpack_bf16(k, dst, src, n, smask):
    for i in range(n):
        k(f"v_lshlrev_b32 v{dst+2*i}, 16, v{src+i}")
        k(f"v_and_b32 v{dst+2*i+1}, s{smask}, v{src+i}")

def cmul_tw(k, re, im, c, s, conj, t):
    k(f"v_mul_f32 v{t}, v{re}, v{s}")
    k(f"v_mul_f32 v{re}, v{re}, v{c}")
    if not conj:
        k(f"v_fmac_f32 v{re}, v{im}, v{s}")
        k(f"v_fma_f32 v{im}, v{im}, v{c}, -v{t}")
    else:
        k(f"v_fma_f32 v{re}, -v{im}, v{s}, v{re}")
        k(f"v_fma_f32 v{im}, v{im}, v{c}, v{t}")

def lane_ids(k):
    vL = k.v(); vI = k.v(); vG = k.v(); sW = k.s(); T = k.v(8)
    k(f"v_lshrrev_b32 v{T}, 6, v0\nv_and_b32 v{vL}, 63, v0")
    k(f"v_readfirstlane_b32 s{sW}, v{T}")
    k(f"v_and_b32 v{vI}, 15, v{vL}\nv_lshrrev_b32 v{vG}, 4, v{vL}")
    return vL, vI, vG, sW, T

C_TB = 17 * 1024
C_TP = (512 + 4) * 4

def gemv_job(k, pC, pM, pWS, sStrip, sSplit, vL, sWave, T, endlabel):
    m = k.mark()
    sT = k.s(); sMask = k.s(); sO = k.s(); sCo = k.s()
    vR = k.v(); vOff = k.v(); vOffC = k.v()
    k(f"v_lshrrev_b32 v{vR}, 3, v0")
    k(f"v_mul_u32_u24 v{vOff}, 12288, v{vR}")
    k(f"v_and_b32 v{T}, 7, v0\nv_lshl_add_u32 v{vOff}, v{T}, 4, v{vOff}")
    k(f"v_lshlrev_b32 v{vOffC}, 1, v{vR}")
    k(f"s_mov_b32 s{sMask}, 0xffff0000")
    k(f"s_mul_i32 s{sO}, s{sSplit}, {256*12288}\ns_lshl_b32 s{sT}, s{sStrip}, 7\ns_add_u32 s{sO}, s{sO}, s{sT}\ns_lshl_b32 s{sCo}, s{sSplit}, 9")
    k("s_waitcnt lgkmcnt(0)")
    dM = k.srd(pM, 1024 * 6144 * 2); dC = k.srd(pC, 2048); dO = k.srd(pWS, 4 * 6144 * 4, WS_MODP)
    C = k.v(4); Wv = k.v(16); E = k.v(4); A = k.v(8)
    for i in range(4):
        k(f"buffer_load_ushort v{C+i}, v{vOffC}, {sr(dC,4)}, s{sCo} offen offset:{128*i}")
    for i in range(4):
        k(f"buffer_load_dwordx4 {vr(Wv+4*i,4)}, v{vOff}, {sr(dM,4)}, s{sO} offen nt")
        if i < 3: k(f"s_add_u32 s{sO}, s{sO}, {64*12288}")
    vA = k.v()
    k(f"v_and_b32 v{T}, 7, v{vL}\nv_lshlrev_b32 v{T}, 5, v{T}\nv_lshrrev_b32 v{T+1}, 4, v{vL}\nv_lshl_add_u32 v{T}, v{T+1}, 2, v{T}")
    k(f"s_lshl_b32 s{sT}, s{sWave}, 8\nv_add_u32 v{vA}, s{sT}, v{T}")
    k("s_waitcnt vmcnt(4)")
    for i in range(4): k(f"v_lshlrev_b32 v{C+i}, 16, v{C+i}\nv_mul_f32 v{E+i}, {fbits(-LOG2E)}, v{C+i}")
    for i in range(4): k(f"v_exp_f32 v{E+i}, v{E+i}")
    for i in range(4): k(f"v_add_f32 v{E+i}, 1.0, v{E+i}")
    for i in range(4): k(f"v_rcp_f32 v{E+i}, v{E+i}")
    for i in range(4): k(f"v_mul_f32 v{C+i}, v{C+i}, v{E+i}")
    for i in range(4): round_bf16(k, C + i)
    for i in range(4):
        k(f"s_waitcnt vmcnt({3-i})")
        for q in range(4):
            k(f"v_lshlrev_b32 v{T}, 16, v{Wv+4*i+q}\nv_and_b32 v{T+1}, s{sMask}, v{Wv+4*i+q}")
            if i == 0: k(f"v_mul_f32 v{A+2*q}, v{C}, v{T}\nv_mul_f32 v{A+2*q+1}, v{C}, v{T+1}")
            else: k(f"v_fmac_f32 v{A+2*q}, v{C+i}, v{T}\nv_fmac_f32 v{A+2*q+1}, v{C+i}, v{T+1}")
    for q in range(4): k(f"v_permlane16_swap_b32 v{A+2*q}, v{A+2*q+1}")
    for q in range(4): k(f"v_add_f32 v{A+2*q}, v{A+2*q}, v{A+2*q+1}")
    k(f"v_permlane32_swap_b32 v{A}, v{A+2}\nv_permlane32_swap_b32 v{A+4}, v{A+6}")
    k(f"v_add_f32 v{A}, v{A}, v{A+2}\nv_add_f32 v{A+4}, v{A+4}, v{A+6}")
    k(f"v_add_f32_dpp v{A}, v{A}, v{A} row_ror:8 {DPPM}\nv_add_f32_dpp v{A+4}, v{A+4}, v{A+4} row_ror:8 {DPPM}")
    k(f"ds_write2_b32 v{vA}, v{A}, v{A+4} offset0:0 offset1:4")
    k("s_waitcnt lgkmcnt(0)\ns_barrier")
    k(f"s_cmp_lg_u32 s{sWave}, 0\ns_cbranch_scc1 {endlabel}")
    k(f"v_lshlrev_b32 v{T}, 2, v{vL}")
    for i in range(4): k(f"ds_read2st64_b32 {vr(A+2*i,2)}, v{T} offset0:{2*i} offset1:{2*i+1}")
    k(f"s_mul_i32 s{sO}, s{sSplit}, {6144*4}\ns_lshl_b32 s{sT}, s{sStrip}, 8\ns_add_u32 s{sO}, s{sO}, s{sT}")
    k("s_waitcnt lgkmcnt(0)")
    for i in range(4): k(f"v_add_f32 v{A+2*i}, v{A+2*i}, v{A+2*i+1}")
    k(f"v_add_f32 v{A}, v{A}, v{A+2}\nv_add_f32 v{A+4}, v{A+4}, v{A+6}\nv_add_f32 v{A}, v{A}, v{A+4}")
    k(f"buffer_store_dword v{A}, v{T}, {sr(dO,4)}, s{sO} offen")
    k.stamp_flush()
    k("s_endpgm")
    k.release(m)

def tab_a_common(k, vI, vG, T, R, part):
    def f1(ct, ks, ri): return R + ((ct * 2 + ks) * 2 + ri) * 4
    sg = 1 / math.sqrt(32)
    for ct in range(2):
        if part != ct: continue
        for ks in range(2):
            for e in range(4):
                k(f"v_add_u32 v{T}, {16*ks+4*e}, v{vG}\nv_add_u32 v{T+1}, {16*ct}, v{vI}")
                k(f"v_mul_u32_u24 v{T}, v{T}, v{T+1}\nv_and_b32 v{T}, 31, v{T}")
                sincos(k, T + 1, T + 2, T, 32, T + 3)
                k(f"v_mul_f32 v{T+1}, {fbits(sg)}, v{T+1}\nv_mul_f32 v{T+2}, {fbits(sg)}, v{T+2}")
                k(f"v_cvt_pk_f16_f32 v{f1(ct,ks,0)+e}, v{T+1}, v{T+2}\nv_cvt_pk_f16_f32 v{f1(ct,ks,1)+e}, -v{T+2}, v{T+1}")
        return (4 * ct, 4)
    for ct in range(2):
        for v in range(4):
            k(f"v_lshl_add_u32 v{T}, v{vG}, 2, {v}\nv_add_u32 v{T+1}, {16*ct}, v{vI}\nv_mul_u32_u24 v{T}, v{T}, v{T+1}")
            sincos(k, R + 32 + 4 * ct + v, R + 40 + 4 * ct + v, T, 512, T + 3)
    for v in range(4):
        k(f"v_lshl_add_u32 v{T}, v{vG}, 2, {v}\nv_mul_u32_u24 v{T}, v{T}, v{vI}\nv_and_b32 v{T}, 15, v{T}")
        sincos(k, T + 1, T + 2, T, 16, T + 3)
        k(f"v_mul_f32 v{T+1}, {fbits(0.25)}, v{T+1}\nv_mul_f32 v{T+2}, {fbits(0.25)}, v{T+2}")
        k(f"v_cvt_pk_f16_f32 v{R+48+v}, v{T+1}, v{T+2}\nv_cvt_pk_f16_f32 v{R+52+v}, -v{T+2}, v{T+1}")
    return (8, 6)

def tab_a_wave(k, vI, vG, T, R, sJ, sT):
    vRho = T + 7
    k(f"v_and_b32 v{vRho}, 7, v{vI}")
    for q in range(2):
        for x in range(2):
            d = R + 2 * q + x
            k(f"v_lshrrev_b32 v{T}, 1, v{vG}\nv_lshl_add_u32 v{T}, v{T}, 4, v{vI}")
            k(f"s_lshl_b32 s{sT}, s{sJ}, 6\ns_add_u32 s{sT}, s{sT}, {32*q}\nv_add_u32 v{T}, s{sT}, v{T}")
            if x: k(f"v_sub_u32 v{T}, 512, v{T}\nv_and_b32 v{T}, 511, v{T}")
            k(f"v_lshrrev_b32 v{T+1}, 3, v{T}\nv_and_b32 v{T+1}, 28, v{T+1}\nv_xor_b32 v{T}, v{T}, v{T+1}")
            k(f"v_and_b32 v{T+1}, 1, v{vG}\nv_mul_u32_u24 v{T+1}, {4*2048+64}, v{T+1}")
            k(f"v_lshl_add_u32 v{d}, v{T}, 2, v{T+1}")
    for q in range(2):
        for ins in range(2):
            k(f"v_lshrrev_b32 v{T}, 3, v{vI}\nv_lshlrev_b32 v{T}, 1, v{T}")
            k(f"s_lshl_b32 s{sT}, s{sJ}, 3\ns_add_u32 s{sT}, s{sT}, {4*q+ins}\nv_add_u32 v{T}, s{sT}, v{T}")
            k(f"v_lshlrev_b32 v{T+1}, 6, v{vRho}\nv_subrev_u32 v{T+1}, 31, v{T+1}\nv_max_i32 v{T+1}, 0, v{T+1}")
            k(f"v_add_u32 v{T+1}, v{T+1}, v{T}\nv_mul_u32_u24 v{T+1}, {ZA_PITCH}, v{T+1}")
            k(f"v_and_b32 v{T+2}, 1, v{vG}\nv_lshl_add_u32 v{T+1}, v{T+2}, 5, v{T+1}")
            k(f"v_lshrrev_b32 v{T+2}, 1, v{vG}\nv_lshl_add_u32 v{T+1}, v{T+2}, 4, v{T+1}")
            k(f"v_and_b32 v{T+2}, 3, v{vRho}\nv_cmp_eq_u32 vcc, 0, v{T+2}\nv_mov_b32 v{T+3}, 64\nv_cndmask_b32 v{T+3}, v{T+3}, 33, vcc")
            k(f"v_cmp_lt_u32 vcc, 4, v{vRho}\nv_cndmask_b32 v{T+3}, v{T+3}, 0, vcc")
            k(f"v_cmp_lt_u32 vcc, v{T}, v{T+3}\nv_mov_b32 v{T+2}, {OOB}\nv_cndmask_b32 v{R+4+2*q+ins}, v{T+2}, v{T+1}, vcc")
    return 2

def tab_a_s0(k, vI, vG, T, R, sS0):
    s8 = 1 / math.sqrt(8)
    vSc = T + 6; vRho = T + 7
    k(f"v_lshrrev_b32 v{T}, 3, v{vI}\nv_lshrrev_b32 v{T+1}, 1, v{vG}\nv_cmp_eq_u32 vcc, v{T}, v{T+1}")
    k(f"v_mov_b32 v{T+2}, {fbits(s8)}\nv_cndmask_b32 v{vSc}, 0, v{T+2}, vcc\nv_and_b32 v{vRho}, 7, v{vI}")
    for e in range(4):
        k(f"v_and_b32 v{T}, 1, v{vG}\nv_lshl_add_u32 v{T}, v{T}, 2, {e}\nv_lshl_add_u32 v{T}, v{T}, 8, s{sS0}")
        k(f"v_mul_u32_u24 v{T}, v{T}, v{vRho}\nv_and_b32 v{T}, 0x7ff, v{T}")
        sincos(k, T + 1, T + 2, T, 2048, T + 3)
        k(f"v_mul_f32 v{T+1}, v{vSc}, v{T+1}\nv_mul_f32 v{T+2}, v{vSc}, v{T+2}")
        k(f"v_cvt_pk_f16_f32 v{R+e}, v{T+1}, v{T+2}\nv_cvt_pk_f16_f32 v{R+4+e}, -v{T+2}, v{T+1}")
        k(f"v_cvt_pk_f16_f32 v{R+8+e}, v{T+1}, -v{T+2}\nv_cvt_pk_f16_f32 v{R+12+e}, -v{T+2}, -v{T+1}")
    return 4

def tab_b_common(k, vI, vG, T, R):
    for v in range(4):
        k(f"v_lshl_add_u32 v{T}, v{vG}, 2, {v}\nv_mul_u32_u24 v{T}, v{T}, v{vI}")
        sincos(k, R + v, R + 4 + v, T, 256, T + 3)
        k(f"v_and_b32 v{T}, 15, v{T}")
        sincos(k, R + 24 + v, R + 28 + v, T, 16, T + 3)
        k(f"v_mul_f32 v{T+1}, {fbits(0.25)}, v{R+24+v}\nv_mul_f32 v{T+2}, {fbits(0.25)}, v{R+28+v}")
        k(f"v_cvt_pk_f16_f32 v{R+8+v}, v{T+1}, v{T+2}\nv_cvt_pk_f16_f32 v{R+12+v}, -v{T+2}, v{T+1}")
        k(f"v_cvt_pk_f16_f32 v{R+16+v}, v{T+1}, -v{T+2}\nv_cvt_pk_f16_f32 v{R+20+v}, v{T+2}, v{T+1}")
    return 8

def tab_c_common(k, vI, vG, T, R, part):
    for e in range(4 if part == 2 else 0):
        k(f"v_add_u32 v{T}, {4*e}, v{vG}\nv_mul_u32_u24 v{T}, v{T}, v{vI}\nv_and_b32 v{T}, 15, v{T}")
        sincos(k, T + 1, T + 2, T, 16, T + 3)
        k(f"v_mul_f32 v{T+1}, {fbits(0.25)}, v{T+1}\nv_mul_f32 v{T+2}, {fbits(0.25)}, v{T+2}")
        k(f"v_cvt_pk_f16_f32 v{R+e}, v{T+1}, -v{T+2}\nv_cvt_pk_f16_f32 v{R+4+e}, v{T+2}, v{T+1}")
    for rt in range(2 if part == 2 else 0):
        for v in range(4):
            k(f"v_lshl_add_u32 v{T}, v{vG}, 2, {16*rt+v}\nv_mul_u32_u24 v{T}, v{T}, v{vI}")
            sincos(k, R + 8 + 4 * rt + v, R + 16 + 4 * rt + v, T, 512, T + 3)
    if part == 2: return (0, 6)
    sg = 1 / math.sqrt(32)
    for ct in (part,):
        for rt in range(2):
            for v in range(4):
                k(f"v_lshl_add_u32 v{T}, v{vG}, 2, {16*rt+v}\nv_add_u32 v{T+1}, {16*ct}, v{vI}\nv_mul_u32_u24 v{T}, v{T}, v{T+1}\nv_and_b32 v{T}, 31, v{T}")
                sincos(k, T + 1, T + 2, T, 32, T + 3)
                k(f"v_mul_f32 v{T+1}, {fbits(sg)}, v{T+1}\nv_mul_f32 v{T+2}, {fbits(sg)}, v{T+2}")
                b = R + 24 + ((ct * 2 + rt) * 2) * 4
                k(f"v_cvt_pk_f16_f32 v{b+v}, v{T+1}, -v{T+2}\nv_cvt_pk_f16_f32 v{b+4+v}, v{T+2}, v{T+1}")
    return (6 + 4 * part, 4)

def tab_c_wave(k, vI, vG, T, R, sJ, sT):
    sO = k.s()
    vY = T + 6; vHf = T + 7
    k(f"v_lshrrev_b32 v{vY}, 1, v{vG}\nv_and_b32 v{vHf}, 1, v{vG}")
    for q in range(2):
        k(f"s_lshl_b32 s{sT}, s{sJ}, 5\ns_add_u32 s{sT}, s{sT}, {16*q}")
        k(f"v_lshl_add_u32 v{T}, v{vY}, 8, v{vI}\nv_add_u32 v{T}, s{sT}, v{T}")
        k(f"v_sub_u32 v{T+1}, 512, v{T}\nv_and_b32 v{T+1}, 511, v{T+1}")
        k(f"v_lshlrev_b32 v{T}, 3, v{T}\nv_lshl_add_u32 v{T+1}, v{T+1}, 3, 4")
        for e in range(4):
            if e < 3: k(f"v_xor_b32 v{T+4}, v{vY}, v{vHf}")
            else: k(f"v_mov_b32 v{T+4}, v{vY}")
            k(f"v_cmp_eq_u32 vcc, 0, v{T+4}")
            k(f"v_add_u32 v{T+2}, {e}, v{vHf}\nv_lshlrev_b32 v{T+2}, 6, v{T+2}\nv_subrev_u32 v{T+2}, 31, v{T+2}\nv_max_i32 v{T+2}, 0, v{T+2}")
            k(f"v_cndmask_b32 v{T+3}, v{T+1}, v{T}, vcc")
            k(f"v_lshl_add_u32 v{R+4*q+e}, v{T+2}, 6, v{T+3}")
    for q in range(2):
        k(f"s_and_b32 s{sT}, s{sJ}, 1\ns_xor_b32 s{sT}, s{sT}, {q}\ns_lshl_b32 s{sT}, s{sT}, 6")
        k(f"s_lshl_b32 s{sO}, s{sJ}, 7\ns_add_u32 s{sT}, s{sT}, s{sO}\ns_add_u32 s{sT}, s{sT}, {C_TB}")
        k(f"v_and_b32 v{T}, 7, v{vI}\nv_mul_u32_u24 v{T}, {C_TP}, v{T}")
        k(f"v_lshrrev_b32 v{T+1}, 3, v{vI}\nv_lshl_add_u32 v{T}, v{T+1}, 10, v{T}\nv_lshl_add_u32 v{T}, v{vG}, 4, v{T}")
        k(f"v_add_u32 v{R+8+q}, s{sT}, v{T}")
    k(f"s_mul_i32 s{sT}, s{sJ}, {C_TP}\ns_add_u32 s{sT}, s{sT}, {C_TB}")
    for rt in range(2):
        k(f"v_xor_b32 v{T}, {rt}, v{vHf}\nv_lshl_add_u32 v{T}, v{T}, 4, v{vI}\nv_lshl_add_u32 v{T}, v{vG}, 5, v{T}")
        k(f"v_lshl_add_u32 v{R+10+rt}, v{T}, 2, s{sT}")
    return 3

def tab_c_s0(k, vI, vG, T, R, sS0, sSign):
    s8 = 1 / math.sqrt(8)
    vY = T + 6; vHf = T + 7; vSc = R + 8; vS = R + 9
    k(f"v_lshrrev_b32 v{vY}, 1, v{vG}\nv_and_b32 v{vHf}, 1, v{vG}")
    k(f"v_lshrrev_b32 v{T}, 3, v{vI}\nv_cmp_eq_u32 vcc, v{T}, v{vY}\nv_mov_b32 v{T+2}, {fbits(s8)}\nv_cndmask_b32 v{vSc}, 0, v{T+2}, vcc")
    k(f"v_and_b32 v{vS}, 7, v{vI}\nv_lshl_add_u32 v{vS}, v{vS}, 8, s{sS0}")
    for e in range(4):
        k(f"v_add_u32 v{T+4}, {e}, v{vHf}")
        if e < 3: k(f"v_xor_b32 v{T+5}, v{vY}, v{vHf}")
        else: k(f"v_mov_b32 v{T+5}, v{vY}")
        k(f"v_mul_u32_u24 v{T}, v{vS}, v{T+4}\nv_and_b32 v{T}, 0x7ff, v{T}")
        sincos(k, T + 1, T + 2, T, 2048, T + 3)
        k(f"v_mul_f32 v{T+1}, v{vSc}, v{T+1}\nv_mul_f32 v{T+2}, v{vSc}, v{T+2}")
        k(f"v_cvt_pk_f16_f32 v{R+e}, v{T+1}, -v{T+2}\nv_cvt_pk_f16_f32 v{R+4+e}, v{T+2}, v{T+1}")
        k(f"v_mul_lo_u32 v{T}, v{T+5}, s{sSign}\nv_xor_b32 v{R+4+e}, v{T}, v{R+4+e}")
    return 2

WB_RHO = 65 * 16384
def w_job(k, pW, pWS, first, vL, sWave, T, endlabel):
    m00 = k.mark()
    if k.prof: k._st = k._st[:1]; k._stidx = 6
    k(f"s_cmp_ge_u32 s{sWave}, 5\ns_cbranch_scc1 {endlabel}")
    sA = k.s(); sB = k.s(); sT = k.s()
    sJob = k.s(); sRho = k.s(); sWh = k.s(); sK1 = k.s(); sRow = k.s(); sStep = k.s(); sMis = k.s(); sDs = k.s()
    k(f"s_sub_u32 s{sJob}, s2, {first}\ns_lshr_b32 s{sRho}, s{sJob}, 5\ns_bfe_u32 s{sWh}, s{sJob}, 0x10004\ns_and_b32 s{sK1}, s{sJob}, 15")
    k(f"s_lshl_b32 s{sRow}, s{sK1}, 3\ns_add_u32 s{sRow}, s{sRow}, s{sRho}")
    k(f"s_sub_u32 s{sT}, 2048, s{sRow}\ns_cmp_eq_u32 s{sWh}, 1\ns_cselect_b32 s{sRow}, s{sT}, s{sRow}\ns_movk_i32 s{sStep}, 128\ns_cselect_b32 s{sStep}, -128, s{sStep}")
    k(f"s_and_b32 s{sMis}, s{sRow}, 7")
    vSt = k.v(8); vOf = k.v(4)
    k(f"v_lshrrev_b32 v{T+2}, 2, v0\nv_and_b32 v{T+3}, 3, v0")
    k(f"v_cmp_gt_u32 vcc, 66, v{T+2}\nv_mov_b32 v{T}, {OOB-0x1000000}\nv_lshlrev_b32 v{T+4}, 4, v{T+2}\nv_cndmask_b32 v{T+4}, v{T}, v{T+4}, vcc")
    for r in range(4):
        k(f"v_lshl_add_u32 v{T+1}, v{T+3}, 2, {r}\nv_mul_i32_i24 v{T+1}, s{sStep}, v{T+1}\nv_add_u32 v{T+1}, s{sRow}, v{T+1}\nv_and_b32 v{T+1}, 2047, v{T+1}")
        k(f"v_mul_u32_u24 v{T+1}, 1026, v{T+1}\nv_and_b32 v{T+1}, -16, v{T+1}\nv_add_u32 v{vOf+r}, v{T+1}, v{T+4}")
    k("s_waitcnt lgkmcnt(0)")
    k.stamp()
    dR = k.srd(pW, W_BYTES); dI = k.srd(pW + 2, W_BYTES)
    RR = k.v(16); RI = k.v(16); P = k.v(32)
    for r in range(4):
        k(f"buffer_load_dwordx4 {vr(RR+4*r,4)}, v{vOf+r}, {sr(dR,4)}, 0 offen nt")
        k(f"buffer_load_dwordx4 {vr(RI+4*r,4)}, v{vOf+r}, {sr(dI,4)}, 0 offen nt")
    k(f"s_lshl_b32 s{sDs}, s{sStep}, 4")
    k(f"v_lshlrev_b32 v{T+1}, 3, v{T+2}\nv_subrev_u32 v{T+1}, s{sMis}, v{T+1}\nv_mul_lo_u32 v{T+1}, v{T+1}, s{sDs}")
    k(f"s_lshl_b32 s{sT}, s{sWh}, 20\nv_add_u32 v{T+1}, s{sT}, v{T+1}\nv_lshl_add_u32 v{vSt}, v{T+3}, 4, v{T+1}")
    for j in range(1, 8): k(f"v_add_u32 v{vSt+j}, s{sDs}, v{vSt+j-1}")
    dB = k.s(4)
    k(f"s_mul_i32 s{sA}, s{sRho}, {WB_RHO}\ns_add_u32 s{sA}, s{sA}, {WS_WB}\ns_add_u32 s{dB}, s{pWS}, s{sA}\ns_addc_u32 s{dB+1}, s{pWS+1}, 0\ns_mov_b32 s{dB+2}, {513*2048}\ns_mov_b32 s{dB+3}, 0x20000")
    dMx = k.srd(pWS, 640, WS_WMAX)
    k(f"s_lshl_b32 s{sA}, s{sWh}, 10\ns_lshl_b32 s{sB}, s{sK1}, 6\ns_add_u32 s{sA}, s{sA}, s{sB}")
    sM7 = k.s(); vMx = k.v(); sP0 = k.s(); sP1 = k.s()
    k(f"s_mov_b32 s{sM7}, 0x7fff7fff\ns_mov_b32 s{sP0}, 0x05040100\ns_mov_b32 s{sP1}, 0x07060302")
    k.stamp()
    k("s_waitcnt vmcnt(0)")
    k.stamp()
    for j in range(8):
        for r in range(4):
            k(f"v_perm_b32 v{P+4*j+r}, v{RI+4*r+(j>>1)}, v{RR+4*r+(j>>1)}, s{sP1 if j & 1 else sP0}")
        k(f"buffer_store_dwordx4 {vr(P+4*j,4)}, v{vSt+j}, {sr(dB,4)}, s{sA} offen sc1")
    k.stamp()
    k(f"v_and_b32 v{vMx}, s{sM7}, v{RR}")
    for r in range(1, 32):
        k(f"v_and_b32 v{RR+r}, s{sM7}, v{RR+r}\nv_pk_max_u16 v{vMx}, v{vMx}, v{RR+r}")
    k(f"v_lshrrev_b32 v{T}, 16, v{vMx}\nv_and_b32 v{vMx}, 0xffff, v{vMx}\nv_max_u32 v{vMx}, v{vMx}, v{T}")
    wave_reduce(k, "v_max_u32", [vMx], [sA])
    k(f"s_lshl_b32 s{sT}, s{sWave}, 2\nv_mov_b32 v{T}, s{sT}\nv_mov_b32 v{vMx}, s{sA}\nds_write_b32 v{T}, v{vMx}")
    if k.prof: k("s_waitcnt vmcnt(0)")
    k.stamp_flush()
    k("s_waitcnt lgkmcnt(0)\ns_barrier")
    k(f"s_cmp_lg_u32 s{sWave}, 0\ns_cbranch_scc1 {endlabel}")
    k(f"v_mov_b32 v{T}, 0\nds_read_b128 {vr(RR,4)}, v{T}\nds_read_b32 v{RR+4}, v{T} offset:16\ns_lshl_b32 s{sT}, s{sJob}, 2\ns_waitcnt lgkmcnt(0)")
    k(f"v_max3_u32 v{RR}, v{RR}, v{RR+1}, v{RR+2}\nv_max3_u32 v{RR}, v{RR}, v{RR+3}, v{RR+4}")
    k(f"buffer_store_dword v{RR}, v{T}, {sr(dMx,4)}, s{sT} offen")
    k("s_endpgm")
    k.release(m00)

NSCAN = 129
def scan_job(k, pW, pWS, first, vL, sWave, T, endlabel):
    m00 = k.mark()
    sT = k.s(); sO = k.s(); sM7 = k.s(); sA = k.s(); sJob = k.s()
    k(f"s_sub_u32 s{sJob}, s2, {first}\ns_lshl_b32 s{sO}, s{sJob}, 14\nv_lshlrev_b32 v{T}, 4, v0\nv_add_u32 v{T+1}, 8192, v{T}\ns_mov_b32 s{sM7}, 0x7fff7fff")
    k("s_waitcnt lgkmcnt(0)")
    dR = k.srd(pW, W_BYTES); dI = k.srd(pW + 2, W_BYTES); dMx = k.srd(pWS, 640, WS_WMAX)
    X = k.v(16)
    for h in range(2):
        k(f"buffer_load_dwordx4 {vr(X+8*h,4)}, v{T+h}, {sr(dR,4)}, s{sO} offen\nbuffer_load_dwordx4 {vr(X+8*h+4,4)}, v{T+h}, {sr(dI,4)}, s{sO} offen")
    k("s_waitcnt vmcnt(0)")
    for i in range(16): k(f"v_and_b32 v{X+i}, s{sM7}, v{X+i}")
    for n in (8, 4, 2, 1):
        for i in range(n): k(f"v_pk_max_u16 v{X+i}, v{X+i}, v{X+n+i}")
    k(f"v_lshrrev_b32 v{T}, 16, v{X}\nv_and_b32 v{X}, 0xffff, v{X}\nv_max_u32 v{X}, v{X}, v{T}")
    wave_reduce(k, "v_max_u32", [X], [sA])
    k(f"s_lshl_b32 s{sT}, s{sWave}, 2\nv_mov_b32 v{T}, s{sT}\nv_mov_b32 v{X}, s{sA}\nds_write_b32 v{T}, v{X}")
    k("s_waitcnt lgkmcnt(0)\ns_barrier")
    k(f"s_cmp_lg_u32 s{sWave}, 0\ns_cbranch_scc1 {endlabel}")
    k(f"v_mov_b32 v{T}, 0\nds_read_b128 {vr(X,4)}, v{T}\nds_read_b128 {vr(X+4,4)}, v{T} offset:16\ns_lshl_b32 s{sT}, s{sJob}, 2\ns_waitcnt lgkmcnt(0)")
    k(f"v_max3_u32 v{X}, v{X}, v{X+1}, v{X+2}\nv_max3_u32 v{X+4}, v{X+4}, v{X+5}, v{X+6}\nv_max3_u32 v{X}, v{X}, v{X+3}, v{X+7}\nv_max_u32 v{X}, v{X}, v{X+4}")
    k(f"buffer_store_dword v{X}, v{T}, {sr(dMx,4)}, s{sT} offen")
    k("s_endpgm")
    k.release(m00)

K0_NG = 384; K0_NW = 0; K0_NS = 32
def gen_k0():
    G0 = 10
    G2 = G0; G1 = G0 + K0_NS; G3 = G1 + K0_NG
    k = Kern("k0_kernel", G3, 512, 2048)
    pCW = k.s(4); pW = k.s(4); pWS = k.s(2)
    k(f"s_cmp_ge_u32 s2, {G3}\ns_cbranch_scc1 K0_end")
    k.stamp(True)
    k(f"s_load_dwordx4 {sr(pCW,4)}, s[0:1], 64")
    k(f"s_load_dwordx2 {sr(pWS,2)}, s[0:1], 96")
    k.stamp_init2(0, pWS)
    vL, vI, vG, sWave, T = lane_ids(k)
    sA = k.s(); sB = k.s(); sT = k.s()
    k(f"s_cmp_lt_u32 s2, {G0}\ns_cbranch_scc1 K0_tab")
    k(f"s_cmp_lt_u32 s2, {G1}\ns_cbranch_scc1 K0_s0")
    k(f"s_sub_u32 s{sT}, s2, {G1}\ns_lshr_b32 s{sA}, s{sT}, 2\ns_and_b32 s{sB}, s{sT}, 3")
    gemv_job(k, pCW, pCW + 2, pWS, sA, sB, vL, sWave, T, "K0_end")
    R = k.v(56); vOff = k.v(); sO = k.s(); sSign = k.s()
    def store(nq, base_off, soff=None, R0=R):
        d = k.srd(pWS, 0x100000, base_off)
        for q in range(nq):
            if q % 4 == 0 and q: k(f"v_add_u32 v{vOff}, 4096, v{vOff}")
            k(f"buffer_store_dwordx4 {vr(R0+4*q,4)}, v{vOff}, {sr(d,4)}, {'s%d' % soff if soff is not None else 0} offen offset:{1024*(q%4)}")
    k("K0_s0:")
    m = k.mark()
    sS0 = k.s()
    k(f"s_sub_u32 s{sS0}, s2, {G2}\ns_lshl_b32 s{sS0}, s{sS0}, 3\ns_add_u32 s{sS0}, s{sS0}, s{sWave}\ns_mov_b32 s{sSign}, 0x80008000")
    k(f"v_lshlrev_b32 v{vOff}, 4, v{vL}")
    tab_a_s0(k, vI, vG, T, R, sS0)
    k(f"s_lshl_b32 s{sO}, s{sS0}, 12\ns_waitcnt lgkmcnt(0)")
    store(4, WS_TAS, sO)
    tab_c_s0(k, vI, vG, T, R + 16, sS0, sSign)
    k(f"s_lshl_b32 s{sO}, s{sS0}, 11")
    store(2, WS_TCS, sO, R + 16)
    k("s_endpgm")
    k.release(m)
    k("K0_tab:")
    k(f"v_lshlrev_b32 v{vOff}, 4, v{vL}\ns_waitcnt lgkmcnt(0)")
    k(f"s_cmp_eq_u32 s2, 0\ns_cbranch_scc1 K0_tw_a\ns_cmp_eq_u32 s2, 1\ns_cbranch_scc1 K0_tw_c")
    k(f"s_cmp_lg_u32 s{sWave}, 0\ns_cbranch_scc1 K0_end")
    for j in range(3, G0): k(f"s_cmp_eq_u32 s2, {j}\ns_cbranch_scc1 K0_t{j}")
    m = k.mark()
    for i in range(4): k(f"v_mov_b32 v{R+i}, 0")
    d = k.srd(pWS, 0x10000, WS_FLAG)
    for q in range(17):
        if q % 4 == 0 and q: k(f"v_add_u32 v{vOff}, 4096, v{vOff}")
        k(f"buffer_store_dwordx4 {vr(R,4)}, v{vOff}, {sr(d,4)}, 0 offen offset:{1024*(q%4)}")
    k("s_endpgm"); k.release(m)
    for part in range(3):
        k(f"K0_t{3+part}:"); q0, n = tab_a_common(k, vI, vG, T, R, part); store(n, WS_TAC + 1024 * q0, None, R + 4 * q0); k("s_endpgm"); k.release(m)
        k(f"K0_t{6+part}:"); q0, n = tab_c_common(k, vI, vG, T, R, part); store(n, WS_TCC + 1024 * q0, None, R + 4 * q0); k("s_endpgm"); k.release(m)
    k("K0_t9:"); store(tab_b_common(k, vI, vG, T, R), WS_TBC); k("s_endpgm"); k.release(m)
    k("K0_tw_a:")
    n = tab_a_wave(k, vI, vG, T, R, sWave, sT); k(f"s_lshl_b32 s{sO}, s{sWave}, 11"); store(n, WS_TAW, sO); k("s_endpgm"); k.release(m)
    k("K0_tw_c:")
    n = tab_c_wave(k, vI, vG, T, R, sWave, sT); k(f"s_mul_i32 s{sO}, s{sWave}, 3072"); store(n, WS_TCW, sO); k.release(m)
    k("K0_end:\ns_endpgm")
    return k


WBYTES = 1024 * 3584 * 2
def pf_mall(k, pP, first, n, sId, sWave, vDum, T):
    if n == 0: return
    m = k.mark(); sO = k.s()
    lab = f"PF{len(k.lines)}_{k.name}"
    nw = (n + 63) // 64
    if nw < 8: k(f"s_cmp_ge_u32 s{sWave}, {nw}\ns_cbranch_scc1 {lab}")
    k(f"v_lshlrev_b32 v{T}, 7, v0\ns_mul_i32 s{sO}, s{sId}, {n*128}\ns_add_u32 s{sO}, s{sO}, {first*128}")
    d = k.srd(pP, min((first + 256 * n) * 128, WBYTES))
    k(f"buffer_load_dword v{vDum}, v{T}, {sr(d,4)}, s{sO} offen")
    if nw < 8: k(f"{lab}:")
    k.release(m)

C_MV = 146 * 16
def gen_a(pf=(0, 0), st_flags="sc1"):
    TAB = 16640; MOD = TAB + 18 * 1024; MX = MOD + 8192
    k = Kern("fa_kernel", 256, 512, MX + 32)
    pX = k.s(2); pWS = k.s(2); pW = k.s(2); pF = k.s(4)
    k(f"s_cmp_ge_u32 s2, 256\ns_cbranch_scc1 A_end")
    k.stamp(True)
    k(f"s_load_dwordx2 {sr(pWS,2)}, s[0:1], 96")
    sMask = k.s(); sT = k.s(); sJ = k.s()
    vL = k.v(); vOff = k.v(); T = k.v(8)
    k(f"v_lshrrev_b32 v{T}, 6, v0\nv_and_b32 v{vL}, 63, v0")
    k(f"v_readfirstlane_b32 s{sJ}, v{T}")
    k(f"v_lshlrev_b32 v{vOff}, 4, v{vL}")
    k(f"s_mov_b32 s{sMask}, 0xffff0000")
    k(f"s_load_dwordx4 {sr(pF,4)}, s[0:1], 8")
    k(f"s_load_dwordx2 {sr(pX,2)}, s[0:1], 0")
    if pf[1]: k(f"s_load_dwordx2 {sr(pW,2)}, s[0:1], 32")
    sRow = k.s(); sQ0 = k.s(); sQ1 = k.s(); sS = k.s(); sL = k.s()
    k(f"v_lshlrev_b32 v{T}, 4, v0")
    k(f"s_lshl_b32 s{sRow}, s{sJ}, 8\ns_add_u32 s{sRow}, s{sRow}, s2\ns_lshl_b32 s{sRow}, s{sRow}, 11")
    k(f"s_lshl_b32 s{sL}, s{sJ}, 10\ns_add_u32 s{sQ0}, s{sL}, {WS_TAC}\ns_add_u32 s{sQ1}, s{sL}, {WS_TAC+8192}")
    k(f"s_lshl_b32 s{sS}, s2, 12\ns_add_u32 s{sS}, s{sS}, s{sL}\ns_add_u32 s{sT}, s{sS}, {WS_TAS-6*1024}")
    k(f"s_cmp_ge_u32 s{sJ}, 6\ns_cselect_b32 s{sQ1}, s{sT}, s{sQ1}\ns_add_u32 s{sS}, s{sS}, {WS_TAS+2048}")
    k("s_waitcnt lgkmcnt(0)")
    k.stamp_init2(1, pWS); k.stamp()
    dX = k.srd(pX, 2048 * 2048); dW = k.srd(pWS, WS_ZA)
    XP = k.v(8); MP = k.v(16); AD = k.v(8)
    k(f"buffer_load_dwordx4 {vr(XP,4)}, v{vOff}, {sr(dX,4)}, s{sRow} offen nt")
    k(f"buffer_load_dwordx4 {vr(XP+4,4)}, v{vOff}, {sr(dX,4)}, s{sRow} offen offset:1024 nt")
    for p in range(4):
        k(f"s_mov_b32 s{sT}, {WS_MODP + p*24576}\nbuffer_load_dwordx4 {vr(MP+4*p,4)}, v{T}, {sr(dW,4)}, s{sT} offen")
    dZ = k.srd(pWS, ZA_BYTES, WS_ZA)
    vR3 = AD; vSt = AD + 4
    sBase = k.s(); sAdd = k.s(); sF = k.s(); sS0 = k.s()
    k(f"s_lshl_b32 s{sBase}, s{sJ}, 11\ns_lshr_b32 s{sT}, s{sJ}, 2\ns_lshl_b32 s{sT}, s{sT}, 6\ns_add_u32 s{sBase}, s{sBase}, s{sT}")
    k(f"s_cmp_ge_u32 s{sJ}, 4\ns_cselect_b32 s{sAdd}, 1.0, 0")
    k(f"s_lshl_b32 s{sF}, s2, 2\ns_and_b32 s{sF}, s{sF}, 48\ns_lshl_b32 s{sS0}, s2, 6")
    vW1 = k.v(); vR1 = k.v(); vMw = k.v(); vW2 = k.v(2)
    k(f"v_add_u32 v{vW1}, s{sBase}, v{vOff}\nv_lshl_add_u32 v{vR1}, v{vL}, 2, s{sBase}")
    k(f"v_and_b32 v{T}, 1, v0\nv_lshlrev_b32 v{T}, 10, v{T}\nv_bfe_u32 v{T+1}, v0, 1, 6\nv_lshl_add_u32 v{T}, v{T+1}, 4, v{T}")
    k(f"s_lshr_b32 s{sT}, s{sJ}, 1\ns_lshl_b32 s{sT}, s{sT}, 11\ns_add_u32 s{sT}, s{sT}, {MOD}\nv_add_u32 v{vMw}, s{sT}, v{T}")
    k(f"v_lshrrev_b32 v{T}, 4, v{vL}\nv_and_b32 v{T+1}, 7, v{vL}\nv_xor_b32 v{T}, v{T}, v{T+1}\nv_and_b32 v{T+1}, 15, v{vL}\nv_lshlrev_b32 v{T+1}, 3, v{T+1}\nv_add_u32 v{T}, v{T}, v{T+1}")
    k(f"v_lshl_add_u32 v{vW2}, v{T}, 4, s{sBase}\nv_xor_b32 v{T}, 4, v{T}\nv_lshl_add_u32 v{vW2+1}, v{T}, 4, s{sBase}")
    k(f"s_cmp_ge_u32 s{sJ}, 2\ns_cbranch_scc1 A_no3")
    k(f"s_add_u32 m0, s{sL}, {TAB+16384}\nbuffer_load_dwordx4 v{vOff}, {sr(dW,4)}, s{sS} offen lds")
    k("A_no3:")
    k(f"s_add_u32 m0, s{sL}, {TAB}\nbuffer_load_dwordx4 v{vOff}, {sr(dW,4)}, s{sQ0} offen lds")
    k(f"s_add_u32 m0, s{sL}, {TAB+8192}\nbuffer_load_dwordx4 v{vOff}, {sr(dW,4)}, s{sQ1} offen lds")
    k(f"s_lshl_b32 s{sT}, s{sJ}, 11\ns_add_u32 s{sT}, s{sT}, {WS_TAW}")
    k(f"buffer_load_dwordx4 {vr(AD,4)}, v{vOff}, {sr(dW,4)}, s{sT} offen\nbuffer_load_dwordx4 {vr(AD+4,4)}, v{vOff}, {sr(dW,4)}, s{sT} offen offset:1024")
    sRo = k.s(8); sDs = k.s(2); vWc = k.v(2); vWd = k.v(2)
    mm = k.mark()
    sJb = k.s(); sUn = k.s(); sBl = k.s(); sRh = k.s(); sWh = k.s(); sKg = k.s(); sSt = k.s(); sA = k.s()
    for n in range(2):
        k(f"s_lshl_b32 s{sJb}, s2, 3\ns_add_u32 s{sJb}, s{sJb}, s{sJ}")
        if n == 0:
            k(f"s_lshr_b32 s{sUn}, s{sJb}, 3\ns_and_b32 s{sBl}, s{sJb}, 7\ns_lshr_b32 s{sRh}, s{sUn}, 7\ns_add_u32 s{sRh}, s{sRh}, 1")
        else:
            k(f"s_lshr_b32 s{sUn}, s{sJb}, 3\ns_and_b32 s{sBl}, s{sJb}, 7\ns_lshr_b32 s{sA}, s{sJb}, 2\ns_and_b32 s{sT}, s{sJb}, 3\ns_lshr_b32 s{sRh}, s{sJb}, 7\ns_and_b32 s{sRh}, s{sRh}, 4")
            k(f"s_cmp_lt_u32 s{sJb}, 1024\ns_cselect_b32 s{sUn}, s{sUn}, s{sA}\ns_cselect_b32 s{sBl}, s{sBl}, s{sT}\ns_cselect_b32 s{sRh}, 3, s{sRh}")
        k(f"s_bfe_u32 s{sWh}, s{sUn}, 0x10006\ns_and_b32 s{sKg}, s{sUn}, 63")
        k(f"s_lshr_b32 s{sA}, s{sKg}, 2\ns_lshl_b32 s{sA}, s{sA}, 3\ns_add_u32 s{sA}, s{sA}, s{sRh}\ns_and_b32 s{sT}, s{sKg}, 3\ns_lshl_b32 s{sT}, s{sT}, 9\ns_add_u32 s{sA}, s{sA}, s{sT}")
        k(f"s_sub_u32 s{sT}, 2048, s{sA}\ns_cmp_eq_u32 s{sWh}, 1\ns_cselect_b32 s{sA}, s{sT}, s{sA}\ns_movk_i32 s{sSt}, 128\ns_cselect_b32 s{sSt}, -128, s{sSt}\ns_cselect_b64 vcc, -1, 0")
        k(f"s_lshl_b32 s{sT}, s{sBl}, 7\nv_lshl_add_u32 v{T}, v{vL}, 1, s{sT}\nv_sub_u32 v{T+1}, 1024, v{T}\nv_cndmask_b32 v{vWc+n}, v{T}, v{T+1}, vcc")
        for v in range(4):
            k(f"s_and_b32 s{sT}, s{sA}, 2047\ns_mul_i32 s{sRo+4*n+v}, s{sT}, 1026")
            if v < 3: k(f"s_add_u32 s{sA}, s{sA}, s{sSt}")
        k(f"s_lshl_b32 s{sA}, s{sRh}, 6\ns_sub_i32 s{sA}, s{sA}, 31\ns_max_i32 s{sA}, s{sA}, 0\ns_lshl_b32 s{sT}, s{sBl}, 3\ns_add_u32 s{sA}, s{sA}, s{sT}\ns_mul_i32 s{sA}, s{sA}, {ZA_PITCH}")
        k(f"s_and_b32 s{sT}, s{sUn}, 127\ns_lshl_b32 s{sT}, s{sT}, 7\ns_add_u32 s{sDs+n}, s{sA}, s{sT}\ns_bfe_u32 s{sT}, s{sKg}, 0x30002")
        k(f"v_and_b32 v{T}, 7, v{vL}\nv_xor_b32 v{T}, s{sT}, v{T}\nv_lshrrev_b32 v{T+1}, 3, v{vL}\nv_mul_u32_u24 v{T+1}, {ZA_PITCH}, v{T+1}\nv_lshl_add_u32 v{vWd+n}, v{T}, 4, v{T+1}")
    k.release(mm)
    dR = k.srd(pF, W_BYTES); dI = k.srd(pF + 2, W_BYTES); dB = k.srd(pWS, ZA_BYTES, WS_WB)
    WV = k.v(16); SP = k.v(4)
    k(f"v_and_b32 v{T}, 7, v{vL}\nv_lshrrev_b32 v{T+1}, 3, v{vL}\nv_mul_u32_u24 v{SP+2}, 1026, v{T}\nv_lshl_add_u32 v{SP+2}, v{T+1}, 9, v{SP+2}")
    k(f"v_lshlrev_b32 v{SP+3}, 2, v{T}\nv_lshl_add_u32 v{SP+3}, v{T+1}, 13, v{SP+3}")
    k(f"v_subrev_u32 v{T}, 448, v0\nv_cmp_gt_u32 vcc, 24, v{T}\nv_mov_b32 v{T}, {OOB}\nv_cndmask_b32 v{SP+2}, v{T}, v{SP+2}, vcc\nv_cndmask_b32 v{SP+3}, v{T}, v{SP+3}, vcc")
    X = k.v(16); vSum = k.v(); vMax = k.v()
    k.stamp()
    k("s_waitcnt vmcnt(8)")
    unpack_bf16(k, X, XP, 8, sMask)
    k(f"v_add_f32 v{vSum}, v{X}, v{X+1}\nv_add_f32 v{T}, v{X+2}, v{X+3}")
    for i in range(2, 8): k(f"v_add_f32 v{vSum}, v{vSum}, v{X+2*i}\nv_add_f32 v{T}, v{T}, v{X+2*i+1}")
    k(f"v_add_f32 v{vSum}, v{vSum}, v{T}")
    k("s_waitcnt vmcnt(4)")
    k.stamp()
    for n in range(2):
        for v in range(4):
            k(f"buffer_load_ushort v{WV+8*n+v}, v{vWc+n}, {sr(dR,4)}, s{sRo+4*n+v} offen nt")
            k(f"buffer_load_ushort v{WV+8*n+4+v}, v{vWc+n}, {sr(dI,4)}, s{sRo+4*n+v} offen nt")
    k(f"s_mul_i32 s{sT}, s2, 8208")
    k(f"buffer_load_ushort v{SP}, v{SP+2}, {sr(dR,4)}, s{sT} offen\nbuffer_load_ushort v{SP+1}, v{SP+2}, {sr(dI,4)}, s{sT} offen")
    def modfin(k):
        for i in range(4): k(f"v_add_f32 v{MP+i}, v{MP+i}, v{MP+4+i}\nv_add_f32 v{MP+8+i}, v{MP+8+i}, v{MP+12+i}")
        for i in range(4): k(f"v_add_f32 v{MP+i}, v{MP+i}, v{MP+8+i}")
        k(f"v_cvt_pk_bf16_f32 v{MP+4}, v{MP}, v{MP+1}\nv_cvt_pk_bf16_f32 v{MP+5}, v{MP+2}, v{MP+3}")
        unpack_bf16(k, MP, MP + 4, 2, sMask)
        for i in range(4): k(f"v_add_f32 v{MP+i}, s{sAdd}, v{MP+i}")
        k(f"v_cvt_pk_bf16_f32 v{MP+4}, v{MP}, v{MP+1}\nv_cvt_pk_bf16_f32 v{MP+5}, v{MP+2}, v{MP+3}")
        unpack_bf16(k, MP, MP + 4, 2, sMask)
        k(f"ds_write_b128 v{vMw}, {vr(MP,4)}")
        k(f"v_max3_f32 v{vMax}, abs(v{MP}), abs(v{MP+1}), abs(v{MP+2})\nv_max_f32 v{vMax}, abs(v{MP+3}), v{vMax}")
    sSum = k.s(); sMax = k.s()
    with_fill(k, cap(lambda t: wave_reduce(t, "v_add_f32", [vSum], [sSum])), cap(modfin), 5)
    vM = k.v(); vDl = k.v(); vE = k.v()
    def meanpart(k):
        k(f"v_mov_b32 v{vDl}, {fbits(1/1024)}\nv_mul_f32 v{vDl}, s{sSum}, v{vDl}\nv_mov_b32 v{vM}, v{vDl}")
        round_bf16(k, vM)
        k(f"v_sub_f32 v{vDl}, v{vDl}, v{vM}")
        for i in range(16): k(f"v_sub_f32 v{X+i}, v{X+i}, v{vM}")
    with_fill(k, cap(lambda t: wave_reduce(t, "v_max_f32", [vMax], [sMax])), cap(meanpart), 3)
    k(f"s_lshl_b32 s{sT}, s{sJ}, 2\ns_add_u32 s{sT}, s{sT}, {MX}\nv_mov_b32 v{T+1}, s{sT}")
    k(f"v_mov_b32 v{vMax}, s{sMax}\nds_write_b32 v{T+1}, v{vMax}")
    k(f"v_mul_f32 v{vSum}, v{X}, v{X}\nv_mul_f32 v{T}, v{X+1}, v{X+1}")
    for i in range(1, 8): k(f"v_fmac_f32 v{vSum}, v{X+2*i}, v{X+2*i}\nv_fmac_f32 v{T}, v{X+2*i+1}, v{X+2*i+1}")
    k(f"v_add_f32 v{vSum}, v{vSum}, v{T}")
    k("s_waitcnt vmcnt(18) lgkmcnt(0)\ns_barrier")
    k.stamp()
    SA = k.v(16); CA = k.v(16); FA = k.v(16)
    assert CA == SA + 16
    k(f"v_mov_b32 v{T}, {MX}\nds_read_b128 {vr(MP,4)}, v{T}\nds_read_b128 {vr(MP+4,4)}, v{T} offset:16")
    for q in range(2):
        for h in range(2): k(f"ds_read_b128 {vr(CA+8*q+4*h,4)}, v{vOff} offset:{MOD+4096+2048*q+1024*h}")
    for q in range(2):
        for h in range(2): k(f"ds_read_b128 {vr(SA+8*q+4*h,4)}, v{vOff} offset:{MOD+2048*q+1024*h}")
    def fq(ct, ks, ri): return TAB + 1024 * ((ct * 2 + ks) * 2 + ri)
    for ct in range(2):
        for ri in range(2): k(f"ds_read_b128 {vr(FA+(ct*2+ri)*4,4)}, v{vOff} offset:{fq(ct,0,ri)}")
    wave_reduce(k, "v_add_f32", [vSum], [sSum])
    k("s_waitcnt lgkmcnt(12)")
    k(f"v_max3_f32 v{MP}, v{MP}, v{MP+1}, v{MP+2}\nv_max3_f32 v{MP+4}, v{MP+4}, v{MP+5}, v{MP+6}\nv_max3_f32 v{MP}, v{MP}, v{MP+3}, v{MP+7}\nv_max_f32 v{MP}, v{MP}, v{MP+4}")
    k(f"v_frexp_exp_i32_f32 v{vE}, v{MP}\nv_sub_u32 v{vE}, 3, v{vE}\nv_min_i32 v{vE}, 60, v{vE}\nv_max_i32 v{vE}, {(-100)&0xffffffff}, v{vE}")
    vR = vM
    def rpart(k):
        k(f"v_mov_b32 v{vR}, {fbits(1/1024)}\nv_mul_f32 v{vR}, s{sSum}, v{vR}\nv_fma_f32 v{vR}, -v{vDl}, v{vDl}, v{vR}\nv_max_f32 v{vR}, 0, v{vR}")
        round_bf16(k, vR)
        k(f"v_add_f32 v{vR}, {fbits(1e-5)}, v{vR}")
        round_bf16(k, vR)
        k(f"v_sqrt_f32 v{vR}, v{vR}")
        round_bf16(k, vR)
        k(f"v_rcp_f32 v{vR}, v{vR}")
        k(f"v_ldexp_f32 v{vR}, v{vR}, v{vE}")
    k("s_waitcnt lgkmcnt(4)")
    FB = CA
    fill = [f"v_mul_f32 v{X+i}, v{X+i}, v{CA+i}" for i in range(16)]
    fill += [f"ds_read_b128 {vr(FB+(ct*2+ri)*4,4)}, v{vOff} offset:{fq(ct,1,ri)}" for ct in range(2) for ri in range(2)]
    fill += [f"v_ldexp_f32 v{SA+i}, v{SA+i}, v{vE}" for i in range(16)]
    with_fill(k, cap(rpart), fill, 3)
    Z = XP
    for i in range(8):
        k(f"v_fma_f32 v{X+2*i}, v{X+2*i}, v{vR}, v{SA+2*i}\nv_fma_f32 v{X+2*i+1}, v{X+2*i+1}, v{vR}, v{SA+2*i+1}")
        k(f"v_cvt_pk_f16_f32 v{Z+i}, v{X+2*i}, v{X+2*i+1}")
        if i == 3: k(f"ds_write_b128 v{vW1}, {vr(Z,4)}")
    k(f"ds_write_b128 v{vW1}, {vr(Z+4,4)} offset:1024")
    k.stamp()
    OP = MP
    for h in range(4): k(f"ds_read2st64_b32 {vr(OP+2*h,2)}, v{vR1} offset0:{2*h} offset1:{2*h+1}")
    TW = SA; F2 = MP + 8
    for q in range(4): k(f"ds_read_b128 {vr(TW+4*q,4)}, v{vOff} offset:{TAB+8192+1024*q}")
    for q in range(2): k(f"ds_read_b128 {vr(F2+4*q,4)}, v{vOff} offset:{TAB+12288+1024*q}")
    D1 = X
    for q in range(4): k(f"v_xor_b32 v{vSt+q}, s{sF}, v{vSt+q}")
    k("s_waitcnt lgkmcnt(8)")
    for o in range(4): k(f"{MF} {vr(D1+o*4,4)}, {vr(OP,4)}, {vr(FA+o*4,4)}, 0")
    k("s_waitcnt lgkmcnt(6)")
    for o in range(4): k(f"{MF} {vr(D1+o*4,4)}, {vr(OP+4,4)}, {vr(FB+o*4,4)}, {vr(D1+o*4,4)}")
    F3 = FA
    for q in range(4): k(f"ds_read_b128 {vr(F3+4*q,4)}, v{vOff} offset:{TAB+14336+1024*q}")
    k("s_waitcnt lgkmcnt(4)")
    D2 = CA
    for ct in range(2):
        for v in range(4):
            re = D1 + ct * 8 + v; im = re + 4
            cmul_tw(k, re, im, TW + 4 * ct + v, TW + 8 + 4 * ct + v, False, T + v)
            k(f"v_cvt_pk_f16_f32 v{OP+4*ct+v}, v{re}, v{im}")
        k(f"{MF} {vr(D2+ct*8,4)}, {vr(OP+4*ct,4)}, {vr(F2,4)}, 0")
        k(f"{MF} {vr(D2+ct*8+4,4)}, {vr(OP+4*ct,4)}, {vr(F2+4,4)}, 0")
    for ct in range(2):
        for v in range(4): k(f"v_cvt_pk_f16_f32 v{Z+4*ct+v}, v{D2+ct*8+v}, v{D2+ct*8+4+v}")
        k(f"ds_write_b128 v{vW2+ct}, {vr(Z+4*ct,4)}")
    k.stamp()
    k("s_waitcnt lgkmcnt(0)\ns_barrier")
    k.stamp()
    O3 = X
    for q in range(2):
        for x in range(2):
            d = O3 + (q * 2 + x) * 4
            k(f"ds_read2st64_b32 {vr(d,2)}, v{vR3+2*q+x} offset0:0 offset1:8")
            k(f"ds_read2st64_b32 {vr(d+2,2)}, v{vR3+2*q+x} offset0:16 offset1:24")
    D3 = SA
    for q in range(2):
        for x in range(2):
            k(f"s_waitcnt lgkmcnt({6-2*(2*q+x)})")
            for ri in range(2):
                d = D3 + ((q * 2 + x) * 2 + ri) * 4
                k(f"{MF} {vr(d,4)}, {vr(O3+(q*2+x)*4,4)}, {vr(F3+(x*2+ri)*4,4)}, 0")
    P = MP
    for q in range(2):
        for v in range(4):
            for x in range(2):
                d = D3 + ((q * 2 + x) * 2) * 4 + v
                k(f"v_cvt_pk_f16_f32 v{P+8*q+2*v+x}, v{d}, v{d+4}")
        for e in range(4): k(f"v_permlane32_swap_b32 v{P+8*q+e}, v{P+8*q+4+e}")
        for ins in range(2):
            k(f"buffer_store_dwordx4 {vr(P+8*q+4*ins,4)}, v{vSt+2*q+ins}, {sr(dZ,4)}, s{sS0} offen {st_flags}")
    k("s_waitcnt vmcnt(4)")
    for n in range(2):
        for v in range(4): k(f"v_lshl_or_b32 v{WV+8*n+v}, v{WV+8*n+4+v}, 16, v{WV+8*n+v}")
        k(f"buffer_store_dwordx4 {vr(WV+8*n,4)}, v{vWd+n}, {sr(dB,4)}, s{sDs+n} offen sc1")
    k(f"v_lshl_or_b32 v{SP}, v{SP+1}, 16, v{SP}\ns_lshl_b32 s{sT}, s2, 5\ns_add_u32 s{sT}, s{sT}, {WS_SPC}")
    k(f"buffer_store_dword v{SP}, v{SP+3}, {sr(dW,4)}, s{sT} offen")
    sM7 = sAdd
    k(f"s_mov_b32 s{sM7}, 0x7fff7fff\nv_and_b32 v{SP+1}, s{sM7}, v{SP}")
    for n in range(2):
        for v in range(4): k(f"v_and_b32 v{WV+8*n+4+v}, s{sM7}, v{WV+8*n+v}\nv_pk_max_u16 v{SP+1}, v{SP+1}, v{WV+8*n+4+v}")
    k(f"v_lshrrev_b32 v{T}, 16, v{SP+1}\nv_and_b32 v{SP+1}, 0xffff, v{SP+1}\nv_max_u32 v{SP+1}, v{SP+1}, v{T}")
    wave_reduce(k, "v_max_u32", [SP + 1], [sMax])
    k(f"s_lshl_b32 s{sT}, s{sJ}, 2\ns_add_u32 s{sT}, s{sT}, {MX}\nv_mov_b32 v{T}, s{sT}\nv_mov_b32 v{SP+1}, s{sMax}\nds_write_b32 v{T}, v{SP+1}")
    k("s_waitcnt lgkmcnt(0)\ns_barrier")
    k(f"s_cmp_lg_u32 s{sJ}, 0\ns_cbranch_scc1 A_noscal")
    k(f"ds_read_b128 {vr(X,4)}, v{T}\nds_read_b128 {vr(X+4,4)}, v{T} offset:16\ns_lshl_b32 s{sT}, s2, 2\ns_add_u32 s{sT}, s{sT}, {WS_WMAX}\nv_mov_b32 v{T}, 0\ns_waitcnt lgkmcnt(0)")
    k(f"v_max3_u32 v{X}, v{X}, v{X+1}, v{X+2}\nv_max3_u32 v{X+4}, v{X+4}, v{X+5}, v{X+6}\nv_max3_u32 v{X}, v{X}, v{X+3}, v{X+7}\nv_max_u32 v{X}, v{X}, v{X+4}")
    k(f"buffer_store_dword v{X}, v{T}, {sr(dW,4)}, s{sT} offen")
    k(f"s_cmp_lg_u32 s2, 0\ns_cbranch_scc1 A_noscal")
    k(f"v_mov_b32 v{T}, {WS_SCAL}\nbuffer_store_dword v{vE}, v{T}, {sr(dW,4)}, 0 offen")
    k("A_noscal:")
    k.stamp()
    if k.prof: k("s_waitcnt vmcnt(0)")
    k.stamp_flush()
    k("A_end:\ns_endpgm")
    return k

def fin_job(k, pWS, sJ, vL, T, endlabel):
    MP = k.v(32); vMw = k.v(); vOff = k.v(); sL = k.s(); sAdd = k.s(); sT = k.s(); sMask = k.s()
    k(f"s_lshl_b32 s{sL}, s{sJ}, 11\nv_lshlrev_b32 v{vOff}, 4, v{vL}\ns_mov_b32 s{sMask}, 0xffff0000\ns_waitcnt lgkmcnt(0)")
    dW = k.srd(pWS, WS_ZA)
    for p in range(4):
        k(f"s_add_u32 s{sT}, s{sL}, {WS_MODP + 8192 + p*24576}")
        for h in range(2): k(f"buffer_load_dwordx4 {vr(MP+8*p+4*h,4)}, v{vOff}, {sr(dW,4)}, s{sT} offen offset:{1024*h}")
    k(f"v_and_b32 v{T}, 1, v{vL}\nv_mul_u32_u24 v{T}, 73, v{T}\nv_bfe_u32 v{T+1}, v{vL}, 1, 2\nv_mad_u32_u24 v{T}, v{T+1}, 18, v{T}")
    k(f"v_lshrrev_b32 v{T+1}, 3, v{vL}\nv_add_u32 v{T}, v{T}, v{T+1}\nv_lshlrev_b32 v{vMw}, 4, v{T}")
    k(f"s_lshr_b32 s{sT}, s{sJ}, 1\ns_cmp_eq_u32 s{sT}, 2\ns_cselect_b32 s{sAdd}, 1.0, 0")
    k("s_waitcnt vmcnt(0)")
    for i in range(8): k(f"v_add_f32 v{MP+i}, v{MP+i}, v{MP+8+i}\nv_add_f32 v{MP+16+i}, v{MP+16+i}, v{MP+24+i}")
    for i in range(8): k(f"v_add_f32 v{MP+i}, v{MP+i}, v{MP+16+i}")
    for i in range(4): k(f"v_cvt_pk_bf16_f32 v{MP+8+i}, v{MP+2*i}, v{MP+2*i+1}")
    k(f"s_cmp_ge_u32 s{sJ}, 6\ns_cbranch_scc1 F_gb")
    unpack_bf16(k, MP, MP + 8, 4, sMask)
    for i in range(8): k(f"v_add_f32 v{MP+i}, s{sAdd}, v{MP+i}")
    for i in range(4): k(f"v_cvt_pk_bf16_f32 v{MP+8+i}, v{MP+2*i}, v{MP+2*i+1}")
    unpack_bf16(k, MP, MP + 8, 4, sMask)
    k(f"s_mul_i32 s{sT}, s{sJ}, {C_MV}\ns_add_u32 s{sT}, s{sT}, {WS_MODC}")
    k(f"buffer_store_dwordx4 {vr(MP,4)}, v{vMw}, {sr(dW,4)}, s{sT} offen\nbuffer_store_dwordx4 {vr(MP+4,4)}, v{vMw}, {sr(dW,4)}, s{sT} offen offset:128")
    k("s_endpgm\nF_gb:")
    k(f"s_lshl_b32 s{sT}, s{sJ}, 10\ns_add_u32 s{sT}, s{sT}, {WS_GB-6144}\nv_lshlrev_b32 v{T}, 3, v{vL}")
    k(f"buffer_store_dwordx2 {vr(MP+8,2)}, v{T}, {sr(dW,4)}, s{sT} offen\nbuffer_store_dwordx2 {vr(MP+10,2)}, v{T}, {sr(dW,4)}, s{sT} offen offset:512")

def gen_b(pf=(0, 0), st_flags="sc1"):
    TAB = 16384; OUT = 24576; WL = 40960
    NM = 258
    k = Kern("fb_kernel", NM + 8, 512, WL + 16384)
    pW1 = k.s(2); pWS = k.s(2)
    sSlot = k.s(); sT = k.s(); sRho = k.s(); sC = k.s()
    k.stamp(True)
    k(f"s_load_dwordx2 {sr(pWS,2)}, s[0:1], 96")
    if pf[1]: k(f"s_load_dwordx2 {sr(pW1,2)}, s[0:1], 32")
    k(f"s_cmp_ge_u32 s2, {NM+8}\ns_cbranch_scc1 B_end")
    vL, vI, vG, sU, T = lane_ids(k)
    k(f"s_cmp_ge_u32 s2, {NM}\ns_cbranch_scc1 B_side")
    m0 = k.mark()
    k(f"s_and_b32 s{sT}, s2, 7\ns_add_u32 s{sT}, s{sT}, 1\ns_lshr_b32 s{sRho}, s{sT}, 1\ns_and_b32 s{sC}, s{sT}, 1\ns_lshl_b32 s{sC}, s{sC}, 5")
    k(f"s_cmp_eq_u32 s{sRho}, 0\ns_cselect_b32 s{sC}, 0, s{sC}\ns_lshr_b32 s{sT}, s2, 3\ns_add_u32 s{sC}, s{sC}, s{sT}")
    k(f"s_cmp_eq_u32 s2, 257\ns_cselect_b32 s{sRho}, 4, s{sRho}")
    k(f"s_lshl_b32 s{sSlot}, s{sRho}, 6\ns_sub_i32 s{sSlot}, s{sSlot}, 31\ns_max_i32 s{sSlot}, s{sSlot}, 0\ns_add_u32 s{sSlot}, s{sSlot}, s{sC}")
    vOff = k.v()
    k(f"v_lshlrev_b32 v{vOff}, 4, v{vL}")
    sO = k.s(); sL = k.s()
    k(f"s_mul_i32 s{sO}, s{sSlot}, {ZA_PITCH}\ns_lshl_b32 s{sL}, s{sU}, 11\ns_add_u32 s{sO}, s{sO}, s{sL}\ns_mov_b32 m0, s{sL}")
    k("s_waitcnt lgkmcnt(0)")
    k.stamp_init2(2, pWS); k.stamp()
    dZ = k.srd(pWS, ZA_BYTES, WS_ZA)
    k(f"buffer_load_dwordx4 v{vOff}, {sr(dZ,4)}, s{sO} offen lds")
    k(f"buffer_load_dwordx4 v{vOff}, {sr(dZ,4)}, s{sO} offen offset:1024 lds")
    dW = k.srd(pWS, WS_ZA)
    k(f"s_lshl_b32 s{sT}, s{sU}, 10\ns_add_u32 m0, s{sT}, {TAB}\ns_add_u32 s{sT}, s{sT}, {WS_TBC}")
    k(f"buffer_load_dwordx4 v{vOff}, {sr(dW,4)}, s{sT} offen lds")
    WP = k.v(8); WE = k.v(8); WM = k.v(4); vWrd = k.v(); sSp = k.s()
    k(f"s_mov_b32 s{sT}, {WS_WMAX}\nbuffer_load_dwordx4 {vr(WM,4)}, v{vOff}, {sr(dW,4)}, s{sT} offen")
    dB = k.srd(pWS, ZA_BYTES, WS_WB)
    k(f"s_add_u32 m0, s{sL}, {WL}\ns_cmp_ge_u32 s2, 256\ns_cselect_b32 s{dB+2}, 0, s{dB+2}")
    k(f"buffer_load_dwordx4 v{vOff}, {sr(dB,4)}, s{sO} offen lds\nbuffer_load_dwordx4 v{vOff}, {sr(dB,4)}, s{sO} offen offset:1024 lds")
    k(f"s_cselect_b32 s{sT}, 0, s{sC}\ns_cselect_b64 vcc, -1, 0\ns_or_b32 s{sSp}, s{sT}, s{sU}")
    k(f"s_cmp_lg_u32 s{sSp}, 0\ns_cbranch_scc1 B_nox")
    sE1 = k.s(); sE2o = k.s()
    k(f"s_lshl_b32 s{sE1}, s{sC}, 8\ns_sub_u32 s{sE2o}, {WS_SPC+16384}, s{sE1}\ns_add_u32 s{sE1}, s{sE1}, {WS_SPC}")
    for v in range(4):
        k(f"v_lshl_add_u32 v{T}, v{vG}, 2, {v}\nv_lshl_add_u32 v{T}, v{T}, 4, v{vI}\nv_lshl_add_u32 v{T}, v{T}, 3, s{sRho}")
        k(f"v_sub_u32 v{T+1}, 2048, v{T}\nv_and_b32 v{T+1}, 2047, v{T+1}")
        k(f"v_cndmask_b32 v{T+2}, v{T+1}, v{T}, vcc\nv_cndmask_b32 v{T+3}, v{T}, v{T+1}, vcc\nv_lshlrev_b32 v{T+2}, 2, v{T+2}\nv_lshlrev_b32 v{T+3}, 2, v{T+3}")
        k(f"buffer_load_dword v{WE+v}, v{T+2}, {sr(dW,4)}, s{sE1} offen\nbuffer_load_dword v{WE+4+v}, v{T+3}, {sr(dW,4)}, s{sE2o} offen")
    k("B_nox:")
    k(f"v_and_b32 v{T}, 7, v{vI}\nv_xor_b32 v{T}, s{sU}, v{T}\nv_lshlrev_b32 v{T}, 4, v{T}\nv_lshl_add_u32 v{T}, v{vG}, 7, v{T}\nv_lshl_add_u32 v{vWrd}, v{vI}, 9, v{T}")
    dO = k.srd(pWS, ZB_BYTES, WS_ZB)
    k(f"s_cmp_lt_u32 s2, 256\ns_cbranch_scc1 B_reg\ns_setprio 3\ns_cmp_lg_u32 s{sU}, 0\ns_cbranch_scc1 B_idle\nB_reg:")
    vCp = k.v(); vSp = k.v()
    k(f"s_lshl_b32 s{sT}, s{sC}, 3\ns_add_u32 s{sT}, s{sT}, s{sU}\ns_add_u32 s{sT}, s{sT}, 256\nv_mov_b32 v{T}, s{sT}")
    sincos(k, vCp, vSp, T, 2048, T + 1)
    k(f"v_mul_f32 v{vCp}, {fbits(0.25)}, v{vCp}\nv_mul_f32 v{vSp}, {fbits(0.25)}, v{vSp}")
    G = k.v(32)
    def g1(ks, o): return G + (ks * 4 + o) * 4
    for e2 in range(2):
        k(f"v_lshl_add_u32 v{T}, v{vG}, 1, {e2}\nv_mul_u32_u24 v{T}, v{T}, v{vI}")
        sincos(k, T + 1, T + 2, T, 16, T + 3)
        k(f"v_mul_f32 v{T+4}, v{vCp}, v{T+1}\nv_mul_f32 v{T+5}, v{vCp}, v{T+2}")
        k(f"v_mul_f32 v{T+6}, v{vSp}, v{T+1}\nv_mul_f32 v{T+7}, v{vSp}, v{T+2}")
        p1 = f"v{T+4}, v{T+5}"; p2 = f"-v{T+5}, v{T+4}"; p3 = f"v{T+7}, -v{T+6}"; p4 = f"v{T+6}, v{T+7}"
        for o, (pa, pb) in enumerate(((p1, p3), (p2, p4), (p3, p1), (p4, p2))):
            k(f"v_cvt_pk_f16_f32 v{g1(0,o)+2*e2}, {pa}\nv_cvt_pk_f16_f32 v{g1(0,o)+2*e2+1}, {pb}")
    sSign = k.s()
    k(f"s_mov_b32 s{sSign}, 0x80008000")
    k(f"v_and_b32 v{T}, 1, v{vI}\nv_mul_lo_u32 v{T}, v{T}, s{sSign}")
    for x in range(16): k(f"v_xor_b32 v{G+16+x}, v{T}, v{G+x}")
    H = k.v(16)
    for v in range(4):
        k(f"v_lshl_add_u32 v{T}, v{vG}, 2, {v}\nv_mul_u32_u24 v{T}, v{T}, v{vI}")
        sincos(k, T + 1, T + 2, T, 16, T + 3)
        k(f"v_mul_f32 v{T+4}, v{vCp}, v{T+1}\nv_mul_f32 v{T+5}, v{vCp}, v{T+2}\nv_mul_f32 v{T+6}, v{vSp}, v{T+1}\nv_mul_f32 v{T+7}, v{vSp}, v{T+2}")
        k(f"v_cvt_pk_f16_f32 v{H+v}, v{T+4}, -v{T+5}\nv_cvt_pk_f16_f32 v{H+4+v}, v{T+5}, v{T+4}")
        k(f"v_cvt_pk_f16_f32 v{H+8+v}, v{T+7}, v{T+6}\nv_cvt_pk_f16_f32 v{H+12+v}, -v{T+6}, v{T+7}")
    vRd = vCp; vWr = vSp
    k(f"s_lshr_b32 s{sT}, s{sU}, 1")
    k(f"v_lshrrev_b32 v{T}, 2, v{vI}\nv_xor_b32 v{T}, s{sT}, v{T}\nv_lshlrev_b32 v{T}, 4, v{T}\nv_lshl_add_u32 v{T}, v{vI}, 6, v{T}")
    k(f"s_and_b32 s{sT}, s{sU}, 1\ns_lshl_b32 s{sT}, s{sT}, 3\nv_add_u32 v{T}, s{sT}, v{T}")
    k(f"v_lshl_add_u32 v{vRd}, v{vG}, 11, v{T}\nv_lshl_add_u32 v{vWr}, v{vG}, 12, v{T}")
    vOr = vI; vOs = vG
    k(f"v_lshlrev_b32 v{vOr}, 4, v0")
    k(f"v_lshrrev_b32 v{T}, 2, v0\nv_mul_u32_u24 v{T}, {ZB_PITCH}, v{T}")
    k(f"v_lshrrev_b32 v{T+1}, 4, v0\nv_xor_b32 v{T+1}, v{T+1}, v0\nv_and_b32 v{T+1}, 3, v{T+1}\nv_lshl_add_u32 v{vOs}, v{T+1}, 4, v{T}")
    sMask = k.s(); sScale = k.s(); sE2 = k.s()
    k(f"s_mov_b32 s{sMask}, 0xffff0000")
    k.stamp()
    k("s_waitcnt vmcnt(0)\ns_barrier")
    k.stamp()
    OP = k.v(8); D = k.v(16); TB = k.v(16)
    for ks in range(2):
        for e2 in range(2): k(f"ds_read_b64 {vr(OP+4*ks+2*e2,2)}, v{vRd} offset:{(8*ks+e2)*1024}")
    for q in range(4): k(f"ds_read_b128 {vr(TB+4*q,4)}, v{vOff} offset:{TAB+1024*q}")
    TWC = TB; TWS = TB + 4; FR = TB + 8; FI = TB + 12; CR = TB + 8; CI = TB + 12
    k(f"ds_read_b128 {vr(WP,4)}, v{vWrd} offset:{WL}\nds_read_b128 {vr(WP+4,4)}, v{vWrd} offset:{WL+8192}")
    pf_mall(k, pW1, pf[0], pf[1], 2, sU, vL, T + 4)
    k(f"v_max3_u32 v{WM}, v{WM}, v{WM+1}, v{WM+2}\nv_max_u32 v{WM}, v{WM}, v{WM+3}")
    red = cap(lambda t: wave_reduce(t, "v_max_u32", [WM], [sE2]))
    for l in red[:3]: k(l)
    k("s_waitcnt lgkmcnt(8)")
    for o in range(4):
        k(f"{MF} {vr(D+4*o,4)}, {vr(OP,4)}, {vr(g1(0,o),4)}, 0")
        if o & 1: k(red[3 + (o >> 1)])
    k("s_waitcnt lgkmcnt(6)")
    for o in range(4):
        k(f"{MF} {vr(D+4*o,4)}, {vr(OP+4,4)}, {vr(g1(1,o),4)}, {vr(D+4*o,4)}")
        if o & 1: k(red[5 + (o >> 1)])
    k(f"s_lshr_b32 s{sE2}, s{sE2}, 7\ns_sub_i32 s{sE2}, 125, s{sE2}\ns_min_i32 s{sE2}, s{sE2}, 60\ns_max_i32 s{sE2}, s{sE2}, -100")
    k(f"s_add_u32 s{sScale}, s{sE2}, 127\ns_lshl_b32 s{sScale}, s{sScale}, 23")
    k("s_waitcnt lgkmcnt(0)")
    for w in range(2):
        for v in range(4):
            re = D + 8 * w + v; im = re + 4
            cmul_tw(k, re, im, TWC + v, TWS + v, False, T + v)
            k(f"v_cvt_pk_f16_f32 v{OP+4*w+v}, v{re}, v{im}")
        k(f"{MF} {vr(D+8*w,4)}, {vr(FR,4)}, {vr(OP+4*w,4)}, 0")
        k(f"{MF} {vr(D+8*w+4,4)}, {vr(FI,4)}, {vr(OP+4*w,4)}, 0")
    k(f"ds_read_b128 {vr(CR,4)}, v{vOff} offset:{TAB+4096}\nds_read_b128 {vr(CI,4)}, v{vOff} offset:{TAB+5120}")
    Wf = G
    k.stamp()
    unpack_bf16(k, Wf, WP, 8, sMask)
    k(f"s_cmp_lg_u32 s{sSp}, 0\ns_cbranch_scc1 B_nospec")
    unpack_bf16(k, G + 16, WE, 8, sMask)
    k(f"s_cmp_ge_u32 s2, 256\ns_cselect_b32 s{sT}, 1.0, -1.0\ns_cselect_b32 s{sE1}, 0, {1<<23}\ns_sub_u32 s{sScale}, s{sScale}, s{sE1}")
    for i in range(8): k(f"v_add_f32 v{Wf+2*i}, v{Wf+2*i}, v{G+16+2*i}\nv_fmac_f32 v{Wf+2*i+1}, s{sT}, v{G+16+2*i+1}")
    k(f"v_mov_b32 v{T+4}, {WS_SCAL+4}\nv_mov_b32 v{T+5}, s{sE2}\nbuffer_store_dword v{T+5}, v{T+4}, {sr(dW,4)}, 0 offen")
    k("B_nospec:")
    for i in range(16): k(f"v_mul_f32 v{Wf+i}, s{sScale}, v{Wf+i}")
    k("s_waitcnt lgkmcnt(0)")
    for w in range(2):
        for v in range(4):
            re = D + 8 * w + v; im = re + 4
            cmul_tw(k, re, im, Wf + 8 * w + 2 * v, Wf + 8 * w + 2 * v + 1, w == 0, T + v)
            k(f"v_cvt_pk_f16_f32 v{OP+4*w+v}, v{re}, v{im}")
        k(f"{MF} {vr(D+8*w,4)}, {vr(OP+4*w,4)}, {vr(CR,4)}, 0")
        k(f"{MF} {vr(D+8*w+4,4)}, {vr(OP+4*w,4)}, {vr(CI,4)}, 0")
    E = G + 16
    for w in range(2):
        for v in range(4):
            re = D + 8 * w + v; im = re + 4
            cmul_tw(k, re, im, TWC + v, TWS + v, True, T + v)
            k(f"v_cvt_pk_f16_f32 v{OP+4*w+v}, v{re}, v{im}")
        for x in range(2):
            for ri in range(2):
                d = E + 8 * x + 4 * ri
                k(f"{MF} {vr(d,4)}, {vr(H+8*(x^w)+4*ri,4)}, {vr(OP+4*w,4)}, {vr(d,4) if w else 0}")
    P = WP
    for v in range(4):
        k(f"v_cvt_pk_f16_f32 v{P+2*v}, v{E+v}, v{E+4+v}\nv_cvt_pk_f16_f32 v{P+2*v+1}, v{E+8+v}, v{E+12+v}")
        k(f"ds_write_b64 v{vWr}, {vr(P+2*v,2)} offset:{OUT+v*1024}")
    k("s_waitcnt lgkmcnt(0)\nB_out:\ns_barrier")
    k.stamp()
    k(f"ds_read_b128 {vr(D,4)}, v{vOr} offset:{OUT}\nds_read_b128 {vr(D+4,4)}, v{vOr} offset:{OUT+8192}")
    k(f"s_lshl_b32 s{sO}, s{sSlot}, 6\ns_add_u32 s{sT}, s{sO}, {128*ZB_PITCH}")
    k("s_waitcnt lgkmcnt(1)")
    k(f"buffer_store_dwordx4 {vr(D,4)}, v{vOs}, {sr(dO,4)}, s{sO} offen {st_flags}")
    k("s_waitcnt lgkmcnt(0)")
    k(f"buffer_store_dwordx4 {vr(D+4,4)}, v{vOs}, {sr(dO,4)}, s{sT} offen {st_flags}")
    k.stamp()
    if k.prof: k("s_waitcnt vmcnt(0)")
    k.stamp_flush()
    k("s_endpgm")
    k("B_idle:")
    k(f"v_lshlrev_b32 v{vOr}, 4, v0")
    k(f"v_lshrrev_b32 v{T}, 2, v0\nv_mul_u32_u24 v{T}, {ZB_PITCH}, v{T}")
    k(f"v_lshrrev_b32 v{T+1}, 4, v0\nv_xor_b32 v{T+1}, v{T+1}, v0\nv_and_b32 v{T+1}, 3, v{T+1}\nv_lshl_add_u32 v{vOs}, v{T+1}, 4, v{T}")
    k("s_waitcnt vmcnt(0)\ns_barrier\ns_branch B_out")
    k.release(m0)
    k("B_side:")
    k(f"s_cmp_lg_u32 s{sU}, 0\ns_cbranch_scc1 B_end\ns_sub_u32 s{sC}, s2, {NM}")
    fin_job(k, pWS, sC, vL, T, "B_end")
    k("B_end:\ns_endpgm")
    return k

def gen_c(l2w=0, pf=(0, 0), pfa=32, st_flags="sc1"):
    TAB = C_TB + 8 * C_TP; MOD = TAB + 16384; MV = C_MV
    k = Kern("fc_kernel", 256, 512, MOD + 14336)
    k.s()
    pX = k.s(2); pWS = k.s(2); pW1 = k.s(2)
    k(f"s_cmp_ge_u32 s2, 256\ns_cbranch_scc1 C_end")
    k("s_and_b32 s3, s2, 3\ns_lshl_b32 s3, s3, 6\ns_and_b32 s4, s2, 4\ns_lshl_b32 s4, s4, 3\ns_add_u32 s3, s3, s4\ns_lshr_b32 s2, s2, 3\ns_add_u32 s2, s2, s3")
    k.stamp(True)
    k(f"s_load_dwordx2 {sr(pX,2)}, s[0:1], 0")
    k(f"s_load_dwordx2 {sr(pWS,2)}, s[0:1], 96")
    k(f"s_load_dwordx2 {sr(pW1,2)}, s[0:1], {pfa}")
    vL, vI, vG, sJ, T = lane_ids(k)
    sMask = k.s(); sT = k.s(); sRow = k.s(); sO = k.s(); sL = k.s(); sQ = k.s()
    vOff = k.v(); vXo = k.v()
    k(f"v_lshlrev_b32 v{vOff}, 4, v{vL}\nv_lshlrev_b32 v{vXo}, 6, v{vI}\nv_lshl_add_u32 v{vXo}, v{vG}, 4, v{vXo}")
    k(f"s_mov_b32 s{sMask}, 0xffff0000")
    k(f"s_lshl_b32 s{sRow}, s{sJ}, 8\ns_add_u32 s{sRow}, s{sRow}, s2\ns_lshl_b32 s{sRow}, s{sRow}, 11")
    k(f"s_mul_i32 s{sO}, s2, {ZB_PITCH}\ns_lshl_b32 s{sL}, s{sJ}, 11")
    k(f"s_add_u32 s{sQ}, s{sL}, {WS_TCC}\ns_lshl_b32 s{sT}, s2, 11\ns_add_u32 s{sT}, s{sT}, {WS_TCS}\ns_cmp_eq_u32 s{sJ}, 7\ns_cselect_b32 s{sQ}, s{sT}, s{sQ}")
    k("s_waitcnt lgkmcnt(0)")
    k.stamp_init2(3, pWS); k.stamp()
    sSc = k.s(2)
    k(f"s_load_dwordx2 {sr(sSc,2)}, {sr(pWS,2)}, {WS_SCAL}")
    dZ = k.srd(pWS, ZB_BYTES, WS_ZB)
    k(f"s_cmp_lg_u32 s{sJ}, 0\ns_cbranch_scc1 C_no17")
    k(f"s_mov_b32 m0, 16384\ns_add_u32 s{sT}, s{sO}, 16384")
    k(f"buffer_load_dwordx4 v{vOff}, {sr(dZ,4)}, s{sT} offen lds")
    k("C_no17:")
    k(f"s_add_u32 s{sO}, s{sO}, s{sL}\ns_mov_b32 m0, s{sL}")
    k(f"buffer_load_dwordx4 v{vOff}, {sr(dZ,4)}, s{sO} offen lds")
    k(f"buffer_load_dwordx4 v{vOff}, {sr(dZ,4)}, s{sO} offen offset:1024 lds")
    dW = k.srd(pWS, WS_ZA)
    AD = k.v(12)
    k(f"s_add_u32 m0, s{sL}, {TAB}\ns_mul_i32 s{sT}, s{sJ}, 3072\ns_add_u32 s{sT}, s{sT}, {WS_TCW}")
    for q in range(3): k(f"buffer_load_dwordx4 {vr(AD+4*q,4)}, v{vOff}, {sr(dW,4)}, s{sT} offen offset:{1024*q}")
    k(f"buffer_load_dwordx4 v{vOff}, {sr(dW,4)}, s{sQ} offen lds")
    k(f"buffer_load_dwordx4 v{vOff}, {sr(dW,4)}, s{sQ} offen offset:1024 lds")
    vR1 = AD; vW1 = AD + 8; vR2 = AD + 10
    dX = k.srd(pX, 2048 * 2048)
    XP = k.v(8)
    k(f"buffer_load_dwordx4 {vr(XP,4)}, v{vXo}, {sr(dX,4)}, s{sRow} offen nt")
    k(f"buffer_load_dwordx4 {vr(XP+4,4)}, v{vXo}, {sr(dX,4)}, s{sRow} offen offset:1024 nt")
    dX1 = k.srd(pWS, 4 << 20, WS_X1); dY2 = k.srd(pWS, 4 << 20, WS_Y2)
    vMr = k.v()
    k(f"v_mad_u32_u24 v{T}, v{vG}, 18, v{vI}\nv_lshlrev_b32 v{vMr}, 4, v{T}\nv_add_u32 v{vMr}, {MOD}, v{vMr}")
    sR = k.s(); sY = k.s(); vYo = k.v()
    k(f"s_lshl_b32 s{sR}, s2, 3\ns_add_u32 s{sR}, s{sR}, s{sJ}")
    k(f"s_lshr_b32 s{sY}, s{sR}, 7\ns_lshl_b32 s{sY}, s{sY}, 18\ns_and_b32 s{sT}, s{sR}, 127\ns_lshl_b32 s{sT}, s{sT}, 7\ns_add_u32 s{sY}, s{sY}, s{sT}")
    k(f"s_bfe_u32 s{sT}, s{sR}, 0x30001\nv_and_b32 v{T}, 1, v{vI}\nv_lshl_add_u32 v{T}, v{T}, 2, v{vG}\nv_xor_b32 v{T}, s{sT}, v{T}\nv_lshlrev_b32 v{T}, 4, v{T}")
    k(f"v_lshrrev_b32 v{T+1}, 1, v{vI}\nv_lshl_add_u32 v{vYo}, v{T+1}, 14, v{T}")
    k(f"s_lshl_b32 s{sR}, s{sR}, 11")
    k.stamp()
    k("s_waitcnt vmcnt(2) lgkmcnt(0)\ns_barrier")
    k.stamp()
    OP = k.v(8); D = k.v(16); F1 = k.v(8); TW = k.v(16); F3 = k.v(32); X = k.v(16); E = k.v(16)
    k(f"ds_read_b128 {vr(F1,4)}, v{vOff} offset:{TAB+14336}\nds_read_b128 {vr(F1+4,4)}, v{vOff} offset:{TAB+15360}")
    for x in range(8): k(f"ds_read_b32 v{OP+x}, v{vR1+x}")
    k(f"s_cmp_eq_u32 s{sJ}, 7\ns_cbranch_scc1 C_nomod")
    k(f"s_add_u32 m0, s{sL}, {MOD}\ns_add_u32 s{sT}, s{sL}, {WS_MODC}")
    k(f"buffer_load_dwordx4 v{vOff}, {sr(dW,4)}, s{sT} offen lds\nbuffer_load_dwordx4 v{vOff}, {sr(dW,4)}, s{sT} offen offset:1024 lds")
    k("C_nomod:")
    sE = k.s()
    k(f"s_add_i32 s{sE}, s{sSc}, s{sSc+1}\ns_sub_i32 s{sE}, 0, s{sE}")
    for q in range(2):
        k(f"s_waitcnt lgkmcnt({4-4*q})")
        k(f"{MF} {vr(D+8*q,4)}, {vr(OP+4*q,4)}, {vr(F1,4)}, 0")
        k(f"{MF} {vr(D+8*q+4,4)}, {vr(OP+4*q,4)}, {vr(F1+4,4)}, 0")
    for q in range(4): k(f"ds_read_b128 {vr(TW+4*q,4)}, v{vOff} offset:{TAB+2048+1024*q}")
    for q in range(2):
        for v in range(4): k(f"v_cvt_pk_f16_f32 v{OP+4*q+v}, v{D+8*q+v}, v{D+8*q+4+v}")
        k(f"ds_write_b128 v{vW1+q}, {vr(OP+4*q,4)}")
    F2 = F1
    k(f"ds_read_b128 {vr(F2,4)}, v{vOff} offset:{TAB}\nds_read_b128 {vr(F2+4,4)}, v{vOff} offset:{TAB+1024}")
    k("s_waitcnt lgkmcnt(0)\ns_barrier")
    for rt in range(2):
        k(f"ds_read2st64_b32 {vr(OP+4*rt,2)}, v{vR2+rt} offset0:0 offset1:2")
        k(f"ds_read2st64_b32 {vr(OP+4*rt+2,2)}, v{vR2+rt} offset0:4 offset1:6")
    for q in (0, 1, 4, 5, 2, 3, 6, 7): k(f"ds_read_b128 {vr(F3+4*q,4)}, v{vOff} offset:{TAB+6144+1024*q}")
    def f3(ct, rt, ri): return F3 + ((ct * 2 + rt) * 2 + ri) * 4
    for rt in range(2):
        k(f"s_waitcnt lgkmcnt({10-2*rt})")
        k(f"{MF} {vr(D+8*rt,4)}, {vr(OP+4*rt,4)}, {vr(F2,4)}, 0")
        k(f"{MF} {vr(D+8*rt+4,4)}, {vr(OP+4*rt,4)}, {vr(F2+4,4)}, 0")
    for rt in range(2):
        for v in range(4):
            re = D + 8 * rt + v; im = re + 4
            cmul_tw(k, re, im, TW + 4 * rt + v, TW + 8 + 4 * rt + v, True, T + v)
            k(f"v_cvt_pk_f16_f32 v{OP+4*rt+v}, v{re}, v{im}")
        k(f"s_waitcnt lgkmcnt({4-4*rt})")
        for ct in range(2):
            for ri in range(2):
                d = E + 8 * ct + 4 * ri
                k(f"{MF} {vr(d,4)}, {vr(OP+4*rt,4)}, {vr(f3(ct,rt,ri),4)}, {vr(d,4) if rt else 0}")
    k("s_waitcnt vmcnt(0)\ns_barrier")
    k.stamp()
    GA = TW
    def mread(dst, vec):
        for ct in range(2):
            for h in range(2): k(f"ds_read_b128 {vr(dst+8*ct+4*h,4)}, v{vMr} offset:{(2*vec+ct)*MV + 73*16*h}")
    mread(GA, 0)
    SB = F3; CB = F3 + 16
    mread(CB, 2); mread(SB, 1)
    pf_mall(k, pW1, pf[0], pf[1], 2, sJ, AD, T + 4)
    if l2w:
        dP = k.srd(pW1, WBYTES)
        k(f"v_lshrrev_b32 v{T+4}, 5, v0\nv_mul_u32_u24 v{T+4}, {32*7168}, v{T+4}\nv_and_b32 v{T+5}, 31, v0\nv_lshl_add_u32 v{T+4}, v{T+5}, 7, v{T+4}")
        k(f"v_cmp_lt_u32 vcc, 27, v{T+5}\nv_mov_b32 v{T+5}, {OOB}\nv_cndmask_b32 v{T+4}, v{T+4}, v{T+5}, vcc")
        k(f"s_and_b32 s{sT}, s2, 31\ns_mul_i32 s{sO}, s{sT}, 7168\ns_bfe_u32 s{sT}, s2, 0x10005\ns_mul_i32 s{sT}, s{sT}, 3584\ns_add_u32 s{sO}, s{sO}, s{sT}")
        k(f"buffer_load_dword v{AD}, v{T+4}, {sr(dP,4)}, s{sO} offen")
        if l2w > 1:
            nw = int(round((l2w - 1) * 8))
            k(f"s_add_u32 s{sO}, s{sO}, {512*7168}\ns_cmp_lt_u32 s{sJ}, {nw}\ns_cselect_b32 s{dP+2}, s{dP+2}, 0")
            k(f"buffer_load_dword v{AD+1}, v{T+4}, {sr(dP,4)}, s{sO} offen")
    unpack_bf16(k, X, XP, 8, sMask)
    def dreg(n): return E + 8 * (n >> 3) + 4 * (n & 1) + ((n & 7) >> 1)
    for n in range(16): k(f"v_ldexp_f32 v{dreg(n)}, v{dreg(n)}, s{sE}")
    for i in range(8): k(f"v_cvt_pk_bf16_f32 v{OP+i}, v{dreg(2*i)}, v{dreg(2*i+1)}")
    unpack_bf16(k, D, OP, 8, sMask)
    k("s_waitcnt lgkmcnt(8)")
    for n in range(16): k(f"v_mul_f32 v{D+n}, v{D+n}, v{GA+n}")
    for i in range(8): k(f"v_cvt_pk_bf16_f32 v{OP+i}, v{D+2*i}, v{D+2*i+1}")
    unpack_bf16(k, D, OP, 8, sMask)
    for n in range(16): k(f"v_add_f32 v{X+n}, v{X+n}, v{D+n}")
    for i in range(8): k(f"v_cvt_pk_bf16_f32 v{XP+i}, v{X+2*i}, v{X+2*i+1}")
    k(f"buffer_store_dwordx4 {vr(XP,4)}, v{vXo}, {sr(dX1,4)}, s{sR} offen {st_flags}")
    k(f"buffer_store_dwordx4 {vr(XP+4,4)}, v{vXo}, {sr(dX1,4)}, s{sR} offen offset:1024 {st_flags}")
    unpack_bf16(k, X, XP, 8, sMask)
    vSum = k.v(); vM = k.v(); vDl = k.v(); vR = k.v(); sSum = k.s()
    def layernorm(fill2):
        k(f"v_add_f32 v{vSum}, v{X}, v{X+1}\nv_add_f32 v{T}, v{X+2}, v{X+3}")
        for i in range(2, 8): k(f"v_add_f32 v{vSum}, v{vSum}, v{X+2*i}\nv_add_f32 v{T}, v{T}, v{X+2*i+1}")
        k(f"v_add_f32 v{vSum}, v{vSum}, v{T}")
        wave_reduce(k, "v_add_f32", [vSum], [sSum])
        k(f"v_mov_b32 v{vDl}, {fbits(1/1024)}\nv_mul_f32 v{vDl}, s{sSum}, v{vDl}\nv_mov_b32 v{vM}, v{vDl}")
        round_bf16(k, vM)
        k(f"v_sub_f32 v{vDl}, v{vDl}, v{vM}")
        for i in range(16): k(f"v_sub_f32 v{X+i}, v{X+i}, v{vM}")
        k(f"v_mul_f32 v{vSum}, v{X}, v{X}\nv_mul_f32 v{T}, v{X+1}, v{X+1}")
        for i in range(1, 8): k(f"v_fmac_f32 v{vSum}, v{X+2*i}, v{X+2*i}\nv_fmac_f32 v{T}, v{X+2*i+1}, v{X+2*i+1}")
        k(f"v_add_f32 v{vSum}, v{vSum}, v{T}")
        with_fill(k, cap(lambda t: wave_reduce(t, "v_add_f32", [vSum], [sSum])), fill2, 3)
        k(f"v_mov_b32 v{vR}, {fbits(1/1024)}\nv_mul_f32 v{vR}, s{sSum}, v{vR}")
        k(f"v_fma_f32 v{vR}, -v{vDl}, v{vDl}, v{vR}\nv_max_f32 v{vR}, 0, v{vR}")
        round_bf16(k, vR)
        k(f"v_add_f32 v{vR}, {fbits(1e-5)}, v{vR}")
        round_bf16(k, vR)
        k(f"v_sqrt_f32 v{vR}, v{vR}")
        round_bf16(k, vR)
        k(f"v_rcp_f32 v{vR}, v{vR}")
    k("s_waitcnt lgkmcnt(0)")
    k.stamp()
    layernorm([f"v_mul_f32 v{X+i}, v{X+i}, v{CB+i}" for i in range(16)])
    for i in range(16): k(f"v_fma_f32 v{X+i}, v{X+i}, v{vR}, v{SB+i}")
    for i in range(8): k(f"v_cvt_pk_bf16_f32 v{OP+i}, v{X+2*i}, v{X+2*i+1}")
    unpack_bf16(k, X, OP, 8, sMask)
    layernorm([])
    for i in range(16): k(f"v_mul_f32 v{X+i}, v{X+i}, v{vR}")
    for i in range(8): k(f"v_cvt_pk_bf16_f32 v{OP+i}, v{X+2*i}, v{X+2*i+1}")
    k(f"s_add_u32 s{sT}, s{sY}, {8*16384}")
    k(f"buffer_store_dwordx4 {vr(OP,4)}, v{vYo}, {sr(dY2,4)}, s{sY} offen {st_flags}")
    k(f"buffer_store_dwordx4 {vr(OP+4,4)}, v{vYo}, {sr(dY2,4)}, s{sT} offen {st_flags}")
    k.stamp()
    if k.prof: k("s_waitcnt vmcnt(0)")
    k.stamp_flush()
    k("C_end:\ns_endpgm")
    return k
```

```python
import os, sys, io, contextlib
from final import *
def empty():
    k = Kern("e_kernel", 256, 256, 0); k("s_endpgm"); return k
ks = lambda: [K.gen_k0(), K.gen_a(), K.gen_b(pf=(0,112)), K.gen_c(pf=(28672,112)), K.gen_g1(l2w=0), K.gen_g2()]
with contextlib.redirect_stdout(io.StringIO()):
    L = ks(); e = empty(); make("h0.s", L)
    L = ks(); make("h4.s", L + [e], L + [e]*4)
    L = ks(); make("h4f.s", L + [e], [e]*4 + L)
    L = ks(); make("h2x.s", L, L + L)
```

```python
import re, struct

TRANS = ("v_exp_f32", "v_log_f32", "v_rcp_f32", "v_rsq_f32", "v_sqrt_f32", "v_sin_f32", "v_cos_f32", "v_rcp_iflag_f32")
RMW = ("v_fmac_f32", "v_pk_fmac_f16", "v_dot2c_f32_bf16", "v_fmac_f16")

def fbits(x):
    return "0x%08x" % struct.unpack("<I", struct.pack("<f", x))[0]

_reg_re = re.compile(r"^(-|abs\(|\|)*([vsa])(\d+|\[(\d+):(\d+)\])\)?\|?$")
def parse_reg(tok):
    tok = tok.strip()
    if tok in ("vcc",): return ("s", 106, 107)
    if tok == "vcc_lo": return ("s", 106, 106)
    if tok == "vcc_hi": return ("s", 107, 107)
    if tok == "exec": return ("x", 0, 1)
    if tok == "m0": return ("m", 0, 0)
    m = _reg_re.match(tok)
    if not m: return None
    if m.group(4) is not None:
        return (m.group(2), int(m.group(4)), int(m.group(5)))
    return (m.group(2), int(m.group(3)), int(m.group(3)))

def regs(r):
    return [(r[0], i) for i in range(r[1], r[2] + 1)]

class Ins:
    def __init__(self, text):
        self.text = text
        t = text.split(";")[0].strip()
        self.label = t.endswith(":")
        self.directive = t.startswith(".")
        self.empty = (t == "")
        self.op = ""; self.dst = []; self.src = []
        self.ops = []
        if self.label or self.directive or self.empty: return
        parts = t.split(None, 1)
        self.op = parts[0]
        rest = parts[1] if len(parts) > 1 else ""
        toks = []; depth = 0; cur = ""
        for ch in rest:
            if ch in "[(": depth += 1
            if ch in "])": depth -= 1
            if ch == "," and depth == 0:
                toks.append(cur.strip()); cur = ""
            else: cur += ch
        if cur.strip(): toks.append(cur.strip())
        mods = ""
        if toks:
            sp = toks[-1].split(None, 1)
            toks[-1] = sp[0]
            mods = sp[1] if len(sp) > 1 else ""
        self.mods = mods
        self.ops = [parse_reg(x) for x in toks]
        op = self.op
        base = re.sub(r"_(e32|e64|dpp|sdwa)$", "", op)
        self.base = base
        self.is_mfma = op.startswith("v_mfma")
        self.is_valu = op.startswith("v_") and not self.is_mfma
        self.is_trans = base in TRANS
        self.is_dpp = self.is_valu and any(k in mods for k in ("row_", "quad_perm", "wave_"))
        self.is_vmem = op.startswith(("buffer_", "global_", "flat_"))
        self.is_ds = op.startswith("ds_")
        self.is_salu = op.startswith("s_")
        self.is_branch = op.startswith(("s_cbranch", "s_branch", "s_setpc", "s_swappc"))
        self.is_lds_dma = self.is_vmem and (" lds" in " " + mods or "load_lds" in op)
        R = [r for r in self.ops]
        def add(lst, r):
            if r is not None: lst.extend(regs(r))
        if self.is_mfma:
            add(self.dst, R[0]); add(self.src, R[1]); add(self.src, R[2]); add(self.src, R[3])
            self.passes = 8 if "32x32" in op else 4
        elif self.is_valu:
            if base.startswith("v_permlane") or base == "v_swap_b32":
                for r in R[:2]: add(self.dst, r); add(self.src, r)
            elif base in ("v_add_co_u32", "v_sub_co_u32", "v_subrev_co_u32", "v_addc_co_u32", "v_subb_co_u32", "v_mad_u64_u32"):
                add(self.dst, R[0]); add(self.dst, R[1])
                for r in R[2:]: add(self.src, r)
            elif base == "v_nop":
                pass
            else:
                add(self.dst, R[0])
                for r in R[1:]: add(self.src, r)
                if base in RMW or self.is_dpp or "sdwa" in op or base == "v_writelane_b32": add(self.src, R[0])
        elif self.is_vmem:
            if op.startswith(("buffer_inv", "buffer_wbl2")): pass
            elif self.is_lds_dma:
                for r in R: add(self.src, r)
                self.src.append(("m", 0))
            elif "_load" in op:
                add(self.dst, R[0])
                for r in R[1:]: add(self.src, r)
                if "d16" in op: add(self.src, R[0])
            elif "atomic" in op:
                for r in R: add(self.src, r)
                if "sc0" in mods: add(self.dst, R[0])
            else:
                for r in R: add(self.src, r)
                self.store_data = regs(R[0]) if op.startswith("buffer_") else regs(R[1])
                self.wide_store = ("x4" in op or "x3" in op)
        elif self.is_ds:
            if op.startswith(("ds_read", "ds_bpermute", "ds_permute", "ds_swizzle")):
                add(self.dst, R[0])
                for r in R[1:]: add(self.src, r)
                if "d16" in op: add(self.src, R[0])
            else:
                for r in R: add(self.src, r)
        elif self.is_salu:
            if op.startswith(("s_cmp", "s_cbranch", "s_branch", "s_waitcnt", "s_barrier", "s_nop", "s_endpgm", "s_setprio", "s_sleep", "s_bitcmp", "s_setreg")):
                for r in R: add(self.src, r)
            else:
                add(self.dst, R[0])
                for r in R[1:]: add(self.src, r)
                if "saveexec" in op: self.dst += [("x", 0), ("x", 1)]
    def states(self):
        if self.op == "s_nop":
            return int(self.text.split(";")[0].split()[1], 0) + 1
        return 1

def fix_hazards(lines):
    out = []
    pos = 0
    valu_v = {}; trans_v = {}; mfma_d = {}; valu_s = {}; m0w = [-99]; stdata = {}; mfma_c = {}
    nops = 0
    for text in lines:
        I = Ins(text)
        if I.label or I.directive or I.empty:
            out.append(text); continue
        need = 0
        def req(p, ws):
            nonlocal need
            need = max(need, p + ws + 1)
        if I.is_branch or I.op == "s_endpgm" and False:
            for d, ws in ((valu_v, 2), (valu_s, 5), (stdata, 2)):
                for p in d.values(): req(p, ws)
            for (p, passes, rng, op) in mfma_d.values(): req(p, 12 if passes == 8 else 8)
            req(m0w[0], 1)
        vsrc = [r for r in I.src if r[0] in "va"]
        vdst = [r for r in I.dst if r[0] in "va"]
        ssrc = [r for r in I.src if r[0] == "s"]
        if I.is_mfma:
            A = regs(I.ops[1]); B = regs(I.ops[2]); C = regs(I.ops[3]) if I.ops[3] else []
            for r in A + B + C:
                if r in valu_v: req(valu_v[r], 2)
            for r in A + B:
                if r in mfma_d:
                    p, passes, rng, op = mfma_d[r]; req(p, 12 if passes == 8 else 8)
            for r in C + vdst:
                if r in mfma_d:
                    p, passes, rng, op = mfma_d[r]
                    if I.ops[3] == rng and I.ops[0] == rng and op == I.op: pass
                    else: req(p, 10 if passes == 8 else 6)
        else:
            for r in vsrc + vdst:
                if r in mfma_d:
                    p, passes, rng, op = mfma_d[r]; req(p, 12 if passes == 8 else 8)
        if I.is_valu:
            for r in vdst:
                if r in mfma_c:
                    p, passes = mfma_c[r]; req(p, 7 if passes == 8 else 3)
                if r in stdata: req(stdata[r], 2)
            if not I.is_trans or True:
                for r in vsrc:
                    if r in trans_v and not I.is_trans: req(trans_v[r], 1)
            if I.is_dpp or I.base.startswith("v_permlane"):
                for r in vsrc:
                    if r in valu_v: req(valu_v[r], 2)
            if I.base in ("v_readlane_b32", "v_readfirstlane_b32"):
                for r in vsrc:
                    if r in valu_v: req(valu_v[r], 1)
                for r in ssrc:
                    if r in valu_s: req(valu_s[r], 4)
            if I.base == "v_writelane_b32":
                for r in ssrc:
                    if r in valu_s: req(valu_s[r], 4)
            for r in ssrc:
                if r in valu_s: req(valu_s[r], 2)
        if I.is_vmem or I.is_ds:
            for r in ssrc:
                if r in valu_s: req(valu_s[r], 5)
            for r in vsrc:
                if r in trans_v: req(trans_v[r], 1)
            for r in vdst:
                if r in stdata: req(stdata[r], 1)
            if I.is_lds_dma: req(m0w[0], 1)
        if I.is_salu:
            for r in ssrc:
                if r in valu_s: req(valu_s[r], 1)
        if need > pos:
            n = need - pos
            while n > 0:
                k = min(n, 16)
                out.append(f"s_nop {k-1}"); pos += k; n -= k; nops += k
        out.append(text)
        if I.is_mfma:
            for r in vdst:
                mfma_d[r] = (pos, I.passes, I.ops[0], I.op); valu_v.pop(r, None); trans_v.pop(r, None)
            if I.ops[3]:
                for r in regs(I.ops[3]): mfma_c[r] = (pos, I.passes)
        elif I.is_valu:
            for r in I.dst:
                if r[0] in "va":
                    valu_v[r] = pos; mfma_d.pop(r, None)
                    if I.is_trans: trans_v[r] = pos
                    else: trans_v.pop(r, None)
                elif r[0] == "s": valu_s[r] = pos
                elif r[0] == "x": raise Exception("VALU exec write not supported: " + text)
        else:
            for r in I.dst:
                if r[0] in "va":
                    valu_v.pop(r, None); trans_v.pop(r, None); mfma_d.pop(r, None)
                elif r[0] == "s": valu_s.pop(r, None)
                elif r[0] == "m": m0w[0] = pos
            if I.is_vmem and getattr(I, "wide_store", False):
                for r in I.store_data: stdata[r] = pos
        pos += I.states()
    return out, nops

class Kern:
    def __init__(self, name, grid, block, lds):
        self.name = name; self.grid = grid; self.block = block; self.lds = lds
        self.lines = []
        self.nv = 1; self.ns = 3
        self.maxv = 1; self.maxs = 3
        self.agpr = 0
    def __call__(self, text):
        for l in text.split("\n"):
            l = l.strip()
            if l: self.lines.append(l)
    def v(self, n=1, align=None):
        a = align or (1 if n == 1 else (2 if n == 2 else 4))
        self.nv = (self.nv + a - 1) // a * a
        r = self.nv; self.nv += n; self.maxv = max(self.maxv, self.nv)
        assert self.nv <= 256, "out of arch VGPRs"
        return r
    def s(self, n=1, align=None):
        a = align or (1 if n == 1 else (2 if n == 2 else 4))
        self.ns = (self.ns + a - 1) // a * a
        r = self.ns; self.ns += n; self.maxs = max(self.maxs, self.ns)
        assert self.ns <= 100, "out of SGPRs"
        return r
    prof = None
    def stamp_init(self, idx, pWS):
        if self.prof is None: return
        self._st = []; self._stidx = idx; self._pWS = pWS
    def stamp_init2(self, idx, pWS):
        self._stidx = idx; self._pWS = pWS
    def stampc(self):
        self.stamp(ins="s_memtime")
    def stamp(self, early=False, ins="s_memrealtime"):
        if self.prof is None: return
        if not hasattr(self, "_st"): self._st = []
        r = 100 - 2 * (len(self._st) + 1)
        assert r >= 66
        self._st.append(r); self.maxs = 100
        self(f"{ins} s[{r}:{r+1}]")
        if not early: self("s_waitcnt lgkmcnt(0)")
    def stamp_flush(self):
        if self.prof is None: return
        self.stamp()
        d = 60
        off = (64 << 20) + self._stidx * (1 << 20)
        self(f"s_add_u32 s{d}, s{self._pWS}, {off}\ns_addc_u32 s{d+1}, s{self._pWS+1}, 0\ns_mov_b32 s{d+2}, 0x100000\ns_mov_b32 s{d+3}, 0x20000")
        self(f"v_lshrrev_b32 v1, 6, v0\nv_lshlrev_b32 v1, 6, v1\ns_lshl_b32 s64, s2, 10")
        for i, r in enumerate(self._st):
            self(f"v_mov_b32 v2, s{r}\nbuffer_store_dword v2, v1, s[{d}:{d+3}], s64 offen offset:{4*i}")
    def mark(self): return (self.nv, self.ns)
    def release(self, m): self.nv, self.ns = m
    def srd(self, ptr, nbytes, off=0):
        d = self.s(4)
        if off:
            self(f"s_add_u32 s{d}, s{ptr}, {off}\ns_addc_u32 s{d+1}, s{ptr+1}, 0")
        else:
            self(f"s_mov_b32 s{d}, s{ptr}\ns_mov_b32 s{d+1}, s{ptr+1}")
        self(f"s_mov_b32 s{d+2}, {nbytes}\ns_mov_b32 s{d+3}, 0x20000")
        return d
    def text(self):
        body, nops = fix_hazards(self.lines)
        self.nops = nops
        o = [f".p2align 8", f".globl {self.name}", f".type {self.name},@function", f"{self.name}:"]
        o += [("" if l.endswith(":") else "  ") + l for l in body]
        return "\n".join(o)
    def desc(self):
        acc = (self.maxv + 3) // 4 * 4
        nfv = acc + self.agpr if self.agpr else self.maxv
        return f""".p2align 6
.amdhsa_kernel {self.name}
  .amdhsa_next_free_vgpr {nfv}
  .amdhsa_next_free_sgpr {max(self.maxs, 16)}
  .amdhsa_accum_offset {acc}
  .amdhsa_group_segment_fixed_size 0
  .amdhsa_kernarg_size 104
  .amdhsa_user_sgpr_count 2
  .amdhsa_user_sgpr_kernarg_segment_ptr 1
  .amdhsa_system_sgpr_workgroup_id_x 1
.end_amdhsa_kernel"""
    def launch(self):
        return f"; @launch kernel={self.name} grid=({self.grid},1,1) block=({self.block},1,1) lds={self.lds}"

def vr(a, n): return f"v[{a}:{a+n-1}]" if n > 1 else f"v{a}"
def sr(a, n): return f"s[{a}:{a+n-1}]" if n > 1 else f"s{a}"
def ar(a, n): return f"a[{a}:{a+n-1}]" if n > 1 else f"a{a}"

def assemble_file(kerns, header="", order=None):
    order = order or kerns
    o = [header.rstrip()] if header else []
    o += [k.launch() for k in order]
    o.append('.amdgcn_target "amdgcn-amd-amdhsa--gfx950"')
    o.append(".text")
    for k in kerns: o.append(k.text())
    o.append("CODE_END:\n  s_endpgm")
    o.append('.section .rodata,"a"')
    for k in kerns: o.append(k.desc())
    return "\n".join(o) + "\n"
```

```python
from asmlib import *
from kern3 import *
MB = "v_mfma_f32_16x16x32_bf16"
CLK = False

def tile_map(k, mx, sMt, sNt, sT):
    lm = mx.bit_length() - 1
    gm = 16 // mx
    lgm = gm.bit_length() - 1
    k(f"s_and_b32 s{sMt}, s2, {gm-1}\ns_lshl_b32 s{sMt}, s{sMt}, {lm}")
    k(f"s_lshr_b32 s{sT}, s2, 3\ns_and_b32 s{sT}, s{sT}, {mx-1}\ns_add_u32 s{sMt}, s{sMt}, s{sT}")
    k(f"s_and_b32 s{sNt}, s2, 7\ns_lshr_b32 s{sNt}, s{sNt}, {lgm}\ns_lshl_b32 s{sNt}, s{sNt}, {5-lm}")
    k(f"s_lshr_b32 s{sT}, s2, {3+lm}\ns_add_u32 s{sNt}, s{sNt}, s{sT}")

def interleave(k, main, fill, start=0, every=1):
    fill = list(fill)
    for i, m in enumerate(main):
        k(m)
        if i >= start and (i - start) % every == 0 and fill:
            k(fill.pop(0))
    for f in fill: k(f)


def gelu_block(k, src, n, E, sC2, vC1):
    r = range(n)
    for x in r: k(f"v_mul_f32 v{E+x}, v{src[x]}, v{src[x]}")
    for x in r: k(f"v_fma_f32 v{E+x}, v{E+x}, s{sC2}, v{vC1}")
    for x in r: k(f"v_mul_f32 v{E+x}, v{E+x}, v{src[x]}")
    for x in r: k(f"v_exp_f32 v{E+x}, v{E+x}")
    for x in r: k(f"v_add_f32 v{E+x}, 1.0, v{E+x}")
    for x in r: k(f"v_rcp_f32 v{E+x}, v{E+x}")
    for x in r: k(f"v_mul_f32 v{E+x}, v{E+x}, v{src[x]}")

def gen_g1(mx=4, pfd=3, l2w=2, st_flags="sc1", noload=False, nomfma=False, noread=False):
    NS = 16; BUF = 45056; NB = 3
    nx = 32 // mx
    k = Kern("g1_kernel", 256, 512, NB * BUF)
    pW = k.s(4); pWS = k.s(2); pW2 = k.s(2)
    k(f"s_cmp_ge_u32 s2, 256\ns_cbranch_scc1 G1_end")
    k.stamp(True)
    k(f"s_load_dwordx4 {sr(pW,4)}, s[0:1], 32")
    k(f"s_load_dwordx2 {sr(pW2,2)}, s[0:1], 48")
    k(f"s_load_dwordx2 {sr(pWS,2)}, s[0:1], 96")
    vL, vI, vG, sW, T = lane_ids(k)
    sT = k.s(); sMt = k.s(); sNt = k.s(); sWm = k.s(); sWn = k.s()
    tile_map(k, mx, sMt, sNt, sT)
    k(f"s_and_b32 s{sWm}, s{sW}, 1\ns_bfe_u32 s{sWn}, s{sW}, 0x10001")
    vHo = k.v(); sH = k.s(); sC1 = k.s(); sC2 = k.s(); vC1 = k.v(); vXa = k.v()
    k(f"v_lshlrev_b32 v{vHo}, 4, v{vL}")
    k(f"s_mul_i32 s{sH}, s{sMt}, {112*8192}\ns_mul_i32 s{sT}, s{sNt}, {7*8192}\ns_add_u32 s{sH}, s{sH}, s{sT}")
    k(f"s_lshl_b32 s{sT}, s{sWm}, 12\ns_add_u32 s{sH}, s{sH}, s{sT}")
    c1 = -2.0 * LOG2E * math.sqrt(2 / math.pi); c2 = c1 * 0.044715
    k(f"s_mov_b32 s{sC2}, {fbits(c2)}\nv_mov_b32 v{vC1}, {fbits(c1)}")
    k(f"s_and_b32 s{sT}, s{sW}, 3\ns_mul_i32 s{sT}, s{sT}, 14336\nv_add_u32 v{vXa}, s{sT}, v{vHo}")
    k(f"s_cmp_ge_u32 s{sW}, 4\ns_cbranch_scc1 G1_loader")
    m0 = k.mark()
    vBo = k.v()
    k(f"v_lshlrev_b32 v{vBo}, 3, v{vG}")
    sB0 = k.s(); sB6 = k.s()
    k(f"s_mul_i32 s{sB0}, s{sNt}, 448\ns_lshl_b32 s{sT}, s{sWn}, 5\ns_add_u32 s{sB6}, s{sB0}, s{sT}\ns_mul_i32 s{sT}, s{sWn}, 192\ns_add_u32 s{sB0}, s{sB0}, s{sT}")
    k("s_waitcnt lgkmcnt(0)")
    k.stamp_init2(4, pWS); k.stamp()
    dB = k.srd(pW + 2, 3584 * 2); dH = k.srd(pWS, 2048 * 3584 * 2, WS_H)
    ACC = k.v(112); FR = [k.v(44), k.v(44)]
    BP = FR[1]
    for t in range(7):
        if t < 6: k(f"buffer_load_dwordx2 {vr(BP+2*t,2)}, v{vBo}, {sr(dB,4)}, s{sB0} offen offset:{32*t}")
        else: k(f"buffer_load_dwordx2 {vr(BP+2*t,2)}, v{vBo}, {sr(dB,4)}, s{sB6} offen offset:{32*12}")
    def acc(t, mt): return ACC + (mt * 7 + t) * 4
    vPf = k.v(); sPf = k.s(); vDum = k.v()
    dP = k.srd(pW2, WBYTES)
    k(f"v_lshlrev_b32 v{vPf}, 7, v{vL}\ns_lshl_b32 s{sPf}, s2, 2\ns_add_u32 s{sPf}, s{sPf}, s{sW}\ns_mul_i32 s{sPf}, s{sPf}, {56*128}")
    pfi = f"buffer_load_dword v{vDum}, v{vPf}, {sr(dP,4)}, s{sPf} offen"
    vY = k.v(2 * NB); vWa = k.v(3 * NB)
    k(f"v_lshrrev_b32 v{T}, 1, v{vI}\nv_xor_b32 v{T}, v{T}, v{vG}\nv_lshlrev_b32 v{T}, 4, v{T}\nv_lshl_add_u32 v{T}, v{vI}, 7, v{T}")
    k(f"s_lshl_b32 s{sT}, s{sWm}, 13\nv_add_u32 v{T}, s{sT}, v{T}")
    for b in range(NB):
        k(f"v_add_u32 v{vY+2*b}, {b*BUF}, v{T}\nv_xor_b32 v{vY+2*b+1}, 64, v{vY+2*b}")
    k(f"v_lshrrev_b32 v{T}, 2, v{vI}\nv_lshl_add_u32 v{T}, v{vG}, 3, v{T}\nv_mul_u32_u24 v{T}, 448, v{T}")
    k(f"v_and_b32 v{T+1}, 3, v{vI}\nv_lshl_add_u32 v{T}, v{T+1}, 3, v{T}")
    k(f"v_and_b32 v{T+1}, 1, v{vG}\nv_lshlrev_b32 v{T+1}, 5, v{T+1}")
    k(f"s_mul_i32 s{sT}, s{sWn}, 192\ns_add_u32 s{sT}, s{sT}, 16384\nv_add_u32 v{T+2}, s{sT}, v{T}")
    for b in range(NB):
        k(f"v_add_u32 v{T+3}, {b*BUF}, v{T+2}\nv_add_u32 v{vWa+3*b}, v{T+3}, v{T+1}\nv_sub_u32 v{vWa+3*b+1}, v{T+3}, v{T+1}")
    k(f"s_lshl_b32 s{sT}, s{sWn}, 5\nv_xor_b32 v{T+1}, s{sT}, v{T+1}\nv_add_u32 v{T+2}, v{T}, v{T+1}")
    for b in range(NB): k(f"v_add_u32 v{vWa+3*b+2}, {b*BUF+16384+12*32}, v{T+2}")
    k(f"s_mul_i32 s{sT}, s{sWn}, {3*8192}\ns_add_u32 s{sH}, s{sH}, s{sT}")
    sMask = k.s()
    k(f"s_mov_b32 s{sMask}, 0xffff0000")
    k("s_waitcnt vmcnt(0)")
    for t in range(7): unpack_bf16(k, acc(t, 3), BP + 2 * t, 2, sMask)
    def reads(s, ks, F):
        b = s % NB
        yy = [f"ds_read_b128 {vr(F+28+4*mt,4)}, v{vY+2*b+ks} offset:{2048*mt}" for mt in range(4)]
        ww = []
        for t in range(7):
            a = vWa + 3 * b + (2 if t == 6 else (t & 1))
            off = (0 if t == 6 else 32 * t) + ks * 32 * 448
            ww.append(f"ds_read_b64_tr_b16 {vr(F+4*t,2)}, v{a} offset:{off}")
            ww.append(f"ds_read_b64_tr_b16 {vr(F+4*t+2,2)}, v{a} offset:{off+4*448}")
        return [] if noread else yy[:1] + ww + yy[1:]
    def mfmas(F, first):
        r = []
        for mt in range(4):
            for t in range(7):
                c = vr(acc(t, 3), 4) if first else vr(acc(t, mt), 4)
                r.append(f"{MB} {vr(acc(t,mt),4)}, {vr(F+4*t,4)}, {vr(F+28+4*mt,4)}, {c}")
        return r[:2] if nomfma else r
    k.stamp()
    k("s_barrier")
    k.stamp()
    if CLK: k.stampc()
    for l in reads(0, 0, FR[0]): k(l)
    for s in range(NS):
        k("s_waitcnt lgkmcnt(0)")
        fl = reads(s, 1, FR[1])
        if pfd and s == pfd: fl = fl + [pfi]
        interleave(k, mfmas(FR[0], s == 0), fl)
        k("s_waitcnt lgkmcnt(0)")
        k("s_barrier")
        if s + 1 < NS: interleave(k, mfmas(FR[1], False), reads(s + 1, 0, FR[0]))
        else:
            for l in mfmas(FR[1], False): k(l)
    k.stamp()
    if CLK: k.stampc()
    k("G1_epi:")
    give = [(2, 1), (2, 2), (3, 0), (3, 1), (3, 2)]
    keep = [(0, 0), (0, 1), (0, 2), (1, 0), (1, 1), (1, 2), (2, 0)]
    q = 0
    for mt in range(4):
        k(f"ds_write_b128 v{vXa}, {vr(acc(6,mt),4)} offset:{1024*(10+mt)}")
    for (mt, pr) in give:
        for h in range(2):
            k(f"ds_write_b128 v{vXa}, {vr(acc(2*pr+h,mt),4)} offset:{1024*q}"); q += 1
    k("s_waitcnt lgkmcnt(0)\ns_barrier")
    E = FR[0]; P = FR[1]
    def finish(units, regs_of, sBase):
        for u0 in range(0, len(units), 2):
            grp = units[u0:u0 + 2]
            src = []
            for u in range(len(grp)): src += regs_of(u0 + u)
            e = E + 16 * ((u0 // 2) & 1)
            gelu_block(k, src, len(src), e, sC2, vC1)
            for u, (sreg, add, imm) in enumerate(grp):
                Q = P + 4 * (u0 + u)
                for x in range(4): k(f"v_cvt_pk_bf16_f32 v{Q+x}, v{e+8*u+2*x}, v{e+8*u+2*x+1}")
                k(f"s_add_u32 s{sT}, s{sreg}, {add}")
                k(f"buffer_store_dwordx4 {vr(Q,4)}, v{vHo}, {sr(dHs[0],4)}, s{sT} offen offset:{imm} {st_flags}")
    dHs = [dH]
    finish([(sH, pr * 8192, 1024 * mt) for (mt, pr) in keep], lambda u: list(range(acc(2 * keep[u][1], keep[u][0]), acc(2 * keep[u][1], keep[u][0]) + 8)), sH)
    k.stamp()
    if k.prof: k("s_waitcnt vmcnt(0)")
    k.stamp_flush()
    k("s_endpgm")
    k.release(m0)
    k("G1_loader:")
    sLw = k.s(); sY = k.s(); sWo = k.s(); sYq = k.s(); sMy = k.s(); sMw = k.s()
    k(f"s_sub_u32 s{sLw}, s{sW}, 4")
    vYo = k.v(); vWo = k.v(7)
    for x in range(7):
        k(f"v_add_u32 v{T}, {64*x}, v{vL}\nv_mul_u32_u24 v{T+1}, 2341, v{T}\nv_lshrrev_b32 v{T+1}, 16, v{T+1}")
        k(f"v_mul_u32_u24 v{T+2}, 28, v{T+1}\nv_sub_u32 v{T}, v{T}, v{T+2}")
        k(f"v_lshrrev_b32 v{T+2}, 2, v{T+1}\nv_and_b32 v{T+2}, 2, v{T+2}\nv_xor_b32 v{T}, v{T}, v{T+2}")
        k(f"v_mul_u32_u24 v{T+1}, 7168, v{T+1}\nv_lshl_add_u32 v{vWo+x}, v{T}, 4, v{T+1}")
    k(f"s_lshl_b32 s{sY}, s{sMt}, 18\ns_lshl_b32 s{sT}, s{sLw}, 12\ns_add_u32 s{sY}, s{sY}, s{sT}")
    k(f"s_mul_i32 s{sWo}, s{sNt}, 448\ns_mul_i32 s{sT}, s{sLw}, {16*7168}\ns_add_u32 s{sWo}, s{sWo}, s{sT}")
    k(f"s_lshl_b32 s{sMy}, s{sLw}, 12\ns_mul_i32 s{sMw}, s{sLw}, 7168\ns_add_u32 s{sMw}, s{sMw}, 16384")
    k("s_waitcnt lgkmcnt(0)")
    dW = k.srd(pW, 1024 * 3584 * 2); dY = k.srd(pWS, 4 << 20, WS_Y2)
    def issue(s):
        b = s % NB
        if noload and s > 1: return
        k(f"s_add_u32 s{sT}, s{sWo}, {64*7168*s}\ns_add_u32 s{sYq}, s{sY}, {16384*s}\ns_add_u32 m0, s{sMy}, {b*BUF}")
        for x in range(4): k(f"buffer_load_dwordx4 v{vHo}, {sr(dY,4)}, s{sYq} offen offset:{1024*x} lds")
        for x in range(7):
            k(f"s_add_u32 m0, s{sMw}, {b*BUF + 1024*x}")
            k(f"buffer_load_dwordx4 v{vWo+x}, {sr(dW,4)}, s{sT} offen lds")
    issue(0); issue(1)
    dH2 = k.srd(pWS, 2048 * 3584 * 2, WS_H)
    sH6 = k.s(); vXb = k.v()
    k(f"s_lshl_b32 s{sT}, s{sWn}, 11\ns_add_u32 s{sH6}, s{sH}, s{sT}\ns_add_u32 s{sH6}, s{sH6}, {6*8192}")
    k(f"s_mul_i32 s{sT}, s{sWn}, {3*8192}\ns_add_u32 s{sH}, s{sH}, s{sT}")
    k(f"s_mul_i32 s{sT}, s{sWm}, 14336\ns_lshl_b32 s{sYq}, s{sWn}, 11\ns_add_u32 s{sT}, s{sT}, s{sYq}\nv_add_u32 v{vXb}, s{sT}, v{vHo}")
    for s in range(NS):
        k(f"s_waitcnt vmcnt({11 if s + 1 < NS else 0})\ns_barrier")
        if s + 2 < NS: issue(s + 2)
        if s == 10: code_pf_w(k, "G1_epi", "CODE_END", sW, 4, IDX_STD, vL, T + 2, T + 4, True)
    if l2w:
        dP2 = k.srd(pW2, WBYTES)
        k(f"v_and_b32 v{T}, 255, v0\nv_lshlrev_b32 v{T}, 7, v{T}\ns_bfe_u32 s{sT}, s2, 0x10002\ns_mul_i32 s{sYq}, s{sT}, {1792*2048}\ns_lshr_b32 s{sT}, s2, 3\ns_lshl_b32 s{sT}, s{sT}, 15\ns_add_u32 s{sYq}, s{sYq}, s{sT}")
        for j in range(l2w):
            k(f"buffer_load_dword v{T+1+j}, v{T}, {sr(dP2,4)}, s{sYq} offen\ns_add_u32 s{sYq}, s{sYq}, {1<<20}")
    k("s_barrier\ns_barrier")
    IN = k.v(56); E = k.v(32); P = k.v(28)
    for q in range(10): k(f"ds_read_b128 {vr(IN+4*q,4)}, v{vXa} offset:{1024*q}")
    for j in range(2):
        for h in range(2): k(f"ds_read_b128 {vr(IN+40+8*j+4*h,4)}, v{vXb} offset:{10240 + 1024*j + 2*14336*h}")
    k("s_waitcnt lgkmcnt(0)")
    dHs[0] = dH2
    finish([(sH, pr * 8192, 1024 * mt) for (mt, pr) in give] + [(sH6, 0, 0), (sH6, 0, 1024)], lambda u: list(range(IN + 8 * u, IN + 8 * u + 8)), sH)
    k("G1_end:\ns_endpgm")
    return k

def gen_g2(pfd=0, NB=4, out_flags="sc1", noload=False, nomfma=False, noread=False, noxchg=False):
    NS = 28; BUF = 32768
    k = Kern("g2_kernel", 256, 512, NB * BUF)
    pW = k.s(4); pO = k.s(2); pWS = k.s(2)
    k(f"s_cmp_ge_u32 s2, 256\ns_cbranch_scc1 G2_end")
    k.stamp(True)
    k(f"s_load_dwordx4 {sr(pW,4)}, s[0:1], 48")
    k(f"s_load_dwordx2 {sr(pO,2)}, s[0:1], 80")
    k(f"s_load_dwordx2 {sr(pWS,2)}, s[0:1], 96")
    vL, vI, vG, sW, T = lane_ids(k)
    sT = k.s(); sMt = k.s(); sNt = k.s(); sKh = k.s()
    k(f"s_and_b32 s{sMt}, s2, 3\ns_lshl_b32 s{sMt}, s{sMt}, 2\ns_bfe_u32 s{sT}, s2, 0x20003\ns_add_u32 s{sMt}, s{sMt}, s{sT}")
    k(f"s_lshr_b32 s{sNt}, s2, 5\ns_bfe_u32 s{sKh}, s2, 0x10002")
    vOff = k.v()
    k(f"v_lshlrev_b32 v{vOff}, 4, v{vL}")
    k(f"s_cmp_ge_u32 s{sW}, 4\ns_cbranch_scc1 G2_loader")
    m0 = k.mark()
    sWm = k.s(); sWn = k.s()
    k(f"s_and_b32 s{sWm}, s{sW}, 1\ns_lshr_b32 s{sWn}, s{sW}, 1")
    ACC = k.v(64); FR = [k.v(32), k.v(32)]
    def acc(t, ms): return ACC + (ms * 4 + t) * 4
    NH = (NB + 1) // 2
    vH = k.v(2 * NH); vWa = k.v(4 * NH)
    for sp in range(2):
        k(f"s_xor_b32 s{sT}, s{sKh}, {sp}\ns_lshl_b32 s{sT}, s{sT}, 11\nv_add_u32 v{vH+sp}, s{sT}, v{vOff}")
        k(f"s_lshl_b32 s{sT}, s{sWm}, 12\nv_add_u32 v{vH+sp}, s{sT}, v{vH+sp}")
        for hh in range(1, NH): k(f"v_add_u32 v{vH+2*hh+sp}, {65536*hh}, v{vH+sp}")
    k(f"v_lshrrev_b32 v{T}, 2, v{vI}\nv_lshl_add_u32 v{T}, v{vG}, 2, v{T}\nv_and_b32 v{T+1}, 7, v{T}\nv_lshlrev_b32 v{T}, 8, v{T}")
    k(f"v_and_b32 v{T+2}, 3, v{vI}\nv_lshl_add_u32 v{T}, v{T+2}, 3, v{T}\nv_add_u32 v{T}, 16384, v{T}")
    k(f"s_lshl_b32 s{sT}, s{sWn}, 2\nv_xor_b32 v{T+1}, s{sT}, v{T+1}")
    for t in range(4):
        k(f"v_xor_b32 v{T+2}, {t}, v{T+1}\nv_lshl_add_u32 v{vWa+t}, v{T+2}, 5, v{T}")
        for hh in range(1, NH): k(f"v_add_u32 v{vWa+4*hh+t}, {65536*hh}, v{vWa+t}")
    k("s_waitcnt lgkmcnt(0)")
    k.stamp_init2(5, pWS); k.stamp()
    vPf = k.v(); sPf = k.s(); vDum = k.v()
    dP = k.srd(pW, 3584 * 1024 * 2)
    if pfd:
        k(f"v_lshrrev_b32 v{T}, 5, v{vL}\nv_lshlrev_b32 v{T}, 17, v{T}\nv_bfe_u32 v{T+1}, v{vL}, 1, 4\nv_lshl_add_u32 v{T}, v{T+1}, 11, v{T}\nv_and_b32 v{T+1}, 1, v{vL}\nv_lshl_add_u32 v{vPf}, v{T+1}, 7, v{T}")
        k(f"s_mul_i32 s{sPf}, s{sKh}, {1792*2048}\ns_lshl_b32 s{sT}, s{sNt}, 8\ns_add_u32 s{sPf}, s{sPf}, s{sT}\ns_and_b32 s{sT}, s{sMt}, 3\ns_lshl_b32 s{sT}, s{sT}, 15\ns_add_u32 s{sPf}, s{sPf}, s{sT}")
        k(f"s_lshl_b32 s{sT}, s{sW}, 18\ns_add_u32 s{sPf}, s{sPf}, s{sT}")
    XP = k.v(16); GP = k.v(8); BP = k.v(8); vXo = k.v(); vOo = k.v(); vNo = k.v()
    sX = k.s(); sN = k.s(); sOo = k.s(); sR = k.s()
    dB = k.srd(pW + 2, 2048); dM = k.srd(pWS, 2048, WS_GB); dX1 = k.srd(pWS, 4 << 20, WS_X1); dO = k.srd(pO, 4 << 20)
    dPa = k.srd(pWS, 256 * 32768, WS_PART); dF = k.srd(pWS, 16384, WS_FLAG)
    k(f"v_and_b32 v{T}, 1, v{vG}\nv_lshlrev_b32 v{T}, 5, v{T}\nv_lshrrev_b32 v{T+1}, 1, v{vG}\nv_lshl_add_u32 v{vNo}, v{T+1}, 4, v{T}")
    k(f"v_lshl_add_u32 v{vXo}, v{vI}, 11, v{vNo}")
    k(f"v_and_b32 v{T}, 7, v{vI}\nv_lshlrev_b32 v{T}, 19, v{T}\nv_lshrrev_b32 v{T+1}, 3, v{vI}\nv_lshl_add_u32 v{T}, v{T+1}, 11, v{T}\nv_add_u32 v{vOo}, v{T}, v{vNo}")
    k(f"s_lshl_b32 s{sN}, s{sNt}, 8\ns_lshl_b32 s{sT}, s{sWn}, 7\ns_add_u32 s{sN}, s{sN}, s{sT}")
    k(f"s_lshl_b32 s{sR}, s{sMt}, 2\ns_lshl_b32 s{sT}, s{sWm}, 1\ns_add_u32 s{sR}, s{sR}, s{sT}\ns_add_u32 s{sR}, s{sR}, s{sKh}")
    k(f"s_lshl_b32 s{sX}, s{sR}, 16\ns_add_u32 s{sX}, s{sX}, s{sN}\ns_lshl_b32 s{sOo}, s{sR}, 13\ns_add_u32 s{sOo}, s{sOo}, s{sN}")
    sX2 = k.s(); sPs = k.s(); sPr = k.s(); sFs = k.s(); sFr = k.s()
    k(f"s_add_u32 s{sX2}, s{sX}, 32768")
    k(f"s_lshl_b32 s{sFs}, s2, 2\ns_add_u32 s{sFs}, s{sFs}, s{sW}\ns_xor_b32 s{sFr}, s{sFs}, 16")
    k(f"s_lshl_b32 s{sPs}, s{sFs}, 13\ns_lshl_b32 s{sPr}, s{sFr}, 13\ns_lshl_b32 s{sFs}, s{sFs}, 4\ns_lshl_b32 s{sFr}, s{sFr}, 4")
    epi = [f"buffer_load_dwordx4 {vr(XP+8*ms+4*P,4)}, v{vXo}, {sr(dX1,4)}, s{sX2 if ms else sX} offen offset:{64*P}" for ms in range(2) for P in range(2)]
    epi += [f"buffer_load_dwordx4 {vr(GP+4*P,4)}, v{vNo}, {sr(dM,4)}, s{sN} offen offset:{64*P}" for P in range(2)]
    epi += [f"buffer_load_dwordx4 {vr(BP+4*P,4)}, v{vNo}, {sr(dB,4)}, s{sN} offen offset:{64*P}" for P in range(2)]
    pfi = f"buffer_load_dword v{vDum}, v{vPf}, {sr(dP,4)}, s{sPf} offen\ns_add_u32 s{sPf}, s{sPf}, {4*262144}"
    if pfd: k(pfi)
    def reads(s, ks, F):
        b = s % NB; hh = b >> 1; o = (b & 1) * BUF
        hr = [f"ds_read_b128 {vr(F+16+4*ms,4)}, v{vH+2*hh+(ms>>1)} offset:{o + 8192*ks + 1024*(ms&1)}" for ms in range(4)]
        ww = []
        for t in range(4):
            for hf in range(2):
                ww.append(f"ds_read_b64_tr_b16 {vr(F+4*t+2*hf,2)}, v{vWa+4*hh+t} offset:{o + 8192*ks + 4096*hf}")
        return [] if noread else hr[:1] + ww + hr[1:]
    def mfmas(F, first):
        r = []
        for ms in range(4):
            for t in range(4):
                r.append(f"{MB} {vr(acc(t,ms),4)}, {vr(F+4*t,4)}, {vr(F+16+4*ms,4)}, {'0' if first else vr(acc(t,ms),4)}")
        return r[:2] if (nomfma and not first) else r
    k.stamp()
    k("s_barrier")
    k.stamp()
    if CLK: k.stampc()
    for l in reads(0, 0, FR[0]): k(l)
    for s in range(NS):
        k("s_waitcnt lgkmcnt(0)")
        fl = reads(s, 1, FR[1])
        if pfd and s in (1, 9, 17): fl = fl + [pfi]
        if s >= NS - 9 and epi: fl = fl + [epi.pop(0)]
        interleave(k, mfmas(FR[0], s == 0), fl)
        k("s_waitcnt lgkmcnt(0)")
        if s + 1 < NS:
            k("s_barrier")
            interleave(k, mfmas(FR[1], False), reads(s + 1, 0, FR[0]))
        else:
            mm = mfmas(FR[1], False)
            for l in mm[8:] + mm[:8]: k(l)
    k.stamp()
    if CLK: k.stampc()
    k("G2_epi:")
    sMask = k.s()
    k(f"s_mov_b32 s{sMask}, 0xffff0000")
    v4k = k.v()
    k(f"v_add_u32 v{v4k}, 4096, v{vOff}")
    if not noxchg:
        for q in range(8):
            k(f"buffer_store_dwordx4 {vr(ACC+32+4*q,4)}, v{v4k if q >= 4 else vOff}, {sr(dPa,4)}, s{sPs} offen offset:{1024*(q&3)} sc1")
    k("s_waitcnt vmcnt(8)" if not noxchg else "s_waitcnt vmcnt(0)")
    for base in (XP, XP + 4, XP + 8, XP + 12, GP, GP + 4, BP, BP + 4):
        k(f"v_permlane16_swap_b32 v{base}, v{base+2}\nv_permlane16_swap_b32 v{base+1}, v{base+3}")
    GB = FR[0]; B2 = FR[0] + 16; X = FR[1]
    unpack_bf16(k, GB, GP, 8, sMask); unpack_bf16(k, B2, BP, 8, sMask); unpack_bf16(k, X, XP, 16, sMask)
    for ms in range(2):
        for e in range(16): k(f"v_add_f32 v{ACC+16*ms+e}, v{ACC+16*ms+e}, v{B2+e}")
    if not noxchg:
        k(f"v_mov_b32 v{T}, 1\nv_mov_b32 v{T+1}, 0")
        k("s_waitcnt vmcnt(0)")
        k(f"buffer_store_dword v{T}, v{T+1}, {sr(dF,4)}, s{sFs} offen sc1")
        k.stamp()
        k("G2_poll:")
        k(f"buffer_load_dword v{T+2}, v{T+1}, {sr(dF,4)}, s{sFr} offen sc1")
        k("s_waitcnt vmcnt(0)")
        k(f"v_readfirstlane_b32 s{sT}, v{T+2}")
        k(f"s_cmp_eq_u32 s{sT}, 1\ns_cbranch_scc1 G2_got\ns_sleep 1\ns_branch G2_poll")
        k("G2_got:")
        k.stamp()
        for q in range(8):
            k(f"buffer_load_dwordx4 {vr(ACC+32+4*q,4)}, v{v4k if q >= 4 else vOff}, {sr(dPa,4)}, s{sPr} offen offset:{1024*(q&3)} sc1")
    for ms in range(2):
        if not noxchg:
            k(f"s_waitcnt vmcnt({4 if ms == 0 else 2})")
            for e in range(16): k(f"v_add_f32 v{ACC+16*ms+e}, v{ACC+16*ms+e}, v{ACC+32+16*ms+e}")
        for e in range(16): k(f"v_fma_f32 v{X+16*ms+e}, v{ACC+16*ms+e}, v{GB+e}, v{X+16*ms+e}")
        for e in range(8): k(f"v_cvt_pk_bf16_f32 v{XP+8*ms+e}, v{X+16*ms+2*e}, v{X+16*ms+2*e+1}")
        for P in range(2):
            b = XP + 8 * ms + 4 * P
            k(f"v_permlane16_swap_b32 v{b}, v{b+2}\nv_permlane16_swap_b32 v{b+1}, v{b+3}")
        if ms: k(f"s_add_u32 s{sOo}, s{sOo}, 4096")
        for P in range(2):
            k(f"buffer_store_dwordx4 {vr(XP+8*ms+4*P,4)}, v{vOo}, {sr(dO,4)}, s{sOo} offen offset:{64*P} {out_flags}")
    k.stamp()
    if k.prof: k("s_waitcnt vmcnt(0)")
    k.stamp_flush()
    k("s_endpgm")
    k.release(m0)
    k("G2_loader:")
    sLw = k.s(); sH = k.s(); sWo = k.s(); sA = k.s(); sM = k.s()
    k(f"s_sub_u32 s{sLw}, s{sW}, 4")
    vWo = k.v(2)
    for par in range(2):
        k(f"v_add_u32 v{T}, {4*par}, v{vG}\nv_lshlrev_b32 v{T}, 1, v{T}\nv_xor_b32 v{T}, v{T}, v{vI}\nv_lshlrev_b32 v{T}, 4, v{T}\nv_lshl_add_u32 v{vWo+par}, v{vG}, 11, v{T}")
    k(f"s_mul_i32 s{sH}, s{sMt}, {112*8192}\ns_mul_i32 s{sT}, s{sKh}, {56*8192}\ns_add_u32 s{sH}, s{sH}, s{sT}\ns_lshl_b32 s{sM}, s{sLw}, 12\ns_add_u32 s{sH}, s{sH}, s{sM}")
    k(f"s_mul_i32 s{sWo}, s{sKh}, {1792*2048}\ns_lshl_b32 s{sT}, s{sNt}, 8\ns_add_u32 s{sWo}, s{sWo}, s{sT}\ns_lshl_b32 s{sT}, s{sLw}, 15\ns_add_u32 s{sWo}, s{sWo}, s{sT}")
    k("s_waitcnt lgkmcnt(0)")
    dW = k.srd(pW, 3584 * 1024 * 2); dH = k.srd(pWS, 2048 * 3584 * 2, WS_H)
    def issue(s):
        b = s % NB
        if noload and s >= NB - 1: return
        for x in range(4):
            k(f"s_add_u32 m0, s{sM}, {b*BUF + 16384 + 1024*x}\ns_add_u32 s{sA}, s{sWo}, {131072*s + 8192*x}")
            k(f"buffer_load_dwordx4 v{vWo+(x&1)}, {sr(dW,4)}, s{sA} offen lds")
        k(f"s_add_u32 m0, s{sM}, {b*BUF}\ns_add_u32 s{sA}, s{sH}, {16384*s}")
        for x in range(4):
            k(f"buffer_load_dwordx4 v{vOff}, {sr(dH,4)}, s{sA} offen offset:{1024*x} lds")
    for s in range(NB - 1): issue(s)
    for s in range(NS):
        k(f"s_waitcnt vmcnt({8*min(NB-2, NS-1-s)})\ns_barrier")
        if s + NB - 1 < NS: issue(s + NB - 1)
        if s == 18: code_pf_w(k, "G2_epi", "G2_loader", sW, 4, IDX_STD, vL, T + 2, T + 4, True)
    k("G2_end:\ns_endpgm")
    return k
```

```python
from asmlib import *
import math

WS_MODP = 0x0
WS_GB = 0x18000
WS_WMAX = 0x44000
WS_SCAL = 0x19400
WS_TAC = 0x20000
WS_TAW = 0x24000
WS_TBC = 0x28000
WS_TCC = 0x2C000
WS_TCW = 0x30000
WS_SPC = 0x38000
WS_FLAG = 0x40000
WS_MODC = 0x48000
WS_TAS = 0x100000
WS_TCS = 0x200000
WS_ZA = 0x300000
WS_ZB = 0x800000
WS_WB = 0xD00000
WS_X1 = 0x1300000
WS_Y2 = 0x1700000
WS_H = 0x1B00000
WS_PART = 0x2A00000
NSLOT = 258
ZA_PITCH = 16640
ZA_BYTES = NSLOT * ZA_PITCH
ZB_PITCH = NSLOT * 64
ZB_BYTES = 256 * ZB_PITCH
W_BYTES = 2048 * 513 * 2
LOG2E = 1.4426950408889634
DPPM = "row_mask:0xf bank_mask:0xf"
MF = "v_mfma_f32_16x16x32_f16"
OOB = 0x7ffffff0

def wave_reduce(k, op, vs, sdst):
    ops = op if isinstance(op, (list, tuple)) else [op] * len(vs)
    for sh in (1, 2, 4, 8):
        for o, v in zip(ops, vs): k(f"{o}_dpp v{v}, v{v}, v{v} row_ror:{sh} {DPPM}")
    for o, v in zip(ops, vs): k(f"{o}_dpp v{v}, v{v}, v{v} row_bcast:15 row_mask:0xa bank_mask:0xf")
    for o, v in zip(ops, vs): k(f"{o}_dpp v{v}, v{v}, v{v} row_bcast:31 row_mask:0xc bank_mask:0xf")
    for v, s in zip(vs, sdst): k(f"v_readlane_b32 s{s}, v{v}, 63")

def with_fill(k, lines, fill, per=3):
    fill = list(fill)
    for l in lines:
        k(l)
        for _ in range(per):
            if fill: k(fill.pop(0))
    for l in fill: k(l)

def cap(fn):
    t = Kern("x", 0, 0, 0); fn(t); return list(t.lines)

def sincos(k, c, s, vint, n, tmp):
    k(f"v_cvt_f32_u32 v{tmp}, v{vint}")
    k(f"v_mul_f32 v{tmp}, {fbits(1.0/n)}, v{tmp}")
    k(f"v_cos_f32 v{c}, v{tmp}")
    k(f"v_sin_f32 v{s}, v{tmp}")

def round_bf16(k, v):
    k(f"v_cvt_pk_bf16_f32 v{v}, v{v}, v{v}")
    k(f"v_lshlrev_b32 v{v}, 16, v{v}")

def unpack_bf16(k, dst, src, n, smask):
    for i in range(n):
        k(f"v_lshlrev_b32 v{dst+2*i}, 16, v{src+i}")
        k(f"v_and_b32 v{dst+2*i+1}, s{smask}, v{src+i}")

def cmul_tw(k, re, im, c, s, conj, t):
    k(f"v_mul_f32 v{t}, v{re}, v{s}")
    k(f"v_mul_f32 v{re}, v{re}, v{c}")
    if not conj:
        k(f"v_fmac_f32 v{re}, v{im}, v{s}")
        k(f"v_fma_f32 v{im}, v{im}, v{c}, -v{t}")
    else:
        k(f"v_fma_f32 v{re}, -v{im}, v{s}, v{re}")
        k(f"v_fma_f32 v{im}, v{im}, v{c}, v{t}")

def lane_ids(k):
    vL = k.v(); vI = k.v(); vG = k.v(); sW = k.s(); T = k.v(8)
    k(f"v_lshrrev_b32 v{T}, 6, v0\nv_and_b32 v{vL}, 63, v0")
    k(f"v_readfirstlane_b32 s{sW}, v{T}")
    k(f"v_and_b32 v{vI}, 15, v{vL}\nv_lshrrev_b32 v{vG}, 4, v{vL}")
    return vL, vI, vG, sW, T

C_TB = 17 * 1024
C_TP = (512 + 4) * 4

def code_pf(k, start, end, sIdx, vL, vTmp, vDum, back=False):
    m = k.mark(); p = k.s(2); sv = k.s(2); sO = k.s()
    lab = f"CP{len(k.lines)}_{k.name}"
    k(f"s_getpc_b64 {sr(p,2)}\n{lab}:")
    k(f"s_add_u32 s{p}, s{p}, {start}-{lab}\ns_addc_u32 s{p+1}, s{p+1}, {-1 if back else 0}\ns_lshl_b32 s{sO}, s{sIdx}, 7")
    k(f"v_lshl_add_u32 v{vTmp}, v{vL}, 12, s{sO}")
    k(f"v_cmp_gt_u32 vcc, {end}-{start}, v{vTmp}")
    k(f"s_and_saveexec_b64 {sr(sv,2)}, vcc\ns_cbranch_execz {lab}e")
    k(f"v_mov_b32 v{vTmp+1}, s{p+1}\nv_add_co_u32 v{vTmp}, vcc, s{p}, v{vTmp}\nv_addc_co_u32 v{vTmp+1}, vcc, 0, v{vTmp+1}, vcc")
    k(f"global_load_dword v{vDum}, {vr(vTmp,2)}, off")
    k(f"{lab}e:\ns_mov_b64 exec, {sr(sv,2)}")
    k.release(m)

CODEPF = True
def code_pf_w(k, start, end, sWave, wave, idx_code, vL, vTmp, vDum, back=False):
    if not CODEPF: return
    m = k.mark(); sI = k.s()
    lab = f"CW{len(k.lines)}_{k.name}"
    k(f"s_cmp_lg_u32 s{sWave}, {wave}\ns_cbranch_scc1 {lab}")
    k(idx_code.format(sI))
    code_pf(k, start, end, sI, vL, vTmp, vDum, back)
    k(f"{lab}:")
    k.release(m)
IDX_STD = "s_lshr_b32 s{0}, s2, 3\ns_and_b32 s{0}, s{0}, 31"

def gemv_job(k, pC, pM, pWS, sStrip, sSplit, vL, sWave, T, endlabel):
    m = k.mark()
    sT = k.s(); sMask = k.s(); sO = k.s(); sCo = k.s()
    vR = k.v(); vOff = k.v(); vOffC = k.v()
    k(f"v_lshrrev_b32 v{vR}, 3, v0")
    k(f"v_mul_u32_u24 v{vOff}, 12288, v{vR}")
    k(f"v_and_b32 v{T}, 7, v0\nv_lshl_add_u32 v{vOff}, v{T}, 4, v{vOff}")
    k(f"v_lshlrev_b32 v{vOffC}, 1, v{vR}")
    k(f"s_mov_b32 s{sMask}, 0xffff0000")
    k(f"s_mul_i32 s{sO}, s{sSplit}, {256*12288}\ns_lshl_b32 s{sT}, s{sStrip}, 7\ns_add_u32 s{sO}, s{sO}, s{sT}\ns_lshl_b32 s{sCo}, s{sSplit}, 9")
    k("s_waitcnt lgkmcnt(0)")
    dM = k.srd(pM, 1024 * 6144 * 2); dC = k.srd(pC, 2048); dO = k.srd(pWS, 4 * 6144 * 4, WS_MODP)
    C = k.v(4); Wv = k.v(16); E = k.v(4); A = k.v(8)
    for i in range(4):
        k(f"buffer_load_ushort v{C+i}, v{vOffC}, {sr(dC,4)}, s{sCo} offen offset:{128*i}")
    for i in range(4):
        k(f"buffer_load_dwordx4 {vr(Wv+4*i,4)}, v{vOff}, {sr(dM,4)}, s{sO} offen nt")
        if i < 3: k(f"s_add_u32 s{sO}, s{sO}, {64*12288}")
    code_pf_w(k, "fa_kernel", "CODE_END", sWave, 7, IDX_STD, vL, T + 2, T + 4)
    vA = k.v()
    k(f"v_and_b32 v{T}, 7, v{vL}\nv_lshlrev_b32 v{T}, 5, v{T}\nv_lshrrev_b32 v{T+1}, 4, v{vL}\nv_lshl_add_u32 v{T}, v{T+1}, 2, v{T}")
    k(f"s_lshl_b32 s{sT}, s{sWave}, 8\nv_add_u32 v{vA}, s{sT}, v{T}")
    k("s_waitcnt vmcnt(4)")
    for i in range(4): k(f"v_lshlrev_b32 v{C+i}, 16, v{C+i}\nv_mul_f32 v{E+i}, {fbits(-LOG2E)}, v{C+i}")
    for i in range(4): k(f"v_exp_f32 v{E+i}, v{E+i}")
    for i in range(4): k(f"v_add_f32 v{E+i}, 1.0, v{E+i}")
    for i in range(4): k(f"v_rcp_f32 v{E+i}, v{E+i}")
    for i in range(4): k(f"v_mul_f32 v{C+i}, v{C+i}, v{E+i}")
    for i in range(4): round_bf16(k, C + i)
    for i in range(4):
        k(f"s_waitcnt vmcnt({3-i})")
        for q in range(4):
            k(f"v_lshlrev_b32 v{T}, 16, v{Wv+4*i+q}\nv_and_b32 v{T+1}, s{sMask}, v{Wv+4*i+q}")
            if i == 0: k(f"v_mul_f32 v{A+2*q}, v{C}, v{T}\nv_mul_f32 v{A+2*q+1}, v{C}, v{T+1}")
            else: k(f"v_fmac_f32 v{A+2*q}, v{C+i}, v{T}\nv_fmac_f32 v{A+2*q+1}, v{C+i}, v{T+1}")
    for q in range(4): k(f"v_permlane16_swap_b32 v{A+2*q}, v{A+2*q+1}")
    for q in range(4): k(f"v_add_f32 v{A+2*q}, v{A+2*q}, v{A+2*q+1}")
    k(f"v_permlane32_swap_b32 v{A}, v{A+2}\nv_permlane32_swap_b32 v{A+4}, v{A+6}")
    k(f"v_add_f32 v{A}, v{A}, v{A+2}\nv_add_f32 v{A+4}, v{A+4}, v{A+6}")
    k(f"v_add_f32_dpp v{A}, v{A}, v{A} row_ror:8 {DPPM}\nv_add_f32_dpp v{A+4}, v{A+4}, v{A+4} row_ror:8 {DPPM}")
    k(f"ds_write2_b32 v{vA}, v{A}, v{A+4} offset0:0 offset1:4")
    k("s_waitcnt lgkmcnt(0)\ns_barrier")
    k(f"s_cmp_lg_u32 s{sWave}, 0\ns_cbranch_scc1 {endlabel}")
    k(f"v_lshlrev_b32 v{T}, 2, v{vL}")
    for i in range(4): k(f"ds_read2st64_b32 {vr(A+2*i,2)}, v{T} offset0:{2*i} offset1:{2*i+1}")
    k(f"s_mul_i32 s{sO}, s{sSplit}, {6144*4}\ns_lshl_b32 s{sT}, s{sStrip}, 8\ns_add_u32 s{sO}, s{sO}, s{sT}")
    k("s_waitcnt lgkmcnt(0)")
    for i in range(4): k(f"v_add_f32 v{A+2*i}, v{A+2*i}, v{A+2*i+1}")
    k(f"v_add_f32 v{A}, v{A}, v{A+2}\nv_add_f32 v{A+4}, v{A+4}, v{A+6}\nv_add_f32 v{A}, v{A}, v{A+4}")
    k(f"buffer_store_dword v{A}, v{T}, {sr(dO,4)}, s{sO} offen")
    k.stamp_flush()
    k("s_endpgm")
    k.release(m)

def tab_a_common(k, vI, vG, T, R, part):
    def f1(ct, ks, ri): return R + ((ct * 2 + ks) * 2 + ri) * 4
    sg = 1 / math.sqrt(32)
    for ct in range(2):
        if part != ct: continue
        for ks in range(2):
            for e in range(4):
                k(f"v_add_u32 v{T}, {16*ks+4*e}, v{vG}\nv_add_u32 v{T+1}, {16*ct}, v{vI}")
                k(f"v_mul_u32_u24 v{T}, v{T}, v{T+1}\nv_and_b32 v{T}, 31, v{T}")
                sincos(k, T + 1, T + 2, T, 32, T + 3)
                k(f"v_mul_f32 v{T+1}, {fbits(sg)}, v{T+1}\nv_mul_f32 v{T+2}, {fbits(sg)}, v{T+2}")
                k(f"v_cvt_pk_f16_f32 v{f1(ct,ks,0)+e}, v{T+1}, v{T+2}\nv_cvt_pk_f16_f32 v{f1(ct,ks,1)+e}, -v{T+2}, v{T+1}")
        return (4 * ct, 4)
    for ct in range(2):
        for v in range(4):
            k(f"v_lshl_add_u32 v{T}, v{vG}, 2, {v}\nv_add_u32 v{T+1}, {16*ct}, v{vI}\nv_mul_u32_u24 v{T}, v{T}, v{T+1}")
            sincos(k, R + 32 + 4 * ct + v, R + 40 + 4 * ct + v, T, 512, T + 3)
    for v in range(4):
        k(f"v_lshl_add_u32 v{T}, v{vG}, 2, {v}\nv_mul_u32_u24 v{T}, v{T}, v{vI}\nv_and_b32 v{T}, 15, v{T}")
        sincos(k, T + 1, T + 2, T, 16, T + 3)
        k(f"v_mul_f32 v{T+1}, {fbits(0.25)}, v{T+1}\nv_mul_f32 v{T+2}, {fbits(0.25)}, v{T+2}")
        k(f"v_cvt_pk_f16_f32 v{R+48+v}, v{T+1}, v{T+2}\nv_cvt_pk_f16_f32 v{R+52+v}, -v{T+2}, v{T+1}")
    return (8, 6)

def tab_a_wave(k, vI, vG, T, R, sJ, sT):
    vRho = T + 7
    k(f"v_and_b32 v{vRho}, 7, v{vI}")
    for q in range(2):
        for x in range(2):
            d = R + 2 * q + x
            k(f"v_lshrrev_b32 v{T}, 1, v{vG}\nv_lshl_add_u32 v{T}, v{T}, 4, v{vI}")
            k(f"s_lshl_b32 s{sT}, s{sJ}, 6\ns_add_u32 s{sT}, s{sT}, {32*q}\nv_add_u32 v{T}, s{sT}, v{T}")
            if x: k(f"v_sub_u32 v{T}, 512, v{T}\nv_and_b32 v{T}, 511, v{T}")
            k(f"v_lshrrev_b32 v{T+1}, 3, v{T}\nv_and_b32 v{T+1}, 28, v{T+1}\nv_xor_b32 v{T}, v{T}, v{T+1}")
            k(f"v_and_b32 v{T+1}, 1, v{vG}\nv_mul_u32_u24 v{T+1}, {4*2048+64}, v{T+1}")
            k(f"v_lshl_add_u32 v{d}, v{T}, 2, v{T+1}")
    for q in range(2):
        for ins in range(2):
            k(f"v_lshrrev_b32 v{T}, 3, v{vI}\nv_lshlrev_b32 v{T}, 1, v{T}")
            k(f"s_lshl_b32 s{sT}, s{sJ}, 3\ns_add_u32 s{sT}, s{sT}, {4*q+ins}\nv_add_u32 v{T}, s{sT}, v{T}")
            k(f"v_lshlrev_b32 v{T+1}, 6, v{vRho}\nv_subrev_u32 v{T+1}, 31, v{T+1}\nv_max_i32 v{T+1}, 0, v{T+1}")
            k(f"v_add_u32 v{T+1}, v{T+1}, v{T}\nv_mul_u32_u24 v{T+1}, {ZA_PITCH}, v{T+1}")
            k(f"v_and_b32 v{T+2}, 1, v{vG}\nv_lshl_add_u32 v{T+1}, v{T+2}, 5, v{T+1}")
            k(f"v_lshrrev_b32 v{T+2}, 1, v{vG}\nv_lshl_add_u32 v{T+1}, v{T+2}, 4, v{T+1}")
            k(f"v_and_b32 v{T+2}, 3, v{vRho}\nv_cmp_eq_u32 vcc, 0, v{T+2}\nv_mov_b32 v{T+3}, 64\nv_cndmask_b32 v{T+3}, v{T+3}, 33, vcc")
            k(f"v_cmp_lt_u32 vcc, 4, v{vRho}\nv_cndmask_b32 v{T+3}, v{T+3}, 0, vcc")
            k(f"v_cmp_lt_u32 vcc, v{T}, v{T+3}\nv_mov_b32 v{T+2}, {OOB}\nv_cndmask_b32 v{R+4+2*q+ins}, v{T+2}, v{T+1}, vcc")
    return 2

def tab_a_s0(k, vI, vG, T, R, sS0):
    s8 = 1 / math.sqrt(8)
    vSc = T + 6; vRho = T + 7
    k(f"v_lshrrev_b32 v{T}, 3, v{vI}\nv_lshrrev_b32 v{T+1}, 1, v{vG}\nv_cmp_eq_u32 vcc, v{T}, v{T+1}")
    k(f"v_mov_b32 v{T+2}, {fbits(s8)}\nv_cndmask_b32 v{vSc}, 0, v{T+2}, vcc\nv_and_b32 v{vRho}, 7, v{vI}")
    for e in range(4):
        k(f"v_and_b32 v{T}, 1, v{vG}\nv_lshl_add_u32 v{T}, v{T}, 2, {e}\nv_lshl_add_u32 v{T}, v{T}, 8, s{sS0}")
        k(f"v_mul_u32_u24 v{T}, v{T}, v{vRho}\nv_and_b32 v{T}, 0x7ff, v{T}")
        sincos(k, T + 1, T + 2, T, 2048, T + 3)
        k(f"v_mul_f32 v{T+1}, v{vSc}, v{T+1}\nv_mul_f32 v{T+2}, v{vSc}, v{T+2}")
        k(f"v_cvt_pk_f16_f32 v{R+e}, v{T+1}, v{T+2}\nv_cvt_pk_f16_f32 v{R+4+e}, -v{T+2}, v{T+1}")
        k(f"v_cvt_pk_f16_f32 v{R+8+e}, v{T+1}, -v{T+2}\nv_cvt_pk_f16_f32 v{R+12+e}, -v{T+2}, -v{T+1}")
    return 4

def tab_b_common(k, vI, vG, T, R):
    for v in range(4):
        k(f"v_lshl_add_u32 v{T}, v{vG}, 2, {v}\nv_mul_u32_u24 v{T}, v{T}, v{vI}")
        sincos(k, R + v, R + 4 + v, T, 256, T + 3)
        k(f"v_and_b32 v{T}, 15, v{T}")
        sincos(k, R + 24 + v, R + 28 + v, T, 16, T + 3)
        k(f"v_mul_f32 v{T+1}, {fbits(0.25)}, v{R+24+v}\nv_mul_f32 v{T+2}, {fbits(0.25)}, v{R+28+v}")
        k(f"v_cvt_pk_f16_f32 v{R+8+v}, v{T+1}, v{T+2}\nv_cvt_pk_f16_f32 v{R+12+v}, -v{T+2}, v{T+1}")
        k(f"v_cvt_pk_f16_f32 v{R+16+v}, v{T+1}, -v{T+2}\nv_cvt_pk_f16_f32 v{R+20+v}, v{T+2}, v{T+1}")
    return 8

def tab_c_common(k, vI, vG, T, R, part):
    for e in range(4 if part == 2 else 0):
        k(f"v_add_u32 v{T}, {4*e}, v{vG}\nv_mul_u32_u24 v{T}, v{T}, v{vI}\nv_and_b32 v{T}, 15, v{T}")
        sincos(k, T + 1, T + 2, T, 16, T + 3)
        k(f"v_mul_f32 v{T+1}, {fbits(0.25)}, v{T+1}\nv_mul_f32 v{T+2}, {fbits(0.25)}, v{T+2}")
        k(f"v_cvt_pk_f16_f32 v{R+e}, v{T+1}, -v{T+2}\nv_cvt_pk_f16_f32 v{R+4+e}, v{T+2}, v{T+1}")
    for rt in range(2 if part == 2 else 0):
        for v in range(4):
            k(f"v_lshl_add_u32 v{T}, v{vG}, 2, {16*rt+v}\nv_mul_u32_u24 v{T}, v{T}, v{vI}")
            sincos(k, R + 8 + 4 * rt + v, R + 16 + 4 * rt + v, T, 512, T + 3)
    if part == 2: return (0, 6)
    sg = 1 / math.sqrt(32)
    for ct in (part,):
        for rt in range(2):
            for v in range(4):
                k(f"v_lshl_add_u32 v{T}, v{vG}, 2, {16*rt+v}\nv_add_u32 v{T+1}, {16*ct}, v{vI}\nv_mul_u32_u24 v{T}, v{T}, v{T+1}\nv_and_b32 v{T}, 31, v{T}")
                sincos(k, T + 1, T + 2, T, 32, T + 3)
                k(f"v_mul_f32 v{T+1}, {fbits(sg)}, v{T+1}\nv_mul_f32 v{T+2}, {fbits(sg)}, v{T+2}")
                b = R + 24 + ((ct * 2 + rt) * 2) * 4
                k(f"v_cvt_pk_f16_f32 v{b+v}, v{T+1}, -v{T+2}\nv_cvt_pk_f16_f32 v{b+4+v}, v{T+2}, v{T+1}")
    return (6 + 4 * part, 4)

def tab_c_wave(k, vI, vG, T, R, sJ, sT):
    sO = k.s()
    vY = T + 6; vHf = T + 7
    k(f"v_lshrrev_b32 v{vY}, 1, v{vG}\nv_and_b32 v{vHf}, 1, v{vG}")
    for q in range(2):
        k(f"s_lshl_b32 s{sT}, s{sJ}, 5\ns_add_u32 s{sT}, s{sT}, {16*q}")
        k(f"v_lshl_add_u32 v{T}, v{vY}, 8, v{vI}\nv_add_u32 v{T}, s{sT}, v{T}")
        k(f"v_sub_u32 v{T+1}, 512, v{T}\nv_and_b32 v{T+1}, 511, v{T+1}")
        k(f"v_lshlrev_b32 v{T}, 3, v{T}\nv_lshl_add_u32 v{T+1}, v{T+1}, 3, 4")
        for e in range(4):
            if e < 3: k(f"v_xor_b32 v{T+4}, v{vY}, v{vHf}")
            else: k(f"v_mov_b32 v{T+4}, v{vY}")
            k(f"v_cmp_eq_u32 vcc, 0, v{T+4}")
            k(f"v_add_u32 v{T+2}, {e}, v{vHf}\nv_lshlrev_b32 v{T+2}, 6, v{T+2}\nv_subrev_u32 v{T+2}, 31, v{T+2}\nv_max_i32 v{T+2}, 0, v{T+2}")
            k(f"v_cndmask_b32 v{T+3}, v{T+1}, v{T}, vcc")
            k(f"v_lshl_add_u32 v{R+4*q+e}, v{T+2}, 6, v{T+3}")
    for q in range(2):
        k(f"s_and_b32 s{sT}, s{sJ}, 1\ns_xor_b32 s{sT}, s{sT}, {q}\ns_lshl_b32 s{sT}, s{sT}, 6")
        k(f"s_lshl_b32 s{sO}, s{sJ}, 7\ns_add_u32 s{sT}, s{sT}, s{sO}\ns_add_u32 s{sT}, s{sT}, {C_TB}")
        k(f"v_and_b32 v{T}, 7, v{vI}\nv_mul_u32_u24 v{T}, {C_TP}, v{T}")
        k(f"v_lshrrev_b32 v{T+1}, 3, v{vI}\nv_lshl_add_u32 v{T}, v{T+1}, 10, v{T}\nv_lshl_add_u32 v{T}, v{vG}, 4, v{T}")
        k(f"v_add_u32 v{R+8+q}, s{sT}, v{T}")
    k(f"s_mul_i32 s{sT}, s{sJ}, {C_TP}\ns_add_u32 s{sT}, s{sT}, {C_TB}")
    for rt in range(2):
        k(f"v_xor_b32 v{T}, {rt}, v{vHf}\nv_lshl_add_u32 v{T}, v{T}, 4, v{vI}\nv_lshl_add_u32 v{T}, v{vG}, 5, v{T}")
        k(f"v_lshl_add_u32 v{R+10+rt}, v{T}, 2, s{sT}")
    return 3

def tab_c_s0(k, vI, vG, T, R, sS0, sSign):
    s8 = 1 / math.sqrt(8)
    vY = T + 6; vHf = T + 7; vSc = R + 8; vS = R + 9
    k(f"v_lshrrev_b32 v{vY}, 1, v{vG}\nv_and_b32 v{vHf}, 1, v{vG}")
    k(f"v_lshrrev_b32 v{T}, 3, v{vI}\nv_cmp_eq_u32 vcc, v{T}, v{vY}\nv_mov_b32 v{T+2}, {fbits(s8)}\nv_cndmask_b32 v{vSc}, 0, v{T+2}, vcc")
    k(f"v_and_b32 v{vS}, 7, v{vI}\nv_lshl_add_u32 v{vS}, v{vS}, 8, s{sS0}")
    for e in range(4):
        k(f"v_add_u32 v{T+4}, {e}, v{vHf}")
        if e < 3: k(f"v_xor_b32 v{T+5}, v{vY}, v{vHf}")
        else: k(f"v_mov_b32 v{T+5}, v{vY}")
        k(f"v_mul_u32_u24 v{T}, v{vS}, v{T+4}\nv_and_b32 v{T}, 0x7ff, v{T}")
        sincos(k, T + 1, T + 2, T, 2048, T + 3)
        k(f"v_mul_f32 v{T+1}, v{vSc}, v{T+1}\nv_mul_f32 v{T+2}, v{vSc}, v{T+2}")
        k(f"v_cvt_pk_f16_f32 v{R+e}, v{T+1}, -v{T+2}\nv_cvt_pk_f16_f32 v{R+4+e}, v{T+2}, v{T+1}")
        k(f"v_mul_lo_u32 v{T}, v{T+5}, s{sSign}\nv_xor_b32 v{R+4+e}, v{T}, v{R+4+e}")
    return 2

WB_RHO = 65 * 16384
def w_job(k, pW, pWS, first, vL, sWave, T, endlabel):
    m00 = k.mark()
    if k.prof: k._st = k._st[:1]; k._stidx = 6
    k(f"s_cmp_ge_u32 s{sWave}, 5\ns_cbranch_scc1 {endlabel}")
    sA = k.s(); sB = k.s(); sT = k.s()
    sJob = k.s(); sRho = k.s(); sWh = k.s(); sK1 = k.s(); sRow = k.s(); sStep = k.s(); sMis = k.s(); sDs = k.s()
    k(f"s_sub_u32 s{sJob}, s2, {first}\ns_lshr_b32 s{sRho}, s{sJob}, 5\ns_bfe_u32 s{sWh}, s{sJob}, 0x10004\ns_and_b32 s{sK1}, s{sJob}, 15")
    k(f"s_lshl_b32 s{sRow}, s{sK1}, 3\ns_add_u32 s{sRow}, s{sRow}, s{sRho}")
    k(f"s_sub_u32 s{sT}, 2048, s{sRow}\ns_cmp_eq_u32 s{sWh}, 1\ns_cselect_b32 s{sRow}, s{sT}, s{sRow}\ns_movk_i32 s{sStep}, 128\ns_cselect_b32 s{sStep}, -128, s{sStep}")
    k(f"s_and_b32 s{sMis}, s{sRow}, 7")
    vSt = k.v(8); vOf = k.v(4)
    k(f"v_lshrrev_b32 v{T+2}, 2, v0\nv_and_b32 v{T+3}, 3, v0")
    k(f"v_cmp_gt_u32 vcc, 66, v{T+2}\nv_mov_b32 v{T}, {OOB-0x1000000}\nv_lshlrev_b32 v{T+4}, 4, v{T+2}\nv_cndmask_b32 v{T+4}, v{T}, v{T+4}, vcc")
    for r in range(4):
        k(f"v_lshl_add_u32 v{T+1}, v{T+3}, 2, {r}\nv_mul_i32_i24 v{T+1}, s{sStep}, v{T+1}\nv_add_u32 v{T+1}, s{sRow}, v{T+1}\nv_and_b32 v{T+1}, 2047, v{T+1}")
        k(f"v_mul_u32_u24 v{T+1}, 1026, v{T+1}\nv_and_b32 v{T+1}, -16, v{T+1}\nv_add_u32 v{vOf+r}, v{T+1}, v{T+4}")
    k("s_waitcnt lgkmcnt(0)")
    k.stamp()
    dR = k.srd(pW, W_BYTES); dI = k.srd(pW + 2, W_BYTES)
    RR = k.v(16); RI = k.v(16); P = k.v(32)
    for r in range(4):
        k(f"buffer_load_dwordx4 {vr(RR+4*r,4)}, v{vOf+r}, {sr(dR,4)}, 0 offen nt")
        k(f"buffer_load_dwordx4 {vr(RI+4*r,4)}, v{vOf+r}, {sr(dI,4)}, 0 offen nt")
    k(f"s_lshl_b32 s{sDs}, s{sStep}, 4")
    k(f"v_lshlrev_b32 v{T+1}, 3, v{T+2}\nv_subrev_u32 v{T+1}, s{sMis}, v{T+1}\nv_mul_lo_u32 v{T+1}, v{T+1}, s{sDs}")
    k(f"s_lshl_b32 s{sT}, s{sWh}, 20\nv_add_u32 v{T+1}, s{sT}, v{T+1}\nv_lshl_add_u32 v{vSt}, v{T+3}, 4, v{T+1}")
    for j in range(1, 8): k(f"v_add_u32 v{vSt+j}, s{sDs}, v{vSt+j-1}")
    dB = k.s(4)
    k(f"s_mul_i32 s{sA}, s{sRho}, {WB_RHO}\ns_add_u32 s{sA}, s{sA}, {WS_WB}\ns_add_u32 s{dB}, s{pWS}, s{sA}\ns_addc_u32 s{dB+1}, s{pWS+1}, 0\ns_mov_b32 s{dB+2}, {513*2048}\ns_mov_b32 s{dB+3}, 0x20000")
    dMx = k.srd(pWS, 640, WS_WMAX)
    k(f"s_lshl_b32 s{sA}, s{sWh}, 10\ns_lshl_b32 s{sB}, s{sK1}, 6\ns_add_u32 s{sA}, s{sA}, s{sB}")
    sM7 = k.s(); vMx = k.v(); sP0 = k.s(); sP1 = k.s()
    k(f"s_mov_b32 s{sM7}, 0x7fff7fff\ns_mov_b32 s{sP0}, 0x05040100\ns_mov_b32 s{sP1}, 0x07060302")
    k.stamp()
    k("s_waitcnt vmcnt(0)")
    k.stamp()
    for j in range(8):
        for r in range(4):
            k(f"v_perm_b32 v{P+4*j+r}, v{RI+4*r+(j>>1)}, v{RR+4*r+(j>>1)}, s{sP1 if j & 1 else sP0}")
        k(f"buffer_store_dwordx4 {vr(P+4*j,4)}, v{vSt+j}, {sr(dB,4)}, s{sA} offen sc1")
    k.stamp()
    k(f"v_and_b32 v{vMx}, s{sM7}, v{RR}")
    for r in range(1, 32):
        k(f"v_and_b32 v{RR+r}, s{sM7}, v{RR+r}\nv_pk_max_u16 v{vMx}, v{vMx}, v{RR+r}")
    k(f"v_lshrrev_b32 v{T}, 16, v{vMx}\nv_and_b32 v{vMx}, 0xffff, v{vMx}\nv_max_u32 v{vMx}, v{vMx}, v{T}")
    wave_reduce(k, "v_max_u32", [vMx], [sA])
    k(f"s_lshl_b32 s{sT}, s{sWave}, 2\nv_mov_b32 v{T}, s{sT}\nv_mov_b32 v{vMx}, s{sA}\nds_write_b32 v{T}, v{vMx}")
    if k.prof: k("s_waitcnt vmcnt(0)")
    k.stamp_flush()
    k("s_waitcnt lgkmcnt(0)\ns_barrier")
    k(f"s_cmp_lg_u32 s{sWave}, 0\ns_cbranch_scc1 {endlabel}")
    k(f"v_mov_b32 v{T}, 0\nds_read_b128 {vr(RR,4)}, v{T}\nds_read_b32 v{RR+4}, v{T} offset:16\ns_lshl_b32 s{sT}, s{sJob}, 2\ns_waitcnt lgkmcnt(0)")
    k(f"v_max3_u32 v{RR}, v{RR}, v{RR+1}, v{RR+2}\nv_max3_u32 v{RR}, v{RR}, v{RR+3}, v{RR+4}")
    k(f"buffer_store_dword v{RR}, v{T}, {sr(dMx,4)}, s{sT} offen")
    k("s_endpgm")
    k.release(m00)

NSCAN = 129
def scan_job(k, pW, pWS, first, vL, sWave, T, endlabel):
    m00 = k.mark()
    sT = k.s(); sO = k.s(); sM7 = k.s(); sA = k.s(); sJob = k.s()
    k(f"s_sub_u32 s{sJob}, s2, {first}\ns_lshl_b32 s{sO}, s{sJob}, 14\nv_lshlrev_b32 v{T}, 4, v0\nv_add_u32 v{T+1}, 8192, v{T}\ns_mov_b32 s{sM7}, 0x7fff7fff")
    k("s_waitcnt lgkmcnt(0)")
    dR = k.srd(pW, W_BYTES); dI = k.srd(pW + 2, W_BYTES); dMx = k.srd(pWS, 640, WS_WMAX)
    X = k.v(16)
    for h in range(2):
        k(f"buffer_load_dwordx4 {vr(X+8*h,4)}, v{T+h}, {sr(dR,4)}, s{sO} offen\nbuffer_load_dwordx4 {vr(X+8*h+4,4)}, v{T+h}, {sr(dI,4)}, s{sO} offen")
    k("s_waitcnt vmcnt(0)")
    for i in range(16): k(f"v_and_b32 v{X+i}, s{sM7}, v{X+i}")
    for n in (8, 4, 2, 1):
        for i in range(n): k(f"v_pk_max_u16 v{X+i}, v{X+i}, v{X+n+i}")
    k(f"v_lshrrev_b32 v{T}, 16, v{X}\nv_and_b32 v{X}, 0xffff, v{X}\nv_max_u32 v{X}, v{X}, v{T}")
    wave_reduce(k, "v_max_u32", [X], [sA])
    k(f"s_lshl_b32 s{sT}, s{sWave}, 2\nv_mov_b32 v{T}, s{sT}\nv_mov_b32 v{X}, s{sA}\nds_write_b32 v{T}, v{X}")
    k("s_waitcnt lgkmcnt(0)\ns_barrier")
    k(f"s_cmp_lg_u32 s{sWave}, 0\ns_cbranch_scc1 {endlabel}")
    k(f"v_mov_b32 v{T}, 0\nds_read_b128 {vr(X,4)}, v{T}\nds_read_b128 {vr(X+4,4)}, v{T} offset:16\ns_lshl_b32 s{sT}, s{sJob}, 2\ns_waitcnt lgkmcnt(0)")
    k(f"v_max3_u32 v{X}, v{X}, v{X+1}, v{X+2}\nv_max3_u32 v{X+4}, v{X+4}, v{X+5}, v{X+6}\nv_max3_u32 v{X}, v{X}, v{X+3}, v{X+7}\nv_max_u32 v{X}, v{X}, v{X+4}")
    k(f"buffer_store_dword v{X}, v{T}, {sr(dMx,4)}, s{sT} offen")
    k("s_endpgm")
    k.release(m00)

K0_NG = 384; K0_NW = 0; K0_NS = 32
def gen_k0():
    G0 = 10
    G2 = G0; G1 = G0 + K0_NS; G3 = G1 + K0_NG
    k = Kern("k0_kernel", G3, 512, 2048)
    pCW = k.s(4); pW = k.s(4); pWS = k.s(2)
    k(f"s_cmp_ge_u32 s2, {G3}\ns_cbranch_scc1 K0_end")
    k.stamp(True)
    k(f"s_load_dwordx4 {sr(pCW,4)}, s[0:1], 64")
    k(f"s_load_dwordx2 {sr(pWS,2)}, s[0:1], 96")
    k.stamp_init2(0, pWS)
    vL, vI, vG, sWave, T = lane_ids(k)
    sA = k.s(); sB = k.s(); sT = k.s()
    k(f"s_cmp_lt_u32 s2, {G0}\ns_cbranch_scc1 K0_tab")
    k(f"s_cmp_lt_u32 s2, {G1}\ns_cbranch_scc1 K0_s0")
    k(f"s_sub_u32 s{sT}, s2, {G1}\ns_lshr_b32 s{sA}, s{sT}, 2\ns_and_b32 s{sB}, s{sT}, 3")
    gemv_job(k, pCW, pCW + 2, pWS, sA, sB, vL, sWave, T, "K0_end")
    R = k.v(56); vOff = k.v(); sO = k.s(); sSign = k.s()
    def store(nq, base_off, soff=None, R0=R):
        d = k.srd(pWS, 0x100000, base_off)
        for q in range(nq):
            if q % 4 == 0 and q: k(f"v_add_u32 v{vOff}, 4096, v{vOff}")
            k(f"buffer_store_dwordx4 {vr(R0+4*q,4)}, v{vOff}, {sr(d,4)}, {'s%d' % soff if soff is not None else 0} offen offset:{1024*(q%4)}")
    k("K0_s0:")
    m = k.mark()
    sS0 = k.s()
    k(f"s_sub_u32 s{sS0}, s2, {G2}\ns_lshl_b32 s{sS0}, s{sS0}, 3\ns_add_u32 s{sS0}, s{sS0}, s{sWave}\ns_mov_b32 s{sSign}, 0x80008000")
    k(f"v_lshlrev_b32 v{vOff}, 4, v{vL}")
    tab_a_s0(k, vI, vG, T, R, sS0)
    k(f"s_lshl_b32 s{sO}, s{sS0}, 12\ns_waitcnt lgkmcnt(0)")
    store(4, WS_TAS, sO)
    tab_c_s0(k, vI, vG, T, R + 16, sS0, sSign)
    k(f"s_lshl_b32 s{sO}, s{sS0}, 11")
    store(2, WS_TCS, sO, R + 16)
    k("s_endpgm")
    k.release(m)
    k("K0_tab:")
    k(f"v_lshlrev_b32 v{vOff}, 4, v{vL}\ns_waitcnt lgkmcnt(0)")
    k(f"s_cmp_eq_u32 s2, 0\ns_cbranch_scc1 K0_tw_a\ns_cmp_eq_u32 s2, 1\ns_cbranch_scc1 K0_tw_c")
    k(f"s_cmp_lg_u32 s{sWave}, 0\ns_cbranch_scc1 K0_end")
    for j in range(3, G0): k(f"s_cmp_eq_u32 s2, {j}\ns_cbranch_scc1 K0_t{j}")
    m = k.mark()
    for i in range(4): k(f"v_mov_b32 v{R+i}, 0")
    d = k.srd(pWS, 0x10000, WS_FLAG)
    for q in range(17):
        if q % 4 == 0 and q: k(f"v_add_u32 v{vOff}, 4096, v{vOff}")
        k(f"buffer_store_dwordx4 {vr(R,4)}, v{vOff}, {sr(d,4)}, 0 offen offset:{1024*(q%4)}")
    k("s_endpgm"); k.release(m)
    for part in range(3):
        k(f"K0_t{3+part}:"); q0, n = tab_a_common(k, vI, vG, T, R, part); store(n, WS_TAC + 1024 * q0, None, R + 4 * q0); k("s_endpgm"); k.release(m)
        k(f"K0_t{6+part}:"); q0, n = tab_c_common(k, vI, vG, T, R, part); store(n, WS_TCC + 1024 * q0, None, R + 4 * q0); k("s_endpgm"); k.release(m)
    k("K0_t9:"); store(tab_b_common(k, vI, vG, T, R), WS_TBC); k("s_endpgm"); k.release(m)
    k("K0_tw_a:")
    n = tab_a_wave(k, vI, vG, T, R, sWave, sT); k(f"s_lshl_b32 s{sO}, s{sWave}, 11"); store(n, WS_TAW, sO); k("s_endpgm"); k.release(m)
    k("K0_tw_c:")
    n = tab_c_wave(k, vI, vG, T, R, sWave, sT); k(f"s_mul_i32 s{sO}, s{sWave}, 3072"); store(n, WS_TCW, sO); k.release(m)
    k("K0_end:\ns_endpgm")
    return k


WBYTES = 1024 * 3584 * 2
def pf_mall(k, pP, first, n, sId, sWave, vDum, T):
    if n == 0: return
    m = k.mark(); sO = k.s()
    lab = f"PF{len(k.lines)}_{k.name}"
    nw = (n + 63) // 64
    if nw < 8: k(f"s_cmp_ge_u32 s{sWave}, {nw}\ns_cbranch_scc1 {lab}")
    k(f"v_lshlrev_b32 v{T}, 7, v0\ns_mul_i32 s{sO}, s{sId}, {n*128}\ns_add_u32 s{sO}, s{sO}, {first*128}")
    d = k.srd(pP, min((first + 256 * n) * 128, WBYTES))
    k(f"buffer_load_dword v{vDum}, v{T}, {sr(d,4)}, s{sO} offen")
    if nw < 8: k(f"{lab}:")
    k.release(m)

C_MV = 146 * 16
def gen_a(pf=(0, 0), st_flags="sc1"):
    TAB = 16640; MOD = TAB + 18 * 1024; MX = MOD + 8192
    k = Kern("fa_kernel", 256, 512, MX + 32)
    pX = k.s(2); pWS = k.s(2); pW = k.s(2); pF = k.s(4)
    k(f"s_cmp_ge_u32 s2, 256\ns_cbranch_scc1 A_end")
    k.stamp(True)
    k(f"s_load_dwordx2 {sr(pWS,2)}, s[0:1], 96")
    sMask = k.s(); sT = k.s(); sJ = k.s()
    vL = k.v(); vOff = k.v(); T = k.v(8)
    k(f"v_lshrrev_b32 v{T}, 6, v0\nv_and_b32 v{vL}, 63, v0")
    k(f"v_readfirstlane_b32 s{sJ}, v{T}")
    k(f"v_lshlrev_b32 v{vOff}, 4, v{vL}")
    k(f"s_mov_b32 s{sMask}, 0xffff0000")
    k(f"s_load_dwordx4 {sr(pF,4)}, s[0:1], 8")
    k(f"s_load_dwordx2 {sr(pX,2)}, s[0:1], 0")
    if pf[1]: k(f"s_load_dwordx2 {sr(pW,2)}, s[0:1], 32")
    sRow = k.s(); sQ0 = k.s(); sQ1 = k.s(); sS = k.s(); sL = k.s()
    k(f"v_lshlrev_b32 v{T}, 4, v0")
    k(f"s_lshl_b32 s{sRow}, s{sJ}, 8\ns_add_u32 s{sRow}, s{sRow}, s2\ns_lshl_b32 s{sRow}, s{sRow}, 11")
    k(f"s_lshl_b32 s{sL}, s{sJ}, 10\ns_add_u32 s{sQ0}, s{sL}, {WS_TAC}\ns_add_u32 s{sQ1}, s{sL}, {WS_TAC+8192}")
    k(f"s_lshl_b32 s{sS}, s2, 12\ns_add_u32 s{sS}, s{sS}, s{sL}\ns_add_u32 s{sT}, s{sS}, {WS_TAS-6*1024}")
    k(f"s_cmp_ge_u32 s{sJ}, 6\ns_cselect_b32 s{sQ1}, s{sT}, s{sQ1}\ns_add_u32 s{sS}, s{sS}, {WS_TAS+2048}")
    k("s_waitcnt lgkmcnt(0)")
    k.stamp_init2(1, pWS); k.stamp()
    dX = k.srd(pX, 2048 * 2048); dW = k.srd(pWS, WS_ZA)
    XP = k.v(8); MP = k.v(16); AD = k.v(8)
    k(f"buffer_load_dwordx4 {vr(XP,4)}, v{vOff}, {sr(dX,4)}, s{sRow} offen nt")
    k(f"buffer_load_dwordx4 {vr(XP+4,4)}, v{vOff}, {sr(dX,4)}, s{sRow} offen offset:1024 nt")
    for p in range(4):
        k(f"s_mov_b32 s{sT}, {WS_MODP + p*24576}\nbuffer_load_dwordx4 {vr(MP+4*p,4)}, v{T}, {sr(dW,4)}, s{sT} offen")
    dZ = k.srd(pWS, ZA_BYTES, WS_ZA)
    vR3 = AD; vSt = AD + 4
    sBase = k.s(); sAdd = k.s(); sF = k.s(); sS0 = k.s()
    k(f"s_lshl_b32 s{sBase}, s{sJ}, 11\ns_lshr_b32 s{sT}, s{sJ}, 2\ns_lshl_b32 s{sT}, s{sT}, 6\ns_add_u32 s{sBase}, s{sBase}, s{sT}")
    k(f"s_cmp_ge_u32 s{sJ}, 4\ns_cselect_b32 s{sAdd}, 1.0, 0")
    k(f"s_lshl_b32 s{sF}, s2, 2\ns_and_b32 s{sF}, s{sF}, 48\ns_lshl_b32 s{sS0}, s2, 6")
    vW1 = k.v(); vR1 = k.v(); vMw = k.v(); vW2 = k.v(2)
    k(f"v_add_u32 v{vW1}, s{sBase}, v{vOff}\nv_lshl_add_u32 v{vR1}, v{vL}, 2, s{sBase}")
    k(f"v_and_b32 v{T}, 1, v0\nv_lshlrev_b32 v{T}, 10, v{T}\nv_bfe_u32 v{T+1}, v0, 1, 6\nv_lshl_add_u32 v{T}, v{T+1}, 4, v{T}")
    k(f"s_lshr_b32 s{sT}, s{sJ}, 1\ns_lshl_b32 s{sT}, s{sT}, 11\ns_add_u32 s{sT}, s{sT}, {MOD}\nv_add_u32 v{vMw}, s{sT}, v{T}")
    k(f"v_lshrrev_b32 v{T}, 4, v{vL}\nv_and_b32 v{T+1}, 7, v{vL}\nv_xor_b32 v{T}, v{T}, v{T+1}\nv_and_b32 v{T+1}, 15, v{vL}\nv_lshlrev_b32 v{T+1}, 3, v{T+1}\nv_add_u32 v{T}, v{T}, v{T+1}")
    k(f"v_lshl_add_u32 v{vW2}, v{T}, 4, s{sBase}\nv_xor_b32 v{T}, 4, v{T}\nv_lshl_add_u32 v{vW2+1}, v{T}, 4, s{sBase}")
    k(f"s_cmp_ge_u32 s{sJ}, 2\ns_cbranch_scc1 A_no3")
    k(f"s_add_u32 m0, s{sL}, {TAB+16384}\nbuffer_load_dwordx4 v{vOff}, {sr(dW,4)}, s{sS} offen lds")
    k("A_no3:")
    k(f"s_add_u32 m0, s{sL}, {TAB}\nbuffer_load_dwordx4 v{vOff}, {sr(dW,4)}, s{sQ0} offen lds")
    k(f"s_add_u32 m0, s{sL}, {TAB+8192}\nbuffer_load_dwordx4 v{vOff}, {sr(dW,4)}, s{sQ1} offen lds")
    k(f"s_lshl_b32 s{sT}, s{sJ}, 11\ns_add_u32 s{sT}, s{sT}, {WS_TAW}")
    k(f"buffer_load_dwordx4 {vr(AD,4)}, v{vOff}, {sr(dW,4)}, s{sT} offen\nbuffer_load_dwordx4 {vr(AD+4,4)}, v{vOff}, {sr(dW,4)}, s{sT} offen offset:1024")
    sRo = k.s(8); sDs = k.s(2); vWc = k.v(2); vWd = k.v(2)
    mm = k.mark()
    sJb = k.s(); sUn = k.s(); sBl = k.s(); sRh = k.s(); sWh = k.s(); sKg = k.s(); sSt = k.s(); sA = k.s()
    for n in range(2):
        k(f"s_lshl_b32 s{sJb}, s2, 3\ns_add_u32 s{sJb}, s{sJb}, s{sJ}")
        if n == 0:
            k(f"s_lshr_b32 s{sUn}, s{sJb}, 3\ns_and_b32 s{sBl}, s{sJb}, 7\ns_lshr_b32 s{sRh}, s{sUn}, 7\ns_add_u32 s{sRh}, s{sRh}, 1")
        else:
            k(f"s_lshr_b32 s{sUn}, s{sJb}, 3\ns_and_b32 s{sBl}, s{sJb}, 7\ns_lshr_b32 s{sA}, s{sJb}, 2\ns_and_b32 s{sT}, s{sJb}, 3\ns_lshr_b32 s{sRh}, s{sJb}, 7\ns_and_b32 s{sRh}, s{sRh}, 4")
            k(f"s_cmp_lt_u32 s{sJb}, 1024\ns_cselect_b32 s{sUn}, s{sUn}, s{sA}\ns_cselect_b32 s{sBl}, s{sBl}, s{sT}\ns_cselect_b32 s{sRh}, 3, s{sRh}")
        k(f"s_bfe_u32 s{sWh}, s{sUn}, 0x10006\ns_and_b32 s{sKg}, s{sUn}, 63")
        k(f"s_lshr_b32 s{sA}, s{sKg}, 2\ns_lshl_b32 s{sA}, s{sA}, 3\ns_add_u32 s{sA}, s{sA}, s{sRh}\ns_and_b32 s{sT}, s{sKg}, 3\ns_lshl_b32 s{sT}, s{sT}, 9\ns_add_u32 s{sA}, s{sA}, s{sT}")
        k(f"s_sub_u32 s{sT}, 2048, s{sA}\ns_cmp_eq_u32 s{sWh}, 1\ns_cselect_b32 s{sA}, s{sT}, s{sA}\ns_movk_i32 s{sSt}, 128\ns_cselect_b32 s{sSt}, -128, s{sSt}\ns_cselect_b64 vcc, -1, 0")
        k(f"s_lshl_b32 s{sT}, s{sBl}, 7\nv_lshl_add_u32 v{T}, v{vL}, 1, s{sT}\nv_sub_u32 v{T+1}, 1024, v{T}\nv_cndmask_b32 v{vWc+n}, v{T}, v{T+1}, vcc")
        for v in range(4):
            k(f"s_and_b32 s{sT}, s{sA}, 2047\ns_mul_i32 s{sRo+4*n+v}, s{sT}, 1026")
            if v < 3: k(f"s_add_u32 s{sA}, s{sA}, s{sSt}")
        k(f"s_lshl_b32 s{sA}, s{sRh}, 6\ns_sub_i32 s{sA}, s{sA}, 31\ns_max_i32 s{sA}, s{sA}, 0\ns_lshl_b32 s{sT}, s{sBl}, 3\ns_add_u32 s{sA}, s{sA}, s{sT}\ns_mul_i32 s{sA}, s{sA}, {ZA_PITCH}")
        k(f"s_and_b32 s{sT}, s{sUn}, 127\ns_lshl_b32 s{sT}, s{sT}, 7\ns_add_u32 s{sDs+n}, s{sA}, s{sT}\ns_bfe_u32 s{sT}, s{sKg}, 0x30002")
        k(f"v_and_b32 v{T}, 7, v{vL}\nv_xor_b32 v{T}, s{sT}, v{T}\nv_lshrrev_b32 v{T+1}, 3, v{vL}\nv_mul_u32_u24 v{T+1}, {ZA_PITCH}, v{T+1}\nv_lshl_add_u32 v{vWd+n}, v{T}, 4, v{T+1}")
    k.release(mm)
    dR = k.srd(pF, W_BYTES); dI = k.srd(pF + 2, W_BYTES); dB = k.srd(pWS, ZA_BYTES, WS_WB)
    WV = k.v(16); SP = k.v(4)
    k(f"v_and_b32 v{T}, 7, v{vL}\nv_lshrrev_b32 v{T+1}, 3, v{vL}\nv_mul_u32_u24 v{SP+2}, 1026, v{T}\nv_lshl_add_u32 v{SP+2}, v{T+1}, 9, v{SP+2}")
    k(f"v_lshlrev_b32 v{SP+3}, 2, v{T}\nv_lshl_add_u32 v{SP+3}, v{T+1}, 13, v{SP+3}")
    k(f"v_subrev_u32 v{T}, 448, v0\nv_cmp_gt_u32 vcc, 24, v{T}\nv_mov_b32 v{T}, {OOB}\nv_cndmask_b32 v{SP+2}, v{T}, v{SP+2}, vcc\nv_cndmask_b32 v{SP+3}, v{T}, v{SP+3}, vcc")
    X = k.v(16); vSum = k.v(); vMax = k.v()
    k.stamp()
    k("s_waitcnt vmcnt(8)")
    unpack_bf16(k, X, XP, 8, sMask)
    k(f"v_add_f32 v{vSum}, v{X}, v{X+1}\nv_add_f32 v{T}, v{X+2}, v{X+3}")
    for i in range(2, 8): k(f"v_add_f32 v{vSum}, v{vSum}, v{X+2*i}\nv_add_f32 v{T}, v{T}, v{X+2*i+1}")
    k(f"v_add_f32 v{vSum}, v{vSum}, v{T}")
    k("s_waitcnt vmcnt(4)")
    k.stamp()
    for n in range(2):
        for v in range(4):
            k(f"buffer_load_ushort v{WV+8*n+v}, v{vWc+n}, {sr(dR,4)}, s{sRo+4*n+v} offen nt")
            k(f"buffer_load_ushort v{WV+8*n+4+v}, v{vWc+n}, {sr(dI,4)}, s{sRo+4*n+v} offen nt")
    code_pf_w(k, "fb_kernel", "fc_kernel", sJ, 6, IDX_STD, vL, T + 2, T + 7)
    k(f"s_mul_i32 s{sT}, s2, 8208")
    k(f"buffer_load_ushort v{SP}, v{SP+2}, {sr(dR,4)}, s{sT} offen\nbuffer_load_ushort v{SP+1}, v{SP+2}, {sr(dI,4)}, s{sT} offen")
    def modfin(k):
        for i in range(4): k(f"v_add_f32 v{MP+i}, v{MP+i}, v{MP+4+i}\nv_add_f32 v{MP+8+i}, v{MP+8+i}, v{MP+12+i}")
        for i in range(4): k(f"v_add_f32 v{MP+i}, v{MP+i}, v{MP+8+i}")
        k(f"v_cvt_pk_bf16_f32 v{MP+4}, v{MP}, v{MP+1}\nv_cvt_pk_bf16_f32 v{MP+5}, v{MP+2}, v{MP+3}")
        unpack_bf16(k, MP, MP + 4, 2, sMask)
        for i in range(4): k(f"v_add_f32 v{MP+i}, s{sAdd}, v{MP+i}")
        k(f"v_cvt_pk_bf16_f32 v{MP+4}, v{MP}, v{MP+1}\nv_cvt_pk_bf16_f32 v{MP+5}, v{MP+2}, v{MP+3}")
        unpack_bf16(k, MP, MP + 4, 2, sMask)
        k(f"ds_write_b128 v{vMw}, {vr(MP,4)}")
        k(f"v_max3_f32 v{vMax}, abs(v{MP}), abs(v{MP+1}), abs(v{MP+2})\nv_max_f32 v{vMax}, abs(v{MP+3}), v{vMax}")
    sSum = k.s(); sMax = k.s()
    with_fill(k, cap(lambda t: wave_reduce(t, "v_add_f32", [vSum], [sSum])), cap(modfin), 5)
    vM = k.v(); vDl = k.v(); vE = k.v()
    def meanpart(k):
        k(f"v_mov_b32 v{vDl}, {fbits(1/1024)}\nv_mul_f32 v{vDl}, s{sSum}, v{vDl}\nv_mov_b32 v{vM}, v{vDl}")
        round_bf16(k, vM)
        k(f"v_sub_f32 v{vDl}, v{vDl}, v{vM}")
        for i in range(16): k(f"v_sub_f32 v{X+i}, v{X+i}, v{vM}")
    with_fill(k, cap(lambda t: wave_reduce(t, "v_max_f32", [vMax], [sMax])), cap(meanpart), 3)
    k(f"s_lshl_b32 s{sT}, s{sJ}, 2\ns_add_u32 s{sT}, s{sT}, {MX}\nv_mov_b32 v{T+1}, s{sT}")
    k(f"v_mov_b32 v{vMax}, s{sMax}\nds_write_b32 v{T+1}, v{vMax}")
    k(f"v_mul_f32 v{vSum}, v{X}, v{X}\nv_mul_f32 v{T}, v{X+1}, v{X+1}")
    for i in range(1, 8): k(f"v_fmac_f32 v{vSum}, v{X+2*i}, v{X+2*i}\nv_fmac_f32 v{T}, v{X+2*i+1}, v{X+2*i+1}")
    k(f"v_add_f32 v{vSum}, v{vSum}, v{T}")
    k("s_waitcnt vmcnt(18) lgkmcnt(0)\ns_barrier")
    k.stamp()
    SA = k.v(16); CA = k.v(16); FA = k.v(16)
    assert CA == SA + 16
    k(f"v_mov_b32 v{T}, {MX}\nds_read_b128 {vr(MP,4)}, v{T}\nds_read_b128 {vr(MP+4,4)}, v{T} offset:16")
    for q in range(2):
        for h in range(2): k(f"ds_read_b128 {vr(CA+8*q+4*h,4)}, v{vOff} offset:{MOD+4096+2048*q+1024*h}")
    for q in range(2):
        for h in range(2): k(f"ds_read_b128 {vr(SA+8*q+4*h,4)}, v{vOff} offset:{MOD+2048*q+1024*h}")
    def fq(ct, ks, ri): return TAB + 1024 * ((ct * 2 + ks) * 2 + ri)
    for ct in range(2):
        for ri in range(2): k(f"ds_read_b128 {vr(FA+(ct*2+ri)*4,4)}, v{vOff} offset:{fq(ct,0,ri)}")
    wave_reduce(k, "v_add_f32", [vSum], [sSum])
    k("s_waitcnt lgkmcnt(12)")
    k(f"v_max3_f32 v{MP}, v{MP}, v{MP+1}, v{MP+2}\nv_max3_f32 v{MP+4}, v{MP+4}, v{MP+5}, v{MP+6}\nv_max3_f32 v{MP}, v{MP}, v{MP+3}, v{MP+7}\nv_max_f32 v{MP}, v{MP}, v{MP+4}")
    k(f"v_frexp_exp_i32_f32 v{vE}, v{MP}\nv_sub_u32 v{vE}, 3, v{vE}\nv_min_i32 v{vE}, 60, v{vE}\nv_max_i32 v{vE}, {(-100)&0xffffffff}, v{vE}")
    vR = vM
    def rpart(k):
        k(f"v_mov_b32 v{vR}, {fbits(1/1024)}\nv_mul_f32 v{vR}, s{sSum}, v{vR}\nv_fma_f32 v{vR}, -v{vDl}, v{vDl}, v{vR}\nv_max_f32 v{vR}, 0, v{vR}")
        round_bf16(k, vR)
        k(f"v_add_f32 v{vR}, {fbits(1e-5)}, v{vR}")
        round_bf16(k, vR)
        k(f"v_sqrt_f32 v{vR}, v{vR}")
        round_bf16(k, vR)
        k(f"v_rcp_f32 v{vR}, v{vR}")
        k(f"v_ldexp_f32 v{vR}, v{vR}, v{vE}")
    k("s_waitcnt lgkmcnt(4)")
    FB = CA
    fill = [f"v_mul_f32 v{X+i}, v{X+i}, v{CA+i}" for i in range(16)]
    fill += [f"ds_read_b128 {vr(FB+(ct*2+ri)*4,4)}, v{vOff} offset:{fq(ct,1,ri)}" for ct in range(2) for ri in range(2)]
    fill += [f"v_ldexp_f32 v{SA+i}, v{SA+i}, v{vE}" for i in range(16)]
    with_fill(k, cap(rpart), fill, 3)
    Z = XP
    for i in range(8):
        k(f"v_fma_f32 v{X+2*i}, v{X+2*i}, v{vR}, v{SA+2*i}\nv_fma_f32 v{X+2*i+1}, v{X+2*i+1}, v{vR}, v{SA+2*i+1}")
        k(f"v_cvt_pk_f16_f32 v{Z+i}, v{X+2*i}, v{X+2*i+1}")
        if i == 3: k(f"ds_write_b128 v{vW1}, {vr(Z,4)}")
    k(f"ds_write_b128 v{vW1}, {vr(Z+4,4)} offset:1024")
    k.stamp()
    OP = MP
    for h in range(4): k(f"ds_read2st64_b32 {vr(OP+2*h,2)}, v{vR1} offset0:{2*h} offset1:{2*h+1}")
    TW = SA; F2 = MP + 8
    for q in range(4): k(f"ds_read_b128 {vr(TW+4*q,4)}, v{vOff} offset:{TAB+8192+1024*q}")
    for q in range(2): k(f"ds_read_b128 {vr(F2+4*q,4)}, v{vOff} offset:{TAB+12288+1024*q}")
    D1 = X
    for q in range(4): k(f"v_xor_b32 v{vSt+q}, s{sF}, v{vSt+q}")
    k("s_waitcnt lgkmcnt(8)")
    for o in range(4): k(f"{MF} {vr(D1+o*4,4)}, {vr(OP,4)}, {vr(FA+o*4,4)}, 0")
    k("s_waitcnt lgkmcnt(6)")
    for o in range(4): k(f"{MF} {vr(D1+o*4,4)}, {vr(OP+4,4)}, {vr(FB+o*4,4)}, {vr(D1+o*4,4)}")
    F3 = FA
    for q in range(4): k(f"ds_read_b128 {vr(F3+4*q,4)}, v{vOff} offset:{TAB+14336+1024*q}")
    k("s_waitcnt lgkmcnt(4)")
    D2 = CA
    for ct in range(2):
        for v in range(4):
            re = D1 + ct * 8 + v; im = re + 4
            cmul_tw(k, re, im, TW + 4 * ct + v, TW + 8 + 4 * ct + v, False, T + v)
            k(f"v_cvt_pk_f16_f32 v{OP+4*ct+v}, v{re}, v{im}")
        k(f"{MF} {vr(D2+ct*8,4)}, {vr(OP+4*ct,4)}, {vr(F2,4)}, 0")
        k(f"{MF} {vr(D2+ct*8+4,4)}, {vr(OP+4*ct,4)}, {vr(F2+4,4)}, 0")
    for ct in range(2):
        for v in range(4): k(f"v_cvt_pk_f16_f32 v{Z+4*ct+v}, v{D2+ct*8+v}, v{D2+ct*8+4+v}")
        k(f"ds_write_b128 v{vW2+ct}, {vr(Z+4*ct,4)}")
    k.stamp()
    k("s_waitcnt lgkmcnt(0)\ns_barrier")
    k.stamp()
    O3 = X
    for q in range(2):
        for x in range(2):
            d = O3 + (q * 2 + x) * 4
            k(f"ds_read2st64_b32 {vr(d,2)}, v{vR3+2*q+x} offset0:0 offset1:8")
            k(f"ds_read2st64_b32 {vr(d+2,2)}, v{vR3+2*q+x} offset0:16 offset1:24")
    D3 = SA
    for q in range(2):
        for x in range(2):
            k(f"s_waitcnt lgkmcnt({6-2*(2*q+x)})")
            for ri in range(2):
                d = D3 + ((q * 2 + x) * 2 + ri) * 4
                k(f"{MF} {vr(d,4)}, {vr(O3+(q*2+x)*4,4)}, {vr(F3+(x*2+ri)*4,4)}, 0")
    P = MP
    for q in range(2):
        for v in range(4):
            for x in range(2):
                d = D3 + ((q * 2 + x) * 2) * 4 + v
                k(f"v_cvt_pk_f16_f32 v{P+8*q+2*v+x}, v{d}, v{d+4}")
        for e in range(4): k(f"v_permlane32_swap_b32 v{P+8*q+e}, v{P+8*q+4+e}")
        for ins in range(2):
            k(f"buffer_store_dwordx4 {vr(P+8*q+4*ins,4)}, v{vSt+2*q+ins}, {sr(dZ,4)}, s{sS0} offen {st_flags}")
    k("s_waitcnt vmcnt(4)")
    for n in range(2):
        for v in range(4): k(f"v_lshl_or_b32 v{WV+8*n+v}, v{WV+8*n+4+v}, 16, v{WV+8*n+v}")
        k(f"buffer_store_dwordx4 {vr(WV+8*n,4)}, v{vWd+n}, {sr(dB,4)}, s{sDs+n} offen sc1")
    k(f"v_lshl_or_b32 v{SP}, v{SP+1}, 16, v{SP}\ns_lshl_b32 s{sT}, s2, 5\ns_add_u32 s{sT}, s{sT}, {WS_SPC}")
    k(f"buffer_store_dword v{SP}, v{SP+3}, {sr(dW,4)}, s{sT} offen")
    sM7 = sAdd
    k(f"s_mov_b32 s{sM7}, 0x7fff7fff\nv_and_b32 v{SP+1}, s{sM7}, v{SP}")
    for n in range(2):
        for v in range(4): k(f"v_and_b32 v{WV+8*n+4+v}, s{sM7}, v{WV+8*n+v}\nv_pk_max_u16 v{SP+1}, v{SP+1}, v{WV+8*n+4+v}")
    k(f"v_lshrrev_b32 v{T}, 16, v{SP+1}\nv_and_b32 v{SP+1}, 0xffff, v{SP+1}\nv_max_u32 v{SP+1}, v{SP+1}, v{T}")
    wave_reduce(k, "v_max_u32", [SP + 1], [sMax])
    k(f"s_lshl_b32 s{sT}, s{sJ}, 2\ns_add_u32 s{sT}, s{sT}, {MX}\nv_mov_b32 v{T}, s{sT}\nv_mov_b32 v{SP+1}, s{sMax}\nds_write_b32 v{T}, v{SP+1}")
    k("s_waitcnt lgkmcnt(0)\ns_barrier")
    k(f"s_cmp_lg_u32 s{sJ}, 0\ns_cbranch_scc1 A_noscal")
    k(f"ds_read_b128 {vr(X,4)}, v{T}\nds_read_b128 {vr(X+4,4)}, v{T} offset:16\ns_lshl_b32 s{sT}, s2, 2\ns_add_u32 s{sT}, s{sT}, {WS_WMAX}\nv_mov_b32 v{T}, 0\ns_waitcnt lgkmcnt(0)")
    k(f"v_max3_u32 v{X}, v{X}, v{X+1}, v{X+2}\nv_max3_u32 v{X+4}, v{X+4}, v{X+5}, v{X+6}\nv_max3_u32 v{X}, v{X}, v{X+3}, v{X+7}\nv_max_u32 v{X}, v{X}, v{X+4}")
    k(f"buffer_store_dword v{X}, v{T}, {sr(dW,4)}, s{sT} offen")
    k(f"s_cmp_lg_u32 s2, 0\ns_cbranch_scc1 A_noscal")
    k(f"v_mov_b32 v{T}, {WS_SCAL}\nbuffer_store_dword v{vE}, v{T}, {sr(dW,4)}, 0 offen")
    k("A_noscal:")
    k.stamp()
    if k.prof: k("s_waitcnt vmcnt(0)")
    k.stamp_flush()
    k("A_end:\ns_endpgm")
    return k

def fin_job(k, pWS, sJ, vL, T, endlabel):
    MP = k.v(32); vMw = k.v(); vOff = k.v(); sL = k.s(); sAdd = k.s(); sT = k.s(); sMask = k.s()
    k(f"s_lshl_b32 s{sL}, s{sJ}, 11\nv_lshlrev_b32 v{vOff}, 4, v{vL}\ns_mov_b32 s{sMask}, 0xffff0000\ns_waitcnt lgkmcnt(0)")
    dW = k.srd(pWS, WS_ZA)
    for p in range(4):
        k(f"s_add_u32 s{sT}, s{sL}, {WS_MODP + 8192 + p*24576}")
        for h in range(2): k(f"buffer_load_dwordx4 {vr(MP+8*p+4*h,4)}, v{vOff}, {sr(dW,4)}, s{sT} offen offset:{1024*h}")
    k(f"v_and_b32 v{T}, 1, v{vL}\nv_mul_u32_u24 v{T}, 73, v{T}\nv_bfe_u32 v{T+1}, v{vL}, 1, 2\nv_mad_u32_u24 v{T}, v{T+1}, 18, v{T}")
    k(f"v_lshrrev_b32 v{T+1}, 3, v{vL}\nv_add_u32 v{T}, v{T}, v{T+1}\nv_lshlrev_b32 v{vMw}, 4, v{T}")
    k(f"s_lshr_b32 s{sT}, s{sJ}, 1\ns_cmp_eq_u32 s{sT}, 2\ns_cselect_b32 s{sAdd}, 1.0, 0")
    k("s_waitcnt vmcnt(0)")
    for i in range(8): k(f"v_add_f32 v{MP+i}, v{MP+i}, v{MP+8+i}\nv_add_f32 v{MP+16+i}, v{MP+16+i}, v{MP+24+i}")
    for i in range(8): k(f"v_add_f32 v{MP+i}, v{MP+i}, v{MP+16+i}")
    for i in range(4): k(f"v_cvt_pk_bf16_f32 v{MP+8+i}, v{MP+2*i}, v{MP+2*i+1}")
    k(f"s_cmp_ge_u32 s{sJ}, 6\ns_cbranch_scc1 F_gb")
    unpack_bf16(k, MP, MP + 8, 4, sMask)
    for i in range(8): k(f"v_add_f32 v{MP+i}, s{sAdd}, v{MP+i}")
    for i in range(4): k(f"v_cvt_pk_bf16_f32 v{MP+8+i}, v{MP+2*i}, v{MP+2*i+1}")
    unpack_bf16(k, MP, MP + 8, 4, sMask)
    k(f"s_mul_i32 s{sT}, s{sJ}, {C_MV}\ns_add_u32 s{sT}, s{sT}, {WS_MODC}")
    k(f"buffer_store_dwordx4 {vr(MP,4)}, v{vMw}, {sr(dW,4)}, s{sT} offen\nbuffer_store_dwordx4 {vr(MP+4,4)}, v{vMw}, {sr(dW,4)}, s{sT} offen offset:128")
    k("s_endpgm\nF_gb:")
    k(f"s_lshl_b32 s{sT}, s{sJ}, 10\ns_add_u32 s{sT}, s{sT}, {WS_GB-6144}\nv_lshlrev_b32 v{T}, 3, v{vL}")
    k(f"buffer_store_dwordx2 {vr(MP+8,2)}, v{T}, {sr(dW,4)}, s{sT} offen\nbuffer_store_dwordx2 {vr(MP+10,2)}, v{T}, {sr(dW,4)}, s{sT} offen offset:512")

def gen_b(pf=(0, 0), st_flags="sc1"):
    TAB = 16384; OUT = 24576; WL = 40960
    NM = 258
    k = Kern("fb_kernel", NM + 8, 512, WL + 16384)
    pW1 = k.s(2); pWS = k.s(2)
    sSlot = k.s(); sT = k.s(); sRho = k.s(); sC = k.s()
    k.stamp(True)
    k(f"s_load_dwordx2 {sr(pWS,2)}, s[0:1], 96")
    if pf[1]: k(f"s_load_dwordx2 {sr(pW1,2)}, s[0:1], 32")
    k(f"s_cmp_ge_u32 s2, {NM+8}\ns_cbranch_scc1 B_end")
    vL, vI, vG, sU, T = lane_ids(k)
    k(f"s_cmp_ge_u32 s2, {NM}\ns_cbranch_scc1 B_side")
    m0 = k.mark()
    k(f"s_and_b32 s{sT}, s2, 7\ns_add_u32 s{sT}, s{sT}, 1\ns_lshr_b32 s{sRho}, s{sT}, 1\ns_and_b32 s{sC}, s{sT}, 1\ns_lshl_b32 s{sC}, s{sC}, 5")
    k(f"s_cmp_eq_u32 s{sRho}, 0\ns_cselect_b32 s{sC}, 0, s{sC}\ns_lshr_b32 s{sT}, s2, 3\ns_add_u32 s{sC}, s{sC}, s{sT}")
    k(f"s_cmp_eq_u32 s2, 257\ns_cselect_b32 s{sRho}, 4, s{sRho}")
    k(f"s_lshl_b32 s{sSlot}, s{sRho}, 6\ns_sub_i32 s{sSlot}, s{sSlot}, 31\ns_max_i32 s{sSlot}, s{sSlot}, 0\ns_add_u32 s{sSlot}, s{sSlot}, s{sC}")
    vOff = k.v()
    k(f"v_lshlrev_b32 v{vOff}, 4, v{vL}")
    sO = k.s(); sL = k.s()
    k(f"s_mul_i32 s{sO}, s{sSlot}, {ZA_PITCH}\ns_lshl_b32 s{sL}, s{sU}, 11\ns_add_u32 s{sO}, s{sO}, s{sL}\ns_mov_b32 m0, s{sL}")
    k("s_waitcnt lgkmcnt(0)")
    k.stamp_init2(2, pWS); k.stamp()
    dZ = k.srd(pWS, ZA_BYTES, WS_ZA)
    k(f"buffer_load_dwordx4 v{vOff}, {sr(dZ,4)}, s{sO} offen lds")
    k(f"buffer_load_dwordx4 v{vOff}, {sr(dZ,4)}, s{sO} offen offset:1024 lds")
    dW = k.srd(pWS, WS_ZA)
    k(f"s_lshl_b32 s{sT}, s{sU}, 10\ns_add_u32 m0, s{sT}, {TAB}\ns_add_u32 s{sT}, s{sT}, {WS_TBC}")
    k(f"buffer_load_dwordx4 v{vOff}, {sr(dW,4)}, s{sT} offen lds")
    WP = k.v(8); WE = k.v(8); WM = k.v(4); vWrd = k.v(); sSp = k.s()
    k(f"s_mov_b32 s{sT}, {WS_WMAX}\nbuffer_load_dwordx4 {vr(WM,4)}, v{vOff}, {sr(dW,4)}, s{sT} offen")
    dB = k.srd(pWS, ZA_BYTES, WS_WB)
    k(f"s_add_u32 m0, s{sL}, {WL}\ns_cmp_ge_u32 s2, 256\ns_cselect_b32 s{dB+2}, 0, s{dB+2}")
    k(f"buffer_load_dwordx4 v{vOff}, {sr(dB,4)}, s{sO} offen lds\nbuffer_load_dwordx4 v{vOff}, {sr(dB,4)}, s{sO} offen offset:1024 lds")
    k(f"s_cselect_b32 s{sT}, 0, s{sC}\ns_cselect_b64 vcc, -1, 0\ns_or_b32 s{sSp}, s{sT}, s{sU}")
    k(f"s_cmp_lg_u32 s{sSp}, 0\ns_cbranch_scc1 B_nox")
    sE1 = k.s(); sE2o = k.s()
    k(f"s_lshl_b32 s{sE1}, s{sC}, 8\ns_sub_u32 s{sE2o}, {WS_SPC+16384}, s{sE1}\ns_add_u32 s{sE1}, s{sE1}, {WS_SPC}")
    for v in range(4):
        k(f"v_lshl_add_u32 v{T}, v{vG}, 2, {v}\nv_lshl_add_u32 v{T}, v{T}, 4, v{vI}\nv_lshl_add_u32 v{T}, v{T}, 3, s{sRho}")
        k(f"v_sub_u32 v{T+1}, 2048, v{T}\nv_and_b32 v{T+1}, 2047, v{T+1}")
        k(f"v_cndmask_b32 v{T+2}, v{T+1}, v{T}, vcc\nv_cndmask_b32 v{T+3}, v{T}, v{T+1}, vcc\nv_lshlrev_b32 v{T+2}, 2, v{T+2}\nv_lshlrev_b32 v{T+3}, 2, v{T+3}")
        k(f"buffer_load_dword v{WE+v}, v{T+2}, {sr(dW,4)}, s{sE1} offen\nbuffer_load_dword v{WE+4+v}, v{T+3}, {sr(dW,4)}, s{sE2o} offen")
    k("B_nox:")
    k(f"v_and_b32 v{T}, 7, v{vI}\nv_xor_b32 v{T}, s{sU}, v{T}\nv_lshlrev_b32 v{T}, 4, v{T}\nv_lshl_add_u32 v{T}, v{vG}, 7, v{T}\nv_lshl_add_u32 v{vWrd}, v{vI}, 9, v{T}")
    dO = k.srd(pWS, ZB_BYTES, WS_ZB)
    k(f"s_cmp_lt_u32 s2, 256\ns_cbranch_scc1 B_reg\ns_setprio 3\ns_cmp_lg_u32 s{sU}, 0\ns_cbranch_scc1 B_idle\nB_reg:")
    vCp = k.v(); vSp = k.v()
    k(f"s_lshl_b32 s{sT}, s{sC}, 3\ns_add_u32 s{sT}, s{sT}, s{sU}\ns_add_u32 s{sT}, s{sT}, 256\nv_mov_b32 v{T}, s{sT}")
    sincos(k, vCp, vSp, T, 2048, T + 1)
    k(f"v_mul_f32 v{vCp}, {fbits(0.25)}, v{vCp}\nv_mul_f32 v{vSp}, {fbits(0.25)}, v{vSp}")
    G = k.v(32)
    def g1(ks, o): return G + (ks * 4 + o) * 4
    for e2 in range(2):
        k(f"v_lshl_add_u32 v{T}, v{vG}, 1, {e2}\nv_mul_u32_u24 v{T}, v{T}, v{vI}")
        sincos(k, T + 1, T + 2, T, 16, T + 3)
        k(f"v_mul_f32 v{T+4}, v{vCp}, v{T+1}\nv_mul_f32 v{T+5}, v{vCp}, v{T+2}")
        k(f"v_mul_f32 v{T+6}, v{vSp}, v{T+1}\nv_mul_f32 v{T+7}, v{vSp}, v{T+2}")
        p1 = f"v{T+4}, v{T+5}"; p2 = f"-v{T+5}, v{T+4}"; p3 = f"v{T+7}, -v{T+6}"; p4 = f"v{T+6}, v{T+7}"
        for o, (pa, pb) in enumerate(((p1, p3), (p2, p4), (p3, p1), (p4, p2))):
            k(f"v_cvt_pk_f16_f32 v{g1(0,o)+2*e2}, {pa}\nv_cvt_pk_f16_f32 v{g1(0,o)+2*e2+1}, {pb}")
    sSign = k.s()
    k(f"s_mov_b32 s{sSign}, 0x80008000")
    k(f"v_and_b32 v{T}, 1, v{vI}\nv_mul_lo_u32 v{T}, v{T}, s{sSign}")
    for x in range(16): k(f"v_xor_b32 v{G+16+x}, v{T}, v{G+x}")
    H = k.v(16)
    for v in range(4):
        k(f"v_lshl_add_u32 v{T}, v{vG}, 2, {v}\nv_mul_u32_u24 v{T}, v{T}, v{vI}")
        sincos(k, T + 1, T + 2, T, 16, T + 3)
        k(f"v_mul_f32 v{T+4}, v{vCp}, v{T+1}\nv_mul_f32 v{T+5}, v{vCp}, v{T+2}\nv_mul_f32 v{T+6}, v{vSp}, v{T+1}\nv_mul_f32 v{T+7}, v{vSp}, v{T+2}")
        k(f"v_cvt_pk_f16_f32 v{H+v}, v{T+4}, -v{T+5}\nv_cvt_pk_f16_f32 v{H+4+v}, v{T+5}, v{T+4}")
        k(f"v_cvt_pk_f16_f32 v{H+8+v}, v{T+7}, v{T+6}\nv_cvt_pk_f16_f32 v{H+12+v}, -v{T+6}, v{T+7}")
    vRd = vCp; vWr = vSp
    k(f"s_lshr_b32 s{sT}, s{sU}, 1")
    k(f"v_lshrrev_b32 v{T}, 2, v{vI}\nv_xor_b32 v{T}, s{sT}, v{T}\nv_lshlrev_b32 v{T}, 4, v{T}\nv_lshl_add_u32 v{T}, v{vI}, 6, v{T}")
    k(f"s_and_b32 s{sT}, s{sU}, 1\ns_lshl_b32 s{sT}, s{sT}, 3\nv_add_u32 v{T}, s{sT}, v{T}")
    k(f"v_lshl_add_u32 v{vRd}, v{vG}, 11, v{T}\nv_lshl_add_u32 v{vWr}, v{vG}, 12, v{T}")
    vOr = vI; vOs = vG
    k(f"v_lshlrev_b32 v{vOr}, 4, v0")
    k(f"v_lshrrev_b32 v{T}, 2, v0\nv_mul_u32_u24 v{T}, {ZB_PITCH}, v{T}")
    k(f"v_lshrrev_b32 v{T+1}, 4, v0\nv_xor_b32 v{T+1}, v{T+1}, v0\nv_and_b32 v{T+1}, 3, v{T+1}\nv_lshl_add_u32 v{vOs}, v{T+1}, 4, v{T}")
    sMask = k.s(); sScale = k.s(); sE2 = k.s()
    k(f"s_mov_b32 s{sMask}, 0xffff0000")
    k.stamp()
    k("s_waitcnt vmcnt(0)\ns_barrier")
    k.stamp()
    OP = k.v(8); D = k.v(16); TB = k.v(16)
    for ks in range(2):
        for e2 in range(2): k(f"ds_read_b64 {vr(OP+4*ks+2*e2,2)}, v{vRd} offset:{(8*ks+e2)*1024}")
    for q in range(4): k(f"ds_read_b128 {vr(TB+4*q,4)}, v{vOff} offset:{TAB+1024*q}")
    TWC = TB; TWS = TB + 4; FR = TB + 8; FI = TB + 12; CR = TB + 8; CI = TB + 12
    k(f"ds_read_b128 {vr(WP,4)}, v{vWrd} offset:{WL}\nds_read_b128 {vr(WP+4,4)}, v{vWrd} offset:{WL+8192}")
    code_pf_w(k, "fc_kernel", "g1_kernel", sU, 7, IDX_STD, vL, T + 4, T + 7)
    pf_mall(k, pW1, pf[0], pf[1], 2, sU, vL, T + 4)
    k(f"v_max3_u32 v{WM}, v{WM}, v{WM+1}, v{WM+2}\nv_max_u32 v{WM}, v{WM}, v{WM+3}")
    red = cap(lambda t: wave_reduce(t, "v_max_u32", [WM], [sE2]))
    for l in red[:3]: k(l)
    k("s_waitcnt lgkmcnt(8)")
    for o in range(4):
        k(f"{MF} {vr(D+4*o,4)}, {vr(OP,4)}, {vr(g1(0,o),4)}, 0")
        if o & 1: k(red[3 + (o >> 1)])
    k("s_waitcnt lgkmcnt(6)")
    for o in range(4):
        k(f"{MF} {vr(D+4*o,4)}, {vr(OP+4,4)}, {vr(g1(1,o),4)}, {vr(D+4*o,4)}")
        if o & 1: k(red[5 + (o >> 1)])
    k(f"s_lshr_b32 s{sE2}, s{sE2}, 7\ns_sub_i32 s{sE2}, 125, s{sE2}\ns_min_i32 s{sE2}, s{sE2}, 60\ns_max_i32 s{sE2}, s{sE2}, -100")
    k(f"s_add_u32 s{sScale}, s{sE2}, 127\ns_lshl_b32 s{sScale}, s{sScale}, 23")
    k("s_waitcnt lgkmcnt(0)")
    for w in range(2):
        for v in range(4):
            re = D + 8 * w + v; im = re + 4
            cmul_tw(k, re, im, TWC + v, TWS + v, False, T + v)
            k(f"v_cvt_pk_f16_f32 v{OP+4*w+v}, v{re}, v{im}")
        k(f"{MF} {vr(D+8*w,4)}, {vr(FR,4)}, {vr(OP+4*w,4)}, 0")
        k(f"{MF} {vr(D+8*w+4,4)}, {vr(FI,4)}, {vr(OP+4*w,4)}, 0")
    k(f"ds_read_b128 {vr(CR,4)}, v{vOff} offset:{TAB+4096}\nds_read_b128 {vr(CI,4)}, v{vOff} offset:{TAB+5120}")
    Wf = G
    k.stamp()
    unpack_bf16(k, Wf, WP, 8, sMask)
    k(f"s_cmp_lg_u32 s{sSp}, 0\ns_cbranch_scc1 B_nospec")
    unpack_bf16(k, G + 16, WE, 8, sMask)
    k(f"s_cmp_ge_u32 s2, 256\ns_cselect_b32 s{sT}, 1.0, -1.0\ns_cselect_b32 s{sE1}, 0, {1<<23}\ns_sub_u32 s{sScale}, s{sScale}, s{sE1}")
    for i in range(8): k(f"v_add_f32 v{Wf+2*i}, v{Wf+2*i}, v{G+16+2*i}\nv_fmac_f32 v{Wf+2*i+1}, s{sT}, v{G+16+2*i+1}")
    k(f"v_mov_b32 v{T+4}, {WS_SCAL+4}\nv_mov_b32 v{T+5}, s{sE2}\nbuffer_store_dword v{T+5}, v{T+4}, {sr(dW,4)}, 0 offen")
    k("B_nospec:")
    for i in range(16): k(f"v_mul_f32 v{Wf+i}, s{sScale}, v{Wf+i}")
    k("s_waitcnt lgkmcnt(0)")
    for w in range(2):
        for v in range(4):
            re = D + 8 * w + v; im = re + 4
            cmul_tw(k, re, im, Wf + 8 * w + 2 * v, Wf + 8 * w + 2 * v + 1, w == 0, T + v)
            k(f"v_cvt_pk_f16_f32 v{OP+4*w+v}, v{re}, v{im}")
        k(f"{MF} {vr(D+8*w,4)}, {vr(OP+4*w,4)}, {vr(CR,4)}, 0")
        k(f"{MF} {vr(D+8*w+4,4)}, {vr(OP+4*w,4)}, {vr(CI,4)}, 0")
    E = G + 16
    for w in range(2):
        for v in range(4):
            re = D + 8 * w + v; im = re + 4
            cmul_tw(k, re, im, TWC + v, TWS + v, True, T + v)
            k(f"v_cvt_pk_f16_f32 v{OP+4*w+v}, v{re}, v{im}")
        for x in range(2):
            for ri in range(2):
                d = E + 8 * x + 4 * ri
                k(f"{MF} {vr(d,4)}, {vr(H+8*(x^w)+4*ri,4)}, {vr(OP+4*w,4)}, {vr(d,4) if w else 0}")
    P = WP
    for v in range(4):
        k(f"v_cvt_pk_f16_f32 v{P+2*v}, v{E+v}, v{E+4+v}\nv_cvt_pk_f16_f32 v{P+2*v+1}, v{E+8+v}, v{E+12+v}")
        k(f"ds_write_b64 v{vWr}, {vr(P+2*v,2)} offset:{OUT+v*1024}")
    k("s_waitcnt lgkmcnt(0)\nB_out:\ns_barrier")
    k.stamp()
    k(f"ds_read_b128 {vr(D,4)}, v{vOr} offset:{OUT}\nds_read_b128 {vr(D+4,4)}, v{vOr} offset:{OUT+8192}")
    k(f"s_lshl_b32 s{sO}, s{sSlot}, 6\ns_add_u32 s{sT}, s{sO}, {128*ZB_PITCH}")
    k("s_waitcnt lgkmcnt(1)")
    k(f"buffer_store_dwordx4 {vr(D,4)}, v{vOs}, {sr(dO,4)}, s{sO} offen {st_flags}")
    k("s_waitcnt lgkmcnt(0)")
    k(f"buffer_store_dwordx4 {vr(D+4,4)}, v{vOs}, {sr(dO,4)}, s{sT} offen {st_flags}")
    k.stamp()
    if k.prof: k("s_waitcnt vmcnt(0)")
    k.stamp_flush()
    k("s_endpgm")
    k("B_idle:")
    k(f"v_lshlrev_b32 v{vOr}, 4, v0")
    k(f"v_lshrrev_b32 v{T}, 2, v0\nv_mul_u32_u24 v{T}, {ZB_PITCH}, v{T}")
    k(f"v_lshrrev_b32 v{T+1}, 4, v0\nv_xor_b32 v{T+1}, v{T+1}, v0\nv_and_b32 v{T+1}, 3, v{T+1}\nv_lshl_add_u32 v{vOs}, v{T+1}, 4, v{T}")
    k("s_waitcnt vmcnt(0)\ns_barrier\ns_branch B_out")
    k.release(m0)
    k("B_side:")
    k(f"s_cmp_lg_u32 s{sU}, 0\ns_cbranch_scc1 B_end\ns_sub_u32 s{sC}, s2, {NM}")
    fin_job(k, pWS, sC, vL, T, "B_end")
    k("B_end:\ns_endpgm")
    return k

def gen_c(l2w=0, pf=(0, 0), pfa=32, st_flags="sc1"):
    TAB = C_TB + 8 * C_TP; MOD = TAB + 16384; MV = C_MV
    k = Kern("fc_kernel", 256, 512, MOD + 14336)
    k.s()
    pX = k.s(2); pWS = k.s(2); pW1 = k.s(2)
    k(f"s_cmp_ge_u32 s2, 256\ns_cbranch_scc1 C_end")
    k("s_and_b32 s3, s2, 3\ns_lshl_b32 s3, s3, 6\ns_and_b32 s4, s2, 4\ns_lshl_b32 s4, s4, 3\ns_add_u32 s3, s3, s4\ns_lshr_b32 s2, s2, 3\ns_add_u32 s2, s2, s3")
    k.stamp(True)
    k(f"s_load_dwordx2 {sr(pX,2)}, s[0:1], 0")
    k(f"s_load_dwordx2 {sr(pWS,2)}, s[0:1], 96")
    k(f"s_load_dwordx2 {sr(pW1,2)}, s[0:1], {pfa}")
    vL, vI, vG, sJ, T = lane_ids(k)
    sMask = k.s(); sT = k.s(); sRow = k.s(); sO = k.s(); sL = k.s(); sQ = k.s()
    vOff = k.v(); vXo = k.v()
    k(f"v_lshlrev_b32 v{vOff}, 4, v{vL}\nv_lshlrev_b32 v{vXo}, 6, v{vI}\nv_lshl_add_u32 v{vXo}, v{vG}, 4, v{vXo}")
    k(f"s_mov_b32 s{sMask}, 0xffff0000")
    k(f"s_lshl_b32 s{sRow}, s{sJ}, 8\ns_add_u32 s{sRow}, s{sRow}, s2\ns_lshl_b32 s{sRow}, s{sRow}, 11")
    k(f"s_mul_i32 s{sO}, s2, {ZB_PITCH}\ns_lshl_b32 s{sL}, s{sJ}, 11")
    k(f"s_add_u32 s{sQ}, s{sL}, {WS_TCC}\ns_lshl_b32 s{sT}, s2, 11\ns_add_u32 s{sT}, s{sT}, {WS_TCS}\ns_cmp_eq_u32 s{sJ}, 7\ns_cselect_b32 s{sQ}, s{sT}, s{sQ}")
    k("s_waitcnt lgkmcnt(0)")
    k.stamp_init2(3, pWS); k.stamp()
    sSc = k.s(2)
    k(f"s_load_dwordx2 {sr(sSc,2)}, {sr(pWS,2)}, {WS_SCAL}")
    dZ = k.srd(pWS, ZB_BYTES, WS_ZB)
    k(f"s_cmp_lg_u32 s{sJ}, 0\ns_cbranch_scc1 C_no17")
    k(f"s_mov_b32 m0, 16384\ns_add_u32 s{sT}, s{sO}, 16384")
    k(f"buffer_load_dwordx4 v{vOff}, {sr(dZ,4)}, s{sT} offen lds")
    k("C_no17:")
    k(f"s_add_u32 s{sO}, s{sO}, s{sL}\ns_mov_b32 m0, s{sL}")
    k(f"buffer_load_dwordx4 v{vOff}, {sr(dZ,4)}, s{sO} offen lds")
    k(f"buffer_load_dwordx4 v{vOff}, {sr(dZ,4)}, s{sO} offen offset:1024 lds")
    dW = k.srd(pWS, WS_ZA)
    AD = k.v(12)
    k(f"s_add_u32 m0, s{sL}, {TAB}\ns_mul_i32 s{sT}, s{sJ}, 3072\ns_add_u32 s{sT}, s{sT}, {WS_TCW}")
    for q in range(3): k(f"buffer_load_dwordx4 {vr(AD+4*q,4)}, v{vOff}, {sr(dW,4)}, s{sT} offen offset:{1024*q}")
    k(f"buffer_load_dwordx4 v{vOff}, {sr(dW,4)}, s{sQ} offen lds")
    k(f"buffer_load_dwordx4 v{vOff}, {sr(dW,4)}, s{sQ} offen offset:1024 lds")
    vR1 = AD; vW1 = AD + 8; vR2 = AD + 10
    dX = k.srd(pX, 2048 * 2048)
    XP = k.v(8)
    k(f"buffer_load_dwordx4 {vr(XP,4)}, v{vXo}, {sr(dX,4)}, s{sRow} offen nt")
    k(f"buffer_load_dwordx4 {vr(XP+4,4)}, v{vXo}, {sr(dX,4)}, s{sRow} offen offset:1024 nt")
    dX1 = k.srd(pWS, 4 << 20, WS_X1); dY2 = k.srd(pWS, 4 << 20, WS_Y2)
    vMr = k.v()
    k(f"v_mad_u32_u24 v{T}, v{vG}, 18, v{vI}\nv_lshlrev_b32 v{vMr}, 4, v{T}\nv_add_u32 v{vMr}, {MOD}, v{vMr}")
    sR = k.s(); sY = k.s(); vYo = k.v()
    k(f"s_lshl_b32 s{sR}, s2, 3\ns_add_u32 s{sR}, s{sR}, s{sJ}")
    k(f"s_lshr_b32 s{sY}, s{sR}, 7\ns_lshl_b32 s{sY}, s{sY}, 18\ns_and_b32 s{sT}, s{sR}, 127\ns_lshl_b32 s{sT}, s{sT}, 7\ns_add_u32 s{sY}, s{sY}, s{sT}")
    k(f"s_bfe_u32 s{sT}, s{sR}, 0x30001\nv_and_b32 v{T}, 1, v{vI}\nv_lshl_add_u32 v{T}, v{T}, 2, v{vG}\nv_xor_b32 v{T}, s{sT}, v{T}\nv_lshlrev_b32 v{T}, 4, v{T}")
    k(f"v_lshrrev_b32 v{T+1}, 1, v{vI}\nv_lshl_add_u32 v{vYo}, v{T+1}, 14, v{T}")
    k(f"s_lshl_b32 s{sR}, s{sR}, 11")
    k.stamp()
    k("s_waitcnt vmcnt(2) lgkmcnt(0)\ns_barrier")
    k.stamp()
    OP = k.v(8); D = k.v(16); F1 = k.v(8); TW = k.v(16); F3 = k.v(32); X = k.v(16); E = k.v(16)
    k(f"ds_read_b128 {vr(F1,4)}, v{vOff} offset:{TAB+14336}\nds_read_b128 {vr(F1+4,4)}, v{vOff} offset:{TAB+15360}")
    for x in range(8): k(f"ds_read_b32 v{OP+x}, v{vR1+x}")
    k(f"s_cmp_eq_u32 s{sJ}, 7\ns_cbranch_scc1 C_nomod")
    k(f"s_add_u32 m0, s{sL}, {MOD}\ns_add_u32 s{sT}, s{sL}, {WS_MODC}")
    k(f"buffer_load_dwordx4 v{vOff}, {sr(dW,4)}, s{sT} offen lds\nbuffer_load_dwordx4 v{vOff}, {sr(dW,4)}, s{sT} offen offset:1024 lds")
    k("C_nomod:")
    sE = k.s()
    k(f"s_add_i32 s{sE}, s{sSc}, s{sSc+1}\ns_sub_i32 s{sE}, 0, s{sE}")
    for q in range(2):
        k(f"s_waitcnt lgkmcnt({4-4*q})")
        k(f"{MF} {vr(D+8*q,4)}, {vr(OP+4*q,4)}, {vr(F1,4)}, 0")
        k(f"{MF} {vr(D+8*q+4,4)}, {vr(OP+4*q,4)}, {vr(F1+4,4)}, 0")
    for q in range(4): k(f"ds_read_b128 {vr(TW+4*q,4)}, v{vOff} offset:{TAB+2048+1024*q}")
    for q in range(2):
        for v in range(4): k(f"v_cvt_pk_f16_f32 v{OP+4*q+v}, v{D+8*q+v}, v{D+8*q+4+v}")
        k(f"ds_write_b128 v{vW1+q}, {vr(OP+4*q,4)}")
    F2 = F1
    k(f"ds_read_b128 {vr(F2,4)}, v{vOff} offset:{TAB}\nds_read_b128 {vr(F2+4,4)}, v{vOff} offset:{TAB+1024}")
    k("s_waitcnt lgkmcnt(0)\ns_barrier")
    for rt in range(2):
        k(f"ds_read2st64_b32 {vr(OP+4*rt,2)}, v{vR2+rt} offset0:0 offset1:2")
        k(f"ds_read2st64_b32 {vr(OP+4*rt+2,2)}, v{vR2+rt} offset0:4 offset1:6")
    for q in (0, 1, 4, 5, 2, 3, 6, 7): k(f"ds_read_b128 {vr(F3+4*q,4)}, v{vOff} offset:{TAB+6144+1024*q}")
    def f3(ct, rt, ri): return F3 + ((ct * 2 + rt) * 2 + ri) * 4
    for rt in range(2):
        k(f"s_waitcnt lgkmcnt({10-2*rt})")
        k(f"{MF} {vr(D+8*rt,4)}, {vr(OP+4*rt,4)}, {vr(F2,4)}, 0")
        k(f"{MF} {vr(D+8*rt+4,4)}, {vr(OP+4*rt,4)}, {vr(F2+4,4)}, 0")
    for rt in range(2):
        for v in range(4):
            re = D + 8 * rt + v; im = re + 4
            cmul_tw(k, re, im, TW + 4 * rt + v, TW + 8 + 4 * rt + v, True, T + v)
            k(f"v_cvt_pk_f16_f32 v{OP+4*rt+v}, v{re}, v{im}")
        k(f"s_waitcnt lgkmcnt({4-4*rt})")
        for ct in range(2):
            for ri in range(2):
                d = E + 8 * ct + 4 * ri
                k(f"{MF} {vr(d,4)}, {vr(OP+4*rt,4)}, {vr(f3(ct,rt,ri),4)}, {vr(d,4) if rt else 0}")
    k("s_waitcnt vmcnt(0)\ns_barrier")
    k.stamp()
    GA = TW
    def mread(dst, vec):
        for ct in range(2):
            for h in range(2): k(f"ds_read_b128 {vr(dst+8*ct+4*h,4)}, v{vMr} offset:{(2*vec+ct)*MV + 73*16*h}")
    mread(GA, 0)
    SB = F3; CB = F3 + 16
    mread(CB, 2); mread(SB, 1)
    code_pf_w(k, "g1_kernel", "g2_kernel", sJ, 7, "s_and_b32 s{0}, s2, 31", vL, T + 4, AD + 2)
    pf_mall(k, pW1, pf[0], pf[1], 2, sJ, AD, T + 4)
    if l2w:
        dP = k.srd(pW1, WBYTES)
        k(f"v_lshrrev_b32 v{T+4}, 5, v0\nv_mul_u32_u24 v{T+4}, {32*7168}, v{T+4}\nv_and_b32 v{T+5}, 31, v0\nv_lshl_add_u32 v{T+4}, v{T+5}, 7, v{T+4}")
        k(f"v_cmp_lt_u32 vcc, 27, v{T+5}\nv_mov_b32 v{T+5}, {OOB}\nv_cndmask_b32 v{T+4}, v{T+4}, v{T+5}, vcc")
        k(f"s_and_b32 s{sT}, s2, 31\ns_mul_i32 s{sO}, s{sT}, 7168\ns_bfe_u32 s{sT}, s2, 0x10005\ns_mul_i32 s{sT}, s{sT}, 3584\ns_add_u32 s{sO}, s{sO}, s{sT}")
        k(f"buffer_load_dword v{AD}, v{T+4}, {sr(dP,4)}, s{sO} offen")
        if l2w > 1:
            nw = int(round((l2w - 1) * 8))
            k(f"s_add_u32 s{sO}, s{sO}, {512*7168}\ns_cmp_lt_u32 s{sJ}, {nw}\ns_cselect_b32 s{dP+2}, s{dP+2}, 0")
            k(f"buffer_load_dword v{AD+1}, v{T+4}, {sr(dP,4)}, s{sO} offen")
    unpack_bf16(k, X, XP, 8, sMask)
    def dreg(n): return E + 8 * (n >> 3) + 4 * (n & 1) + ((n & 7) >> 1)
    for n in range(16): k(f"v_ldexp_f32 v{dreg(n)}, v{dreg(n)}, s{sE}")
    for i in range(8): k(f"v_cvt_pk_bf16_f32 v{OP+i}, v{dreg(2*i)}, v{dreg(2*i+1)}")
    unpack_bf16(k, D, OP, 8, sMask)
    k("s_waitcnt lgkmcnt(8)")
    for n in range(16): k(f"v_mul_f32 v{D+n}, v{D+n}, v{GA+n}")
    for i in range(8): k(f"v_cvt_pk_bf16_f32 v{OP+i}, v{D+2*i}, v{D+2*i+1}")
    unpack_bf16(k, D, OP, 8, sMask)
    for n in range(16): k(f"v_add_f32 v{X+n}, v{X+n}, v{D+n}")
    for i in range(8): k(f"v_cvt_pk_bf16_f32 v{XP+i}, v{X+2*i}, v{X+2*i+1}")
    k(f"buffer_store_dwordx4 {vr(XP,4)}, v{vXo}, {sr(dX1,4)}, s{sR} offen {st_flags}")
    k(f"buffer_store_dwordx4 {vr(XP+4,4)}, v{vXo}, {sr(dX1,4)}, s{sR} offen offset:1024 {st_flags}")
    unpack_bf16(k, X, XP, 8, sMask)
    vSum = k.v(); vM = k.v(); vDl = k.v(); vR = k.v(); sSum = k.s()
    def layernorm(fill2):
        k(f"v_add_f32 v{vSum}, v{X}, v{X+1}\nv_add_f32 v{T}, v{X+2}, v{X+3}")
        for i in range(2, 8): k(f"v_add_f32 v{vSum}, v{vSum}, v{X+2*i}\nv_add_f32 v{T}, v{T}, v{X+2*i+1}")
        k(f"v_add_f32 v{vSum}, v{vSum}, v{T}")
        wave_reduce(k, "v_add_f32", [vSum], [sSum])
        k(f"v_mov_b32 v{vDl}, {fbits(1/1024)}\nv_mul_f32 v{vDl}, s{sSum}, v{vDl}\nv_mov_b32 v{vM}, v{vDl}")
        round_bf16(k, vM)
        k(f"v_sub_f32 v{vDl}, v{vDl}, v{vM}")
        for i in range(16): k(f"v_sub_f32 v{X+i}, v{X+i}, v{vM}")
        k(f"v_mul_f32 v{vSum}, v{X}, v{X}\nv_mul_f32 v{T}, v{X+1}, v{X+1}")
        for i in range(1, 8): k(f"v_fmac_f32 v{vSum}, v{X+2*i}, v{X+2*i}\nv_fmac_f32 v{T}, v{X+2*i+1}, v{X+2*i+1}")
        k(f"v_add_f32 v{vSum}, v{vSum}, v{T}")
        with_fill(k, cap(lambda t: wave_reduce(t, "v_add_f32", [vSum], [sSum])), fill2, 3)
        k(f"v_mov_b32 v{vR}, {fbits(1/1024)}\nv_mul_f32 v{vR}, s{sSum}, v{vR}")
        k(f"v_fma_f32 v{vR}, -v{vDl}, v{vDl}, v{vR}\nv_max_f32 v{vR}, 0, v{vR}")
        round_bf16(k, vR)
        k(f"v_add_f32 v{vR}, {fbits(1e-5)}, v{vR}")
        round_bf16(k, vR)
        k(f"v_sqrt_f32 v{vR}, v{vR}")
        round_bf16(k, vR)
        k(f"v_rcp_f32 v{vR}, v{vR}")
    k("s_waitcnt lgkmcnt(0)")
    k.stamp()
    layernorm([f"v_mul_f32 v{X+i}, v{X+i}, v{CB+i}" for i in range(16)])
    for i in range(16): k(f"v_fma_f32 v{X+i}, v{X+i}, v{vR}, v{SB+i}")
    for i in range(8): k(f"v_cvt_pk_bf16_f32 v{OP+i}, v{X+2*i}, v{X+2*i+1}")
    unpack_bf16(k, X, OP, 8, sMask)
    layernorm([])
    for i in range(16): k(f"v_mul_f32 v{X+i}, v{X+i}, v{vR}")
    for i in range(8): k(f"v_cvt_pk_bf16_f32 v{OP+i}, v{X+2*i}, v{X+2*i+1}")
    k(f"s_add_u32 s{sT}, s{sY}, {8*16384}")
    k(f"buffer_store_dwordx4 {vr(OP,4)}, v{vYo}, {sr(dY2,4)}, s{sY} offen {st_flags}")
    k(f"buffer_store_dwordx4 {vr(OP+4,4)}, v{vYo}, {sr(dY2,4)}, s{sT} offen {st_flags}")
    k.stamp()
    if k.prof: k("s_waitcnt vmcnt(0)")
    k.stamp_flush()
    k("C_end:\ns_endpgm")
    return k
```

```python
import os, sys, io, contextlib
from final import *
import kern3
with contextlib.redirect_stdout(io.StringIO()):
    make("q1.s", [K.gen_k0(), K.gen_a(), K.gen_b(pf=(0,112)), K.gen_c(pf=(28672,112)), K.gen_g1(l2w=0), K.gen_g2()])
    make("q2.s", [K.gen_k0(), K.gen_a(), K.gen_b(pf=(0,112)), K.gen_c(pf=(28672,112)), K.gen_g1(l2w=2), K.gen_g2()])
    make("q3.s", [K.gen_k0(), K.gen_a(), K.gen_b(pf=(0,224)), K.gen_c(pf=(0,112), pfa=48), K.gen_g1(l2w=2), K.gen_g2()])
    make("q4.s", [K.gen_k0(), K.gen_a(), K.gen_b(pf=(0,112)), K.gen_c(pf=(28672,112)), K.gen_g1(l2w=0), K.gen_g2(out_flags="")])
```

```python
import re, struct

TRANS = ("v_exp_f32", "v_log_f32", "v_rcp_f32", "v_rsq_f32", "v_sqrt_f32", "v_sin_f32", "v_cos_f32", "v_rcp_iflag_f32")
RMW = ("v_fmac_f32", "v_pk_fmac_f16", "v_dot2c_f32_bf16", "v_fmac_f16")

def fbits(x):
    return "0x%08x" % struct.unpack("<I", struct.pack("<f", x))[0]

_reg_re = re.compile(r"^(-|abs\(|\|)*([vsa])(\d+|\[(\d+):(\d+)\])\)?\|?$")
def parse_reg(tok):
    tok = tok.strip()
    if tok in ("vcc",): return ("s", 106, 107)
    if tok == "vcc_lo": return ("s", 106, 106)
    if tok == "vcc_hi": return ("s", 107, 107)
    if tok == "exec": return ("x", 0, 1)
    if tok == "m0": return ("m", 0, 0)
    m = _reg_re.match(tok)
    if not m: return None
    if m.group(4) is not None:
        return (m.group(2), int(m.group(4)), int(m.group(5)))
    return (m.group(2), int(m.group(3)), int(m.group(3)))

def regs(r):
    return [(r[0], i) for i in range(r[1], r[2] + 1)]

class Ins:
    def __init__(self, text):
        self.text = text
        t = text.split(";")[0].strip()
        self.label = t.endswith(":")
        self.directive = t.startswith(".")
        self.empty = (t == "")
        self.op = ""; self.dst = []; self.src = []
        self.ops = []
        if self.label or self.directive or self.empty: return
        parts = t.split(None, 1)
        self.op = parts[0]
        rest = parts[1] if len(parts) > 1 else ""
        toks = []; depth = 0; cur = ""
        for ch in rest:
            if ch in "[(": depth += 1
            if ch in "])": depth -= 1
            if ch == "," and depth == 0:
                toks.append(cur.strip()); cur = ""
            else: cur += ch
        if cur.strip(): toks.append(cur.strip())
        mods = ""
        if toks:
            sp = toks[-1].split(None, 1)
            toks[-1] = sp[0]
            mods = sp[1] if len(sp) > 1 else ""
        self.mods = mods
        self.ops = [parse_reg(x) for x in toks]
        op = self.op
        base = re.sub(r"_(e32|e64|dpp|sdwa)$", "", op)
        self.base = base
        self.is_mfma = op.startswith("v_mfma")
        self.is_valu = op.startswith("v_") and not self.is_mfma
        self.is_trans = base in TRANS
        self.is_dpp = self.is_valu and any(k in mods for k in ("row_", "quad_perm", "wave_"))
        self.is_vmem = op.startswith(("buffer_", "global_", "flat_"))
        self.is_ds = op.startswith("ds_")
        self.is_salu = op.startswith("s_")
        self.is_branch = op.startswith(("s_cbranch", "s_branch", "s_setpc", "s_swappc"))
        self.is_lds_dma = self.is_vmem and (" lds" in " " + mods or "load_lds" in op)
        R = [r for r in self.ops]
        def add(lst, r):
            if r is not None: lst.extend(regs(r))
        if self.is_mfma:
            add(self.dst, R[0]); add(self.src, R[1]); add(self.src, R[2]); add(self.src, R[3])
            self.passes = 8 if "32x32" in op else 4
        elif self.is_valu:
            if base.startswith("v_permlane") or base == "v_swap_b32":
                for r in R[:2]: add(self.dst, r); add(self.src, r)
            elif base in ("v_add_co_u32", "v_sub_co_u32", "v_subrev_co_u32", "v_addc_co_u32", "v_subb_co_u32", "v_mad_u64_u32"):
                add(self.dst, R[0]); add(self.dst, R[1])
                for r in R[2:]: add(self.src, r)
            elif base == "v_nop":
                pass
            else:
                add(self.dst, R[0])
                for r in R[1:]: add(self.src, r)
                if base in RMW or self.is_dpp or "sdwa" in op or base == "v_writelane_b32": add(self.src, R[0])
        elif self.is_vmem:
            if op.startswith(("buffer_inv", "buffer_wbl2")): pass
            elif self.is_lds_dma:
                for r in R: add(self.src, r)
                self.src.append(("m", 0))
            elif "_load" in op:
                add(self.dst, R[0])
                for r in R[1:]: add(self.src, r)
                if "d16" in op: add(self.src, R[0])
            elif "atomic" in op:
                for r in R: add(self.src, r)
                if "sc0" in mods: add(self.dst, R[0])
            else:
                for r in R: add(self.src, r)
                self.store_data = regs(R[0]) if op.startswith("buffer_") else regs(R[1])
                self.wide_store = ("x4" in op or "x3" in op)
        elif self.is_ds:
            if op.startswith(("ds_read", "ds_bpermute", "ds_permute", "ds_swizzle")):
                add(self.dst, R[0])
                for r in R[1:]: add(self.src, r)
                if "d16" in op: add(self.src, R[0])
            else:
                for r in R: add(self.src, r)
        elif self.is_salu:
            if op.startswith(("s_cmp", "s_cbranch", "s_branch", "s_waitcnt", "s_barrier", "s_nop", "s_endpgm", "s_setprio", "s_sleep", "s_bitcmp", "s_setreg")):
                for r in R: add(self.src, r)
            else:
                add(self.dst, R[0])
                for r in R[1:]: add(self.src, r)
                if "saveexec" in op: self.dst += [("x", 0), ("x", 1)]
    def states(self):
        if self.op == "s_nop":
            return int(self.text.split(";")[0].split()[1], 0) + 1
        return 1

def fix_hazards(lines):
    out = []
    pos = 0
    valu_v = {}; trans_v = {}; mfma_d = {}; valu_s = {}; m0w = [-99]; stdata = {}; mfma_c = {}
    nops = 0
    for text in lines:
        I = Ins(text)
        if I.label or I.directive or I.empty:
            out.append(text); continue
        need = 0
        def req(p, ws):
            nonlocal need
            need = max(need, p + ws + 1)
        if I.is_branch or I.op == "s_endpgm" and False:
            for d, ws in ((valu_v, 2), (valu_s, 5), (stdata, 2)):
                for p in d.values(): req(p, ws)
            for (p, passes, rng, op) in mfma_d.values(): req(p, 12 if passes == 8 else 8)
            req(m0w[0], 1)
        vsrc = [r for r in I.src if r[0] in "va"]
        vdst = [r for r in I.dst if r[0] in "va"]
        ssrc = [r for r in I.src if r[0] == "s"]
        if I.is_mfma:
            A = regs(I.ops[1]); B = regs(I.ops[2]); C = regs(I.ops[3]) if I.ops[3] else []
            for r in A + B + C:
                if r in valu_v: req(valu_v[r], 2)
            for r in A + B:
                if r in mfma_d:
                    p, passes, rng, op = mfma_d[r]; req(p, 12 if passes == 8 else 8)
            for r in C + vdst:
                if r in mfma_d:
                    p, passes, rng, op = mfma_d[r]
                    if I.ops[3] == rng and I.ops[0] == rng and op == I.op: pass
                    else: req(p, 10 if passes == 8 else 6)
        else:
            for r in vsrc + vdst:
                if r in mfma_d:
                    p, passes, rng, op = mfma_d[r]; req(p, 12 if passes == 8 else 8)
        if I.is_valu:
            for r in vdst:
                if r in mfma_c:
                    p, passes = mfma_c[r]; req(p, 7 if passes == 8 else 3)
                if r in stdata: req(stdata[r], 2)
            if not I.is_trans or True:
                for r in vsrc:
                    if r in trans_v and not I.is_trans: req(trans_v[r], 1)
            if I.is_dpp or I.base.startswith("v_permlane"):
                for r in vsrc:
                    if r in valu_v: req(valu_v[r], 2)
            if I.base in ("v_readlane_b32", "v_readfirstlane_b32"):
                for r in vsrc:
                    if r in valu_v: req(valu_v[r], 1)
                for r in ssrc:
                    if r in valu_s: req(valu_s[r], 4)
            if I.base == "v_writelane_b32":
                for r in ssrc:
                    if r in valu_s: req(valu_s[r], 4)
            for r in ssrc:
                if r in valu_s: req(valu_s[r], 2)
        if I.is_vmem or I.is_ds:
            for r in ssrc:
                if r in valu_s: req(valu_s[r], 5)
            for r in vsrc:
                if r in trans_v: req(trans_v[r], 1)
            for r in vdst:
                if r in stdata: req(stdata[r], 1)
            if I.is_lds_dma: req(m0w[0], 1)
        if I.is_salu:
            for r in ssrc:
                if r in valu_s: req(valu_s[r], 1)
        if need > pos:
            n = need - pos
            while n > 0:
                k = min(n, 16)
                out.append(f"s_nop {k-1}"); pos += k; n -= k; nops += k
        out.append(text)
        if I.is_mfma:
            for r in vdst:
                mfma_d[r] = (pos, I.passes, I.ops[0], I.op); valu_v.pop(r, None); trans_v.pop(r, None)
            if I.ops[3]:
                for r in regs(I.ops[3]): mfma_c[r] = (pos, I.passes)
        elif I.is_valu:
            for r in I.dst:
                if r[0] in "va":
                    valu_v[r] = pos; mfma_d.pop(r, None)
                    if I.is_trans: trans_v[r] = pos
                    else: trans_v.pop(r, None)
                elif r[0] == "s": valu_s[r] = pos
                elif r[0] == "x": raise Exception("VALU exec write not supported: " + text)
        else:
            for r in I.dst:
                if r[0] in "va":
                    valu_v.pop(r, None); trans_v.pop(r, None); mfma_d.pop(r, None)
                elif r[0] == "s": valu_s.pop(r, None)
                elif r[0] == "m": m0w[0] = pos
            if I.is_vmem and getattr(I, "wide_store", False):
                for r in I.store_data: stdata[r] = pos
        pos += I.states()
    return out, nops

class Kern:
    def __init__(self, name, grid, block, lds):
        self.name = name; self.grid = grid; self.block = block; self.lds = lds
        self.lines = []
        self.nv = 1; self.ns = 3
        self.maxv = 1; self.maxs = 3
        self.agpr = 0
    def __call__(self, text):
        for l in text.split("\n"):
            l = l.strip()
            if l: self.lines.append(l)
    def v(self, n=1, align=None):
        a = align or (1 if n == 1 else (2 if n == 2 else 4))
        self.nv = (self.nv + a - 1) // a * a
        r = self.nv; self.nv += n; self.maxv = max(self.maxv, self.nv)
        assert self.nv <= 256, "out of arch VGPRs"
        return r
    def s(self, n=1, align=None):
        a = align or (1 if n == 1 else (2 if n == 2 else 4))
        self.ns = (self.ns + a - 1) // a * a
        r = self.ns; self.ns += n; self.maxs = max(self.maxs, self.ns)
        assert self.ns <= 100, "out of SGPRs"
        return r
    prof = None
    def stamp_init(self, idx, pWS):
        if self.prof is None: return
        self._st = []; self._stidx = idx; self._pWS = pWS
    def stamp_init2(self, idx, pWS):
        self._stidx = idx; self._pWS = pWS
    def stampc(self):
        self.stamp(ins="s_memtime")
    stv = None
    def stamp(self, early=False, ins="s_memrealtime"):
        if self.prof is None: return
        if not hasattr(self, "_st"): self._st = []
        self.maxs = 100
        if self.stv is not None and not early:
            self.maxv = max(self.maxv, self.stv + 1)
            self(f"{ins} s[96:97]\ns_waitcnt lgkmcnt(0)\nv_writelane_b32 v{self.stv}, s96, {len(self._st)}")
            self._st.append(None)
            return
        r = 100 - 2 * (len(self._st) + 1)
        assert r >= 66
        self._st.append(r)
        self(f"{ins} s[{r}:{r+1}]")
        if not early: self("s_waitcnt lgkmcnt(0)")
    def stamp_flush(self):
        if self.prof is None: return
        self.stamp()
        d = 60
        off = (64 << 20) + self._stidx * (1 << 20)
        self(f"s_add_u32 s{d}, s{self._pWS}, {off}\ns_addc_u32 s{d+1}, s{self._pWS+1}, 0\ns_mov_b32 s{d+2}, 0x100000\ns_mov_b32 s{d+3}, 0x20000")
        self(f"v_lshrrev_b32 v1, 6, v0\nv_lshlrev_b32 v1, 7, v1\ns_lshl_b32 s64, s2, 11")
        for i, r in enumerate(self._st):
            if r is None: self(f"v_readlane_b32 s96, v{self.stv}, {i}"); r = 96
            self(f"v_mov_b32 v2, s{r}\nbuffer_store_dword v2, v1, s[{d}:{d+3}], s64 offen offset:{4*i}")
    def mark(self): return (self.nv, self.ns)
    def release(self, m): self.nv, self.ns = m
    def srd(self, ptr, nbytes, off=0):
        d = self.s(4)
        if off:
            self(f"s_add_u32 s{d}, s{ptr}, {off}\ns_addc_u32 s{d+1}, s{ptr+1}, 0")
        else:
            self(f"s_mov_b32 s{d}, s{ptr}\ns_mov_b32 s{d+1}, s{ptr+1}")
        self(f"s_mov_b32 s{d+2}, {nbytes}\ns_mov_b32 s{d+3}, 0x20000")
        return d
    def text(self):
        body, nops = fix_hazards(self.lines)
        self.nops = nops
        o = [f".p2align 8", f".globl {self.name}", f".type {self.name},@function", f"{self.name}:"]
        o += [("" if l.endswith(":") else "  ") + l for l in body]
        return "\n".join(o)
    def desc(self):
        acc = (self.maxv + 3) // 4 * 4
        nfv = acc + self.agpr if self.agpr else self.maxv
        return f""".p2align 6
.amdhsa_kernel {self.name}
  .amdhsa_next_free_vgpr {nfv}
  .amdhsa_next_free_sgpr {max(self.maxs, 16)}
  .amdhsa_accum_offset {acc}
  .amdhsa_group_segment_fixed_size 0
  .amdhsa_kernarg_size 104
  .amdhsa_user_sgpr_count 2
  .amdhsa_user_sgpr_kernarg_segment_ptr 1
  .amdhsa_system_sgpr_workgroup_id_x 1
.end_amdhsa_kernel"""
    def launch(self):
        return f"; @launch kernel={self.name} grid=({self.grid},1,1) block=({self.block},1,1) lds={self.lds}"

def vr(a, n): return f"v[{a}:{a+n-1}]" if n > 1 else f"v{a}"
def sr(a, n): return f"s[{a}:{a+n-1}]" if n > 1 else f"s{a}"
def ar(a, n): return f"a[{a}:{a+n-1}]" if n > 1 else f"a{a}"

def assemble_file(kerns, header="", order=None):
    order = order or kerns
    o = [header.rstrip()] if header else []
    o += [k.launch() for k in order]
    o.append('.amdgcn_target "amdgcn-amd-amdhsa--gfx950"')
    o.append(".text")
    for k in kerns: o.append(k.text())
    o.append("CODE_END:\n  s_endpgm")
    o.append('.section .rodata,"a"')
    for k in kerns: o.append(k.desc())
    return "\n".join(o) + "\n"
```

```python
from asmlib import *
from gemm2 import *

FLC = 32768
FLH = 65536

def spread(k, lines, extra, every):
    extra = list(extra)
    for i, l in enumerate(lines):
        k(l)
        if (i + 1) % every == 0 and extra: k(extra.pop(0))
    for e in extra: k(e)

def poll(k, name, dF, sOff, vAddr, vTmp, n):
    k(f"{name}:")
    k(f"buffer_load_dword v{vTmp}, v{vAddr}, {sr(dF,4)}, s{sOff} offen sc1")
    k("s_waitcnt vmcnt(0)")
    k(f"v_cmp_ne_u32 vcc, 1, v{vTmp}")
    k(f"s_cbranch_vccz {name}_ok\ns_sleep 1\ns_branch {name}\n{name}_ok:")

def set_flag(k, dF, sOff, vL, vA, vB):
    k(f"v_and_b32 v{vA}, 31, v{vL}\nv_lshlrev_b32 v{vA}, 2, v{vA}\nv_mov_b32 v{vB}, 1")
    k(f"buffer_store_dword v{vB}, v{vA}, {sr(dF,4)}, s{sOff} offen sc1")

CLK = False
def gen_cg(pfd=3, out_flags="sc1", npre=12, w2c=(0, 0), w1c=(0, 0), w2l=(0, 224), R1=(5, 8, 11, 14), noH=False, noW2=False, perm=True):
    TAB = C_TB + 8 * C_TP; MOD = TAB + 16384; MV = C_MV
    pre_st = [0, 1, 2] + list(R1)
    dma_st = [s for s in range(16) if s not in pre_st]
    PI = {s: i for i, s in enumerate(dma_st + pre_st if perm else range(16))}
    WR0 = 65536; WSL = 28672; YSL = 16384
    k = Kern("cg_kernel", 256, 512, 163840)
    k.stv = 255
    pX = k.s(2); pWS = k.s(2); pA = k.s(8); pO = k.s(2)
    pW1 = pA; pB1 = pA + 2; pW2 = pA + 4; pB2 = pA + 6
    k(f"s_cmp_ge_u32 s2, 256\ns_cbranch_scc1 CG_end")
    k.stamp(True)
    k(f"s_load_dwordx2 {sr(pX,2)}, s[0:1], 0")
    k(f"s_load_dwordx2 {sr(pWS,2)}, s[0:1], 96")
    k(f"s_load_dwordx8 {sr(pA,8)}, s[0:1], 32")
    k(f"s_load_dwordx2 {sr(pO,2)}, s[0:1], 80")
    vL, vI, vG, sW, T = lane_ids(k)
    sMask = k.s(); sT = k.s(); sMt = k.s(); sNt = k.s(); sWm = k.s(); sWn = k.s(); sWo = k.s(); sMw = k.s()
    vOff = k.v(); vWo = k.v(7)
    tile_map(k, 4, sMt, sNt, sT)
    k(f"s_and_b32 s{sWm}, s{sW}, 1\ns_bfe_u32 s{sWn}, s{sW}, 0x10001\ns_mov_b32 s{sMask}, 0xffff0000")
    k(f"v_lshlrev_b32 v{vOff}, 4, v{vL}")
    dW1 = k.s(4); dF = k.s(4)
    mC = k.mark()
    sJ = sW
    sS0 = k.s(); sRow = k.s(); sO = k.s(); sL = k.s(); sQ = k.s()
    vXo = k.v()
    k(f"s_lshl_b32 s{sS0}, s{sMt}, 4\ns_add_u32 s{sS0}, s{sS0}, s{sNt}")
    k(f"v_lshlrev_b32 v{vXo}, 6, v{vI}\nv_lshl_add_u32 v{vXo}, v{vG}, 4, v{vXo}")
    k(f"s_lshl_b32 s{sRow}, s{sJ}, 8\ns_add_u32 s{sRow}, s{sRow}, s{sS0}\ns_lshl_b32 s{sRow}, s{sRow}, 11")
    k(f"s_mul_i32 s{sO}, s{sS0}, {ZB_PITCH}\ns_lshl_b32 s{sL}, s{sJ}, 11")
    k(f"s_add_u32 s{sQ}, s{sL}, {WS_TCC}\ns_lshl_b32 s{sT}, s{sS0}, 11\ns_add_u32 s{sT}, s{sT}, {WS_TCS}\ns_cmp_eq_u32 s{sJ}, 7\ns_cselect_b32 s{sQ}, s{sT}, s{sQ}")
    k("s_waitcnt lgkmcnt(0)")
    k.stamp_init2(3, pWS); k.stamp()
    sSc = k.s(2)
    k(f"s_load_dwordx2 {sr(sSc,2)}, {sr(pWS,2)}, {WS_SCAL}")
    dZ = k.srd(pWS, ZB_BYTES, WS_ZB)
    k(f"s_cmp_lg_u32 s{sJ}, 0\ns_cbranch_scc1 C_no17")
    k(f"s_mov_b32 m0, 16384\ns_add_u32 s{sT}, s{sO}, 16384")
    k(f"buffer_load_dwordx4 v{vOff}, {sr(dZ,4)}, s{sT} offen lds")
    k("C_no17:")
    k(f"s_add_u32 s{sO}, s{sO}, s{sL}\ns_mov_b32 m0, s{sL}")
    k(f"buffer_load_dwordx4 v{vOff}, {sr(dZ,4)}, s{sO} offen lds")
    k(f"buffer_load_dwordx4 v{vOff}, {sr(dZ,4)}, s{sO} offen offset:1024 lds")
    dW = k.srd(pWS, WS_ZA)
    AD = k.v(12)
    k(f"s_add_u32 m0, s{sL}, {TAB}\ns_mul_i32 s{sT}, s{sJ}, 3072\ns_add_u32 s{sT}, s{sT}, {WS_TCW}")
    for q in range(3): k(f"buffer_load_dwordx4 {vr(AD+4*q,4)}, v{vOff}, {sr(dW,4)}, s{sT} offen offset:{1024*q}")
    k(f"buffer_load_dwordx4 v{vOff}, {sr(dW,4)}, s{sQ} offen lds")
    k(f"buffer_load_dwordx4 v{vOff}, {sr(dW,4)}, s{sQ} offen offset:1024 lds")
    vR1 = AD; vW1 = AD + 8; vR2 = AD + 10
    dX = k.srd(pX, 2048 * 2048)
    XP = k.v(8)
    dX1 = k.srd(pWS, 4 << 20, WS_X1); dY2 = k.srd(pWS, 4 << 20, WS_Y2)
    k(f"s_mov_b32 s{dW1}, s{pW1}\ns_mov_b32 s{dW1+1}, s{pW1+1}\ns_mov_b32 s{dW1+2}, {WBYTES}\ns_mov_b32 s{dW1+3}, 0x20000")
    k(f"s_add_u32 s{dF}, s{pWS}, {WS_FLAG}\ns_addc_u32 s{dF+1}, s{pWS+1}, 0\ns_mov_b32 s{dF+2}, {65536+262144}\ns_mov_b32 s{dF+3}, 0x20000")
    vMr = k.v()
    k(f"v_mad_u32_u24 v{T}, v{vG}, 18, v{vI}\nv_lshlrev_b32 v{vMr}, 4, v{T}\nv_add_u32 v{vMr}, {MOD}, v{vMr}")
    sR = k.s(); sY = k.s(); vYo = k.v()
    k(f"s_lshl_b32 s{sR}, s{sS0}, 3\ns_add_u32 s{sR}, s{sR}, s{sJ}")
    k(f"s_lshl_b32 s{sY}, s{sMt}, 18\ns_and_b32 s{sT}, s{sR}, 127\ns_lshl_b32 s{sT}, s{sT}, 7\ns_add_u32 s{sY}, s{sY}, s{sT}")
    k(f"s_bfe_u32 s{sT}, s{sR}, 0x30001\nv_and_b32 v{T}, 1, v{vI}\nv_lshl_add_u32 v{T}, v{T}, 2, v{vG}\nv_xor_b32 v{T}, s{sT}, v{T}\nv_lshlrev_b32 v{T}, 4, v{T}")
    k(f"v_lshrrev_b32 v{T+1}, 1, v{vI}\nv_lshl_add_u32 v{vYo}, v{T+1}, 14, v{T}")
    k(f"s_lshl_b32 s{sR}, s{sR}, 11")
    for x in range(7):
        k(f"v_add_u32 v{T}, {64*x}, v{vL}\nv_mul_u32_u24 v{T+1}, 2341, v{T}\nv_lshrrev_b32 v{T+1}, 16, v{T+1}")
        k(f"v_mul_u32_u24 v{T+2}, 28, v{T+1}\nv_sub_u32 v{T}, v{T}, v{T+2}")
        k(f"v_lshrrev_b32 v{T+2}, 2, v{T+1}\nv_and_b32 v{T+2}, 2, v{T+2}\nv_xor_b32 v{T}, v{T}, v{T+2}")
        k(f"v_mul_u32_u24 v{T+1}, 7168, v{T+1}\nv_lshl_add_u32 v{vWo+x}, v{T}, 4, v{T+1}")
    k(f"s_and_b32 s{sQ}, s{sW}, 3\ns_mul_i32 s{sWo}, s{sNt}, 448\ns_mul_i32 s{sT}, s{sQ}, {16*7168}\ns_add_u32 s{sWo}, s{sWo}, s{sT}\ns_mul_i32 s{sMw}, s{sQ}, 7168\ns_add_u32 s{sMw}, s{sMw}, {WR0}")
    k(f"buffer_load_dwordx4 {vr(XP,4)}, v{vXo}, {sr(dX,4)}, s{sRow} offen nt")
    k(f"buffer_load_dwordx4 {vr(XP+4,4)}, v{vXo}, {sr(dX,4)}, s{sRow} offen offset:1024 nt")
    k(f"s_min_u32 s{sT}, s{sL}, {6*2048}\ns_add_u32 m0, s{sT}, {MOD}\ns_add_u32 s{sT}, s{sT}, {WS_MODC}")
    k(f"buffer_load_dwordx4 v{vOff}, {sr(dW,4)}, s{sT} offen lds\nbuffer_load_dwordx4 v{vOff}, {sr(dW,4)}, s{sT} offen offset:1024 lds")
    sPw = k.s(); sPm = k.s()
    k(f"s_lshr_b32 s{sT}, s{sW}, 2\ns_mul_i32 s{sPw}, s{sT}, {64*7168}\ns_add_u32 s{sPw}, s{sPw}, {64*7168*PI[0]}\ns_add_u32 s{sPw}, s{sPw}, s{sWo}\ns_mul_i32 s{sPm}, s{sT}, {WSL}\ns_add_u32 s{sPm}, s{sPm}, s{sMw}")
    wpre = [f"s_add_u32 m0, s{sPm}, {1024*x}\ns_nop 0\nbuffer_load_dwordx4 v{vWo+x}, {sr(dW1,4)}, s{sPw} offen lds" for x in range(7)]
    k.stamp()
    k("s_waitcnt vmcnt(4) lgkmcnt(0)\ns_barrier")
    k.stamp()
    OP = k.v(8); D = k.v(16); F1 = k.v(8); TW = k.v(16); F3 = k.v(32); X = k.v(16); E = k.v(16)
    k(f"ds_read_b128 {vr(F1,4)}, v{vOff} offset:{TAB+14336}\nds_read_b128 {vr(F1+4,4)}, v{vOff} offset:{TAB+15360}")
    for x in range(8): k(f"ds_read_b32 v{OP+x}, v{vR1+x}")
    sE = k.s()
    k(f"s_add_i32 s{sE}, s{sSc}, s{sSc+1}\ns_sub_i32 s{sE}, 0, s{sE}")
    for q in range(2):
        k(f"s_waitcnt lgkmcnt({4-4*q})")
        k(f"{MF} {vr(D+8*q,4)}, {vr(OP+4*q,4)}, {vr(F1,4)}, 0")
        k(f"{MF} {vr(D+8*q+4,4)}, {vr(OP+4*q,4)}, {vr(F1+4,4)}, 0")
    for q in range(4): k(f"ds_read_b128 {vr(TW+4*q,4)}, v{vOff} offset:{TAB+2048+1024*q}")
    for q in range(2):
        for v in range(4): k(f"v_cvt_pk_f16_f32 v{OP+4*q+v}, v{D+8*q+v}, v{D+8*q+4+v}")
        k(f"ds_write_b128 v{vW1+q}, {vr(OP+4*q,4)}")
    F2 = F1
    k(f"ds_read_b128 {vr(F2,4)}, v{vOff} offset:{TAB}\nds_read_b128 {vr(F2+4,4)}, v{vOff} offset:{TAB+1024}")
    k("s_waitcnt vmcnt(0) lgkmcnt(0)\ns_barrier")
    for rt in range(2):
        k(f"ds_read2st64_b32 {vr(OP+4*rt,2)}, v{vR2+rt} offset0:0 offset1:2")
        k(f"ds_read2st64_b32 {vr(OP+4*rt+2,2)}, v{vR2+rt} offset0:4 offset1:6")
    for q in (0, 1, 4, 5, 2, 3, 6, 7): k(f"ds_read_b128 {vr(F3+4*q,4)}, v{vOff} offset:{TAB+6144+1024*q}")
    pf_uni(k, pW1, w1c[0], w1c[1], 2, sW, vL, AD + 1, T + 4)
    pf_uni(k, pW2, w2c[0], w2c[1], 2, sW, vL, AD, T + 4)
    k(wpre.pop(0)); k(wpre.pop(0))
    def f3(ct, rt, ri): return F3 + ((ct * 2 + rt) * 2 + ri) * 4
    for rt in range(2):
        k(f"s_waitcnt lgkmcnt({10-2*rt})")
        k(f"{MF} {vr(D+8*rt,4)}, {vr(OP+4*rt,4)}, {vr(F2,4)}, 0")
        k(f"{MF} {vr(D+8*rt+4,4)}, {vr(OP+4*rt,4)}, {vr(F2+4,4)}, 0")
    unpack_bf16(k, X, XP, 8, sMask)
    for rt in range(2):
        for v in range(4):
            re = D + 8 * rt + v; im = re + 4
            cmul_tw(k, re, im, TW + 4 * rt + v, TW + 8 + 4 * rt + v, True, T + v)
            k(f"v_cvt_pk_f16_f32 v{OP+4*rt+v}, v{re}, v{im}")
        k(f"s_waitcnt lgkmcnt({4-4*rt})")
        for ct in range(2):
            for ri in range(2):
                d = E + 8 * ct + 4 * ri
                k(f"{MF} {vr(d,4)}, {vr(OP+4*rt,4)}, {vr(f3(ct,rt,ri),4)}, {vr(d,4) if rt else 0}")
    k.stamp()
    GA = TW; SB = F3; CB = F3 + 16
    def mread(dst, vec):
        for ct in range(2):
            for h in range(2): k(f"ds_read_b128 {vr(dst+8*ct+4*h,4)}, v{vMr} offset:{(2*vec+ct)*MV + 73*16*h}")
    mread(GA, 0); k(wpre.pop(0)); mread(CB, 2); mread(SB, 1)
    def dreg(n): return E + 8 * (n >> 3) + 4 * (n & 1) + ((n & 7) >> 1)
    for n in range(16): k(f"v_ldexp_f32 v{dreg(n)}, v{dreg(n)}, s{sE}")
    for i in range(8): k(f"v_cvt_pk_bf16_f32 v{OP+i}, v{dreg(2*i)}, v{dreg(2*i+1)}")
    unpack_bf16(k, D, OP, 8, sMask)
    k(wpre.pop(0))
    k("s_waitcnt lgkmcnt(8)")
    for n in range(16): k(f"v_mul_f32 v{D+n}, v{D+n}, v{GA+n}")
    for i in range(8): k(f"v_cvt_pk_bf16_f32 v{OP+i}, v{D+2*i}, v{D+2*i+1}")
    unpack_bf16(k, D, OP, 8, sMask)
    k(wpre.pop(0))
    for n in range(16): k(f"v_add_f32 v{X+n}, v{X+n}, v{D+n}")
    for i in range(8): k(f"v_cvt_pk_bf16_f32 v{XP+i}, v{X+2*i}, v{X+2*i+1}")
    k(f"buffer_store_dwordx4 {vr(XP,4)}, v{vXo}, {sr(dX1,4)}, s{sR} offen sc1")
    k(f"buffer_store_dwordx4 {vr(XP+4,4)}, v{vXo}, {sr(dX1,4)}, s{sR} offen offset:1024 sc1")
    unpack_bf16(k, X, XP, 8, sMask)
    vSum = k.v(); vM = k.v(); vDl = k.v(); vR = k.v(); sSum = k.s()
    def layernorm(fill1, fill2):
        k(f"v_add_f32 v{vSum}, v{X}, v{X+1}\nv_add_f32 v{T}, v{X+2}, v{X+3}")
        for i in range(2, 8): k(f"v_add_f32 v{vSum}, v{vSum}, v{X+2*i}\nv_add_f32 v{T}, v{T}, v{X+2*i+1}")
        k(f"v_add_f32 v{vSum}, v{vSum}, v{T}")
        with_fill(k, cap(lambda t: wave_reduce(t, "v_add_f32", [vSum], [sSum])), fill1, 1)
        k(f"v_mov_b32 v{vDl}, {fbits(1/1024)}\nv_mul_f32 v{vDl}, s{sSum}, v{vDl}\nv_mov_b32 v{vM}, v{vDl}")
        round_bf16(k, vM)
        k(f"v_sub_f32 v{vDl}, v{vDl}, v{vM}")
        for i in range(16): k(f"v_sub_f32 v{X+i}, v{X+i}, v{vM}")
        k(f"v_mul_f32 v{vSum}, v{X}, v{X}\nv_mul_f32 v{T}, v{X+1}, v{X+1}")
        for i in range(1, 8): k(f"v_fmac_f32 v{vSum}, v{X+2*i}, v{X+2*i}\nv_fmac_f32 v{T}, v{X+2*i+1}, v{X+2*i+1}")
        k(f"v_add_f32 v{vSum}, v{vSum}, v{T}")
        with_fill(k, cap(lambda t: wave_reduce(t, "v_add_f32", [vSum], [sSum])), fill2, 3)
        k(f"v_mov_b32 v{vR}, {fbits(1/1024)}\nv_mul_f32 v{vR}, s{sSum}, v{vR}")
        k(f"v_fma_f32 v{vR}, -v{vDl}, v{vDl}, v{vR}\nv_max_f32 v{vR}, 0, v{vR}")
        round_bf16(k, vR)
        k(f"v_add_f32 v{vR}, {fbits(1e-5)}, v{vR}")
        round_bf16(k, vR)
        k(f"v_sqrt_f32 v{vR}, v{vR}")
        round_bf16(k, vR)
        k(f"v_rcp_f32 v{vR}, v{vR}")
    k("s_waitcnt lgkmcnt(0)")
    layernorm([wpre.pop(0)], [f"v_mul_f32 v{X+i}, v{X+i}, v{CB+i}" for i in range(16)])
    k(wpre.pop(0))
    for i in range(16): k(f"v_fma_f32 v{X+i}, v{X+i}, v{vR}, v{SB+i}")
    for i in range(8): k(f"v_cvt_pk_bf16_f32 v{OP+i}, v{X+2*i}, v{X+2*i+1}")
    unpack_bf16(k, X, OP, 8, sMask)
    layernorm([], [])
    for i in range(16): k(f"v_mul_f32 v{X+i}, v{X+i}, v{vR}")
    for i in range(8): k(f"v_cvt_pk_bf16_f32 v{OP+i}, v{X+2*i}, v{X+2*i+1}")
    k(f"s_add_u32 s{sT}, s{sY}, {8*16384}")
    k(f"buffer_store_dwordx4 {vr(OP,4)}, v{vYo}, {sr(dY2,4)}, s{sY} offen sc1")
    k(f"buffer_store_dwordx4 {vr(OP+4,4)}, v{vYo}, {sr(dY2,4)}, s{sT} offen sc1")
    k.stamp()
    k.release(mC)
    NS = 16; NB = 3
    k("s_waitcnt vmcnt(0)\ns_barrier")
    k(f"s_cmp_ge_u32 s{sW}, 4\ns_cbranch_scc1 CG_loader")
    m0 = k.mark()
    k.stamp()
    assert PI[1] == PI[0] + 1
    k(f"s_add_u32 s{sT}, s{sWo}, {PI[2]*64*7168}")
    for x in range(7): k(f"s_add_u32 m0, s{sMw}, {2*WSL+1024*x}\nbuffer_load_dwordx4 v{vWo+x}, {sr(dW1,4)}, s{sT} offen lds")
    m1 = k.mark()
    vBo = k.v(); sB0 = k.s(); sB6 = k.s()
    k(f"v_lshlrev_b32 v{vBo}, 3, v{vG}")
    k(f"s_mul_i32 s{sB0}, s{sNt}, 448\ns_lshl_b32 s{sT}, s{sWn}, 5\ns_add_u32 s{sB6}, s{sB0}, s{sT}\ns_mul_i32 s{sT}, s{sWn}, 192\ns_add_u32 s{sB0}, s{sB0}, s{sT}")
    dB = k.srd(pB1, 3584 * 2)
    ACC = k.v(112); FR = [k.v(44), k.v(44)]
    BP = FR[1]
    for t in range(7):
        if t < 6: k(f"buffer_load_dwordx2 {vr(BP+2*t,2)}, v{vBo}, {sr(dB,4)}, s{sB0} offen offset:{32*t}")
        else: k(f"buffer_load_dwordx2 {vr(BP+2*t,2)}, v{vBo}, {sr(dB,4)}, s{sB6} offen offset:{32*12}")
    def acc(t, mt): return ACC + (mt * 7 + t) * 4
    vPf = vWo; vDum = vWo + 1; sPf = k.s()
    dP = k.srd(pW2, WBYTES)
    nl = w2l[1] // 8
    k(f"v_lshlrev_b32 v{vPf}, 7, v{vL}\nv_cmp_gt_u32 vcc, {nl}, v{vL}\nv_mov_b32 v{T}, {OOB}\nv_cndmask_b32 v{vPf}, v{T}, v{vPf}, vcc")
    k(f"s_lshl_b32 s{sPf}, s2, 2\ns_add_u32 s{sPf}, s{sPf}, s{sW}\ns_mul_i32 s{sPf}, s{sPf}, {nl*128}\ns_add_u32 s{sPf}, s{sPf}, {w2l[0]*128}")
    pfi = f"buffer_load_dword v{vDum}, v{vPf}, {sr(dP,4)}, s{sPf} offen\ns_add_u32 s{sPf}, s{sPf}, {1024*nl*128}"
    vY = k.v(2); vWa = k.v(3 * NB)
    k(f"v_lshrrev_b32 v{T}, 1, v{vI}\nv_xor_b32 v{T}, v{T}, v{vG}\nv_lshlrev_b32 v{T}, 4, v{T}\nv_lshl_add_u32 v{T}, v{vI}, 7, v{T}")
    k(f"s_lshl_b32 s{sT}, s{sWm}, 13\nv_add_u32 v{vY}, s{sT}, v{T}\nv_xor_b32 v{vY+1}, 64, v{vY}")
    k(f"v_lshrrev_b32 v{T}, 2, v{vI}\nv_lshl_add_u32 v{T}, v{vG}, 3, v{T}\nv_mul_u32_u24 v{T}, 448, v{T}")
    k(f"v_and_b32 v{T+1}, 3, v{vI}\nv_lshl_add_u32 v{T}, v{T+1}, 3, v{T}")
    k(f"v_and_b32 v{T+1}, 1, v{vG}\nv_lshlrev_b32 v{T+1}, 5, v{T+1}")
    k(f"s_mul_i32 s{sT}, s{sWn}, 192\nv_add_u32 v{T+2}, s{sT}, v{T}")
    for b in range(NB):
        k(f"v_add_u32 v{T+3}, {WR0+b*WSL}, v{T+2}\nv_add_u32 v{vWa+3*b}, v{T+3}, v{T+1}\nv_sub_u32 v{vWa+3*b+1}, v{T+3}, v{T+1}")
    k(f"s_lshl_b32 s{sT}, s{sWn}, 5\nv_xor_b32 v{T+1}, s{sT}, v{T+1}\nv_add_u32 v{T+2}, v{T}, v{T+1}")
    for b in range(NB): k(f"v_add_u32 v{vWa+3*b+2}, {WR0+b*WSL+12*32}, v{T+2}")
    k("s_waitcnt vmcnt(0)")
    for t in range(7): unpack_bf16(k, acc(t, 3), BP + 2 * t, 2, sMask)
    k(f"s_cmp_lg_u32 s{sW}, 0\ns_cbranch_scc1 CG_np1")
    k(f"s_lshl_b32 s{sB0}, s{sMt}, 11\ns_add_u32 s{sB0}, s{sB0}, {FLC}\nv_lshlrev_b32 v{T+2}, 7, v{vI}")
    poll(k, "CG_p1", dF, sB0, T + 2, T + 3, 16)
    k("CG_np1:\ns_barrier")
    def reads(s, ks, F):
        b = s % NB
        yy = [f"ds_read_b128 {vr(F+28+4*mt,4)}, v{vY+ks} offset:{b*YSL+2048*mt}" for mt in range(4)]
        ww = []
        for t in range(7):
            a = vWa + 3 * b + (2 if t == 6 else (t & 1))
            off = (0 if t == 6 else 32 * t) + ks * 32 * 448
            ww.append(f"ds_read_b64_tr_b16 {vr(F+4*t,2)}, v{a} offset:{off}")
            ww.append(f"ds_read_b64_tr_b16 {vr(F+4*t+2,2)}, v{a} offset:{off+4*448}")
        return yy[:1] + ww + yy[1:]
    def mfmas(F, first):
        return [f"{MB} {vr(acc(t,mt),4)}, {vr(F+4*t,4)}, {vr(F+28+4*mt,4)}, {vr(acc(t,3),4) if first else vr(acc(t,mt),4)}" for mt in range(4) for t in range(7)]
    k.stamp()
    k("s_barrier")
    if CLK: k._st = k._st[:1]
    k.stamp()
    if CLK: k.stampc()
    for l in reads(0, 0, FR[0]): k(l)
    for s in range(NS):
        k("s_waitcnt lgkmcnt(0)")
        fl = reads(s, 1, FR[1])
        if pfd and s in (pfd, pfd + 5): fl = fl + [pfi]
        interleave(k, mfmas(FR[0], s == 0), fl)
        k("s_waitcnt lgkmcnt(0)\ns_barrier")
        if s + 1 < NS: interleave(k, mfmas(FR[1], False), reads(s + 1, 0, FR[0]))
        else:
            for l in mfmas(FR[1], False): k(l)
    k.stamp()
    if CLK: k.stampc()
    k("CG_epi1:")
    c1 = -2.0 * LOG2E * math.sqrt(2 / math.pi); c2 = c1 * 0.044715
    CC = FR[0]; E = FR[0] + 8; vHw = vWa; sU2 = sB0
    k(f"v_mov_b32 v{CC}, {fbits(c1)}\nv_mov_b32 v{CC+1}, {fbits(c1)}\nv_mov_b32 v{CC+2}, {fbits(c2)}\nv_mov_b32 v{CC+3}, {fbits(c2)}\nv_mov_b32 v{CC+4}, 1.0\nv_mov_b32 v{CC+5}, 1.0")
    for pr in range(3):
        k(f"s_mul_i32 s{sT}, s{sWn}, 3\ns_add_u32 s{sT}, s{sT}, {pr}\ns_lshr_b32 s{sU2}, s{sT}, 1\ns_lshl_b32 s{sU2}, s{sU2}, 15\ns_and_b32 s{sT}, s{sT}, 1\ns_lshl_b32 s{sT}, s{sT}, 13\ns_add_u32 s{sU2}, s{sU2}, s{sT}")
        k(f"s_lshl_b32 s{sT}, s{sWm}, 12\ns_add_u32 s{sU2}, s{sU2}, s{sT}\nv_add_u32 v{vHw+pr}, s{sU2}, v{vOff}")
    k(f"s_lshl_b32 s{sT}, s{sWm}, 12\ns_lshl_b32 s{sU2}, s{sWn}, 3\ns_add_u32 s{sT}, s{sT}, s{sU2}\ns_add_u32 s{sT}, s{sT}, {3*32768}\nv_add_u32 v{vHw+3}, s{sT}, v{vOff}")
    def gelu_pk(src, e):
        n = len(src) // 2
        P2 = lambda r: vr(r, 2)
        for x in range(n): k(f"v_pk_mul_f32 {P2(e+2*x)}, {P2(src[2*x])}, {P2(src[2*x])}")
        for x in range(n): k(f"v_pk_fma_f32 {P2(e+2*x)}, {P2(e+2*x)}, {P2(CC+2)}, {P2(CC)}")
        for x in range(n): k(f"v_pk_mul_f32 {P2(e+2*x)}, {P2(e+2*x)}, {P2(src[2*x])}")
        for x in range(2 * n): k(f"v_exp_f32 v{e+x}, v{e+x}")
        for x in range(n): k(f"v_pk_add_f32 {P2(e+2*x)}, {P2(e+2*x)}, {P2(CC+4)}")
        for x in range(2 * n): k(f"v_rcp_f32 v{e+x}, v{e+x}")
        for x in range(n): k(f"v_pk_mul_f32 {P2(e+2*x)}, {P2(e+2*x)}, {P2(src[2*x])}")
        for x in range(n): k(f"v_cvt_pk_bf16_f32 v{e+x}, v{e+2*x}, v{e+2*x+1}")
    for pr in range(3):
        for hh in range(2):
            e = E + 16 * hh
            gelu_pk([acc(2 * pr, mt) + x for mt in (2 * hh, 2 * hh + 1) for x in range(8)], e)
            for u in range(2): k(f"ds_write_b128 v{vHw+pr}, {vr(e+4*u,4)} offset:{1024*(2*hh+u)}")
        if pr < 2: k("s_waitcnt lgkmcnt(0)\ns_barrier")
    gelu_pk([acc(6, mt) + x for mt in range(4) for x in range(4)], E)
    for mt in range(4): k(f"ds_write_b64 v{vHw+3}, {vr(E+2*mt,2)} offset:{1024*mt}")
    k.stamp()
    k.release(m1)
    NS2 = 28; NB2 = 5; BUF = 32768; NH = 3
    sKh = k.s(); sN2 = k.s()
    k(f"s_lshr_b32 s{sKh}, s{sNt}, 3\ns_and_b32 s{sN2}, s{sNt}, 7")
    ACC = k.v(64); vH = k.v(2 * NH); vWa = k.v(4 * NH)
    vXo = k.v(); vOo = k.v(); vNo = k.v(); v4k = k.v()
    def acc(t, ms): return ACC + (ms * 4 + t) * 4
    for sp in range(2):
        k(f"s_xor_b32 s{sT}, s{sKh}, {sp}\ns_lshl_b32 s{sT}, s{sT}, 11\ns_lshl_b32 s{sN2}, s{sWm}, 12\ns_add_u32 s{sT}, s{sT}, s{sN2}\nv_add_u32 v{vH+sp}, s{sT}, v{vOff}")
    k(f"v_lshrrev_b32 v{T}, 2, v{vL}\nv_and_b32 v{T+1}, 7, v{T}\nv_lshlrev_b32 v{T}, 8, v{T}")
    k(f"v_and_b32 v{T+2}, 3, v{vI}\nv_lshl_add_u32 v{T}, v{T+2}, 3, v{T}\nv_add_u32 v{T}, 16384, v{T}")
    k(f"s_lshl_b32 s{sT}, s{sWn}, 2\nv_xor_b32 v{T+1}, s{sT}, v{T+1}")
    for t in range(4): k(f"v_xor_b32 v{T+2}, {t}, v{T+1}\nv_lshl_add_u32 v{vWa+t}, v{T+2}, 5, v{T}")
    FR = [k.v(32), k.v(32)]
    XP = k.v(16); GP = k.v(8); BP = k.v(8)
    sX = k.s(); sN = k.s(); sOo = k.s(); sR = k.s()
    sX2 = k.s(); sPs = k.s(); sPr = k.s(); sFs = k.s(); sFr = k.s()
    n0 = len(k.lines)
    for hh in range(1, NH):
        for sp in range(2): k(f"v_add_u32 v{vH+2*hh+sp}, {65536*hh}, v{vH+sp}")
        for t in range(4): k(f"v_add_u32 v{vWa+4*hh+t}, {65536*hh}, v{vWa+t}")
    k(f"v_and_b32 v{T}, 1, v{vG}\nv_lshlrev_b32 v{T}, 5, v{T}\nv_lshrrev_b32 v{T+1}, 1, v{vG}\nv_lshl_add_u32 v{vNo}, v{T+1}, 4, v{T}")
    k(f"v_lshl_add_u32 v{vXo}, v{vI}, 11, v{vNo}")
    k(f"v_and_b32 v{T}, 7, v{vI}\nv_lshlrev_b32 v{T}, 19, v{T}\nv_lshrrev_b32 v{T+1}, 3, v{vI}\nv_lshl_add_u32 v{T}, v{T+1}, 11, v{T}\nv_add_u32 v{vOo}, v{T}, v{vNo}")
    k(f"v_add_u32 v{v4k}, 4096, v{vOff}")
    dB = k.srd(pB2, 2048); dM = k.srd(pWS, 2048, WS_GB); dX1 = k.srd(pWS, 4 << 20, WS_X1); dO = k.srd(pO, 4 << 20)
    dPa = k.srd(pWS, 256 * 32768, WS_PART)
    k(f"s_and_b32 s{sN2}, s{sNt}, 7\ns_lshl_b32 s{sN}, s{sN2}, 8\ns_lshl_b32 s{sT}, s{sWn}, 7\ns_add_u32 s{sN}, s{sN}, s{sT}")
    k(f"s_lshl_b32 s{sR}, s{sMt}, 2\ns_lshl_b32 s{sT}, s{sWm}, 1\ns_add_u32 s{sR}, s{sR}, s{sT}\ns_add_u32 s{sR}, s{sR}, s{sKh}")
    k(f"s_lshl_b32 s{sX}, s{sR}, 16\ns_add_u32 s{sX}, s{sX}, s{sN}\ns_lshl_b32 s{sOo}, s{sR}, 13\ns_add_u32 s{sOo}, s{sOo}, s{sN}")
    k(f"s_add_u32 s{sX2}, s{sX}, 32768")
    k(f"s_lshl_b32 s{sFs}, s2, 2\ns_add_u32 s{sFs}, s{sFs}, s{sW}\ns_xor_b32 s{sFr}, s{sFs}, 16")
    k(f"s_lshl_b32 s{sPs}, s{sFs}, 13\ns_lshl_b32 s{sPr}, s{sFr}, 13\ns_lshl_b32 s{sFs}, s2, 7\ns_xor_b32 s{sFr}, s{sFs}, 512")
    lazy = k.lines[n0:]; del k.lines[n0:]
    epi = [f"buffer_load_dwordx4 {vr(XP+8*ms+4*P,4)}, v{vXo}, {sr(dX1,4)}, s{sX2 if ms else sX} offen offset:{64*P} sc1" for ms in range(2) for P in range(2)]
    epi += [f"buffer_load_dwordx4 {vr(GP+4*P,4)}, v{vNo}, {sr(dM,4)}, s{sN} offen offset:{64*P}" for P in range(2)]
    epi += [f"buffer_load_dwordx4 {vr(BP+4*P,4)}, v{vNo}, {sr(dB,4)}, s{sN} offen offset:{64*P}" for P in range(2)]
    def reads2(s, ks, F):
        b = s % NB2; hh = b >> 1; o = (b & 1) * BUF
        hr = [f"ds_read_b128 {vr(F+16+4*ms,4)}, v{vH+2*hh+(ms>>1)} offset:{o + 8192*ks + 1024*(ms&1)}" for ms in range(4)]
        ww = [f"ds_read_b64_tr_b16 {vr(F+4*t+2*hf,2)}, v{vWa+4*hh+t} offset:{o + 8192*ks + 4096*hf}" for t in range(4) for hf in range(2)]
        return hr[:1] + ww + hr[1:]
    def mfmas2(F, first):
        return [f"{MB} {vr(acc(t,ms),4)}, {vr(F+4*t,4)}, {vr(F+16+4*ms,4)}, {'0' if first else vr(acc(t,ms),4)}" for ms in range(4) for t in range(4)]
    k("s_waitcnt lgkmcnt(0)\ns_barrier")
    k.stamp()
    if CLK: k.stampc()
    for l in reads2(0, 0, FR[0]): k(l)
    for s in range(NS2):
        k("s_waitcnt lgkmcnt(0)")
        fl = reads2(s, 1, FR[1])
        if lazy: fl = fl + ["\n".join(lazy[0:2]), "\n".join(lazy[2:4]), "\n".join(lazy[4:6]), "\n".join(lazy[6:8])]; del lazy[:8]
        if s >= NS2 - 9 and epi: fl = fl + [epi.pop(0)]
        interleave(k, mfmas2(FR[0], s == 0), fl)
        k("s_waitcnt lgkmcnt(0)")
        if s + 1 < NS2:
            if s + 1 >= 2: k("s_barrier")
            if CLK and s + 1 == 6: k.stamp(); k.stampc()
            interleave(k, mfmas2(FR[1], False), reads2(s + 1, 0, FR[0]))
        else:
            mm = mfmas2(FR[1], False)
            for l in mm[8:] + mm[:8]: k(l)
    k.stamp()
    if CLK: k.stampc()
    k("CG_epi2:")
    for q in range(8):
        k(f"buffer_store_dwordx4 {vr(ACC+32+4*q,4)}, v{v4k if q >= 4 else vOff}, {sr(dPa,4)}, s{sPs} offen offset:{1024*(q&3)} sc1")
    k("s_waitcnt vmcnt(8)")
    for base in (XP, XP + 4, XP + 8, XP + 12, GP, GP + 4, BP, BP + 4):
        k(f"v_permlane16_swap_b32 v{base}, v{base+2}\nv_permlane16_swap_b32 v{base+1}, v{base+3}")
    GB = FR[0]; B2 = FR[0] + 16; X = FR[1]
    unpack_bf16(k, GB, GP, 8, sMask); unpack_bf16(k, B2, BP, 8, sMask); unpack_bf16(k, X, XP, 16, sMask)
    for ms in range(2):
        for e in range(16): k(f"v_add_f32 v{ACC+16*ms+e}, v{ACC+16*ms+e}, v{B2+e}")
    k("s_waitcnt vmcnt(0)\ns_barrier")
    k(f"s_cmp_lg_u32 s{sW}, 0\ns_cbranch_scc1 CG_w3")
    set_flag(k, dF, sFs, vL, T, T + 1)
    k(f"v_mov_b32 v{T+3}, 0")
    poll(k, "CG_p3", dF, sFr, T + 3, T + 2, 1)
    k("CG_w3:\ns_barrier")
    k.stamp()
    for q in range(8):
        k(f"buffer_load_dwordx4 {vr(ACC+32+4*q,4)}, v{v4k if q >= 4 else vOff}, {sr(dPa,4)}, s{sPr} offen offset:{1024*(q&3)} sc1")
    for ms in range(2):
        k(f"s_waitcnt vmcnt({4 if ms == 0 else 2})")
        for e in range(16): k(f"v_add_f32 v{ACC+16*ms+e}, v{ACC+16*ms+e}, v{ACC+32+16*ms+e}")
        for e in range(16): k(f"v_fma_f32 v{X+16*ms+e}, v{ACC+16*ms+e}, v{GB+e}, v{X+16*ms+e}")
        for e in range(8): k(f"v_cvt_pk_bf16_f32 v{XP+8*ms+e}, v{X+16*ms+2*e}, v{X+16*ms+2*e+1}")
        for P in range(2):
            b = XP + 8 * ms + 4 * P
            k(f"v_permlane16_swap_b32 v{b}, v{b+2}\nv_permlane16_swap_b32 v{b+1}, v{b+3}")
        if ms: k(f"s_add_u32 s{sOo}, s{sOo}, 4096")
        for P in range(2):
            k(f"buffer_store_dwordx4 {vr(XP+8*ms+4*P,4)}, v{vOo}, {sr(dO,4)}, s{sOo} offen offset:{64*P} {out_flags}")
    if k.prof: k("s_waitcnt vmcnt(0)")
    k.stamp_flush()
    k("s_endpgm")
    k.release(m0)
    k("CG_loader:")
    if k.prof: k._st = k._st[:6]; k._stidx = 4
    k.stamp()
    sLw = k.s(); sY = k.s(); sYq = k.s(); sMy = k.s(); sFo = k.s()
    k(f"s_sub_u32 s{sLw}, s{sW}, 4")
    k(f"s_cmp_lg_u32 s{sLw}, 0\ns_cbranch_scc1 CG_nf1")
    k(f"s_lshl_b32 s{sFo}, s{sMt}, 11\ns_lshl_b32 s{sT}, s{sNt}, 7\ns_add_u32 s{sT}, s{sT}, s{sFo}\ns_add_u32 s{sT}, s{sT}, {FLC}")
    set_flag(k, dF, sT, vL, T, T + 1)
    k("CG_nf1:")
    RW = k.v(112); CP = k.v(24)
    ops = []
    def vm(line, tag): k(line); ops.append(tag)
    def need(tags):
        last = max([i for i, t in enumerate(ops) if t in tags], default=-1)
        return min(63, len(ops) - 1 - last)
    for j, t in enumerate(R1):
        k(f"s_add_u32 s{sT}, s{sWo}, {64*7168*PI[t]}")
        for x in range(7): vm(f"buffer_load_dwordx4 {vr(RW+28*j+4*x,4)}, v{vWo+x}, {sr(dW1,4)}, s{sT} offen", ("rw", t))
    k(f"s_lshl_b32 s{sY}, s{sMt}, 18\ns_lshl_b32 s{sMy}, s{sLw}, 12\ns_add_u32 s{sY}, s{sY}, s{sMy}")
    dY = k.srd(pWS, 4 << 20, WS_Y2)
    vW2 = k.v(2); vLw = k.v(); vCp = k.v(2)
    sHb = k.s(); sWb = k.s(); sK0 = k.s(); sA = k.s(); sHo = k.s()
    dH = k.srd(pWS, 2048 * 3584 * 2, WS_H)
    k(f"v_add_u32 v{vLw}, s{sMw}, v{vOff}")
    k(f"s_lshl_b32 s{sT}, s{sLw}, 11\nv_add_u32 v{vCp}, s{sT}, v{vOff}\nv_add_u32 v{vCp+1}, 65536, v{vCp}")
    k(f"s_mul_i32 s{sHo}, s{sMt}, {112*8192}\ns_mul_i32 s{sT}, s{sNt}, {7*8192}\ns_add_u32 s{sHo}, s{sHo}, s{sT}")
    for par in range(2):
        k(f"v_add_u32 v{T}, {4*par}, v{vG}\nv_lshlrev_b32 v{T}, 1, v{T}\nv_xor_b32 v{T}, v{T}, v{vI}\nv_lshlrev_b32 v{T}, 4, v{T}\nv_lshl_add_u32 v{vW2+par}, v{vG}, 11, v{T}")
    k(f"s_lshr_b32 s{sA}, s{sNt}, 3\ns_mul_i32 s{sHb}, s{sMt}, {112*8192}\ns_mul_i32 s{sT}, s{sA}, {56*8192}\ns_add_u32 s{sHb}, s{sHb}, s{sT}\ns_lshl_b32 s{sT}, s{sWm}, 12\ns_add_u32 s{sHb}, s{sHb}, s{sT}")
    k(f"s_mul_i32 s{sWb}, s{sA}, {1792*2048}\ns_and_b32 s{sA}, s{sNt}, 7\ns_lshl_b32 s{sT}, s{sA}, 8\ns_add_u32 s{sWb}, s{sWb}, s{sT}\ns_lshl_b32 s{sT}, s{sWm}, 15\ns_add_u32 s{sWb}, s{sWb}, s{sT}")
    k(f"s_mul_i32 s{sK0}, s{sA}, 7\ns_add_u32 s{sK0}, s{sK0}, s{sWn}")
    dW2 = k.srd(pW2, WBYTES)
    k("s_barrier")
    k.stamp()
    def issue_y(s):
        k(f"s_add_u32 s{sYq}, s{sY}, {16384*PI[s]}\ns_add_u32 m0, s{sMy}, {(s%NB)*YSL}")
        for x in range(4): vm(f"buffer_load_dwordx4 v{vOff}, {sr(dY,4)}, s{sYq} offen offset:{1024*x} sc1 lds", ("s1", s))
    def issue_w(s):
        if s in R1:
            j = R1.index(s)
            k(f"s_waitcnt vmcnt({need([('rw', s)])})")
            for x in range(7): k(f"ds_write_b128 v{vLw}, {vr(RW+28*j+4*x,4)} offset:{(s%NB)*WSL + 1024*x}")
            return
        k(f"s_add_u32 s{sT}, s{sWo}, {64*7168*PI[s]}")
        for x in range(7):
            k(f"s_add_u32 m0, s{sMw}, {(s%NB)*WSL + 1024*x}")
            vm(f"buffer_load_dwordx4 v{vWo+x}, {sr(dW1,4)}, s{sT} offen lds", ("s1", s))
    sO7 = k.s()
    k(f"s_sub_u32 s{sO7}, s{sK0}, s{sWn}")
    pos = [None] * 7 + [7 * q + c for q in range(7) for c in (0, 3)] + [7 * q + c for q in range(7) for c in (1, 2, 4, 5, 6)]
    def kap(t, sh, base):
        j0, j1 = pos[2 * t], pos[2 * t + 1]
        if j1 is None: r = f"s_add_u32 s{sA}, s{sK0}, {2*t}\n"
        else:
            r = f"s_cmp_eq_u32 s{sWn}, 0\ns_cselect_b32 s{sA}, {j0 or 0}, {j1}\ns_cmp_ge_u32 s{sA}, s{sO7}\ns_cselect_b32 s{sYq}, 7, 0\ns_add_u32 s{sA}, s{sA}, s{sYq}\n"
            if j0 is None: r += f"s_add_u32 s{sYq}, s{sO7}, 6\ns_cmp_eq_u32 s{sWn}, 0\ns_cselect_b32 s{sA}, s{sYq}, s{sA}\n"
        return r + f"s_lshl_b32 s{sA}, s{sA}, {sh}\ns_add_u32 s{sA}, s{sA}, s{base}\n"
    def w2_items(t):
        b = t % NB2; r = []
        for x in range(4):
            pre = kap(t, 16, sWb) if x == 0 else f"s_add_u32 s{sA}, s{sA}, 8192\n"
            r.append(f"s_add_u32 m0, s{sMy}, {b*BUF + 16384 + 1024*x}\n" + pre + f"buffer_load_dwordx4 v{vW2+(x&1)}, {sr(dW2,4)}, s{sA} offen lds")
        return r
    for s in range(3): issue_y(s)
    for s in range(NS):
        k(f"s_waitcnt vmcnt({need([('s1', s)])}) lgkmcnt(0)")
        if s == 0: k.stamp()
        k("s_barrier")
        if s >= 1 and s + 2 < NS: issue_y(s + 2); issue_w(s + 2)
        if s == 10: code_pf_w(k, "CG_epi1", "CODE_END", sW, 4, IDX_STD, vL, T + 2, T + 4, True)
    def issue_h(s):
        b = s % NB2
        if s == 3: k(f"s_cmp_eq_u32 s{sWn}, 0\ns_cbranch_scc1 CG_h3")
        k(f"s_add_u32 m0, s{sMy}, {b*BUF}\n" + kap(s, 13, sHb))
        for x in range(4): vm(f"buffer_load_dwordx4 v{vOff}, {sr(dH,4)}, s{sA} offen offset:{1024*x} sc1 lds", ("s2", s))
        if s == 3: k("CG_h3:")
    def copy_out(js):
        for n, j in enumerate(js):
            b = j >> 1
            for u in range(2): k(f"ds_read_b128 {vr(CP+8*n+4*u,4)}, v{vCp+(b>>1)} offset:{(b&1)*BUF + (j&1)*8192 + 1024*u}")
        for n, j in enumerate(js):
            k(f"s_add_u32 s{sT}, s{sHo}, {j*8192}\ns_waitcnt lgkmcnt({2*(len(js)-1-n)})")
            for u in range(2): k(f"buffer_store_dwordx4 {vr(CP+8*n+4*u,4)}, v{vCp}, {sr(dH,4)}, s{sT} offen offset:{1024*u} sc1")
    sFw = k.s()
    k(f"s_lshl_b32 s{sFo}, s{sMt}, 1\ns_lshr_b32 s{sT}, s{sNt}, 3\ns_add_u32 s{sFo}, s{sFo}, s{sT}\ns_lshl_b32 s{sFo}, s{sFo}, 12\ns_add_u32 s{sFo}, s{sFo}, {FLH}")
    k(f"s_and_b32 s{sT}, s{sNt}, 7\ns_lshl_b32 s{sT}, s{sT}, 2\ns_add_u32 s{sT}, s{sT}, s{sLw}\ns_lshl_b32 s{sT}, s{sT}, 7\ns_add_u32 s{sFw}, s{sFo}, s{sT}")
    k(f"v_and_b32 v{T+2}, 31, v{vL}\nv_lshlrev_b32 v{T+2}, 7, v{T+2}")
    k("s_barrier")
    for t in range(3):
        for l in w2_items(t): k(l)
    k("s_barrier")
    copy_out([0, 3])
    k("s_barrier")
    k("s_waitcnt vmcnt(0)")
    set_flag(k, dF, sFw, vL, T, T + 1)
    copy_out([1, 4])
    for t in range(3, 5):
        for l in w2_items(t): k(l)
    k.stamp()
    k("s_barrier")
    poll(k, "CG_p2", dF, sFo, T + 2, T + 3, 32)
    k.stamp()
    ops.clear()
    issue_h(3); issue_h(4)
    copy_out([2, 5, 6])
    k(f"s_add_u32 s{sFw}, s{sFw}, 131072\ns_add_u32 s{sFo}, s{sFo}, 131072")
    nxt = 5
    for s in range(2, NS2):
        if s == 2:
            k("s_barrier\ns_waitcnt vmcnt(0)")
            set_flag(k, dF, sFw, vL, T, T + 1); ops.append("flag")
            k.stamp()
        else: k(f"s_waitcnt vmcnt({need([('s2', s)])})\ns_barrier")
        while nxt <= s + 4 and nxt < NS2:
            if nxt == 9: vm(f"buffer_load_dword v{T+3}, v{T+2}, {sr(dF,4)}, s{sFo} offen sc1", "pb")
            if nxt == 10:
                k(f"s_waitcnt vmcnt({need(['pb'])})\nv_cmp_ne_u32 vcc, 1, v{T+3}\ns_cbranch_vccz CG_p2b_ok")
                poll(k, "CG_p2b", dF, sFo, T + 2, T + 3, 32)
                k.stamp()
            if not noH: issue_h(nxt)
            if not noW2:
                for l in w2_items(nxt): vm(l, ("s2", nxt))
            nxt += 1
        if s == 18: code_pf_w(k, "CG_epi2", "CG_loader", sW, 4, IDX_STD, vL, T + 4, T + 6, True)
    k.stamp_flush()
    k("CG_end:\ns_endpgm")
    return k
```

```python
from asmlib import *
import math

WS_MODP = 0x0
WS_GB = 0x18000
WS_WMAX = 0x19800
WS_SCAL = 0x19400
WS_TAC = 0x20000
WS_TAW = 0x24000
WS_TBC = 0x28000
WS_TCC = 0x2C000
WS_TCW = 0x30000
WS_SPC = 0x38000
WS_FLAG = 0x40000
WS_MODC = 0x90000
WS_TAS = 0x100000
WS_TCS = 0x200000
WS_ZA = 0x300000
WS_ZB = 0x800000
WS_WB = 0xD00000
WS_X1 = 0x1300000
WS_Y2 = 0x1700000
WS_H = 0x1B00000
WS_PART = 0x2A00000
NSLOT = 258
ZA_PITCH = 16640
ZA_BYTES = NSLOT * ZA_PITCH
ZB_PITCH = NSLOT * 64
ZB_BYTES = 256 * ZB_PITCH
W_BYTES = 2048 * 513 * 2
LOG2E = 1.4426950408889634
DPPM = "row_mask:0xf bank_mask:0xf"
MF = "v_mfma_f32_16x16x32_f16"
OOB = 0x7ffffff0

def wave_reduce(k, op, vs, sdst):
    ops = op if isinstance(op, (list, tuple)) else [op] * len(vs)
    for sh in (1, 2, 4, 8):
        for o, v in zip(ops, vs): k(f"{o}_dpp v{v}, v{v}, v{v} row_ror:{sh} {DPPM}")
    for o, v in zip(ops, vs): k(f"{o}_dpp v{v}, v{v}, v{v} row_bcast:15 row_mask:0xa bank_mask:0xf")
    for o, v in zip(ops, vs): k(f"{o}_dpp v{v}, v{v}, v{v} row_bcast:31 row_mask:0xc bank_mask:0xf")
    for v, s in zip(vs, sdst): k(f"v_readlane_b32 s{s}, v{v}, 63")

def with_fill(k, lines, fill, per=3):
    fill = list(fill)
    for l in lines:
        k(l)
        for _ in range(per):
            if fill: k(fill.pop(0))
    for l in fill: k(l)

def cap(fn):
    t = Kern("x", 0, 0, 0); fn(t); return list(t.lines)

def sincos(k, c, s, vint, n, tmp):
    k(f"v_cvt_f32_u32 v{tmp}, v{vint}")
    k(f"v_mul_f32 v{tmp}, {fbits(1.0/n)}, v{tmp}")
    k(f"v_cos_f32 v{c}, v{tmp}")
    k(f"v_sin_f32 v{s}, v{tmp}")

def round_bf16(k, v):
    k(f"v_cvt_pk_bf16_f32 v{v}, v{v}, v{v}")
    k(f"v_lshlrev_b32 v{v}, 16, v{v}")

def unpack_bf16(k, dst, src, n, smask):
    for i in range(n):
        k(f"v_lshlrev_b32 v{dst+2*i}, 16, v{src+i}")
        k(f"v_and_b32 v{dst+2*i+1}, s{smask}, v{src+i}")

def cmul_tw(k, re, im, c, s, conj, t):
    k(f"v_mul_f32 v{t}, v{re}, v{s}")
    k(f"v_mul_f32 v{re}, v{re}, v{c}")
    if not conj:
        k(f"v_fmac_f32 v{re}, v{im}, v{s}")
        k(f"v_fma_f32 v{im}, v{im}, v{c}, -v{t}")
    else:
        k(f"v_fma_f32 v{re}, -v{im}, v{s}, v{re}")
        k(f"v_fma_f32 v{im}, v{im}, v{c}, v{t}")

def lane_ids(k):
    vL = k.v(); vI = k.v(); vG = k.v(); sW = k.s(); T = k.v(8)
    k(f"v_lshrrev_b32 v{T}, 6, v0\nv_and_b32 v{vL}, 63, v0")
    k(f"v_readfirstlane_b32 s{sW}, v{T}")
    k(f"v_and_b32 v{vI}, 15, v{vL}\nv_lshrrev_b32 v{vG}, 4, v{vL}")
    return vL, vI, vG, sW, T

C_TB = 17 * 1024
C_TP = (512 + 4) * 4

def code_pf(k, start, end, sIdx, vL, vTmp, vDum, back=False):
    m = k.mark(); p = k.s(2); sv = k.s(2); sO = k.s()
    lab = f"CP{len(k.lines)}_{k.name}"
    k(f"s_getpc_b64 {sr(p,2)}\n{lab}:")
    k(f"s_add_u32 s{p}, s{p}, {start}-{lab}\ns_addc_u32 s{p+1}, s{p+1}, {-1 if back else 0}\ns_lshl_b32 s{sO}, s{sIdx}, 7")
    k(f"v_lshl_add_u32 v{vTmp}, v{vL}, 12, s{sO}")
    k(f"v_cmp_gt_u32 vcc, {end}-{start}, v{vTmp}")
    k(f"s_and_saveexec_b64 {sr(sv,2)}, vcc\ns_cbranch_execz {lab}e")
    k(f"v_mov_b32 v{vTmp+1}, s{p+1}\nv_add_co_u32 v{vTmp}, vcc, s{p}, v{vTmp}\nv_addc_co_u32 v{vTmp+1}, vcc, 0, v{vTmp+1}, vcc")
    k(f"global_load_dword v{vDum}, {vr(vTmp,2)}, off")
    k(f"{lab}e:\ns_mov_b64 exec, {sr(sv,2)}")
    k.release(m)

CODEPF = True
def code_pf_w(k, start, end, sWave, wave, idx_code, vL, vTmp, vDum, back=False):
    if not CODEPF: return
    m = k.mark(); sI = k.s()
    lab = f"CW{len(k.lines)}_{k.name}"
    k(f"s_cmp_lg_u32 s{sWave}, {wave}\ns_cbranch_scc1 {lab}")
    k(idx_code.format(sI))
    code_pf(k, start, end, sI, vL, vTmp, vDum, back)
    k(f"{lab}:")
    k.release(m)
IDX_STD = "s_lshr_b32 s{0}, s2, 3\ns_and_b32 s{0}, s{0}, 31"

def gemv_job(k, pC, pM, pWS, sStrip, sSplit, vL, sWave, T, endlabel, hook=None):
    m = k.mark()
    sT = k.s(); sMask = k.s(); sO = k.s(); sCo = k.s()
    vR = k.v(); vOff = k.v(); vOffC = k.v()
    k(f"v_lshrrev_b32 v{vR}, 3, v0")
    k(f"v_mul_u32_u24 v{vOff}, 12288, v{vR}")
    k(f"v_and_b32 v{T}, 7, v0\nv_lshl_add_u32 v{vOff}, v{T}, 4, v{vOff}")
    k(f"v_lshlrev_b32 v{vOffC}, 1, v{vR}")
    k(f"s_mov_b32 s{sMask}, 0xffff0000")
    k(f"s_mul_i32 s{sO}, s{sSplit}, {256*12288}\ns_lshl_b32 s{sT}, s{sStrip}, 7\ns_add_u32 s{sO}, s{sO}, s{sT}\ns_lshl_b32 s{sCo}, s{sSplit}, 9")
    k("s_waitcnt lgkmcnt(0)")
    dM = k.srd(pM, 1024 * 6144 * 2); dC = k.srd(pC, 2048); dO = k.srd(pWS, 4 * 6144 * 4, WS_MODP)
    C = k.v(4); Wv = k.v(16); E = k.v(4); A = k.v(8)
    for i in range(4):
        k(f"buffer_load_ushort v{C+i}, v{vOffC}, {sr(dC,4)}, s{sCo} offen offset:{128*i}")
    for i in range(4):
        k(f"buffer_load_dwordx4 {vr(Wv+4*i,4)}, v{vOff}, {sr(dM,4)}, s{sO} offen nt")
        if i < 3: k(f"s_add_u32 s{sO}, s{sO}, {64*12288}")
    code_pf_w(k, "fa_kernel", "CODE_END", sWave, 7, IDX_STD, vL, T + 2, T + 4)
    k(f"s_cmp_lg_u32 s{sWave}, 5\ns_cbranch_scc1 GV_nz")
    dZ = k.srd(pWS, 0x50000, WS_FLAG)
    for i in range(4): k(f"v_mov_b32 v{A+i}, 0")
    k(f"s_lshl_b32 s{sT}, s{sStrip}, 2\ns_add_u32 s{sT}, s{sT}, s{sSplit}\ns_lshl_b32 s{sT}, s{sT}, 10\nv_lshlrev_b32 v{T+2}, 4, v{vL}")
    k(f"buffer_store_dwordx4 {vr(A,4)}, v{T+2}, {sr(dZ,4)}, s{sT} offen sc1")
    k("GV_nz:")
    vA = k.v()
    k(f"v_and_b32 v{T}, 7, v{vL}\nv_lshlrev_b32 v{T}, 5, v{T}\nv_lshrrev_b32 v{T+1}, 4, v{vL}\nv_lshl_add_u32 v{T}, v{T+1}, 2, v{T}")
    k(f"s_lshl_b32 s{sT}, s{sWave}, 8\nv_add_u32 v{vA}, s{sT}, v{T}")
    k("s_waitcnt vmcnt(4)")
    for i in range(4): k(f"v_lshlrev_b32 v{C+i}, 16, v{C+i}\nv_mul_f32 v{E+i}, {fbits(-LOG2E)}, v{C+i}")
    for i in range(4): k(f"v_exp_f32 v{E+i}, v{E+i}")
    for i in range(4): k(f"v_add_f32 v{E+i}, 1.0, v{E+i}")
    for i in range(4): k(f"v_rcp_f32 v{E+i}, v{E+i}")
    for i in range(4): k(f"v_mul_f32 v{C+i}, v{C+i}, v{E+i}")
    for i in range(4): round_bf16(k, C + i)
    for i in range(4):
        k(f"s_waitcnt vmcnt({3-i})")
        for q in range(4):
            k(f"v_lshlrev_b32 v{T}, 16, v{Wv+4*i+q}\nv_and_b32 v{T+1}, s{sMask}, v{Wv+4*i+q}")
            if i == 0: k(f"v_mul_f32 v{A+2*q}, v{C}, v{T}\nv_mul_f32 v{A+2*q+1}, v{C}, v{T+1}")
            else: k(f"v_fmac_f32 v{A+2*q}, v{C+i}, v{T}\nv_fmac_f32 v{A+2*q+1}, v{C+i}, v{T+1}")
    if hook: hook()
    for q in range(4): k(f"v_permlane16_swap_b32 v{A+2*q}, v{A+2*q+1}")
    for q in range(4): k(f"v_add_f32 v{A+2*q}, v{A+2*q}, v{A+2*q+1}")
    k(f"v_permlane32_swap_b32 v{A}, v{A+2}\nv_permlane32_swap_b32 v{A+4}, v{A+6}")
    k(f"v_add_f32 v{A}, v{A}, v{A+2}\nv_add_f32 v{A+4}, v{A+4}, v{A+6}")
    k(f"v_add_f32_dpp v{A}, v{A}, v{A} row_ror:8 {DPPM}\nv_add_f32_dpp v{A+4}, v{A+4}, v{A+4} row_ror:8 {DPPM}")
    k(f"ds_write2_b32 v{vA}, v{A}, v{A+4} offset0:0 offset1:4")
    k("s_waitcnt lgkmcnt(0)\ns_barrier")
    k(f"s_cmp_lg_u32 s{sWave}, 0\ns_cbranch_scc1 {endlabel}")
    k(f"v_lshlrev_b32 v{T}, 2, v{vL}")
    for i in range(4): k(f"ds_read2st64_b32 {vr(A+2*i,2)}, v{T} offset0:{2*i} offset1:{2*i+1}")
    k(f"s_mul_i32 s{sO}, s{sSplit}, {6144*4}\ns_lshl_b32 s{sT}, s{sStrip}, 8\ns_add_u32 s{sO}, s{sO}, s{sT}")
    k("s_waitcnt lgkmcnt(0)")
    for i in range(4): k(f"v_add_f32 v{A+2*i}, v{A+2*i}, v{A+2*i+1}")
    k(f"v_add_f32 v{A}, v{A}, v{A+2}\nv_add_f32 v{A+4}, v{A+4}, v{A+6}\nv_add_f32 v{A}, v{A}, v{A+4}")
    k(f"buffer_store_dword v{A}, v{T}, {sr(dO,4)}, s{sO} offen")
    k.stamp_flush()
    k("s_endpgm")
    k.release(m)

def tab_a_common(k, vI, vG, T, R, part):
    def f1(ct, ks, ri): return R + ((ct * 2 + ks) * 2 + ri) * 4
    sg = 1 / math.sqrt(32)
    for ct in range(2):
        if part != ct: continue
        for ks in range(2):
            for e in range(4):
                k(f"v_add_u32 v{T}, {16*ks+4*e}, v{vG}\nv_add_u32 v{T+1}, {16*ct}, v{vI}")
                k(f"v_mul_u32_u24 v{T}, v{T}, v{T+1}\nv_and_b32 v{T}, 31, v{T}")
                sincos(k, T + 1, T + 2, T, 32, T + 3)
                k(f"v_mul_f32 v{T+1}, {fbits(sg)}, v{T+1}\nv_mul_f32 v{T+2}, {fbits(sg)}, v{T+2}")
                k(f"v_cvt_pk_f16_f32 v{f1(ct,ks,0)+e}, v{T+1}, v{T+2}\nv_cvt_pk_f16_f32 v{f1(ct,ks,1)+e}, -v{T+2}, v{T+1}")
        return (4 * ct, 4)
    for ct in range(2):
        for v in range(4):
            k(f"v_lshl_add_u32 v{T}, v{vG}, 2, {v}\nv_add_u32 v{T+1}, {16*ct}, v{vI}\nv_mul_u32_u24 v{T}, v{T}, v{T+1}")
            sincos(k, R + 32 + 4 * ct + v, R + 40 + 4 * ct + v, T, 512, T + 3)
    for v in range(4):
        k(f"v_lshl_add_u32 v{T}, v{vG}, 2, {v}\nv_mul_u32_u24 v{T}, v{T}, v{vI}\nv_and_b32 v{T}, 15, v{T}")
        sincos(k, T + 1, T + 2, T, 16, T + 3)
        k(f"v_mul_f32 v{T+1}, {fbits(0.25)}, v{T+1}\nv_mul_f32 v{T+2}, {fbits(0.25)}, v{T+2}")
        k(f"v_cvt_pk_f16_f32 v{R+48+v}, v{T+1}, v{T+2}\nv_cvt_pk_f16_f32 v{R+52+v}, -v{T+2}, v{T+1}")
    return (8, 6)

def tab_a_wave(k, vI, vG, T, R, sJ, sT):
    vRho = T + 7
    k(f"v_and_b32 v{vRho}, 7, v{vI}")
    for q in range(2):
        for x in range(2):
            d = R + 2 * q + x
            k(f"v_lshrrev_b32 v{T}, 1, v{vG}\nv_lshl_add_u32 v{T}, v{T}, 4, v{vI}")
            k(f"s_lshl_b32 s{sT}, s{sJ}, 6\ns_add_u32 s{sT}, s{sT}, {32*q}\nv_add_u32 v{T}, s{sT}, v{T}")
            if x: k(f"v_sub_u32 v{T}, 512, v{T}\nv_and_b32 v{T}, 511, v{T}")
            k(f"v_lshrrev_b32 v{T+1}, 3, v{T}\nv_and_b32 v{T+1}, 28, v{T+1}\nv_xor_b32 v{T}, v{T}, v{T+1}")
            k(f"v_and_b32 v{T+1}, 1, v{vG}\nv_mul_u32_u24 v{T+1}, {4*2048+64}, v{T+1}")
            k(f"v_lshl_add_u32 v{d}, v{T}, 2, v{T+1}")
    for q in range(2):
        for ins in range(2):
            k(f"v_lshrrev_b32 v{T}, 3, v{vI}\nv_lshlrev_b32 v{T}, 1, v{T}")
            k(f"s_lshl_b32 s{sT}, s{sJ}, 3\ns_add_u32 s{sT}, s{sT}, {4*q+ins}\nv_add_u32 v{T}, s{sT}, v{T}")
            k(f"v_lshlrev_b32 v{T+1}, 6, v{vRho}\nv_subrev_u32 v{T+1}, 31, v{T+1}\nv_max_i32 v{T+1}, 0, v{T+1}")
            k(f"v_add_u32 v{T+1}, v{T+1}, v{T}\nv_mul_u32_u24 v{T+1}, {ZA_PITCH}, v{T+1}")
            k(f"v_and_b32 v{T+2}, 1, v{vG}\nv_lshl_add_u32 v{T+1}, v{T+2}, 5, v{T+1}")
            k(f"v_lshrrev_b32 v{T+2}, 1, v{vG}\nv_lshl_add_u32 v{T+1}, v{T+2}, 4, v{T+1}")
            k(f"v_and_b32 v{T+2}, 3, v{vRho}\nv_cmp_eq_u32 vcc, 0, v{T+2}\nv_mov_b32 v{T+3}, 64\nv_cndmask_b32 v{T+3}, v{T+3}, 33, vcc")
            k(f"v_cmp_lt_u32 vcc, 4, v{vRho}\nv_cndmask_b32 v{T+3}, v{T+3}, 0, vcc")
            k(f"v_cmp_lt_u32 vcc, v{T}, v{T+3}\nv_mov_b32 v{T+2}, {OOB}\nv_cndmask_b32 v{R+4+2*q+ins}, v{T+2}, v{T+1}, vcc")
    return 2

def tab_a_s0(k, vI, vG, T, R, sS0):
    s8 = 1 / math.sqrt(8)
    vSc = T + 6; vRho = T + 7
    k(f"v_lshrrev_b32 v{T}, 3, v{vI}\nv_lshrrev_b32 v{T+1}, 1, v{vG}\nv_cmp_eq_u32 vcc, v{T}, v{T+1}")
    k(f"v_mov_b32 v{T+2}, {fbits(s8)}\nv_cndmask_b32 v{vSc}, 0, v{T+2}, vcc\nv_and_b32 v{vRho}, 7, v{vI}")
    for e in range(4):
        k(f"v_and_b32 v{T}, 1, v{vG}\nv_lshl_add_u32 v{T}, v{T}, 2, {e}\nv_lshl_add_u32 v{T}, v{T}, 8, s{sS0}")
        k(f"v_mul_u32_u24 v{T}, v{T}, v{vRho}\nv_and_b32 v{T}, 0x7ff, v{T}")
        sincos(k, T + 1, T + 2, T, 2048, T + 3)
        k(f"v_mul_f32 v{T+1}, v{vSc}, v{T+1}\nv_mul_f32 v{T+2}, v{vSc}, v{T+2}")
        k(f"v_cvt_pk_f16_f32 v{R+e}, v{T+1}, v{T+2}\nv_cvt_pk_f16_f32 v{R+4+e}, -v{T+2}, v{T+1}")
        k(f"v_cvt_pk_f16_f32 v{R+8+e}, v{T+1}, -v{T+2}\nv_cvt_pk_f16_f32 v{R+12+e}, -v{T+2}, -v{T+1}")
    return 4

def tab_b_common(k, vI, vG, T, R):
    for v in range(4):
        k(f"v_lshl_add_u32 v{T}, v{vG}, 2, {v}\nv_mul_u32_u24 v{T}, v{T}, v{vI}")
        sincos(k, R + v, R + 4 + v, T, 256, T + 3)
        k(f"v_and_b32 v{T}, 15, v{T}")
        sincos(k, R + 24 + v, R + 28 + v, T, 16, T + 3)
        k(f"v_mul_f32 v{T+1}, {fbits(0.25)}, v{R+24+v}\nv_mul_f32 v{T+2}, {fbits(0.25)}, v{R+28+v}")
        k(f"v_cvt_pk_f16_f32 v{R+8+v}, v{T+1}, v{T+2}\nv_cvt_pk_f16_f32 v{R+12+v}, -v{T+2}, v{T+1}")
        k(f"v_cvt_pk_f16_f32 v{R+16+v}, v{T+1}, -v{T+2}\nv_cvt_pk_f16_f32 v{R+20+v}, v{T+2}, v{T+1}")
    return 8

def tab_c_common(k, vI, vG, T, R, part):
    for e in range(4 if part == 2 else 0):
        k(f"v_add_u32 v{T}, {4*e}, v{vG}\nv_mul_u32_u24 v{T}, v{T}, v{vI}\nv_and_b32 v{T}, 15, v{T}")
        sincos(k, T + 1, T + 2, T, 16, T + 3)
        k(f"v_mul_f32 v{T+1}, {fbits(0.25)}, v{T+1}\nv_mul_f32 v{T+2}, {fbits(0.25)}, v{T+2}")
        k(f"v_cvt_pk_f16_f32 v{R+e}, v{T+1}, -v{T+2}\nv_cvt_pk_f16_f32 v{R+4+e}, v{T+2}, v{T+1}")
    for rt in range(2 if part == 2 else 0):
        for v in range(4):
            k(f"v_lshl_add_u32 v{T}, v{vG}, 2, {16*rt+v}\nv_mul_u32_u24 v{T}, v{T}, v{vI}")
            sincos(k, R + 8 + 4 * rt + v, R + 16 + 4 * rt + v, T, 512, T + 3)
    if part == 2: return (0, 6)
    sg = 1 / math.sqrt(32)
    for ct in (part,):
        for rt in range(2):
            for v in range(4):
                k(f"v_lshl_add_u32 v{T}, v{vG}, 2, {16*rt+v}\nv_add_u32 v{T+1}, {16*ct}, v{vI}\nv_mul_u32_u24 v{T}, v{T}, v{T+1}\nv_and_b32 v{T}, 31, v{T}")
                sincos(k, T + 1, T + 2, T, 32, T + 3)
                k(f"v_mul_f32 v{T+1}, {fbits(sg)}, v{T+1}\nv_mul_f32 v{T+2}, {fbits(sg)}, v{T+2}")
                b = R + 24 + ((ct * 2 + rt) * 2) * 4
                k(f"v_cvt_pk_f16_f32 v{b+v}, v{T+1}, -v{T+2}\nv_cvt_pk_f16_f32 v{b+4+v}, v{T+2}, v{T+1}")
    return (6 + 4 * part, 4)

def tab_c_wave(k, vI, vG, T, R, sJ, sT):
    sO = k.s()
    vY = T + 6; vHf = T + 7
    k(f"v_lshrrev_b32 v{vY}, 1, v{vG}\nv_and_b32 v{vHf}, 1, v{vG}")
    for q in range(2):
        k(f"s_lshl_b32 s{sT}, s{sJ}, 5\ns_add_u32 s{sT}, s{sT}, {16*q}")
        k(f"v_lshl_add_u32 v{T}, v{vY}, 8, v{vI}\nv_add_u32 v{T}, s{sT}, v{T}")
        k(f"v_sub_u32 v{T+1}, 512, v{T}\nv_and_b32 v{T+1}, 511, v{T+1}")
        k(f"v_lshlrev_b32 v{T}, 3, v{T}\nv_lshl_add_u32 v{T+1}, v{T+1}, 3, 4")
        for e in range(4):
            if e < 3: k(f"v_xor_b32 v{T+4}, v{vY}, v{vHf}")
            else: k(f"v_mov_b32 v{T+4}, v{vY}")
            k(f"v_cmp_eq_u32 vcc, 0, v{T+4}")
            k(f"v_add_u32 v{T+2}, {e}, v{vHf}\nv_lshlrev_b32 v{T+2}, 6, v{T+2}\nv_subrev_u32 v{T+2}, 31, v{T+2}\nv_max_i32 v{T+2}, 0, v{T+2}")
            k(f"v_cndmask_b32 v{T+3}, v{T+1}, v{T}, vcc")
            k(f"v_lshl_add_u32 v{R+4*q+e}, v{T+2}, 6, v{T+3}")
    for q in range(2):
        k(f"s_and_b32 s{sT}, s{sJ}, 1\ns_xor_b32 s{sT}, s{sT}, {q}\ns_lshl_b32 s{sT}, s{sT}, 6")
        k(f"s_lshl_b32 s{sO}, s{sJ}, 7\ns_add_u32 s{sT}, s{sT}, s{sO}\ns_add_u32 s{sT}, s{sT}, {C_TB}")
        k(f"v_and_b32 v{T}, 7, v{vI}\nv_mul_u32_u24 v{T}, {C_TP}, v{T}")
        k(f"v_lshrrev_b32 v{T+1}, 3, v{vI}\nv_lshl_add_u32 v{T}, v{T+1}, 10, v{T}\nv_lshl_add_u32 v{T}, v{vG}, 4, v{T}")
        k(f"v_add_u32 v{R+8+q}, s{sT}, v{T}")
    k(f"s_mul_i32 s{sT}, s{sJ}, {C_TP}\ns_add_u32 s{sT}, s{sT}, {C_TB}")
    for rt in range(2):
        k(f"v_xor_b32 v{T}, {rt}, v{vHf}\nv_lshl_add_u32 v{T}, v{T}, 4, v{vI}\nv_lshl_add_u32 v{T}, v{vG}, 5, v{T}")
        k(f"v_lshl_add_u32 v{R+10+rt}, v{T}, 2, s{sT}")
    return 3

def tab_c_s0(k, vI, vG, T, R, sS0, sSign):
    s8 = 1 / math.sqrt(8)
    vY = T + 6; vHf = T + 7; vSc = R + 8; vS = R + 9
    k(f"v_lshrrev_b32 v{vY}, 1, v{vG}\nv_and_b32 v{vHf}, 1, v{vG}")
    k(f"v_lshrrev_b32 v{T}, 3, v{vI}\nv_cmp_eq_u32 vcc, v{T}, v{vY}\nv_mov_b32 v{T+2}, {fbits(s8)}\nv_cndmask_b32 v{vSc}, 0, v{T+2}, vcc")
    k(f"v_and_b32 v{vS}, 7, v{vI}\nv_lshl_add_u32 v{vS}, v{vS}, 8, s{sS0}")
    for e in range(4):
        k(f"v_add_u32 v{T+4}, {e}, v{vHf}")
        if e < 3: k(f"v_xor_b32 v{T+5}, v{vY}, v{vHf}")
        else: k(f"v_mov_b32 v{T+5}, v{vY}")
        k(f"v_mul_u32_u24 v{T}, v{vS}, v{T+4}\nv_and_b32 v{T}, 0x7ff, v{T}")
        sincos(k, T + 1, T + 2, T, 2048, T + 3)
        k(f"v_mul_f32 v{T+1}, v{vSc}, v{T+1}\nv_mul_f32 v{T+2}, v{vSc}, v{T+2}")
        k(f"v_cvt_pk_f16_f32 v{R+e}, v{T+1}, -v{T+2}\nv_cvt_pk_f16_f32 v{R+4+e}, v{T+2}, v{T+1}")
        k(f"v_mul_lo_u32 v{T}, v{T+5}, s{sSign}\nv_xor_b32 v{R+4+e}, v{T}, v{R+4+e}")
    return 2

WB_RHO = 65 * 16384
def w_job(k, pW, pWS, first, vL, sWave, T, endlabel):
    m00 = k.mark()
    if k.prof: k._st = k._st[:1]; k._stidx = 6
    k(f"s_cmp_ge_u32 s{sWave}, 5\ns_cbranch_scc1 {endlabel}")
    sA = k.s(); sB = k.s(); sT = k.s()
    sJob = k.s(); sRho = k.s(); sWh = k.s(); sK1 = k.s(); sRow = k.s(); sStep = k.s(); sMis = k.s(); sDs = k.s()
    k(f"s_sub_u32 s{sJob}, s2, {first}\ns_lshr_b32 s{sRho}, s{sJob}, 5\ns_bfe_u32 s{sWh}, s{sJob}, 0x10004\ns_and_b32 s{sK1}, s{sJob}, 15")
    k(f"s_lshl_b32 s{sRow}, s{sK1}, 3\ns_add_u32 s{sRow}, s{sRow}, s{sRho}")
    k(f"s_sub_u32 s{sT}, 2048, s{sRow}\ns_cmp_eq_u32 s{sWh}, 1\ns_cselect_b32 s{sRow}, s{sT}, s{sRow}\ns_movk_i32 s{sStep}, 128\ns_cselect_b32 s{sStep}, -128, s{sStep}")
    k(f"s_and_b32 s{sMis}, s{sRow}, 7")
    vSt = k.v(8); vOf = k.v(4)
    k(f"v_lshrrev_b32 v{T+2}, 2, v0\nv_and_b32 v{T+3}, 3, v0")
    k(f"v_cmp_gt_u32 vcc, 66, v{T+2}\nv_mov_b32 v{T}, {OOB-0x1000000}\nv_lshlrev_b32 v{T+4}, 4, v{T+2}\nv_cndmask_b32 v{T+4}, v{T}, v{T+4}, vcc")
    for r in range(4):
        k(f"v_lshl_add_u32 v{T+1}, v{T+3}, 2, {r}\nv_mul_i32_i24 v{T+1}, s{sStep}, v{T+1}\nv_add_u32 v{T+1}, s{sRow}, v{T+1}\nv_and_b32 v{T+1}, 2047, v{T+1}")
        k(f"v_mul_u32_u24 v{T+1}, 1026, v{T+1}\nv_and_b32 v{T+1}, -16, v{T+1}\nv_add_u32 v{vOf+r}, v{T+1}, v{T+4}")
    k("s_waitcnt lgkmcnt(0)")
    k.stamp()
    dR = k.srd(pW, W_BYTES); dI = k.srd(pW + 2, W_BYTES)
    RR = k.v(16); RI = k.v(16); P = k.v(32)
    for r in range(4):
        k(f"buffer_load_dwordx4 {vr(RR+4*r,4)}, v{vOf+r}, {sr(dR,4)}, 0 offen nt")
        k(f"buffer_load_dwordx4 {vr(RI+4*r,4)}, v{vOf+r}, {sr(dI,4)}, 0 offen nt")
    k(f"s_lshl_b32 s{sDs}, s{sStep}, 4")
    k(f"v_lshlrev_b32 v{T+1}, 3, v{T+2}\nv_subrev_u32 v{T+1}, s{sMis}, v{T+1}\nv_mul_lo_u32 v{T+1}, v{T+1}, s{sDs}")
    k(f"s_lshl_b32 s{sT}, s{sWh}, 20\nv_add_u32 v{T+1}, s{sT}, v{T+1}\nv_lshl_add_u32 v{vSt}, v{T+3}, 4, v{T+1}")
    for j in range(1, 8): k(f"v_add_u32 v{vSt+j}, s{sDs}, v{vSt+j-1}")
    dB = k.s(4)
    k(f"s_mul_i32 s{sA}, s{sRho}, {WB_RHO}\ns_add_u32 s{sA}, s{sA}, {WS_WB}\ns_add_u32 s{dB}, s{pWS}, s{sA}\ns_addc_u32 s{dB+1}, s{pWS+1}, 0\ns_mov_b32 s{dB+2}, {513*2048}\ns_mov_b32 s{dB+3}, 0x20000")
    dMx = k.srd(pWS, 640, WS_WMAX)
    k(f"s_lshl_b32 s{sA}, s{sWh}, 10\ns_lshl_b32 s{sB}, s{sK1}, 6\ns_add_u32 s{sA}, s{sA}, s{sB}")
    sM7 = k.s(); vMx = k.v(); sP0 = k.s(); sP1 = k.s()
    k(f"s_mov_b32 s{sM7}, 0x7fff7fff\ns_mov_b32 s{sP0}, 0x05040100\ns_mov_b32 s{sP1}, 0x07060302")
    k.stamp()
    k("s_waitcnt vmcnt(0)")
    k.stamp()
    for j in range(8):
        for r in range(4):
            k(f"v_perm_b32 v{P+4*j+r}, v{RI+4*r+(j>>1)}, v{RR+4*r+(j>>1)}, s{sP1 if j & 1 else sP0}")
        k(f"buffer_store_dwordx4 {vr(P+4*j,4)}, v{vSt+j}, {sr(dB,4)}, s{sA} offen sc1")
    k.stamp()
    k(f"v_and_b32 v{vMx}, s{sM7}, v{RR}")
    for r in range(1, 32):
        k(f"v_and_b32 v{RR+r}, s{sM7}, v{RR+r}\nv_pk_max_u16 v{vMx}, v{vMx}, v{RR+r}")
    k(f"v_lshrrev_b32 v{T}, 16, v{vMx}\nv_and_b32 v{vMx}, 0xffff, v{vMx}\nv_max_u32 v{vMx}, v{vMx}, v{T}")
    wave_reduce(k, "v_max_u32", [vMx], [sA])
    k(f"s_lshl_b32 s{sT}, s{sWave}, 2\nv_mov_b32 v{T}, s{sT}\nv_mov_b32 v{vMx}, s{sA}\nds_write_b32 v{T}, v{vMx}")
    if k.prof: k("s_waitcnt vmcnt(0)")
    k.stamp_flush()
    k("s_waitcnt lgkmcnt(0)\ns_barrier")
    k(f"s_cmp_lg_u32 s{sWave}, 0\ns_cbranch_scc1 {endlabel}")
    k(f"v_mov_b32 v{T}, 0\nds_read_b128 {vr(RR,4)}, v{T}\nds_read_b32 v{RR+4}, v{T} offset:16\ns_lshl_b32 s{sT}, s{sJob}, 2\ns_waitcnt lgkmcnt(0)")
    k(f"v_max3_u32 v{RR}, v{RR}, v{RR+1}, v{RR+2}\nv_max3_u32 v{RR}, v{RR}, v{RR+3}, v{RR+4}")
    k(f"buffer_store_dword v{RR}, v{T}, {sr(dMx,4)}, s{sT} offen")
    k("s_endpgm")
    k.release(m00)

NSCAN = 129
def scan_job(k, pW, pWS, first, vL, sWave, T, endlabel):
    m00 = k.mark()
    sT = k.s(); sO = k.s(); sM7 = k.s(); sA = k.s(); sJob = k.s()
    k(f"s_sub_u32 s{sJob}, s2, {first}\ns_lshl_b32 s{sO}, s{sJob}, 14\nv_lshlrev_b32 v{T}, 4, v0\nv_add_u32 v{T+1}, 8192, v{T}\ns_mov_b32 s{sM7}, 0x7fff7fff")
    k("s_waitcnt lgkmcnt(0)")
    dR = k.srd(pW, W_BYTES); dI = k.srd(pW + 2, W_BYTES); dMx = k.srd(pWS, 640, WS_WMAX)
    X = k.v(16)
    for h in range(2):
        k(f"buffer_load_dwordx4 {vr(X+8*h,4)}, v{T+h}, {sr(dR,4)}, s{sO} offen\nbuffer_load_dwordx4 {vr(X+8*h+4,4)}, v{T+h}, {sr(dI,4)}, s{sO} offen")
    k("s_waitcnt vmcnt(0)")
    for i in range(16): k(f"v_and_b32 v{X+i}, s{sM7}, v{X+i}")
    for n in (8, 4, 2, 1):
        for i in range(n): k(f"v_pk_max_u16 v{X+i}, v{X+i}, v{X+n+i}")
    k(f"v_lshrrev_b32 v{T}, 16, v{X}\nv_and_b32 v{X}, 0xffff, v{X}\nv_max_u32 v{X}, v{X}, v{T}")
    wave_reduce(k, "v_max_u32", [X], [sA])
    k(f"s_lshl_b32 s{sT}, s{sWave}, 2\nv_mov_b32 v{T}, s{sT}\nv_mov_b32 v{X}, s{sA}\nds_write_b32 v{T}, v{X}")
    k("s_waitcnt lgkmcnt(0)\ns_barrier")
    k(f"s_cmp_lg_u32 s{sWave}, 0\ns_cbranch_scc1 {endlabel}")
    k(f"v_mov_b32 v{T}, 0\nds_read_b128 {vr(X,4)}, v{T}\nds_read_b128 {vr(X+4,4)}, v{T} offset:16\ns_lshl_b32 s{sT}, s{sJob}, 2\ns_waitcnt lgkmcnt(0)")
    k(f"v_max3_u32 v{X}, v{X}, v{X+1}, v{X+2}\nv_max3_u32 v{X+4}, v{X+4}, v{X+5}, v{X+6}\nv_max3_u32 v{X}, v{X}, v{X+3}, v{X+7}\nv_max_u32 v{X}, v{X}, v{X+4}")
    k(f"buffer_store_dword v{X}, v{T}, {sr(dMx,4)}, s{sT} offen")
    k("s_endpgm")
    k.release(m00)

K0_NG = 384; K0_NW = 0; K0_NS = 32
def gen_k0(pf=(0, 0)):
    G0 = 10
    G2 = G0; G1 = G0 + K0_NS; G3 = G1 + K0_NG
    k = Kern("k0_kernel", G3, 512, 2048)
    pCW = k.s(4); pW = k.s(4); pWS = k.s(2)
    k(f"s_cmp_ge_u32 s2, {G3}\ns_cbranch_scc1 K0_end")
    k.stamp(True)
    k(f"s_load_dwordx4 {sr(pCW,4)}, s[0:1], 64")
    k(f"s_load_dwordx2 {sr(pWS,2)}, s[0:1], 96")
    k.stamp_init2(0, pWS)
    vL, vI, vG, sWave, T = lane_ids(k)
    sA = k.s(); sB = k.s(); sT = k.s()
    k(f"s_cmp_lt_u32 s2, {G0}\ns_cbranch_scc1 K0_tab")
    k(f"s_cmp_lt_u32 s2, {G1}\ns_cbranch_scc1 K0_s0")
    k(f"s_sub_u32 s{sT}, s2, {G1}\ns_lshr_b32 s{sA}, s{sT}, 2\ns_and_b32 s{sB}, s{sT}, 3")
    if pf[1]: k(f"s_load_dwordx2 {sr(pW,2)}, s[0:1], 32")
    gemv_job(k, pCW, pCW + 2, pWS, sA, sB, vL, sWave, T, "K0_end", lambda: pf_uni(k, pW, pf[0], pf[1], sT, sWave, vL, T + 6, T + 5, 384))
    R = k.v(56); vOff = k.v(); sO = k.s(); sSign = k.s()
    def store(nq, base_off, soff=None, R0=R):
        d = k.srd(pWS, 0x100000, base_off)
        for q in range(nq):
            if q % 4 == 0 and q: k(f"v_add_u32 v{vOff}, 4096, v{vOff}")
            k(f"buffer_store_dwordx4 {vr(R0+4*q,4)}, v{vOff}, {sr(d,4)}, {'s%d' % soff if soff is not None else 0} offen offset:{1024*(q%4)}")
    k("K0_s0:")
    m = k.mark()
    sS0 = k.s()
    k(f"s_sub_u32 s{sS0}, s2, {G2}\ns_lshl_b32 s{sS0}, s{sS0}, 3\ns_add_u32 s{sS0}, s{sS0}, s{sWave}\ns_mov_b32 s{sSign}, 0x80008000")
    k(f"v_lshlrev_b32 v{vOff}, 4, v{vL}")
    tab_a_s0(k, vI, vG, T, R, sS0)
    k(f"s_lshl_b32 s{sO}, s{sS0}, 12\ns_waitcnt lgkmcnt(0)")
    store(4, WS_TAS, sO)
    tab_c_s0(k, vI, vG, T, R + 16, sS0, sSign)
    k(f"s_lshl_b32 s{sO}, s{sS0}, 11")
    store(2, WS_TCS, sO, R + 16)
    k("s_endpgm")
    k.release(m)
    k("K0_tab:")
    k(f"v_lshlrev_b32 v{vOff}, 4, v{vL}\ns_waitcnt lgkmcnt(0)")
    k(f"s_cmp_eq_u32 s2, 0\ns_cbranch_scc1 K0_tw_a\ns_cmp_eq_u32 s2, 1\ns_cbranch_scc1 K0_tw_c")
    k(f"s_cmp_eq_u32 s2, 2\ns_cbranch_scc1 K0_fl")
    k(f"s_cmp_lg_u32 s{sWave}, 0\ns_cbranch_scc1 K0_end")
    for j in range(3, G0 - 1): k(f"s_cmp_eq_u32 s2, {j}\ns_cbranch_scc1 K0_t{j}")
    k(f"s_branch K0_t{G0-1}")
    k("K0_fl:")
    m = k.mark()
    for i in range(4): k(f"v_mov_b32 v{R+i}, 0")
    k("s_endpgm"); k.release(m)
    for part in range(3):
        k(f"K0_t{3+part}:"); q0, n = tab_a_common(k, vI, vG, T, R, part); store(n, WS_TAC + 1024 * q0, None, R + 4 * q0); k("s_endpgm"); k.release(m)
        k(f"K0_t{6+part}:"); q0, n = tab_c_common(k, vI, vG, T, R, part); store(n, WS_TCC + 1024 * q0, None, R + 4 * q0); k("s_endpgm"); k.release(m)
    k("K0_t9:"); store(tab_b_common(k, vI, vG, T, R), WS_TBC); k("s_endpgm"); k.release(m)
    k("K0_tw_a:")
    n = tab_a_wave(k, vI, vG, T, R, sWave, sT); k(f"s_lshl_b32 s{sO}, s{sWave}, 11"); store(n, WS_TAW, sO); k("s_endpgm"); k.release(m)
    k("K0_tw_c:")
    n = tab_c_wave(k, vI, vG, T, R, sWave, sT); k(f"s_mul_i32 s{sO}, s{sWave}, 3072"); store(n, WS_TCW, sO); k.release(m)
    k("K0_end:\ns_endpgm")
    return k


WBYTES = 1024 * 3584 * 2
def pf_mall(k, pP, first, n, sId, sWave, vDum, T):
    if n == 0: return
    m = k.mark(); sO = k.s()
    lab = f"PF{len(k.lines)}_{k.name}"
    nw = (n + 63) // 64
    if nw < 8: k(f"s_cmp_ge_u32 s{sWave}, {nw}\ns_cbranch_scc1 {lab}")
    k(f"v_lshlrev_b32 v{T}, 7, v0\ns_mul_i32 s{sO}, s{sId}, {n*128}\ns_add_u32 s{sO}, s{sO}, {first*128}")
    d = k.srd(pP, min((first + 256 * n) * 128, WBYTES))
    k(f"buffer_load_dword v{vDum}, v{T}, {sr(d,4)}, s{sO} offen")
    if nw < 8: k(f"{lab}:")
    k.release(m)

def pf_uni(k, pP, first, n, sId, sWave, vL, vDum, T, nid=256):
    if n == 0: return
    assert n % 8 == 0
    m = k.mark(); sO = k.s(); sE = k.s()
    d = k.srd(pP, WBYTES)
    k(f"s_lshl_b32 s{sO}, s{sId}, 3\ns_add_u32 s{sO}, s{sO}, s{sWave}\ns_mul_i32 s{sO}, s{sO}, {n*16}\ns_add_u32 s{sO}, s{sO}, {first*128}")
    k(f"s_add_u32 s{sE}, s{sO}, {n*16}\ns_min_u32 s{d+2}, s{sE}, {min((first + nid * n) * 128, WBYTES)}\nv_lshlrev_b32 v{T}, 7, v{vL}")
    k(f"buffer_load_dword v{vDum}, v{T}, {sr(d,4)}, s{sO} offen")
    k.release(m)

C_MV = 146 * 16
def gen_a(pf=(0, 0), st_flags="sc1", nxt="fc_kernel"):
    TAB = 16640; MOD = TAB + 18 * 1024; MX = MOD + 8192
    k = Kern("fa_kernel", 256, 512, MX + 32)
    pX = k.s(2); pWS = k.s(2); pW = k.s(2); pF = k.s(4)
    k(f"s_cmp_ge_u32 s2, 256\ns_cbranch_scc1 A_end")
    k.stamp(True)
    k(f"s_load_dwordx2 {sr(pWS,2)}, s[0:1], 96")
    sMask = k.s(); sT = k.s(); sJ = k.s()
    vL = k.v(); vOff = k.v(); T = k.v(8)
    k(f"v_lshrrev_b32 v{T}, 6, v0\nv_and_b32 v{vL}, 63, v0")
    k(f"v_readfirstlane_b32 s{sJ}, v{T}")
    k(f"v_lshlrev_b32 v{vOff}, 4, v{vL}")
    k(f"s_mov_b32 s{sMask}, 0xffff0000")
    k(f"s_load_dwordx4 {sr(pF,4)}, s[0:1], 8")
    k(f"s_load_dwordx2 {sr(pX,2)}, s[0:1], 0")
    if pf[1]: k(f"s_load_dwordx2 {sr(pW,2)}, s[0:1], 32")
    sRow = k.s(); sQ0 = k.s(); sQ1 = k.s(); sS = k.s(); sL = k.s()
    k(f"v_lshlrev_b32 v{T}, 4, v0")
    k(f"s_lshl_b32 s{sRow}, s{sJ}, 8\ns_add_u32 s{sRow}, s{sRow}, s2\ns_lshl_b32 s{sRow}, s{sRow}, 11")
    k(f"s_lshl_b32 s{sL}, s{sJ}, 10\ns_add_u32 s{sQ0}, s{sL}, {WS_TAC}\ns_add_u32 s{sQ1}, s{sL}, {WS_TAC+8192}")
    k(f"s_lshl_b32 s{sS}, s2, 12\ns_add_u32 s{sS}, s{sS}, s{sL}\ns_add_u32 s{sT}, s{sS}, {WS_TAS-6*1024}")
    k(f"s_cmp_ge_u32 s{sJ}, 6\ns_cselect_b32 s{sQ1}, s{sT}, s{sQ1}\ns_add_u32 s{sS}, s{sS}, {WS_TAS+2048}")
    k("s_waitcnt lgkmcnt(0)")
    k.stamp_init2(1, pWS); k.stamp()
    dX = k.srd(pX, 2048 * 2048); dW = k.srd(pWS, WS_ZA)
    XP = k.v(8); MP = k.v(16); AD = k.v(8)
    k(f"buffer_load_dwordx4 {vr(XP,4)}, v{vOff}, {sr(dX,4)}, s{sRow} offen nt")
    k(f"buffer_load_dwordx4 {vr(XP+4,4)}, v{vOff}, {sr(dX,4)}, s{sRow} offen offset:1024 nt")
    for p in range(4):
        k(f"s_mov_b32 s{sT}, {WS_MODP + p*24576}\nbuffer_load_dwordx4 {vr(MP+4*p,4)}, v{T}, {sr(dW,4)}, s{sT} offen")
    dZ = k.srd(pWS, ZA_BYTES, WS_ZA)
    vR3 = AD; vSt = AD + 4
    sBase = k.s(); sAdd = k.s(); sF = k.s(); sS0 = k.s()
    k(f"s_lshl_b32 s{sBase}, s{sJ}, 11\ns_lshr_b32 s{sT}, s{sJ}, 2\ns_lshl_b32 s{sT}, s{sT}, 6\ns_add_u32 s{sBase}, s{sBase}, s{sT}")
    k(f"s_cmp_ge_u32 s{sJ}, 4\ns_cselect_b32 s{sAdd}, 1.0, 0")
    k(f"s_lshl_b32 s{sF}, s2, 2\ns_and_b32 s{sF}, s{sF}, 48\ns_lshl_b32 s{sS0}, s2, 6")
    vW1 = k.v(); vR1 = k.v(); vMw = k.v(); vW2 = k.v(2)
    k(f"v_add_u32 v{vW1}, s{sBase}, v{vOff}\nv_lshl_add_u32 v{vR1}, v{vL}, 2, s{sBase}")
    k(f"v_and_b32 v{T}, 1, v0\nv_lshlrev_b32 v{T}, 10, v{T}\nv_bfe_u32 v{T+1}, v0, 1, 6\nv_lshl_add_u32 v{T}, v{T+1}, 4, v{T}")
    k(f"s_lshr_b32 s{sT}, s{sJ}, 1\ns_lshl_b32 s{sT}, s{sT}, 11\ns_add_u32 s{sT}, s{sT}, {MOD}\nv_add_u32 v{vMw}, s{sT}, v{T}")
    k(f"v_lshrrev_b32 v{T}, 4, v{vL}\nv_and_b32 v{T+1}, 7, v{vL}\nv_xor_b32 v{T}, v{T}, v{T+1}\nv_and_b32 v{T+1}, 15, v{vL}\nv_lshlrev_b32 v{T+1}, 3, v{T+1}\nv_add_u32 v{T}, v{T}, v{T+1}")
    k(f"v_lshl_add_u32 v{vW2}, v{T}, 4, s{sBase}\nv_xor_b32 v{T}, 4, v{T}\nv_lshl_add_u32 v{vW2+1}, v{T}, 4, s{sBase}")
    k(f"s_cmp_ge_u32 s{sJ}, 2\ns_cbranch_scc1 A_no3")
    k(f"s_add_u32 m0, s{sL}, {TAB+16384}\nbuffer_load_dwordx4 v{vOff}, {sr(dW,4)}, s{sS} offen lds")
    k("A_no3:")
    k(f"s_add_u32 m0, s{sL}, {TAB}\nbuffer_load_dwordx4 v{vOff}, {sr(dW,4)}, s{sQ0} offen lds")
    k(f"s_add_u32 m0, s{sL}, {TAB+8192}\nbuffer_load_dwordx4 v{vOff}, {sr(dW,4)}, s{sQ1} offen lds")
    k(f"s_lshl_b32 s{sT}, s{sJ}, 11\ns_add_u32 s{sT}, s{sT}, {WS_TAW}")
    k(f"buffer_load_dwordx4 {vr(AD,4)}, v{vOff}, {sr(dW,4)}, s{sT} offen\nbuffer_load_dwordx4 {vr(AD+4,4)}, v{vOff}, {sr(dW,4)}, s{sT} offen offset:1024")
    sRo = k.s(8); sDs = k.s(2); vWc = k.v(2); vWd = k.v(2)
    mm = k.mark()
    sJb = k.s(); sUn = k.s(); sBl = k.s(); sRh = k.s(); sWh = k.s(); sKg = k.s(); sSt = k.s(); sA = k.s()
    for n in range(2):
        k(f"s_lshl_b32 s{sJb}, s2, 3\ns_add_u32 s{sJb}, s{sJb}, s{sJ}")
        if n == 0:
            k(f"s_lshr_b32 s{sUn}, s{sJb}, 3\ns_and_b32 s{sBl}, s{sJb}, 7\ns_lshr_b32 s{sRh}, s{sUn}, 7\ns_add_u32 s{sRh}, s{sRh}, 1")
        else:
            k(f"s_lshr_b32 s{sUn}, s{sJb}, 3\ns_and_b32 s{sBl}, s{sJb}, 7\ns_lshr_b32 s{sA}, s{sJb}, 2\ns_and_b32 s{sT}, s{sJb}, 3\ns_lshr_b32 s{sRh}, s{sJb}, 7\ns_and_b32 s{sRh}, s{sRh}, 4")
            k(f"s_cmp_lt_u32 s{sJb}, 1024\ns_cselect_b32 s{sUn}, s{sUn}, s{sA}\ns_cselect_b32 s{sBl}, s{sBl}, s{sT}\ns_cselect_b32 s{sRh}, 3, s{sRh}")
        k(f"s_bfe_u32 s{sWh}, s{sUn}, 0x10006\ns_and_b32 s{sKg}, s{sUn}, 63")
        k(f"s_lshr_b32 s{sA}, s{sKg}, 2\ns_lshl_b32 s{sA}, s{sA}, 3\ns_add_u32 s{sA}, s{sA}, s{sRh}\ns_and_b32 s{sT}, s{sKg}, 3\ns_lshl_b32 s{sT}, s{sT}, 9\ns_add_u32 s{sA}, s{sA}, s{sT}")
        k(f"s_sub_u32 s{sT}, 2048, s{sA}\ns_cmp_eq_u32 s{sWh}, 1\ns_cselect_b32 s{sA}, s{sT}, s{sA}\ns_movk_i32 s{sSt}, 128\ns_cselect_b32 s{sSt}, -128, s{sSt}\ns_cselect_b64 vcc, -1, 0")
        k(f"s_lshl_b32 s{sT}, s{sBl}, 7\nv_lshl_add_u32 v{T}, v{vL}, 1, s{sT}\nv_sub_u32 v{T+1}, 1024, v{T}\nv_cndmask_b32 v{vWc+n}, v{T}, v{T+1}, vcc")
        for v in range(4):
            k(f"s_and_b32 s{sT}, s{sA}, 2047\ns_mul_i32 s{sRo+4*n+v}, s{sT}, 1026")
            if v < 3: k(f"s_add_u32 s{sA}, s{sA}, s{sSt}")
        k(f"s_lshl_b32 s{sA}, s{sRh}, 6\ns_sub_i32 s{sA}, s{sA}, 31\ns_max_i32 s{sA}, s{sA}, 0\ns_lshl_b32 s{sT}, s{sBl}, 3\ns_add_u32 s{sA}, s{sA}, s{sT}\ns_mul_i32 s{sA}, s{sA}, {ZA_PITCH}")
        k(f"s_and_b32 s{sT}, s{sUn}, 127\ns_lshl_b32 s{sT}, s{sT}, 7\ns_add_u32 s{sDs+n}, s{sA}, s{sT}\ns_bfe_u32 s{sT}, s{sKg}, 0x30002")
        k(f"v_and_b32 v{T}, 7, v{vL}\nv_xor_b32 v{T}, s{sT}, v{T}\nv_lshrrev_b32 v{T+1}, 3, v{vL}\nv_mul_u32_u24 v{T+1}, {ZA_PITCH}, v{T+1}\nv_lshl_add_u32 v{vWd+n}, v{T}, 4, v{T+1}")
    k.release(mm)
    dR = k.srd(pF, W_BYTES); dI = k.srd(pF + 2, W_BYTES); dB = k.srd(pWS, ZA_BYTES, WS_WB)
    WV = k.v(16); SP = k.v(4)
    k(f"v_and_b32 v{T}, 7, v{vL}\nv_lshrrev_b32 v{T+1}, 3, v{vL}\nv_mul_u32_u24 v{SP+2}, 1026, v{T}\nv_lshl_add_u32 v{SP+2}, v{T+1}, 9, v{SP+2}")
    k(f"v_lshlrev_b32 v{SP+3}, 2, v{T}\nv_lshl_add_u32 v{SP+3}, v{T+1}, 13, v{SP+3}")
    k(f"v_subrev_u32 v{T}, 448, v0\nv_cmp_gt_u32 vcc, 24, v{T}\nv_mov_b32 v{T}, {OOB}\nv_cndmask_b32 v{SP+2}, v{T}, v{SP+2}, vcc\nv_cndmask_b32 v{SP+3}, v{T}, v{SP+3}, vcc")
    X = k.v(16); vSum = k.v(); vMax = k.v()
    k.stamp()
    k("s_waitcnt vmcnt(8)")
    unpack_bf16(k, X, XP, 8, sMask)
    k(f"v_add_f32 v{vSum}, v{X}, v{X+1}\nv_add_f32 v{T}, v{X+2}, v{X+3}")
    for i in range(2, 8): k(f"v_add_f32 v{vSum}, v{vSum}, v{X+2*i}\nv_add_f32 v{T}, v{T}, v{X+2*i+1}")
    k(f"v_add_f32 v{vSum}, v{vSum}, v{T}")
    k("s_waitcnt vmcnt(4)")
    k.stamp()
    def modfin(k):
        for i in range(4): k(f"v_add_f32 v{MP+i}, v{MP+i}, v{MP+4+i}\nv_add_f32 v{MP+8+i}, v{MP+8+i}, v{MP+12+i}")
        for i in range(4): k(f"v_add_f32 v{MP+i}, v{MP+i}, v{MP+8+i}")
        k(f"v_cvt_pk_bf16_f32 v{MP+4}, v{MP}, v{MP+1}\nv_cvt_pk_bf16_f32 v{MP+5}, v{MP+2}, v{MP+3}")
        unpack_bf16(k, MP, MP + 4, 2, sMask)
        for i in range(4): k(f"v_add_f32 v{MP+i}, s{sAdd}, v{MP+i}")
        k(f"v_cvt_pk_bf16_f32 v{MP+4}, v{MP}, v{MP+1}\nv_cvt_pk_bf16_f32 v{MP+5}, v{MP+2}, v{MP+3}")
        unpack_bf16(k, MP, MP + 4, 2, sMask)
        k(f"ds_write_b128 v{vMw}, {vr(MP,4)}")
        k(f"v_max3_f32 v{vMax}, abs(v{MP}), abs(v{MP+1}), abs(v{MP+2})\nv_max_f32 v{vMax}, abs(v{MP+3}), v{vMax}")
    sSum = k.s(); sMax = k.s()
    with_fill(k, cap(lambda t: wave_reduce(t, "v_add_f32", [vSum], [sSum])), cap(modfin), 5)
    vM = k.v(); vDl = k.v(); vE = k.v()
    def meanpart(k):
        k(f"v_mov_b32 v{vDl}, {fbits(1/1024)}\nv_mul_f32 v{vDl}, s{sSum}, v{vDl}\nv_mov_b32 v{vM}, v{vDl}")
        round_bf16(k, vM)
        k(f"v_sub_f32 v{vDl}, v{vDl}, v{vM}")
        for i in range(16): k(f"v_sub_f32 v{X+i}, v{X+i}, v{vM}")
    with_fill(k, cap(lambda t: wave_reduce(t, "v_max_f32", [vMax], [sMax])), cap(meanpart), 3)
    k(f"s_lshl_b32 s{sT}, s{sJ}, 2\ns_add_u32 s{sT}, s{sT}, {MX}\nv_mov_b32 v{T+1}, s{sT}")
    k(f"v_mov_b32 v{vMax}, s{sMax}\nds_write_b32 v{T+1}, v{vMax}")
    k(f"v_mul_f32 v{vSum}, v{X}, v{X}\nv_mul_f32 v{T}, v{X+1}, v{X+1}")
    for i in range(1, 8): k(f"v_fmac_f32 v{vSum}, v{X+2*i}, v{X+2*i}\nv_fmac_f32 v{T}, v{X+2*i+1}, v{X+2*i+1}")
    k(f"v_add_f32 v{vSum}, v{vSum}, v{T}")
    k("s_waitcnt vmcnt(0) lgkmcnt(0)\ns_barrier")
    k.stamp()
    SA = k.v(16); CA = k.v(16); FA = k.v(16)
    assert CA == SA + 16
    k(f"v_mov_b32 v{T}, {MX}\nds_read_b128 {vr(MP,4)}, v{T}\nds_read_b128 {vr(MP+4,4)}, v{T} offset:16")
    for q in range(2):
        for h in range(2): k(f"ds_read_b128 {vr(CA+8*q+4*h,4)}, v{vOff} offset:{MOD+4096+2048*q+1024*h}")
    for q in range(2):
        for h in range(2): k(f"ds_read_b128 {vr(SA+8*q+4*h,4)}, v{vOff} offset:{MOD+2048*q+1024*h}")
    def fq(ct, ks, ri): return TAB + 1024 * ((ct * 2 + ks) * 2 + ri)
    for ct in range(2):
        for ri in range(2): k(f"ds_read_b128 {vr(FA+(ct*2+ri)*4,4)}, v{vOff} offset:{fq(ct,0,ri)}")
    for n in range(2):
        for v in range(4):
            k(f"buffer_load_ushort v{WV+8*n+v}, v{vWc+n}, {sr(dR,4)}, s{sRo+4*n+v} offen nt")
            k(f"buffer_load_ushort v{WV+8*n+4+v}, v{vWc+n}, {sr(dI,4)}, s{sRo+4*n+v} offen nt")
    code_pf_w(k, "fb_kernel", nxt, sJ, 6, IDX_STD, vL, T + 4, T + 7)
    k(f"s_mul_i32 s{sT}, s2, 8208")
    k(f"buffer_load_ushort v{SP}, v{SP+2}, {sr(dR,4)}, s{sT} offen\nbuffer_load_ushort v{SP+1}, v{SP+2}, {sr(dI,4)}, s{sT} offen")
    pf_uni(k, pW, pf[0], pf[1], 2, sJ, vL, T + 6, T + 4)
    wave_reduce(k, "v_add_f32", [vSum], [sSum])
    k("s_waitcnt lgkmcnt(12)")
    k(f"v_max3_f32 v{MP}, v{MP}, v{MP+1}, v{MP+2}\nv_max3_f32 v{MP+4}, v{MP+4}, v{MP+5}, v{MP+6}\nv_max3_f32 v{MP}, v{MP}, v{MP+3}, v{MP+7}\nv_max_f32 v{MP}, v{MP}, v{MP+4}")
    k(f"v_frexp_exp_i32_f32 v{vE}, v{MP}\nv_sub_u32 v{vE}, 3, v{vE}\nv_min_i32 v{vE}, 60, v{vE}\nv_max_i32 v{vE}, {(-100)&0xffffffff}, v{vE}")
    vR = vM
    def rpart(k):
        k(f"v_mov_b32 v{vR}, {fbits(1/1024)}\nv_mul_f32 v{vR}, s{sSum}, v{vR}\nv_fma_f32 v{vR}, -v{vDl}, v{vDl}, v{vR}\nv_max_f32 v{vR}, 0, v{vR}")
        round_bf16(k, vR)
        k(f"v_add_f32 v{vR}, {fbits(1e-5)}, v{vR}")
        round_bf16(k, vR)
        k(f"v_sqrt_f32 v{vR}, v{vR}")
        round_bf16(k, vR)
        k(f"v_rcp_f32 v{vR}, v{vR}")
        k(f"v_ldexp_f32 v{vR}, v{vR}, v{vE}")
    k("s_waitcnt lgkmcnt(4)")
    FB = CA
    fill = [f"v_mul_f32 v{X+i}, v{X+i}, v{CA+i}" for i in range(16)]
    fill += [f"ds_read_b128 {vr(FB+(ct*2+ri)*4,4)}, v{vOff} offset:{fq(ct,1,ri)}" for ct in range(2) for ri in range(2)]
    fill += [f"v_ldexp_f32 v{SA+i}, v{SA+i}, v{vE}" for i in range(16)]
    with_fill(k, cap(rpart), fill, 3)
    Z = XP
    for i in range(8):
        k(f"v_fma_f32 v{X+2*i}, v{X+2*i}, v{vR}, v{SA+2*i}\nv_fma_f32 v{X+2*i+1}, v{X+2*i+1}, v{vR}, v{SA+2*i+1}")
        k(f"v_cvt_pk_f16_f32 v{Z+i}, v{X+2*i}, v{X+2*i+1}")
        if i == 3: k(f"ds_write_b128 v{vW1}, {vr(Z,4)}")
    k(f"ds_write_b128 v{vW1}, {vr(Z+4,4)} offset:1024")
    k.stamp()
    OP = MP
    for h in range(4): k(f"ds_read2st64_b32 {vr(OP+2*h,2)}, v{vR1} offset0:{2*h} offset1:{2*h+1}")
    TW = SA; F2 = MP + 8
    for q in range(4): k(f"ds_read_b128 {vr(TW+4*q,4)}, v{vOff} offset:{TAB+8192+1024*q}")
    for q in range(2): k(f"ds_read_b128 {vr(F2+4*q,4)}, v{vOff} offset:{TAB+12288+1024*q}")
    D1 = X
    for q in range(4): k(f"v_xor_b32 v{vSt+q}, s{sF}, v{vSt+q}")
    k("s_waitcnt lgkmcnt(8)")
    for o in range(4): k(f"{MF} {vr(D1+o*4,4)}, {vr(OP,4)}, {vr(FA+o*4,4)}, 0")
    k("s_waitcnt lgkmcnt(6)")
    for o in range(4): k(f"{MF} {vr(D1+o*4,4)}, {vr(OP+4,4)}, {vr(FB+o*4,4)}, {vr(D1+o*4,4)}")
    F3 = FA
    for q in range(4): k(f"ds_read_b128 {vr(F3+4*q,4)}, v{vOff} offset:{TAB+14336+1024*q}")
    k("s_waitcnt lgkmcnt(4)")
    D2 = CA
    for ct in range(2):
        for v in range(4):
            re = D1 + ct * 8 + v; im = re + 4
            cmul_tw(k, re, im, TW + 4 * ct + v, TW + 8 + 4 * ct + v, False, T + v)
            k(f"v_cvt_pk_f16_f32 v{OP+4*ct+v}, v{re}, v{im}")
        k(f"{MF} {vr(D2+ct*8,4)}, {vr(OP+4*ct,4)}, {vr(F2,4)}, 0")
        k(f"{MF} {vr(D2+ct*8+4,4)}, {vr(OP+4*ct,4)}, {vr(F2+4,4)}, 0")
    for ct in range(2):
        for v in range(4): k(f"v_cvt_pk_f16_f32 v{Z+4*ct+v}, v{D2+ct*8+v}, v{D2+ct*8+4+v}")
        k(f"ds_write_b128 v{vW2+ct}, {vr(Z+4*ct,4)}")
    k.stamp()
    k("s_waitcnt lgkmcnt(0)\ns_barrier")
    k.stamp()
    O3 = X
    for q in range(2):
        for x in range(2):
            d = O3 + (q * 2 + x) * 4
            k(f"ds_read2st64_b32 {vr(d,2)}, v{vR3+2*q+x} offset0:0 offset1:8")
            k(f"ds_read2st64_b32 {vr(d+2,2)}, v{vR3+2*q+x} offset0:16 offset1:24")
    D3 = SA
    for q in range(2):
        for x in range(2):
            k(f"s_waitcnt lgkmcnt({6-2*(2*q+x)})")
            for ri in range(2):
                d = D3 + ((q * 2 + x) * 2 + ri) * 4
                k(f"{MF} {vr(d,4)}, {vr(O3+(q*2+x)*4,4)}, {vr(F3+(x*2+ri)*4,4)}, 0")
    P = MP
    for q in range(2):
        for v in range(4):
            for x in range(2):
                d = D3 + ((q * 2 + x) * 2) * 4 + v
                k(f"v_cvt_pk_f16_f32 v{P+8*q+2*v+x}, v{d}, v{d+4}")
        for e in range(4): k(f"v_permlane32_swap_b32 v{P+8*q+e}, v{P+8*q+4+e}")
        for ins in range(2):
            k(f"buffer_store_dwordx4 {vr(P+8*q+4*ins,4)}, v{vSt+2*q+ins}, {sr(dZ,4)}, s{sS0} offen {st_flags}")
    k(f"s_waitcnt vmcnt({5 if pf[1] else 4})")
    for n in range(2):
        for v in range(4): k(f"v_lshl_or_b32 v{WV+8*n+v}, v{WV+8*n+4+v}, 16, v{WV+8*n+v}")
        k(f"buffer_store_dwordx4 {vr(WV+8*n,4)}, v{vWd+n}, {sr(dB,4)}, s{sDs+n} offen sc1")
    k(f"v_lshl_or_b32 v{SP}, v{SP+1}, 16, v{SP}\ns_lshl_b32 s{sT}, s2, 5\ns_add_u32 s{sT}, s{sT}, {WS_SPC}")
    k(f"buffer_store_dword v{SP}, v{SP+3}, {sr(dW,4)}, s{sT} offen")
    sM7 = sAdd
    k(f"s_mov_b32 s{sM7}, 0x7fff7fff\nv_and_b32 v{SP+1}, s{sM7}, v{SP}")
    for n in range(2):
        for v in range(4): k(f"v_and_b32 v{WV+8*n+4+v}, s{sM7}, v{WV+8*n+v}\nv_pk_max_u16 v{SP+1}, v{SP+1}, v{WV+8*n+4+v}")
    k(f"v_lshrrev_b32 v{T}, 16, v{SP+1}\nv_and_b32 v{SP+1}, 0xffff, v{SP+1}\nv_max_u32 v{SP+1}, v{SP+1}, v{T}")
    wave_reduce(k, "v_max_u32", [SP + 1], [sMax])
    k(f"s_lshl_b32 s{sT}, s{sJ}, 2\ns_add_u32 s{sT}, s{sT}, {MX}\nv_mov_b32 v{T}, s{sT}\nv_mov_b32 v{SP+1}, s{sMax}\nds_write_b32 v{T}, v{SP+1}")
    k("s_waitcnt lgkmcnt(0)\ns_barrier")
    k(f"s_cmp_lg_u32 s{sJ}, 0\ns_cbranch_scc1 A_noscal")
    k(f"ds_read_b128 {vr(X,4)}, v{T}\nds_read_b128 {vr(X+4,4)}, v{T} offset:16\ns_lshl_b32 s{sT}, s2, 2\ns_add_u32 s{sT}, s{sT}, {WS_WMAX}\nv_mov_b32 v{T}, 0\ns_waitcnt lgkmcnt(0)")
    k(f"v_max3_u32 v{X}, v{X}, v{X+1}, v{X+2}\nv_max3_u32 v{X+4}, v{X+4}, v{X+5}, v{X+6}\nv_max3_u32 v{X}, v{X}, v{X+3}, v{X+7}\nv_max_u32 v{X}, v{X}, v{X+4}")
    k(f"buffer_store_dword v{X}, v{T}, {sr(dW,4)}, s{sT} offen")
    k(f"s_cmp_lg_u32 s2, 0\ns_cbranch_scc1 A_noscal")
    k(f"v_mov_b32 v{T}, {WS_SCAL}\nbuffer_store_dword v{vE}, v{T}, {sr(dW,4)}, 0 offen")
    k("A_noscal:")
    k.stamp()
    if k.prof: k("s_waitcnt vmcnt(0)")
    k.stamp_flush()
    k("A_end:\ns_endpgm")
    return k

def fin_job(k, pWS, sJ, vL, T, endlabel):
    MP = k.v(32); vMw = k.v(); vOff = k.v(); sL = k.s(); sAdd = k.s(); sT = k.s(); sMask = k.s()
    k(f"s_lshl_b32 s{sL}, s{sJ}, 11\nv_lshlrev_b32 v{vOff}, 4, v{vL}\ns_mov_b32 s{sMask}, 0xffff0000\ns_waitcnt lgkmcnt(0)")
    dW = k.srd(pWS, WS_ZA)
    for p in range(4):
        k(f"s_add_u32 s{sT}, s{sL}, {WS_MODP + 8192 + p*24576}")
        for h in range(2): k(f"buffer_load_dwordx4 {vr(MP+8*p+4*h,4)}, v{vOff}, {sr(dW,4)}, s{sT} offen offset:{1024*h}")
    k(f"v_and_b32 v{T}, 1, v{vL}\nv_mul_u32_u24 v{T}, 73, v{T}\nv_bfe_u32 v{T+1}, v{vL}, 1, 2\nv_mad_u32_u24 v{T}, v{T+1}, 18, v{T}")
    k(f"v_lshrrev_b32 v{T+1}, 3, v{vL}\nv_add_u32 v{T}, v{T}, v{T+1}\nv_lshlrev_b32 v{vMw}, 4, v{T}")
    k(f"s_lshr_b32 s{sT}, s{sJ}, 1\ns_cmp_eq_u32 s{sT}, 2\ns_cselect_b32 s{sAdd}, 1.0, 0")
    k("s_waitcnt vmcnt(0)")
    for i in range(8): k(f"v_add_f32 v{MP+i}, v{MP+i}, v{MP+8+i}\nv_add_f32 v{MP+16+i}, v{MP+16+i}, v{MP+24+i}")
    for i in range(8): k(f"v_add_f32 v{MP+i}, v{MP+i}, v{MP+16+i}")
    for i in range(4): k(f"v_cvt_pk_bf16_f32 v{MP+8+i}, v{MP+2*i}, v{MP+2*i+1}")
    k(f"s_cmp_ge_u32 s{sJ}, 6\ns_cbranch_scc1 F_gb")
    unpack_bf16(k, MP, MP + 8, 4, sMask)
    for i in range(8): k(f"v_add_f32 v{MP+i}, s{sAdd}, v{MP+i}")
    for i in range(4): k(f"v_cvt_pk_bf16_f32 v{MP+8+i}, v{MP+2*i}, v{MP+2*i+1}")
    unpack_bf16(k, MP, MP + 8, 4, sMask)
    k(f"s_mul_i32 s{sT}, s{sJ}, {C_MV}\ns_add_u32 s{sT}, s{sT}, {WS_MODC}")
    k(f"buffer_store_dwordx4 {vr(MP,4)}, v{vMw}, {sr(dW,4)}, s{sT} offen\nbuffer_store_dwordx4 {vr(MP+4,4)}, v{vMw}, {sr(dW,4)}, s{sT} offen offset:128")
    k("s_endpgm\nF_gb:")
    k(f"s_lshl_b32 s{sT}, s{sJ}, 10\ns_add_u32 s{sT}, s{sT}, {WS_GB-6144}\nv_lshlrev_b32 v{T}, 3, v{vL}")
    k(f"buffer_store_dwordx2 {vr(MP+8,2)}, v{T}, {sr(dW,4)}, s{sT} offen\nbuffer_store_dwordx2 {vr(MP+10,2)}, v{T}, {sr(dW,4)}, s{sT} offen offset:512")

def gen_b(pf=(0, 0), st_flags="sc1", nxt=("fc_kernel", "g1_kernel")):
    TAB = 16384; OUT = 24576; WL = 40960
    NM = 258
    k = Kern("fb_kernel", NM + 8, 512, WL + 16384)
    pW1 = k.s(2); pWS = k.s(2)
    sSlot = k.s(); sT = k.s(); sRho = k.s(); sC = k.s()
    k.stamp(True)
    k(f"s_load_dwordx2 {sr(pWS,2)}, s[0:1], 96")
    if pf[1]: k(f"s_load_dwordx2 {sr(pW1,2)}, s[0:1], 32")
    k(f"s_cmp_ge_u32 s2, {NM+8}\ns_cbranch_scc1 B_end")
    vL, vI, vG, sU, T = lane_ids(k)
    k(f"s_cmp_ge_u32 s2, {NM}\ns_cbranch_scc1 B_side")
    m0 = k.mark()
    k(f"s_and_b32 s{sT}, s2, 7\ns_add_u32 s{sT}, s{sT}, 1\ns_lshr_b32 s{sRho}, s{sT}, 1\ns_and_b32 s{sC}, s{sT}, 1\ns_lshl_b32 s{sC}, s{sC}, 5")
    k(f"s_cmp_eq_u32 s{sRho}, 0\ns_cselect_b32 s{sC}, 0, s{sC}\ns_lshr_b32 s{sT}, s2, 3\ns_add_u32 s{sC}, s{sC}, s{sT}")
    k(f"s_cmp_eq_u32 s2, 257\ns_cselect_b32 s{sRho}, 4, s{sRho}")
    k(f"s_lshl_b32 s{sSlot}, s{sRho}, 6\ns_sub_i32 s{sSlot}, s{sSlot}, 31\ns_max_i32 s{sSlot}, s{sSlot}, 0\ns_add_u32 s{sSlot}, s{sSlot}, s{sC}")
    vOff = k.v()
    k(f"v_lshlrev_b32 v{vOff}, 4, v{vL}")
    sO = k.s(); sL = k.s()
    k(f"s_mul_i32 s{sO}, s{sSlot}, {ZA_PITCH}\ns_lshl_b32 s{sL}, s{sU}, 11\ns_add_u32 s{sO}, s{sO}, s{sL}\ns_mov_b32 m0, s{sL}")
    k("s_waitcnt lgkmcnt(0)")
    k.stamp_init2(2, pWS); k.stamp()
    dZ = k.srd(pWS, ZA_BYTES, WS_ZA)
    k(f"buffer_load_dwordx4 v{vOff}, {sr(dZ,4)}, s{sO} offen lds")
    k(f"buffer_load_dwordx4 v{vOff}, {sr(dZ,4)}, s{sO} offen offset:1024 lds")
    dW = k.srd(pWS, WS_ZA)
    k(f"s_lshl_b32 s{sT}, s{sU}, 10\ns_add_u32 m0, s{sT}, {TAB}\ns_add_u32 s{sT}, s{sT}, {WS_TBC}")
    k(f"buffer_load_dwordx4 v{vOff}, {sr(dW,4)}, s{sT} offen lds")
    WP = k.v(8); WE = k.v(8); WM = k.v(4); vWrd = k.v(); sSp = k.s()
    k(f"s_mov_b32 s{sT}, {WS_WMAX}\nbuffer_load_dwordx4 {vr(WM,4)}, v{vOff}, {sr(dW,4)}, s{sT} offen")
    dB = k.srd(pWS, ZA_BYTES, WS_WB)
    k(f"s_add_u32 m0, s{sL}, {WL}\ns_cmp_ge_u32 s2, 256\ns_cselect_b32 s{dB+2}, 0, s{dB+2}")
    k(f"buffer_load_dwordx4 v{vOff}, {sr(dB,4)}, s{sO} offen lds\nbuffer_load_dwordx4 v{vOff}, {sr(dB,4)}, s{sO} offen offset:1024 lds")
    k(f"s_cselect_b32 s{sT}, 0, s{sC}\ns_cselect_b64 vcc, -1, 0\ns_or_b32 s{sSp}, s{sT}, s{sU}")
    k(f"s_cmp_lg_u32 s{sSp}, 0\ns_cbranch_scc1 B_nox")
    sE1 = k.s(); sE2o = k.s()
    k(f"s_lshl_b32 s{sE1}, s{sC}, 8\ns_sub_u32 s{sE2o}, {WS_SPC+16384}, s{sE1}\ns_add_u32 s{sE1}, s{sE1}, {WS_SPC}")
    for v in range(4):
        k(f"v_lshl_add_u32 v{T}, v{vG}, 2, {v}\nv_lshl_add_u32 v{T}, v{T}, 4, v{vI}\nv_lshl_add_u32 v{T}, v{T}, 3, s{sRho}")
        k(f"v_sub_u32 v{T+1}, 2048, v{T}\nv_and_b32 v{T+1}, 2047, v{T+1}")
        k(f"v_cndmask_b32 v{T+2}, v{T+1}, v{T}, vcc\nv_cndmask_b32 v{T+3}, v{T}, v{T+1}, vcc\nv_lshlrev_b32 v{T+2}, 2, v{T+2}\nv_lshlrev_b32 v{T+3}, 2, v{T+3}")
        k(f"buffer_load_dword v{WE+v}, v{T+2}, {sr(dW,4)}, s{sE1} offen\nbuffer_load_dword v{WE+4+v}, v{T+3}, {sr(dW,4)}, s{sE2o} offen")
    k("B_nox:")
    k(f"v_and_b32 v{T}, 7, v{vI}\nv_xor_b32 v{T}, s{sU}, v{T}\nv_lshlrev_b32 v{T}, 4, v{T}\nv_lshl_add_u32 v{T}, v{vG}, 7, v{T}\nv_lshl_add_u32 v{vWrd}, v{vI}, 9, v{T}")
    dO = k.srd(pWS, ZB_BYTES, WS_ZB)
    k(f"s_cmp_lt_u32 s2, 256\ns_cbranch_scc1 B_reg\ns_setprio 3\ns_cmp_lg_u32 s{sU}, 0\ns_cbranch_scc1 B_idle\nB_reg:")
    vCp = k.v(); vSp = k.v()
    k(f"s_lshl_b32 s{sT}, s{sC}, 3\ns_add_u32 s{sT}, s{sT}, s{sU}\ns_add_u32 s{sT}, s{sT}, 256\nv_mov_b32 v{T}, s{sT}")
    sincos(k, vCp, vSp, T, 2048, T + 1)
    k(f"v_mul_f32 v{vCp}, {fbits(0.25)}, v{vCp}\nv_mul_f32 v{vSp}, {fbits(0.25)}, v{vSp}")
    G = k.v(32)
    def g1(ks, o): return G + (ks * 4 + o) * 4
    for e2 in range(2):
        k(f"v_lshl_add_u32 v{T}, v{vG}, 1, {e2}\nv_mul_u32_u24 v{T}, v{T}, v{vI}")
        sincos(k, T + 1, T + 2, T, 16, T + 3)
        k(f"v_mul_f32 v{T+4}, v{vCp}, v{T+1}\nv_mul_f32 v{T+5}, v{vCp}, v{T+2}")
        k(f"v_mul_f32 v{T+6}, v{vSp}, v{T+1}\nv_mul_f32 v{T+7}, v{vSp}, v{T+2}")
        p1 = f"v{T+4}, v{T+5}"; p2 = f"-v{T+5}, v{T+4}"; p3 = f"v{T+7}, -v{T+6}"; p4 = f"v{T+6}, v{T+7}"
        for o, (pa, pb) in enumerate(((p1, p3), (p2, p4), (p3, p1), (p4, p2))):
            k(f"v_cvt_pk_f16_f32 v{g1(0,o)+2*e2}, {pa}\nv_cvt_pk_f16_f32 v{g1(0,o)+2*e2+1}, {pb}")
    sSign = k.s()
    k(f"s_mov_b32 s{sSign}, 0x80008000")
    k(f"v_and_b32 v{T}, 1, v{vI}\nv_mul_lo_u32 v{T}, v{T}, s{sSign}")
    for x in range(16): k(f"v_xor_b32 v{G+16+x}, v{T}, v{G+x}")
    H = k.v(16)
    for v in range(4):
        k(f"v_lshl_add_u32 v{T}, v{vG}, 2, {v}\nv_mul_u32_u24 v{T}, v{T}, v{vI}")
        sincos(k, T + 1, T + 2, T, 16, T + 3)
        k(f"v_mul_f32 v{T+4}, v{vCp}, v{T+1}\nv_mul_f32 v{T+5}, v{vCp}, v{T+2}\nv_mul_f32 v{T+6}, v{vSp}, v{T+1}\nv_mul_f32 v{T+7}, v{vSp}, v{T+2}")
        k(f"v_cvt_pk_f16_f32 v{H+v}, v{T+4}, -v{T+5}\nv_cvt_pk_f16_f32 v{H+4+v}, v{T+5}, v{T+4}")
        k(f"v_cvt_pk_f16_f32 v{H+8+v}, v{T+7}, v{T+6}\nv_cvt_pk_f16_f32 v{H+12+v}, -v{T+6}, v{T+7}")
    vRd = vCp; vWr = vSp
    k(f"s_lshr_b32 s{sT}, s{sU}, 1")
    k(f"v_lshrrev_b32 v{T}, 2, v{vI}\nv_xor_b32 v{T}, s{sT}, v{T}\nv_lshlrev_b32 v{T}, 4, v{T}\nv_lshl_add_u32 v{T}, v{vI}, 6, v{T}")
    k(f"s_and_b32 s{sT}, s{sU}, 1\ns_lshl_b32 s{sT}, s{sT}, 3\nv_add_u32 v{T}, s{sT}, v{T}")
    k(f"v_lshl_add_u32 v{vRd}, v{vG}, 11, v{T}\nv_lshl_add_u32 v{vWr}, v{vG}, 12, v{T}")
    vOr = vI; vOs = vG
    k(f"v_lshlrev_b32 v{vOr}, 4, v0")
    k(f"v_lshrrev_b32 v{T}, 2, v0\nv_mul_u32_u24 v{T}, {ZB_PITCH}, v{T}")
    k(f"v_lshrrev_b32 v{T+1}, 4, v0\nv_xor_b32 v{T+1}, v{T+1}, v0\nv_and_b32 v{T+1}, 3, v{T+1}\nv_lshl_add_u32 v{vOs}, v{T+1}, 4, v{T}")
    sMask = k.s(); sScale = k.s(); sE2 = k.s()
    k(f"s_mov_b32 s{sMask}, 0xffff0000")
    k.stamp()
    k("s_waitcnt vmcnt(0)\ns_barrier")
    k.stamp()
    OP = k.v(8); D = k.v(16); TB = k.v(16)
    for ks in range(2):
        for e2 in range(2): k(f"ds_read_b64 {vr(OP+4*ks+2*e2,2)}, v{vRd} offset:{(8*ks+e2)*1024}")
    for q in range(4): k(f"ds_read_b128 {vr(TB+4*q,4)}, v{vOff} offset:{TAB+1024*q}")
    TWC = TB; TWS = TB + 4; FR = TB + 8; FI = TB + 12; CR = TB + 8; CI = TB + 12
    k(f"ds_read_b128 {vr(WP,4)}, v{vWrd} offset:{WL}\nds_read_b128 {vr(WP+4,4)}, v{vWrd} offset:{WL+8192}")
    code_pf_w(k, nxt[0], nxt[1], sU, 7, IDX_STD, vL, T + 4, T + 7)
    pf_uni(k, pW1, pf[0], pf[1], 2, sU, vL, T + 6, T + 4)
    k(f"v_max3_u32 v{WM}, v{WM}, v{WM+1}, v{WM+2}\nv_max_u32 v{WM}, v{WM}, v{WM+3}")
    red = cap(lambda t: wave_reduce(t, "v_max_u32", [WM], [sE2]))
    for l in red[:3]: k(l)
    k("s_waitcnt lgkmcnt(8)")
    for o in range(4):
        k(f"{MF} {vr(D+4*o,4)}, {vr(OP,4)}, {vr(g1(0,o),4)}, 0")
        if o & 1: k(red[3 + (o >> 1)])
    k("s_waitcnt lgkmcnt(6)")
    for o in range(4):
        k(f"{MF} {vr(D+4*o,4)}, {vr(OP+4,4)}, {vr(g1(1,o),4)}, {vr(D+4*o,4)}")
        if o & 1: k(red[5 + (o >> 1)])
    k(f"s_lshr_b32 s{sE2}, s{sE2}, 7\ns_sub_i32 s{sE2}, 125, s{sE2}\ns_min_i32 s{sE2}, s{sE2}, 60\ns_max_i32 s{sE2}, s{sE2}, -100")
    k(f"s_add_u32 s{sScale}, s{sE2}, 127\ns_lshl_b32 s{sScale}, s{sScale}, 23")
    k("s_waitcnt lgkmcnt(0)")
    for w in range(2):
        for v in range(4):
            re = D + 8 * w + v; im = re + 4
            cmul_tw(k, re, im, TWC + v, TWS + v, False, T + v)
            k(f"v_cvt_pk_f16_f32 v{OP+4*w+v}, v{re}, v{im}")
        k(f"{MF} {vr(D+8*w,4)}, {vr(FR,4)}, {vr(OP+4*w,4)}, 0")
        k(f"{MF} {vr(D+8*w+4,4)}, {vr(FI,4)}, {vr(OP+4*w,4)}, 0")
    k(f"ds_read_b128 {vr(CR,4)}, v{vOff} offset:{TAB+4096}\nds_read_b128 {vr(CI,4)}, v{vOff} offset:{TAB+5120}")
    Wf = G
    k.stamp()
    unpack_bf16(k, Wf, WP, 8, sMask)
    k(f"s_cmp_lg_u32 s{sSp}, 0\ns_cbranch_scc1 B_nospec")
    unpack_bf16(k, G + 16, WE, 8, sMask)
    k(f"s_cmp_ge_u32 s2, 256\ns_cselect_b32 s{sT}, 1.0, -1.0\ns_cselect_b32 s{sE1}, 0, {1<<23}\ns_sub_u32 s{sScale}, s{sScale}, s{sE1}")
    for i in range(8): k(f"v_add_f32 v{Wf+2*i}, v{Wf+2*i}, v{G+16+2*i}\nv_fmac_f32 v{Wf+2*i+1}, s{sT}, v{G+16+2*i+1}")
    k(f"v_mov_b32 v{T+4}, {WS_SCAL+4}\nv_mov_b32 v{T+5}, s{sE2}\nbuffer_store_dword v{T+5}, v{T+4}, {sr(dW,4)}, 0 offen")
    k("B_nospec:")
    for i in range(16): k(f"v_mul_f32 v{Wf+i}, s{sScale}, v{Wf+i}")
    k("s_waitcnt lgkmcnt(0)")
    for w in range(2):
        for v in range(4):
            re = D + 8 * w + v; im = re + 4
            cmul_tw(k, re, im, Wf + 8 * w + 2 * v, Wf + 8 * w + 2 * v + 1, w == 0, T + v)
            k(f"v_cvt_pk_f16_f32 v{OP+4*w+v}, v{re}, v{im}")
        k(f"{MF} {vr(D+8*w,4)}, {vr(OP+4*w,4)}, {vr(CR,4)}, 0")
        k(f"{MF} {vr(D+8*w+4,4)}, {vr(OP+4*w,4)}, {vr(CI,4)}, 0")
    E = G + 16
    for w in range(2):
        for v in range(4):
            re = D + 8 * w + v; im = re + 4
            cmul_tw(k, re, im, TWC + v, TWS + v, True, T + v)
            k(f"v_cvt_pk_f16_f32 v{OP+4*w+v}, v{re}, v{im}")
        for x in range(2):
            for ri in range(2):
                d = E + 8 * x + 4 * ri
                k(f"{MF} {vr(d,4)}, {vr(H+8*(x^w)+4*ri,4)}, {vr(OP+4*w,4)}, {vr(d,4) if w else 0}")
    P = WP
    for v in range(4):
        k(f"v_cvt_pk_f16_f32 v{P+2*v}, v{E+v}, v{E+4+v}\nv_cvt_pk_f16_f32 v{P+2*v+1}, v{E+8+v}, v{E+12+v}")
        k(f"ds_write_b64 v{vWr}, {vr(P+2*v,2)} offset:{OUT+v*1024}")
    k("s_waitcnt lgkmcnt(0)\nB_out:\ns_barrier")
    k.stamp()
    k(f"ds_read_b128 {vr(D,4)}, v{vOr} offset:{OUT}\nds_read_b128 {vr(D+4,4)}, v{vOr} offset:{OUT+8192}")
    k(f"s_lshl_b32 s{sO}, s{sSlot}, 6\ns_add_u32 s{sT}, s{sO}, {128*ZB_PITCH}")
    k("s_waitcnt lgkmcnt(1)")
    k(f"buffer_store_dwordx4 {vr(D,4)}, v{vOs}, {sr(dO,4)}, s{sO} offen {st_flags}")
    k("s_waitcnt lgkmcnt(0)")
    k(f"buffer_store_dwordx4 {vr(D+4,4)}, v{vOs}, {sr(dO,4)}, s{sT} offen {st_flags}")
    k.stamp()
    if k.prof: k("s_waitcnt vmcnt(0)")
    k.stamp_flush()
    k("s_endpgm")
    k("B_idle:")
    k(f"v_lshlrev_b32 v{vOr}, 4, v0")
    k(f"v_lshrrev_b32 v{T}, 2, v0\nv_mul_u32_u24 v{T}, {ZB_PITCH}, v{T}")
    k(f"v_lshrrev_b32 v{T+1}, 4, v0\nv_xor_b32 v{T+1}, v{T+1}, v0\nv_and_b32 v{T+1}, 3, v{T+1}\nv_lshl_add_u32 v{vOs}, v{T+1}, 4, v{T}")
    k("s_waitcnt vmcnt(0)\ns_barrier\ns_branch B_out")
    k.release(m0)
    k("B_side:")
    k(f"s_cmp_lg_u32 s{sU}, 0\ns_cbranch_scc1 B_end\ns_sub_u32 s{sC}, s2, {NM}")
    fin_job(k, pWS, sC, vL, T, "B_end")
    k("B_end:\ns_endpgm")
    return k

def gen_c(l2w=0, pf=(0, 0), pfa=32, st_flags="sc1"):
    TAB = C_TB + 8 * C_TP; MOD = TAB + 16384; MV = C_MV
    k = Kern("fc_kernel", 256, 512, MOD + 14336)
    k.s()
    pX = k.s(2); pWS = k.s(2); pW1 = k.s(2)
    k(f"s_cmp_ge_u32 s2, 256\ns_cbranch_scc1 C_end")
    k("s_and_b32 s3, s2, 3\ns_lshl_b32 s3, s3, 6\ns_and_b32 s4, s2, 4\ns_lshl_b32 s4, s4, 3\ns_add_u32 s3, s3, s4\ns_lshr_b32 s2, s2, 3\ns_add_u32 s2, s2, s3")
    k.stamp(True)
    k(f"s_load_dwordx2 {sr(pX,2)}, s[0:1], 0")
    k(f"s_load_dwordx2 {sr(pWS,2)}, s[0:1], 96")
    k(f"s_load_dwordx2 {sr(pW1,2)}, s[0:1], {pfa}")
    vL, vI, vG, sJ, T = lane_ids(k)
    sMask = k.s(); sT = k.s(); sRow = k.s(); sO = k.s(); sL = k.s(); sQ = k.s()
    vOff = k.v(); vXo = k.v()
    k(f"v_lshlrev_b32 v{vOff}, 4, v{vL}\nv_lshlrev_b32 v{vXo}, 6, v{vI}\nv_lshl_add_u32 v{vXo}, v{vG}, 4, v{vXo}")
    k(f"s_mov_b32 s{sMask}, 0xffff0000")
    k(f"s_lshl_b32 s{sRow}, s{sJ}, 8\ns_add_u32 s{sRow}, s{sRow}, s2\ns_lshl_b32 s{sRow}, s{sRow}, 11")
    k(f"s_mul_i32 s{sO}, s2, {ZB_PITCH}\ns_lshl_b32 s{sL}, s{sJ}, 11")
    k(f"s_add_u32 s{sQ}, s{sL}, {WS_TCC}\ns_lshl_b32 s{sT}, s2, 11\ns_add_u32 s{sT}, s{sT}, {WS_TCS}\ns_cmp_eq_u32 s{sJ}, 7\ns_cselect_b32 s{sQ}, s{sT}, s{sQ}")
    k("s_waitcnt lgkmcnt(0)")
    k.stamp_init2(3, pWS); k.stamp()
    sSc = k.s(2)
    k(f"s_load_dwordx2 {sr(sSc,2)}, {sr(pWS,2)}, {WS_SCAL}")
    dZ = k.srd(pWS, ZB_BYTES, WS_ZB)
    k(f"s_cmp_lg_u32 s{sJ}, 0\ns_cbranch_scc1 C_no17")
    k(f"s_mov_b32 m0, 16384\ns_add_u32 s{sT}, s{sO}, 16384")
    k(f"buffer_load_dwordx4 v{vOff}, {sr(dZ,4)}, s{sT} offen lds")
    k("C_no17:")
    k(f"s_add_u32 s{sO}, s{sO}, s{sL}\ns_mov_b32 m0, s{sL}")
    k(f"buffer_load_dwordx4 v{vOff}, {sr(dZ,4)}, s{sO} offen lds")
    k(f"buffer_load_dwordx4 v{vOff}, {sr(dZ,4)}, s{sO} offen offset:1024 lds")
    dW = k.srd(pWS, WS_ZA)
    AD = k.v(12)
    k(f"s_add_u32 m0, s{sL}, {TAB}\ns_mul_i32 s{sT}, s{sJ}, 3072\ns_add_u32 s{sT}, s{sT}, {WS_TCW}")
    for q in range(3): k(f"buffer_load_dwordx4 {vr(AD+4*q,4)}, v{vOff}, {sr(dW,4)}, s{sT} offen offset:{1024*q}")
    k(f"buffer_load_dwordx4 v{vOff}, {sr(dW,4)}, s{sQ} offen lds")
    k(f"buffer_load_dwordx4 v{vOff}, {sr(dW,4)}, s{sQ} offen offset:1024 lds")
    vR1 = AD; vW1 = AD + 8; vR2 = AD + 10
    dX = k.srd(pX, 2048 * 2048)
    XP = k.v(8)
    k(f"buffer_load_dwordx4 {vr(XP,4)}, v{vXo}, {sr(dX,4)}, s{sRow} offen nt")
    k(f"buffer_load_dwordx4 {vr(XP+4,4)}, v{vXo}, {sr(dX,4)}, s{sRow} offen offset:1024 nt")
    dX1 = k.srd(pWS, 4 << 20, WS_X1); dY2 = k.srd(pWS, 4 << 20, WS_Y2)
    vMr = k.v()
    k(f"v_mad_u32_u24 v{T}, v{vG}, 18, v{vI}\nv_lshlrev_b32 v{vMr}, 4, v{T}\nv_add_u32 v{vMr}, {MOD}, v{vMr}")
    sR = k.s(); sY = k.s(); vYo = k.v()
    k(f"s_lshl_b32 s{sR}, s2, 3\ns_add_u32 s{sR}, s{sR}, s{sJ}")
    k(f"s_lshr_b32 s{sY}, s{sR}, 7\ns_lshl_b32 s{sY}, s{sY}, 18\ns_and_b32 s{sT}, s{sR}, 127\ns_lshl_b32 s{sT}, s{sT}, 7\ns_add_u32 s{sY}, s{sY}, s{sT}")
    k(f"s_bfe_u32 s{sT}, s{sR}, 0x30001\nv_and_b32 v{T}, 1, v{vI}\nv_lshl_add_u32 v{T}, v{T}, 2, v{vG}\nv_xor_b32 v{T}, s{sT}, v{T}\nv_lshlrev_b32 v{T}, 4, v{T}")
    k(f"v_lshrrev_b32 v{T+1}, 1, v{vI}\nv_lshl_add_u32 v{vYo}, v{T+1}, 14, v{T}")
    k(f"s_lshl_b32 s{sR}, s{sR}, 11")
    k.stamp()
    k("s_waitcnt vmcnt(2) lgkmcnt(0)\ns_barrier")
    k.stamp()
    OP = k.v(8); D = k.v(16); F1 = k.v(8); TW = k.v(16); F3 = k.v(32); X = k.v(16); E = k.v(16)
    k(f"ds_read_b128 {vr(F1,4)}, v{vOff} offset:{TAB+14336}\nds_read_b128 {vr(F1+4,4)}, v{vOff} offset:{TAB+15360}")
    for x in range(8): k(f"ds_read_b32 v{OP+x}, v{vR1+x}")
    k(f"s_cmp_eq_u32 s{sJ}, 7\ns_cbranch_scc1 C_nomod")
    k(f"s_add_u32 m0, s{sL}, {MOD}\ns_add_u32 s{sT}, s{sL}, {WS_MODC}")
    k(f"buffer_load_dwordx4 v{vOff}, {sr(dW,4)}, s{sT} offen lds\nbuffer_load_dwordx4 v{vOff}, {sr(dW,4)}, s{sT} offen offset:1024 lds")
    k("C_nomod:")
    sE = k.s()
    k(f"s_add_i32 s{sE}, s{sSc}, s{sSc+1}\ns_sub_i32 s{sE}, 0, s{sE}")
    for q in range(2):
        k(f"s_waitcnt lgkmcnt({4-4*q})")
        k(f"{MF} {vr(D+8*q,4)}, {vr(OP+4*q,4)}, {vr(F1,4)}, 0")
        k(f"{MF} {vr(D+8*q+4,4)}, {vr(OP+4*q,4)}, {vr(F1+4,4)}, 0")
    for q in range(4): k(f"ds_read_b128 {vr(TW+4*q,4)}, v{vOff} offset:{TAB+2048+1024*q}")
    for q in range(2):
        for v in range(4): k(f"v_cvt_pk_f16_f32 v{OP+4*q+v}, v{D+8*q+v}, v{D+8*q+4+v}")
        k(f"ds_write_b128 v{vW1+q}, {vr(OP+4*q,4)}")
    F2 = F1
    k(f"ds_read_b128 {vr(F2,4)}, v{vOff} offset:{TAB}\nds_read_b128 {vr(F2+4,4)}, v{vOff} offset:{TAB+1024}")
    k("s_waitcnt lgkmcnt(0)\ns_barrier")
    for rt in range(2):
        k(f"ds_read2st64_b32 {vr(OP+4*rt,2)}, v{vR2+rt} offset0:0 offset1:2")
        k(f"ds_read2st64_b32 {vr(OP+4*rt+2,2)}, v{vR2+rt} offset0:4 offset1:6")
    for q in (0, 1, 4, 5, 2, 3, 6, 7): k(f"ds_read_b128 {vr(F3+4*q,4)}, v{vOff} offset:{TAB+6144+1024*q}")
    def f3(ct, rt, ri): return F3 + ((ct * 2 + rt) * 2 + ri) * 4
    for rt in range(2):
        k(f"s_waitcnt lgkmcnt({10-2*rt})")
        k(f"{MF} {vr(D+8*rt,4)}, {vr(OP+4*rt,4)}, {vr(F2,4)}, 0")
        k(f"{MF} {vr(D+8*rt+4,4)}, {vr(OP+4*rt,4)}, {vr(F2+4,4)}, 0")
    for rt in range(2):
        for v in range(4):
            re = D + 8 * rt + v; im = re + 4
            cmul_tw(k, re, im, TW + 4 * rt + v, TW + 8 + 4 * rt + v, True, T + v)
            k(f"v_cvt_pk_f16_f32 v{OP+4*rt+v}, v{re}, v{im}")
        k(f"s_waitcnt lgkmcnt({4-4*rt})")
        for ct in range(2):
            for ri in range(2):
                d = E + 8 * ct + 4 * ri
                k(f"{MF} {vr(d,4)}, {vr(OP+4*rt,4)}, {vr(f3(ct,rt,ri),4)}, {vr(d,4) if rt else 0}")
    k("s_waitcnt vmcnt(0)\ns_barrier")
    k.stamp()
    GA = TW
    def mread(dst, vec):
        for ct in range(2):
            for h in range(2): k(f"ds_read_b128 {vr(dst+8*ct+4*h,4)}, v{vMr} offset:{(2*vec+ct)*MV + 73*16*h}")
    mread(GA, 0)
    SB = F3; CB = F3 + 16
    mread(CB, 2); mread(SB, 1)
    code_pf_w(k, "g1_kernel", "g2_kernel", sJ, 7, "s_and_b32 s{0}, s2, 31", vL, T + 4, AD + 2)
    pf_mall(k, pW1, pf[0], pf[1], 2, sJ, AD, T + 4)
    if l2w:
        dP = k.srd(pW1, WBYTES)
        k(f"v_lshrrev_b32 v{T+4}, 5, v0\nv_mul_u32_u24 v{T+4}, {32*7168}, v{T+4}\nv_and_b32 v{T+5}, 31, v0\nv_lshl_add_u32 v{T+4}, v{T+5}, 7, v{T+4}")
        k(f"v_cmp_lt_u32 vcc, 27, v{T+5}\nv_mov_b32 v{T+5}, {OOB}\nv_cndmask_b32 v{T+4}, v{T+4}, v{T+5}, vcc")
        k(f"s_and_b32 s{sT}, s2, 31\ns_mul_i32 s{sO}, s{sT}, 7168\ns_bfe_u32 s{sT}, s2, 0x10005\ns_mul_i32 s{sT}, s{sT}, 3584\ns_add_u32 s{sO}, s{sO}, s{sT}")
        k(f"buffer_load_dword v{AD}, v{T+4}, {sr(dP,4)}, s{sO} offen")
        if l2w > 1:
            nw = int(round((l2w - 1) * 8))
            k(f"s_add_u32 s{sO}, s{sO}, {512*7168}\ns_cmp_lt_u32 s{sJ}, {nw}\ns_cselect_b32 s{dP+2}, s{dP+2}, 0")
            k(f"buffer_load_dword v{AD+1}, v{T+4}, {sr(dP,4)}, s{sO} offen")
    unpack_bf16(k, X, XP, 8, sMask)
    def dreg(n): return E + 8 * (n >> 3) + 4 * (n & 1) + ((n & 7) >> 1)
    for n in range(16): k(f"v_ldexp_f32 v{dreg(n)}, v{dreg(n)}, s{sE}")
    for i in range(8): k(f"v_cvt_pk_bf16_f32 v{OP+i}, v{dreg(2*i)}, v{dreg(2*i+1)}")
    unpack_bf16(k, D, OP, 8, sMask)
    k("s_waitcnt lgkmcnt(8)")
    for n in range(16): k(f"v_mul_f32 v{D+n}, v{D+n}, v{GA+n}")
    for i in range(8): k(f"v_cvt_pk_bf16_f32 v{OP+i}, v{D+2*i}, v{D+2*i+1}")
    unpack_bf16(k, D, OP, 8, sMask)
    for n in range(16): k(f"v_add_f32 v{X+n}, v{X+n}, v{D+n}")
    for i in range(8): k(f"v_cvt_pk_bf16_f32 v{XP+i}, v{X+2*i}, v{X+2*i+1}")
    k(f"buffer_store_dwordx4 {vr(XP,4)}, v{vXo}, {sr(dX1,4)}, s{sR} offen {st_flags}")
    k(f"buffer_store_dwordx4 {vr(XP+4,4)}, v{vXo}, {sr(dX1,4)}, s{sR} offen offset:1024 {st_flags}")
    unpack_bf16(k, X, XP, 8, sMask)
    vSum = k.v(); vM = k.v(); vDl = k.v(); vR = k.v(); sSum = k.s()
    def layernorm(fill2):
        k(f"v_add_f32 v{vSum}, v{X}, v{X+1}\nv_add_f32 v{T}, v{X+2}, v{X+3}")
        for i in range(2, 8): k(f"v_add_f32 v{vSum}, v{vSum}, v{X+2*i}\nv_add_f32 v{T}, v{T}, v{X+2*i+1}")
        k(f"v_add_f32 v{vSum}, v{vSum}, v{T}")
        wave_reduce(k, "v_add_f32", [vSum], [sSum])
        k(f"v_mov_b32 v{vDl}, {fbits(1/1024)}\nv_mul_f32 v{vDl}, s{sSum}, v{vDl}\nv_mov_b32 v{vM}, v{vDl}")
        round_bf16(k, vM)
        k(f"v_sub_f32 v{vDl}, v{vDl}, v{vM}")
        for i in range(16): k(f"v_sub_f32 v{X+i}, v{X+i}, v{vM}")
        k(f"v_mul_f32 v{vSum}, v{X}, v{X}\nv_mul_f32 v{T}, v{X+1}, v{X+1}")
        for i in range(1, 8): k(f"v_fmac_f32 v{vSum}, v{X+2*i}, v{X+2*i}\nv_fmac_f32 v{T}, v{X+2*i+1}, v{X+2*i+1}")
        k(f"v_add_f32 v{vSum}, v{vSum}, v{T}")
        with_fill(k, cap(lambda t: wave_reduce(t, "v_add_f32", [vSum], [sSum])), fill2, 3)
        k(f"v_mov_b32 v{vR}, {fbits(1/1024)}\nv_mul_f32 v{vR}, s{sSum}, v{vR}")
        k(f"v_fma_f32 v{vR}, -v{vDl}, v{vDl}, v{vR}\nv_max_f32 v{vR}, 0, v{vR}")
        round_bf16(k, vR)
        k(f"v_add_f32 v{vR}, {fbits(1e-5)}, v{vR}")
        round_bf16(k, vR)
        k(f"v_sqrt_f32 v{vR}, v{vR}")
        round_bf16(k, vR)
        k(f"v_rcp_f32 v{vR}, v{vR}")
    k("s_waitcnt lgkmcnt(0)")
    k.stamp()
    layernorm([f"v_mul_f32 v{X+i}, v{X+i}, v{CB+i}" for i in range(16)])
    for i in range(16): k(f"v_fma_f32 v{X+i}, v{X+i}, v{vR}, v{SB+i}")
    for i in range(8): k(f"v_cvt_pk_bf16_f32 v{OP+i}, v{X+2*i}, v{X+2*i+1}")
    unpack_bf16(k, X, OP, 8, sMask)
    layernorm([])
    for i in range(16): k(f"v_mul_f32 v{X+i}, v{X+i}, v{vR}")
    for i in range(8): k(f"v_cvt_pk_bf16_f32 v{OP+i}, v{X+2*i}, v{X+2*i+1}")
    k(f"s_add_u32 s{sT}, s{sY}, {8*16384}")
    k(f"buffer_store_dwordx4 {vr(OP,4)}, v{vYo}, {sr(dY2,4)}, s{sY} offen {st_flags}")
    k(f"buffer_store_dwordx4 {vr(OP+4,4)}, v{vYo}, {sr(dY2,4)}, s{sT} offen {st_flags}")
    k.stamp()
    if k.prof: k("s_waitcnt vmcnt(0)")
    k.stamp_flush()
    k("C_end:\ns_endpgm")
    return k
```

```python
from asmlib import *
from gemm2 import *

FLC = 32768
FLH = 65536

def spread(k, lines, extra, every):
    extra = list(extra)
    for i, l in enumerate(lines):
        k(l)
        if (i + 1) % every == 0 and extra: k(extra.pop(0))
    for e in extra: k(e)

def poll(k, name, dF, sOff, vAddr, vTmp, n):
    k(f"{name}:")
    k(f"buffer_load_dword v{vTmp}, v{vAddr}, {sr(dF,4)}, s{sOff} offen sc1")
    k("s_waitcnt vmcnt(0)")
    k(f"v_cmp_ne_u32 vcc, 1, v{vTmp}")
    k(f"s_cbranch_vccz {name}_ok\ns_sleep 1\ns_branch {name}\n{name}_ok:")

def set_flag(k, dF, sOff, vL, vA, vB):
    k(f"v_and_b32 v{vA}, 31, v{vL}\nv_lshlrev_b32 v{vA}, 2, v{vA}\nv_mov_b32 v{vB}, 1")
    k(f"buffer_store_dword v{vB}, v{vA}, {sr(dF,4)}, s{sOff} offen sc1")

CLK = False
GSTAMP = False
def gen_cg(pfd=3, out_flags="sc1", npre=12, w2c=(0, 0), w1c=(0, 0), w2l=(0, 224), R1=(), noH=False, noW2=False, perm=True, noY=False, noW1=False, pfs=(3, 8)):
    TAB = C_TB + 8 * C_TP; MOD = TAB + 16384; MV = C_MV
    pre_st = [0, 1, 2] + list(R1)
    dma_st = [s for s in range(16) if s not in pre_st]
    PI = {s: i for i, s in enumerate(dma_st + pre_st if perm else range(16))}
    WR0 = 65536; WSL = 28672; YSL = 16384
    k = Kern("cg_kernel", 256, 512, 163840)
    k.stv = 255
    pX = k.s(2); pWS = k.s(2); pA = k.s(8); pO = k.s(2)
    pW1 = pA; pB1 = pA + 2; pW2 = pA + 4; pB2 = pA + 6
    k(f"s_cmp_ge_u32 s2, 256\ns_cbranch_scc1 CG_end")
    k.stamp(True)
    k(f"s_load_dwordx2 {sr(pX,2)}, s[0:1], 0")
    k(f"s_load_dwordx2 {sr(pWS,2)}, s[0:1], 96")
    k(f"s_load_dwordx8 {sr(pA,8)}, s[0:1], 32")
    k(f"s_load_dwordx2 {sr(pO,2)}, s[0:1], 80")
    vL, vI, vG, sW, T = lane_ids(k)
    sMask = k.s(); sT = k.s(); sMt = k.s(); sNt = k.s(); sWm = k.s(); sWn = k.s(); sWo = k.s(); sMw = k.s()
    vOff = k.v(); vWo = k.v(7)
    tile_map(k, 4, sMt, sNt, sT)
    k(f"s_and_b32 s{sWm}, s{sW}, 1\ns_bfe_u32 s{sWn}, s{sW}, 0x10001\ns_mov_b32 s{sMask}, 0xffff0000")
    k(f"v_lshlrev_b32 v{vOff}, 4, v{vL}")
    dW1 = k.s(4); dF = k.s(4)
    mC = k.mark()
    sJ = sW
    sS0 = k.s(); sRow = k.s(); sO = k.s(); sL = k.s(); sQ = k.s()
    vXo = k.v()
    k(f"s_lshl_b32 s{sS0}, s{sMt}, 4\ns_add_u32 s{sS0}, s{sS0}, s{sNt}")
    k(f"v_lshlrev_b32 v{vXo}, 6, v{vI}\nv_lshl_add_u32 v{vXo}, v{vG}, 4, v{vXo}")
    k(f"s_lshl_b32 s{sRow}, s{sJ}, 8\ns_add_u32 s{sRow}, s{sRow}, s{sS0}\ns_lshl_b32 s{sRow}, s{sRow}, 11")
    k(f"s_mul_i32 s{sO}, s{sS0}, {ZB_PITCH}\ns_lshl_b32 s{sL}, s{sJ}, 11")
    k(f"s_add_u32 s{sQ}, s{sL}, {WS_TCC}\ns_lshl_b32 s{sT}, s{sS0}, 11\ns_add_u32 s{sT}, s{sT}, {WS_TCS}\ns_cmp_eq_u32 s{sJ}, 7\ns_cselect_b32 s{sQ}, s{sT}, s{sQ}")
    k("s_waitcnt lgkmcnt(0)")
    k.stamp_init2(3, pWS); k.stamp()
    sSc = k.s(2)
    k(f"s_load_dwordx2 {sr(sSc,2)}, {sr(pWS,2)}, {WS_SCAL}")
    dZ = k.srd(pWS, ZB_BYTES, WS_ZB)
    k(f"s_cmp_lg_u32 s{sJ}, 0\ns_cbranch_scc1 C_no17")
    k(f"s_mov_b32 m0, 16384\ns_add_u32 s{sT}, s{sO}, 16384")
    k(f"buffer_load_dwordx4 v{vOff}, {sr(dZ,4)}, s{sT} offen lds")
    k("C_no17:")
    k(f"s_add_u32 s{sO}, s{sO}, s{sL}\ns_mov_b32 m0, s{sL}")
    k(f"buffer_load_dwordx4 v{vOff}, {sr(dZ,4)}, s{sO} offen lds")
    k(f"buffer_load_dwordx4 v{vOff}, {sr(dZ,4)}, s{sO} offen offset:1024 lds")
    dW = k.srd(pWS, WS_ZA)
    AD = k.v(12)
    k(f"s_add_u32 m0, s{sL}, {TAB}\ns_mul_i32 s{sT}, s{sJ}, 3072\ns_add_u32 s{sT}, s{sT}, {WS_TCW}")
    for q in range(3): k(f"buffer_load_dwordx4 {vr(AD+4*q,4)}, v{vOff}, {sr(dW,4)}, s{sT} offen offset:{1024*q}")
    k(f"buffer_load_dwordx4 v{vOff}, {sr(dW,4)}, s{sQ} offen lds")
    k(f"buffer_load_dwordx4 v{vOff}, {sr(dW,4)}, s{sQ} offen offset:1024 lds")
    vR1 = AD; vW1 = AD + 8; vR2 = AD + 10
    dX = k.srd(pX, 2048 * 2048)
    XP = k.v(8)
    dX1 = k.srd(pWS, 4 << 20, WS_X1); dY2 = k.srd(pWS, 4 << 20, WS_Y2)
    k(f"s_mov_b32 s{dW1}, s{pW1}\ns_mov_b32 s{dW1+1}, s{pW1+1}\ns_mov_b32 s{dW1+2}, {WBYTES}\ns_mov_b32 s{dW1+3}, 0x20000")
    k(f"s_add_u32 s{dF}, s{pWS}, {WS_FLAG}\ns_addc_u32 s{dF+1}, s{pWS+1}, 0\ns_mov_b32 s{dF+2}, {65536+262144}\ns_mov_b32 s{dF+3}, 0x20000")
    sR = k.s(); sY = k.s(); vYo = k.v()
    k(f"s_lshl_b32 s{sR}, s{sS0}, 3\ns_add_u32 s{sR}, s{sR}, s{sJ}")
    k(f"s_lshl_b32 s{sY}, s{sMt}, 18\ns_and_b32 s{sT}, s{sR}, 127\ns_lshl_b32 s{sT}, s{sT}, 7\ns_add_u32 s{sY}, s{sY}, s{sT}")
    k(f"s_bfe_u32 s{sT}, s{sR}, 0x30001\nv_and_b32 v{T}, 1, v{vI}\nv_lshl_add_u32 v{T}, v{T}, 2, v{vG}\nv_xor_b32 v{T}, s{sT}, v{T}\nv_lshlrev_b32 v{T}, 4, v{T}")
    k(f"v_lshrrev_b32 v{T+1}, 1, v{vI}\nv_lshl_add_u32 v{vYo}, v{T+1}, 14, v{T}")
    k(f"s_lshl_b32 s{sR}, s{sR}, 11")
    for x in range(7):
        k(f"v_add_u32 v{T}, {64*x}, v{vL}\nv_mul_u32_u24 v{T+1}, 2341, v{T}\nv_lshrrev_b32 v{T+1}, 16, v{T+1}")
        k(f"v_mul_u32_u24 v{T+2}, 28, v{T+1}\nv_sub_u32 v{T}, v{T}, v{T+2}")
        k(f"v_lshrrev_b32 v{T+2}, 2, v{T+1}\nv_and_b32 v{T+2}, 2, v{T+2}\nv_xor_b32 v{T}, v{T}, v{T+2}")
        k(f"v_mul_u32_u24 v{T+1}, 7168, v{T+1}\nv_lshl_add_u32 v{vWo+x}, v{T}, 4, v{T+1}")
    k(f"s_and_b32 s{sQ}, s{sW}, 3\ns_mul_i32 s{sWo}, s{sNt}, 448\ns_mul_i32 s{sT}, s{sQ}, {16*7168}\ns_add_u32 s{sWo}, s{sWo}, s{sT}\ns_mul_i32 s{sMw}, s{sQ}, 7168\ns_add_u32 s{sMw}, s{sMw}, {WR0}")
    k(f"buffer_load_dwordx4 {vr(XP,4)}, v{vXo}, {sr(dX,4)}, s{sRow} offen nt")
    k(f"buffer_load_dwordx4 {vr(XP+4,4)}, v{vXo}, {sr(dX,4)}, s{sRow} offen offset:1024 nt")
    k(f"s_min_u32 s{sT}, s{sL}, {5*2048}\ns_add_u32 m0, s{sT}, {MOD}\ns_add_u32 s{sT}, s{sT}, {WS_MODC}")
    k(f"buffer_load_dwordx4 v{vOff}, {sr(dW,4)}, s{sT} offen lds\nbuffer_load_dwordx4 v{vOff}, {sr(dW,4)}, s{sT} offen offset:1024 lds")
    sPw = k.s(); sPm = k.s()
    k(f"s_lshr_b32 s{sT}, s{sW}, 2\ns_mul_i32 s{sPw}, s{sT}, {64*7168}\ns_add_u32 s{sPw}, s{sPw}, {64*7168*PI[0]}\ns_add_u32 s{sPw}, s{sPw}, s{sWo}\ns_mul_i32 s{sPm}, s{sT}, {WSL}\ns_add_u32 s{sPm}, s{sPm}, s{sMw}")
    wpre = [f"s_add_u32 m0, s{sPm}, {1024*x}\ns_nop 0\nbuffer_load_dwordx4 v{vWo+x}, {sr(dW1,4)}, s{sPw} offen lds" for x in range(7)]
    k.stamp()
    k("s_waitcnt vmcnt(4) lgkmcnt(0)\ns_barrier")
    k.stamp()
    OP = k.v(8); D = k.v(16); F1 = k.v(8); TW = k.v(16); F3 = k.v(32); X = k.v(16); E = k.v(16)
    k(f"ds_read_b128 {vr(F1,4)}, v{vOff} offset:{TAB+14336}\nds_read_b128 {vr(F1+4,4)}, v{vOff} offset:{TAB+15360}")
    for x in range(8): k(f"ds_read_b32 v{OP+x}, v{vR1+x}")
    sE = k.s()
    k(f"s_add_i32 s{sE}, s{sSc}, s{sSc+1}\ns_sub_i32 s{sE}, 0, s{sE}")
    for q in range(2):
        k(f"s_waitcnt lgkmcnt({4-4*q})")
        k(f"{MF} {vr(D+8*q,4)}, {vr(OP+4*q,4)}, {vr(F1,4)}, 0")
        k(f"{MF} {vr(D+8*q+4,4)}, {vr(OP+4*q,4)}, {vr(F1+4,4)}, 0")
    for q in range(4): k(f"ds_read_b128 {vr(TW+4*q,4)}, v{vOff} offset:{TAB+2048+1024*q}")
    for q in range(2):
        for v in range(4): k(f"v_cvt_pk_f16_f32 v{OP+4*q+v}, v{D+8*q+v}, v{D+8*q+4+v}")
        k(f"ds_write_b128 v{vW1+q}, {vr(OP+4*q,4)}")
    F2 = F1
    k(f"ds_read_b128 {vr(F2,4)}, v{vOff} offset:{TAB}\nds_read_b128 {vr(F2+4,4)}, v{vOff} offset:{TAB+1024}")
    k("s_waitcnt vmcnt(0) lgkmcnt(0)\ns_barrier")
    for rt in range(2):
        k(f"ds_read2st64_b32 {vr(OP+4*rt,2)}, v{vR2+rt} offset0:0 offset1:2")
        k(f"ds_read2st64_b32 {vr(OP+4*rt+2,2)}, v{vR2+rt} offset0:4 offset1:6")
    for q in (0, 1, 4, 5, 2, 3, 6, 7): k(f"ds_read_b128 {vr(F3+4*q,4)}, v{vOff} offset:{TAB+6144+1024*q}")
    pf_uni(k, pW1, w1c[0], w1c[1], 2, sW, vL, AD + 1, T + 4)
    pf_uni(k, pW2, w2c[0], w2c[1], 2, sW, vL, AD, T + 4)
    k(wpre.pop(0)); k(wpre.pop(0))
    def f3(ct, rt, ri): return F3 + ((ct * 2 + rt) * 2 + ri) * 4
    for rt in range(2):
        k(f"s_waitcnt lgkmcnt({10-2*rt})")
        k(f"{MF} {vr(D+8*rt,4)}, {vr(OP+4*rt,4)}, {vr(F2,4)}, 0")
        k(f"{MF} {vr(D+8*rt+4,4)}, {vr(OP+4*rt,4)}, {vr(F2+4,4)}, 0")
    for ct in range(2):
        for v in range(4): k(f"v_lshlrev_b32 v{X+8*ct+v}, 16, v{XP+4*ct+v}\nv_and_b32 v{X+8*ct+4+v}, s{sMask}, v{XP+4*ct+v}")
    GA = k.v(16); RC = k.v(2); sP = k.s(2); sSum = k.s(2)
    def mread(dst, vec):
        for q in range(4): k(f"ds_read_b128 {vr(dst+4*q,4)}, v{vOff} offset:{MOD + 4096*vec + 1024*q}")
    mread(GA, 0)
    k(f"v_ldexp_f32 v{RC}, 1.0, s{sE}")
    for rt in range(2):
        tw_block(k, D + 8 * rt, TW + 4 * rt, TW + 8 + 4 * rt, True, T, OP + 4 * rt)
        k(f"s_waitcnt lgkmcnt({8-4*rt})")
        for ct in range(2):
            for ri in range(2):
                d = E + 8 * ct + 4 * ri
                k(f"{MF} {vr(d,4)}, {vr(OP+4*rt,4)}, {vr(f3(ct,rt,ri),4)}, {vr(d,4) if rt else 0}")
    k.stamp()
    SB = TW; CB = D
    k("s_waitcnt lgkmcnt(0)")
    mread(CB, 2); mread(SB, 1)
    k(wpre.pop(0))
    for i in range(8): k(f"v_pk_mul_f32 {P2(GA+2*i)}, {P2(GA+2*i)}, {P2(RC)} op_sel_hi:[1,0]")
    for i in range(8): k(f"v_pk_fma_f32 {P2(X+2*i)}, {P2(E+2*i)}, {P2(GA+2*i)}, {P2(X+2*i)}")
    def pack(dst):
        for ct in range(2):
            for v in range(4): k(f"v_cvt_pk_bf16_f32 v{dst+4*ct+v}, v{X+8*ct+v}, v{X+8*ct+4+v}")
    pack(XP)
    k(f"buffer_store_dwordx4 {vr(XP,4)}, v{vXo}, {sr(dX1,4)}, s{sR} offen sc1")
    k(f"buffer_store_dwordx4 {vr(XP+4,4)}, v{vXo}, {sr(dX1,4)}, s{sR} offen offset:1024 sc1")
    ln_pk(k, X, T, RC, sP, sSum, [wpre.pop(0), wpre.pop(0)])
    k("s_waitcnt lgkmcnt(0)")
    for i in range(8): k(f"v_pk_fma_f32 {P2(X+2*i)}, {P2(X+2*i)}, {P2(CB+2*i)}, {P2(SB+2*i)}")
    ln_pk(k, X, T, RC, sP, sSum, [wpre.pop(0), wpre.pop(0)])
    pack(OP)
    k(f"s_add_u32 s{sT}, s{sY}, {8*16384}")
    k(f"buffer_store_dwordx4 {vr(OP,4)}, v{vYo}, {sr(dY2,4)}, s{sY} offen sc1")
    k(f"buffer_store_dwordx4 {vr(OP+4,4)}, v{vYo}, {sr(dY2,4)}, s{sT} offen sc1")
    k.stamp()
    k.release(mC)
    NS = 16; NB = 3
    k("s_waitcnt vmcnt(0)\ns_barrier")
    k(f"s_cmp_ge_u32 s{sW}, 4\ns_cbranch_scc1 CG_loader")
    m0 = k.mark()
    k.stamp()
    assert PI[1] == PI[0] + 1
    k(f"s_add_u32 s{sT}, s{sWo}, {PI[2]*64*7168}")
    for x in range(7): k(f"s_add_u32 m0, s{sMw}, {2*WSL+1024*x}\nbuffer_load_dwordx4 v{vWo+x}, {sr(dW1,4)}, s{sT} offen lds")
    m1 = k.mark()
    vBo = k.v(); sB0 = k.s(); sB6 = k.s()
    k(f"v_lshlrev_b32 v{vBo}, 3, v{vG}")
    k(f"s_mul_i32 s{sB0}, s{sNt}, 448\ns_lshl_b32 s{sT}, s{sWn}, 5\ns_add_u32 s{sB6}, s{sB0}, s{sT}\ns_mul_i32 s{sT}, s{sWn}, 192\ns_add_u32 s{sB0}, s{sB0}, s{sT}")
    dB = k.srd(pB1, 3584 * 2)
    ACC = k.v(112); FR = [k.v(44), k.v(44)]
    BP = FR[1]
    for t in range(7):
        if t < 6: k(f"buffer_load_dwordx2 {vr(BP+2*t,2)}, v{vBo}, {sr(dB,4)}, s{sB0} offen offset:{32*t}")
        else: k(f"buffer_load_dwordx2 {vr(BP+2*t,2)}, v{vBo}, {sr(dB,4)}, s{sB6} offen offset:{32*12}")
    def acc(t, mt): return ACC + (mt * 7 + t) * 4
    vPf = vWo; vDum = vWo + 1; sPf = k.s()
    dP = k.srd(pW2, WBYTES)
    nl = w2l[1] // (4 * len(pfs))
    k(f"v_lshlrev_b32 v{vPf}, 7, v{vL}\nv_cmp_gt_u32 vcc, {nl}, v{vL}\nv_mov_b32 v{T}, {OOB}\nv_cndmask_b32 v{vPf}, v{T}, v{vPf}, vcc")
    k(f"s_lshl_b32 s{sPf}, s2, 2\ns_add_u32 s{sPf}, s{sPf}, s{sW}\ns_mul_i32 s{sPf}, s{sPf}, {nl*128}\ns_add_u32 s{sPf}, s{sPf}, {w2l[0]*128}")
    pfi = f"buffer_load_dword v{vDum}, v{vPf}, {sr(dP,4)}, s{sPf} offen\ns_add_u32 s{sPf}, s{sPf}, {1024*nl*128}"
    vY = k.v(2); vWa = k.v(3 * NB)
    k(f"v_lshrrev_b32 v{T}, 1, v{vI}\nv_xor_b32 v{T}, v{T}, v{vG}\nv_lshlrev_b32 v{T}, 4, v{T}\nv_lshl_add_u32 v{T}, v{vI}, 7, v{T}")
    k(f"s_lshl_b32 s{sT}, s{sWm}, 13\nv_add_u32 v{vY}, s{sT}, v{T}\nv_xor_b32 v{vY+1}, 64, v{vY}")
    k(f"v_lshrrev_b32 v{T}, 2, v{vI}\nv_lshl_add_u32 v{T}, v{vG}, 3, v{T}\nv_mul_u32_u24 v{T}, 448, v{T}")
    k(f"v_and_b32 v{T+1}, 3, v{vI}\nv_lshl_add_u32 v{T}, v{T+1}, 3, v{T}")
    k(f"v_and_b32 v{T+1}, 1, v{vG}\nv_lshlrev_b32 v{T+1}, 5, v{T+1}")
    k(f"s_mul_i32 s{sT}, s{sWn}, 192\nv_add_u32 v{T+2}, s{sT}, v{T}")
    for b in range(NB):
        k(f"v_add_u32 v{T+3}, {WR0+b*WSL}, v{T+2}\nv_add_u32 v{vWa+3*b}, v{T+3}, v{T+1}\nv_sub_u32 v{vWa+3*b+1}, v{T+3}, v{T+1}")
    k(f"s_lshl_b32 s{sT}, s{sWn}, 5\nv_xor_b32 v{T+1}, s{sT}, v{T+1}\nv_add_u32 v{T+2}, v{T}, v{T+1}")
    for b in range(NB): k(f"v_add_u32 v{vWa+3*b+2}, {WR0+b*WSL+12*32}, v{T+2}")
    k("s_waitcnt vmcnt(0)")
    for t in range(7): unpack_bf16(k, acc(t, 3), BP + 2 * t, 2, sMask)
    k(f"s_cmp_lg_u32 s{sW}, 0\ns_cbranch_scc1 CG_np1")
    k(f"s_lshl_b32 s{sB0}, s{sMt}, 11\ns_add_u32 s{sB0}, s{sB0}, {FLC}\nv_lshlrev_b32 v{T+2}, 7, v{vI}")
    poll(k, "CG_p1", dF, sB0, T + 2, T + 3, 16)
    k("CG_np1:\ns_barrier")
    def reads(s, ks, F):
        b = s % NB
        yy = [f"ds_read_b128 {vr(F+28+4*mt,4)}, v{vY+ks} offset:{b*YSL+2048*mt}" for mt in range(4)]
        ww = []
        for t in range(7):
            a = vWa + 3 * b + (2 if t == 6 else (t & 1))
            off = (0 if t == 6 else 32 * t) + ks * 32 * 448
            ww.append(f"ds_read_b64_tr_b16 {vr(F+4*t,2)}, v{a} offset:{off}")
            ww.append(f"ds_read_b64_tr_b16 {vr(F+4*t+2,2)}, v{a} offset:{off+4*448}")
        return yy[:1] + ww + yy[1:]
    def mfmas(F, first):
        return [f"{MB} {vr(acc(t,mt),4)}, {vr(F+4*t,4)}, {vr(F+28+4*mt,4)}, {vr(acc(t,3),4) if first else vr(acc(t,mt),4)}" for mt in range(4) for t in range(7)]
    k.stamp()
    k("s_barrier")
    if CLK: k._st = k._st[:1]
    k.stamp()
    if CLK: k.stampc()
    for l in reads(0, 0, FR[0]): k(l)
    for s in range(NS):
        k("s_waitcnt lgkmcnt(0)")
        fl = reads(s, 1, FR[1])
        if pfd and s in pfs: fl = fl + [pfi]
        interleave(k, mfmas(FR[0], s == 0), fl)
        k("s_waitcnt lgkmcnt(0)\ns_barrier")
        if s + 1 < NS: interleave(k, mfmas(FR[1], False), reads(s + 1, 0, FR[0]))
        else:
            for l in mfmas(FR[1], False): k(l)
    k.stamp()
    if CLK: k.stampc()
    k("CG_epi1:")
    c1 = -2.0 * LOG2E * math.sqrt(2 / math.pi); c2 = c1 * 0.044715
    CC = FR[0]; E = FR[0] + 8; vHw = vWa; sU2 = sB0
    k(f"v_mov_b32 v{CC}, {fbits(c1)}\nv_mov_b32 v{CC+1}, {fbits(c1)}\nv_mov_b32 v{CC+2}, {fbits(c2)}\nv_mov_b32 v{CC+3}, {fbits(c2)}\nv_mov_b32 v{CC+4}, 1.0\nv_mov_b32 v{CC+5}, 1.0")
    for pr in range(3):
        k(f"s_mul_i32 s{sT}, s{sWn}, 3\ns_add_u32 s{sT}, s{sT}, {pr}\ns_lshr_b32 s{sU2}, s{sT}, 1\ns_lshl_b32 s{sU2}, s{sU2}, 15\ns_and_b32 s{sT}, s{sT}, 1\ns_lshl_b32 s{sT}, s{sT}, 13\ns_add_u32 s{sU2}, s{sU2}, s{sT}")
        k(f"s_lshl_b32 s{sT}, s{sWm}, 12\ns_add_u32 s{sU2}, s{sU2}, s{sT}\nv_add_u32 v{vHw+pr}, s{sU2}, v{vOff}")
    k(f"s_lshl_b32 s{sT}, s{sWm}, 12\ns_lshl_b32 s{sU2}, s{sWn}, 3\ns_add_u32 s{sT}, s{sT}, s{sU2}\ns_add_u32 s{sT}, s{sT}, {3*32768}\nv_add_u32 v{vHw+3}, s{sT}, v{vOff}")
    def gelu_pk(src, e):
        n = len(src) // 2
        P2 = lambda r: vr(r, 2)
        for x in range(n): k(f"v_pk_mul_f32 {P2(e+2*x)}, {P2(src[2*x])}, {P2(src[2*x])}")
        for x in range(n): k(f"v_pk_fma_f32 {P2(e+2*x)}, {P2(e+2*x)}, {P2(CC+2)}, {P2(CC)}")
        for x in range(n): k(f"v_pk_mul_f32 {P2(e+2*x)}, {P2(e+2*x)}, {P2(src[2*x])}")
        for x in range(2 * n): k(f"v_exp_f32 v{e+x}, v{e+x}")
        for x in range(n): k(f"v_pk_add_f32 {P2(e+2*x)}, {P2(e+2*x)}, {P2(CC+4)}")
        for x in range(2 * n): k(f"v_rcp_f32 v{e+x}, v{e+x}")
        for x in range(n): k(f"v_pk_mul_f32 {P2(e+2*x)}, {P2(e+2*x)}, {P2(src[2*x])}")
        for x in range(n): k(f"v_cvt_pk_bf16_f32 v{e+x}, v{e+2*x}, v{e+2*x+1}")
    for pr in range(3):
        for hh in range(2):
            e = E + 16 * hh
            gelu_pk([acc(2 * pr, mt) + x for mt in (2 * hh, 2 * hh + 1) for x in range(8)], e)
            for u in range(2): k(f"ds_write_b128 v{vHw+pr}, {vr(e+4*u,4)} offset:{1024*(2*hh+u)}")
        if pr < 2:
            if GSTAMP: k.stampc()
            k("s_waitcnt lgkmcnt(0)\ns_barrier")
            if GSTAMP: k.stampc()
    gelu_pk([acc(6, mt) + x for mt in range(4) for x in range(4)], E)
    for mt in range(4): k(f"ds_write_b64 v{vHw+3}, {vr(E+2*mt,2)} offset:{1024*mt}")
    k.stamp()
    k.release(m1)
    NS2 = 28; NB2 = 5; BUF = 32768; NH = 3
    sKh = k.s(); sN2 = k.s()
    k(f"s_lshr_b32 s{sKh}, s{sNt}, 3\ns_and_b32 s{sN2}, s{sNt}, 7")
    ACC = k.v(64); vH = k.v(2 * NH); vWa = k.v(4 * NH)
    vXo = k.v(); vOo = k.v(); vNo = k.v(); v4k = k.v()
    def acc(t, ms): return ACC + (ms * 4 + t) * 4
    for sp in range(2):
        k(f"s_xor_b32 s{sT}, s{sKh}, {sp}\ns_lshl_b32 s{sT}, s{sT}, 11\ns_lshl_b32 s{sN2}, s{sWm}, 12\ns_add_u32 s{sT}, s{sT}, s{sN2}\nv_add_u32 v{vH+sp}, s{sT}, v{vOff}")
    k(f"v_lshrrev_b32 v{T}, 2, v{vL}\nv_and_b32 v{T+1}, 7, v{T}\nv_lshlrev_b32 v{T}, 8, v{T}")
    k(f"v_and_b32 v{T+2}, 3, v{vI}\nv_lshl_add_u32 v{T}, v{T+2}, 3, v{T}\nv_add_u32 v{T}, 16384, v{T}")
    k(f"s_lshl_b32 s{sT}, s{sWn}, 2\nv_xor_b32 v{T+1}, s{sT}, v{T+1}")
    for t in range(4): k(f"v_xor_b32 v{T+2}, {t}, v{T+1}\nv_lshl_add_u32 v{vWa+t}, v{T+2}, 5, v{T}")
    FR = [k.v(32), k.v(32)]
    XP = k.v(16); GP = k.v(8); BP = k.v(8)
    sX = k.s(); sN = k.s(); sOo = k.s(); sR = k.s()
    sX2 = k.s(); sPs = k.s(); sPr = k.s(); sFs = k.s(); sFr = k.s()
    n0 = len(k.lines)
    for hh in range(1, NH):
        for sp in range(2): k(f"v_add_u32 v{vH+2*hh+sp}, {65536*hh}, v{vH+sp}")
        for t in range(4): k(f"v_add_u32 v{vWa+4*hh+t}, {65536*hh}, v{vWa+t}")
    k(f"v_and_b32 v{T}, 1, v{vG}\nv_lshlrev_b32 v{T}, 5, v{T}\nv_lshrrev_b32 v{T+1}, 1, v{vG}\nv_lshl_add_u32 v{vNo}, v{T+1}, 4, v{T}")
    k(f"v_lshl_add_u32 v{vXo}, v{vI}, 11, v{vNo}")
    k(f"v_and_b32 v{T}, 7, v{vI}\nv_lshlrev_b32 v{T}, 19, v{T}\nv_lshrrev_b32 v{T+1}, 3, v{vI}\nv_lshl_add_u32 v{T}, v{T+1}, 11, v{T}\nv_add_u32 v{vOo}, v{T}, v{vNo}")
    k(f"v_add_u32 v{v4k}, 4096, v{vOff}")
    dB = k.srd(pB2, 2048); dM = k.srd(pWS, 2048, WS_GB); dX1 = k.srd(pWS, 4 << 20, WS_X1); dO = k.srd(pO, 4 << 20)
    dPa = k.srd(pWS, 256 * 32768, WS_PART)
    k(f"s_and_b32 s{sN2}, s{sNt}, 7\ns_lshl_b32 s{sN}, s{sN2}, 8\ns_lshl_b32 s{sT}, s{sWn}, 7\ns_add_u32 s{sN}, s{sN}, s{sT}")
    k(f"s_lshl_b32 s{sR}, s{sMt}, 2\ns_lshl_b32 s{sT}, s{sWm}, 1\ns_add_u32 s{sR}, s{sR}, s{sT}\ns_add_u32 s{sR}, s{sR}, s{sKh}")
    k(f"s_lshl_b32 s{sX}, s{sR}, 16\ns_add_u32 s{sX}, s{sX}, s{sN}\ns_lshl_b32 s{sOo}, s{sR}, 13\ns_add_u32 s{sOo}, s{sOo}, s{sN}")
    k(f"s_add_u32 s{sX2}, s{sX}, 32768")
    k(f"s_lshl_b32 s{sFs}, s2, 2\ns_add_u32 s{sFs}, s{sFs}, s{sW}\ns_xor_b32 s{sFr}, s{sFs}, 16")
    k(f"s_lshl_b32 s{sPs}, s{sFs}, 13\ns_lshl_b32 s{sPr}, s{sFr}, 13\ns_lshl_b32 s{sFs}, s2, 7\ns_xor_b32 s{sFr}, s{sFs}, 512")
    lazy = k.lines[n0:]; del k.lines[n0:]
    epi = [f"buffer_load_dwordx4 {vr(XP+8*ms+4*P,4)}, v{vXo}, {sr(dX1,4)}, s{sX2 if ms else sX} offen offset:{64*P} sc1" for ms in range(2) for P in range(2)]
    epi += [f"buffer_load_dwordx4 {vr(GP+4*P,4)}, v{vNo}, {sr(dM,4)}, s{sN} offen offset:{64*P}" for P in range(2)]
    epi += [f"buffer_load_dwordx4 {vr(BP+4*P,4)}, v{vNo}, {sr(dB,4)}, s{sN} offen offset:{64*P}" for P in range(2)]
    def reads2(s, ks, F):
        b = s % NB2; hh = b >> 1; o = (b & 1) * BUF
        hr = [f"ds_read_b128 {vr(F+16+4*ms,4)}, v{vH+2*hh+(ms>>1)} offset:{o + 8192*ks + 1024*(ms&1)}" for ms in range(4)]
        ww = [f"ds_read_b64_tr_b16 {vr(F+4*t+2*hf,2)}, v{vWa+4*hh+t} offset:{o + 8192*ks + 4096*hf}" for t in range(4) for hf in range(2)]
        return hr[:1] + ww + hr[1:]
    def mfmas2(F, first):
        return [f"{MB} {vr(acc(t,ms),4)}, {vr(F+4*t,4)}, {vr(F+16+4*ms,4)}, {'0' if first else vr(acc(t,ms),4)}" for ms in range(4) for t in range(4)]
    k("s_waitcnt lgkmcnt(0)\ns_barrier")
    k.stamp()
    if CLK: k.stampc()
    for l in reads2(0, 0, FR[0]): k(l)
    for s in range(NS2):
        k("s_waitcnt lgkmcnt(0)")
        fl = reads2(s, 1, FR[1])
        if lazy: fl = fl + ["\n".join(lazy[0:2]), "\n".join(lazy[2:4]), "\n".join(lazy[4:6]), "\n".join(lazy[6:8])]; del lazy[:8]
        if s >= NS2 - 9 and epi: fl = fl + [epi.pop(0)]
        interleave(k, mfmas2(FR[0], s == 0), fl)
        k("s_waitcnt lgkmcnt(0)")
        if s + 1 < NS2:
            if s + 1 >= 2: k("s_barrier")
            if CLK and s + 1 == 6: k.stamp(); k.stampc()
            interleave(k, mfmas2(FR[1], False), reads2(s + 1, 0, FR[0]))
        else:
            mm = mfmas2(FR[1], False)
            for l in mm[8:] + mm[:8]: k(l)
    k.stamp()
    if CLK: k.stampc()
    k("CG_epi2:")
    for q in range(8):
        k(f"buffer_store_dwordx4 {vr(ACC+32+4*q,4)}, v{v4k if q >= 4 else vOff}, {sr(dPa,4)}, s{sPs} offen offset:{1024*(q&3)} sc1")
    k("s_waitcnt vmcnt(8)")
    for base in (XP, XP + 4, XP + 8, XP + 12, GP, GP + 4, BP, BP + 4):
        k(f"v_permlane16_swap_b32 v{base}, v{base+2}\nv_permlane16_swap_b32 v{base+1}, v{base+3}")
    GB = FR[0]; B2 = FR[0] + 16; X = FR[1]
    unpack_bf16(k, GB, GP, 8, sMask); unpack_bf16(k, B2, BP, 8, sMask); unpack_bf16(k, X, XP, 16, sMask)
    for ms in range(2):
        for e in range(16): k(f"v_add_f32 v{ACC+16*ms+e}, v{ACC+16*ms+e}, v{B2+e}")
    k("s_waitcnt vmcnt(0)\ns_barrier")
    k(f"s_cmp_lg_u32 s{sW}, 0\ns_cbranch_scc1 CG_w3")
    set_flag(k, dF, sFs, vL, T, T + 1)
    k(f"v_mov_b32 v{T+3}, 0")
    poll(k, "CG_p3", dF, sFr, T + 3, T + 2, 1)
    k("CG_w3:\ns_barrier")
    k.stamp()
    for q in range(8):
        k(f"buffer_load_dwordx4 {vr(ACC+32+4*q,4)}, v{v4k if q >= 4 else vOff}, {sr(dPa,4)}, s{sPr} offen offset:{1024*(q&3)} sc1")
    for ms in range(2):
        k(f"s_waitcnt vmcnt({4 if ms == 0 else 2})")
        for e in range(16): k(f"v_add_f32 v{ACC+16*ms+e}, v{ACC+16*ms+e}, v{ACC+32+16*ms+e}")
        for e in range(16): k(f"v_fma_f32 v{X+16*ms+e}, v{ACC+16*ms+e}, v{GB+e}, v{X+16*ms+e}")
        for e in range(8): k(f"v_cvt_pk_bf16_f32 v{XP+8*ms+e}, v{X+16*ms+2*e}, v{X+16*ms+2*e+1}")
        for P in range(2):
            b = XP + 8 * ms + 4 * P
            k(f"v_permlane16_swap_b32 v{b}, v{b+2}\nv_permlane16_swap_b32 v{b+1}, v{b+3}")
        if ms: k(f"s_add_u32 s{sOo}, s{sOo}, 4096")
        for P in range(2):
            k(f"buffer_store_dwordx4 {vr(XP+8*ms+4*P,4)}, v{vOo}, {sr(dO,4)}, s{sOo} offen offset:{64*P} {out_flags}")
    if k.prof: k("s_waitcnt vmcnt(0)")
    k.stamp_flush()
    k("s_endpgm")
    k.release(m0)
    k("CG_loader:")
    if k.prof: k._st = k._st[:6]; k._stidx = 4
    k.stamp()
    sLw = k.s(); sY = k.s(); sYq = k.s(); sMy = k.s(); sFo = k.s()
    k(f"s_sub_u32 s{sLw}, s{sW}, 4")
    k(f"s_cmp_lg_u32 s{sLw}, 0\ns_cbranch_scc1 CG_nf1")
    k(f"s_lshl_b32 s{sFo}, s{sMt}, 11\ns_lshl_b32 s{sT}, s{sNt}, 7\ns_add_u32 s{sT}, s{sT}, s{sFo}\ns_add_u32 s{sT}, s{sT}, {FLC}")
    set_flag(k, dF, sT, vL, T, T + 1)
    k("CG_nf1:")
    RW = k.v(112); CP = k.v(24)
    ops = []
    def vm(line, tag): k(line); ops.append(tag)
    def need(tags):
        last = max([i for i, t in enumerate(ops) if t in tags], default=-1)
        return min(63, len(ops) - 1 - last)
    for j, t in enumerate(R1):
        k(f"s_add_u32 s{sT}, s{sWo}, {64*7168*PI[t]}")
        for x in range(7): vm(f"buffer_load_dwordx4 {vr(RW+28*j+4*x,4)}, v{vWo+x}, {sr(dW1,4)}, s{sT} offen", ("rw", t))
    k(f"s_lshl_b32 s{sY}, s{sMt}, 18\ns_lshl_b32 s{sMy}, s{sLw}, 12\ns_add_u32 s{sY}, s{sY}, s{sMy}")
    dY = k.srd(pWS, 4 << 20, WS_Y2)
    vW2 = k.v(2); vLw = k.v(); vCp = k.v(2)
    sHb = k.s(); sWb = k.s(); sK0 = k.s(); sA = k.s(); sHo = k.s()
    dH = k.srd(pWS, 2048 * 3584 * 2, WS_H)
    k(f"v_add_u32 v{vLw}, s{sMw}, v{vOff}")
    k(f"s_lshl_b32 s{sT}, s{sLw}, 11\nv_add_u32 v{vCp}, s{sT}, v{vOff}\nv_add_u32 v{vCp+1}, 65536, v{vCp}")
    k(f"s_mul_i32 s{sHo}, s{sMt}, {112*8192}\ns_mul_i32 s{sT}, s{sNt}, {7*8192}\ns_add_u32 s{sHo}, s{sHo}, s{sT}")
    for par in range(2):
        k(f"v_add_u32 v{T}, {4*par}, v{vG}\nv_lshlrev_b32 v{T}, 1, v{T}\nv_xor_b32 v{T}, v{T}, v{vI}\nv_lshlrev_b32 v{T}, 4, v{T}\nv_lshl_add_u32 v{vW2+par}, v{vG}, 11, v{T}")
    k(f"s_lshr_b32 s{sA}, s{sNt}, 3\ns_mul_i32 s{sHb}, s{sMt}, {112*8192}\ns_mul_i32 s{sT}, s{sA}, {56*8192}\ns_add_u32 s{sHb}, s{sHb}, s{sT}\ns_lshl_b32 s{sT}, s{sWm}, 12\ns_add_u32 s{sHb}, s{sHb}, s{sT}")
    k(f"s_mul_i32 s{sWb}, s{sA}, {1792*2048}\ns_and_b32 s{sA}, s{sNt}, 7\ns_lshl_b32 s{sT}, s{sA}, 8\ns_add_u32 s{sWb}, s{sWb}, s{sT}\ns_lshl_b32 s{sT}, s{sWm}, 15\ns_add_u32 s{sWb}, s{sWb}, s{sT}")
    k(f"s_mul_i32 s{sK0}, s{sA}, 7\ns_add_u32 s{sK0}, s{sK0}, s{sWn}")
    dW2 = k.srd(pW2, WBYTES)
    k("s_barrier")
    k.stamp()
    def issue_y(s):
        k(f"s_add_u32 s{sYq}, s{sY}, {16384*PI[s]}\ns_add_u32 m0, s{sMy}, {(s%NB)*YSL}")
        for x in range(4): vm(f"buffer_load_dwordx4 v{vOff}, {sr(dY,4)}, s{sYq} offen offset:{1024*x} sc1 lds", ("s1", s))
    def issue_w(s):
        if s in R1:
            j = R1.index(s)
            k(f"s_waitcnt vmcnt({need([('rw', s)])})")
            for x in range(7): k(f"ds_write_b128 v{vLw}, {vr(RW+28*j+4*x,4)} offset:{(s%NB)*WSL + 1024*x}")
            return
        k(f"s_add_u32 s{sT}, s{sWo}, {64*7168*PI[s]}")
        for x in range(7):
            k(f"s_add_u32 m0, s{sMw}, {(s%NB)*WSL + 1024*x}")
            vm(f"buffer_load_dwordx4 v{vWo+x}, {sr(dW1,4)}, s{sT} offen lds", ("s1", s))
    sO7 = k.s()
    k(f"s_sub_u32 s{sO7}, s{sK0}, s{sWn}")
    pos = [None] * 7 + [7 * q + c for q in range(7) for c in (0, 3)] + [7 * q + c for q in range(7) for c in (1, 2, 4, 5, 6)]
    def kap(t, sh, base):
        j0, j1 = pos[2 * t], pos[2 * t + 1]
        if j1 is None: r = f"s_add_u32 s{sA}, s{sK0}, {2*t}\n"
        else:
            r = f"s_cmp_eq_u32 s{sWn}, 0\ns_cselect_b32 s{sA}, {j0 or 0}, {j1}\ns_cmp_ge_u32 s{sA}, s{sO7}\ns_cselect_b32 s{sYq}, 7, 0\ns_add_u32 s{sA}, s{sA}, s{sYq}\n"
            if j0 is None: r += f"s_add_u32 s{sYq}, s{sO7}, 6\ns_cmp_eq_u32 s{sWn}, 0\ns_cselect_b32 s{sA}, s{sYq}, s{sA}\n"
        return r + f"s_lshl_b32 s{sA}, s{sA}, {sh}\ns_add_u32 s{sA}, s{sA}, s{base}\n"
    def w2_items(t):
        b = t % NB2; r = []
        for x in range(4):
            pre = kap(t, 16, sWb) if x == 0 else f"s_add_u32 s{sA}, s{sA}, 8192\n"
            r.append(f"s_add_u32 m0, s{sMy}, {b*BUF + 16384 + 1024*x}\n" + pre + f"buffer_load_dwordx4 v{vW2+(x&1)}, {sr(dW2,4)}, s{sA} offen lds")
        return r
    for s in range(3): issue_y(s)
    for s in range(NS):
        k(f"s_waitcnt vmcnt({need([('s1', s)])}) lgkmcnt(0)")
        if s == 0: k.stamp()
        k("s_barrier")
        if s >= 1 and s + 2 < NS:
            if not noY: issue_y(s + 2)
            if not noW1: issue_w(s + 2)
        if s == 10: code_pf_w(k, "CG_epi1", "CODE_END", sW, 4, IDX_STD, vL, T + 2, T + 4, True)
    def issue_h(s):
        b = s % NB2
        if s == 3: k(f"s_cmp_eq_u32 s{sWn}, 0\ns_cbranch_scc1 CG_h3")
        k(f"s_add_u32 m0, s{sMy}, {b*BUF}\n" + kap(s, 13, sHb))
        for x in range(4): vm(f"buffer_load_dwordx4 v{vOff}, {sr(dH,4)}, s{sA} offen offset:{1024*x} sc1 lds", ("s2", s))
        if s == 3: k("CG_h3:")
    def copy_out(js):
        for n, j in enumerate(js):
            b = j >> 1
            for u in range(2): k(f"ds_read_b128 {vr(CP+8*n+4*u,4)}, v{vCp+(b>>1)} offset:{(b&1)*BUF + (j&1)*8192 + 1024*u}")
        for n, j in enumerate(js):
            k(f"s_add_u32 s{sT}, s{sHo}, {j*8192}\ns_waitcnt lgkmcnt({2*(len(js)-1-n)})")
            for u in range(2): k(f"buffer_store_dwordx4 {vr(CP+8*n+4*u,4)}, v{vCp}, {sr(dH,4)}, s{sT} offen offset:{1024*u} sc1")
    sFw = k.s()
    k(f"s_lshl_b32 s{sFo}, s{sMt}, 1\ns_lshr_b32 s{sT}, s{sNt}, 3\ns_add_u32 s{sFo}, s{sFo}, s{sT}\ns_lshl_b32 s{sFo}, s{sFo}, 12\ns_add_u32 s{sFo}, s{sFo}, {FLH}")
    k(f"s_and_b32 s{sT}, s{sNt}, 7\ns_lshl_b32 s{sT}, s{sT}, 2\ns_add_u32 s{sT}, s{sT}, s{sLw}\ns_lshl_b32 s{sT}, s{sT}, 7\ns_add_u32 s{sFw}, s{sFo}, s{sT}")
    k(f"v_and_b32 v{T+2}, 31, v{vL}\nv_lshlrev_b32 v{T+2}, 7, v{T+2}")
    k("s_barrier")
    for t in range(3):
        for l in w2_items(t): k(l)
    k("s_barrier")
    copy_out([0, 3])
    k("s_barrier")
    k("s_waitcnt vmcnt(0)")
    set_flag(k, dF, sFw, vL, T, T + 1)
    copy_out([1, 4])
    for t in range(3, 5):
        for l in w2_items(t): k(l)
    k.stamp()
    k("s_barrier")
    poll(k, "CG_p2", dF, sFo, T + 2, T + 3, 32)
    k.stamp()
    ops.clear()
    issue_h(3); issue_h(4)
    copy_out([2, 5, 6])
    k(f"s_add_u32 s{sFw}, s{sFw}, 131072\ns_add_u32 s{sFo}, s{sFo}, 131072")
    nxt = 5
    for s in range(2, NS2):
        if s == 2:
            k("s_barrier\ns_waitcnt vmcnt(0)")
            set_flag(k, dF, sFw, vL, T, T + 1); ops.append("flag")
            k.stamp()
        else: k(f"s_waitcnt vmcnt({need([('s2', s)])})\ns_barrier")
        while nxt <= s + 4 and nxt < NS2:
            if nxt == 9: vm(f"buffer_load_dword v{T+3}, v{T+2}, {sr(dF,4)}, s{sFo} offen sc1", "pb")
            if nxt == 10:
                k(f"s_waitcnt vmcnt({need(['pb'])})\nv_cmp_ne_u32 vcc, 1, v{T+3}\ns_cbranch_vccz CG_p2b_ok")
                poll(k, "CG_p2b", dF, sFo, T + 2, T + 3, 32)
                k.stamp()
            if not noH: issue_h(nxt)
            if not noW2:
                for l in w2_items(nxt): vm(l, ("s2", nxt))
            nxt += 1
        if s == 18: code_pf_w(k, "CG_epi2", "CG_loader", sW, 4, IDX_STD, vL, T + 4, T + 6, True)
    k.stamp_flush()
    k("CG_end:\ns_endpgm")
    return k
```

```python
from asmlib import *
import math

WS_MODP = 0x0
WS_MODQ = 0xA0000
WS_GB = 0x18000
WS_WMAX = 0x19800
WS_SCAL = 0x19400
WS_TAC = 0x20000
WS_TAW = 0x24000
WS_TBC = 0x28000
WS_TCC = 0x2C000
WS_TCW = 0x30000
WS_SPC = 0x38000
WS_FLAG = 0x40000
WS_MODC = 0x90000
WS_TAS = 0x100000
WS_TCS = 0x200000
WS_ZA = 0x300000
WS_ZB = 0x800000
WS_WB = 0xD00000
WS_X1 = 0x1300000
WS_Y2 = 0x1700000
WS_H = 0x1B00000
WS_PART = 0x2A00000
NSLOT = 258
ZA_PITCH = 16640
ZA_BYTES = NSLOT * ZA_PITCH
ZB_PITCH = NSLOT * 64
ZB_BYTES = 256 * ZB_PITCH
W_BYTES = 2048 * 513 * 2
LOG2E = 1.4426950408889634
DPPM = "row_mask:0xf bank_mask:0xf"
MF = "v_mfma_f32_16x16x32_f16"
OOB = 0x7ffffff0

def wave_reduce(k, op, vs, sdst):
    ops = op if isinstance(op, (list, tuple)) else [op] * len(vs)
    for sh in (1, 2, 4, 8):
        for o, v in zip(ops, vs): k(f"{o}_dpp v{v}, v{v}, v{v} row_ror:{sh} {DPPM}")
    for o, v in zip(ops, vs): k(f"{o}_dpp v{v}, v{v}, v{v} row_bcast:15 row_mask:0xa bank_mask:0xf")
    for o, v in zip(ops, vs): k(f"{o}_dpp v{v}, v{v}, v{v} row_bcast:31 row_mask:0xc bank_mask:0xf")
    for v, s in zip(vs, sdst): k(f"v_readlane_b32 s{s}, v{v}, 63")

def with_fill(k, lines, fill, per=3):
    fill = list(fill)
    for l in lines:
        k(l)
        for _ in range(per):
            if fill: k(fill.pop(0))
    for l in fill: k(l)

def cap(fn):
    t = Kern("x", 0, 0, 0); fn(t); return list(t.lines)

def sincos(k, c, s, vint, n, tmp):
    k(f"v_cvt_f32_u32 v{tmp}, v{vint}")
    k(f"v_mul_f32 v{tmp}, {fbits(1.0/n)}, v{tmp}")
    k(f"v_cos_f32 v{c}, v{tmp}")
    k(f"v_sin_f32 v{s}, v{tmp}")

def round_bf16(k, v):
    k(f"v_cvt_pk_bf16_f32 v{v}, v{v}, v{v}")
    k(f"v_lshlrev_b32 v{v}, 16, v{v}")

def unpack_bf16(k, dst, src, n, smask):
    for i in range(n):
        k(f"v_lshlrev_b32 v{dst+2*i}, 16, v{src+i}")
        k(f"v_and_b32 v{dst+2*i+1}, s{smask}, v{src+i}")

def cmul_tw(k, re, im, c, s, conj, t):
    k(f"v_mul_f32 v{t}, v{re}, v{s}")
    k(f"v_mul_f32 v{re}, v{re}, v{c}")
    if not conj:
        k(f"v_fmac_f32 v{re}, v{im}, v{s}")
        k(f"v_fma_f32 v{im}, v{im}, v{c}, -v{t}")
    else:
        k(f"v_fma_f32 v{re}, -v{im}, v{s}, v{re}")
        k(f"v_fma_f32 v{im}, v{im}, v{c}, v{t}")

def P2(r): return f"v[{r}:{r+1}]"
def cmul2(k, re, im, c, s, conj, t):
    NEG0 = "neg_lo:[1,0,0] neg_hi:[1,0,0]"; NEG2 = "neg_lo:[0,0,1] neg_hi:[0,0,1]"
    k(f"v_pk_mul_f32 {P2(t)}, {P2(re)}, {P2(s)}")
    k(f"v_pk_mul_f32 {P2(re)}, {P2(re)}, {P2(c)}")
    k(f"v_pk_fma_f32 {P2(re)}, {P2(im)}, {P2(s)}, {P2(re)} {NEG0 if conj else ''}")
    k(f"v_pk_fma_f32 {P2(im)}, {P2(im)}, {P2(c)}, {P2(t)} {'' if conj else NEG2}")

def tw_block(k, D, C, S, conj, T, OP):
    for v in (0, 2): cmul2(k, D + v, D + 4 + v, C + v, S + v, conj, T + v)
    for v in range(4): k(f"v_cvt_pk_f16_f32 v{OP+v}, v{D+v}, v{D+4+v}")

def ln_pk(k, X, A, RC, sP, sS, fill=(), extra=None):
    k(f"v_readfirstlane_b32 s{sP}, v{X}")
    for i in range(8): k(f"v_pk_add_f32 {P2(X+2*i)}, {P2(X+2*i)}, s[{sP}:{sP+1}] op_sel_hi:[1,0] neg_lo:[0,1] neg_hi:[0,1]")
    k(f"v_pk_add_f32 {P2(A)}, {P2(X)}, {P2(X+2)}\nv_pk_mul_f32 {P2(A+2)}, {P2(X)}, {P2(X)}")
    k(f"v_pk_fma_f32 {P2(A+2)}, {P2(X+2)}, {P2(X+2)}, {P2(A+2)}")
    for i in range(2, 8): k(f"v_pk_add_f32 {P2(A)}, {P2(A)}, {P2(X+2*i)}\nv_pk_fma_f32 {P2(A+2)}, {P2(X+2*i)}, {P2(X+2*i)}, {P2(A+2)}")
    k(f"v_add_f32 v{A}, v{A}, v{A+1}\nv_add_f32 v{A+2}, v{A+2}, v{A+3}")
    for l in fill: k(l)
    ops = ["v_add_f32", "v_add_f32"]; vs = [A, A + 2]; sd = [sS, sS + 1]
    if extra: ops.append(extra[0]); vs.append(extra[1]); sd.append(extra[2])
    wave_reduce(k, ops, vs, sd)
    k(f"v_mov_b32 v{A}, {fbits(1/1024)}\nv_mul_f32 v{RC+1}, s{sS}, v{A}\nv_mul_f32 v{RC}, s{sS+1}, v{A}")
    k(f"v_fma_f32 v{RC}, -v{RC+1}, v{RC+1}, v{RC}\nv_max_f32 v{RC}, 0, v{RC}")
    round_bf16(k, RC)
    k(f"v_add_f32 v{RC}, {fbits(1e-5)}, v{RC}")
    round_bf16(k, RC)
    k(f"v_sqrt_f32 v{RC}, v{RC}")
    round_bf16(k, RC)
    k(f"v_rcp_f32 v{RC}, v{RC}")
    k(f"v_mul_f32 v{RC+1}, v{RC+1}, v{RC}")
    for i in range(8): k(f"v_pk_fma_f32 {P2(X+2*i)}, {P2(X+2*i)}, {P2(RC)}, {P2(RC)} op_sel:[0,0,1] op_sel_hi:[1,0,1] neg_lo:[0,0,1] neg_hi:[0,0,1]")

def lane_ids(k):
    vL = k.v(); vI = k.v(); vG = k.v(); sW = k.s(); T = k.v(8)
    k(f"v_lshrrev_b32 v{T}, 6, v0\nv_and_b32 v{vL}, 63, v0")
    k(f"v_readfirstlane_b32 s{sW}, v{T}")
    k(f"v_and_b32 v{vI}, 15, v{vL}\nv_lshrrev_b32 v{vG}, 4, v{vL}")
    return vL, vI, vG, sW, T

C_TB = 17 * 1024
C_TP = (512 + 4) * 4

def code_pf(k, start, end, sIdx, vL, vTmp, vDum, back=False):
    m = k.mark(); p = k.s(2); sv = k.s(2); sO = k.s()
    lab = f"CP{len(k.lines)}_{k.name}"
    k(f"s_getpc_b64 {sr(p,2)}\n{lab}:")
    k(f"s_add_u32 s{p}, s{p}, {start}-{lab}\ns_addc_u32 s{p+1}, s{p+1}, {-1 if back else 0}\ns_lshl_b32 s{sO}, s{sIdx}, 7")
    k(f"v_lshl_add_u32 v{vTmp}, v{vL}, 12, s{sO}")
    k(f"v_cmp_gt_u32 vcc, {end}-{start}, v{vTmp}")
    k(f"s_and_saveexec_b64 {sr(sv,2)}, vcc\ns_cbranch_execz {lab}e")
    k(f"v_mov_b32 v{vTmp+1}, s{p+1}\nv_add_co_u32 v{vTmp}, vcc, s{p}, v{vTmp}\nv_addc_co_u32 v{vTmp+1}, vcc, 0, v{vTmp+1}, vcc")
    k(f"global_load_dword v{vDum}, {vr(vTmp,2)}, off")
    k(f"{lab}e:\ns_mov_b64 exec, {sr(sv,2)}")
    k.release(m)

CODEPF = True
TLBW = 0
def code_pf_w(k, start, end, sWave, wave, idx_code, vL, vTmp, vDum, back=False):
    if not CODEPF: return
    m = k.mark(); sI = k.s()
    lab = f"CW{len(k.lines)}_{k.name}"
    k(f"s_cmp_lg_u32 s{sWave}, {wave}\ns_cbranch_scc1 {lab}")
    k(idx_code.format(sI))
    code_pf(k, start, end, sI, vL, vTmp, vDum, back)
    k(f"{lab}:")
    k.release(m)
IDX_STD = "s_lshr_b32 s{0}, s2, 3\ns_and_b32 s{0}, s{0}, 31"
PT_K0 = []; PT_A = []; PT_B = []
def page_touch(k, items, sWave, wave, vL, vA, vDum):
    if not TLBW or not items: return
    mm = k.mark(); sI = k.s(); ps = [k.s(2) for _ in items]
    lab = f"PT{len(k.lines)}_{k.name}"
    k(f"s_cmp_lg_u32 s{sWave}, {wave}\ns_cbranch_scc1 {lab}")
    for p, it in zip(ps, items): k(f"s_load_dwordx2 {sr(p,2)}, s[0:1], {it[0]}")
    k(IDX_STD.format(sI))
    k(f"v_min_u32 v{vA}, {min(63, (1 << 30) // (32 * TLBW))}, v{vL}\nv_lshl_add_u32 v{vA}, v{vA}, 5, s{sI}\nv_lshlrev_b32 v{vA}, {TLBW.bit_length()-1}, v{vA}\ns_waitcnt lgkmcnt(0)")
    for p, it in zip(ps, items):
        m2 = k.mark(); d = k.srd(p, it[2], it[1])
        k(f"buffer_load_dword v{vDum}, v{vA}, {sr(d,4)}, 0 offen nt")
        k.release(m2)
    k(f"{lab}:")
    k.release(mm)

def gemv_job(k, pC, pM, pWS, vL, sWave, T, endlabel):
    m = k.mark()
    sT = k.s(); sMask = k.s(); sO = k.s(); sCo = k.s(); sG = k.s(); sHj = k.s(); sStrip = k.s(); sRb = k.s(); sOut = k.s(); sU = k.s(); sCrit = k.s()
    vOff = k.v(); vOffC = k.v()
    k(f"v_bfe_u32 v{T+1}, v0, 3, 5\nv_mul_u32_u24 v{vOff}, 12288, v{T+1}")
    k(f"v_and_b32 v{T}, 7, v0\nv_lshl_add_u32 v{vOff}, v{T}, 4, v{vOff}\nv_lshlrev_b32 v{vOffC}, 1, v{T+1}")
    k(f"s_mov_b32 s{sMask}, 0xffff0000\ns_lshr_b32 s{sG}, s{sWave}, 2")
    k(f"s_mul_i32 s{sHj}, s2, 3\ns_add_u32 s{sHj}, s{sHj}, s{sG}\ns_sub_u32 s{sHj}, s{sHj}, 256\ns_cmp_lt_u32 s2, 128\ns_cselect_b32 s{sHj}, s2, s{sHj}\ns_cselect_b32 s{sCrit}, 2, 0")
    k(f"s_and_b32 s{sStrip}, s{sHj}, 63\ns_lshr_b32 s{sRb}, s{sHj}, 6")
    k(f"s_lshl_b32 s{sOut}, s{sRb}, 14\ns_lshl_b32 s{sT}, s{sStrip}, 8\ns_add_u32 s{sOut}, s{sOut}, s{sT}\ns_add_u32 s{sOut}, s{sOut}, {WS_MODQ}\ns_add_u32 s{sStrip}, s{sStrip}, 32")
    k(f"s_and_b32 s{sT}, s2, 31\ns_lshr_b32 s{sU}, s2, 5\ns_lshl_b32 s{sO}, s{sU}, 13\ns_lshl_b32 s{sCo}, s{sT}, 8\ns_add_u32 s{sO}, s{sO}, s{sCo}\ns_lshl_b32 s{sU}, s{sU}, 1\ns_add_u32 s{sU}, s{sU}, s{sG}")
    k(f"s_cmp_lt_u32 s{sG}, s{sCrit}\ns_cselect_b32 s{sStrip}, s{sT}, s{sStrip}\ns_cselect_b32 s{sRb}, s{sU}, s{sRb}\ns_cselect_b32 s{sOut}, s{sO}, s{sOut}")
    k(f"s_mul_i32 s{sO}, s{sRb}, {128*12288}\ns_lshl_b32 s{sT}, s{sStrip}, 7\ns_add_u32 s{sO}, s{sO}, s{sT}\ns_lshl_b32 s{sCo}, s{sRb}, 8")
    k("s_waitcnt lgkmcnt(0)")
    dM = k.srd(pM, 1024 * 6144 * 2); dC = k.srd(pC, 2048); dO = k.srd(pWS, WS_TAS)
    C = k.v(4); Wv = k.v(16); E = k.v(4); A = k.v(8)
    for i in range(4):
        k(f"buffer_load_ushort v{C+i}, v{vOffC}, {sr(dC,4)}, s{sCo} offen offset:{64*i}")
    for i in range(4):
        k(f"buffer_load_dwordx4 {vr(Wv+4*i,4)}, v{vOff}, {sr(dM,4)}, s{sO} offen nt")
        if i < 3: k(f"s_add_u32 s{sO}, s{sO}, {32*12288}")
    code_pf_w(k, "fa_kernel", "CODE_END", sWave, 11, IDX_STD, vL, T + 2, T + 4)
    k(f"s_sub_u32 s{sT}, s{sWave}, 9\ns_cmp_ge_u32 s{sT}, 2\ns_cbranch_scc1 GV_nz")
    dZ = k.srd(pWS, 0x50000, WS_FLAG)
    for i in range(4): k(f"v_mov_b32 v{A+i}, 0")
    k(f"s_lshl_b32 s{sT}, s{sT}, 8\ns_add_u32 s{sT}, s{sT}, s2\ns_lshl_b32 s{sT}, s{sT}, 10\nv_lshlrev_b32 v{T+2}, 4, v{vL}")
    k(f"buffer_store_dwordx4 {vr(A,4)}, v{T+2}, {sr(dZ,4)}, s{sT} offen sc1")
    k("GV_nz:")
    vA = k.v()
    k(f"v_and_b32 v{T}, 7, v{vL}\nv_lshlrev_b32 v{T}, 5, v{T}\nv_lshrrev_b32 v{T+1}, 4, v{vL}\nv_lshl_add_u32 v{T}, v{T+1}, 2, v{T}")
    k(f"s_lshl_b32 s{sT}, s{sWave}, 8\nv_add_u32 v{vA}, s{sT}, v{T}")
    k("s_waitcnt vmcnt(4)")
    for i in range(4): k(f"v_lshlrev_b32 v{C+i}, 16, v{C+i}\nv_mul_f32 v{E+i}, {fbits(-LOG2E)}, v{C+i}")
    for i in range(4): k(f"v_exp_f32 v{E+i}, v{E+i}")
    for i in range(4): k(f"v_add_f32 v{E+i}, 1.0, v{E+i}")
    for i in range(4): k(f"v_rcp_f32 v{E+i}, v{E+i}")
    for i in range(4): k(f"v_mul_f32 v{C+i}, v{C+i}, v{E+i}")
    for i in range(4): round_bf16(k, C + i)
    for i in range(4):
        k(f"s_waitcnt vmcnt({3-i})")
        sel = "op_sel:[0,1,0] op_sel_hi:[1,1,1]" if i & 1 else "op_sel_hi:[1,0,1]"
        for q in range(4):
            t = T + 2 * (q & 1)
            k(f"v_lshlrev_b32 v{t}, 16, v{Wv+4*i+q}\nv_and_b32 v{t+1}, s{sMask}, v{Wv+4*i+q}")
            if i == 0: k(f"v_pk_mul_f32 {P2(A+2*q)}, {P2(t)}, {P2(C)} op_sel_hi:[1,0]")
            else: k(f"v_pk_fma_f32 {P2(A+2*q)}, {P2(t)}, {P2(C+(i&2))}, {P2(A+2*q)} {sel}")
    for q in range(4): k(f"v_permlane16_swap_b32 v{A+2*q}, v{A+2*q+1}")
    for q in range(4): k(f"v_add_f32 v{A+2*q}, v{A+2*q}, v{A+2*q+1}")
    k(f"v_permlane32_swap_b32 v{A}, v{A+2}\nv_permlane32_swap_b32 v{A+4}, v{A+6}")
    k(f"v_add_f32 v{A}, v{A}, v{A+2}\nv_add_f32 v{A+4}, v{A+4}, v{A+6}")
    k(f"v_add_f32_dpp v{A}, v{A}, v{A} row_ror:8 {DPPM}\nv_add_f32_dpp v{A+4}, v{A+4}, v{A+4} row_ror:8 {DPPM}")
    k(f"ds_write2_b32 v{vA}, v{A}, v{A+4} offset0:0 offset1:4")
    k("s_waitcnt lgkmcnt(0)\ns_barrier")
    k(f"s_and_b32 s{sT}, s{sWave}, 3\ns_cmp_lg_u32 s{sT}, 0\ns_cbranch_scc1 {endlabel}")
    k(f"s_add_u32 s{sT}, s{sG}, 1\ns_cmp_eq_u32 s{sT}, s{sCrit}\ns_cbranch_scc1 {endlabel}")
    k(f"s_lshl_b32 s{sT}, s{sWave}, 8\nv_lshlrev_b32 v{T}, 2, v{vL}\nv_add_u32 v{T+1}, s{sT}, v{T}")
    for i in range(4): k(f"ds_read2st64_b32 {vr(A+2*i,2)}, v{T+1} offset0:{2*i} offset1:{2*i+1}")
    k(f"s_cmp_lt_u32 s{sG}, s{sCrit}\ns_cselect_b64 vcc, -1, 0")
    k("s_waitcnt lgkmcnt(0)")
    for i in range(4): k(f"v_add_f32 v{A+2*i}, v{A+2*i}, v{A+2*i+1}")
    k(f"v_add_f32 v{A}, v{A}, v{A+2}\nv_add_f32 v{A+4}, v{A+4}, v{A+6}\nv_cndmask_b32 v{A+4}, 0, v{A+4}, vcc\nv_add_f32 v{A}, v{A}, v{A+4}")
    k(f"buffer_store_dword v{A}, v{T}, {sr(dO,4)}, s{sOut} offen sc1")
    k.stamp_flush()
    k("s_endpgm")
    k.release(m)

def tab_a_common(k, vI, vG, T, R, part):
    def f1(ct, ks, ri): return R + ((ct * 2 + ks) * 2 + ri) * 4
    sg = 1 / math.sqrt(32)
    for ct in range(2):
        if part != ct: continue
        for ks in range(2):
            for e in range(4):
                k(f"v_add_u32 v{T}, {16*ks+4*e}, v{vG}\nv_add_u32 v{T+1}, {16*ct}, v{vI}")
                k(f"v_mul_u32_u24 v{T}, v{T}, v{T+1}\nv_and_b32 v{T}, 31, v{T}")
                sincos(k, T + 1, T + 2, T, 32, T + 3)
                k(f"v_mul_f32 v{T+1}, {fbits(sg)}, v{T+1}\nv_mul_f32 v{T+2}, {fbits(sg)}, v{T+2}")
                k(f"v_cvt_pk_f16_f32 v{f1(ct,ks,0)+e}, v{T+1}, v{T+2}\nv_cvt_pk_f16_f32 v{f1(ct,ks,1)+e}, -v{T+2}, v{T+1}")
        return (4 * ct, 4)
    for ct in range(2):
        for v in range(4):
            k(f"v_lshl_add_u32 v{T}, v{vG}, 2, {v}\nv_add_u32 v{T+1}, {16*ct}, v{vI}\nv_mul_u32_u24 v{T}, v{T}, v{T+1}")
            sincos(k, R + 32 + 4 * ct + v, R + 40 + 4 * ct + v, T, 512, T + 3)
    for v in range(4):
        k(f"v_lshl_add_u32 v{T}, v{vG}, 2, {v}\nv_mul_u32_u24 v{T}, v{T}, v{vI}\nv_and_b32 v{T}, 15, v{T}")
        sincos(k, T + 1, T + 2, T, 16, T + 3)
        k(f"v_mul_f32 v{T+1}, {fbits(0.25)}, v{T+1}\nv_mul_f32 v{T+2}, {fbits(0.25)}, v{T+2}")
        k(f"v_cvt_pk_f16_f32 v{R+48+v}, v{T+1}, v{T+2}\nv_cvt_pk_f16_f32 v{R+52+v}, -v{T+2}, v{T+1}")
    return (8, 6)

def tab_a_wave(k, vI, vG, T, R, sJ, sT):
    vRho = T + 7
    k(f"v_and_b32 v{vRho}, 7, v{vI}")
    for q in range(2):
        for x in range(2):
            d = R + 2 * q + x
            k(f"v_lshrrev_b32 v{T}, 1, v{vG}\nv_lshl_add_u32 v{T}, v{T}, 4, v{vI}")
            k(f"s_lshl_b32 s{sT}, s{sJ}, 6\ns_add_u32 s{sT}, s{sT}, {32*q}\nv_add_u32 v{T}, s{sT}, v{T}")
            if x: k(f"v_sub_u32 v{T}, 512, v{T}\nv_and_b32 v{T}, 511, v{T}")
            k(f"v_lshrrev_b32 v{T+1}, 3, v{T}\nv_and_b32 v{T+1}, 28, v{T+1}\nv_xor_b32 v{T}, v{T}, v{T+1}")
            k(f"v_and_b32 v{T+1}, 1, v{vG}\nv_mul_u32_u24 v{T+1}, {4*2048+64}, v{T+1}")
            k(f"v_lshl_add_u32 v{d}, v{T}, 2, v{T+1}")
    for q in range(2):
        for ins in range(2):
            k(f"v_lshrrev_b32 v{T}, 3, v{vI}\nv_lshlrev_b32 v{T}, 1, v{T}")
            k(f"s_lshl_b32 s{sT}, s{sJ}, 3\ns_add_u32 s{sT}, s{sT}, {4*q+ins}\nv_add_u32 v{T}, s{sT}, v{T}")
            k(f"v_lshlrev_b32 v{T+1}, 6, v{vRho}\nv_subrev_u32 v{T+1}, 31, v{T+1}\nv_max_i32 v{T+1}, 0, v{T+1}")
            k(f"v_add_u32 v{T+1}, v{T+1}, v{T}\nv_mul_u32_u24 v{T+1}, {ZA_PITCH}, v{T+1}")
            k(f"v_and_b32 v{T+2}, 1, v{vG}\nv_lshl_add_u32 v{T+1}, v{T+2}, 5, v{T+1}")
            k(f"v_lshrrev_b32 v{T+2}, 1, v{vG}\nv_lshl_add_u32 v{T+1}, v{T+2}, 4, v{T+1}")
            k(f"v_and_b32 v{T+2}, 3, v{vRho}\nv_cmp_eq_u32 vcc, 0, v{T+2}\nv_mov_b32 v{T+3}, 64\nv_cndmask_b32 v{T+3}, v{T+3}, 33, vcc")
            k(f"v_cmp_lt_u32 vcc, 4, v{vRho}\nv_cndmask_b32 v{T+3}, v{T+3}, 0, vcc")
            k(f"v_cmp_lt_u32 vcc, v{T}, v{T+3}\nv_mov_b32 v{T+2}, {OOB}\nv_cndmask_b32 v{R+4+2*q+ins}, v{T+2}, v{T+1}, vcc")
    return 2

def tab_a_s0(k, vI, vG, T, R, sS0):
    s8 = 1 / math.sqrt(8)
    vSc = T + 6; vRho = T + 7
    k(f"v_lshrrev_b32 v{T}, 3, v{vI}\nv_lshrrev_b32 v{T+1}, 1, v{vG}\nv_cmp_eq_u32 vcc, v{T}, v{T+1}")
    k(f"v_mov_b32 v{T+2}, {fbits(s8)}\nv_cndmask_b32 v{vSc}, 0, v{T+2}, vcc\nv_and_b32 v{vRho}, 7, v{vI}")
    for e in range(4):
        k(f"v_and_b32 v{T}, 1, v{vG}\nv_lshl_add_u32 v{T}, v{T}, 2, {e}\nv_lshl_add_u32 v{T}, v{T}, 8, s{sS0}")
        k(f"v_mul_u32_u24 v{T}, v{T}, v{vRho}\nv_and_b32 v{T}, 0x7ff, v{T}")
        sincos(k, T + 1, T + 2, T, 2048, T + 3)
        k(f"v_mul_f32 v{T+1}, v{vSc}, v{T+1}\nv_mul_f32 v{T+2}, v{vSc}, v{T+2}")
        k(f"v_cvt_pk_f16_f32 v{R+e}, v{T+1}, v{T+2}\nv_cvt_pk_f16_f32 v{R+4+e}, -v{T+2}, v{T+1}")
        k(f"v_cvt_pk_f16_f32 v{R+8+e}, v{T+1}, -v{T+2}\nv_cvt_pk_f16_f32 v{R+12+e}, -v{T+2}, -v{T+1}")
    return 4

def tab_b_common(k, vI, vG, T, R):
    for v in range(4):
        k(f"v_lshl_add_u32 v{T}, v{vG}, 2, {v}\nv_mul_u32_u24 v{T}, v{T}, v{vI}")
        sincos(k, R + v, R + 4 + v, T, 256, T + 3)
        k(f"v_and_b32 v{T}, 15, v{T}")
        sincos(k, R + 24 + v, R + 28 + v, T, 16, T + 3)
        k(f"v_mul_f32 v{T+1}, {fbits(0.25)}, v{R+24+v}\nv_mul_f32 v{T+2}, {fbits(0.25)}, v{R+28+v}")
        k(f"v_cvt_pk_f16_f32 v{R+8+v}, v{T+1}, v{T+2}\nv_cvt_pk_f16_f32 v{R+12+v}, -v{T+2}, v{T+1}")
        k(f"v_cvt_pk_f16_f32 v{R+16+v}, v{T+1}, -v{T+2}\nv_cvt_pk_f16_f32 v{R+20+v}, v{T+2}, v{T+1}")
    return 8

def tab_c_common(k, vI, vG, T, R, part):
    for e in range(4 if part == 2 else 0):
        k(f"v_add_u32 v{T}, {4*e}, v{vG}\nv_mul_u32_u24 v{T}, v{T}, v{vI}\nv_and_b32 v{T}, 15, v{T}")
        sincos(k, T + 1, T + 2, T, 16, T + 3)
        k(f"v_mul_f32 v{T+1}, {fbits(0.25)}, v{T+1}\nv_mul_f32 v{T+2}, {fbits(0.25)}, v{T+2}")
        k(f"v_cvt_pk_f16_f32 v{R+e}, v{T+1}, -v{T+2}\nv_cvt_pk_f16_f32 v{R+4+e}, v{T+2}, v{T+1}")
    for rt in range(2 if part == 2 else 0):
        for v in range(4):
            k(f"v_lshl_add_u32 v{T}, v{vG}, 2, {16*rt+v}\nv_mul_u32_u24 v{T}, v{T}, v{vI}")
            sincos(k, R + 8 + 4 * rt + v, R + 16 + 4 * rt + v, T, 512, T + 3)
    if part == 2: return (0, 6)
    sg = 1 / math.sqrt(32)
    for ct in (part,):
        for rt in range(2):
            for v in range(4):
                k(f"v_lshl_add_u32 v{T}, v{vG}, 2, {16*rt+v}\nv_add_u32 v{T+1}, {16*ct}, v{vI}\nv_mul_u32_u24 v{T}, v{T}, v{T+1}\nv_and_b32 v{T}, 31, v{T}")
                sincos(k, T + 1, T + 2, T, 32, T + 3)
                k(f"v_mul_f32 v{T+1}, {fbits(sg)}, v{T+1}\nv_mul_f32 v{T+2}, {fbits(sg)}, v{T+2}")
                b = R + 24 + ((ct * 2 + rt) * 2) * 4
                k(f"v_cvt_pk_f16_f32 v{b+v}, v{T+1}, -v{T+2}\nv_cvt_pk_f16_f32 v{b+4+v}, v{T+2}, v{T+1}")
    return (6 + 4 * part, 4)

def tab_c_wave(k, vI, vG, T, R, sJ, sT):
    sO = k.s()
    vY = T + 6; vHf = T + 7
    k(f"v_lshrrev_b32 v{vY}, 1, v{vG}\nv_and_b32 v{vHf}, 1, v{vG}")
    for q in range(2):
        k(f"s_lshl_b32 s{sT}, s{sJ}, 5\ns_add_u32 s{sT}, s{sT}, {16*q}")
        k(f"v_lshl_add_u32 v{T}, v{vY}, 8, v{vI}\nv_add_u32 v{T}, s{sT}, v{T}")
        k(f"v_sub_u32 v{T+1}, 512, v{T}\nv_and_b32 v{T+1}, 511, v{T+1}")
        k(f"v_lshlrev_b32 v{T}, 3, v{T}\nv_lshl_add_u32 v{T+1}, v{T+1}, 3, 4")
        for e in range(4):
            if e < 3: k(f"v_xor_b32 v{T+4}, v{vY}, v{vHf}")
            else: k(f"v_mov_b32 v{T+4}, v{vY}")
            k(f"v_cmp_eq_u32 vcc, 0, v{T+4}")
            k(f"v_add_u32 v{T+2}, {e}, v{vHf}\nv_lshlrev_b32 v{T+2}, 6, v{T+2}\nv_subrev_u32 v{T+2}, 31, v{T+2}\nv_max_i32 v{T+2}, 0, v{T+2}")
            k(f"v_cndmask_b32 v{T+3}, v{T+1}, v{T}, vcc")
            k(f"v_lshl_add_u32 v{R+4*q+e}, v{T+2}, 6, v{T+3}")
    for q in range(2):
        k(f"s_and_b32 s{sT}, s{sJ}, 1\ns_xor_b32 s{sT}, s{sT}, {q}\ns_lshl_b32 s{sT}, s{sT}, 6")
        k(f"s_lshl_b32 s{sO}, s{sJ}, 7\ns_add_u32 s{sT}, s{sT}, s{sO}\ns_add_u32 s{sT}, s{sT}, {C_TB}")
        k(f"v_and_b32 v{T}, 7, v{vI}\nv_mul_u32_u24 v{T}, {C_TP}, v{T}")
        k(f"v_lshrrev_b32 v{T+1}, 3, v{vI}\nv_lshl_add_u32 v{T}, v{T+1}, 10, v{T}\nv_lshl_add_u32 v{T}, v{vG}, 4, v{T}")
        k(f"v_add_u32 v{R+8+q}, s{sT}, v{T}")
    k(f"s_mul_i32 s{sT}, s{sJ}, {C_TP}\ns_add_u32 s{sT}, s{sT}, {C_TB}")
    for rt in range(2):
        k(f"v_xor_b32 v{T}, {rt}, v{vHf}\nv_lshl_add_u32 v{T}, v{T}, 4, v{vI}\nv_lshl_add_u32 v{T}, v{vG}, 5, v{T}")
        k(f"v_lshl_add_u32 v{R+10+rt}, v{T}, 2, s{sT}")
    return 3

def tab_c_s0(k, vI, vG, T, R, sS0, sSign):
    s8 = 1 / math.sqrt(8)
    vY = T + 6; vHf = T + 7; vSc = R + 8; vS = R + 9
    k(f"v_lshrrev_b32 v{vY}, 1, v{vG}\nv_and_b32 v{vHf}, 1, v{vG}")
    k(f"v_lshrrev_b32 v{T}, 3, v{vI}\nv_cmp_eq_u32 vcc, v{T}, v{vY}\nv_mov_b32 v{T+2}, {fbits(s8)}\nv_cndmask_b32 v{vSc}, 0, v{T+2}, vcc")
    k(f"v_and_b32 v{vS}, 7, v{vI}\nv_lshl_add_u32 v{vS}, v{vS}, 8, s{sS0}")
    for e in range(4):
        k(f"v_add_u32 v{T+4}, {e}, v{vHf}")
        if e < 3: k(f"v_xor_b32 v{T+5}, v{vY}, v{vHf}")
        else: k(f"v_mov_b32 v{T+5}, v{vY}")
        k(f"v_mul_u32_u24 v{T}, v{vS}, v{T+4}\nv_and_b32 v{T}, 0x7ff, v{T}")
        sincos(k, T + 1, T + 2, T, 2048, T + 3)
        k(f"v_mul_f32 v{T+1}, v{vSc}, v{T+1}\nv_mul_f32 v{T+2}, v{vSc}, v{T+2}")
        k(f"v_cvt_pk_f16_f32 v{R+e}, v{T+1}, -v{T+2}\nv_cvt_pk_f16_f32 v{R+4+e}, v{T+2}, v{T+1}")
        k(f"v_mul_lo_u32 v{T}, v{T+5}, s{sSign}\nv_xor_b32 v{R+4+e}, v{T}, v{R+4+e}")
    return 2

WB_RHO = 65 * 16384
def w_job(k, pW, pWS, first, vL, sWave, T, endlabel):
    m00 = k.mark()
    if k.prof: k._st = k._st[:1]; k._stidx = 6
    k(f"s_cmp_ge_u32 s{sWave}, 5\ns_cbranch_scc1 {endlabel}")
    sA = k.s(); sB = k.s(); sT = k.s()
    sJob = k.s(); sRho = k.s(); sWh = k.s(); sK1 = k.s(); sRow = k.s(); sStep = k.s(); sMis = k.s(); sDs = k.s()
    k(f"s_sub_u32 s{sJob}, s2, {first}\ns_lshr_b32 s{sRho}, s{sJob}, 5\ns_bfe_u32 s{sWh}, s{sJob}, 0x10004\ns_and_b32 s{sK1}, s{sJob}, 15")
    k(f"s_lshl_b32 s{sRow}, s{sK1}, 3\ns_add_u32 s{sRow}, s{sRow}, s{sRho}")
    k(f"s_sub_u32 s{sT}, 2048, s{sRow}\ns_cmp_eq_u32 s{sWh}, 1\ns_cselect_b32 s{sRow}, s{sT}, s{sRow}\ns_movk_i32 s{sStep}, 128\ns_cselect_b32 s{sStep}, -128, s{sStep}")
    k(f"s_and_b32 s{sMis}, s{sRow}, 7")
    vSt = k.v(8); vOf = k.v(4)
    k(f"v_lshrrev_b32 v{T+2}, 2, v0\nv_and_b32 v{T+3}, 3, v0")
    k(f"v_cmp_gt_u32 vcc, 66, v{T+2}\nv_mov_b32 v{T}, {OOB-0x1000000}\nv_lshlrev_b32 v{T+4}, 4, v{T+2}\nv_cndmask_b32 v{T+4}, v{T}, v{T+4}, vcc")
    for r in range(4):
        k(f"v_lshl_add_u32 v{T+1}, v{T+3}, 2, {r}\nv_mul_i32_i24 v{T+1}, s{sStep}, v{T+1}\nv_add_u32 v{T+1}, s{sRow}, v{T+1}\nv_and_b32 v{T+1}, 2047, v{T+1}")
        k(f"v_mul_u32_u24 v{T+1}, 1026, v{T+1}\nv_and_b32 v{T+1}, -16, v{T+1}\nv_add_u32 v{vOf+r}, v{T+1}, v{T+4}")
    k("s_waitcnt lgkmcnt(0)")
    k.stamp()
    dR = k.srd(pW, W_BYTES); dI = k.srd(pW + 2, W_BYTES)
    RR = k.v(16); RI = k.v(16); P = k.v(32)
    for r in range(4):
        k(f"buffer_load_dwordx4 {vr(RR+4*r,4)}, v{vOf+r}, {sr(dR,4)}, 0 offen nt")
        k(f"buffer_load_dwordx4 {vr(RI+4*r,4)}, v{vOf+r}, {sr(dI,4)}, 0 offen nt")
    k(f"s_lshl_b32 s{sDs}, s{sStep}, 4")
    k(f"v_lshlrev_b32 v{T+1}, 3, v{T+2}\nv_subrev_u32 v{T+1}, s{sMis}, v{T+1}\nv_mul_lo_u32 v{T+1}, v{T+1}, s{sDs}")
    k(f"s_lshl_b32 s{sT}, s{sWh}, 20\nv_add_u32 v{T+1}, s{sT}, v{T+1}\nv_lshl_add_u32 v{vSt}, v{T+3}, 4, v{T+1}")
    for j in range(1, 8): k(f"v_add_u32 v{vSt+j}, s{sDs}, v{vSt+j-1}")
    dB = k.s(4)
    k(f"s_mul_i32 s{sA}, s{sRho}, {WB_RHO}\ns_add_u32 s{sA}, s{sA}, {WS_WB}\ns_add_u32 s{dB}, s{pWS}, s{sA}\ns_addc_u32 s{dB+1}, s{pWS+1}, 0\ns_mov_b32 s{dB+2}, {513*2048}\ns_mov_b32 s{dB+3}, 0x20000")
    dMx = k.srd(pWS, 640, WS_WMAX)
    k(f"s_lshl_b32 s{sA}, s{sWh}, 10\ns_lshl_b32 s{sB}, s{sK1}, 6\ns_add_u32 s{sA}, s{sA}, s{sB}")
    sM7 = k.s(); vMx = k.v(); sP0 = k.s(); sP1 = k.s()
    k(f"s_mov_b32 s{sM7}, 0x7fff7fff\ns_mov_b32 s{sP0}, 0x05040100\ns_mov_b32 s{sP1}, 0x07060302")
    k.stamp()
    k("s_waitcnt vmcnt(0)")
    k.stamp()
    for j in range(8):
        for r in range(4):
            k(f"v_perm_b32 v{P+4*j+r}, v{RI+4*r+(j>>1)}, v{RR+4*r+(j>>1)}, s{sP1 if j & 1 else sP0}")
        k(f"buffer_store_dwordx4 {vr(P+4*j,4)}, v{vSt+j}, {sr(dB,4)}, s{sA} offen sc1")
    k.stamp()
    k(f"v_and_b32 v{vMx}, s{sM7}, v{RR}")
    for r in range(1, 32):
        k(f"v_and_b32 v{RR+r}, s{sM7}, v{RR+r}\nv_pk_max_u16 v{vMx}, v{vMx}, v{RR+r}")
    k(f"v_lshrrev_b32 v{T}, 16, v{vMx}\nv_and_b32 v{vMx}, 0xffff, v{vMx}\nv_max_u32 v{vMx}, v{vMx}, v{T}")
    wave_reduce(k, "v_max_u32", [vMx], [sA])
    k(f"s_lshl_b32 s{sT}, s{sWave}, 2\nv_mov_b32 v{T}, s{sT}\nv_mov_b32 v{vMx}, s{sA}\nds_write_b32 v{T}, v{vMx}")
    if k.prof: k("s_waitcnt vmcnt(0)")
    k.stamp_flush()
    k("s_waitcnt lgkmcnt(0)\ns_barrier")
    k(f"s_cmp_lg_u32 s{sWave}, 0\ns_cbranch_scc1 {endlabel}")
    k(f"v_mov_b32 v{T}, 0\nds_read_b128 {vr(RR,4)}, v{T}\nds_read_b32 v{RR+4}, v{T} offset:16\ns_lshl_b32 s{sT}, s{sJob}, 2\ns_waitcnt lgkmcnt(0)")
    k(f"v_max3_u32 v{RR}, v{RR}, v{RR+1}, v{RR+2}\nv_max3_u32 v{RR}, v{RR}, v{RR+3}, v{RR+4}")
    k(f"buffer_store_dword v{RR}, v{T}, {sr(dMx,4)}, s{sT} offen")
    k("s_endpgm")
    k.release(m00)

NSCAN = 129
def scan_job(k, pW, pWS, first, vL, sWave, T, endlabel):
    m00 = k.mark()
    sT = k.s(); sO = k.s(); sM7 = k.s(); sA = k.s(); sJob = k.s()
    k(f"s_sub_u32 s{sJob}, s2, {first}\ns_lshl_b32 s{sO}, s{sJob}, 14\nv_lshlrev_b32 v{T}, 4, v0\nv_add_u32 v{T+1}, 8192, v{T}\ns_mov_b32 s{sM7}, 0x7fff7fff")
    k("s_waitcnt lgkmcnt(0)")
    dR = k.srd(pW, W_BYTES); dI = k.srd(pW + 2, W_BYTES); dMx = k.srd(pWS, 640, WS_WMAX)
    X = k.v(16)
    for h in range(2):
        k(f"buffer_load_dwordx4 {vr(X+8*h,4)}, v{T+h}, {sr(dR,4)}, s{sO} offen\nbuffer_load_dwordx4 {vr(X+8*h+4,4)}, v{T+h}, {sr(dI,4)}, s{sO} offen")
    k("s_waitcnt vmcnt(0)")
    for i in range(16): k(f"v_and_b32 v{X+i}, s{sM7}, v{X+i}")
    for n in (8, 4, 2, 1):
        for i in range(n): k(f"v_pk_max_u16 v{X+i}, v{X+i}, v{X+n+i}")
    k(f"v_lshrrev_b32 v{T}, 16, v{X}\nv_and_b32 v{X}, 0xffff, v{X}\nv_max_u32 v{X}, v{X}, v{T}")
    wave_reduce(k, "v_max_u32", [X], [sA])
    k(f"s_lshl_b32 s{sT}, s{sWave}, 2\nv_mov_b32 v{T}, s{sT}\nv_mov_b32 v{X}, s{sA}\nds_write_b32 v{T}, v{X}")
    k("s_waitcnt lgkmcnt(0)\ns_barrier")
    k(f"s_cmp_lg_u32 s{sWave}, 0\ns_cbranch_scc1 {endlabel}")
    k(f"v_mov_b32 v{T}, 0\nds_read_b128 {vr(X,4)}, v{T}\nds_read_b128 {vr(X+4,4)}, v{T} offset:16\ns_lshl_b32 s{sT}, s{sJob}, 2\ns_waitcnt lgkmcnt(0)")
    k(f"v_max3_u32 v{X}, v{X}, v{X+1}, v{X+2}\nv_max3_u32 v{X+4}, v{X+4}, v{X+5}, v{X+6}\nv_max3_u32 v{X}, v{X}, v{X+3}, v{X+7}\nv_max_u32 v{X}, v{X}, v{X+4}")
    k(f"buffer_store_dword v{X}, v{T}, {sr(dMx,4)}, s{sT} offen")
    k("s_endpgm")
    k.release(m00)

K0_NG = 384; K0_NW = 0; K0_NS = 32
def gen_k0(pf=(0, 0)):
    G0 = 10
    G2 = G0; G3 = 256 + G0 + K0_NS
    k = Kern("k0_kernel", G3, 768, 4096)
    pCW = k.s(4); pWS = k.s(2)
    k(f"s_cmp_ge_u32 s2, {G3}\ns_cbranch_scc1 K0_end")
    k.stamp(True)
    k(f"s_load_dwordx4 {sr(pCW,4)}, s[0:1], 64")
    k(f"s_load_dwordx2 {sr(pWS,2)}, s[0:1], 96")
    k.stamp_init2(0, pWS)
    vL, vI, vG, sWave, T = lane_ids(k)
    sT = k.s()
    k(f"s_cmp_ge_u32 s2, 256\ns_cbranch_scc1 K0_side")
    gemv_job(k, pCW, pCW + 2, pWS, vL, sWave, T, "K0_end")
    k("K0_side:")
    k(f"s_cmp_ge_u32 s{sWave}, 8\ns_cbranch_scc1 K0_end\ns_setprio 2\ns_sub_u32 s2, s2, 256")
    k(f"s_cmp_lt_u32 s2, {G0}\ns_cbranch_scc1 K0_tab")
    R = k.v(56); vOff = k.v(); sO = k.s(); sSign = k.s()
    def store(nq, base_off, soff=None, R0=R):
        d = k.srd(pWS, 0x100000, base_off)
        for q in range(nq):
            if q % 4 == 0 and q: k(f"v_add_u32 v{vOff}, 4096, v{vOff}")
            k(f"buffer_store_dwordx4 {vr(R0+4*q,4)}, v{vOff}, {sr(d,4)}, {'s%d' % soff if soff is not None else 0} offen offset:{1024*(q%4)}")
    k("K0_s0:")
    m = k.mark()
    sS0 = k.s()
    k(f"s_sub_u32 s{sS0}, s2, {G2}\ns_lshl_b32 s{sS0}, s{sS0}, 3\ns_add_u32 s{sS0}, s{sS0}, s{sWave}\ns_mov_b32 s{sSign}, 0x80008000")
    k(f"v_lshlrev_b32 v{vOff}, 4, v{vL}")
    tab_a_s0(k, vI, vG, T, R, sS0)
    k(f"s_lshl_b32 s{sO}, s{sS0}, 12\ns_waitcnt lgkmcnt(0)")
    store(4, WS_TAS, sO)
    tab_c_s0(k, vI, vG, T, R + 16, sS0, sSign)
    k(f"s_lshl_b32 s{sO}, s{sS0}, 11")
    store(2, WS_TCS, sO, R + 16)
    k("s_endpgm")
    k.release(m)
    k("K0_tab:")
    k(f"v_lshlrev_b32 v{vOff}, 4, v{vL}\ns_waitcnt lgkmcnt(0)")
    k(f"s_cmp_eq_u32 s2, 0\ns_cbranch_scc1 K0_tw_a\ns_cmp_eq_u32 s2, 1\ns_cbranch_scc1 K0_tw_c")
    k(f"s_cmp_eq_u32 s2, 2\ns_cbranch_scc1 K0_fl")
    k(f"s_cmp_lg_u32 s{sWave}, 0\ns_cbranch_scc1 K0_end")
    for j in range(3, G0 - 1): k(f"s_cmp_eq_u32 s2, {j}\ns_cbranch_scc1 K0_t{j}")
    k(f"s_branch K0_t{G0-1}")
    k("K0_fl:")
    m = k.mark()
    for i in range(4): k(f"v_mov_b32 v{R+i}, 0")
    k("s_endpgm"); k.release(m)
    for part in range(3):
        k(f"K0_t{3+part}:"); q0, n = tab_a_common(k, vI, vG, T, R, part); store(n, WS_TAC + 1024 * q0, None, R + 4 * q0); k("s_endpgm"); k.release(m)
        k(f"K0_t{6+part}:"); q0, n = tab_c_common(k, vI, vG, T, R, part); store(n, WS_TCC + 1024 * q0, None, R + 4 * q0); k("s_endpgm"); k.release(m)
    k("K0_t9:"); store(tab_b_common(k, vI, vG, T, R), WS_TBC); k("s_endpgm"); k.release(m)
    k("K0_tw_a:")
    n = tab_a_wave(k, vI, vG, T, R, sWave, sT); k(f"s_lshl_b32 s{sO}, s{sWave}, 11"); store(n, WS_TAW, sO); k("s_endpgm"); k.release(m)
    k("K0_tw_c:")
    n = tab_c_wave(k, vI, vG, T, R, sWave, sT); k(f"s_mul_i32 s{sO}, s{sWave}, 3072"); store(n, WS_TCW, sO); k.release(m)
    k("K0_end:\ns_endpgm")
    return k


WBYTES = 1024 * 3584 * 2
def pf_mall(k, pP, first, n, sId, sWave, vDum, T):
    if n == 0: return
    m = k.mark(); sO = k.s()
    lab = f"PF{len(k.lines)}_{k.name}"
    nw = (n + 63) // 64
    if nw < 8: k(f"s_cmp_ge_u32 s{sWave}, {nw}\ns_cbranch_scc1 {lab}")
    k(f"v_lshlrev_b32 v{T}, 7, v0\ns_mul_i32 s{sO}, s{sId}, {n*128}\ns_add_u32 s{sO}, s{sO}, {first*128}")
    d = k.srd(pP, min((first + 256 * n) * 128, WBYTES))
    k(f"buffer_load_dword v{vDum}, v{T}, {sr(d,4)}, s{sO} offen")
    if nw < 8: k(f"{lab}:")
    k.release(m)

def pf_uni(k, pP, first, n, sId, sWave, vL, vDum, T, nid=256):
    if n == 0: return
    assert n % 8 == 0
    m = k.mark(); sO = k.s(); sE = k.s()
    d = k.srd(pP, WBYTES)
    k(f"s_lshl_b32 s{sO}, s{sId}, 3\ns_add_u32 s{sO}, s{sO}, s{sWave}\ns_mul_i32 s{sO}, s{sO}, {n*16}\ns_add_u32 s{sO}, s{sO}, {first*128}")
    k(f"s_add_u32 s{sE}, s{sO}, {n*16}\ns_min_u32 s{d+2}, s{sE}, {min((first + nid * n) * 128, WBYTES)}\nv_lshlrev_b32 v{T}, 7, v{vL}")
    k(f"buffer_load_dword v{vDum}, v{T}, {sr(d,4)}, s{sO} offen")
    k.release(m)

C_MV = 146 * 16
def gen_a(pf=(0, 0), st_flags="sc1", nxt="fc_kernel"):
    TAB = 16640; MOD = TAB + 18 * 1024; MX = MOD + 8192
    k = Kern("fa_kernel", 256, 512, MX + 32)
    pX = k.s(2); pWS = k.s(2); pW = k.s(2); pF = k.s(4)
    k(f"s_cmp_ge_u32 s2, 256\ns_cbranch_scc1 A_end")
    k.stamp(True)
    k(f"s_load_dwordx2 {sr(pWS,2)}, s[0:1], 96")
    sMask = k.s(); sT = k.s(); sJ = k.s()
    vL = k.v(); vOff = k.v(); T = k.v(8)
    k(f"v_lshrrev_b32 v{T}, 6, v0\nv_and_b32 v{vL}, 63, v0")
    k(f"v_readfirstlane_b32 s{sJ}, v{T}")
    k(f"v_lshlrev_b32 v{vOff}, 4, v{vL}")
    k(f"s_mov_b32 s{sMask}, 0xffff0000")
    k(f"s_load_dwordx4 {sr(pF,4)}, s[0:1], 8")
    k(f"s_load_dwordx2 {sr(pX,2)}, s[0:1], 0")
    if pf[1]: k(f"s_load_dwordx2 {sr(pW,2)}, s[0:1], 32")
    sRow = k.s(); sQ0 = k.s(); sQ1 = k.s(); sS = k.s(); sL = k.s()
    k(f"v_lshlrev_b32 v{T}, 4, v0")
    k(f"s_lshl_b32 s{sRow}, s{sJ}, 8\ns_add_u32 s{sRow}, s{sRow}, s2\ns_lshl_b32 s{sRow}, s{sRow}, 11")
    k(f"s_lshl_b32 s{sL}, s{sJ}, 10\ns_add_u32 s{sQ0}, s{sL}, {WS_TAC}\ns_add_u32 s{sQ1}, s{sL}, {WS_TAC+8192}")
    k(f"s_lshl_b32 s{sS}, s2, 12\ns_add_u32 s{sS}, s{sS}, s{sL}\ns_add_u32 s{sT}, s{sS}, {WS_TAS-6*1024}")
    k(f"s_cmp_ge_u32 s{sJ}, 6\ns_cselect_b32 s{sQ1}, s{sT}, s{sQ1}\ns_add_u32 s{sS}, s{sS}, {WS_TAS+2048}")
    k("s_waitcnt lgkmcnt(0)")
    k.stamp_init2(1, pWS); k.stamp()
    dX = k.srd(pX, 2048 * 2048); dW = k.srd(pWS, WS_ZA)
    XP = k.v(8); MP = k.v(16); AD = k.v(8)
    k(f"buffer_load_dwordx4 {vr(XP,4)}, v{vOff}, {sr(dX,4)}, s{sRow} offen nt")
    k(f"buffer_load_dwordx4 {vr(XP+4,4)}, v{vOff}, {sr(dX,4)}, s{sRow} offen offset:1024 nt")
    for p in range(4):
        k(f"s_mov_b32 s{sT}, {WS_MODP + p*8192}\nbuffer_load_dwordx4 {vr(MP+4*p,4)}, v{T}, {sr(dW,4)}, s{sT} offen")
    dZ = k.srd(pWS, ZA_BYTES, WS_ZA)
    vR3 = AD; vSt = AD + 4
    sBase = k.s(); sAdd = k.s(); sF = k.s(); sS0 = k.s()
    k(f"s_lshl_b32 s{sBase}, s{sJ}, 11\ns_lshr_b32 s{sT}, s{sJ}, 2\ns_lshl_b32 s{sT}, s{sT}, 6\ns_add_u32 s{sBase}, s{sBase}, s{sT}")
    k(f"s_cmp_ge_u32 s{sJ}, 4\ns_cselect_b32 s{sAdd}, 1.0, 0")
    k(f"s_lshl_b32 s{sF}, s2, 2\ns_and_b32 s{sF}, s{sF}, 48\ns_lshl_b32 s{sS0}, s2, 6")
    vW1 = k.v(); vR1 = k.v(); vMw = k.v(); vW2 = k.v(2)
    k(f"v_add_u32 v{vW1}, s{sBase}, v{vOff}\nv_lshl_add_u32 v{vR1}, v{vL}, 2, s{sBase}")
    k(f"v_and_b32 v{T}, 1, v0\nv_lshlrev_b32 v{T}, 10, v{T}\nv_bfe_u32 v{T+1}, v0, 1, 6\nv_lshl_add_u32 v{T}, v{T+1}, 4, v{T}")
    k(f"s_lshr_b32 s{sT}, s{sJ}, 1\ns_lshl_b32 s{sT}, s{sT}, 11\ns_add_u32 s{sT}, s{sT}, {MOD}\nv_add_u32 v{vMw}, s{sT}, v{T}")
    k(f"v_lshrrev_b32 v{T}, 4, v{vL}\nv_and_b32 v{T+1}, 7, v{vL}\nv_xor_b32 v{T}, v{T}, v{T+1}\nv_and_b32 v{T+1}, 15, v{vL}\nv_lshlrev_b32 v{T+1}, 3, v{T+1}\nv_add_u32 v{T}, v{T}, v{T+1}")
    k(f"v_lshl_add_u32 v{vW2}, v{T}, 4, s{sBase}\nv_xor_b32 v{T}, 4, v{T}\nv_lshl_add_u32 v{vW2+1}, v{T}, 4, s{sBase}")
    k(f"s_cmp_ge_u32 s{sJ}, 2\ns_cbranch_scc1 A_no3")
    k(f"s_add_u32 m0, s{sL}, {TAB+16384}\nbuffer_load_dwordx4 v{vOff}, {sr(dW,4)}, s{sS} offen lds")
    k("A_no3:")
    k(f"s_add_u32 m0, s{sL}, {TAB}\nbuffer_load_dwordx4 v{vOff}, {sr(dW,4)}, s{sQ0} offen lds")
    k(f"s_add_u32 m0, s{sL}, {TAB+8192}\nbuffer_load_dwordx4 v{vOff}, {sr(dW,4)}, s{sQ1} offen lds")
    k(f"s_lshl_b32 s{sT}, s{sJ}, 11\ns_add_u32 s{sT}, s{sT}, {WS_TAW}")
    k(f"buffer_load_dwordx4 {vr(AD,4)}, v{vOff}, {sr(dW,4)}, s{sT} offen\nbuffer_load_dwordx4 {vr(AD+4,4)}, v{vOff}, {sr(dW,4)}, s{sT} offen offset:1024")
    sRo = k.s(8); sDs = k.s(2); vWc = k.v(2); vWd = k.v(2)
    mm = k.mark()
    sJb = k.s(); sUn = k.s(); sBl = k.s(); sRh = k.s(); sWh = k.s(); sKg = k.s(); sSt = k.s(); sA = k.s()
    for n in range(2):
        k(f"s_lshl_b32 s{sJb}, s2, 3\ns_add_u32 s{sJb}, s{sJb}, s{sJ}")
        if n == 0:
            k(f"s_lshr_b32 s{sUn}, s{sJb}, 3\ns_and_b32 s{sBl}, s{sJb}, 7\ns_lshr_b32 s{sRh}, s{sUn}, 7\ns_add_u32 s{sRh}, s{sRh}, 1")
        else:
            k(f"s_lshr_b32 s{sUn}, s{sJb}, 3\ns_and_b32 s{sBl}, s{sJb}, 7\ns_lshr_b32 s{sA}, s{sJb}, 2\ns_and_b32 s{sT}, s{sJb}, 3\ns_lshr_b32 s{sRh}, s{sJb}, 7\ns_and_b32 s{sRh}, s{sRh}, 4")
            k(f"s_cmp_lt_u32 s{sJb}, 1024\ns_cselect_b32 s{sUn}, s{sUn}, s{sA}\ns_cselect_b32 s{sBl}, s{sBl}, s{sT}\ns_cselect_b32 s{sRh}, 3, s{sRh}")
        k(f"s_bfe_u32 s{sWh}, s{sUn}, 0x10006\ns_and_b32 s{sKg}, s{sUn}, 63")
        k(f"s_lshr_b32 s{sA}, s{sKg}, 2\ns_lshl_b32 s{sA}, s{sA}, 3\ns_add_u32 s{sA}, s{sA}, s{sRh}\ns_and_b32 s{sT}, s{sKg}, 3\ns_lshl_b32 s{sT}, s{sT}, 9\ns_add_u32 s{sA}, s{sA}, s{sT}")
        k(f"s_sub_u32 s{sT}, 2048, s{sA}\ns_cmp_eq_u32 s{sWh}, 1\ns_cselect_b32 s{sA}, s{sT}, s{sA}\ns_movk_i32 s{sSt}, 128\ns_cselect_b32 s{sSt}, -128, s{sSt}\ns_cselect_b64 vcc, -1, 0")
        k(f"s_lshl_b32 s{sT}, s{sBl}, 7\nv_lshl_add_u32 v{T}, v{vL}, 1, s{sT}\nv_sub_u32 v{T+1}, 1024, v{T}\nv_cndmask_b32 v{vWc+n}, v{T}, v{T+1}, vcc")
        for v in range(4):
            k(f"s_and_b32 s{sT}, s{sA}, 2047\ns_mul_i32 s{sRo+4*n+v}, s{sT}, 1026")
            if v < 3: k(f"s_add_u32 s{sA}, s{sA}, s{sSt}")
        k(f"s_lshl_b32 s{sA}, s{sRh}, 6\ns_sub_i32 s{sA}, s{sA}, 31\ns_max_i32 s{sA}, s{sA}, 0\ns_lshl_b32 s{sT}, s{sBl}, 3\ns_add_u32 s{sA}, s{sA}, s{sT}\ns_mul_i32 s{sA}, s{sA}, {ZA_PITCH}")
        k(f"s_and_b32 s{sT}, s{sUn}, 127\ns_lshl_b32 s{sT}, s{sT}, 7\ns_add_u32 s{sDs+n}, s{sA}, s{sT}\ns_bfe_u32 s{sT}, s{sKg}, 0x30002")
        k(f"v_and_b32 v{T}, 7, v{vL}\nv_xor_b32 v{T}, s{sT}, v{T}\nv_lshrrev_b32 v{T+1}, 3, v{vL}\nv_mul_u32_u24 v{T+1}, {ZA_PITCH}, v{T+1}\nv_lshl_add_u32 v{vWd+n}, v{T}, 4, v{T+1}")
    k.release(mm)
    dR = k.srd(pF, W_BYTES); dI = k.srd(pF + 2, W_BYTES); dB = k.srd(pWS, ZA_BYTES, WS_WB)
    WV = k.v(16); SP = k.v(4)
    k(f"v_and_b32 v{T}, 7, v{vL}\nv_lshrrev_b32 v{T+1}, 3, v{vL}\nv_mul_u32_u24 v{SP+2}, 1026, v{T}\nv_lshl_add_u32 v{SP+2}, v{T+1}, 9, v{SP+2}")
    k(f"v_lshlrev_b32 v{SP+3}, 2, v{T}\nv_lshl_add_u32 v{SP+3}, v{T+1}, 13, v{SP+3}")
    k(f"v_subrev_u32 v{T}, 448, v0\nv_cmp_gt_u32 vcc, 24, v{T}\nv_mov_b32 v{T}, {OOB}\nv_cndmask_b32 v{SP+2}, v{T}, v{SP+2}, vcc\nv_cndmask_b32 v{SP+3}, v{T}, v{SP+3}, vcc")
    X = k.v(16); RC = k.v(2); vE = k.v(2); vMax = k.v()
    sP = k.s(2); sSum = k.s(2); sMax = k.s()
    k.stamp()
    k("s_waitcnt vmcnt(8)")
    unpack_bf16(k, X, XP, 8, sMask)
    def modfin(k):
        k("s_waitcnt vmcnt(4)")
        for i in (0, 2): k(f"v_pk_add_f32 {P2(MP+i)}, {P2(MP+i)}, {P2(MP+4+i)}\nv_pk_add_f32 {P2(MP+8+i)}, {P2(MP+8+i)}, {P2(MP+12+i)}")
        for i in (0, 2): k(f"v_pk_add_f32 {P2(MP+i)}, {P2(MP+i)}, {P2(MP+8+i)}")
        k(f"v_cvt_pk_bf16_f32 v{MP+4}, v{MP}, v{MP+1}\nv_cvt_pk_bf16_f32 v{MP+5}, v{MP+2}, v{MP+3}")
        unpack_bf16(k, MP, MP + 4, 2, sMask)
        for i in range(4): k(f"v_add_f32 v{MP+i}, s{sAdd}, v{MP+i}")
        k(f"v_cvt_pk_bf16_f32 v{MP+4}, v{MP}, v{MP+1}\nv_cvt_pk_bf16_f32 v{MP+5}, v{MP+2}, v{MP+3}")
        unpack_bf16(k, MP, MP + 4, 2, sMask)
        k(f"ds_write_b128 v{vMw}, {vr(MP,4)}")
        k(f"v_max3_f32 v{vMax}, abs(v{MP}), abs(v{MP+1}), abs(v{MP+2})\nv_max_f32 v{vMax}, abs(v{MP+3}), v{vMax}")
    n0 = len(k.lines)
    ln_pk(k, X, T, RC, sP, sSum, cap(modfin), ("v_max_f32", vMax, sMax))
    idx = max(i for i in range(n0, len(k.lines)) if k.lines[i].startswith("v_readlane_b32")) + 1
    k.lines[idx:idx] = [f"s_lshl_b32 s{sT}, s{sJ}, 2", f"s_add_u32 s{sT}, s{sT}, {MX}", f"v_mov_b32 v{T+5}, s{sT}", f"v_mov_b32 v{vMax}, s{sMax}", f"ds_write_b32 v{T+5}, v{vMax}"]
    k.stamp()
    k("s_waitcnt vmcnt(0) lgkmcnt(0)\ns_barrier")
    k.stamp()
    SA = k.v(16); CA = k.v(16); FA = k.v(16); FB = k.v(16)
    assert CA == SA + 16
    k(f"v_mov_b32 v{T}, {MX}\nds_read_b128 {vr(MP,4)}, v{T}\nds_read_b128 {vr(MP+4,4)}, v{T} offset:16")
    for q in range(2):
        for h in range(2):
            k(f"ds_read_b128 {vr(CA+8*q+4*h,4)}, v{vOff} offset:{MOD+4096+2048*q+1024*h}")
            k(f"ds_read_b128 {vr(SA+8*q+4*h,4)}, v{vOff} offset:{MOD+2048*q+1024*h}")
    def fq(ct, ks, ri): return TAB + 1024 * ((ct * 2 + ks) * 2 + ri)
    for ct in range(2):
        for ri in range(2): k(f"ds_read_b128 {vr(FA+(ct*2+ri)*4,4)}, v{vOff} offset:{fq(ct,0,ri)}")
    def wloads(n):
        for v in range(4):
            k(f"buffer_load_ushort v{WV+8*n+v}, v{vWc+n}, {sr(dR,4)}, s{sRo+4*n+v} offen nt")
            k(f"buffer_load_ushort v{WV+8*n+4+v}, v{vWc+n}, {sr(dI,4)}, s{sRo+4*n+v} offen nt")
    wloads(0)
    k("s_waitcnt lgkmcnt(12)")
    k(f"v_max3_f32 v{MP}, v{MP}, v{MP+1}, v{MP+2}\nv_max3_f32 v{MP+4}, v{MP+4}, v{MP+5}, v{MP+6}\nv_max3_f32 v{MP}, v{MP}, v{MP+3}, v{MP+7}\nv_max_f32 v{MP}, v{MP}, v{MP+4}")
    k(f"v_frexp_exp_i32_f32 v{vE}, v{MP}\nv_sub_u32 v{vE}, 3, v{vE}\nv_min_i32 v{vE}, 60, v{vE}\nv_max_i32 v{vE}, {(-60)&0xffffffff}, v{vE}\nv_ldexp_f32 v{RC}, 1.0, v{vE}")
    Z = XP
    for hq in range(4):
        k(f"s_waitcnt lgkmcnt({10-2*hq + (1 if hq >= 2 else 0)})")
        for i in (2 * hq, 2 * hq + 1): k(f"v_pk_fma_f32 {P2(X+2*i)}, {P2(X+2*i)}, {P2(CA+2*i)}, {P2(SA+2*i)}")
        for i in (2 * hq, 2 * hq + 1): k(f"v_pk_mul_f32 {P2(X+2*i)}, {P2(X+2*i)}, {P2(RC)} op_sel_hi:[1,0]")
        for i in (2 * hq, 2 * hq + 1): k(f"v_cvt_pk_f16_f32 v{Z+i}, v{X+2*i}, v{X+2*i+1}")
        if hq == 1: k(f"ds_write_b128 v{vW1}, {vr(Z,4)}")
    k(f"ds_write_b128 v{vW1}, {vr(Z+4,4)} offset:1024")
    k.stamp()
    OP = MP
    for h in range(4): k(f"ds_read2st64_b32 {vr(OP+2*h,2)}, v{vR1} offset0:{2*h} offset1:{2*h+1}")
    for ct in range(2):
        for ri in range(2): k(f"ds_read_b128 {vr(FB+(ct*2+ri)*4,4)}, v{vOff} offset:{fq(ct,1,ri)}")
    TW = SA; F2 = MP + 8
    for q in range(4): k(f"ds_read_b128 {vr(TW+4*q,4)}, v{vOff} offset:{TAB+8192+1024*q}")
    for q in range(2): k(f"ds_read_b128 {vr(F2+4*q,4)}, v{vOff} offset:{TAB+12288+1024*q}")
    wloads(1)
    D1 = X
    k("s_waitcnt lgkmcnt(12)")
    for o in range(4): k(f"{MF} {vr(D1+o*4,4)}, {vr(OP,4)}, {vr(FA+o*4,4)}, 0")
    k("s_waitcnt lgkmcnt(6)")
    for o in range(4): k(f"{MF} {vr(D1+o*4,4)}, {vr(OP+4,4)}, {vr(FB+o*4,4)}, {vr(D1+o*4,4)}")
    F3 = FA
    for q in range(4): k(f"ds_read_b128 {vr(F3+4*q,4)}, v{vOff} offset:{TAB+14336+1024*q}")
    k(f"s_mul_i32 s{sT}, s2, 8208")
    k(f"buffer_load_ushort v{SP}, v{SP+2}, {sr(dR,4)}, s{sT} offen\nbuffer_load_ushort v{SP+1}, v{SP+2}, {sr(dI,4)}, s{sT} offen")
    for q in range(4): k(f"v_xor_b32 v{vSt+q}, s{sF}, v{vSt+q}")
    k("s_waitcnt lgkmcnt(4)")
    D2 = CA
    for ct in range(2):
        tw_block(k, D1 + ct * 8, TW + 4 * ct, TW + 8 + 4 * ct, False, T, OP + 4 * ct)
        k(f"{MF} {vr(D2+ct*8,4)}, {vr(OP+4*ct,4)}, {vr(F2,4)}, 0")
        k(f"{MF} {vr(D2+ct*8+4,4)}, {vr(OP+4*ct,4)}, {vr(F2+4,4)}, 0")
    pf_uni(k, pW, pf[0], pf[1], 2, sJ, vL, T + 6, T + 4)
    code_pf_w(k, "fb_kernel", nxt, sJ, 6, IDX_STD, vL, T + 4, T + 7)
    for ct in range(2):
        for v in range(4): k(f"v_cvt_pk_f16_f32 v{Z+4*ct+v}, v{D2+ct*8+v}, v{D2+ct*8+4+v}")
        k(f"ds_write_b128 v{vW2+ct}, {vr(Z+4*ct,4)}")
    k.stamp()
    k("s_waitcnt lgkmcnt(0)\ns_barrier")
    k.stamp()
    O3 = X
    for q in range(2):
        for x in range(2):
            d = O3 + (q * 2 + x) * 4
            k(f"ds_read2st64_b32 {vr(d,2)}, v{vR3+2*q+x} offset0:0 offset1:8")
            k(f"ds_read2st64_b32 {vr(d+2,2)}, v{vR3+2*q+x} offset0:16 offset1:24")
    D3 = SA
    for q in range(2):
        for x in range(2):
            k(f"s_waitcnt lgkmcnt({6-2*(2*q+x)})")
            for ri in range(2):
                d = D3 + ((q * 2 + x) * 2 + ri) * 4
                k(f"{MF} {vr(d,4)}, {vr(O3+(q*2+x)*4,4)}, {vr(F3+(x*2+ri)*4,4)}, 0")
    P = MP
    for q in range(2):
        for v in range(4):
            for x in range(2):
                d = D3 + ((q * 2 + x) * 2) * 4 + v
                k(f"v_cvt_pk_f16_f32 v{P+8*q+2*v+x}, v{d}, v{d+4}")
        for e in range(4): k(f"v_permlane32_swap_b32 v{P+8*q+e}, v{P+8*q+4+e}")
        for ins in range(2):
            k(f"buffer_store_dwordx4 {vr(P+8*q+4*ins,4)}, v{vSt+2*q+ins}, {sr(dZ,4)}, s{sS0} offen {st_flags}")
    k(f"s_waitcnt vmcnt({5 if pf[1] else 4})")
    for n in range(2):
        for v in range(4): k(f"v_lshl_or_b32 v{WV+8*n+v}, v{WV+8*n+4+v}, 16, v{WV+8*n+v}")
        k(f"buffer_store_dwordx4 {vr(WV+8*n,4)}, v{vWd+n}, {sr(dB,4)}, s{sDs+n} offen sc1")
    k(f"v_lshl_or_b32 v{SP}, v{SP+1}, 16, v{SP}\ns_lshl_b32 s{sT}, s2, 5\ns_add_u32 s{sT}, s{sT}, {WS_SPC}")
    k(f"buffer_store_dword v{SP}, v{SP+3}, {sr(dW,4)}, s{sT} offen")
    sM7 = sAdd
    k(f"s_mov_b32 s{sM7}, 0x7fff7fff\nv_and_b32 v{SP+1}, s{sM7}, v{SP}")
    for n in range(2):
        for v in range(4): k(f"v_and_b32 v{WV+8*n+4+v}, s{sM7}, v{WV+8*n+v}\nv_pk_max_u16 v{SP+1}, v{SP+1}, v{WV+8*n+4+v}")
    k(f"v_lshrrev_b32 v{T}, 16, v{SP+1}\nv_and_b32 v{SP+1}, 0xffff, v{SP+1}\nv_max_u32 v{SP+1}, v{SP+1}, v{T}")
    wave_reduce(k, "v_max_u32", [SP + 1], [sMax])
    k(f"s_lshl_b32 s{sT}, s{sJ}, 2\ns_add_u32 s{sT}, s{sT}, {MX}\nv_mov_b32 v{T}, s{sT}\nv_mov_b32 v{SP+1}, s{sMax}\nds_write_b32 v{T}, v{SP+1}")
    k("s_waitcnt lgkmcnt(0)\ns_barrier")
    k(f"s_cmp_lg_u32 s{sJ}, 0\ns_cbranch_scc1 A_noscal")
    k(f"ds_read_b128 {vr(X,4)}, v{T}\nds_read_b128 {vr(X+4,4)}, v{T} offset:16\ns_lshl_b32 s{sT}, s2, 2\ns_add_u32 s{sT}, s{sT}, {WS_WMAX}\nv_mov_b32 v{T}, 0\ns_waitcnt lgkmcnt(0)")
    k(f"v_max3_u32 v{X}, v{X}, v{X+1}, v{X+2}\nv_max3_u32 v{X+4}, v{X+4}, v{X+5}, v{X+6}\nv_max3_u32 v{X}, v{X}, v{X+3}, v{X+7}\nv_max_u32 v{X}, v{X}, v{X+4}")
    k(f"buffer_store_dword v{X}, v{T}, {sr(dW,4)}, s{sT} offen")
    k(f"s_cmp_lg_u32 s2, 0\ns_cbranch_scc1 A_noscal")
    k(f"v_mov_b32 v{T}, {WS_SCAL}\nbuffer_store_dword v{vE}, v{T}, {sr(dW,4)}, 0 offen")
    k("A_noscal:")
    k.stamp()
    if k.prof: k("s_waitcnt vmcnt(0)")
    k.stamp_flush()
    k("A_end:\ns_endpgm")
    return k

def fin_job(k, pWS, sJ, vL, T, endlabel):
    MP = k.v(64); vMw = k.v(); vOff = k.v(); sL = k.s(); sAdd = k.s(); sT = k.s(); sMask = k.s()
    k(f"s_lshl_b32 s{sL}, s{sJ}, 11\nv_lshlrev_b32 v{vOff}, 5, v{vL}\ns_mov_b32 s{sMask}, 0xffff0000\ns_waitcnt lgkmcnt(0)")
    dW = k.srd(pWS, WS_ZA)
    for p in range(8):
        k(f"s_add_u32 s{sT}, s{sL}, {WS_MODQ + p*16384}")
        for h in range(2): k(f"buffer_load_dwordx4 {vr(MP+8*p+4*h,4)}, v{vOff}, {sr(dW,4)}, s{sT} offen offset:{16*h}")
    k(f"v_and_b32 v{T}, 3, v{vL}\nv_lshlrev_b32 v{T}, 8, v{T}\nv_lshrrev_b32 v{T+1}, 2, v{vL}\nv_lshl_add_u32 v{vMw}, v{T+1}, 4, v{T}")
    k(f"s_lshr_b32 s{sT}, s{sJ}, 1\ns_cmp_eq_u32 s{sT}, 2\ns_cselect_b32 s{sAdd}, 1.0, 0")
    k("s_waitcnt vmcnt(0)")
    for n in (32, 16, 8):
        for i in range(0, n, 2): k(f"v_pk_add_f32 {P2(MP+i)}, {P2(MP+i)}, {P2(MP+n+i)}")
    for i in range(4): k(f"v_cvt_pk_bf16_f32 v{MP+8+i}, v{MP+2*i}, v{MP+2*i+1}")
    k(f"s_cmp_ge_u32 s{sJ}, 6\ns_cbranch_scc1 F_gb")
    unpack_bf16(k, MP, MP + 8, 4, sMask)
    for i in range(8): k(f"v_add_f32 v{MP+i}, s{sAdd}, v{MP+i}")
    for i in range(4): k(f"v_cvt_pk_bf16_f32 v{MP+8+i}, v{MP+2*i}, v{MP+2*i+1}")
    for i in range(4): k(f"v_lshlrev_b32 v{MP+i}, 16, v{MP+8+i}\nv_and_b32 v{MP+4+i}, s{sMask}, v{MP+8+i}")
    k(f"s_add_u32 s{sT}, s{sL}, {WS_MODC}")
    k(f"buffer_store_dwordx4 {vr(MP,4)}, v{vMw}, {sr(dW,4)}, s{sT} offen\nbuffer_store_dwordx4 {vr(MP+4,4)}, v{vMw}, {sr(dW,4)}, s{sT} offen offset:1024")
    k("s_endpgm\nF_gb:")
    k(f"s_lshl_b32 s{sT}, s{sJ}, 10\ns_add_u32 s{sT}, s{sT}, {WS_GB-6144}\nv_lshlrev_b32 v{T}, 4, v{vL}")
    k(f"buffer_store_dwordx4 {vr(MP+8,4)}, v{T}, {sr(dW,4)}, s{sT} offen")

def gen_b(pf=(0, 0), st_flags="sc1", nxt=("fc_kernel", "g1_kernel")):
    TAB = 16384; OUT = 24576; WL = 40960
    NM = 258
    k = Kern("fb_kernel", NM + 8, 512, WL + 16384)
    pW1 = k.s(2); pWS = k.s(2)
    sSlot = k.s(); sT = k.s(); sRho = k.s(); sC = k.s()
    k.stamp(True)
    k(f"s_load_dwordx2 {sr(pWS,2)}, s[0:1], 96")
    if pf[1]: k(f"s_load_dwordx2 {sr(pW1,2)}, s[0:1], 32")
    k(f"s_cmp_ge_u32 s2, {NM+8}\ns_cbranch_scc1 B_end")
    vL, vI, vG, sU, T = lane_ids(k)
    k(f"s_cmp_ge_u32 s2, {NM}\ns_cbranch_scc1 B_side")
    m0 = k.mark()
    k(f"s_and_b32 s{sT}, s2, 7\ns_add_u32 s{sT}, s{sT}, 1\ns_lshr_b32 s{sRho}, s{sT}, 1\ns_and_b32 s{sC}, s{sT}, 1\ns_lshl_b32 s{sC}, s{sC}, 5")
    k(f"s_cmp_eq_u32 s{sRho}, 0\ns_cselect_b32 s{sC}, 0, s{sC}\ns_lshr_b32 s{sT}, s2, 3\ns_add_u32 s{sC}, s{sC}, s{sT}")
    k(f"s_cmp_eq_u32 s2, 257\ns_cselect_b32 s{sRho}, 4, s{sRho}")
    k(f"s_lshl_b32 s{sSlot}, s{sRho}, 6\ns_sub_i32 s{sSlot}, s{sSlot}, 31\ns_max_i32 s{sSlot}, s{sSlot}, 0\ns_add_u32 s{sSlot}, s{sSlot}, s{sC}")
    vOff = k.v()
    k(f"v_lshlrev_b32 v{vOff}, 4, v{vL}")
    sO = k.s(); sL = k.s()
    k(f"s_mul_i32 s{sO}, s{sSlot}, {ZA_PITCH}\ns_lshl_b32 s{sL}, s{sU}, 11\ns_add_u32 s{sO}, s{sO}, s{sL}\ns_mov_b32 m0, s{sL}")
    k("s_waitcnt lgkmcnt(0)")
    k.stamp_init2(2, pWS); k.stamp()
    dZ = k.srd(pWS, ZA_BYTES, WS_ZA)
    k(f"buffer_load_dwordx4 v{vOff}, {sr(dZ,4)}, s{sO} offen lds")
    k(f"buffer_load_dwordx4 v{vOff}, {sr(dZ,4)}, s{sO} offen offset:1024 lds")
    dW = k.srd(pWS, WS_ZA)
    k(f"s_lshl_b32 s{sT}, s{sU}, 10\ns_add_u32 m0, s{sT}, {TAB}\ns_add_u32 s{sT}, s{sT}, {WS_TBC}")
    k(f"buffer_load_dwordx4 v{vOff}, {sr(dW,4)}, s{sT} offen lds")
    WP = k.v(8); WE = k.v(8); WM = k.v(4); vWrd = k.v(); sSp = k.s()
    k(f"s_mov_b32 s{sT}, {WS_WMAX}\nbuffer_load_dwordx4 {vr(WM,4)}, v{vOff}, {sr(dW,4)}, s{sT} offen")
    dB = k.srd(pWS, ZA_BYTES, WS_WB)
    k(f"s_add_u32 m0, s{sL}, {WL}\ns_cmp_ge_u32 s2, 256\ns_cselect_b32 s{dB+2}, 0, s{dB+2}")
    k(f"buffer_load_dwordx4 v{vOff}, {sr(dB,4)}, s{sO} offen lds\nbuffer_load_dwordx4 v{vOff}, {sr(dB,4)}, s{sO} offen offset:1024 lds")
    k(f"s_cselect_b32 s{sT}, 0, s{sC}\ns_cselect_b64 vcc, -1, 0\ns_or_b32 s{sSp}, s{sT}, s{sU}")
    k(f"s_cmp_lg_u32 s{sSp}, 0\ns_cbranch_scc1 B_nox")
    sE1 = k.s(); sE2o = k.s()
    k(f"s_lshl_b32 s{sE1}, s{sC}, 8\ns_sub_u32 s{sE2o}, {WS_SPC+16384}, s{sE1}\ns_add_u32 s{sE1}, s{sE1}, {WS_SPC}")
    for v in range(4):
        k(f"v_lshl_add_u32 v{T}, v{vG}, 2, {v}\nv_lshl_add_u32 v{T}, v{T}, 4, v{vI}\nv_lshl_add_u32 v{T}, v{T}, 3, s{sRho}")
        k(f"v_sub_u32 v{T+1}, 2048, v{T}\nv_and_b32 v{T+1}, 2047, v{T+1}")
        k(f"v_cndmask_b32 v{T+2}, v{T+1}, v{T}, vcc\nv_cndmask_b32 v{T+3}, v{T}, v{T+1}, vcc\nv_lshlrev_b32 v{T+2}, 2, v{T+2}\nv_lshlrev_b32 v{T+3}, 2, v{T+3}")
        k(f"buffer_load_dword v{WE+v}, v{T+2}, {sr(dW,4)}, s{sE1} offen\nbuffer_load_dword v{WE+4+v}, v{T+3}, {sr(dW,4)}, s{sE2o} offen")
    k("B_nox:")
    k(f"v_and_b32 v{T}, 7, v{vI}\nv_xor_b32 v{T}, s{sU}, v{T}\nv_lshlrev_b32 v{T}, 4, v{T}\nv_lshl_add_u32 v{T}, v{vG}, 7, v{T}\nv_lshl_add_u32 v{vWrd}, v{vI}, 9, v{T}")
    dO = k.srd(pWS, ZB_BYTES, WS_ZB)
    k(f"s_cmp_lt_u32 s2, 256\ns_cbranch_scc1 B_reg\ns_setprio 3\ns_cmp_lg_u32 s{sU}, 0\ns_cbranch_scc1 B_idle\nB_reg:")
    vCp = k.v(); vSp = k.v()
    k(f"s_lshl_b32 s{sT}, s{sC}, 3\ns_add_u32 s{sT}, s{sT}, s{sU}\ns_add_u32 s{sT}, s{sT}, 256\nv_mov_b32 v{T}, s{sT}")
    sincos(k, vCp, vSp, T, 2048, T + 1)
    k(f"v_mul_f32 v{vCp}, {fbits(0.25)}, v{vCp}\nv_mul_f32 v{vSp}, {fbits(0.25)}, v{vSp}")
    G = k.v(32)
    def g1(ks, o): return G + (ks * 4 + o) * 4
    for e2 in range(2):
        k(f"v_lshl_add_u32 v{T}, v{vG}, 1, {e2}\nv_mul_u32_u24 v{T}, v{T}, v{vI}")
        sincos(k, T + 1, T + 2, T, 16, T + 3)
        k(f"v_mul_f32 v{T+4}, v{vCp}, v{T+1}\nv_mul_f32 v{T+5}, v{vCp}, v{T+2}")
        k(f"v_mul_f32 v{T+6}, v{vSp}, v{T+1}\nv_mul_f32 v{T+7}, v{vSp}, v{T+2}")
        p1 = f"v{T+4}, v{T+5}"; p2 = f"-v{T+5}, v{T+4}"; p3 = f"v{T+7}, -v{T+6}"; p4 = f"v{T+6}, v{T+7}"
        for o, (pa, pb) in enumerate(((p1, p3), (p2, p4), (p3, p1), (p4, p2))):
            k(f"v_cvt_pk_f16_f32 v{g1(0,o)+2*e2}, {pa}\nv_cvt_pk_f16_f32 v{g1(0,o)+2*e2+1}, {pb}")
    sSign = k.s()
    k(f"s_mov_b32 s{sSign}, 0x80008000")
    k(f"v_and_b32 v{T}, 1, v{vI}\nv_mul_lo_u32 v{T}, v{T}, s{sSign}")
    for x in range(16): k(f"v_xor_b32 v{G+16+x}, v{T}, v{G+x}")
    H = k.v(16)
    for v in range(4):
        k(f"v_lshl_add_u32 v{T}, v{vG}, 2, {v}\nv_mul_u32_u24 v{T}, v{T}, v{vI}")
        sincos(k, T + 1, T + 2, T, 16, T + 3)
        k(f"v_mul_f32 v{T+4}, v{vCp}, v{T+1}\nv_mul_f32 v{T+5}, v{vCp}, v{T+2}\nv_mul_f32 v{T+6}, v{vSp}, v{T+1}\nv_mul_f32 v{T+7}, v{vSp}, v{T+2}")
        k(f"v_cvt_pk_f16_f32 v{H+v}, v{T+4}, -v{T+5}\nv_cvt_pk_f16_f32 v{H+4+v}, v{T+5}, v{T+4}")
        k(f"v_cvt_pk_f16_f32 v{H+8+v}, v{T+7}, v{T+6}\nv_cvt_pk_f16_f32 v{H+12+v}, -v{T+6}, v{T+7}")
    vRd = vCp; vWr = vSp
    k(f"s_lshr_b32 s{sT}, s{sU}, 1")
    k(f"v_lshrrev_b32 v{T}, 2, v{vI}\nv_xor_b32 v{T}, s{sT}, v{T}\nv_lshlrev_b32 v{T}, 4, v{T}\nv_lshl_add_u32 v{T}, v{vI}, 6, v{T}")
    k(f"s_and_b32 s{sT}, s{sU}, 1\ns_lshl_b32 s{sT}, s{sT}, 3\nv_add_u32 v{T}, s{sT}, v{T}")
    k(f"v_lshl_add_u32 v{vRd}, v{vG}, 11, v{T}\nv_lshl_add_u32 v{vWr}, v{vG}, 12, v{T}")
    vOr = vI; vOs = vG
    k(f"v_lshlrev_b32 v{vOr}, 4, v0")
    k(f"v_lshrrev_b32 v{T}, 2, v0\nv_mul_u32_u24 v{T}, {ZB_PITCH}, v{T}")
    k(f"v_lshrrev_b32 v{T+1}, 4, v0\nv_xor_b32 v{T+1}, v{T+1}, v0\nv_and_b32 v{T+1}, 3, v{T+1}\nv_lshl_add_u32 v{vOs}, v{T+1}, 4, v{T}")
    sMask = k.s(); sScale = k.s(2); sE2 = k.s()
    k(f"s_mov_b32 s{sMask}, 0xffff0000")
    k.stamp()
    k("s_waitcnt vmcnt(0)\ns_barrier")
    k.stamp()
    OP = k.v(8); D = k.v(16); TB = k.v(16)
    for ks in range(2):
        for e2 in range(2): k(f"ds_read_b64 {vr(OP+4*ks+2*e2,2)}, v{vRd} offset:{(8*ks+e2)*1024}")
    for q in range(4): k(f"ds_read_b128 {vr(TB+4*q,4)}, v{vOff} offset:{TAB+1024*q}")
    TWC = TB; TWS = TB + 4; FR = TB + 8; FI = TB + 12; CR = TB + 8; CI = TB + 12
    k(f"ds_read_b128 {vr(WP,4)}, v{vWrd} offset:{WL}\nds_read_b128 {vr(WP+4,4)}, v{vWrd} offset:{WL+8192}")
    code_pf_w(k, nxt[0], nxt[1], sU, 7, IDX_STD, vL, T + 4, T + 7)
    page_touch(k, PT_B, sU, 6, vL, T + 4, T + 7)
    pf_uni(k, pW1, pf[0], pf[1], 2, sU, vL, T + 6, T + 4)
    k(f"v_max3_u32 v{WM}, v{WM}, v{WM+1}, v{WM+2}\nv_max_u32 v{WM}, v{WM}, v{WM+3}")
    red = cap(lambda t: wave_reduce(t, "v_max_u32", [WM], [sE2]))
    for l in red[:3]: k(l)
    k("s_waitcnt lgkmcnt(8)")
    for o in range(4):
        k(f"{MF} {vr(D+4*o,4)}, {vr(OP,4)}, {vr(g1(0,o),4)}, 0")
        if o & 1: k(red[3 + (o >> 1)])
    k("s_waitcnt lgkmcnt(6)")
    for o in range(4):
        k(f"{MF} {vr(D+4*o,4)}, {vr(OP+4,4)}, {vr(g1(1,o),4)}, {vr(D+4*o,4)}")
        if o & 1: k(red[5 + (o >> 1)])
    k(f"s_lshr_b32 s{sE2}, s{sE2}, 7\ns_sub_i32 s{sE2}, 125, s{sE2}\ns_min_i32 s{sE2}, s{sE2}, 60\ns_max_i32 s{sE2}, s{sE2}, -60")
    k(f"s_add_u32 s{sScale}, s{sE2}, 127\ns_lshl_b32 s{sScale}, s{sScale}, 23")
    k("s_waitcnt lgkmcnt(0)")
    for w in range(2):
        tw_block(k, D + 8 * w, TWC, TWS, False, T, OP + 4 * w)
        k(f"{MF} {vr(D+8*w,4)}, {vr(FR,4)}, {vr(OP+4*w,4)}, 0")
        k(f"{MF} {vr(D+8*w+4,4)}, {vr(FI,4)}, {vr(OP+4*w,4)}, 0")
    k(f"ds_read_b128 {vr(CR,4)}, v{vOff} offset:{TAB+4096}\nds_read_b128 {vr(CI,4)}, v{vOff} offset:{TAB+5120}")
    Wf = G
    k.stamp()
    def unpl(dst, src):
        for w in range(2):
            for v in range(4): k(f"v_lshlrev_b32 v{dst+8*w+v}, 16, v{src+4*w+v}\nv_and_b32 v{dst+8*w+4+v}, s{sMask}, v{src+4*w+v}")
    unpl(Wf, WP)
    k(f"s_cmp_lg_u32 s{sSp}, 0\ns_cbranch_scc1 B_nospec")
    unpl(G + 16, WE)
    k(f"s_cmp_ge_u32 s2, 256\ns_cselect_b32 s{sT}, 1.0, -1.0\ns_cselect_b32 s{sE1}, 0, {1<<23}\ns_sub_u32 s{sScale}, s{sScale}, s{sE1}")
    for i in (0, 1, 2, 3, 8, 9, 10, 11): k(f"v_add_f32 v{Wf+i}, v{Wf+i}, v{G+16+i}\nv_fmac_f32 v{Wf+i+4}, s{sT}, v{G+16+i+4}")
    k(f"v_mov_b32 v{T+4}, {WS_SCAL+4}\nv_mov_b32 v{T+5}, s{sE2}\nbuffer_store_dword v{T+5}, v{T+4}, {sr(dW,4)}, 0 offen")
    k("B_nospec:")
    for i in range(8): k(f"v_pk_mul_f32 {P2(Wf+2*i)}, {P2(Wf+2*i)}, s[{sScale}:{sScale+1}] op_sel_hi:[1,0]")
    k("s_waitcnt lgkmcnt(0)")
    for w in range(2):
        tw_block(k, D + 8 * w, Wf + 8 * w, Wf + 8 * w + 4, w == 0, T, OP + 4 * w)
        k(f"{MF} {vr(D+8*w,4)}, {vr(OP+4*w,4)}, {vr(CR,4)}, 0")
        k(f"{MF} {vr(D+8*w+4,4)}, {vr(OP+4*w,4)}, {vr(CI,4)}, 0")
    E = G + 16
    for w in range(2):
        tw_block(k, D + 8 * w, TWC, TWS, True, T, OP + 4 * w)
        for x in range(2):
            for ri in range(2):
                d = E + 8 * x + 4 * ri
                k(f"{MF} {vr(d,4)}, {vr(H+8*(x^w)+4*ri,4)}, {vr(OP+4*w,4)}, {vr(d,4) if w else 0}")
    P = WP
    for v in range(4):
        k(f"v_cvt_pk_f16_f32 v{P+2*v}, v{E+v}, v{E+4+v}\nv_cvt_pk_f16_f32 v{P+2*v+1}, v{E+8+v}, v{E+12+v}")
        k(f"ds_write_b64 v{vWr}, {vr(P+2*v,2)} offset:{OUT+v*1024}")
    k("s_waitcnt lgkmcnt(0)\nB_out:\ns_barrier")
    k.stamp()
    k(f"ds_read_b128 {vr(D,4)}, v{vOr} offset:{OUT}\nds_read_b128 {vr(D+4,4)}, v{vOr} offset:{OUT+8192}")
    k(f"s_lshl_b32 s{sO}, s{sSlot}, 6\ns_add_u32 s{sT}, s{sO}, {128*ZB_PITCH}")
    k("s_waitcnt lgkmcnt(1)")
    k(f"buffer_store_dwordx4 {vr(D,4)}, v{vOs}, {sr(dO,4)}, s{sO} offen {st_flags}")
    k("s_waitcnt lgkmcnt(0)")
    k(f"buffer_store_dwordx4 {vr(D+4,4)}, v{vOs}, {sr(dO,4)}, s{sT} offen {st_flags}")
    k.stamp()
    if k.prof: k("s_waitcnt vmcnt(0)")
    k.stamp_flush()
    k("s_endpgm")
    k("B_idle:")
    k(f"v_lshlrev_b32 v{vOr}, 4, v0")
    k(f"v_lshrrev_b32 v{T}, 2, v0\nv_mul_u32_u24 v{T}, {ZB_PITCH}, v{T}")
    k(f"v_lshrrev_b32 v{T+1}, 4, v0\nv_xor_b32 v{T+1}, v{T+1}, v0\nv_and_b32 v{T+1}, 3, v{T+1}\nv_lshl_add_u32 v{vOs}, v{T+1}, 4, v{T}")
    k("s_waitcnt vmcnt(0)\ns_barrier\ns_branch B_out")
    k.release(m0)
    k("B_side:")
    k(f"s_cmp_lg_u32 s{sU}, 0\ns_cbranch_scc1 B_end\ns_sub_u32 s{sC}, s2, {NM}")
    fin_job(k, pWS, sC, vL, T, "B_end")
    k("B_end:\ns_endpgm")
    return k

def gen_c(l2w=0, pf=(0, 0), pfa=32, st_flags="sc1"):
    TAB = C_TB + 8 * C_TP; MOD = TAB + 16384; MV = C_MV
    k = Kern("fc_kernel", 256, 512, MOD + 14336)
    k.s()
    pX = k.s(2); pWS = k.s(2); pW1 = k.s(2)
    k(f"s_cmp_ge_u32 s2, 256\ns_cbranch_scc1 C_end")
    k("s_and_b32 s3, s2, 3\ns_lshl_b32 s3, s3, 6\ns_and_b32 s4, s2, 4\ns_lshl_b32 s4, s4, 3\ns_add_u32 s3, s3, s4\ns_lshr_b32 s2, s2, 3\ns_add_u32 s2, s2, s3")
    k.stamp(True)
    k(f"s_load_dwordx2 {sr(pX,2)}, s[0:1], 0")
    k(f"s_load_dwordx2 {sr(pWS,2)}, s[0:1], 96")
    k(f"s_load_dwordx2 {sr(pW1,2)}, s[0:1], {pfa}")
    vL, vI, vG, sJ, T = lane_ids(k)
    sMask = k.s(); sT = k.s(); sRow = k.s(); sO = k.s(); sL = k.s(); sQ = k.s()
    vOff = k.v(); vXo = k.v()
    k(f"v_lshlrev_b32 v{vOff}, 4, v{vL}\nv_lshlrev_b32 v{vXo}, 6, v{vI}\nv_lshl_add_u32 v{vXo}, v{vG}, 4, v{vXo}")
    k(f"s_mov_b32 s{sMask}, 0xffff0000")
    k(f"s_lshl_b32 s{sRow}, s{sJ}, 8\ns_add_u32 s{sRow}, s{sRow}, s2\ns_lshl_b32 s{sRow}, s{sRow}, 11")
    k(f"s_mul_i32 s{sO}, s2, {ZB_PITCH}\ns_lshl_b32 s{sL}, s{sJ}, 11")
    k(f"s_add_u32 s{sQ}, s{sL}, {WS_TCC}\ns_lshl_b32 s{sT}, s2, 11\ns_add_u32 s{sT}, s{sT}, {WS_TCS}\ns_cmp_eq_u32 s{sJ}, 7\ns_cselect_b32 s{sQ}, s{sT}, s{sQ}")
    k("s_waitcnt lgkmcnt(0)")
    k.stamp_init2(3, pWS); k.stamp()
    sSc = k.s(2)
    k(f"s_load_dwordx2 {sr(sSc,2)}, {sr(pWS,2)}, {WS_SCAL}")
    dZ = k.srd(pWS, ZB_BYTES, WS_ZB)
    k(f"s_cmp_lg_u32 s{sJ}, 0\ns_cbranch_scc1 C_no17")
    k(f"s_mov_b32 m0, 16384\ns_add_u32 s{sT}, s{sO}, 16384")
    k(f"buffer_load_dwordx4 v{vOff}, {sr(dZ,4)}, s{sT} offen lds")
    k("C_no17:")
    k(f"s_add_u32 s{sO}, s{sO}, s{sL}\ns_mov_b32 m0, s{sL}")
    k(f"buffer_load_dwordx4 v{vOff}, {sr(dZ,4)}, s{sO} offen lds")
    k(f"buffer_load_dwordx4 v{vOff}, {sr(dZ,4)}, s{sO} offen offset:1024 lds")
    dW = k.srd(pWS, WS_ZA)
    AD = k.v(12)
    k(f"s_add_u32 m0, s{sL}, {TAB}\ns_mul_i32 s{sT}, s{sJ}, 3072\ns_add_u32 s{sT}, s{sT}, {WS_TCW}")
    for q in range(3): k(f"buffer_load_dwordx4 {vr(AD+4*q,4)}, v{vOff}, {sr(dW,4)}, s{sT} offen offset:{1024*q}")
    k(f"buffer_load_dwordx4 v{vOff}, {sr(dW,4)}, s{sQ} offen lds")
    k(f"buffer_load_dwordx4 v{vOff}, {sr(dW,4)}, s{sQ} offen offset:1024 lds")
    vR1 = AD; vW1 = AD + 8; vR2 = AD + 10
    dX = k.srd(pX, 2048 * 2048)
    XP = k.v(8)
    k(f"buffer_load_dwordx4 {vr(XP,4)}, v{vXo}, {sr(dX,4)}, s{sRow} offen nt")
    k(f"buffer_load_dwordx4 {vr(XP+4,4)}, v{vXo}, {sr(dX,4)}, s{sRow} offen offset:1024 nt")
    dX1 = k.srd(pWS, 4 << 20, WS_X1); dY2 = k.srd(pWS, 4 << 20, WS_Y2)
    vMr = k.v()
    k(f"v_mad_u32_u24 v{T}, v{vG}, 18, v{vI}\nv_lshlrev_b32 v{vMr}, 4, v{T}\nv_add_u32 v{vMr}, {MOD}, v{vMr}")
    sR = k.s(); sY = k.s(); vYo = k.v()
    k(f"s_lshl_b32 s{sR}, s2, 3\ns_add_u32 s{sR}, s{sR}, s{sJ}")
    k(f"s_lshr_b32 s{sY}, s{sR}, 7\ns_lshl_b32 s{sY}, s{sY}, 18\ns_and_b32 s{sT}, s{sR}, 127\ns_lshl_b32 s{sT}, s{sT}, 7\ns_add_u32 s{sY}, s{sY}, s{sT}")
    k(f"s_bfe_u32 s{sT}, s{sR}, 0x30001\nv_and_b32 v{T}, 1, v{vI}\nv_lshl_add_u32 v{T}, v{T}, 2, v{vG}\nv_xor_b32 v{T}, s{sT}, v{T}\nv_lshlrev_b32 v{T}, 4, v{T}")
    k(f"v_lshrrev_b32 v{T+1}, 1, v{vI}\nv_lshl_add_u32 v{vYo}, v{T+1}, 14, v{T}")
    k(f"s_lshl_b32 s{sR}, s{sR}, 11")
    k.stamp()
    k("s_waitcnt vmcnt(2) lgkmcnt(0)\ns_barrier")
    k.stamp()
    OP = k.v(8); D = k.v(16); F1 = k.v(8); TW = k.v(16); F3 = k.v(32); X = k.v(16); E = k.v(16)
    k(f"ds_read_b128 {vr(F1,4)}, v{vOff} offset:{TAB+14336}\nds_read_b128 {vr(F1+4,4)}, v{vOff} offset:{TAB+15360}")
    for x in range(8): k(f"ds_read_b32 v{OP+x}, v{vR1+x}")
    k(f"s_cmp_eq_u32 s{sJ}, 7\ns_cbranch_scc1 C_nomod")
    k(f"s_add_u32 m0, s{sL}, {MOD}\ns_add_u32 s{sT}, s{sL}, {WS_MODC}")
    k(f"buffer_load_dwordx4 v{vOff}, {sr(dW,4)}, s{sT} offen lds\nbuffer_load_dwordx4 v{vOff}, {sr(dW,4)}, s{sT} offen offset:1024 lds")
    k("C_nomod:")
    sE = k.s()
    k(f"s_add_i32 s{sE}, s{sSc}, s{sSc+1}\ns_sub_i32 s{sE}, 0, s{sE}")
    for q in range(2):
        k(f"s_waitcnt lgkmcnt({4-4*q})")
        k(f"{MF} {vr(D+8*q,4)}, {vr(OP+4*q,4)}, {vr(F1,4)}, 0")
        k(f"{MF} {vr(D+8*q+4,4)}, {vr(OP+4*q,4)}, {vr(F1+4,4)}, 0")
    for q in range(4): k(f"ds_read_b128 {vr(TW+4*q,4)}, v{vOff} offset:{TAB+2048+1024*q}")
    for q in range(2):
        for v in range(4): k(f"v_cvt_pk_f16_f32 v{OP+4*q+v}, v{D+8*q+v}, v{D+8*q+4+v}")
        k(f"ds_write_b128 v{vW1+q}, {vr(OP+4*q,4)}")
    F2 = F1
    k(f"ds_read_b128 {vr(F2,4)}, v{vOff} offset:{TAB}\nds_read_b128 {vr(F2+4,4)}, v{vOff} offset:{TAB+1024}")
    k("s_waitcnt lgkmcnt(0)\ns_barrier")
    for rt in range(2):
        k(f"ds_read2st64_b32 {vr(OP+4*rt,2)}, v{vR2+rt} offset0:0 offset1:2")
        k(f"ds_read2st64_b32 {vr(OP+4*rt+2,2)}, v{vR2+rt} offset0:4 offset1:6")
    for q in (0, 1, 4, 5, 2, 3, 6, 7): k(f"ds_read_b128 {vr(F3+4*q,4)}, v{vOff} offset:{TAB+6144+1024*q}")
    def f3(ct, rt, ri): return F3 + ((ct * 2 + rt) * 2 + ri) * 4
    for rt in range(2):
        k(f"s_waitcnt lgkmcnt({10-2*rt})")
        k(f"{MF} {vr(D+8*rt,4)}, {vr(OP+4*rt,4)}, {vr(F2,4)}, 0")
        k(f"{MF} {vr(D+8*rt+4,4)}, {vr(OP+4*rt,4)}, {vr(F2+4,4)}, 0")
    for rt in range(2):
        for v in range(4):
            re = D + 8 * rt + v; im = re + 4
            cmul_tw(k, re, im, TW + 4 * rt + v, TW + 8 + 4 * rt + v, True, T + v)
            k(f"v_cvt_pk_f16_f32 v{OP+4*rt+v}, v{re}, v{im}")
        k(f"s_waitcnt lgkmcnt({4-4*rt})")
        for ct in range(2):
            for ri in range(2):
                d = E + 8 * ct + 4 * ri
                k(f"{MF} {vr(d,4)}, {vr(OP+4*rt,4)}, {vr(f3(ct,rt,ri),4)}, {vr(d,4) if rt else 0}")
    k("s_waitcnt vmcnt(0)\ns_barrier")
    k.stamp()
    GA = TW
    def mread(dst, vec):
        for ct in range(2):
            for h in range(2): k(f"ds_read_b128 {vr(dst+8*ct+4*h,4)}, v{vMr} offset:{(2*vec+ct)*MV + 73*16*h}")
    mread(GA, 0)
    SB = F3; CB = F3 + 16
    mread(CB, 2); mread(SB, 1)
    code_pf_w(k, "g1_kernel", "g2_kernel", sJ, 7, "s_and_b32 s{0}, s2, 31", vL, T + 4, AD + 2)
    pf_mall(k, pW1, pf[0], pf[1], 2, sJ, AD, T + 4)
    if l2w:
        dP = k.srd(pW1, WBYTES)
        k(f"v_lshrrev_b32 v{T+4}, 5, v0\nv_mul_u32_u24 v{T+4}, {32*7168}, v{T+4}\nv_and_b32 v{T+5}, 31, v0\nv_lshl_add_u32 v{T+4}, v{T+5}, 7, v{T+4}")
        k(f"v_cmp_lt_u32 vcc, 27, v{T+5}\nv_mov_b32 v{T+5}, {OOB}\nv_cndmask_b32 v{T+4}, v{T+4}, v{T+5}, vcc")
        k(f"s_and_b32 s{sT}, s2, 31\ns_mul_i32 s{sO}, s{sT}, 7168\ns_bfe_u32 s{sT}, s2, 0x10005\ns_mul_i32 s{sT}, s{sT}, 3584\ns_add_u32 s{sO}, s{sO}, s{sT}")
        k(f"buffer_load_dword v{AD}, v{T+4}, {sr(dP,4)}, s{sO} offen")
        if l2w > 1:
            nw = int(round((l2w - 1) * 8))
            k(f"s_add_u32 s{sO}, s{sO}, {512*7168}\ns_cmp_lt_u32 s{sJ}, {nw}\ns_cselect_b32 s{dP+2}, s{dP+2}, 0")
            k(f"buffer_load_dword v{AD+1}, v{T+4}, {sr(dP,4)}, s{sO} offen")
    unpack_bf16(k, X, XP, 8, sMask)
    def dreg(n): return E + 8 * (n >> 3) + 4 * (n & 1) + ((n & 7) >> 1)
    for n in range(16): k(f"v_ldexp_f32 v{dreg(n)}, v{dreg(n)}, s{sE}")
    for i in range(8): k(f"v_cvt_pk_bf16_f32 v{OP+i}, v{dreg(2*i)}, v{dreg(2*i+1)}")
    unpack_bf16(k, D, OP, 8, sMask)
    k("s_waitcnt lgkmcnt(8)")
    for n in range(16): k(f"v_mul_f32 v{D+n}, v{D+n}, v{GA+n}")
    for i in range(8): k(f"v_cvt_pk_bf16_f32 v{OP+i}, v{D+2*i}, v{D+2*i+1}")
    unpack_bf16(k, D, OP, 8, sMask)
    for n in range(16): k(f"v_add_f32 v{X+n}, v{X+n}, v{D+n}")
    for i in range(8): k(f"v_cvt_pk_bf16_f32 v{XP+i}, v{X+2*i}, v{X+2*i+1}")
    k(f"buffer_store_dwordx4 {vr(XP,4)}, v{vXo}, {sr(dX1,4)}, s{sR} offen {st_flags}")
    k(f"buffer_store_dwordx4 {vr(XP+4,4)}, v{vXo}, {sr(dX1,4)}, s{sR} offen offset:1024 {st_flags}")
    unpack_bf16(k, X, XP, 8, sMask)
    vSum = k.v(); vM = k.v(); vDl = k.v(); vR = k.v(); sSum = k.s()
    def layernorm(fill2):
        k(f"v_add_f32 v{vSum}, v{X}, v{X+1}\nv_add_f32 v{T}, v{X+2}, v{X+3}")
        for i in range(2, 8): k(f"v_add_f32 v{vSum}, v{vSum}, v{X+2*i}\nv_add_f32 v{T}, v{T}, v{X+2*i+1}")
        k(f"v_add_f32 v{vSum}, v{vSum}, v{T}")
        wave_reduce(k, "v_add_f32", [vSum], [sSum])
        k(f"v_mov_b32 v{vDl}, {fbits(1/1024)}\nv_mul_f32 v{vDl}, s{sSum}, v{vDl}\nv_mov_b32 v{vM}, v{vDl}")
        round_bf16(k, vM)
        k(f"v_sub_f32 v{vDl}, v{vDl}, v{vM}")
        for i in range(16): k(f"v_sub_f32 v{X+i}, v{X+i}, v{vM}")
        k(f"v_mul_f32 v{vSum}, v{X}, v{X}\nv_mul_f32 v{T}, v{X+1}, v{X+1}")
        for i in range(1, 8): k(f"v_fmac_f32 v{vSum}, v{X+2*i}, v{X+2*i}\nv_fmac_f32 v{T}, v{X+2*i+1}, v{X+2*i+1}")
        k(f"v_add_f32 v{vSum}, v{vSum}, v{T}")
        with_fill(k, cap(lambda t: wave_reduce(t, "v_add_f32", [vSum], [sSum])), fill2, 3)
        k(f"v_mov_b32 v{vR}, {fbits(1/1024)}\nv_mul_f32 v{vR}, s{sSum}, v{vR}")
        k(f"v_fma_f32 v{vR}, -v{vDl}, v{vDl}, v{vR}\nv_max_f32 v{vR}, 0, v{vR}")
        round_bf16(k, vR)
        k(f"v_add_f32 v{vR}, {fbits(1e-5)}, v{vR}")
        round_bf16(k, vR)
        k(f"v_sqrt_f32 v{vR}, v{vR}")
        round_bf16(k, vR)
        k(f"v_rcp_f32 v{vR}, v{vR}")
    k("s_waitcnt lgkmcnt(0)")
    k.stamp()
    layernorm([f"v_mul_f32 v{X+i}, v{X+i}, v{CB+i}" for i in range(16)])
    for i in range(16): k(f"v_fma_f32 v{X+i}, v{X+i}, v{vR}, v{SB+i}")
    for i in range(8): k(f"v_cvt_pk_bf16_f32 v{OP+i}, v{X+2*i}, v{X+2*i+1}")
    unpack_bf16(k, X, OP, 8, sMask)
    layernorm([])
    for i in range(16): k(f"v_mul_f32 v{X+i}, v{X+i}, v{vR}")
    for i in range(8): k(f"v_cvt_pk_bf16_f32 v{OP+i}, v{X+2*i}, v{X+2*i+1}")
    k(f"s_add_u32 s{sT}, s{sY}, {8*16384}")
    k(f"buffer_store_dwordx4 {vr(OP,4)}, v{vYo}, {sr(dY2,4)}, s{sY} offen {st_flags}")
    k(f"buffer_store_dwordx4 {vr(OP+4,4)}, v{vYo}, {sr(dY2,4)}, s{sT} offen {st_flags}")
    k.stamp()
    if k.prof: k("s_waitcnt vmcnt(0)")
    k.stamp_flush()
    k("C_end:\ns_endpgm")
    return k
```

```python
from asmlib import *
import math

WS_MODP = 0x0
WS_MODQ = 0xA0000
WS_GB = 0x18000
WS_WMAX = 0x19800
WS_SCAL = 0x19400
WS_TAC = 0x20000
WS_TAW = 0x24000
WS_TBC = 0x28000
WS_TCC = 0x2C000
WS_TCW = 0x30000
WS_SPC = 0x38000
WS_FLAG = 0x40000
WS_MODC = 0x90000
WS_TAS = 0x100000
WS_TCS = 0x200000
WS_ZA = 0x300000
WS_ZB = 0x800000
WS_WB = 0xD00000
WS_X1 = 0x1300000
WS_Y2 = 0x1700000
WS_H = 0x1B00000
WS_PART = 0x2A00000
NSLOT = 258
ZA_PITCH = 16640
ZA_BYTES = NSLOT * ZA_PITCH
ZB_PITCH = NSLOT * 64
ZB_BYTES = 256 * ZB_PITCH
W_BYTES = 2048 * 513 * 2
LOG2E = 1.4426950408889634
DPPM = "row_mask:0xf bank_mask:0xf"
MF = "v_mfma_f32_16x16x32_f16"
OOB = 0x7ffffff0

def wave_reduce(k, op, vs, sdst):
    ops = op if isinstance(op, (list, tuple)) else [op] * len(vs)
    for sh in (1, 2, 4, 8):
        for o, v in zip(ops, vs): k(f"{o}_dpp v{v}, v{v}, v{v} row_ror:{sh} {DPPM}")
    for o, v in zip(ops, vs): k(f"{o}_dpp v{v}, v{v}, v{v} row_bcast:15 row_mask:0xa bank_mask:0xf")
    for o, v in zip(ops, vs): k(f"{o}_dpp v{v}, v{v}, v{v} row_bcast:31 row_mask:0xc bank_mask:0xf")
    for v, s in zip(vs, sdst): k(f"v_readlane_b32 s{s}, v{v}, 63")

def with_fill(k, lines, fill, per=3):
    fill = list(fill)
    for l in lines:
        k(l)
        for _ in range(per):
            if fill: k(fill.pop(0))
    for l in fill: k(l)

def cap(fn):
    t = Kern("x", 0, 0, 0); fn(t); return list(t.lines)

def sincos(k, c, s, vint, n, tmp):
    k(f"v_cvt_f32_u32 v{tmp}, v{vint}")
    k(f"v_mul_f32 v{tmp}, {fbits(1.0/n)}, v{tmp}")
    k(f"v_cos_f32 v{c}, v{tmp}")
    k(f"v_sin_f32 v{s}, v{tmp}")

def round_bf16(k, v):
    k(f"v_cvt_pk_bf16_f32 v{v}, v{v}, v{v}")
    k(f"v_lshlrev_b32 v{v}, 16, v{v}")

def unpack_bf16(k, dst, src, n, smask):
    for i in range(n):
        k(f"v_lshlrev_b32 v{dst+2*i}, 16, v{src+i}")
        k(f"v_and_b32 v{dst+2*i+1}, s{smask}, v{src+i}")

def cmul_tw(k, re, im, c, s, conj, t):
    k(f"v_mul_f32 v{t}, v{re}, v{s}")
    k(f"v_mul_f32 v{re}, v{re}, v{c}")
    if not conj:
        k(f"v_fmac_f32 v{re}, v{im}, v{s}")
        k(f"v_fma_f32 v{im}, v{im}, v{c}, -v{t}")
    else:
        k(f"v_fma_f32 v{re}, -v{im}, v{s}, v{re}")
        k(f"v_fma_f32 v{im}, v{im}, v{c}, v{t}")

def P2(r): return f"v[{r}:{r+1}]"
def cmul2(k, re, im, c, s, conj, t):
    NEG0 = "neg_lo:[1,0,0] neg_hi:[1,0,0]"; NEG2 = "neg_lo:[0,0,1] neg_hi:[0,0,1]"
    k(f"v_pk_mul_f32 {P2(t)}, {P2(re)}, {P2(s)}")
    k(f"v_pk_mul_f32 {P2(re)}, {P2(re)}, {P2(c)}")
    k(f"v_pk_fma_f32 {P2(re)}, {P2(im)}, {P2(s)}, {P2(re)} {NEG0 if conj else ''}")
    k(f"v_pk_fma_f32 {P2(im)}, {P2(im)}, {P2(c)}, {P2(t)} {'' if conj else NEG2}")

def tw_block(k, D, C, S, conj, T, OP):
    for v in (0, 2): cmul2(k, D + v, D + 4 + v, C + v, S + v, conj, T + v)
    for v in range(4): k(f"v_cvt_pk_f16_f32 v{OP+v}, v{D+v}, v{D+4+v}")

def ln_pk(k, X, A, RC, sP, sS, fill=(), extra=None):
    k(f"v_readfirstlane_b32 s{sP}, v{X}")
    for i in range(8): k(f"v_pk_add_f32 {P2(X+2*i)}, {P2(X+2*i)}, s[{sP}:{sP+1}] op_sel_hi:[1,0] neg_lo:[0,1] neg_hi:[0,1]")
    k(f"v_pk_add_f32 {P2(A)}, {P2(X)}, {P2(X+2)}\nv_pk_mul_f32 {P2(A+2)}, {P2(X)}, {P2(X)}")
    k(f"v_pk_fma_f32 {P2(A+2)}, {P2(X+2)}, {P2(X+2)}, {P2(A+2)}")
    for i in range(2, 8): k(f"v_pk_add_f32 {P2(A)}, {P2(A)}, {P2(X+2*i)}\nv_pk_fma_f32 {P2(A+2)}, {P2(X+2*i)}, {P2(X+2*i)}, {P2(A+2)}")
    k(f"v_add_f32 v{A}, v{A}, v{A+1}\nv_add_f32 v{A+2}, v{A+2}, v{A+3}")
    for l in fill: k(l)
    ops = ["v_add_f32", "v_add_f32"]; vs = [A, A + 2]; sd = [sS, sS + 1]
    if extra: ops.append(extra[0]); vs.append(extra[1]); sd.append(extra[2])
    wave_reduce(k, ops, vs, sd)
    k(f"v_mov_b32 v{A}, {fbits(1/1024)}\nv_mul_f32 v{RC+1}, s{sS}, v{A}\nv_mul_f32 v{RC}, s{sS+1}, v{A}")
    k(f"v_fma_f32 v{RC}, -v{RC+1}, v{RC+1}, v{RC}\nv_max_f32 v{RC}, 0, v{RC}")
    round_bf16(k, RC)
    k(f"v_add_f32 v{RC}, {fbits(1e-5)}, v{RC}")
    round_bf16(k, RC)
    k(f"v_sqrt_f32 v{RC}, v{RC}")
    round_bf16(k, RC)
    k(f"v_rcp_f32 v{RC}, v{RC}")
    k(f"v_mul_f32 v{RC+1}, v{RC+1}, v{RC}")
    for i in range(8): k(f"v_pk_fma_f32 {P2(X+2*i)}, {P2(X+2*i)}, {P2(RC)}, {P2(RC)} op_sel:[0,0,1] op_sel_hi:[1,0,1] neg_lo:[0,0,1] neg_hi:[0,0,1]")

def lane_ids(k):
    vL = k.v(); vI = k.v(); vG = k.v(); sW = k.s(); T = k.v(8)
    k(f"v_lshrrev_b32 v{T}, 6, v0\nv_and_b32 v{vL}, 63, v0")
    k(f"v_readfirstlane_b32 s{sW}, v{T}")
    k(f"v_and_b32 v{vI}, 15, v{vL}\nv_lshrrev_b32 v{vG}, 4, v{vL}")
    return vL, vI, vG, sW, T

C_TB = 17 * 1024
C_TP = (512 + 4) * 4

def code_pf(k, start, end, sIdx, vL, vTmp, vDum, back=False):
    m = k.mark(); p = k.s(2); sv = k.s(2); sO = k.s()
    lab = f"CP{len(k.lines)}_{k.name}"
    k(f"s_getpc_b64 {sr(p,2)}\n{lab}:")
    k(f"s_add_u32 s{p}, s{p}, {start}-{lab}\ns_addc_u32 s{p+1}, s{p+1}, {-1 if back else 0}\ns_lshl_b32 s{sO}, s{sIdx}, 7")
    k(f"v_lshl_add_u32 v{vTmp}, v{vL}, 12, s{sO}")
    k(f"v_cmp_gt_u32 vcc, {end}-{start}, v{vTmp}")
    k(f"s_and_saveexec_b64 {sr(sv,2)}, vcc\ns_cbranch_execz {lab}e")
    k(f"v_mov_b32 v{vTmp+1}, s{p+1}\nv_add_co_u32 v{vTmp}, vcc, s{p}, v{vTmp}\nv_addc_co_u32 v{vTmp+1}, vcc, 0, v{vTmp+1}, vcc")
    k(f"global_load_dword v{vDum}, {vr(vTmp,2)}, off")
    k(f"{lab}e:\ns_mov_b64 exec, {sr(sv,2)}")
    k.release(m)

CODEPF = True
TLBW = 0
def code_pf_w(k, start, end, sWave, wave, idx_code, vL, vTmp, vDum, back=False):
    if not CODEPF: return
    m = k.mark(); sI = k.s()
    lab = f"CW{len(k.lines)}_{k.name}"
    k(f"s_cmp_lg_u32 s{sWave}, {wave}\ns_cbranch_scc1 {lab}")
    k(idx_code.format(sI))
    code_pf(k, start, end, sI, vL, vTmp, vDum, back)
    k(f"{lab}:")
    k.release(m)
IDX_STD = "s_lshr_b32 s{0}, s2, 3\ns_and_b32 s{0}, s{0}, 31"
PT_K0 = []; PT_A = []; PT_B = []
def page_touch(k, items, sWave, wave, vL, vA, vDum):
    if not TLBW or not items: return
    mm = k.mark(); sI = k.s(); ps = [k.s(2) for _ in items]
    lab = f"PT{len(k.lines)}_{k.name}"
    k(f"s_cmp_lg_u32 s{sWave}, {wave}\ns_cbranch_scc1 {lab}")
    for p, it in zip(ps, items): k(f"s_load_dwordx2 {sr(p,2)}, s[0:1], {it[0]}")
    k(IDX_STD.format(sI))
    k(f"v_min_u32 v{vA}, {min(63, (1 << 30) // (32 * TLBW))}, v{vL}\nv_lshl_add_u32 v{vA}, v{vA}, 5, s{sI}\nv_lshlrev_b32 v{vA}, {TLBW.bit_length()-1}, v{vA}\ns_waitcnt lgkmcnt(0)")
    for p, it in zip(ps, items):
        m2 = k.mark(); d = k.srd(p, it[2], it[1])
        k(f"buffer_load_dword v{vDum}, v{vA}, {sr(d,4)}, 0 offen nt")
        k.release(m2)
    k(f"{lab}:")
    k.release(mm)

def gemv_job(k, pC, pM, pWS, vL, sWave, T, endlabel):
    m = k.mark()
    sT = k.s(); sMask = k.s(); sO = k.s(); sCo = k.s(); sG = k.s(); sHj = k.s(); sStrip = k.s(); sRb = k.s(); sOut = k.s(); sU = k.s(); sCrit = k.s()
    vOff = k.v(); vOffC = k.v()
    k(f"v_bfe_u32 v{T+1}, v0, 3, 5\nv_mul_u32_u24 v{vOff}, 12288, v{T+1}")
    k(f"v_and_b32 v{T}, 7, v0\nv_lshl_add_u32 v{vOff}, v{T}, 4, v{vOff}\nv_lshlrev_b32 v{vOffC}, 1, v{T+1}")
    k(f"s_mov_b32 s{sMask}, 0xffff0000\ns_lshr_b32 s{sG}, s{sWave}, 2")
    k(f"s_mul_i32 s{sHj}, s2, 3\ns_add_u32 s{sHj}, s{sHj}, s{sG}\ns_sub_u32 s{sHj}, s{sHj}, 256\ns_cmp_lt_u32 s2, 128\ns_cselect_b32 s{sHj}, s2, s{sHj}\ns_cselect_b32 s{sCrit}, 2, 0")
    k(f"s_and_b32 s{sStrip}, s{sHj}, 63\ns_lshr_b32 s{sRb}, s{sHj}, 6")
    k(f"s_lshl_b32 s{sOut}, s{sRb}, 14\ns_lshl_b32 s{sT}, s{sStrip}, 8\ns_add_u32 s{sOut}, s{sOut}, s{sT}\ns_add_u32 s{sOut}, s{sOut}, {WS_MODQ}\ns_add_u32 s{sStrip}, s{sStrip}, 32")
    k(f"s_and_b32 s{sT}, s2, 31\ns_lshr_b32 s{sU}, s2, 5\ns_lshl_b32 s{sO}, s{sU}, 13\ns_lshl_b32 s{sCo}, s{sT}, 8\ns_add_u32 s{sO}, s{sO}, s{sCo}\ns_lshl_b32 s{sU}, s{sU}, 1\ns_add_u32 s{sU}, s{sU}, s{sG}")
    k(f"s_cmp_lt_u32 s{sG}, s{sCrit}\ns_cselect_b32 s{sStrip}, s{sT}, s{sStrip}\ns_cselect_b32 s{sRb}, s{sU}, s{sRb}\ns_cselect_b32 s{sOut}, s{sO}, s{sOut}")
    k(f"s_mul_i32 s{sO}, s{sRb}, {128*12288}\ns_lshl_b32 s{sT}, s{sStrip}, 7\ns_add_u32 s{sO}, s{sO}, s{sT}\ns_lshl_b32 s{sCo}, s{sRb}, 8")
    k("s_waitcnt lgkmcnt(0)")
    dM = k.srd(pM, 1024 * 6144 * 2); dC = k.srd(pC, 2048); dO = k.srd(pWS, WS_TAS)
    C = k.v(4); Wv = k.v(16); E = k.v(4); A = k.v(8)
    for i in range(4):
        k(f"buffer_load_ushort v{C+i}, v{vOffC}, {sr(dC,4)}, s{sCo} offen offset:{64*i}")
    for i in range(4):
        k(f"buffer_load_dwordx4 {vr(Wv+4*i,4)}, v{vOff}, {sr(dM,4)}, s{sO} offen nt")
        if i < 3: k(f"s_add_u32 s{sO}, s{sO}, {32*12288}")
    code_pf_w(k, "fa_kernel", "CODE_END", sWave, 11, IDX_STD, vL, T + 2, T + 4)
    k(f"s_sub_u32 s{sT}, s{sWave}, 9\ns_cmp_ge_u32 s{sT}, 2\ns_cbranch_scc1 GV_nz")
    dZ = k.srd(pWS, 0x50000, WS_FLAG)
    for i in range(4): k(f"v_mov_b32 v{A+i}, 0")
    k(f"s_lshl_b32 s{sT}, s{sT}, 8\ns_add_u32 s{sT}, s{sT}, s2\ns_lshl_b32 s{sT}, s{sT}, 10\nv_lshlrev_b32 v{T+2}, 4, v{vL}")
    k(f"buffer_store_dwordx4 {vr(A,4)}, v{T+2}, {sr(dZ,4)}, s{sT} offen sc1")
    k("GV_nz:")
    vA = k.v()
    k(f"v_and_b32 v{T}, 7, v{vL}\nv_lshlrev_b32 v{T}, 5, v{T}\nv_lshrrev_b32 v{T+1}, 4, v{vL}\nv_lshl_add_u32 v{T}, v{T+1}, 2, v{T}")
    k(f"s_lshl_b32 s{sT}, s{sWave}, 8\nv_add_u32 v{vA}, s{sT}, v{T}")
    k("s_waitcnt vmcnt(4)")
    for i in range(4): k(f"v_lshlrev_b32 v{C+i}, 16, v{C+i}\nv_mul_f32 v{E+i}, {fbits(-LOG2E)}, v{C+i}")
    for i in range(4): k(f"v_exp_f32 v{E+i}, v{E+i}")
    for i in range(4): k(f"v_add_f32 v{E+i}, 1.0, v{E+i}")
    for i in range(4): k(f"v_rcp_f32 v{E+i}, v{E+i}")
    for i in range(4): k(f"v_mul_f32 v{C+i}, v{C+i}, v{E+i}")
    for i in range(4): round_bf16(k, C + i)
    for i in range(4):
        k(f"s_waitcnt vmcnt({3-i})")
        sel = "op_sel:[0,1,0] op_sel_hi:[1,1,1]" if i & 1 else "op_sel_hi:[1,0,1]"
        for q in range(4):
            t = T + 2 * (q & 1)
            k(f"v_lshlrev_b32 v{t}, 16, v{Wv+4*i+q}\nv_and_b32 v{t+1}, s{sMask}, v{Wv+4*i+q}")
            if i == 0: k(f"v_pk_mul_f32 {P2(A+2*q)}, {P2(t)}, {P2(C)} op_sel_hi:[1,0]")
            else: k(f"v_pk_fma_f32 {P2(A+2*q)}, {P2(t)}, {P2(C+(i&2))}, {P2(A+2*q)} {sel}")
    for q in range(4): k(f"v_permlane16_swap_b32 v{A+2*q}, v{A+2*q+1}")
    for q in range(4): k(f"v_add_f32 v{A+2*q}, v{A+2*q}, v{A+2*q+1}")
    k(f"v_permlane32_swap_b32 v{A}, v{A+2}\nv_permlane32_swap_b32 v{A+4}, v{A+6}")
    k(f"v_add_f32 v{A}, v{A}, v{A+2}\nv_add_f32 v{A+4}, v{A+4}, v{A+6}")
    k(f"v_add_f32_dpp v{A}, v{A}, v{A} row_ror:8 {DPPM}\nv_add_f32_dpp v{A+4}, v{A+4}, v{A+4} row_ror:8 {DPPM}")
    k(f"ds_write2_b32 v{vA}, v{A}, v{A+4} offset0:0 offset1:4")
    k("s_waitcnt lgkmcnt(0)\ns_barrier")
    k(f"s_and_b32 s{sT}, s{sWave}, 3\ns_cmp_lg_u32 s{sT}, 0\ns_cbranch_scc1 {endlabel}")
    k(f"s_add_u32 s{sT}, s{sG}, 1\ns_cmp_eq_u32 s{sT}, s{sCrit}\ns_cbranch_scc1 {endlabel}")
    k(f"s_lshl_b32 s{sT}, s{sWave}, 8\nv_lshlrev_b32 v{T}, 2, v{vL}\nv_add_u32 v{T+1}, s{sT}, v{T}")
    for i in range(4): k(f"ds_read2st64_b32 {vr(A+2*i,2)}, v{T+1} offset0:{2*i} offset1:{2*i+1}")
    k(f"s_cmp_lt_u32 s{sG}, s{sCrit}\ns_cselect_b64 vcc, -1, 0")
    k("s_waitcnt lgkmcnt(0)")
    for i in range(4): k(f"v_add_f32 v{A+2*i}, v{A+2*i}, v{A+2*i+1}")
    k(f"v_add_f32 v{A}, v{A}, v{A+2}\nv_add_f32 v{A+4}, v{A+4}, v{A+6}\nv_cndmask_b32 v{A+4}, 0, v{A+4}, vcc\nv_add_f32 v{A}, v{A}, v{A+4}")
    k(f"buffer_store_dword v{A}, v{T}, {sr(dO,4)}, s{sOut} offen sc1")
    k.stamp_flush()
    k("s_endpgm")
    k.release(m)

def tab_a_common(k, vI, vG, T, R, part):
    def f1(ct, ks, ri): return R + ((ct * 2 + ks) * 2 + ri) * 4
    sg = 1 / math.sqrt(32)
    for ct in range(2):
        if part != ct: continue
        for ks in range(2):
            for e in range(4):
                k(f"v_add_u32 v{T}, {16*ks+4*e}, v{vG}\nv_add_u32 v{T+1}, {16*ct}, v{vI}")
                k(f"v_mul_u32_u24 v{T}, v{T}, v{T+1}\nv_and_b32 v{T}, 31, v{T}")
                sincos(k, T + 1, T + 2, T, 32, T + 3)
                k(f"v_mul_f32 v{T+1}, {fbits(sg)}, v{T+1}\nv_mul_f32 v{T+2}, {fbits(sg)}, v{T+2}")
                k(f"v_cvt_pk_f16_f32 v{f1(ct,ks,0)+e}, v{T+1}, v{T+2}\nv_cvt_pk_f16_f32 v{f1(ct,ks,1)+e}, -v{T+2}, v{T+1}")
        return (4 * ct, 4)
    for ct in range(2):
        for v in range(4):
            k(f"v_lshl_add_u32 v{T}, v{vG}, 2, {v}\nv_add_u32 v{T+1}, {16*ct}, v{vI}\nv_mul_u32_u24 v{T}, v{T}, v{T+1}")
            sincos(k, R + 32 + 4 * ct + v, R + 40 + 4 * ct + v, T, 512, T + 3)
    for v in range(4):
        k(f"v_lshl_add_u32 v{T}, v{vG}, 2, {v}\nv_mul_u32_u24 v{T}, v{T}, v{vI}\nv_and_b32 v{T}, 15, v{T}")
        sincos(k, T + 1, T + 2, T, 16, T + 3)
        k(f"v_mul_f32 v{T+1}, {fbits(0.25)}, v{T+1}\nv_mul_f32 v{T+2}, {fbits(0.25)}, v{T+2}")
        k(f"v_cvt_pk_f16_f32 v{R+48+v}, v{T+1}, v{T+2}\nv_cvt_pk_f16_f32 v{R+52+v}, -v{T+2}, v{T+1}")
    return (8, 6)

def tab_a_wave(k, vI, vG, T, R, sJ, sT):
    vRho = T + 7
    k(f"v_and_b32 v{vRho}, 7, v{vI}")
    for q in range(2):
        for x in range(2):
            d = R + 2 * q + x
            k(f"v_lshrrev_b32 v{T}, 1, v{vG}\nv_lshl_add_u32 v{T}, v{T}, 4, v{vI}")
            k(f"s_lshl_b32 s{sT}, s{sJ}, 6\ns_add_u32 s{sT}, s{sT}, {32*q}\nv_add_u32 v{T}, s{sT}, v{T}")
            if x: k(f"v_sub_u32 v{T}, 512, v{T}\nv_and_b32 v{T}, 511, v{T}")
            k(f"v_lshrrev_b32 v{T+1}, 3, v{T}\nv_and_b32 v{T+1}, 28, v{T+1}\nv_xor_b32 v{T}, v{T}, v{T+1}")
            k(f"v_and_b32 v{T+1}, 1, v{vG}\nv_mul_u32_u24 v{T+1}, {4*2048+64}, v{T+1}")
            k(f"v_lshl_add_u32 v{d}, v{T}, 2, v{T+1}")
    for q in range(2):
        for ins in range(2):
            k(f"v_lshrrev_b32 v{T}, 3, v{vI}\nv_lshlrev_b32 v{T}, 1, v{T}")
            k(f"s_lshl_b32 s{sT}, s{sJ}, 3\ns_add_u32 s{sT}, s{sT}, {4*q+ins}\nv_add_u32 v{T}, s{sT}, v{T}")
            k(f"v_lshlrev_b32 v{T+1}, 6, v{vRho}\nv_subrev_u32 v{T+1}, 31, v{T+1}\nv_max_i32 v{T+1}, 0, v{T+1}")
            k(f"v_add_u32 v{T+1}, v{T+1}, v{T}\nv_mul_u32_u24 v{T+1}, {ZA_PITCH}, v{T+1}")
            k(f"v_and_b32 v{T+2}, 1, v{vG}\nv_lshl_add_u32 v{T+1}, v{T+2}, 5, v{T+1}")
            k(f"v_lshrrev_b32 v{T+2}, 1, v{vG}\nv_lshl_add_u32 v{T+1}, v{T+2}, 4, v{T+1}")
            k(f"v_and_b32 v{T+2}, 3, v{vRho}\nv_cmp_eq_u32 vcc, 0, v{T+2}\nv_mov_b32 v{T+3}, 64\nv_cndmask_b32 v{T+3}, v{T+3}, 33, vcc")
            k(f"v_cmp_lt_u32 vcc, 4, v{vRho}\nv_cndmask_b32 v{T+3}, v{T+3}, 0, vcc")
            k(f"v_cmp_lt_u32 vcc, v{T}, v{T+3}\nv_mov_b32 v{T+2}, {OOB}\nv_cndmask_b32 v{R+4+2*q+ins}, v{T+2}, v{T+1}, vcc")
    return 2

def tab_a_s0(k, vI, vG, T, R, sS0):
    s8 = 1 / math.sqrt(8)
    vSc = T + 6; vRho = T + 7
    k(f"v_lshrrev_b32 v{T}, 3, v{vI}\nv_lshrrev_b32 v{T+1}, 1, v{vG}\nv_cmp_eq_u32 vcc, v{T}, v{T+1}")
    k(f"v_mov_b32 v{T+2}, {fbits(s8)}\nv_cndmask_b32 v{vSc}, 0, v{T+2}, vcc\nv_and_b32 v{vRho}, 7, v{vI}")
    for e in range(4):
        k(f"v_and_b32 v{T}, 1, v{vG}\nv_lshl_add_u32 v{T}, v{T}, 2, {e}\nv_lshl_add_u32 v{T}, v{T}, 8, s{sS0}")
        k(f"v_mul_u32_u24 v{T}, v{T}, v{vRho}\nv_and_b32 v{T}, 0x7ff, v{T}")
        sincos(k, T + 1, T + 2, T, 2048, T + 3)
        k(f"v_mul_f32 v{T+1}, v{vSc}, v{T+1}\nv_mul_f32 v{T+2}, v{vSc}, v{T+2}")
        k(f"v_cvt_pk_f16_f32 v{R+e}, v{T+1}, v{T+2}\nv_cvt_pk_f16_f32 v{R+4+e}, -v{T+2}, v{T+1}")
        k(f"v_cvt_pk_f16_f32 v{R+8+e}, v{T+1}, -v{T+2}\nv_cvt_pk_f16_f32 v{R+12+e}, -v{T+2}, -v{T+1}")
    return 4

def tab_b_common(k, vI, vG, T, R):
    for v in range(4):
        k(f"v_lshl_add_u32 v{T}, v{vG}, 2, {v}\nv_mul_u32_u24 v{T}, v{T}, v{vI}")
        sincos(k, R + v, R + 4 + v, T, 256, T + 3)
        k(f"v_and_b32 v{T}, 15, v{T}")
        sincos(k, R + 24 + v, R + 28 + v, T, 16, T + 3)
        k(f"v_mul_f32 v{T+1}, {fbits(0.25)}, v{R+24+v}\nv_mul_f32 v{T+2}, {fbits(0.25)}, v{R+28+v}")
        k(f"v_cvt_pk_f16_f32 v{R+8+v}, v{T+1}, v{T+2}\nv_cvt_pk_f16_f32 v{R+12+v}, -v{T+2}, v{T+1}")
        k(f"v_cvt_pk_f16_f32 v{R+16+v}, v{T+1}, -v{T+2}\nv_cvt_pk_f16_f32 v{R+20+v}, v{T+2}, v{T+1}")
    return 8

def tab_c_common(k, vI, vG, T, R, part):
    for e in range(4 if part == 2 else 0):
        k(f"v_add_u32 v{T}, {4*e}, v{vG}\nv_mul_u32_u24 v{T}, v{T}, v{vI}\nv_and_b32 v{T}, 15, v{T}")
        sincos(k, T + 1, T + 2, T, 16, T + 3)
        k(f"v_mul_f32 v{T+1}, {fbits(0.25)}, v{T+1}\nv_mul_f32 v{T+2}, {fbits(0.25)}, v{T+2}")
        k(f"v_cvt_pk_f16_f32 v{R+e}, v{T+1}, -v{T+2}\nv_cvt_pk_f16_f32 v{R+4+e}, v{T+2}, v{T+1}")
    for rt in range(2 if part == 2 else 0):
        for v in range(4):
            k(f"v_lshl_add_u32 v{T}, v{vG}, 2, {16*rt+v}\nv_mul_u32_u24 v{T}, v{T}, v{vI}")
            sincos(k, R + 8 + 4 * rt + v, R + 16 + 4 * rt + v, T, 512, T + 3)
    if part == 2: return (0, 6)
    sg = 1 / math.sqrt(32)
    for ct in (part,):
        for rt in range(2):
            for v in range(4):
                k(f"v_lshl_add_u32 v{T}, v{vG}, 2, {16*rt+v}\nv_add_u32 v{T+1}, {16*ct}, v{vI}\nv_mul_u32_u24 v{T}, v{T}, v{T+1}\nv_and_b32 v{T}, 31, v{T}")
                sincos(k, T + 1, T + 2, T, 32, T + 3)
                k(f"v_mul_f32 v{T+1}, {fbits(sg)}, v{T+1}\nv_mul_f32 v{T+2}, {fbits(sg)}, v{T+2}")
                b = R + 24 + ((ct * 2 + rt) * 2) * 4
                k(f"v_cvt_pk_f16_f32 v{b+v}, v{T+1}, -v{T+2}\nv_cvt_pk_f16_f32 v{b+4+v}, v{T+2}, v{T+1}")
    return (6 + 4 * part, 4)

def tab_c_wave(k, vI, vG, T, R, sJ, sT):
    sO = k.s()
    vY = T + 6; vHf = T + 7
    k(f"v_lshrrev_b32 v{vY}, 1, v{vG}\nv_and_b32 v{vHf}, 1, v{vG}")
    for q in range(2):
        k(f"s_lshl_b32 s{sT}, s{sJ}, 5\ns_add_u32 s{sT}, s{sT}, {16*q}")
        k(f"v_lshl_add_u32 v{T}, v{vY}, 8, v{vI}\nv_add_u32 v{T}, s{sT}, v{T}")
        k(f"v_sub_u32 v{T+1}, 512, v{T}\nv_and_b32 v{T+1}, 511, v{T+1}")
        k(f"v_lshlrev_b32 v{T}, 3, v{T}\nv_lshl_add_u32 v{T+1}, v{T+1}, 3, 4")
        for e in range(4):
            if e < 3: k(f"v_xor_b32 v{T+4}, v{vY}, v{vHf}")
            else: k(f"v_mov_b32 v{T+4}, v{vY}")
            k(f"v_cmp_eq_u32 vcc, 0, v{T+4}")
            k(f"v_add_u32 v{T+2}, {e}, v{vHf}\nv_lshlrev_b32 v{T+2}, 6, v{T+2}\nv_subrev_u32 v{T+2}, 31, v{T+2}\nv_max_i32 v{T+2}, 0, v{T+2}")
            k(f"v_cndmask_b32 v{T+3}, v{T+1}, v{T}, vcc")
            k(f"v_lshl_add_u32 v{R+4*q+e}, v{T+2}, 6, v{T+3}")
    for q in range(2):
        k(f"s_and_b32 s{sT}, s{sJ}, 1\ns_xor_b32 s{sT}, s{sT}, {q}\ns_lshl_b32 s{sT}, s{sT}, 6")
        k(f"s_lshl_b32 s{sO}, s{sJ}, 7\ns_add_u32 s{sT}, s{sT}, s{sO}\ns_add_u32 s{sT}, s{sT}, {C_TB}")
        k(f"v_and_b32 v{T}, 7, v{vI}\nv_mul_u32_u24 v{T}, {C_TP}, v{T}")
        k(f"v_lshrrev_b32 v{T+1}, 3, v{vI}\nv_lshl_add_u32 v{T}, v{T+1}, 10, v{T}\nv_lshl_add_u32 v{T}, v{vG}, 4, v{T}")
        k(f"v_add_u32 v{R+8+q}, s{sT}, v{T}")
    k(f"s_mul_i32 s{sT}, s{sJ}, {C_TP}\ns_add_u32 s{sT}, s{sT}, {C_TB}")
    for rt in range(2):
        k(f"v_xor_b32 v{T}, {rt}, v{vHf}\nv_lshl_add_u32 v{T}, v{T}, 4, v{vI}\nv_lshl_add_u32 v{T}, v{vG}, 5, v{T}")
        k(f"v_lshl_add_u32 v{R+10+rt}, v{T}, 2, s{sT}")
    return 3

def tab_c_s0(k, vI, vG, T, R, sS0, sSign):
    s8 = 1 / math.sqrt(8)
    vY = T + 6; vHf = T + 7; vSc = R + 8; vS = R + 9
    k(f"v_lshrrev_b32 v{vY}, 1, v{vG}\nv_and_b32 v{vHf}, 1, v{vG}")
    k(f"v_lshrrev_b32 v{T}, 3, v{vI}\nv_cmp_eq_u32 vcc, v{T}, v{vY}\nv_mov_b32 v{T+2}, {fbits(s8)}\nv_cndmask_b32 v{vSc}, 0, v{T+2}, vcc")
    k(f"v_and_b32 v{vS}, 7, v{vI}\nv_lshl_add_u32 v{vS}, v{vS}, 8, s{sS0}")
    for e in range(4):
        k(f"v_add_u32 v{T+4}, {e}, v{vHf}")
        if e < 3: k(f"v_xor_b32 v{T+5}, v{vY}, v{vHf}")
        else: k(f"v_mov_b32 v{T+5}, v{vY}")
        k(f"v_mul_u32_u24 v{T}, v{vS}, v{T+4}\nv_and_b32 v{T}, 0x7ff, v{T}")
        sincos(k, T + 1, T + 2, T, 2048, T + 3)
        k(f"v_mul_f32 v{T+1}, v{vSc}, v{T+1}\nv_mul_f32 v{T+2}, v{vSc}, v{T+2}")
        k(f"v_cvt_pk_f16_f32 v{R+e}, v{T+1}, -v{T+2}\nv_cvt_pk_f16_f32 v{R+4+e}, v{T+2}, v{T+1}")
        k(f"v_mul_lo_u32 v{T}, v{T+5}, s{sSign}\nv_xor_b32 v{R+4+e}, v{T}, v{R+4+e}")
    return 2

WB_RHO = 65 * 16384
def w_job(k, pW, pWS, first, vL, sWave, T, endlabel):
    m00 = k.mark()
    if k.prof: k._st = k._st[:1]; k._stidx = 6
    k(f"s_cmp_ge_u32 s{sWave}, 5\ns_cbranch_scc1 {endlabel}")
    sA = k.s(); sB = k.s(); sT = k.s()
    sJob = k.s(); sRho = k.s(); sWh = k.s(); sK1 = k.s(); sRow = k.s(); sStep = k.s(); sMis = k.s(); sDs = k.s()
    k(f"s_sub_u32 s{sJob}, s2, {first}\ns_lshr_b32 s{sRho}, s{sJob}, 5\ns_bfe_u32 s{sWh}, s{sJob}, 0x10004\ns_and_b32 s{sK1}, s{sJob}, 15")
    k(f"s_lshl_b32 s{sRow}, s{sK1}, 3\ns_add_u32 s{sRow}, s{sRow}, s{sRho}")
    k(f"s_sub_u32 s{sT}, 2048, s{sRow}\ns_cmp_eq_u32 s{sWh}, 1\ns_cselect_b32 s{sRow}, s{sT}, s{sRow}\ns_movk_i32 s{sStep}, 128\ns_cselect_b32 s{sStep}, -128, s{sStep}")
    k(f"s_and_b32 s{sMis}, s{sRow}, 7")
    vSt = k.v(8); vOf = k.v(4)
    k(f"v_lshrrev_b32 v{T+2}, 2, v0\nv_and_b32 v{T+3}, 3, v0")
    k(f"v_cmp_gt_u32 vcc, 66, v{T+2}\nv_mov_b32 v{T}, {OOB-0x1000000}\nv_lshlrev_b32 v{T+4}, 4, v{T+2}\nv_cndmask_b32 v{T+4}, v{T}, v{T+4}, vcc")
    for r in range(4):
        k(f"v_lshl_add_u32 v{T+1}, v{T+3}, 2, {r}\nv_mul_i32_i24 v{T+1}, s{sStep}, v{T+1}\nv_add_u32 v{T+1}, s{sRow}, v{T+1}\nv_and_b32 v{T+1}, 2047, v{T+1}")
        k(f"v_mul_u32_u24 v{T+1}, 1026, v{T+1}\nv_and_b32 v{T+1}, -16, v{T+1}\nv_add_u32 v{vOf+r}, v{T+1}, v{T+4}")
    k("s_waitcnt lgkmcnt(0)")
    k.stamp()
    dR = k.srd(pW, W_BYTES); dI = k.srd(pW + 2, W_BYTES)
    RR = k.v(16); RI = k.v(16); P = k.v(32)
    for r in range(4):
        k(f"buffer_load_dwordx4 {vr(RR+4*r,4)}, v{vOf+r}, {sr(dR,4)}, 0 offen nt")
        k(f"buffer_load_dwordx4 {vr(RI+4*r,4)}, v{vOf+r}, {sr(dI,4)}, 0 offen nt")
    k(f"s_lshl_b32 s{sDs}, s{sStep}, 4")
    k(f"v_lshlrev_b32 v{T+1}, 3, v{T+2}\nv_subrev_u32 v{T+1}, s{sMis}, v{T+1}\nv_mul_lo_u32 v{T+1}, v{T+1}, s{sDs}")
    k(f"s_lshl_b32 s{sT}, s{sWh}, 20\nv_add_u32 v{T+1}, s{sT}, v{T+1}\nv_lshl_add_u32 v{vSt}, v{T+3}, 4, v{T+1}")
    for j in range(1, 8): k(f"v_add_u32 v{vSt+j}, s{sDs}, v{vSt+j-1}")
    dB = k.s(4)
    k(f"s_mul_i32 s{sA}, s{sRho}, {WB_RHO}\ns_add_u32 s{sA}, s{sA}, {WS_WB}\ns_add_u32 s{dB}, s{pWS}, s{sA}\ns_addc_u32 s{dB+1}, s{pWS+1}, 0\ns_mov_b32 s{dB+2}, {513*2048}\ns_mov_b32 s{dB+3}, 0x20000")
    dMx = k.srd(pWS, 640, WS_WMAX)
    k(f"s_lshl_b32 s{sA}, s{sWh}, 10\ns_lshl_b32 s{sB}, s{sK1}, 6\ns_add_u32 s{sA}, s{sA}, s{sB}")
    sM7 = k.s(); vMx = k.v(); sP0 = k.s(); sP1 = k.s()
    k(f"s_mov_b32 s{sM7}, 0x7fff7fff\ns_mov_b32 s{sP0}, 0x05040100\ns_mov_b32 s{sP1}, 0x07060302")
    k.stamp()
    k("s_waitcnt vmcnt(0)")
    k.stamp()
    for j in range(8):
        for r in range(4):
            k(f"v_perm_b32 v{P+4*j+r}, v{RI+4*r+(j>>1)}, v{RR+4*r+(j>>1)}, s{sP1 if j & 1 else sP0}")
        k(f"buffer_store_dwordx4 {vr(P+4*j,4)}, v{vSt+j}, {sr(dB,4)}, s{sA} offen sc1")
    k.stamp()
    k(f"v_and_b32 v{vMx}, s{sM7}, v{RR}")
    for r in range(1, 32):
        k(f"v_and_b32 v{RR+r}, s{sM7}, v{RR+r}\nv_pk_max_u16 v{vMx}, v{vMx}, v{RR+r}")
    k(f"v_lshrrev_b32 v{T}, 16, v{vMx}\nv_and_b32 v{vMx}, 0xffff, v{vMx}\nv_max_u32 v{vMx}, v{vMx}, v{T}")
    wave_reduce(k, "v_max_u32", [vMx], [sA])
    k(f"s_lshl_b32 s{sT}, s{sWave}, 2\nv_mov_b32 v{T}, s{sT}\nv_mov_b32 v{vMx}, s{sA}\nds_write_b32 v{T}, v{vMx}")
    if k.prof: k("s_waitcnt vmcnt(0)")
    k.stamp_flush()
    k("s_waitcnt lgkmcnt(0)\ns_barrier")
    k(f"s_cmp_lg_u32 s{sWave}, 0\ns_cbranch_scc1 {endlabel}")
    k(f"v_mov_b32 v{T}, 0\nds_read_b128 {vr(RR,4)}, v{T}\nds_read_b32 v{RR+4}, v{T} offset:16\ns_lshl_b32 s{sT}, s{sJob}, 2\ns_waitcnt lgkmcnt(0)")
    k(f"v_max3_u32 v{RR}, v{RR}, v{RR+1}, v{RR+2}\nv_max3_u32 v{RR}, v{RR}, v{RR+3}, v{RR+4}")
    k(f"buffer_store_dword v{RR}, v{T}, {sr(dMx,4)}, s{sT} offen")
    k("s_endpgm")
    k.release(m00)

NSCAN = 129
def scan_job(k, pW, pWS, first, vL, sWave, T, endlabel):
    m00 = k.mark()
    sT = k.s(); sO = k.s(); sM7 = k.s(); sA = k.s(); sJob = k.s()
    k(f"s_sub_u32 s{sJob}, s2, {first}\ns_lshl_b32 s{sO}, s{sJob}, 14\nv_lshlrev_b32 v{T}, 4, v0\nv_add_u32 v{T+1}, 8192, v{T}\ns_mov_b32 s{sM7}, 0x7fff7fff")
    k("s_waitcnt lgkmcnt(0)")
    dR = k.srd(pW, W_BYTES); dI = k.srd(pW + 2, W_BYTES); dMx = k.srd(pWS, 640, WS_WMAX)
    X = k.v(16)
    for h in range(2):
        k(f"buffer_load_dwordx4 {vr(X+8*h,4)}, v{T+h}, {sr(dR,4)}, s{sO} offen\nbuffer_load_dwordx4 {vr(X+8*h+4,4)}, v{T+h}, {sr(dI,4)}, s{sO} offen")
    k("s_waitcnt vmcnt(0)")
    for i in range(16): k(f"v_and_b32 v{X+i}, s{sM7}, v{X+i}")
    for n in (8, 4, 2, 1):
        for i in range(n): k(f"v_pk_max_u16 v{X+i}, v{X+i}, v{X+n+i}")
    k(f"v_lshrrev_b32 v{T}, 16, v{X}\nv_and_b32 v{X}, 0xffff, v{X}\nv_max_u32 v{X}, v{X}, v{T}")
    wave_reduce(k, "v_max_u32", [X], [sA])
    k(f"s_lshl_b32 s{sT}, s{sWave}, 2\nv_mov_b32 v{T}, s{sT}\nv_mov_b32 v{X}, s{sA}\nds_write_b32 v{T}, v{X}")
    k("s_waitcnt lgkmcnt(0)\ns_barrier")
    k(f"s_cmp_lg_u32 s{sWave}, 0\ns_cbranch_scc1 {endlabel}")
    k(f"v_mov_b32 v{T}, 0\nds_read_b128 {vr(X,4)}, v{T}\nds_read_b128 {vr(X+4,4)}, v{T} offset:16\ns_lshl_b32 s{sT}, s{sJob}, 2\ns_waitcnt lgkmcnt(0)")
    k(f"v_max3_u32 v{X}, v{X}, v{X+1}, v{X+2}\nv_max3_u32 v{X+4}, v{X+4}, v{X+5}, v{X+6}\nv_max3_u32 v{X}, v{X}, v{X+3}, v{X+7}\nv_max_u32 v{X}, v{X}, v{X+4}")
    k(f"buffer_store_dword v{X}, v{T}, {sr(dMx,4)}, s{sT} offen")
    k("s_endpgm")
    k.release(m00)

K0_NG = 384; K0_NW = 0; K0_NS = 32
def gen_k0(pf=(0, 0)):
    G0 = 10
    G2 = G0; G3 = 256 + G0 + K0_NS
    k = Kern("k0_kernel", G3, 768, 4096)
    pCW = k.s(4); pWS = k.s(2)
    k(f"s_cmp_ge_u32 s2, {G3}\ns_cbranch_scc1 K0_end")
    k.stamp(True)
    k(f"s_load_dwordx4 {sr(pCW,4)}, s[0:1], 64")
    k(f"s_load_dwordx2 {sr(pWS,2)}, s[0:1], 96")
    k.stamp_init2(0, pWS)
    vL, vI, vG, sWave, T = lane_ids(k)
    sT = k.s()
    k(f"s_cmp_ge_u32 s2, 256\ns_cbranch_scc1 K0_side")
    gemv_job(k, pCW, pCW + 2, pWS, vL, sWave, T, "K0_end")
    k("K0_side:")
    k(f"s_cmp_ge_u32 s{sWave}, 8\ns_cbranch_scc1 K0_end\ns_setprio 2\ns_sub_u32 s2, s2, 256")
    k(f"s_cmp_lt_u32 s2, {G0}\ns_cbranch_scc1 K0_tab")
    R = k.v(56); vOff = k.v(); sO = k.s(); sSign = k.s()
    def store(nq, base_off, soff=None, R0=R):
        d = k.srd(pWS, 0x100000, base_off)
        for q in range(nq):
            if q % 4 == 0 and q: k(f"v_add_u32 v{vOff}, 4096, v{vOff}")
            k(f"buffer_store_dwordx4 {vr(R0+4*q,4)}, v{vOff}, {sr(d,4)}, {'s%d' % soff if soff is not None else 0} offen offset:{1024*(q%4)}")
    k("K0_s0:")
    m = k.mark()
    sS0 = k.s()
    k(f"s_sub_u32 s{sS0}, s2, {G2}\ns_lshl_b32 s{sS0}, s{sS0}, 3\ns_add_u32 s{sS0}, s{sS0}, s{sWave}\ns_mov_b32 s{sSign}, 0x80008000")
    k(f"v_lshlrev_b32 v{vOff}, 4, v{vL}")
    tab_a_s0(k, vI, vG, T, R, sS0)
    k(f"s_lshl_b32 s{sO}, s{sS0}, 12\ns_waitcnt lgkmcnt(0)")
    store(4, WS_TAS, sO)
    tab_c_s0(k, vI, vG, T, R + 16, sS0, sSign)
    k(f"s_lshl_b32 s{sO}, s{sS0}, 11")
    store(2, WS_TCS, sO, R + 16)
    k("s_endpgm")
    k.release(m)
    k("K0_tab:")
    k(f"v_lshlrev_b32 v{vOff}, 4, v{vL}\ns_waitcnt lgkmcnt(0)")
    k(f"s_cmp_eq_u32 s2, 0\ns_cbranch_scc1 K0_tw_a\ns_cmp_eq_u32 s2, 1\ns_cbranch_scc1 K0_tw_c")
    k(f"s_cmp_eq_u32 s2, 2\ns_cbranch_scc1 K0_fl")
    k(f"s_cmp_lg_u32 s{sWave}, 0\ns_cbranch_scc1 K0_end")
    for j in range(3, G0 - 1): k(f"s_cmp_eq_u32 s2, {j}\ns_cbranch_scc1 K0_t{j}")
    k(f"s_branch K0_t{G0-1}")
    k("K0_fl:")
    m = k.mark()
    for i in range(4): k(f"v_mov_b32 v{R+i}, 0")
    k("s_endpgm"); k.release(m)
    for part in range(3):
        k(f"K0_t{3+part}:"); q0, n = tab_a_common(k, vI, vG, T, R, part); store(n, WS_TAC + 1024 * q0, None, R + 4 * q0); k("s_endpgm"); k.release(m)
        k(f"K0_t{6+part}:"); q0, n = tab_c_common(k, vI, vG, T, R, part); store(n, WS_TCC + 1024 * q0, None, R + 4 * q0); k("s_endpgm"); k.release(m)
    k("K0_t9:"); store(tab_b_common(k, vI, vG, T, R), WS_TBC); k("s_endpgm"); k.release(m)
    k("K0_tw_a:")
    n = tab_a_wave(k, vI, vG, T, R, sWave, sT); k(f"s_lshl_b32 s{sO}, s{sWave}, 11"); store(n, WS_TAW, sO); k("s_endpgm"); k.release(m)
    k("K0_tw_c:")
    n = tab_c_wave(k, vI, vG, T, R, sWave, sT); k(f"s_mul_i32 s{sO}, s{sWave}, 3072"); store(n, WS_TCW, sO); k.release(m)
    k("K0_end:\ns_endpgm")
    return k


WBYTES = 1024 * 3584 * 2
def pf_mall(k, pP, first, n, sId, sWave, vDum, T):
    if n == 0: return
    m = k.mark(); sO = k.s()
    lab = f"PF{len(k.lines)}_{k.name}"
    nw = (n + 63) // 64
    if nw < 8: k(f"s_cmp_ge_u32 s{sWave}, {nw}\ns_cbranch_scc1 {lab}")
    k(f"v_lshlrev_b32 v{T}, 7, v0\ns_mul_i32 s{sO}, s{sId}, {n*128}\ns_add_u32 s{sO}, s{sO}, {first*128}")
    d = k.srd(pP, min((first + 256 * n) * 128, WBYTES))
    k(f"buffer_load_dword v{vDum}, v{T}, {sr(d,4)}, s{sO} offen")
    if nw < 8: k(f"{lab}:")
    k.release(m)

def pf_uni(k, pP, first, n, sId, sWave, vL, vDum, T, nid=256):
    if n == 0: return
    assert n % 8 == 0
    m = k.mark(); sO = k.s(); sE = k.s()
    d = k.srd(pP, WBYTES)
    k(f"s_lshl_b32 s{sO}, s{sId}, 3\ns_add_u32 s{sO}, s{sO}, s{sWave}\ns_mul_i32 s{sO}, s{sO}, {n*16}\ns_add_u32 s{sO}, s{sO}, {first*128}")
    k(f"s_add_u32 s{sE}, s{sO}, {n*16}\ns_min_u32 s{d+2}, s{sE}, {min((first + nid * n) * 128, WBYTES)}\nv_lshlrev_b32 v{T}, 7, v{vL}")
    k(f"buffer_load_dword v{vDum}, v{T}, {sr(d,4)}, s{sO} offen")
    k.release(m)

C_MV = 146 * 16
def gen_a(pf=(0, 0), st_flags="sc1", nxt="fc_kernel", pfa=32):
    TAB = 16640; MOD = TAB + 18 * 1024; MX = MOD + 8192
    k = Kern("fa_kernel", 256, 512, MX + 32)
    pX = k.s(2); pWS = k.s(2); pW = k.s(2); pF = k.s(4)
    k(f"s_cmp_ge_u32 s2, 256\ns_cbranch_scc1 A_end")
    k.stamp(True)
    k(f"s_load_dwordx2 {sr(pWS,2)}, s[0:1], 96")
    sMask = k.s(); sT = k.s(); sJ = k.s()
    vL = k.v(); vOff = k.v(); T = k.v(8)
    k(f"v_lshrrev_b32 v{T}, 6, v0\nv_and_b32 v{vL}, 63, v0")
    k(f"v_readfirstlane_b32 s{sJ}, v{T}")
    k(f"v_lshlrev_b32 v{vOff}, 4, v{vL}")
    k(f"s_mov_b32 s{sMask}, 0xffff0000")
    k(f"s_load_dwordx4 {sr(pF,4)}, s[0:1], 8")
    k(f"s_load_dwordx2 {sr(pX,2)}, s[0:1], 0")
    if pf[1]: k(f"s_load_dwordx2 {sr(pW,2)}, s[0:1], {pfa}")
    sRow = k.s(); sQ0 = k.s(); sQ1 = k.s(); sS = k.s(); sL = k.s()
    k(f"v_lshlrev_b32 v{T}, 4, v0")
    k(f"s_lshl_b32 s{sRow}, s{sJ}, 8\ns_add_u32 s{sRow}, s{sRow}, s2\ns_lshl_b32 s{sRow}, s{sRow}, 11")
    k(f"s_lshl_b32 s{sL}, s{sJ}, 10\ns_add_u32 s{sQ0}, s{sL}, {WS_TAC}\ns_add_u32 s{sQ1}, s{sL}, {WS_TAC+8192}")
    k(f"s_lshl_b32 s{sS}, s2, 12\ns_add_u32 s{sS}, s{sS}, s{sL}\ns_add_u32 s{sT}, s{sS}, {WS_TAS-6*1024}")
    k(f"s_cmp_ge_u32 s{sJ}, 6\ns_cselect_b32 s{sQ1}, s{sT}, s{sQ1}\ns_add_u32 s{sS}, s{sS}, {WS_TAS+2048}")
    k("s_waitcnt lgkmcnt(0)")
    k.stamp_init2(1, pWS); k.stamp()
    dX = k.srd(pX, 2048 * 2048); dW = k.srd(pWS, WS_ZA)
    XP = k.v(8); MP = k.v(16); AD = k.v(8)
    k(f"buffer_load_dwordx4 {vr(XP,4)}, v{vOff}, {sr(dX,4)}, s{sRow} offen nt")
    k(f"buffer_load_dwordx4 {vr(XP+4,4)}, v{vOff}, {sr(dX,4)}, s{sRow} offen offset:1024 nt")
    for p in range(4):
        k(f"s_mov_b32 s{sT}, {WS_MODP + p*8192}\nbuffer_load_dwordx4 {vr(MP+4*p,4)}, v{T}, {sr(dW,4)}, s{sT} offen")
    dZ = k.srd(pWS, ZA_BYTES, WS_ZA)
    vR3 = AD; vSt = AD + 4
    sBase = k.s(); sAdd = k.s(); sF = k.s(); sS0 = k.s()
    k(f"s_lshl_b32 s{sBase}, s{sJ}, 11\ns_lshr_b32 s{sT}, s{sJ}, 2\ns_lshl_b32 s{sT}, s{sT}, 6\ns_add_u32 s{sBase}, s{sBase}, s{sT}")
    k(f"s_cmp_ge_u32 s{sJ}, 4\ns_cselect_b32 s{sAdd}, 1.0, 0")
    k(f"s_lshl_b32 s{sF}, s2, 2\ns_and_b32 s{sF}, s{sF}, 48\ns_lshl_b32 s{sS0}, s2, 6")
    vW1 = k.v(); vR1 = k.v(); vMw = k.v(); vW2 = k.v(2)
    k(f"v_add_u32 v{vW1}, s{sBase}, v{vOff}\nv_lshl_add_u32 v{vR1}, v{vL}, 2, s{sBase}")
    k(f"v_and_b32 v{T}, 1, v0\nv_lshlrev_b32 v{T}, 10, v{T}\nv_bfe_u32 v{T+1}, v0, 1, 6\nv_lshl_add_u32 v{T}, v{T+1}, 4, v{T}")
    k(f"s_lshr_b32 s{sT}, s{sJ}, 1\ns_lshl_b32 s{sT}, s{sT}, 11\ns_add_u32 s{sT}, s{sT}, {MOD}\nv_add_u32 v{vMw}, s{sT}, v{T}")
    k(f"v_lshrrev_b32 v{T}, 4, v{vL}\nv_and_b32 v{T+1}, 7, v{vL}\nv_xor_b32 v{T}, v{T}, v{T+1}\nv_and_b32 v{T+1}, 15, v{vL}\nv_lshlrev_b32 v{T+1}, 3, v{T+1}\nv_add_u32 v{T}, v{T}, v{T+1}")
    k(f"v_lshl_add_u32 v{vW2}, v{T}, 4, s{sBase}\nv_xor_b32 v{T}, 4, v{T}\nv_lshl_add_u32 v{vW2+1}, v{T}, 4, s{sBase}")
    k(f"s_cmp_ge_u32 s{sJ}, 2\ns_cbranch_scc1 A_no3")
    k(f"s_add_u32 m0, s{sL}, {TAB+16384}\nbuffer_load_dwordx4 v{vOff}, {sr(dW,4)}, s{sS} offen lds")
    k("A_no3:")
    k(f"s_add_u32 m0, s{sL}, {TAB}\nbuffer_load_dwordx4 v{vOff}, {sr(dW,4)}, s{sQ0} offen lds")
    k(f"s_add_u32 m0, s{sL}, {TAB+8192}\nbuffer_load_dwordx4 v{vOff}, {sr(dW,4)}, s{sQ1} offen lds")
    k(f"s_lshl_b32 s{sT}, s{sJ}, 11\ns_add_u32 s{sT}, s{sT}, {WS_TAW}")
    k(f"buffer_load_dwordx4 {vr(AD,4)}, v{vOff}, {sr(dW,4)}, s{sT} offen\nbuffer_load_dwordx4 {vr(AD+4,4)}, v{vOff}, {sr(dW,4)}, s{sT} offen offset:1024")
    sRo = k.s(8); sDs = k.s(2); vWc = k.v(2); vWd = k.v(2)
    mm = k.mark()
    sJb = k.s(); sUn = k.s(); sBl = k.s(); sRh = k.s(); sWh = k.s(); sKg = k.s(); sSt = k.s(); sA = k.s()
    for n in range(2):
        k(f"s_lshl_b32 s{sJb}, s2, 3\ns_add_u32 s{sJb}, s{sJb}, s{sJ}")
        if n == 0:
            k(f"s_lshr_b32 s{sUn}, s{sJb}, 3\ns_and_b32 s{sBl}, s{sJb}, 7\ns_lshr_b32 s{sRh}, s{sUn}, 7\ns_add_u32 s{sRh}, s{sRh}, 1")
        else:
            k(f"s_lshr_b32 s{sUn}, s{sJb}, 3\ns_and_b32 s{sBl}, s{sJb}, 7\ns_lshr_b32 s{sA}, s{sJb}, 2\ns_and_b32 s{sT}, s{sJb}, 3\ns_lshr_b32 s{sRh}, s{sJb}, 7\ns_and_b32 s{sRh}, s{sRh}, 4")
            k(f"s_cmp_lt_u32 s{sJb}, 1024\ns_cselect_b32 s{sUn}, s{sUn}, s{sA}\ns_cselect_b32 s{sBl}, s{sBl}, s{sT}\ns_cselect_b32 s{sRh}, 3, s{sRh}")
        k(f"s_bfe_u32 s{sWh}, s{sUn}, 0x10006\ns_and_b32 s{sKg}, s{sUn}, 63")
        k(f"s_lshr_b32 s{sA}, s{sKg}, 2\ns_lshl_b32 s{sA}, s{sA}, 3\ns_add_u32 s{sA}, s{sA}, s{sRh}\ns_and_b32 s{sT}, s{sKg}, 3\ns_lshl_b32 s{sT}, s{sT}, 9\ns_add_u32 s{sA}, s{sA}, s{sT}")
        k(f"s_sub_u32 s{sT}, 2048, s{sA}\ns_cmp_eq_u32 s{sWh}, 1\ns_cselect_b32 s{sA}, s{sT}, s{sA}\ns_movk_i32 s{sSt}, 128\ns_cselect_b32 s{sSt}, -128, s{sSt}\ns_cselect_b64 vcc, -1, 0")
        k(f"s_lshl_b32 s{sT}, s{sBl}, 7\nv_lshl_add_u32 v{T}, v{vL}, 1, s{sT}\nv_sub_u32 v{T+1}, 1024, v{T}\nv_cndmask_b32 v{vWc+n}, v{T}, v{T+1}, vcc")
        for v in range(4):
            k(f"s_and_b32 s{sT}, s{sA}, 2047\ns_mul_i32 s{sRo+4*n+v}, s{sT}, 1026")
            if v < 3: k(f"s_add_u32 s{sA}, s{sA}, s{sSt}")
        k(f"s_lshl_b32 s{sA}, s{sRh}, 6\ns_sub_i32 s{sA}, s{sA}, 31\ns_max_i32 s{sA}, s{sA}, 0\ns_lshl_b32 s{sT}, s{sBl}, 3\ns_add_u32 s{sA}, s{sA}, s{sT}\ns_mul_i32 s{sA}, s{sA}, {ZA_PITCH}")
        k(f"s_and_b32 s{sT}, s{sUn}, 127\ns_lshl_b32 s{sT}, s{sT}, 7\ns_add_u32 s{sDs+n}, s{sA}, s{sT}\ns_bfe_u32 s{sT}, s{sKg}, 0x30002")
        k(f"v_and_b32 v{T}, 7, v{vL}\nv_xor_b32 v{T}, s{sT}, v{T}\nv_lshrrev_b32 v{T+1}, 3, v{vL}\nv_mul_u32_u24 v{T+1}, {ZA_PITCH}, v{T+1}\nv_lshl_add_u32 v{vWd+n}, v{T}, 4, v{T+1}")
    k.release(mm)
    dR = k.srd(pF, W_BYTES); dI = k.srd(pF + 2, W_BYTES); dB = k.srd(pWS, ZA_BYTES, WS_WB)
    WV = k.v(16); SP = k.v(4)
    k(f"v_and_b32 v{T}, 7, v{vL}\nv_lshrrev_b32 v{T+1}, 3, v{vL}\nv_mul_u32_u24 v{SP+2}, 1026, v{T}\nv_lshl_add_u32 v{SP+2}, v{T+1}, 9, v{SP+2}")
    k(f"v_lshlrev_b32 v{SP+3}, 2, v{T}\nv_lshl_add_u32 v{SP+3}, v{T+1}, 13, v{SP+3}")
    k(f"v_subrev_u32 v{T}, 448, v0\nv_cmp_gt_u32 vcc, 24, v{T}\nv_mov_b32 v{T}, {OOB}\nv_cndmask_b32 v{SP+2}, v{T}, v{SP+2}, vcc\nv_cndmask_b32 v{SP+3}, v{T}, v{SP+3}, vcc")
    X = k.v(16); RC = k.v(2); vE = k.v(2); vMax = k.v()
    sP = k.s(2); sSum = k.s(2); sMax = k.s()
    k.stamp()
    k("s_waitcnt vmcnt(8)")
    unpack_bf16(k, X, XP, 8, sMask)
    def modfin(k):
        k("s_waitcnt vmcnt(4)")
        for i in (0, 2): k(f"v_pk_add_f32 {P2(MP+i)}, {P2(MP+i)}, {P2(MP+4+i)}\nv_pk_add_f32 {P2(MP+8+i)}, {P2(MP+8+i)}, {P2(MP+12+i)}")
        for i in (0, 2): k(f"v_pk_add_f32 {P2(MP+i)}, {P2(MP+i)}, {P2(MP+8+i)}")
        k(f"v_cvt_pk_bf16_f32 v{MP+4}, v{MP}, v{MP+1}\nv_cvt_pk_bf16_f32 v{MP+5}, v{MP+2}, v{MP+3}")
        unpack_bf16(k, MP, MP + 4, 2, sMask)
        for i in range(4): k(f"v_add_f32 v{MP+i}, s{sAdd}, v{MP+i}")
        k(f"v_cvt_pk_bf16_f32 v{MP+4}, v{MP}, v{MP+1}\nv_cvt_pk_bf16_f32 v{MP+5}, v{MP+2}, v{MP+3}")
        unpack_bf16(k, MP, MP + 4, 2, sMask)
        k(f"ds_write_b128 v{vMw}, {vr(MP,4)}")
        k(f"v_max3_f32 v{vMax}, abs(v{MP}), abs(v{MP+1}), abs(v{MP+2})\nv_max_f32 v{vMax}, abs(v{MP+3}), v{vMax}")
    n0 = len(k.lines)
    ln_pk(k, X, T, RC, sP, sSum, cap(modfin), ("v_max_f32", vMax, sMax))
    idx = max(i for i in range(n0, len(k.lines)) if k.lines[i].startswith("v_readlane_b32")) + 1
    k.lines[idx:idx] = [f"s_lshl_b32 s{sT}, s{sJ}, 2", f"s_add_u32 s{sT}, s{sT}, {MX}", f"v_mov_b32 v{T+5}, s{sT}", f"v_mov_b32 v{vMax}, s{sMax}", f"ds_write_b32 v{T+5}, v{vMax}"]
    k.stamp()
    k("s_waitcnt vmcnt(0) lgkmcnt(0)\ns_barrier")
    k.stamp()
    SA = k.v(16); CA = k.v(16); FA = k.v(16); FB = k.v(16)
    assert CA == SA + 16
    k(f"v_mov_b32 v{T}, {MX}\nds_read_b128 {vr(MP,4)}, v{T}\nds_read_b128 {vr(MP+4,4)}, v{T} offset:16")
    for q in range(2):
        for h in range(2):
            k(f"ds_read_b128 {vr(CA+8*q+4*h,4)}, v{vOff} offset:{MOD+4096+2048*q+1024*h}")
            k(f"ds_read_b128 {vr(SA+8*q+4*h,4)}, v{vOff} offset:{MOD+2048*q+1024*h}")
    def fq(ct, ks, ri): return TAB + 1024 * ((ct * 2 + ks) * 2 + ri)
    for ct in range(2):
        for ri in range(2): k(f"ds_read_b128 {vr(FA+(ct*2+ri)*4,4)}, v{vOff} offset:{fq(ct,0,ri)}")
    def wloads(n):
        for v in range(4):
            k(f"buffer_load_ushort v{WV+8*n+v}, v{vWc+n}, {sr(dR,4)}, s{sRo+4*n+v} offen nt")
            k(f"buffer_load_ushort v{WV+8*n+4+v}, v{vWc+n}, {sr(dI,4)}, s{sRo+4*n+v} offen nt")
    wloads(0)
    k("s_waitcnt lgkmcnt(12)")
    k(f"v_max3_f32 v{MP}, v{MP}, v{MP+1}, v{MP+2}\nv_max3_f32 v{MP+4}, v{MP+4}, v{MP+5}, v{MP+6}\nv_max3_f32 v{MP}, v{MP}, v{MP+3}, v{MP+7}\nv_max_f32 v{MP}, v{MP}, v{MP+4}")
    k(f"v_frexp_exp_i32_f32 v{vE}, v{MP}\nv_sub_u32 v{vE}, 3, v{vE}\nv_min_i32 v{vE}, 60, v{vE}\nv_max_i32 v{vE}, {(-60)&0xffffffff}, v{vE}\nv_ldexp_f32 v{RC}, 1.0, v{vE}")
    Z = XP
    for hq in range(4):
        k(f"s_waitcnt lgkmcnt({10-2*hq + (1 if hq >= 2 else 0)})")
        for i in (2 * hq, 2 * hq + 1): k(f"v_pk_fma_f32 {P2(X+2*i)}, {P2(X+2*i)}, {P2(CA+2*i)}, {P2(SA+2*i)}")
        for i in (2 * hq, 2 * hq + 1): k(f"v_pk_mul_f32 {P2(X+2*i)}, {P2(X+2*i)}, {P2(RC)} op_sel_hi:[1,0]")
        for i in (2 * hq, 2 * hq + 1): k(f"v_cvt_pk_f16_f32 v{Z+i}, v{X+2*i}, v{X+2*i+1}")
        if hq == 1: k(f"ds_write_b128 v{vW1}, {vr(Z,4)}")
    k(f"ds_write_b128 v{vW1}, {vr(Z+4,4)} offset:1024")
    k.stamp()
    OP = MP
    for h in range(4): k(f"ds_read2st64_b32 {vr(OP+2*h,2)}, v{vR1} offset0:{2*h} offset1:{2*h+1}")
    for ct in range(2):
        for ri in range(2): k(f"ds_read_b128 {vr(FB+(ct*2+ri)*4,4)}, v{vOff} offset:{fq(ct,1,ri)}")
    TW = SA; F2 = MP + 8
    for q in range(4): k(f"ds_read_b128 {vr(TW+4*q,4)}, v{vOff} offset:{TAB+8192+1024*q}")
    for q in range(2): k(f"ds_read_b128 {vr(F2+4*q,4)}, v{vOff} offset:{TAB+12288+1024*q}")
    wloads(1)
    D1 = X
    k("s_waitcnt lgkmcnt(12)")
    for o in range(4): k(f"{MF} {vr(D1+o*4,4)}, {vr(OP,4)}, {vr(FA+o*4,4)}, 0")
    k("s_waitcnt lgkmcnt(6)")
    for o in range(4): k(f"{MF} {vr(D1+o*4,4)}, {vr(OP+4,4)}, {vr(FB+o*4,4)}, {vr(D1+o*4,4)}")
    F3 = FA
    for q in range(4): k(f"ds_read_b128 {vr(F3+4*q,4)}, v{vOff} offset:{TAB+14336+1024*q}")
    k(f"s_mul_i32 s{sT}, s2, 8208")
    k(f"buffer_load_ushort v{SP}, v{SP+2}, {sr(dR,4)}, s{sT} offen\nbuffer_load_ushort v{SP+1}, v{SP+2}, {sr(dI,4)}, s{sT} offen")
    for q in range(4): k(f"v_xor_b32 v{vSt+q}, s{sF}, v{vSt+q}")
    k("s_waitcnt lgkmcnt(4)")
    D2 = CA
    for ct in range(2):
        tw_block(k, D1 + ct * 8, TW + 4 * ct, TW + 8 + 4 * ct, False, T, OP + 4 * ct)
        k(f"{MF} {vr(D2+ct*8,4)}, {vr(OP+4*ct,4)}, {vr(F2,4)}, 0")
        k(f"{MF} {vr(D2+ct*8+4,4)}, {vr(OP+4*ct,4)}, {vr(F2+4,4)}, 0")
    pf_uni(k, pW, pf[0], pf[1], 2, sJ, vL, T + 6, T + 4)
    code_pf_w(k, "fb_kernel", nxt, sJ, 6, IDX_STD, vL, T + 4, T + 7)
    for ct in range(2):
        for v in range(4): k(f"v_cvt_pk_f16_f32 v{Z+4*ct+v}, v{D2+ct*8+v}, v{D2+ct*8+4+v}")
        k(f"ds_write_b128 v{vW2+ct}, {vr(Z+4*ct,4)}")
    k.stamp()
    k("s_waitcnt lgkmcnt(0)\ns_barrier")
    k.stamp()
    O3 = X
    for q in range(2):
        for x in range(2):
            d = O3 + (q * 2 + x) * 4
            k(f"ds_read2st64_b32 {vr(d,2)}, v{vR3+2*q+x} offset0:0 offset1:8")
            k(f"ds_read2st64_b32 {vr(d+2,2)}, v{vR3+2*q+x} offset0:16 offset1:24")
    D3 = SA
    for q in range(2):
        for x in range(2):
            k(f"s_waitcnt lgkmcnt({6-2*(2*q+x)})")
            for ri in range(2):
                d = D3 + ((q * 2 + x) * 2 + ri) * 4
                k(f"{MF} {vr(d,4)}, {vr(O3+(q*2+x)*4,4)}, {vr(F3+(x*2+ri)*4,4)}, 0")
    P = MP
    for q in range(2):
        for v in range(4):
            for x in range(2):
                d = D3 + ((q * 2 + x) * 2) * 4 + v
                k(f"v_cvt_pk_f16_f32 v{P+8*q+2*v+x}, v{d}, v{d+4}")
        for e in range(4): k(f"v_permlane32_swap_b32 v{P+8*q+e}, v{P+8*q+4+e}")
        for ins in range(2):
            k(f"buffer_store_dwordx4 {vr(P+8*q+4*ins,4)}, v{vSt+2*q+ins}, {sr(dZ,4)}, s{sS0} offen {st_flags}")
    k(f"s_waitcnt vmcnt({5 if pf[1] else 4})")
    for n in range(2):
        for v in range(4): k(f"v_lshl_or_b32 v{WV+8*n+v}, v{WV+8*n+4+v}, 16, v{WV+8*n+v}")
        k(f"buffer_store_dwordx4 {vr(WV+8*n,4)}, v{vWd+n}, {sr(dB,4)}, s{sDs+n} offen sc1")
    k(f"v_lshl_or_b32 v{SP}, v{SP+1}, 16, v{SP}\ns_lshl_b32 s{sT}, s2, 5\ns_add_u32 s{sT}, s{sT}, {WS_SPC}")
    k(f"buffer_store_dword v{SP}, v{SP+3}, {sr(dW,4)}, s{sT} offen")
    sM7 = sAdd
    k(f"s_mov_b32 s{sM7}, 0x7fff7fff\nv_and_b32 v{SP+1}, s{sM7}, v{SP}")
    for n in range(2):
        for v in range(4): k(f"v_and_b32 v{WV+8*n+4+v}, s{sM7}, v{WV+8*n+v}\nv_pk_max_u16 v{SP+1}, v{SP+1}, v{WV+8*n+4+v}")
    k(f"v_lshrrev_b32 v{T}, 16, v{SP+1}\nv_and_b32 v{SP+1}, 0xffff, v{SP+1}\nv_max_u32 v{SP+1}, v{SP+1}, v{T}")
    wave_reduce(k, "v_max_u32", [SP + 1], [sMax])
    k(f"s_lshl_b32 s{sT}, s{sJ}, 2\ns_add_u32 s{sT}, s{sT}, {MX}\nv_mov_b32 v{T}, s{sT}\nv_mov_b32 v{SP+1}, s{sMax}\nds_write_b32 v{T}, v{SP+1}")
    k("s_waitcnt lgkmcnt(0)\ns_barrier")
    k(f"s_cmp_lg_u32 s{sJ}, 0\ns_cbranch_scc1 A_noscal")
    k(f"ds_read_b128 {vr(X,4)}, v{T}\nds_read_b128 {vr(X+4,4)}, v{T} offset:16\ns_lshl_b32 s{sT}, s2, 2\ns_add_u32 s{sT}, s{sT}, {WS_WMAX}\nv_mov_b32 v{T}, 0\ns_waitcnt lgkmcnt(0)")
    k(f"v_max3_u32 v{X}, v{X}, v{X+1}, v{X+2}\nv_max3_u32 v{X+4}, v{X+4}, v{X+5}, v{X+6}\nv_max3_u32 v{X}, v{X}, v{X+3}, v{X+7}\nv_max_u32 v{X}, v{X}, v{X+4}")
    k(f"buffer_store_dword v{X}, v{T}, {sr(dW,4)}, s{sT} offen")
    k(f"s_cmp_lg_u32 s2, 0\ns_cbranch_scc1 A_noscal")
    k(f"v_mov_b32 v{T}, {WS_SCAL}\nbuffer_store_dword v{vE}, v{T}, {sr(dW,4)}, 0 offen")
    k("A_noscal:")
    k.stamp()
    if k.prof: k("s_waitcnt vmcnt(0)")
    k.stamp_flush()
    k("A_end:\ns_endpgm")
    return k

def fin_job(k, pWS, sJ, vL, T, endlabel):
    MP = k.v(64); vMw = k.v(); vOff = k.v(); sL = k.s(); sAdd = k.s(); sT = k.s(); sMask = k.s()
    k(f"s_lshl_b32 s{sL}, s{sJ}, 11\nv_lshlrev_b32 v{vOff}, 5, v{vL}\ns_mov_b32 s{sMask}, 0xffff0000\ns_waitcnt lgkmcnt(0)")
    dW = k.srd(pWS, WS_ZA)
    for p in range(8):
        k(f"s_add_u32 s{sT}, s{sL}, {WS_MODQ + p*16384}")
        for h in range(2): k(f"buffer_load_dwordx4 {vr(MP+8*p+4*h,4)}, v{vOff}, {sr(dW,4)}, s{sT} offen offset:{16*h}")
    k(f"v_and_b32 v{T}, 3, v{vL}\nv_lshlrev_b32 v{T}, 8, v{T}\nv_lshrrev_b32 v{T+1}, 2, v{vL}\nv_lshl_add_u32 v{vMw}, v{T+1}, 4, v{T}")
    k(f"s_lshr_b32 s{sT}, s{sJ}, 1\ns_cmp_eq_u32 s{sT}, 2\ns_cselect_b32 s{sAdd}, 1.0, 0")
    k("s_waitcnt vmcnt(0)")
    for n in (32, 16, 8):
        for i in range(0, n, 2): k(f"v_pk_add_f32 {P2(MP+i)}, {P2(MP+i)}, {P2(MP+n+i)}")
    for i in range(4): k(f"v_cvt_pk_bf16_f32 v{MP+8+i}, v{MP+2*i}, v{MP+2*i+1}")
    k(f"s_cmp_ge_u32 s{sJ}, 6\ns_cbranch_scc1 F_gb")
    unpack_bf16(k, MP, MP + 8, 4, sMask)
    for i in range(8): k(f"v_add_f32 v{MP+i}, s{sAdd}, v{MP+i}")
    for i in range(4): k(f"v_cvt_pk_bf16_f32 v{MP+8+i}, v{MP+2*i}, v{MP+2*i+1}")
    for i in range(4): k(f"v_lshlrev_b32 v{MP+i}, 16, v{MP+8+i}\nv_and_b32 v{MP+4+i}, s{sMask}, v{MP+8+i}")
    k(f"s_add_u32 s{sT}, s{sL}, {WS_MODC}")
    k(f"buffer_store_dwordx4 {vr(MP,4)}, v{vMw}, {sr(dW,4)}, s{sT} offen\nbuffer_store_dwordx4 {vr(MP+4,4)}, v{vMw}, {sr(dW,4)}, s{sT} offen offset:1024")
    k("s_endpgm\nF_gb:")
    k(f"s_lshl_b32 s{sT}, s{sJ}, 10\ns_add_u32 s{sT}, s{sT}, {WS_GB-6144}\nv_lshlrev_b32 v{T}, 4, v{vL}")
    k(f"buffer_store_dwordx4 {vr(MP+8,4)}, v{T}, {sr(dW,4)}, s{sT} offen")

def gen_b(pf=(0, 0), st_flags="sc1", nxt=("fc_kernel", "g1_kernel"), pf2=(0, 0)):
    TAB = 16384; OUT = 24576; WL = 40960
    NM = 258
    k = Kern("fb_kernel", NM + 8, 512, WL + 16384)
    pW1 = k.s(2); pWS = k.s(2); pW2 = k.s(2)
    sSlot = k.s(); sT = k.s(); sRho = k.s(); sC = k.s()
    k.stamp(True)
    k(f"s_load_dwordx2 {sr(pWS,2)}, s[0:1], 96")
    if pf[1]: k(f"s_load_dwordx2 {sr(pW1,2)}, s[0:1], 32")
    if pf2[1]: k(f"s_load_dwordx2 {sr(pW2,2)}, s[0:1], 48")
    k(f"s_cmp_ge_u32 s2, {NM+8}\ns_cbranch_scc1 B_end")
    vL, vI, vG, sU, T = lane_ids(k)
    k(f"s_cmp_ge_u32 s2, {NM}\ns_cbranch_scc1 B_side")
    m0 = k.mark()
    k(f"s_and_b32 s{sT}, s2, 7\ns_add_u32 s{sT}, s{sT}, 1\ns_lshr_b32 s{sRho}, s{sT}, 1\ns_and_b32 s{sC}, s{sT}, 1\ns_lshl_b32 s{sC}, s{sC}, 5")
    k(f"s_cmp_eq_u32 s{sRho}, 0\ns_cselect_b32 s{sC}, 0, s{sC}\ns_lshr_b32 s{sT}, s2, 3\ns_add_u32 s{sC}, s{sC}, s{sT}")
    k(f"s_cmp_eq_u32 s2, 257\ns_cselect_b32 s{sRho}, 4, s{sRho}")
    k(f"s_lshl_b32 s{sSlot}, s{sRho}, 6\ns_sub_i32 s{sSlot}, s{sSlot}, 31\ns_max_i32 s{sSlot}, s{sSlot}, 0\ns_add_u32 s{sSlot}, s{sSlot}, s{sC}")
    vOff = k.v()
    k(f"v_lshlrev_b32 v{vOff}, 4, v{vL}")
    sO = k.s(); sL = k.s()
    k(f"s_mul_i32 s{sO}, s{sSlot}, {ZA_PITCH}\ns_lshl_b32 s{sL}, s{sU}, 11\ns_add_u32 s{sO}, s{sO}, s{sL}\ns_mov_b32 m0, s{sL}")
    k("s_waitcnt lgkmcnt(0)")
    k.stamp_init2(2, pWS); k.stamp()
    dZ = k.srd(pWS, ZA_BYTES, WS_ZA)
    k(f"buffer_load_dwordx4 v{vOff}, {sr(dZ,4)}, s{sO} offen lds")
    k(f"buffer_load_dwordx4 v{vOff}, {sr(dZ,4)}, s{sO} offen offset:1024 lds")
    dW = k.srd(pWS, WS_ZA)
    k(f"s_lshl_b32 s{sT}, s{sU}, 10\ns_add_u32 m0, s{sT}, {TAB}\ns_add_u32 s{sT}, s{sT}, {WS_TBC}")
    k(f"buffer_load_dwordx4 v{vOff}, {sr(dW,4)}, s{sT} offen lds")
    WP = k.v(8); WE = k.v(8); WM = k.v(4); vWrd = k.v(); sSp = k.s()
    k(f"s_mov_b32 s{sT}, {WS_WMAX}\nbuffer_load_dwordx4 {vr(WM,4)}, v{vOff}, {sr(dW,4)}, s{sT} offen")
    dB = k.srd(pWS, ZA_BYTES, WS_WB)
    k(f"s_add_u32 m0, s{sL}, {WL}\ns_cmp_ge_u32 s2, 256\ns_cselect_b32 s{dB+2}, 0, s{dB+2}")
    k(f"buffer_load_dwordx4 v{vOff}, {sr(dB,4)}, s{sO} offen lds\nbuffer_load_dwordx4 v{vOff}, {sr(dB,4)}, s{sO} offen offset:1024 lds")
    k(f"s_cselect_b32 s{sT}, 0, s{sC}\ns_cselect_b64 vcc, -1, 0\ns_or_b32 s{sSp}, s{sT}, s{sU}")
    k(f"s_cmp_lg_u32 s{sSp}, 0\ns_cbranch_scc1 B_nox")
    sE1 = k.s(); sE2o = k.s()
    k(f"s_lshl_b32 s{sE1}, s{sC}, 8\ns_sub_u32 s{sE2o}, {WS_SPC+16384}, s{sE1}\ns_add_u32 s{sE1}, s{sE1}, {WS_SPC}")
    for v in range(4):
        k(f"v_lshl_add_u32 v{T}, v{vG}, 2, {v}\nv_lshl_add_u32 v{T}, v{T}, 4, v{vI}\nv_lshl_add_u32 v{T}, v{T}, 3, s{sRho}")
        k(f"v_sub_u32 v{T+1}, 2048, v{T}\nv_and_b32 v{T+1}, 2047, v{T+1}")
        k(f"v_cndmask_b32 v{T+2}, v{T+1}, v{T}, vcc\nv_cndmask_b32 v{T+3}, v{T}, v{T+1}, vcc\nv_lshlrev_b32 v{T+2}, 2, v{T+2}\nv_lshlrev_b32 v{T+3}, 2, v{T+3}")
        k(f"buffer_load_dword v{WE+v}, v{T+2}, {sr(dW,4)}, s{sE1} offen\nbuffer_load_dword v{WE+4+v}, v{T+3}, {sr(dW,4)}, s{sE2o} offen")
    k("B_nox:")
    k(f"v_and_b32 v{T}, 7, v{vI}\nv_xor_b32 v{T}, s{sU}, v{T}\nv_lshlrev_b32 v{T}, 4, v{T}\nv_lshl_add_u32 v{T}, v{vG}, 7, v{T}\nv_lshl_add_u32 v{vWrd}, v{vI}, 9, v{T}")
    dO = k.srd(pWS, ZB_BYTES, WS_ZB)
    k(f"s_cmp_lt_u32 s2, 256\ns_cbranch_scc1 B_reg\ns_setprio 3\ns_cmp_lg_u32 s{sU}, 0\ns_cbranch_scc1 B_idle\nB_reg:")
    vCp = k.v(); vSp = k.v()
    k(f"s_lshl_b32 s{sT}, s{sC}, 3\ns_add_u32 s{sT}, s{sT}, s{sU}\ns_add_u32 s{sT}, s{sT}, 256\nv_mov_b32 v{T}, s{sT}")
    sincos(k, vCp, vSp, T, 2048, T + 1)
    k(f"v_mul_f32 v{vCp}, {fbits(0.25)}, v{vCp}\nv_mul_f32 v{vSp}, {fbits(0.25)}, v{vSp}")
    G = k.v(32)
    def g1(ks, o): return G + (ks * 4 + o) * 4
    for e2 in range(2):
        k(f"v_lshl_add_u32 v{T}, v{vG}, 1, {e2}\nv_mul_u32_u24 v{T}, v{T}, v{vI}")
        sincos(k, T + 1, T + 2, T, 16, T + 3)
        k(f"v_mul_f32 v{T+4}, v{vCp}, v{T+1}\nv_mul_f32 v{T+5}, v{vCp}, v{T+2}")
        k(f"v_mul_f32 v{T+6}, v{vSp}, v{T+1}\nv_mul_f32 v{T+7}, v{vSp}, v{T+2}")
        p1 = f"v{T+4}, v{T+5}"; p2 = f"-v{T+5}, v{T+4}"; p3 = f"v{T+7}, -v{T+6}"; p4 = f"v{T+6}, v{T+7}"
        for o, (pa, pb) in enumerate(((p1, p3), (p2, p4), (p3, p1), (p4, p2))):
            k(f"v_cvt_pk_f16_f32 v{g1(0,o)+2*e2}, {pa}\nv_cvt_pk_f16_f32 v{g1(0,o)+2*e2+1}, {pb}")
    sSign = k.s()
    k(f"s_mov_b32 s{sSign}, 0x80008000")
    k(f"v_and_b32 v{T}, 1, v{vI}\nv_mul_lo_u32 v{T}, v{T}, s{sSign}")
    for x in range(16): k(f"v_xor_b32 v{G+16+x}, v{T}, v{G+x}")
    H = k.v(16)
    for v in range(4):
        k(f"v_lshl_add_u32 v{T}, v{vG}, 2, {v}\nv_mul_u32_u24 v{T}, v{T}, v{vI}")
        sincos(k, T + 1, T + 2, T, 16, T + 3)
        k(f"v_mul_f32 v{T+4}, v{vCp}, v{T+1}\nv_mul_f32 v{T+5}, v{vCp}, v{T+2}\nv_mul_f32 v{T+6}, v{vSp}, v{T+1}\nv_mul_f32 v{T+7}, v{vSp}, v{T+2}")
        k(f"v_cvt_pk_f16_f32 v{H+v}, v{T+4}, -v{T+5}\nv_cvt_pk_f16_f32 v{H+4+v}, v{T+5}, v{T+4}")
        k(f"v_cvt_pk_f16_f32 v{H+8+v}, v{T+7}, v{T+6}\nv_cvt_pk_f16_f32 v{H+12+v}, -v{T+6}, v{T+7}")
    vRd = vCp; vWr = vSp
    k(f"s_lshr_b32 s{sT}, s{sU}, 1")
    k(f"v_lshrrev_b32 v{T}, 2, v{vI}\nv_xor_b32 v{T}, s{sT}, v{T}\nv_lshlrev_b32 v{T}, 4, v{T}\nv_lshl_add_u32 v{T}, v{vI}, 6, v{T}")
    k(f"s_and_b32 s{sT}, s{sU}, 1\ns_lshl_b32 s{sT}, s{sT}, 3\nv_add_u32 v{T}, s{sT}, v{T}")
    k(f"v_lshl_add_u32 v{vRd}, v{vG}, 11, v{T}\nv_lshl_add_u32 v{vWr}, v{vG}, 12, v{T}")
    vOr = vI; vOs = vG
    k(f"v_lshlrev_b32 v{vOr}, 4, v0")
    k(f"v_lshrrev_b32 v{T}, 2, v0\nv_mul_u32_u24 v{T}, {ZB_PITCH}, v{T}")
    k(f"v_lshrrev_b32 v{T+1}, 4, v0\nv_xor_b32 v{T+1}, v{T+1}, v0\nv_and_b32 v{T+1}, 3, v{T+1}\nv_lshl_add_u32 v{vOs}, v{T+1}, 4, v{T}")
    sMask = k.s(); sScale = k.s(2); sE2 = k.s()
    k(f"s_mov_b32 s{sMask}, 0xffff0000")
    k.stamp()
    k("s_waitcnt vmcnt(0)\ns_barrier")
    k.stamp()
    OP = k.v(8); D = k.v(16); TB = k.v(16)
    for ks in range(2):
        for e2 in range(2): k(f"ds_read_b64 {vr(OP+4*ks+2*e2,2)}, v{vRd} offset:{(8*ks+e2)*1024}")
    for q in range(4): k(f"ds_read_b128 {vr(TB+4*q,4)}, v{vOff} offset:{TAB+1024*q}")
    TWC = TB; TWS = TB + 4; FR = TB + 8; FI = TB + 12; CR = TB + 8; CI = TB + 12
    k(f"ds_read_b128 {vr(WP,4)}, v{vWrd} offset:{WL}\nds_read_b128 {vr(WP+4,4)}, v{vWrd} offset:{WL+8192}")
    code_pf_w(k, nxt[0], nxt[1], sU, 7, IDX_STD, vL, T + 4, T + 7)
    page_touch(k, PT_B, sU, 6, vL, T + 4, T + 7)
    pf_uni(k, pW1, pf[0], pf[1], 2, sU, vL, T + 6, T + 4)
    pf_uni(k, pW2, pf2[0], pf2[1], 2, sU, vL, T + 5, T + 4)
    k(f"v_max3_u32 v{WM}, v{WM}, v{WM+1}, v{WM+2}\nv_max_u32 v{WM}, v{WM}, v{WM+3}")
    red = cap(lambda t: wave_reduce(t, "v_max_u32", [WM], [sE2]))
    for l in red[:3]: k(l)
    k("s_waitcnt lgkmcnt(8)")
    for o in range(4):
        k(f"{MF} {vr(D+4*o,4)}, {vr(OP,4)}, {vr(g1(0,o),4)}, 0")
        if o & 1: k(red[3 + (o >> 1)])
    k("s_waitcnt lgkmcnt(6)")
    for o in range(4):
        k(f"{MF} {vr(D+4*o,4)}, {vr(OP+4,4)}, {vr(g1(1,o),4)}, {vr(D+4*o,4)}")
        if o & 1: k(red[5 + (o >> 1)])
    k(f"s_lshr_b32 s{sE2}, s{sE2}, 7\ns_sub_i32 s{sE2}, 125, s{sE2}\ns_min_i32 s{sE2}, s{sE2}, 60\ns_max_i32 s{sE2}, s{sE2}, -60")
    k(f"s_add_u32 s{sScale}, s{sE2}, 127\ns_lshl_b32 s{sScale}, s{sScale}, 23")
    k("s_waitcnt lgkmcnt(0)")
    for w in range(2):
        tw_block(k, D + 8 * w, TWC, TWS, False, T, OP + 4 * w)
        k(f"{MF} {vr(D+8*w,4)}, {vr(FR,4)}, {vr(OP+4*w,4)}, 0")
        k(f"{MF} {vr(D+8*w+4,4)}, {vr(FI,4)}, {vr(OP+4*w,4)}, 0")
    k(f"ds_read_b128 {vr(CR,4)}, v{vOff} offset:{TAB+4096}\nds_read_b128 {vr(CI,4)}, v{vOff} offset:{TAB+5120}")
    Wf = G
    k.stamp()
    def unpl(dst, src):
        for w in range(2):
            for v in range(4): k(f"v_lshlrev_b32 v{dst+8*w+v}, 16, v{src+4*w+v}\nv_and_b32 v{dst+8*w+4+v}, s{sMask}, v{src+4*w+v}")
    unpl(Wf, WP)
    k(f"s_cmp_lg_u32 s{sSp}, 0\ns_cbranch_scc1 B_nospec")
    unpl(G + 16, WE)
    k(f"s_cmp_ge_u32 s2, 256\ns_cselect_b32 s{sT}, 1.0, -1.0\ns_cselect_b32 s{sE1}, 0, {1<<23}\ns_sub_u32 s{sScale}, s{sScale}, s{sE1}")
    for i in (0, 1, 2, 3, 8, 9, 10, 11): k(f"v_add_f32 v{Wf+i}, v{Wf+i}, v{G+16+i}\nv_fmac_f32 v{Wf+i+4}, s{sT}, v{G+16+i+4}")
    k(f"v_mov_b32 v{T+4}, {WS_SCAL+4}\nv_mov_b32 v{T+5}, s{sE2}\nbuffer_store_dword v{T+5}, v{T+4}, {sr(dW,4)}, 0 offen")
    k("B_nospec:")
    for i in range(8): k(f"v_pk_mul_f32 {P2(Wf+2*i)}, {P2(Wf+2*i)}, s[{sScale}:{sScale+1}] op_sel_hi:[1,0]")
    k("s_waitcnt lgkmcnt(0)")
    for w in range(2):
        tw_block(k, D + 8 * w, Wf + 8 * w, Wf + 8 * w + 4, w == 0, T, OP + 4 * w)
        k(f"{MF} {vr(D+8*w,4)}, {vr(OP+4*w,4)}, {vr(CR,4)}, 0")
        k(f"{MF} {vr(D+8*w+4,4)}, {vr(OP+4*w,4)}, {vr(CI,4)}, 0")
    E = G + 16
    for w in range(2):
        tw_block(k, D + 8 * w, TWC, TWS, True, T, OP + 4 * w)
        for x in range(2):
            for ri in range(2):
                d = E + 8 * x + 4 * ri
                k(f"{MF} {vr(d,4)}, {vr(H+8*(x^w)+4*ri,4)}, {vr(OP+4*w,4)}, {vr(d,4) if w else 0}")
    P = WP
    for v in range(4):
        k(f"v_cvt_pk_f16_f32 v{P+2*v}, v{E+v}, v{E+4+v}\nv_cvt_pk_f16_f32 v{P+2*v+1}, v{E+8+v}, v{E+12+v}")
        k(f"ds_write_b64 v{vWr}, {vr(P+2*v,2)} offset:{OUT+v*1024}")
    k("s_waitcnt lgkmcnt(0)\nB_out:\ns_barrier")
    k.stamp()
    k(f"ds_read_b128 {vr(D,4)}, v{vOr} offset:{OUT}\nds_read_b128 {vr(D+4,4)}, v{vOr} offset:{OUT+8192}")
    k(f"s_lshl_b32 s{sO}, s{sSlot}, 6\ns_add_u32 s{sT}, s{sO}, {128*ZB_PITCH}")
    k("s_waitcnt lgkmcnt(1)")
    k(f"buffer_store_dwordx4 {vr(D,4)}, v{vOs}, {sr(dO,4)}, s{sO} offen {st_flags}")
    k("s_waitcnt lgkmcnt(0)")
    k(f"buffer_store_dwordx4 {vr(D+4,4)}, v{vOs}, {sr(dO,4)}, s{sT} offen {st_flags}")
    k.stamp()
    if k.prof: k("s_waitcnt vmcnt(0)")
    k.stamp_flush()
    k("s_endpgm")
    k("B_idle:")
    k(f"v_lshlrev_b32 v{vOr}, 4, v0")
    k(f"v_lshrrev_b32 v{T}, 2, v0\nv_mul_u32_u24 v{T}, {ZB_PITCH}, v{T}")
    k(f"v_lshrrev_b32 v{T+1}, 4, v0\nv_xor_b32 v{T+1}, v{T+1}, v0\nv_and_b32 v{T+1}, 3, v{T+1}\nv_lshl_add_u32 v{vOs}, v{T+1}, 4, v{T}")
    k("s_waitcnt vmcnt(0)\ns_barrier\ns_branch B_out")
    k.release(m0)
    k("B_side:")
    k(f"s_cmp_lg_u32 s{sU}, 0\ns_cbranch_scc1 B_end\ns_sub_u32 s{sC}, s2, {NM}")
    fin_job(k, pWS, sC, vL, T, "B_end")
    k("B_end:\ns_endpgm")
    return k

def gen_c(l2w=0, pf=(0, 0), pfa=32, st_flags="sc1"):
    TAB = C_TB + 8 * C_TP; MOD = TAB + 16384; MV = C_MV
    k = Kern("fc_kernel", 256, 512, MOD + 14336)
    k.s()
    pX = k.s(2); pWS = k.s(2); pW1 = k.s(2)
    k(f"s_cmp_ge_u32 s2, 256\ns_cbranch_scc1 C_end")
    k("s_and_b32 s3, s2, 3\ns_lshl_b32 s3, s3, 6\ns_and_b32 s4, s2, 4\ns_lshl_b32 s4, s4, 3\ns_add_u32 s3, s3, s4\ns_lshr_b32 s2, s2, 3\ns_add_u32 s2, s2, s3")
    k.stamp(True)
    k(f"s_load_dwordx2 {sr(pX,2)}, s[0:1], 0")
    k(f"s_load_dwordx2 {sr(pWS,2)}, s[0:1], 96")
    k(f"s_load_dwordx2 {sr(pW1,2)}, s[0:1], {pfa}")
    vL, vI, vG, sJ, T = lane_ids(k)
    sMask = k.s(); sT = k.s(); sRow = k.s(); sO = k.s(); sL = k.s(); sQ = k.s()
    vOff = k.v(); vXo = k.v()
    k(f"v_lshlrev_b32 v{vOff}, 4, v{vL}\nv_lshlrev_b32 v{vXo}, 6, v{vI}\nv_lshl_add_u32 v{vXo}, v{vG}, 4, v{vXo}")
    k(f"s_mov_b32 s{sMask}, 0xffff0000")
    k(f"s_lshl_b32 s{sRow}, s{sJ}, 8\ns_add_u32 s{sRow}, s{sRow}, s2\ns_lshl_b32 s{sRow}, s{sRow}, 11")
    k(f"s_mul_i32 s{sO}, s2, {ZB_PITCH}\ns_lshl_b32 s{sL}, s{sJ}, 11")
    k(f"s_add_u32 s{sQ}, s{sL}, {WS_TCC}\ns_lshl_b32 s{sT}, s2, 11\ns_add_u32 s{sT}, s{sT}, {WS_TCS}\ns_cmp_eq_u32 s{sJ}, 7\ns_cselect_b32 s{sQ}, s{sT}, s{sQ}")
    k("s_waitcnt lgkmcnt(0)")
    k.stamp_init2(3, pWS); k.stamp()
    sSc = k.s(2)
    k(f"s_load_dwordx2 {sr(sSc,2)}, {sr(pWS,2)}, {WS_SCAL}")
    dZ = k.srd(pWS, ZB_BYTES, WS_ZB)
    k(f"s_cmp_lg_u32 s{sJ}, 0\ns_cbranch_scc1 C_no17")
    k(f"s_mov_b32 m0, 16384\ns_add_u32 s{sT}, s{sO}, 16384")
    k(f"buffer_load_dwordx4 v{vOff}, {sr(dZ,4)}, s{sT} offen lds")
    k("C_no17:")
    k(f"s_add_u32 s{sO}, s{sO}, s{sL}\ns_mov_b32 m0, s{sL}")
    k(f"buffer_load_dwordx4 v{vOff}, {sr(dZ,4)}, s{sO} offen lds")
    k(f"buffer_load_dwordx4 v{vOff}, {sr(dZ,4)}, s{sO} offen offset:1024 lds")
    dW = k.srd(pWS, WS_ZA)
    AD = k.v(12)
    k(f"s_add_u32 m0, s{sL}, {TAB}\ns_mul_i32 s{sT}, s{sJ}, 3072\ns_add_u32 s{sT}, s{sT}, {WS_TCW}")
    for q in range(3): k(f"buffer_load_dwordx4 {vr(AD+4*q,4)}, v{vOff}, {sr(dW,4)}, s{sT} offen offset:{1024*q}")
    k(f"buffer_load_dwordx4 v{vOff}, {sr(dW,4)}, s{sQ} offen lds")
    k(f"buffer_load_dwordx4 v{vOff}, {sr(dW,4)}, s{sQ} offen offset:1024 lds")
    vR1 = AD; vW1 = AD + 8; vR2 = AD + 10
    dX = k.srd(pX, 2048 * 2048)
    XP = k.v(8)
    k(f"buffer_load_dwordx4 {vr(XP,4)}, v{vXo}, {sr(dX,4)}, s{sRow} offen nt")
    k(f"buffer_load_dwordx4 {vr(XP+4,4)}, v{vXo}, {sr(dX,4)}, s{sRow} offen offset:1024 nt")
    dX1 = k.srd(pWS, 4 << 20, WS_X1); dY2 = k.srd(pWS, 4 << 20, WS_Y2)
    vMr = k.v()
    k(f"v_mad_u32_u24 v{T}, v{vG}, 18, v{vI}\nv_lshlrev_b32 v{vMr}, 4, v{T}\nv_add_u32 v{vMr}, {MOD}, v{vMr}")
    sR = k.s(); sY = k.s(); vYo = k.v()
    k(f"s_lshl_b32 s{sR}, s2, 3\ns_add_u32 s{sR}, s{sR}, s{sJ}")
    k(f"s_lshr_b32 s{sY}, s{sR}, 7\ns_lshl_b32 s{sY}, s{sY}, 18\ns_and_b32 s{sT}, s{sR}, 127\ns_lshl_b32 s{sT}, s{sT}, 7\ns_add_u32 s{sY}, s{sY}, s{sT}")
    k(f"s_bfe_u32 s{sT}, s{sR}, 0x30001\nv_and_b32 v{T}, 1, v{vI}\nv_lshl_add_u32 v{T}, v{T}, 2, v{vG}\nv_xor_b32 v{T}, s{sT}, v{T}\nv_lshlrev_b32 v{T}, 4, v{T}")
    k(f"v_lshrrev_b32 v{T+1}, 1, v{vI}\nv_lshl_add_u32 v{vYo}, v{T+1}, 14, v{T}")
    k(f"s_lshl_b32 s{sR}, s{sR}, 11")
    k.stamp()
    k("s_waitcnt vmcnt(2) lgkmcnt(0)\ns_barrier")
    k.stamp()
    OP = k.v(8); D = k.v(16); F1 = k.v(8); TW = k.v(16); F3 = k.v(32); X = k.v(16); E = k.v(16)
    k(f"ds_read_b128 {vr(F1,4)}, v{vOff} offset:{TAB+14336}\nds_read_b128 {vr(F1+4,4)}, v{vOff} offset:{TAB+15360}")
    for x in range(8): k(f"ds_read_b32 v{OP+x}, v{vR1+x}")
    k(f"s_cmp_eq_u32 s{sJ}, 7\ns_cbranch_scc1 C_nomod")
    k(f"s_add_u32 m0, s{sL}, {MOD}\ns_add_u32 s{sT}, s{sL}, {WS_MODC}")
    k(f"buffer_load_dwordx4 v{vOff}, {sr(dW,4)}, s{sT} offen lds\nbuffer_load_dwordx4 v{vOff}, {sr(dW,4)}, s{sT} offen offset:1024 lds")
    k("C_nomod:")
    sE = k.s()
    k(f"s_add_i32 s{sE}, s{sSc}, s{sSc+1}\ns_sub_i32 s{sE}, 0, s{sE}")
    for q in range(2):
        k(f"s_waitcnt lgkmcnt({4-4*q})")
        k(f"{MF} {vr(D+8*q,4)}, {vr(OP+4*q,4)}, {vr(F1,4)}, 0")
        k(f"{MF} {vr(D+8*q+4,4)}, {vr(OP+4*q,4)}, {vr(F1+4,4)}, 0")
    for q in range(4): k(f"ds_read_b128 {vr(TW+4*q,4)}, v{vOff} offset:{TAB+2048+1024*q}")
    for q in range(2):
        for v in range(4): k(f"v_cvt_pk_f16_f32 v{OP+4*q+v}, v{D+8*q+v}, v{D+8*q+4+v}")
        k(f"ds_write_b128 v{vW1+q}, {vr(OP+4*q,4)}")
    F2 = F1
    k(f"ds_read_b128 {vr(F2,4)}, v{vOff} offset:{TAB}\nds_read_b128 {vr(F2+4,4)}, v{vOff} offset:{TAB+1024}")
    k("s_waitcnt lgkmcnt(0)\ns_barrier")
    for rt in range(2):
        k(f"ds_read2st64_b32 {vr(OP+4*rt,2)}, v{vR2+rt} offset0:0 offset1:2")
        k(f"ds_read2st64_b32 {vr(OP+4*rt+2,2)}, v{vR2+rt} offset0:4 offset1:6")
    for q in (0, 1, 4, 5, 2, 3, 6, 7): k(f"ds_read_b128 {vr(F3+4*q,4)}, v{vOff} offset:{TAB+6144+1024*q}")
    def f3(ct, rt, ri): return F3 + ((ct * 2 + rt) * 2 + ri) * 4
    for rt in range(2):
        k(f"s_waitcnt lgkmcnt({10-2*rt})")
        k(f"{MF} {vr(D+8*rt,4)}, {vr(OP+4*rt,4)}, {vr(F2,4)}, 0")
        k(f"{MF} {vr(D+8*rt+4,4)}, {vr(OP+4*rt,4)}, {vr(F2+4,4)}, 0")
    for rt in range(2):
        for v in range(4):
            re = D + 8 * rt + v; im = re + 4
            cmul_tw(k, re, im, TW + 4 * rt + v, TW + 8 + 4 * rt + v, True, T + v)
            k(f"v_cvt_pk_f16_f32 v{OP+4*rt+v}, v{re}, v{im}")
        k(f"s_waitcnt lgkmcnt({4-4*rt})")
        for ct in range(2):
            for ri in range(2):
                d = E + 8 * ct + 4 * ri
                k(f"{MF} {vr(d,4)}, {vr(OP+4*rt,4)}, {vr(f3(ct,rt,ri),4)}, {vr(d,4) if rt else 0}")
    k("s_waitcnt vmcnt(0)\ns_barrier")
    k.stamp()
    GA = TW
    def mread(dst, vec):
        for ct in range(2):
            for h in range(2): k(f"ds_read_b128 {vr(dst+8*ct+4*h,4)}, v{vMr} offset:{(2*vec+ct)*MV + 73*16*h}")
    mread(GA, 0)
    SB = F3; CB = F3 + 16
    mread(CB, 2); mread(SB, 1)
    code_pf_w(k, "g1_kernel", "g2_kernel", sJ, 7, "s_and_b32 s{0}, s2, 31", vL, T + 4, AD + 2)
    pf_mall(k, pW1, pf[0], pf[1], 2, sJ, AD, T + 4)
    if l2w:
        dP = k.srd(pW1, WBYTES)
        k(f"v_lshrrev_b32 v{T+4}, 5, v0\nv_mul_u32_u24 v{T+4}, {32*7168}, v{T+4}\nv_and_b32 v{T+5}, 31, v0\nv_lshl_add_u32 v{T+4}, v{T+5}, 7, v{T+4}")
        k(f"v_cmp_lt_u32 vcc, 27, v{T+5}\nv_mov_b32 v{T+5}, {OOB}\nv_cndmask_b32 v{T+4}, v{T+4}, v{T+5}, vcc")
        k(f"s_and_b32 s{sT}, s2, 31\ns_mul_i32 s{sO}, s{sT}, 7168\ns_bfe_u32 s{sT}, s2, 0x10005\ns_mul_i32 s{sT}, s{sT}, 3584\ns_add_u32 s{sO}, s{sO}, s{sT}")
        k(f"buffer_load_dword v{AD}, v{T+4}, {sr(dP,4)}, s{sO} offen")
        if l2w > 1:
            nw = int(round((l2w - 1) * 8))
            k(f"s_add_u32 s{sO}, s{sO}, {512*7168}\ns_cmp_lt_u32 s{sJ}, {nw}\ns_cselect_b32 s{dP+2}, s{dP+2}, 0")
            k(f"buffer_load_dword v{AD+1}, v{T+4}, {sr(dP,4)}, s{sO} offen")
    unpack_bf16(k, X, XP, 8, sMask)
    def dreg(n): return E + 8 * (n >> 3) + 4 * (n & 1) + ((n & 7) >> 1)
    for n in range(16): k(f"v_ldexp_f32 v{dreg(n)}, v{dreg(n)}, s{sE}")
    for i in range(8): k(f"v_cvt_pk_bf16_f32 v{OP+i}, v{dreg(2*i)}, v{dreg(2*i+1)}")
    unpack_bf16(k, D, OP, 8, sMask)
    k("s_waitcnt lgkmcnt(8)")
    for n in range(16): k(f"v_mul_f32 v{D+n}, v{D+n}, v{GA+n}")
    for i in range(8): k(f"v_cvt_pk_bf16_f32 v{OP+i}, v{D+2*i}, v{D+2*i+1}")
    unpack_bf16(k, D, OP, 8, sMask)
    for n in range(16): k(f"v_add_f32 v{X+n}, v{X+n}, v{D+n}")
    for i in range(8): k(f"v_cvt_pk_bf16_f32 v{XP+i}, v{X+2*i}, v{X+2*i+1}")
    k(f"buffer_store_dwordx4 {vr(XP,4)}, v{vXo}, {sr(dX1,4)}, s{sR} offen {st_flags}")
    k(f"buffer_store_dwordx4 {vr(XP+4,4)}, v{vXo}, {sr(dX1,4)}, s{sR} offen offset:1024 {st_flags}")
    unpack_bf16(k, X, XP, 8, sMask)
    vSum = k.v(); vM = k.v(); vDl = k.v(); vR = k.v(); sSum = k.s()
    def layernorm(fill2):
        k(f"v_add_f32 v{vSum}, v{X}, v{X+1}\nv_add_f32 v{T}, v{X+2}, v{X+3}")
        for i in range(2, 8): k(f"v_add_f32 v{vSum}, v{vSum}, v{X+2*i}\nv_add_f32 v{T}, v{T}, v{X+2*i+1}")
        k(f"v_add_f32 v{vSum}, v{vSum}, v{T}")
        wave_reduce(k, "v_add_f32", [vSum], [sSum])
        k(f"v_mov_b32 v{vDl}, {fbits(1/1024)}\nv_mul_f32 v{vDl}, s{sSum}, v{vDl}\nv_mov_b32 v{vM}, v{vDl}")
        round_bf16(k, vM)
        k(f"v_sub_f32 v{vDl}, v{vDl}, v{vM}")
        for i in range(16): k(f"v_sub_f32 v{X+i}, v{X+i}, v{vM}")
        k(f"v_mul_f32 v{vSum}, v{X}, v{X}\nv_mul_f32 v{T}, v{X+1}, v{X+1}")
        for i in range(1, 8): k(f"v_fmac_f32 v{vSum}, v{X+2*i}, v{X+2*i}\nv_fmac_f32 v{T}, v{X+2*i+1}, v{X+2*i+1}")
        k(f"v_add_f32 v{vSum}, v{vSum}, v{T}")
        with_fill(k, cap(lambda t: wave_reduce(t, "v_add_f32", [vSum], [sSum])), fill2, 3)
        k(f"v_mov_b32 v{vR}, {fbits(1/1024)}\nv_mul_f32 v{vR}, s{sSum}, v{vR}")
        k(f"v_fma_f32 v{vR}, -v{vDl}, v{vDl}, v{vR}\nv_max_f32 v{vR}, 0, v{vR}")
        round_bf16(k, vR)
        k(f"v_add_f32 v{vR}, {fbits(1e-5)}, v{vR}")
        round_bf16(k, vR)
        k(f"v_sqrt_f32 v{vR}, v{vR}")
        round_bf16(k, vR)
        k(f"v_rcp_f32 v{vR}, v{vR}")
    k("s_waitcnt lgkmcnt(0)")
    k.stamp()
    layernorm([f"v_mul_f32 v{X+i}, v{X+i}, v{CB+i}" for i in range(16)])
    for i in range(16): k(f"v_fma_f32 v{X+i}, v{X+i}, v{vR}, v{SB+i}")
    for i in range(8): k(f"v_cvt_pk_bf16_f32 v{OP+i}, v{X+2*i}, v{X+2*i+1}")
    unpack_bf16(k, X, OP, 8, sMask)
    layernorm([])
    for i in range(16): k(f"v_mul_f32 v{X+i}, v{X+i}, v{vR}")
    for i in range(8): k(f"v_cvt_pk_bf16_f32 v{OP+i}, v{X+2*i}, v{X+2*i+1}")
    k(f"s_add_u32 s{sT}, s{sY}, {8*16384}")
    k(f"buffer_store_dwordx4 {vr(OP,4)}, v{vYo}, {sr(dY2,4)}, s{sY} offen {st_flags}")
    k(f"buffer_store_dwordx4 {vr(OP+4,4)}, v{vYo}, {sr(dY2,4)}, s{sT} offen {st_flags}")
    k.stamp()
    if k.prof: k("s_waitcnt vmcnt(0)")
    k.stamp_flush()
    k("C_end:\ns_endpgm")
    return k
```

```python
from asmlib import *
import math

WS_MODP = 0x0
WS_MODQ = 0xA0000
WS_GB = 0x18000
WS_WMAX = 0x19800
WS_SCAL = 0x19400
WS_TAC = 0x20000
WS_TAW = 0x24000
WS_TBC = 0x28000
WS_TCC = 0x2C000
WS_TCW = 0x30000
WS_SPC = 0x38000
WS_FLAG = 0x40000
WS_MODC = 0x90000
WS_TAS = 0x100000
WS_TCS = 0x200000
WS_ZA = 0x300000
WS_ZB = 0x800000
WS_WB = 0xD00000
WS_X1 = 0x1300000
WS_Y2 = 0x1700000
WS_H = 0x1B00000
WS_PART = 0x2A00000
NSLOT = 256
ZA_PITCH = 16640
ZA_BYTES = NSLOT * ZA_PITCH
ZB_PITCH = NSLOT * 64 + 256
A_BASE = 65536
C_SPEC = 16384
WS_LC = 0x3E000
WS_CNT = 0x98000
ZB_BYTES = 256 * ZB_PITCH
W_BYTES = 2048 * 513 * 2
LOG2E = 1.4426950408889634
DPPM = "row_mask:0xf bank_mask:0xf"
MF = "v_mfma_f32_16x16x32_f16"
OOB = 0x7ffffff0

def wave_reduce(k, op, vs, sdst):
    ops = op if isinstance(op, (list, tuple)) else [op] * len(vs)
    for sh in (1, 2, 4, 8):
        for o, v in zip(ops, vs): k(f"{o}_dpp v{v}, v{v}, v{v} row_ror:{sh} {DPPM}")
    for o, v in zip(ops, vs): k(f"{o}_dpp v{v}, v{v}, v{v} row_bcast:15 row_mask:0xa bank_mask:0xf")
    for o, v in zip(ops, vs): k(f"{o}_dpp v{v}, v{v}, v{v} row_bcast:31 row_mask:0xc bank_mask:0xf")
    for v, s in zip(vs, sdst): k(f"v_readlane_b32 s{s}, v{v}, 63")

def with_fill(k, lines, fill, per=3):
    fill = list(fill)
    for l in lines:
        k(l)
        for _ in range(per):
            if fill: k(fill.pop(0))
    for l in fill: k(l)

def cap(fn):
    t = Kern("x", 0, 0, 0); fn(t); return list(t.lines)

def sincos(k, c, s, vint, n, tmp):
    k(f"v_cvt_f32_u32 v{tmp}, v{vint}")
    k(f"v_mul_f32 v{tmp}, {fbits(1.0/n)}, v{tmp}")
    k(f"v_cos_f32 v{c}, v{tmp}")
    k(f"v_sin_f32 v{s}, v{tmp}")

def round_bf16(k, v):
    k(f"v_cvt_pk_bf16_f32 v{v}, v{v}, v{v}")
    k(f"v_lshlrev_b32 v{v}, 16, v{v}")

def unpack_bf16(k, dst, src, n, smask):
    for i in range(n):
        k(f"v_lshlrev_b32 v{dst+2*i}, 16, v{src+i}")
        k(f"v_and_b32 v{dst+2*i+1}, s{smask}, v{src+i}")

def cmul_tw(k, re, im, c, s, conj, t):
    k(f"v_mul_f32 v{t}, v{re}, v{s}")
    k(f"v_mul_f32 v{re}, v{re}, v{c}")
    if not conj:
        k(f"v_fmac_f32 v{re}, v{im}, v{s}")
        k(f"v_fma_f32 v{im}, v{im}, v{c}, -v{t}")
    else:
        k(f"v_fma_f32 v{re}, -v{im}, v{s}, v{re}")
        k(f"v_fma_f32 v{im}, v{im}, v{c}, v{t}")

def P2(r): return f"v[{r}:{r+1}]"
def cmul2(k, re, im, c, s, conj, t):
    NEG0 = "neg_lo:[1,0,0] neg_hi:[1,0,0]"; NEG2 = "neg_lo:[0,0,1] neg_hi:[0,0,1]"
    k(f"v_pk_mul_f32 {P2(t)}, {P2(re)}, {P2(s)}")
    k(f"v_pk_mul_f32 {P2(re)}, {P2(re)}, {P2(c)}")
    k(f"v_pk_fma_f32 {P2(re)}, {P2(im)}, {P2(s)}, {P2(re)} {NEG0 if conj else ''}")
    k(f"v_pk_fma_f32 {P2(im)}, {P2(im)}, {P2(c)}, {P2(t)} {'' if conj else NEG2}")

def tw_block(k, D, C, S, conj, T, OP):
    for v in (0, 2): cmul2(k, D + v, D + 4 + v, C + v, S + v, conj, T + v)
    for v in range(4): k(f"v_cvt_pk_f16_f32 v{OP+v}, v{D+v}, v{D+4+v}")

def ln_pk(k, X, A, RC, sP, sS, fill=(), extra=None):
    k(f"v_readfirstlane_b32 s{sP}, v{X}")
    for i in range(8): k(f"v_pk_add_f32 {P2(X+2*i)}, {P2(X+2*i)}, s[{sP}:{sP+1}] op_sel_hi:[1,0] neg_lo:[0,1] neg_hi:[0,1]")
    k(f"v_pk_add_f32 {P2(A)}, {P2(X)}, {P2(X+2)}\nv_pk_mul_f32 {P2(A+2)}, {P2(X)}, {P2(X)}")
    k(f"v_pk_fma_f32 {P2(A+2)}, {P2(X+2)}, {P2(X+2)}, {P2(A+2)}")
    for i in range(2, 8): k(f"v_pk_add_f32 {P2(A)}, {P2(A)}, {P2(X+2*i)}\nv_pk_fma_f32 {P2(A+2)}, {P2(X+2*i)}, {P2(X+2*i)}, {P2(A+2)}")
    k(f"v_add_f32 v{A}, v{A}, v{A+1}\nv_add_f32 v{A+2}, v{A+2}, v{A+3}")
    for l in fill: k(l)
    ops = ["v_add_f32", "v_add_f32"]; vs = [A, A + 2]; sd = [sS, sS + 1]
    if extra: ops.append(extra[0]); vs.append(extra[1]); sd.append(extra[2])
    wave_reduce(k, ops, vs, sd)
    k(f"v_mov_b32 v{A}, {fbits(1/1024)}\nv_mul_f32 v{RC+1}, s{sS}, v{A}\nv_mul_f32 v{RC}, s{sS+1}, v{A}")
    k(f"v_fma_f32 v{RC}, -v{RC+1}, v{RC+1}, v{RC}\nv_max_f32 v{RC}, 0, v{RC}")
    round_bf16(k, RC)
    k(f"v_add_f32 v{RC}, {fbits(1e-5)}, v{RC}")
    round_bf16(k, RC)
    k(f"v_sqrt_f32 v{RC}, v{RC}")
    round_bf16(k, RC)
    k(f"v_rcp_f32 v{RC}, v{RC}")
    k(f"v_mul_f32 v{RC+1}, v{RC+1}, v{RC}")
    for i in range(8): k(f"v_pk_fma_f32 {P2(X+2*i)}, {P2(X+2*i)}, {P2(RC)}, {P2(RC)} op_sel:[0,0,1] op_sel_hi:[1,0,1] neg_lo:[0,0,1] neg_hi:[0,0,1]")

def lane_ids(k):
    vL = k.v(); vI = k.v(); vG = k.v(); sW = k.s(); T = k.v(8)
    k(f"v_lshrrev_b32 v{T}, 6, v0\nv_and_b32 v{vL}, 63, v0")
    k(f"v_readfirstlane_b32 s{sW}, v{T}")
    k(f"v_and_b32 v{vI}, 15, v{vL}\nv_lshrrev_b32 v{vG}, 4, v{vL}")
    return vL, vI, vG, sW, T

C_TB = 17 * 1024
C_TP = (512 + 4) * 4

def code_pf(k, start, end, sIdx, vL, vTmp, vDum, back=False):
    m = k.mark(); p = k.s(2); sv = k.s(2); sO = k.s()
    lab = f"CP{len(k.lines)}_{k.name}"
    k(f"s_getpc_b64 {sr(p,2)}\n{lab}:")
    k(f"s_add_u32 s{p}, s{p}, {start}-{lab}\ns_addc_u32 s{p+1}, s{p+1}, {-1 if back else 0}\ns_lshl_b32 s{sO}, s{sIdx}, 7")
    k(f"v_lshl_add_u32 v{vTmp}, v{vL}, 12, s{sO}")
    k(f"v_cmp_gt_u32 vcc, {end}-{start}, v{vTmp}")
    k(f"s_and_saveexec_b64 {sr(sv,2)}, vcc\ns_cbranch_execz {lab}e")
    k(f"v_mov_b32 v{vTmp+1}, s{p+1}\nv_add_co_u32 v{vTmp}, vcc, s{p}, v{vTmp}\nv_addc_co_u32 v{vTmp+1}, vcc, 0, v{vTmp+1}, vcc")
    k(f"global_load_dword v{vDum}, {vr(vTmp,2)}, off")
    k(f"{lab}e:\ns_mov_b64 exec, {sr(sv,2)}")
    k.release(m)

CODEPF = True
TLBW = 0
def code_pf_w(k, start, end, sWave, wave, idx_code, vL, vTmp, vDum, back=False):
    if not CODEPF: return
    m = k.mark(); sI = k.s()
    lab = f"CW{len(k.lines)}_{k.name}"
    k(f"s_cmp_lg_u32 s{sWave}, {wave}\ns_cbranch_scc1 {lab}")
    k(idx_code.format(sI))
    code_pf(k, start, end, sI, vL, vTmp, vDum, back)
    k(f"{lab}:")
    k.release(m)
IDX_STD = "s_lshr_b32 s{0}, s2, 3\ns_and_b32 s{0}, s{0}, 31"
PT_K0 = []; PT_A = []; PT_B = []
def page_touch(k, items, sWave, wave, vL, vA, vDum):
    if not TLBW or not items: return
    mm = k.mark(); sI = k.s(); ps = [k.s(2) for _ in items]
    lab = f"PT{len(k.lines)}_{k.name}"
    k(f"s_cmp_lg_u32 s{sWave}, {wave}\ns_cbranch_scc1 {lab}")
    for p, it in zip(ps, items): k(f"s_load_dwordx2 {sr(p,2)}, s[0:1], {it[0]}")
    k(IDX_STD.format(sI))
    k(f"v_min_u32 v{vA}, {min(63, (1 << 30) // (32 * TLBW))}, v{vL}\nv_lshl_add_u32 v{vA}, v{vA}, 5, s{sI}\nv_lshlrev_b32 v{vA}, {TLBW.bit_length()-1}, v{vA}\ns_waitcnt lgkmcnt(0)")
    for p, it in zip(ps, items):
        m2 = k.mark(); d = k.srd(p, it[2], it[1])
        k(f"buffer_load_dword v{vDum}, v{vA}, {sr(d,4)}, 0 offen nt")
        k.release(m2)
    k(f"{lab}:")
    k.release(mm)

def gemv_job(k, pC, pM, pWS, pF, vL, sWave, T, endlabel):
    m = k.mark()
    sT = k.s(); sMask = k.s(); sO = k.s(); sCo = k.s(); sG = k.s(); sHj = k.s(); sStrip = k.s(); sRb = k.s(); sOut = k.s(); sU = k.s(); sCrit = k.s()
    vOff = k.v(); vOffC = k.v()
    k(f"v_bfe_u32 v{T+1}, v0, 3, 5\nv_mul_u32_u24 v{vOff}, 12288, v{T+1}")
    k(f"v_and_b32 v{T}, 7, v0\nv_lshl_add_u32 v{vOff}, v{T}, 4, v{vOff}\nv_lshlrev_b32 v{vOffC}, 1, v{T+1}")
    k(f"s_mov_b32 s{sMask}, 0xffff0000\ns_lshr_b32 s{sG}, s{sWave}, 2")
    k(f"s_mul_i32 s{sHj}, s2, 3\ns_add_u32 s{sHj}, s{sHj}, s{sG}\ns_sub_u32 s{sHj}, s{sHj}, 256\ns_cmp_lt_u32 s2, 128\ns_cselect_b32 s{sHj}, s2, s{sHj}\ns_cselect_b32 s{sCrit}, 2, 0")
    k(f"s_and_b32 s{sStrip}, s{sHj}, 63\ns_lshr_b32 s{sRb}, s{sHj}, 6")
    k(f"s_lshl_b32 s{sOut}, s{sRb}, 14\ns_lshl_b32 s{sT}, s{sStrip}, 8\ns_add_u32 s{sOut}, s{sOut}, s{sT}\ns_add_u32 s{sOut}, s{sOut}, {WS_MODQ}\ns_add_u32 s{sStrip}, s{sStrip}, 32")
    k(f"s_and_b32 s{sT}, s2, 31\ns_lshr_b32 s{sU}, s2, 5\ns_lshl_b32 s{sO}, s{sU}, 13\ns_lshl_b32 s{sCo}, s{sT}, 8\ns_add_u32 s{sO}, s{sO}, s{sCo}\ns_lshl_b32 s{sU}, s{sU}, 1\ns_add_u32 s{sU}, s{sU}, s{sG}")
    k(f"s_cmp_lt_u32 s{sG}, s{sCrit}\ns_cselect_b32 s{sStrip}, s{sT}, s{sStrip}\ns_cselect_b32 s{sRb}, s{sU}, s{sRb}\ns_cselect_b32 s{sOut}, s{sO}, s{sOut}")
    k(f"s_mul_i32 s{sO}, s{sRb}, {128*12288}\ns_lshl_b32 s{sT}, s{sStrip}, 7\ns_add_u32 s{sO}, s{sO}, s{sT}\ns_lshl_b32 s{sCo}, s{sRb}, 8")
    k("s_waitcnt lgkmcnt(0)")
    dM = k.srd(pM, 1024 * 6144 * 2); dC = k.srd(pC, 2048); dO = k.srd(pWS, WS_TAS)
    C = k.v(4); Wv = k.v(16); E = k.v(4); A = k.v(8)
    for i in range(4):
        k(f"buffer_load_ushort v{C+i}, v{vOffC}, {sr(dC,4)}, s{sCo} offen offset:{64*i}")
    for i in range(4):
        k(f"buffer_load_dwordx4 {vr(Wv+4*i,4)}, v{vOff}, {sr(dM,4)}, s{sO} offen nt")
        if i < 3: k(f"s_add_u32 s{sO}, s{sO}, {32*12288}")
    code_pf_w(k, "mega_kernel", "CODE_END", sWave, 11, IDX_STD, vL, T + 2, T + 4)
    SC = k.v(8); sM7 = k.s(); sMx = k.s()
    dR = k.srd(pF, W_BYTES); dI = k.srd(pF + 2, W_BYTES)
    k(f"s_mul_i32 s{sT}, s2, 8208\ns_add_u32 s{dR+2}, s{sT}, 8208\ns_mov_b32 s{dI+2}, s{dR+2}\nv_lshlrev_b32 v{T+2}, 4, v0\ns_mov_b32 s{sM7}, 0x7fff7fff")
    k(f"buffer_load_dwordx4 {vr(SC,4)}, v{T+2}, {sr(dR,4)}, s{sT} offen\nbuffer_load_dwordx4 {vr(SC+4,4)}, v{T+2}, {sr(dI,4)}, s{sT} offen")
    SP = k.v(4)
    k(f"v_and_b32 v{T+2}, 7, v{vL}\nv_lshrrev_b32 v{T+3}, 3, v{vL}\nv_mul_u32_u24 v{SP+2}, 1026, v{T+2}\nv_lshl_add_u32 v{SP+2}, v{T+3}, 9, v{SP+2}\nv_lshlrev_b32 v{SP+3}, 10, v{vL}")
    k(f"v_subrev_u32 v{T+2}, 640, v0\nv_cmp_gt_u32 vcc, 24, v{T+2}\nv_mov_b32 v{T+2}, {OOB}\nv_cndmask_b32 v{SP+2}, v{T+2}, v{SP+2}, vcc\nv_cndmask_b32 v{SP+3}, v{T+2}, v{SP+3}, vcc")
    k(f"buffer_load_ushort v{SP}, v{SP+2}, {sr(dR,4)}, s{sT} offen\nbuffer_load_ushort v{SP+1}, v{SP+2}, {sr(dI,4)}, s{sT} offen")
    k(f"s_sub_u32 s{sT}, s{sWave}, 9\ns_cmp_ge_u32 s{sT}, 2\ns_cbranch_scc1 GV_nz")
    dZ = k.srd(pWS, 0x5A000, WS_FLAG)
    for i in range(4): k(f"v_mov_b32 v{A+i}, 0")
    k(f"s_lshl_b32 s{sT}, s{sT}, 8\ns_add_u32 s{sT}, s{sT}, s2\ns_lshl_b32 s{sT}, s{sT}, 10\nv_lshlrev_b32 v{T+2}, 4, v{vL}")
    k(f"buffer_store_dwordx4 {vr(A,4)}, v{T+2}, {sr(dZ,4)}, s{sT} offen sc1")
    k("GV_nz:")
    vA = k.v()
    k(f"v_and_b32 v{T}, 7, v{vL}\nv_lshlrev_b32 v{T}, 5, v{T}\nv_lshrrev_b32 v{T+1}, 4, v{vL}\nv_lshl_add_u32 v{T}, v{T+1}, 2, v{T}")
    k(f"s_lshl_b32 s{sT}, s{sWave}, 8\nv_add_u32 v{vA}, s{sT}, v{T}")
    k("s_waitcnt vmcnt(8)")
    for i in range(4): k(f"v_lshlrev_b32 v{C+i}, 16, v{C+i}\nv_mul_f32 v{E+i}, {fbits(-LOG2E)}, v{C+i}")
    for i in range(4): k(f"v_exp_f32 v{E+i}, v{E+i}")
    for i in range(4): k(f"v_add_f32 v{E+i}, 1.0, v{E+i}")
    for i in range(4): k(f"v_rcp_f32 v{E+i}, v{E+i}")
    for i in range(4): k(f"v_mul_f32 v{C+i}, v{C+i}, v{E+i}")
    for i in range(4): round_bf16(k, C + i)
    for i in range(4):
        k(f"s_waitcnt vmcnt({7-i})")
        sel = "op_sel:[0,1,0] op_sel_hi:[1,1,1]" if i & 1 else "op_sel_hi:[1,0,1]"
        for q in range(4):
            t = T + 2 * (q & 1)
            k(f"v_lshlrev_b32 v{t}, 16, v{Wv+4*i+q}\nv_and_b32 v{t+1}, s{sMask}, v{Wv+4*i+q}")
            if i == 0: k(f"v_pk_mul_f32 {P2(A+2*q)}, {P2(t)}, {P2(C)} op_sel_hi:[1,0]")
            else: k(f"v_pk_fma_f32 {P2(A+2*q)}, {P2(t)}, {P2(C+(i&2))}, {P2(A+2*q)} {sel}")
    for q in range(4): k(f"v_permlane16_swap_b32 v{A+2*q}, v{A+2*q+1}")
    for q in range(4): k(f"v_add_f32 v{A+2*q}, v{A+2*q}, v{A+2*q+1}")
    k(f"v_permlane32_swap_b32 v{A}, v{A+2}\nv_permlane32_swap_b32 v{A+4}, v{A+6}")
    k(f"v_add_f32 v{A}, v{A}, v{A+2}\nv_add_f32 v{A+4}, v{A+4}, v{A+6}")
    k(f"v_add_f32_dpp v{A}, v{A}, v{A} row_ror:8 {DPPM}\nv_add_f32_dpp v{A+4}, v{A+4}, v{A+4} row_ror:8 {DPPM}")
    k(f"ds_write2_b32 v{vA}, v{A}, v{A+4} offset0:0 offset1:4")
    k("s_waitcnt vmcnt(0)")
    k(f"v_lshl_or_b32 v{SP}, v{SP+1}, 16, v{SP}\ns_lshl_b32 s{sT}, s2, 2\ns_add_u32 s{sT}, s{sT}, {WS_SPC}")
    k(f"buffer_store_dword v{SP}, v{SP+3}, {sr(dO,4)}, s{sT} offen")
    for i in range(8): k(f"v_and_b32 v{SC+i}, s{sM7}, v{SC+i}")
    for n in (4, 2, 1):
        for i in range(n): k(f"v_pk_max_u16 v{SC+i}, v{SC+i}, v{SC+n+i}")
    k(f"v_lshrrev_b32 v{T}, 16, v{SC}\nv_and_b32 v{SC}, 0xffff, v{SC}\nv_max_u32 v{SC}, v{SC}, v{T}")
    wave_reduce(k, "v_max_u32", [SC], [sMx])
    k(f"s_lshl_b32 s{sT}, s{sWave}, 2\ns_add_u32 s{sT}, s{sT}, 4096\nv_mov_b32 v{T}, s{sT}\nv_mov_b32 v{SC}, s{sMx}\nds_write_b32 v{T}, v{SC}")
    k("s_waitcnt lgkmcnt(0)\ns_barrier")
    k(f"s_cmp_lg_u32 s{sWave}, 1\ns_cbranch_scc1 GV_nm")
    k(f"v_mov_b32 v{T}, 4096\nds_read_b128 {vr(SC,4)}, v{T}\nds_read_b128 {vr(SC+4,4)}, v{T} offset:16\nds_read_b32 v{T+1}, v{T} offset:32\ns_lshl_b32 s{sT}, s2, 2\ns_add_u32 s{sT}, s{sT}, {WS_WMAX}\nv_mov_b32 v{T}, 0\ns_waitcnt lgkmcnt(0)")
    k(f"v_max3_u32 v{SC}, v{SC}, v{SC+1}, v{SC+2}\nv_max3_u32 v{SC+4}, v{SC+4}, v{SC+5}, v{SC+6}\nv_max3_u32 v{SC}, v{SC}, v{SC+3}, v{SC+7}\nv_max3_u32 v{SC}, v{SC}, v{SC+4}, v{T+1}")
    k(f"buffer_store_dword v{SC}, v{T}, {sr(dO,4)}, s{sT} offen")
    k("GV_nm:")
    k(f"s_and_b32 s{sT}, s{sWave}, 3\ns_cmp_lg_u32 s{sT}, 0\ns_cbranch_scc1 {endlabel}")
    k(f"s_add_u32 s{sT}, s{sG}, 1\ns_cmp_eq_u32 s{sT}, s{sCrit}\ns_cbranch_scc1 {endlabel}")
    k(f"s_lshl_b32 s{sT}, s{sWave}, 8\nv_lshlrev_b32 v{T}, 2, v{vL}\nv_add_u32 v{T+1}, s{sT}, v{T}")
    for i in range(4): k(f"ds_read2st64_b32 {vr(A+2*i,2)}, v{T+1} offset0:{2*i} offset1:{2*i+1}")
    k(f"s_cmp_lt_u32 s{sG}, s{sCrit}\ns_cselect_b64 vcc, -1, 0")
    k("s_waitcnt lgkmcnt(0)")
    for i in range(4): k(f"v_add_f32 v{A+2*i}, v{A+2*i}, v{A+2*i+1}")
    k(f"v_add_f32 v{A}, v{A}, v{A+2}\nv_add_f32 v{A+4}, v{A+4}, v{A+6}\nv_cndmask_b32 v{A+4}, 0, v{A+4}, vcc\nv_add_f32 v{A}, v{A}, v{A+4}")
    k(f"buffer_store_dword v{A}, v{T}, {sr(dO,4)}, s{sOut} offen sc1")
    k.stamp_flush()
    k("s_endpgm")
    k.release(m)

def tab_a_common(k, vI, vG, T, R, part):
    def f1(ct, ks, ri): return R + ((ct * 2 + ks) * 2 + ri) * 4
    sg = 1 / math.sqrt(32)
    for ct in range(2):
        if part != ct: continue
        for ks in range(2):
            for e in range(4):
                k(f"v_add_u32 v{T}, {16*ks+4*e}, v{vG}\nv_add_u32 v{T+1}, {16*ct}, v{vI}")
                k(f"v_mul_u32_u24 v{T}, v{T}, v{T+1}\nv_and_b32 v{T}, 31, v{T}")
                sincos(k, T + 1, T + 2, T, 32, T + 3)
                k(f"v_mul_f32 v{T+1}, {fbits(sg)}, v{T+1}\nv_mul_f32 v{T+2}, {fbits(sg)}, v{T+2}")
                k(f"v_cvt_pk_f16_f32 v{f1(ct,ks,0)+e}, v{T+1}, v{T+2}\nv_cvt_pk_f16_f32 v{f1(ct,ks,1)+e}, -v{T+2}, v{T+1}")
        return (4 * ct, 4)
    for ct in range(2):
        for v in range(4):
            k(f"v_lshl_add_u32 v{T}, v{vG}, 2, {v}\nv_add_u32 v{T+1}, {16*ct}, v{vI}\nv_mul_u32_u24 v{T}, v{T}, v{T+1}")
            sincos(k, R + 32 + 4 * ct + v, R + 40 + 4 * ct + v, T, 512, T + 3)
    for v in range(4):
        k(f"v_lshl_add_u32 v{T}, v{vG}, 2, {v}\nv_mul_u32_u24 v{T}, v{T}, v{vI}\nv_and_b32 v{T}, 15, v{T}")
        sincos(k, T + 1, T + 2, T, 16, T + 3)
        k(f"v_mul_f32 v{T+1}, {fbits(0.25)}, v{T+1}\nv_mul_f32 v{T+2}, {fbits(0.25)}, v{T+2}")
        k(f"v_cvt_pk_f16_f32 v{R+48+v}, v{T+1}, v{T+2}\nv_cvt_pk_f16_f32 v{R+52+v}, -v{T+2}, v{T+1}")
    return (8, 6)

def tab_a_wave(k, vI, vG, T, R, sJ, sT):
    vRho = T + 7
    k(f"v_and_b32 v{vRho}, 7, v{vI}")
    for q in range(2):
        for x in range(2):
            d = R + 2 * q + x
            k(f"v_lshrrev_b32 v{T}, 1, v{vG}\nv_lshl_add_u32 v{T}, v{T}, 4, v{vI}")
            k(f"s_lshl_b32 s{sT}, s{sJ}, 6\ns_add_u32 s{sT}, s{sT}, {32*q}\nv_add_u32 v{T}, s{sT}, v{T}")
            if x: k(f"v_sub_u32 v{T}, 512, v{T}\nv_and_b32 v{T}, 511, v{T}")
            k(f"v_lshrrev_b32 v{T+1}, 3, v{T}\nv_and_b32 v{T+1}, 28, v{T+1}\nv_xor_b32 v{T}, v{T}, v{T+1}")
            k(f"v_and_b32 v{T+1}, 1, v{vG}\nv_mul_u32_u24 v{T+1}, {4*2048+64}, v{T+1}")
            k(f"v_lshl_add_u32 v{d}, v{T}, 2, v{T+1}\nv_add_u32 v{d}, {A_BASE}, v{d}")
    for q in range(2):
        for ins in range(2):
            k(f"v_lshrrev_b32 v{T}, 3, v{vI}\nv_lshlrev_b32 v{T}, 1, v{T}")
            k(f"s_lshl_b32 s{sT}, s{sJ}, 3\ns_add_u32 s{sT}, s{sT}, {4*q+ins}\nv_add_u32 v{T}, s{sT}, v{T}")
            k(f"v_lshlrev_b32 v{T+1}, 6, v{vRho}\nv_subrev_u32 v{T+1}, 32, v{T+1}\nv_max_i32 v{T+1}, 0, v{T+1}")
            k(f"v_add_u32 v{T+1}, v{T+1}, v{T}\nv_mul_u32_u24 v{T+1}, {ZA_PITCH}, v{T+1}")
            k(f"v_and_b32 v{T+2}, 1, v{vG}\nv_lshl_add_u32 v{T+1}, v{T+2}, 5, v{T+1}")
            k(f"v_lshrrev_b32 v{T+2}, 1, v{vG}\nv_lshl_add_u32 v{T+1}, v{T+2}, 4, v{T+1}")
            k(f"v_and_b32 v{T+2}, 3, v{vRho}\nv_cmp_eq_u32 vcc, 0, v{T+2}\nv_mov_b32 v{T+3}, 64\nv_cndmask_b32 v{T+3}, v{T+3}, 32, vcc")
            k(f"v_cmp_lt_u32 vcc, 4, v{vRho}\nv_cndmask_b32 v{T+3}, v{T+3}, 0, vcc")
            k(f"v_cmp_lt_u32 vcc, v{T}, v{T+3}\nv_mov_b32 v{T+2}, {OOB}\nv_cndmask_b32 v{R+4+2*q+ins}, v{T+2}, v{T+1}, vcc")
    return 2

def tab_a_s0(k, vI, vG, T, R, sS0):
    s8 = 1 / math.sqrt(8)
    vSc = T + 6; vRho = T + 7
    k(f"v_lshrrev_b32 v{T}, 3, v{vI}\nv_lshrrev_b32 v{T+1}, 1, v{vG}\nv_cmp_eq_u32 vcc, v{T}, v{T+1}")
    k(f"v_mov_b32 v{T+2}, {fbits(s8)}\nv_cndmask_b32 v{vSc}, 0, v{T+2}, vcc\nv_and_b32 v{vRho}, 7, v{vI}")
    for e in range(4):
        k(f"v_and_b32 v{T}, 1, v{vG}\nv_lshl_add_u32 v{T}, v{T}, 2, {e}\nv_lshl_add_u32 v{T}, v{T}, 8, s{sS0}")
        k(f"v_mul_u32_u24 v{T}, v{T}, v{vRho}\nv_and_b32 v{T}, 0x7ff, v{T}")
        sincos(k, T + 1, T + 2, T, 2048, T + 3)
        k(f"v_mul_f32 v{T+1}, v{vSc}, v{T+1}\nv_mul_f32 v{T+2}, v{vSc}, v{T+2}")
        k(f"v_cvt_pk_f16_f32 v{R+e}, v{T+1}, v{T+2}\nv_cvt_pk_f16_f32 v{R+4+e}, -v{T+2}, v{T+1}")
        k(f"v_cvt_pk_f16_f32 v{R+8+e}, v{T+1}, -v{T+2}\nv_cvt_pk_f16_f32 v{R+12+e}, -v{T+2}, -v{T+1}")
    return 4

def tab_b_common(k, vI, vG, T, R):
    for v in range(4):
        k(f"v_lshl_add_u32 v{T}, v{vG}, 2, {v}\nv_mul_u32_u24 v{T}, v{T}, v{vI}")
        sincos(k, R + v, R + 4 + v, T, 256, T + 3)
        k(f"v_and_b32 v{T}, 15, v{T}")
        sincos(k, R + 24 + v, R + 28 + v, T, 16, T + 3)
        k(f"v_mul_f32 v{T+1}, {fbits(0.25)}, v{R+24+v}\nv_mul_f32 v{T+2}, {fbits(0.25)}, v{R+28+v}")
        k(f"v_cvt_pk_f16_f32 v{R+8+v}, v{T+1}, v{T+2}\nv_cvt_pk_f16_f32 v{R+12+v}, -v{T+2}, v{T+1}")
        k(f"v_cvt_pk_f16_f32 v{R+16+v}, v{T+1}, -v{T+2}\nv_cvt_pk_f16_f32 v{R+20+v}, v{T+2}, v{T+1}")
    return 8

def tab_c_common(k, vI, vG, T, R, part):
    for e in range(4 if part == 2 else 0):
        k(f"v_add_u32 v{T}, {4*e}, v{vG}\nv_mul_u32_u24 v{T}, v{T}, v{vI}\nv_and_b32 v{T}, 15, v{T}")
        sincos(k, T + 1, T + 2, T, 16, T + 3)
        k(f"v_mul_f32 v{T+1}, {fbits(0.25)}, v{T+1}\nv_mul_f32 v{T+2}, {fbits(0.25)}, v{T+2}")
        k(f"v_cvt_pk_f16_f32 v{R+e}, v{T+1}, -v{T+2}\nv_cvt_pk_f16_f32 v{R+4+e}, v{T+2}, v{T+1}")
    for rt in range(2 if part == 2 else 0):
        for v in range(4):
            k(f"v_lshl_add_u32 v{T}, v{vG}, 2, {16*rt+v}\nv_mul_u32_u24 v{T}, v{T}, v{vI}")
            sincos(k, R + 8 + 4 * rt + v, R + 16 + 4 * rt + v, T, 512, T + 3)
    if part == 2: return (0, 6)
    sg = 1 / math.sqrt(32)
    for ct in (part,):
        for rt in range(2):
            for v in range(4):
                k(f"v_lshl_add_u32 v{T}, v{vG}, 2, {16*rt+v}\nv_add_u32 v{T+1}, {16*ct}, v{vI}\nv_mul_u32_u24 v{T}, v{T}, v{T+1}\nv_and_b32 v{T}, 31, v{T}")
                sincos(k, T + 1, T + 2, T, 32, T + 3)
                k(f"v_mul_f32 v{T+1}, {fbits(sg)}, v{T+1}\nv_mul_f32 v{T+2}, {fbits(sg)}, v{T+2}")
                b = R + 24 + ((ct * 2 + rt) * 2) * 4
                k(f"v_cvt_pk_f16_f32 v{b+v}, v{T+1}, -v{T+2}\nv_cvt_pk_f16_f32 v{b+4+v}, v{T+2}, v{T+1}")
    return (6 + 4 * part, 4)

def tab_c_wave(k, vI, vG, T, R, sJ, sT):
    sO = k.s()
    vY = T + 6; vHf = T + 7
    k(f"v_lshrrev_b32 v{vY}, 1, v{vG}\nv_and_b32 v{vHf}, 1, v{vG}")
    for q in range(2):
        k(f"s_lshl_b32 s{sT}, s{sJ}, 5\ns_add_u32 s{sT}, s{sT}, {16*q}")
        k(f"v_lshl_add_u32 v{T}, v{vY}, 8, v{vI}\nv_add_u32 v{T}, s{sT}, v{T}")
        k(f"v_sub_u32 v{T+1}, 512, v{T}\nv_and_b32 v{T+1}, 511, v{T+1}")
        k(f"v_lshlrev_b32 v{T}, 3, v{T}\nv_lshl_add_u32 v{T+1}, v{T+1}, 3, 4")
        for e in range(4):
            if e < 3: k(f"v_xor_b32 v{T+4}, v{vY}, v{vHf}")
            else: k(f"v_mov_b32 v{T+4}, v{vY}")
            k(f"v_cmp_eq_u32 vcc, 0, v{T+4}")
            k(f"v_add_u32 v{T+2}, {e}, v{vHf}\nv_lshlrev_b32 v{T+2}, 6, v{T+2}\nv_subrev_u32 v{T+2}, 32, v{T+2}\nv_max_i32 v{T+2}, 0, v{T+2}")
            k(f"v_cndmask_b32 v{T+3}, v{T+1}, v{T}, vcc")
            k(f"v_lshl_add_u32 v{R+4*q+e}, v{T+2}, 6, v{T+3}")
            if e in (0, 3):
                k(f"v_lshl_add_u32 v{T+4}, v{vHf}, 16, v{T}\nv_cmp_eq_u32 vcc, {2048 + (65536 if e else 0)}, v{T+4}\nv_mov_b32 v{T+5}, {C_SPEC + (4 if e else 0)}\nv_cndmask_b32 v{R+4*q+e}, v{R+4*q+e}, v{T+5}, vcc")
    for q in range(2):
        k(f"s_and_b32 s{sT}, s{sJ}, 1\ns_xor_b32 s{sT}, s{sT}, {q}\ns_lshl_b32 s{sT}, s{sT}, 6")
        k(f"s_lshl_b32 s{sO}, s{sJ}, 7\ns_add_u32 s{sT}, s{sT}, s{sO}\ns_add_u32 s{sT}, s{sT}, {C_TB}")
        k(f"v_and_b32 v{T}, 7, v{vI}\nv_mul_u32_u24 v{T}, {C_TP}, v{T}")
        k(f"v_lshrrev_b32 v{T+1}, 3, v{vI}\nv_lshl_add_u32 v{T}, v{T+1}, 10, v{T}\nv_lshl_add_u32 v{T}, v{vG}, 4, v{T}")
        k(f"v_add_u32 v{R+8+q}, s{sT}, v{T}")
    k(f"s_mul_i32 s{sT}, s{sJ}, {C_TP}\ns_add_u32 s{sT}, s{sT}, {C_TB}")
    for rt in range(2):
        k(f"v_xor_b32 v{T}, {rt}, v{vHf}\nv_lshl_add_u32 v{T}, v{T}, 4, v{vI}\nv_lshl_add_u32 v{T}, v{vG}, 5, v{T}")
        k(f"v_lshl_add_u32 v{R+10+rt}, v{T}, 2, s{sT}")
    return 3

def tab_c_s0(k, vI, vG, T, R, sS0, sSign):
    s8 = 1 / math.sqrt(8)
    vY = T + 6; vHf = T + 7; vSc = R + 8; vS = R + 9
    k(f"v_lshrrev_b32 v{vY}, 1, v{vG}\nv_and_b32 v{vHf}, 1, v{vG}")
    k(f"v_lshrrev_b32 v{T}, 3, v{vI}\nv_cmp_eq_u32 vcc, v{T}, v{vY}\nv_mov_b32 v{T+2}, {fbits(s8)}\nv_cndmask_b32 v{vSc}, 0, v{T+2}, vcc")
    k(f"v_and_b32 v{vS}, 7, v{vI}\nv_lshl_add_u32 v{vS}, v{vS}, 8, s{sS0}")
    for e in range(4):
        k(f"v_add_u32 v{T+4}, {e}, v{vHf}")
        if e < 3: k(f"v_xor_b32 v{T+5}, v{vY}, v{vHf}")
        else: k(f"v_mov_b32 v{T+5}, v{vY}")
        k(f"v_mul_u32_u24 v{T}, v{vS}, v{T+4}\nv_and_b32 v{T}, 0x7ff, v{T}")
        sincos(k, T + 1, T + 2, T, 2048, T + 3)
        k(f"v_mul_f32 v{T+1}, v{vSc}, v{T+1}\nv_mul_f32 v{T+2}, v{vSc}, v{T+2}")
        k(f"v_cvt_pk_f16_f32 v{R+e}, v{T+1}, -v{T+2}\nv_cvt_pk_f16_f32 v{R+4+e}, v{T+2}, v{T+1}")
        k(f"v_mul_lo_u32 v{T}, v{T+5}, s{sSign}\nv_xor_b32 v{R+4+e}, v{T}, v{R+4+e}")
    return 2

WB_RHO = 65 * 16384
def w_job(k, pW, pWS, first, vL, sWave, T, endlabel):
    m00 = k.mark()
    if k.prof: k._st = k._st[:1]; k._stidx = 6
    k(f"s_cmp_ge_u32 s{sWave}, 5\ns_cbranch_scc1 {endlabel}")
    sA = k.s(); sB = k.s(); sT = k.s()
    sJob = k.s(); sRho = k.s(); sWh = k.s(); sK1 = k.s(); sRow = k.s(); sStep = k.s(); sMis = k.s(); sDs = k.s()
    k(f"s_sub_u32 s{sJob}, s2, {first}\ns_lshr_b32 s{sRho}, s{sJob}, 5\ns_bfe_u32 s{sWh}, s{sJob}, 0x10004\ns_and_b32 s{sK1}, s{sJob}, 15")
    k(f"s_lshl_b32 s{sRow}, s{sK1}, 3\ns_add_u32 s{sRow}, s{sRow}, s{sRho}")
    k(f"s_sub_u32 s{sT}, 2048, s{sRow}\ns_cmp_eq_u32 s{sWh}, 1\ns_cselect_b32 s{sRow}, s{sT}, s{sRow}\ns_movk_i32 s{sStep}, 128\ns_cselect_b32 s{sStep}, -128, s{sStep}")
    k(f"s_and_b32 s{sMis}, s{sRow}, 7")
    vSt = k.v(8); vOf = k.v(4)
    k(f"v_lshrrev_b32 v{T+2}, 2, v0\nv_and_b32 v{T+3}, 3, v0")
    k(f"v_cmp_gt_u32 vcc, 66, v{T+2}\nv_mov_b32 v{T}, {OOB-0x1000000}\nv_lshlrev_b32 v{T+4}, 4, v{T+2}\nv_cndmask_b32 v{T+4}, v{T}, v{T+4}, vcc")
    for r in range(4):
        k(f"v_lshl_add_u32 v{T+1}, v{T+3}, 2, {r}\nv_mul_i32_i24 v{T+1}, s{sStep}, v{T+1}\nv_add_u32 v{T+1}, s{sRow}, v{T+1}\nv_and_b32 v{T+1}, 2047, v{T+1}")
        k(f"v_mul_u32_u24 v{T+1}, 1026, v{T+1}\nv_and_b32 v{T+1}, -16, v{T+1}\nv_add_u32 v{vOf+r}, v{T+1}, v{T+4}")
    k("s_waitcnt lgkmcnt(0)")
    k.stamp()
    dR = k.srd(pW, W_BYTES); dI = k.srd(pW + 2, W_BYTES)
    RR = k.v(16); RI = k.v(16); P = k.v(32)
    for r in range(4):
        k(f"buffer_load_dwordx4 {vr(RR+4*r,4)}, v{vOf+r}, {sr(dR,4)}, 0 offen nt")
        k(f"buffer_load_dwordx4 {vr(RI+4*r,4)}, v{vOf+r}, {sr(dI,4)}, 0 offen nt")
    k(f"s_lshl_b32 s{sDs}, s{sStep}, 4")
    k(f"v_lshlrev_b32 v{T+1}, 3, v{T+2}\nv_subrev_u32 v{T+1}, s{sMis}, v{T+1}\nv_mul_lo_u32 v{T+1}, v{T+1}, s{sDs}")
    k(f"s_lshl_b32 s{sT}, s{sWh}, 20\nv_add_u32 v{T+1}, s{sT}, v{T+1}\nv_lshl_add_u32 v{vSt}, v{T+3}, 4, v{T+1}")
    for j in range(1, 8): k(f"v_add_u32 v{vSt+j}, s{sDs}, v{vSt+j-1}")
    dB = k.s(4)
    k(f"s_mul_i32 s{sA}, s{sRho}, {WB_RHO}\ns_add_u32 s{sA}, s{sA}, {WS_WB}\ns_add_u32 s{dB}, s{pWS}, s{sA}\ns_addc_u32 s{dB+1}, s{pWS+1}, 0\ns_mov_b32 s{dB+2}, {513*2048}\ns_mov_b32 s{dB+3}, 0x20000")
    dMx = k.srd(pWS, 640, WS_WMAX)
    k(f"s_lshl_b32 s{sA}, s{sWh}, 10\ns_lshl_b32 s{sB}, s{sK1}, 6\ns_add_u32 s{sA}, s{sA}, s{sB}")
    sM7 = k.s(); vMx = k.v(); sP0 = k.s(); sP1 = k.s()
    k(f"s_mov_b32 s{sM7}, 0x7fff7fff\ns_mov_b32 s{sP0}, 0x05040100\ns_mov_b32 s{sP1}, 0x07060302")
    k.stamp()
    k("s_waitcnt vmcnt(0)")
    k.stamp()
    for j in range(8):
        for r in range(4):
            k(f"v_perm_b32 v{P+4*j+r}, v{RI+4*r+(j>>1)}, v{RR+4*r+(j>>1)}, s{sP1 if j & 1 else sP0}")
        k(f"buffer_store_dwordx4 {vr(P+4*j,4)}, v{vSt+j}, {sr(dB,4)}, s{sA} offen sc1")
    k.stamp()
    k(f"v_and_b32 v{vMx}, s{sM7}, v{RR}")
    for r in range(1, 32):
        k(f"v_and_b32 v{RR+r}, s{sM7}, v{RR+r}\nv_pk_max_u16 v{vMx}, v{vMx}, v{RR+r}")
    k(f"v_lshrrev_b32 v{T}, 16, v{vMx}\nv_and_b32 v{vMx}, 0xffff, v{vMx}\nv_max_u32 v{vMx}, v{vMx}, v{T}")
    wave_reduce(k, "v_max_u32", [vMx], [sA])
    k(f"s_lshl_b32 s{sT}, s{sWave}, 2\nv_mov_b32 v{T}, s{sT}\nv_mov_b32 v{vMx}, s{sA}\nds_write_b32 v{T}, v{vMx}")
    if k.prof: k("s_waitcnt vmcnt(0)")
    k.stamp_flush()
    k("s_waitcnt lgkmcnt(0)\ns_barrier")
    k(f"s_cmp_lg_u32 s{sWave}, 0\ns_cbranch_scc1 {endlabel}")
    k(f"v_mov_b32 v{T}, 0\nds_read_b128 {vr(RR,4)}, v{T}\nds_read_b32 v{RR+4}, v{T} offset:16\ns_lshl_b32 s{sT}, s{sJob}, 2\ns_waitcnt lgkmcnt(0)")
    k(f"v_max3_u32 v{RR}, v{RR}, v{RR+1}, v{RR+2}\nv_max3_u32 v{RR}, v{RR}, v{RR+3}, v{RR+4}")
    k(f"buffer_store_dword v{RR}, v{T}, {sr(dMx,4)}, s{sT} offen")
    k("s_endpgm")
    k.release(m00)

NSCAN = 129
def scan_job(k, pW, pWS, first, vL, sWave, T, endlabel):
    m00 = k.mark()
    sT = k.s(); sO = k.s(); sM7 = k.s(); sA = k.s(); sJob = k.s()
    k(f"s_sub_u32 s{sJob}, s2, {first}\ns_lshl_b32 s{sO}, s{sJob}, 14\nv_lshlrev_b32 v{T}, 4, v0\nv_add_u32 v{T+1}, 8192, v{T}\ns_mov_b32 s{sM7}, 0x7fff7fff")
    k("s_waitcnt lgkmcnt(0)")
    dR = k.srd(pW, W_BYTES); dI = k.srd(pW + 2, W_BYTES); dMx = k.srd(pWS, 640, WS_WMAX)
    X = k.v(16)
    for h in range(2):
        k(f"buffer_load_dwordx4 {vr(X+8*h,4)}, v{T+h}, {sr(dR,4)}, s{sO} offen\nbuffer_load_dwordx4 {vr(X+8*h+4,4)}, v{T+h}, {sr(dI,4)}, s{sO} offen")
    k("s_waitcnt vmcnt(0)")
    for i in range(16): k(f"v_and_b32 v{X+i}, s{sM7}, v{X+i}")
    for n in (8, 4, 2, 1):
        for i in range(n): k(f"v_pk_max_u16 v{X+i}, v{X+i}, v{X+n+i}")
    k(f"v_lshrrev_b32 v{T}, 16, v{X}\nv_and_b32 v{X}, 0xffff, v{X}\nv_max_u32 v{X}, v{X}, v{T}")
    wave_reduce(k, "v_max_u32", [X], [sA])
    k(f"s_lshl_b32 s{sT}, s{sWave}, 2\nv_mov_b32 v{T}, s{sT}\nv_mov_b32 v{X}, s{sA}\nds_write_b32 v{T}, v{X}")
    k("s_waitcnt lgkmcnt(0)\ns_barrier")
    k(f"s_cmp_lg_u32 s{sWave}, 0\ns_cbranch_scc1 {endlabel}")
    k(f"v_mov_b32 v{T}, 0\nds_read_b128 {vr(X,4)}, v{T}\nds_read_b128 {vr(X+4,4)}, v{T} offset:16\ns_lshl_b32 s{sT}, s{sJob}, 2\ns_waitcnt lgkmcnt(0)")
    k(f"v_max3_u32 v{X}, v{X}, v{X+1}, v{X+2}\nv_max3_u32 v{X+4}, v{X+4}, v{X+5}, v{X+6}\nv_max3_u32 v{X}, v{X}, v{X+3}, v{X+7}\nv_max_u32 v{X}, v{X}, v{X+4}")
    k(f"buffer_store_dword v{X}, v{T}, {sr(dMx,4)}, s{sT} offen")
    k("s_endpgm")
    k.release(m00)

K0_NG = 384; K0_NW = 0; K0_NS = 32
def gen_k0(pf=(0, 0)):
    G0 = 10
    G2 = G0; G3 = 256 + G0 + K0_NS
    k = Kern("k0_kernel", G3, 768, 4096 + 64)
    pCW = k.s(4); pF = k.s(4); pWS = k.s(2)
    k(f"s_cmp_ge_u32 s2, {G3}\ns_cbranch_scc1 K0_end")
    k.stamp(True)
    k(f"s_load_dwordx4 {sr(pCW,4)}, s[0:1], 64")
    k(f"s_load_dwordx4 {sr(pF,4)}, s[0:1], 8")
    k(f"s_load_dwordx2 {sr(pWS,2)}, s[0:1], 96")
    k.stamp_init2(0, pWS)
    vL, vI, vG, sWave, T = lane_ids(k)
    sT = k.s()
    k(f"s_cmp_ge_u32 s2, 256\ns_cbranch_scc1 K0_side")
    gemv_job(k, pCW, pCW + 2, pWS, pF, vL, sWave, T, "K0_end")
    k("K0_side:")
    k(f"s_cmp_ge_u32 s{sWave}, 8\ns_cbranch_scc1 K0_end\ns_setprio 2\ns_sub_u32 s2, s2, 256")
    k(f"s_cmp_lt_u32 s2, {G0}\ns_cbranch_scc1 K0_tab")
    R = k.v(56); vOff = k.v(); sO = k.s(); sSign = k.s()
    def store(nq, base_off, soff=None, R0=R):
        d = k.srd(pWS, 0x100000, base_off)
        for q in range(nq):
            if q % 4 == 0 and q: k(f"v_add_u32 v{vOff}, 4096, v{vOff}")
            k(f"buffer_store_dwordx4 {vr(R0+4*q,4)}, v{vOff}, {sr(d,4)}, {'s%d' % soff if soff is not None else 0} offen offset:{1024*(q%4)}")
    k("K0_s0:")
    m = k.mark()
    sS0 = k.s()
    k(f"s_sub_u32 s{sS0}, s2, {G2}\ns_lshl_b32 s{sS0}, s{sS0}, 3\ns_add_u32 s{sS0}, s{sS0}, s{sWave}\ns_mov_b32 s{sSign}, 0x80008000")
    k(f"v_lshlrev_b32 v{vOff}, 4, v{vL}")
    tab_a_s0(k, vI, vG, T, R, sS0)
    k(f"s_lshl_b32 s{sO}, s{sS0}, 12\ns_waitcnt lgkmcnt(0)")
    store(4, WS_TAS, sO)
    tab_c_s0(k, vI, vG, T, R + 16, sS0, sSign)
    k(f"s_lshl_b32 s{sO}, s{sS0}, 11")
    store(2, WS_TCS, sO, R + 16)
    k("s_endpgm")
    k.release(m)
    k("K0_tab:")
    k(f"v_lshlrev_b32 v{vOff}, 4, v{vL}\ns_waitcnt lgkmcnt(0)")
    k(f"s_cmp_eq_u32 s2, 0\ns_cbranch_scc1 K0_tw_a\ns_cmp_eq_u32 s2, 1\ns_cbranch_scc1 K0_tw_c")
    k(f"s_cmp_eq_u32 s2, 2\ns_cbranch_scc1 K0_fl")
    k(f"s_cmp_lg_u32 s{sWave}, 0\ns_cbranch_scc1 K0_end")
    for j in range(3, G0 - 1): k(f"s_cmp_eq_u32 s2, {j}\ns_cbranch_scc1 K0_t{j}")
    k(f"s_branch K0_t{G0-1}")
    k("K0_fl:")
    m = k.mark()
    for i in range(4): k(f"v_mov_b32 v{R+i}, 0")
    k("s_endpgm"); k.release(m)
    for part in range(3):
        k(f"K0_t{3+part}:"); q0, n = tab_a_common(k, vI, vG, T, R, part); store(n, WS_TAC + 1024 * q0, None, R + 4 * q0); k("s_endpgm"); k.release(m)
        k(f"K0_t{6+part}:"); q0, n = tab_c_common(k, vI, vG, T, R, part); store(n, WS_TCC + 1024 * q0, None, R + 4 * q0); k("s_endpgm"); k.release(m)
    k("K0_t9:"); store(tab_b_common(k, vI, vG, T, R), WS_TBC); k("s_endpgm"); k.release(m)
    k("K0_tw_a:")
    n = tab_a_wave(k, vI, vG, T, R, sWave, sT); k(f"s_lshl_b32 s{sO}, s{sWave}, 11"); store(n, WS_TAW, sO); k("s_endpgm"); k.release(m)
    k("K0_tw_c:")
    n = tab_c_wave(k, vI, vG, T, R, sWave, sT); k(f"s_mul_i32 s{sO}, s{sWave}, 3072"); store(n, WS_TCW, sO); k.release(m)
    k("K0_end:\ns_endpgm")
    return k


WBYTES = 1024 * 3584 * 2
def pf_mall(k, pP, first, n, sId, sWave, vDum, T):
    if n == 0: return
    m = k.mark(); sO = k.s()
    lab = f"PF{len(k.lines)}_{k.name}"
    nw = (n + 63) // 64
    if nw < 8: k(f"s_cmp_ge_u32 s{sWave}, {nw}\ns_cbranch_scc1 {lab}")
    k(f"v_lshlrev_b32 v{T}, 7, v0\ns_mul_i32 s{sO}, s{sId}, {n*128}\ns_add_u32 s{sO}, s{sO}, {first*128}")
    d = k.srd(pP, min((first + 256 * n) * 128, WBYTES))
    k(f"buffer_load_dword v{vDum}, v{T}, {sr(d,4)}, s{sO} offen")
    if nw < 8: k(f"{lab}:")
    k.release(m)

def pf_uni(k, pP, first, n, sId, sWave, vL, vDum, T, nid=256):
    if n == 0: return
    assert n % 8 == 0
    m = k.mark(); sO = k.s(); sE = k.s()
    d = k.srd(pP, WBYTES)
    k(f"s_lshl_b32 s{sO}, s{sId}, 3\ns_add_u32 s{sO}, s{sO}, s{sWave}\ns_mul_i32 s{sO}, s{sO}, {n*16}\ns_add_u32 s{sO}, s{sO}, {first*128}")
    k(f"s_add_u32 s{sE}, s{sO}, {n*16}\ns_min_u32 s{d+2}, s{sE}, {min((first + nid * n) * 128, WBYTES)}\nv_lshlrev_b32 v{T}, 7, v{vL}")
    k(f"buffer_load_dword v{vDum}, v{T}, {sr(d,4)}, s{sO} offen")
    k.release(m)

C_MV = 146 * 16
def gen_a(pf=(0, 0), st_flags="sc1", nxt="fc_kernel", pfa=32):
    TAB = 16640; MOD = TAB + 18 * 1024; MX = MOD + 8192
    k = Kern("fa_kernel", 256, 512, MX + 32)
    pX = k.s(2); pWS = k.s(2); pW = k.s(2); pF = k.s(4)
    k(f"s_cmp_ge_u32 s2, 256\ns_cbranch_scc1 A_end")
    k.stamp(True)
    k(f"s_load_dwordx2 {sr(pWS,2)}, s[0:1], 96")
    sMask = k.s(); sT = k.s(); sJ = k.s()
    vL = k.v(); vOff = k.v(); T = k.v(8)
    k(f"v_lshrrev_b32 v{T}, 6, v0\nv_and_b32 v{vL}, 63, v0")
    k(f"v_readfirstlane_b32 s{sJ}, v{T}")
    k(f"v_lshlrev_b32 v{vOff}, 4, v{vL}")
    k(f"s_mov_b32 s{sMask}, 0xffff0000")
    k(f"s_load_dwordx4 {sr(pF,4)}, s[0:1], 8")
    k(f"s_load_dwordx2 {sr(pX,2)}, s[0:1], 0")
    if pf[1]: k(f"s_load_dwordx2 {sr(pW,2)}, s[0:1], {pfa}")
    sRow = k.s(); sQ0 = k.s(); sQ1 = k.s(); sS = k.s(); sL = k.s()
    k(f"v_lshlrev_b32 v{T}, 4, v0")
    k(f"s_lshl_b32 s{sRow}, s{sJ}, 8\ns_add_u32 s{sRow}, s{sRow}, s2\ns_lshl_b32 s{sRow}, s{sRow}, 11")
    k(f"s_lshl_b32 s{sL}, s{sJ}, 10\ns_add_u32 s{sQ0}, s{sL}, {WS_TAC}\ns_add_u32 s{sQ1}, s{sL}, {WS_TAC+8192}")
    k(f"s_lshl_b32 s{sS}, s2, 12\ns_add_u32 s{sS}, s{sS}, s{sL}\ns_add_u32 s{sT}, s{sS}, {WS_TAS-6*1024}")
    k(f"s_cmp_ge_u32 s{sJ}, 6\ns_cselect_b32 s{sQ1}, s{sT}, s{sQ1}\ns_add_u32 s{sS}, s{sS}, {WS_TAS+2048}")
    k("s_waitcnt lgkmcnt(0)")
    k.stamp_init2(1, pWS); k.stamp()
    dX = k.srd(pX, 2048 * 2048); dW = k.srd(pWS, WS_ZA)
    XP = k.v(8); MP = k.v(16); AD = k.v(8)
    k(f"buffer_load_dwordx4 {vr(XP,4)}, v{vOff}, {sr(dX,4)}, s{sRow} offen nt")
    k(f"buffer_load_dwordx4 {vr(XP+4,4)}, v{vOff}, {sr(dX,4)}, s{sRow} offen offset:1024 nt")
    for p in range(4):
        k(f"s_mov_b32 s{sT}, {WS_MODP + p*8192}\nbuffer_load_dwordx4 {vr(MP+4*p,4)}, v{T}, {sr(dW,4)}, s{sT} offen")
    dZ = k.srd(pWS, ZA_BYTES, WS_ZA)
    vR3 = AD; vSt = AD + 4
    sBase = k.s(); sAdd = k.s(); sF = k.s(); sS0 = k.s()
    k(f"s_lshl_b32 s{sBase}, s{sJ}, 11\ns_lshr_b32 s{sT}, s{sJ}, 2\ns_lshl_b32 s{sT}, s{sT}, 6\ns_add_u32 s{sBase}, s{sBase}, s{sT}")
    k(f"s_cmp_ge_u32 s{sJ}, 4\ns_cselect_b32 s{sAdd}, 1.0, 0")
    k(f"s_lshl_b32 s{sF}, s2, 2\ns_and_b32 s{sF}, s{sF}, 48\ns_lshl_b32 s{sS0}, s2, 6")
    vW1 = k.v(); vR1 = k.v(); vMw = k.v(); vW2 = k.v(2)
    k(f"v_add_u32 v{vW1}, s{sBase}, v{vOff}\nv_lshl_add_u32 v{vR1}, v{vL}, 2, s{sBase}")
    k(f"v_and_b32 v{T}, 1, v0\nv_lshlrev_b32 v{T}, 10, v{T}\nv_bfe_u32 v{T+1}, v0, 1, 6\nv_lshl_add_u32 v{T}, v{T+1}, 4, v{T}")
    k(f"s_lshr_b32 s{sT}, s{sJ}, 1\ns_lshl_b32 s{sT}, s{sT}, 11\ns_add_u32 s{sT}, s{sT}, {MOD}\nv_add_u32 v{vMw}, s{sT}, v{T}")
    k(f"v_lshrrev_b32 v{T}, 4, v{vL}\nv_and_b32 v{T+1}, 7, v{vL}\nv_xor_b32 v{T}, v{T}, v{T+1}\nv_and_b32 v{T+1}, 15, v{vL}\nv_lshlrev_b32 v{T+1}, 3, v{T+1}\nv_add_u32 v{T}, v{T}, v{T+1}")
    k(f"v_lshl_add_u32 v{vW2}, v{T}, 4, s{sBase}\nv_xor_b32 v{T}, 4, v{T}\nv_lshl_add_u32 v{vW2+1}, v{T}, 4, s{sBase}")
    k(f"s_cmp_ge_u32 s{sJ}, 2\ns_cbranch_scc1 A_no3")
    k(f"s_add_u32 m0, s{sL}, {TAB+16384}\nbuffer_load_dwordx4 v{vOff}, {sr(dW,4)}, s{sS} offen lds")
    k("A_no3:")
    k(f"s_add_u32 m0, s{sL}, {TAB}\nbuffer_load_dwordx4 v{vOff}, {sr(dW,4)}, s{sQ0} offen lds")
    k(f"s_add_u32 m0, s{sL}, {TAB+8192}\nbuffer_load_dwordx4 v{vOff}, {sr(dW,4)}, s{sQ1} offen lds")
    k(f"s_lshl_b32 s{sT}, s{sJ}, 11\ns_add_u32 s{sT}, s{sT}, {WS_TAW}")
    k(f"buffer_load_dwordx4 {vr(AD,4)}, v{vOff}, {sr(dW,4)}, s{sT} offen\nbuffer_load_dwordx4 {vr(AD+4,4)}, v{vOff}, {sr(dW,4)}, s{sT} offen offset:1024")
    sRo = k.s(8); sDs = k.s(2); vWc = k.v(2); vWd = k.v(2)
    mm = k.mark()
    sJb = k.s(); sUn = k.s(); sBl = k.s(); sRh = k.s(); sWh = k.s(); sKg = k.s(); sSt = k.s(); sA = k.s()
    for n in range(2):
        k(f"s_lshl_b32 s{sJb}, s2, 3\ns_add_u32 s{sJb}, s{sJb}, s{sJ}")
        if n == 0:
            k(f"s_lshr_b32 s{sUn}, s{sJb}, 3\ns_and_b32 s{sBl}, s{sJb}, 7\ns_lshr_b32 s{sRh}, s{sUn}, 7\ns_add_u32 s{sRh}, s{sRh}, 1")
        else:
            k(f"s_lshr_b32 s{sUn}, s{sJb}, 3\ns_and_b32 s{sBl}, s{sJb}, 7\ns_lshr_b32 s{sA}, s{sJb}, 2\ns_and_b32 s{sT}, s{sJb}, 3\ns_lshr_b32 s{sRh}, s{sJb}, 7\ns_and_b32 s{sRh}, s{sRh}, 4")
            k(f"s_cmp_lt_u32 s{sJb}, 1024\ns_cselect_b32 s{sUn}, s{sUn}, s{sA}\ns_cselect_b32 s{sBl}, s{sBl}, s{sT}\ns_cselect_b32 s{sRh}, 3, s{sRh}")
        k(f"s_bfe_u32 s{sWh}, s{sUn}, 0x10006\ns_and_b32 s{sKg}, s{sUn}, 63")
        k(f"s_lshr_b32 s{sA}, s{sKg}, 2\ns_lshl_b32 s{sA}, s{sA}, 3\ns_add_u32 s{sA}, s{sA}, s{sRh}\ns_and_b32 s{sT}, s{sKg}, 3\ns_lshl_b32 s{sT}, s{sT}, 9\ns_add_u32 s{sA}, s{sA}, s{sT}")
        k(f"s_sub_u32 s{sT}, 2048, s{sA}\ns_cmp_eq_u32 s{sWh}, 1\ns_cselect_b32 s{sA}, s{sT}, s{sA}\ns_movk_i32 s{sSt}, 128\ns_cselect_b32 s{sSt}, -128, s{sSt}\ns_cselect_b64 vcc, -1, 0")
        k(f"s_lshl_b32 s{sT}, s{sBl}, 7\nv_lshl_add_u32 v{T}, v{vL}, 1, s{sT}\nv_sub_u32 v{T+1}, 1024, v{T}\nv_cndmask_b32 v{vWc+n}, v{T}, v{T+1}, vcc")
        for v in range(4):
            k(f"s_and_b32 s{sT}, s{sA}, 2047\ns_mul_i32 s{sRo+4*n+v}, s{sT}, 1026")
            if v < 3: k(f"s_add_u32 s{sA}, s{sA}, s{sSt}")
        k(f"s_lshl_b32 s{sA}, s{sRh}, 6\ns_sub_i32 s{sA}, s{sA}, 31\ns_max_i32 s{sA}, s{sA}, 0\ns_lshl_b32 s{sT}, s{sBl}, 3\ns_add_u32 s{sA}, s{sA}, s{sT}\ns_mul_i32 s{sA}, s{sA}, {ZA_PITCH}")
        k(f"s_and_b32 s{sT}, s{sUn}, 127\ns_lshl_b32 s{sT}, s{sT}, 7\ns_add_u32 s{sDs+n}, s{sA}, s{sT}\ns_bfe_u32 s{sT}, s{sKg}, 0x30002")
        k(f"v_and_b32 v{T}, 7, v{vL}\nv_xor_b32 v{T}, s{sT}, v{T}\nv_lshrrev_b32 v{T+1}, 3, v{vL}\nv_mul_u32_u24 v{T+1}, {ZA_PITCH}, v{T+1}\nv_lshl_add_u32 v{vWd+n}, v{T}, 4, v{T+1}")
    k.release(mm)
    dR = k.srd(pF, W_BYTES); dI = k.srd(pF + 2, W_BYTES); dB = k.srd(pWS, ZA_BYTES, WS_WB)
    WV = k.v(16); SP = k.v(4)
    k(f"v_and_b32 v{T}, 7, v{vL}\nv_lshrrev_b32 v{T+1}, 3, v{vL}\nv_mul_u32_u24 v{SP+2}, 1026, v{T}\nv_lshl_add_u32 v{SP+2}, v{T+1}, 9, v{SP+2}")
    k(f"v_lshlrev_b32 v{SP+3}, 2, v{T}\nv_lshl_add_u32 v{SP+3}, v{T+1}, 13, v{SP+3}")
    k(f"v_subrev_u32 v{T}, 448, v0\nv_cmp_gt_u32 vcc, 24, v{T}\nv_mov_b32 v{T}, {OOB}\nv_cndmask_b32 v{SP+2}, v{T}, v{SP+2}, vcc\nv_cndmask_b32 v{SP+3}, v{T}, v{SP+3}, vcc")
    X = k.v(16); RC = k.v(2); vE = k.v(2); vMax = k.v()
    sP = k.s(2); sSum = k.s(2); sMax = k.s()
    k.stamp()
    k("s_waitcnt vmcnt(8)")
    unpack_bf16(k, X, XP, 8, sMask)
    def modfin(k):
        k("s_waitcnt vmcnt(4)")
        for i in (0, 2): k(f"v_pk_add_f32 {P2(MP+i)}, {P2(MP+i)}, {P2(MP+4+i)}\nv_pk_add_f32 {P2(MP+8+i)}, {P2(MP+8+i)}, {P2(MP+12+i)}")
        for i in (0, 2): k(f"v_pk_add_f32 {P2(MP+i)}, {P2(MP+i)}, {P2(MP+8+i)}")
        k(f"v_cvt_pk_bf16_f32 v{MP+4}, v{MP}, v{MP+1}\nv_cvt_pk_bf16_f32 v{MP+5}, v{MP+2}, v{MP+3}")
        unpack_bf16(k, MP, MP + 4, 2, sMask)
        for i in range(4): k(f"v_add_f32 v{MP+i}, s{sAdd}, v{MP+i}")
        k(f"v_cvt_pk_bf16_f32 v{MP+4}, v{MP}, v{MP+1}\nv_cvt_pk_bf16_f32 v{MP+5}, v{MP+2}, v{MP+3}")
        unpack_bf16(k, MP, MP + 4, 2, sMask)
        k(f"ds_write_b128 v{vMw}, {vr(MP,4)}")
        k(f"v_max3_f32 v{vMax}, abs(v{MP}), abs(v{MP+1}), abs(v{MP+2})\nv_max_f32 v{vMax}, abs(v{MP+3}), v{vMax}")
    n0 = len(k.lines)
    ln_pk(k, X, T, RC, sP, sSum, cap(modfin), ("v_max_f32", vMax, sMax))
    idx = max(i for i in range(n0, len(k.lines)) if k.lines[i].startswith("v_readlane_b32")) + 1
    k.lines[idx:idx] = [f"s_lshl_b32 s{sT}, s{sJ}, 2", f"s_add_u32 s{sT}, s{sT}, {MX}", f"v_mov_b32 v{T+5}, s{sT}", f"v_mov_b32 v{vMax}, s{sMax}", f"ds_write_b32 v{T+5}, v{vMax}"]
    k.stamp()
    k("s_waitcnt vmcnt(0) lgkmcnt(0)\ns_barrier")
    k.stamp()
    SA = k.v(16); CA = k.v(16); FA = k.v(16); FB = k.v(16)
    assert CA == SA + 16
    k(f"v_mov_b32 v{T}, {MX}\nds_read_b128 {vr(MP,4)}, v{T}\nds_read_b128 {vr(MP+4,4)}, v{T} offset:16")
    for q in range(2):
        for h in range(2):
            k(f"ds_read_b128 {vr(CA+8*q+4*h,4)}, v{vOff} offset:{MOD+4096+2048*q+1024*h}")
            k(f"ds_read_b128 {vr(SA+8*q+4*h,4)}, v{vOff} offset:{MOD+2048*q+1024*h}")
    def fq(ct, ks, ri): return TAB + 1024 * ((ct * 2 + ks) * 2 + ri)
    for ct in range(2):
        for ri in range(2): k(f"ds_read_b128 {vr(FA+(ct*2+ri)*4,4)}, v{vOff} offset:{fq(ct,0,ri)}")
    def wloads(n):
        for v in range(4):
            k(f"buffer_load_ushort v{WV+8*n+v}, v{vWc+n}, {sr(dR,4)}, s{sRo+4*n+v} offen nt")
            k(f"buffer_load_ushort v{WV+8*n+4+v}, v{vWc+n}, {sr(dI,4)}, s{sRo+4*n+v} offen nt")
    wloads(0)
    k("s_waitcnt lgkmcnt(12)")
    k(f"v_max3_f32 v{MP}, v{MP}, v{MP+1}, v{MP+2}\nv_max3_f32 v{MP+4}, v{MP+4}, v{MP+5}, v{MP+6}\nv_max3_f32 v{MP}, v{MP}, v{MP+3}, v{MP+7}\nv_max_f32 v{MP}, v{MP}, v{MP+4}")
    k(f"v_frexp_exp_i32_f32 v{vE}, v{MP}\nv_sub_u32 v{vE}, 3, v{vE}\nv_min_i32 v{vE}, 60, v{vE}\nv_max_i32 v{vE}, {(-60)&0xffffffff}, v{vE}\nv_ldexp_f32 v{RC}, 1.0, v{vE}")
    Z = XP
    for hq in range(4):
        k(f"s_waitcnt lgkmcnt({10-2*hq + (1 if hq >= 2 else 0)})")
        for i in (2 * hq, 2 * hq + 1): k(f"v_pk_fma_f32 {P2(X+2*i)}, {P2(X+2*i)}, {P2(CA+2*i)}, {P2(SA+2*i)}")
        for i in (2 * hq, 2 * hq + 1): k(f"v_pk_mul_f32 {P2(X+2*i)}, {P2(X+2*i)}, {P2(RC)} op_sel_hi:[1,0]")
        for i in (2 * hq, 2 * hq + 1): k(f"v_cvt_pk_f16_f32 v{Z+i}, v{X+2*i}, v{X+2*i+1}")
        if hq == 1: k(f"ds_write_b128 v{vW1}, {vr(Z,4)}")
    k(f"ds_write_b128 v{vW1}, {vr(Z+4,4)} offset:1024")
    k.stamp()
    OP = MP
    for h in range(4): k(f"ds_read2st64_b32 {vr(OP+2*h,2)}, v{vR1} offset0:{2*h} offset1:{2*h+1}")
    for ct in range(2):
        for ri in range(2): k(f"ds_read_b128 {vr(FB+(ct*2+ri)*4,4)}, v{vOff} offset:{fq(ct,1,ri)}")
    TW = SA; F2 = MP + 8
    for q in range(4): k(f"ds_read_b128 {vr(TW+4*q,4)}, v{vOff} offset:{TAB+8192+1024*q}")
    for q in range(2): k(f"ds_read_b128 {vr(F2+4*q,4)}, v{vOff} offset:{TAB+12288+1024*q}")
    wloads(1)
    D1 = X
    k("s_waitcnt lgkmcnt(12)")
    for o in range(4): k(f"{MF} {vr(D1+o*4,4)}, {vr(OP,4)}, {vr(FA+o*4,4)}, 0")
    k("s_waitcnt lgkmcnt(6)")
    for o in range(4): k(f"{MF} {vr(D1+o*4,4)}, {vr(OP+4,4)}, {vr(FB+o*4,4)}, {vr(D1+o*4,4)}")
    F3 = FA
    for q in range(4): k(f"ds_read_b128 {vr(F3+4*q,4)}, v{vOff} offset:{TAB+14336+1024*q}")
    k(f"s_mul_i32 s{sT}, s2, 8208")
    k(f"buffer_load_ushort v{SP}, v{SP+2}, {sr(dR,4)}, s{sT} offen\nbuffer_load_ushort v{SP+1}, v{SP+2}, {sr(dI,4)}, s{sT} offen")
    for q in range(4): k(f"v_xor_b32 v{vSt+q}, s{sF}, v{vSt+q}")
    k("s_waitcnt lgkmcnt(4)")
    D2 = CA
    for ct in range(2):
        tw_block(k, D1 + ct * 8, TW + 4 * ct, TW + 8 + 4 * ct, False, T, OP + 4 * ct)
        k(f"{MF} {vr(D2+ct*8,4)}, {vr(OP+4*ct,4)}, {vr(F2,4)}, 0")
        k(f"{MF} {vr(D2+ct*8+4,4)}, {vr(OP+4*ct,4)}, {vr(F2+4,4)}, 0")
    pf_uni(k, pW, pf[0], pf[1], 2, sJ, vL, T + 6, T + 4)
    code_pf_w(k, "fb_kernel", nxt, sJ, 6, IDX_STD, vL, T + 4, T + 7)
    for ct in range(2):
        for v in range(4): k(f"v_cvt_pk_f16_f32 v{Z+4*ct+v}, v{D2+ct*8+v}, v{D2+ct*8+4+v}")
        k(f"ds_write_b128 v{vW2+ct}, {vr(Z+4*ct,4)}")
    k.stamp()
    k("s_waitcnt lgkmcnt(0)\ns_barrier")
    k.stamp()
    O3 = X
    for q in range(2):
        for x in range(2):
            d = O3 + (q * 2 + x) * 4
            k(f"ds_read2st64_b32 {vr(d,2)}, v{vR3+2*q+x} offset0:0 offset1:8")
            k(f"ds_read2st64_b32 {vr(d+2,2)}, v{vR3+2*q+x} offset0:16 offset1:24")
    D3 = SA
    for q in range(2):
        for x in range(2):
            k(f"s_waitcnt lgkmcnt({6-2*(2*q+x)})")
            for ri in range(2):
                d = D3 + ((q * 2 + x) * 2 + ri) * 4
                k(f"{MF} {vr(d,4)}, {vr(O3+(q*2+x)*4,4)}, {vr(F3+(x*2+ri)*4,4)}, 0")
    P = MP
    for q in range(2):
        for v in range(4):
            for x in range(2):
                d = D3 + ((q * 2 + x) * 2) * 4 + v
                k(f"v_cvt_pk_f16_f32 v{P+8*q+2*v+x}, v{d}, v{d+4}")
        for e in range(4): k(f"v_permlane32_swap_b32 v{P+8*q+e}, v{P+8*q+4+e}")
        for ins in range(2):
            k(f"buffer_store_dwordx4 {vr(P+8*q+4*ins,4)}, v{vSt+2*q+ins}, {sr(dZ,4)}, s{sS0} offen {st_flags}")
    k(f"s_waitcnt vmcnt({5 if pf[1] else 4})")
    for n in range(2):
        for v in range(4): k(f"v_lshl_or_b32 v{WV+8*n+v}, v{WV+8*n+4+v}, 16, v{WV+8*n+v}")
        k(f"buffer_store_dwordx4 {vr(WV+8*n,4)}, v{vWd+n}, {sr(dB,4)}, s{sDs+n} offen sc1")
    k(f"v_lshl_or_b32 v{SP}, v{SP+1}, 16, v{SP}\ns_lshl_b32 s{sT}, s2, 5\ns_add_u32 s{sT}, s{sT}, {WS_SPC}")
    k(f"buffer_store_dword v{SP}, v{SP+3}, {sr(dW,4)}, s{sT} offen")
    sM7 = sAdd
    k(f"s_mov_b32 s{sM7}, 0x7fff7fff\nv_and_b32 v{SP+1}, s{sM7}, v{SP}")
    for n in range(2):
        for v in range(4): k(f"v_and_b32 v{WV+8*n+4+v}, s{sM7}, v{WV+8*n+v}\nv_pk_max_u16 v{SP+1}, v{SP+1}, v{WV+8*n+4+v}")
    k(f"v_lshrrev_b32 v{T}, 16, v{SP+1}\nv_and_b32 v{SP+1}, 0xffff, v{SP+1}\nv_max_u32 v{SP+1}, v{SP+1}, v{T}")
    wave_reduce(k, "v_max_u32", [SP + 1], [sMax])
    k(f"s_lshl_b32 s{sT}, s{sJ}, 2\ns_add_u32 s{sT}, s{sT}, {MX}\nv_mov_b32 v{T}, s{sT}\nv_mov_b32 v{SP+1}, s{sMax}\nds_write_b32 v{T}, v{SP+1}")
    k("s_waitcnt lgkmcnt(0)\ns_barrier")
    k(f"s_cmp_lg_u32 s{sJ}, 0\ns_cbranch_scc1 A_noscal")
    k(f"ds_read_b128 {vr(X,4)}, v{T}\nds_read_b128 {vr(X+4,4)}, v{T} offset:16\ns_lshl_b32 s{sT}, s2, 2\ns_add_u32 s{sT}, s{sT}, {WS_WMAX}\nv_mov_b32 v{T}, 0\ns_waitcnt lgkmcnt(0)")
    k(f"v_max3_u32 v{X}, v{X}, v{X+1}, v{X+2}\nv_max3_u32 v{X+4}, v{X+4}, v{X+5}, v{X+6}\nv_max3_u32 v{X}, v{X}, v{X+3}, v{X+7}\nv_max_u32 v{X}, v{X}, v{X+4}")
    k(f"buffer_store_dword v{X}, v{T}, {sr(dW,4)}, s{sT} offen")
    k(f"s_cmp_lg_u32 s2, 0\ns_cbranch_scc1 A_noscal")
    k(f"v_mov_b32 v{T}, {WS_SCAL}\nbuffer_store_dword v{vE}, v{T}, {sr(dW,4)}, 0 offen")
    k("A_noscal:")
    k.stamp()
    if k.prof: k("s_waitcnt vmcnt(0)")
    k.stamp_flush()
    k("A_end:\ns_endpgm")
    return k

def fin_job(k, pWS, sJ, vL, T, endlabel):
    MP = k.v(64); vMw = k.v(); vOff = k.v(); sL = k.s(); sAdd = k.s(); sT = k.s(); sMask = k.s()
    k(f"s_lshl_b32 s{sL}, s{sJ}, 11\nv_lshlrev_b32 v{vOff}, 5, v{vL}\ns_mov_b32 s{sMask}, 0xffff0000\ns_waitcnt lgkmcnt(0)")
    dW = k.srd(pWS, WS_ZA)
    for p in range(8):
        k(f"s_add_u32 s{sT}, s{sL}, {WS_MODQ + p*16384}")
        for h in range(2): k(f"buffer_load_dwordx4 {vr(MP+8*p+4*h,4)}, v{vOff}, {sr(dW,4)}, s{sT} offen offset:{16*h}")
    k(f"v_and_b32 v{T}, 3, v{vL}\nv_lshlrev_b32 v{T}, 8, v{T}\nv_lshrrev_b32 v{T+1}, 2, v{vL}\nv_lshl_add_u32 v{vMw}, v{T+1}, 4, v{T}")
    k(f"s_lshr_b32 s{sT}, s{sJ}, 1\ns_cmp_eq_u32 s{sT}, 2\ns_cselect_b32 s{sAdd}, 1.0, 0")
    k("s_waitcnt vmcnt(0)")
    for n in (32, 16, 8):
        for i in range(0, n, 2): k(f"v_pk_add_f32 {P2(MP+i)}, {P2(MP+i)}, {P2(MP+n+i)}")
    for i in range(4): k(f"v_cvt_pk_bf16_f32 v{MP+8+i}, v{MP+2*i}, v{MP+2*i+1}")
    k(f"s_cmp_ge_u32 s{sJ}, 6\ns_cbranch_scc1 F_gb")
    unpack_bf16(k, MP, MP + 8, 4, sMask)
    for i in range(8): k(f"v_add_f32 v{MP+i}, s{sAdd}, v{MP+i}")
    for i in range(4): k(f"v_cvt_pk_bf16_f32 v{MP+8+i}, v{MP+2*i}, v{MP+2*i+1}")
    for i in range(4): k(f"v_lshlrev_b32 v{MP+i}, 16, v{MP+8+i}\nv_and_b32 v{MP+4+i}, s{sMask}, v{MP+8+i}")
    k(f"s_add_u32 s{sT}, s{sL}, {WS_MODC}")
    k(f"buffer_store_dwordx4 {vr(MP,4)}, v{vMw}, {sr(dW,4)}, s{sT} offen\nbuffer_store_dwordx4 {vr(MP+4,4)}, v{vMw}, {sr(dW,4)}, s{sT} offen offset:1024")
    k("s_endpgm\nF_gb:")
    k(f"s_lshl_b32 s{sT}, s{sJ}, 10\ns_add_u32 s{sT}, s{sT}, {WS_GB-6144}\nv_lshlrev_b32 v{T}, 4, v{vL}")
    k(f"buffer_store_dwordx4 {vr(MP+8,4)}, v{T}, {sr(dW,4)}, s{sT} offen")

def gen_b(pf=(0, 0), st_flags="sc1", nxt=("fc_kernel", "g1_kernel"), pf2=(0, 0)):
    TAB = 16384; OUT = 24576; WL = 40960
    NM = 258
    k = Kern("fb_kernel", NM + 8, 512, WL + 16384)
    pW1 = k.s(2); pWS = k.s(2); pW2 = k.s(2)
    sSlot = k.s(); sT = k.s(); sRho = k.s(); sC = k.s()
    k.stamp(True)
    k(f"s_load_dwordx2 {sr(pWS,2)}, s[0:1], 96")
    if pf[1]: k(f"s_load_dwordx2 {sr(pW1,2)}, s[0:1], 32")
    if pf2[1]: k(f"s_load_dwordx2 {sr(pW2,2)}, s[0:1], 48")
    k(f"s_cmp_ge_u32 s2, {NM+8}\ns_cbranch_scc1 B_end")
    vL, vI, vG, sU, T = lane_ids(k)
    k(f"s_cmp_ge_u32 s2, {NM}\ns_cbranch_scc1 B_side")
    m0 = k.mark()
    k(f"s_and_b32 s{sT}, s2, 7\ns_add_u32 s{sT}, s{sT}, 1\ns_lshr_b32 s{sRho}, s{sT}, 1\ns_and_b32 s{sC}, s{sT}, 1\ns_lshl_b32 s{sC}, s{sC}, 5")
    k(f"s_cmp_eq_u32 s{sRho}, 0\ns_cselect_b32 s{sC}, 0, s{sC}\ns_lshr_b32 s{sT}, s2, 3\ns_add_u32 s{sC}, s{sC}, s{sT}")
    k(f"s_cmp_eq_u32 s2, 257\ns_cselect_b32 s{sRho}, 4, s{sRho}")
    k(f"s_lshl_b32 s{sSlot}, s{sRho}, 6\ns_sub_i32 s{sSlot}, s{sSlot}, 31\ns_max_i32 s{sSlot}, s{sSlot}, 0\ns_add_u32 s{sSlot}, s{sSlot}, s{sC}")
    vOff = k.v()
    k(f"v_lshlrev_b32 v{vOff}, 4, v{vL}")
    sO = k.s(); sL = k.s()
    k(f"s_mul_i32 s{sO}, s{sSlot}, {ZA_PITCH}\ns_lshl_b32 s{sL}, s{sU}, 11\ns_add_u32 s{sO}, s{sO}, s{sL}\ns_mov_b32 m0, s{sL}")
    k("s_waitcnt lgkmcnt(0)")
    k.stamp_init2(2, pWS); k.stamp()
    dZ = k.srd(pWS, ZA_BYTES, WS_ZA)
    k(f"buffer_load_dwordx4 v{vOff}, {sr(dZ,4)}, s{sO} offen lds")
    k(f"buffer_load_dwordx4 v{vOff}, {sr(dZ,4)}, s{sO} offen offset:1024 lds")
    dW = k.srd(pWS, WS_ZA)
    k(f"s_lshl_b32 s{sT}, s{sU}, 10\ns_add_u32 m0, s{sT}, {TAB}\ns_add_u32 s{sT}, s{sT}, {WS_TBC}")
    k(f"buffer_load_dwordx4 v{vOff}, {sr(dW,4)}, s{sT} offen lds")
    WP = k.v(8); WE = k.v(8); WM = k.v(4); vWrd = k.v(); sSp = k.s()
    k(f"s_mov_b32 s{sT}, {WS_WMAX}\nbuffer_load_dwordx4 {vr(WM,4)}, v{vOff}, {sr(dW,4)}, s{sT} offen")
    dB = k.srd(pWS, ZA_BYTES, WS_WB)
    k(f"s_add_u32 m0, s{sL}, {WL}\ns_cmp_ge_u32 s2, 256\ns_cselect_b32 s{dB+2}, 0, s{dB+2}")
    k(f"buffer_load_dwordx4 v{vOff}, {sr(dB,4)}, s{sO} offen lds\nbuffer_load_dwordx4 v{vOff}, {sr(dB,4)}, s{sO} offen offset:1024 lds")
    k(f"s_cselect_b32 s{sT}, 0, s{sC}\ns_cselect_b64 vcc, -1, 0\ns_or_b32 s{sSp}, s{sT}, s{sU}")
    k(f"s_cmp_lg_u32 s{sSp}, 0\ns_cbranch_scc1 B_nox")
    sE1 = k.s(); sE2o = k.s()
    k(f"s_lshl_b32 s{sE1}, s{sC}, 8\ns_sub_u32 s{sE2o}, {WS_SPC+16384}, s{sE1}\ns_add_u32 s{sE1}, s{sE1}, {WS_SPC}")
    for v in range(4):
        k(f"v_lshl_add_u32 v{T}, v{vG}, 2, {v}\nv_lshl_add_u32 v{T}, v{T}, 4, v{vI}\nv_lshl_add_u32 v{T}, v{T}, 3, s{sRho}")
        k(f"v_sub_u32 v{T+1}, 2048, v{T}\nv_and_b32 v{T+1}, 2047, v{T+1}")
        k(f"v_cndmask_b32 v{T+2}, v{T+1}, v{T}, vcc\nv_cndmask_b32 v{T+3}, v{T}, v{T+1}, vcc\nv_lshlrev_b32 v{T+2}, 2, v{T+2}\nv_lshlrev_b32 v{T+3}, 2, v{T+3}")
        k(f"buffer_load_dword v{WE+v}, v{T+2}, {sr(dW,4)}, s{sE1} offen\nbuffer_load_dword v{WE+4+v}, v{T+3}, {sr(dW,4)}, s{sE2o} offen")
    k("B_nox:")
    k(f"v_and_b32 v{T}, 7, v{vI}\nv_xor_b32 v{T}, s{sU}, v{T}\nv_lshlrev_b32 v{T}, 4, v{T}\nv_lshl_add_u32 v{T}, v{vG}, 7, v{T}\nv_lshl_add_u32 v{vWrd}, v{vI}, 9, v{T}")
    dO = k.srd(pWS, ZB_BYTES, WS_ZB)
    k(f"s_cmp_lt_u32 s2, 256\ns_cbranch_scc1 B_reg\ns_setprio 3\ns_cmp_lg_u32 s{sU}, 0\ns_cbranch_scc1 B_idle\nB_reg:")
    vCp = k.v(); vSp = k.v()
    k(f"s_lshl_b32 s{sT}, s{sC}, 3\ns_add_u32 s{sT}, s{sT}, s{sU}\ns_add_u32 s{sT}, s{sT}, 256\nv_mov_b32 v{T}, s{sT}")
    sincos(k, vCp, vSp, T, 2048, T + 1)
    k(f"v_mul_f32 v{vCp}, {fbits(0.25)}, v{vCp}\nv_mul_f32 v{vSp}, {fbits(0.25)}, v{vSp}")
    G = k.v(32)
    def g1(ks, o): return G + (ks * 4 + o) * 4
    for e2 in range(2):
        k(f"v_lshl_add_u32 v{T}, v{vG}, 1, {e2}\nv_mul_u32_u24 v{T}, v{T}, v{vI}")
        sincos(k, T + 1, T + 2, T, 16, T + 3)
        k(f"v_mul_f32 v{T+4}, v{vCp}, v{T+1}\nv_mul_f32 v{T+5}, v{vCp}, v{T+2}")
        k(f"v_mul_f32 v{T+6}, v{vSp}, v{T+1}\nv_mul_f32 v{T+7}, v{vSp}, v{T+2}")
        p1 = f"v{T+4}, v{T+5}"; p2 = f"-v{T+5}, v{T+4}"; p3 = f"v{T+7}, -v{T+6}"; p4 = f"v{T+6}, v{T+7}"
        for o, (pa, pb) in enumerate(((p1, p3), (p2, p4), (p3, p1), (p4, p2))):
            k(f"v_cvt_pk_f16_f32 v{g1(0,o)+2*e2}, {pa}\nv_cvt_pk_f16_f32 v{g1(0,o)+2*e2+1}, {pb}")
    sSign = k.s()
    k(f"s_mov_b32 s{sSign}, 0x80008000")
    k(f"v_and_b32 v{T}, 1, v{vI}\nv_mul_lo_u32 v{T}, v{T}, s{sSign}")
    for x in range(16): k(f"v_xor_b32 v{G+16+x}, v{T}, v{G+x}")
    H = k.v(16)
    for v in range(4):
        k(f"v_lshl_add_u32 v{T}, v{vG}, 2, {v}\nv_mul_u32_u24 v{T}, v{T}, v{vI}")
        sincos(k, T + 1, T + 2, T, 16, T + 3)
        k(f"v_mul_f32 v{T+4}, v{vCp}, v{T+1}\nv_mul_f32 v{T+5}, v{vCp}, v{T+2}\nv_mul_f32 v{T+6}, v{vSp}, v{T+1}\nv_mul_f32 v{T+7}, v{vSp}, v{T+2}")
        k(f"v_cvt_pk_f16_f32 v{H+v}, v{T+4}, -v{T+5}\nv_cvt_pk_f16_f32 v{H+4+v}, v{T+5}, v{T+4}")
        k(f"v_cvt_pk_f16_f32 v{H+8+v}, v{T+7}, v{T+6}\nv_cvt_pk_f16_f32 v{H+12+v}, -v{T+6}, v{T+7}")
    vRd = vCp; vWr = vSp
    k(f"s_lshr_b32 s{sT}, s{sU}, 1")
    k(f"v_lshrrev_b32 v{T}, 2, v{vI}\nv_xor_b32 v{T}, s{sT}, v{T}\nv_lshlrev_b32 v{T}, 4, v{T}\nv_lshl_add_u32 v{T}, v{vI}, 6, v{T}")
    k(f"s_and_b32 s{sT}, s{sU}, 1\ns_lshl_b32 s{sT}, s{sT}, 3\nv_add_u32 v{T}, s{sT}, v{T}")
    k(f"v_lshl_add_u32 v{vRd}, v{vG}, 11, v{T}\nv_lshl_add_u32 v{vWr}, v{vG}, 12, v{T}")
    vOr = vI; vOs = vG
    k(f"v_lshlrev_b32 v{vOr}, 4, v0")
    k(f"v_lshrrev_b32 v{T}, 2, v0\nv_mul_u32_u24 v{T}, {ZB_PITCH}, v{T}")
    k(f"v_lshrrev_b32 v{T+1}, 4, v0\nv_xor_b32 v{T+1}, v{T+1}, v0\nv_and_b32 v{T+1}, 3, v{T+1}\nv_lshl_add_u32 v{vOs}, v{T+1}, 4, v{T}")
    sMask = k.s(); sScale = k.s(2); sE2 = k.s()
    k(f"s_mov_b32 s{sMask}, 0xffff0000")
    k.stamp()
    k("s_waitcnt vmcnt(0)\ns_barrier")
    k.stamp()
    OP = k.v(8); D = k.v(16); TB = k.v(16)
    for ks in range(2):
        for e2 in range(2): k(f"ds_read_b64 {vr(OP+4*ks+2*e2,2)}, v{vRd} offset:{(8*ks+e2)*1024}")
    for q in range(4): k(f"ds_read_b128 {vr(TB+4*q,4)}, v{vOff} offset:{TAB+1024*q}")
    TWC = TB; TWS = TB + 4; FR = TB + 8; FI = TB + 12; CR = TB + 8; CI = TB + 12
    k(f"ds_read_b128 {vr(WP,4)}, v{vWrd} offset:{WL}\nds_read_b128 {vr(WP+4,4)}, v{vWrd} offset:{WL+8192}")
    code_pf_w(k, nxt[0], nxt[1], sU, 7, IDX_STD, vL, T + 4, T + 7)
    page_touch(k, PT_B, sU, 6, vL, T + 4, T + 7)
    pf_uni(k, pW1, pf[0], pf[1], 2, sU, vL, T + 6, T + 4)
    pf_uni(k, pW2, pf2[0], pf2[1], 2, sU, vL, T + 5, T + 4)
    k(f"v_max3_u32 v{WM}, v{WM}, v{WM+1}, v{WM+2}\nv_max_u32 v{WM}, v{WM}, v{WM+3}")
    red = cap(lambda t: wave_reduce(t, "v_max_u32", [WM], [sE2]))
    for l in red[:3]: k(l)
    k("s_waitcnt lgkmcnt(8)")
    for o in range(4):
        k(f"{MF} {vr(D+4*o,4)}, {vr(OP,4)}, {vr(g1(0,o),4)}, 0")
        if o & 1: k(red[3 + (o >> 1)])
    k("s_waitcnt lgkmcnt(6)")
    for o in range(4):
        k(f"{MF} {vr(D+4*o,4)}, {vr(OP+4,4)}, {vr(g1(1,o),4)}, {vr(D+4*o,4)}")
        if o & 1: k(red[5 + (o >> 1)])
    k(f"s_lshr_b32 s{sE2}, s{sE2}, 7\ns_sub_i32 s{sE2}, 125, s{sE2}\ns_min_i32 s{sE2}, s{sE2}, 60\ns_max_i32 s{sE2}, s{sE2}, -60")
    k(f"s_add_u32 s{sScale}, s{sE2}, 127\ns_lshl_b32 s{sScale}, s{sScale}, 23")
    k("s_waitcnt lgkmcnt(0)")
    for w in range(2):
        tw_block(k, D + 8 * w, TWC, TWS, False, T, OP + 4 * w)
        k(f"{MF} {vr(D+8*w,4)}, {vr(FR,4)}, {vr(OP+4*w,4)}, 0")
        k(f"{MF} {vr(D+8*w+4,4)}, {vr(FI,4)}, {vr(OP+4*w,4)}, 0")
    k(f"ds_read_b128 {vr(CR,4)}, v{vOff} offset:{TAB+4096}\nds_read_b128 {vr(CI,4)}, v{vOff} offset:{TAB+5120}")
    Wf = G
    k.stamp()
    def unpl(dst, src):
        for w in range(2):
            for v in range(4): k(f"v_lshlrev_b32 v{dst+8*w+v}, 16, v{src+4*w+v}\nv_and_b32 v{dst+8*w+4+v}, s{sMask}, v{src+4*w+v}")
    unpl(Wf, WP)
    k(f"s_cmp_lg_u32 s{sSp}, 0\ns_cbranch_scc1 B_nospec")
    unpl(G + 16, WE)
    k(f"s_cmp_ge_u32 s2, 256\ns_cselect_b32 s{sT}, 1.0, -1.0\ns_cselect_b32 s{sE1}, 0, {1<<23}\ns_sub_u32 s{sScale}, s{sScale}, s{sE1}")
    for i in (0, 1, 2, 3, 8, 9, 10, 11): k(f"v_add_f32 v{Wf+i}, v{Wf+i}, v{G+16+i}\nv_fmac_f32 v{Wf+i+4}, s{sT}, v{G+16+i+4}")
    k(f"v_mov_b32 v{T+4}, {WS_SCAL+4}\nv_mov_b32 v{T+5}, s{sE2}\nbuffer_store_dword v{T+5}, v{T+4}, {sr(dW,4)}, 0 offen")
    k("B_nospec:")
    for i in range(8): k(f"v_pk_mul_f32 {P2(Wf+2*i)}, {P2(Wf+2*i)}, s[{sScale}:{sScale+1}] op_sel_hi:[1,0]")
    k("s_waitcnt lgkmcnt(0)")
    for w in range(2):
        tw_block(k, D + 8 * w, Wf + 8 * w, Wf + 8 * w + 4, w == 0, T, OP + 4 * w)
        k(f"{MF} {vr(D+8*w,4)}, {vr(OP+4*w,4)}, {vr(CR,4)}, 0")
        k(f"{MF} {vr(D+8*w+4,4)}, {vr(OP+4*w,4)}, {vr(CI,4)}, 0")
    E = G + 16
    for w in range(2):
        tw_block(k, D + 8 * w, TWC, TWS, True, T, OP + 4 * w)
        for x in range(2):
            for ri in range(2):
                d = E + 8 * x + 4 * ri
                k(f"{MF} {vr(d,4)}, {vr(H+8*(x^w)+4*ri,4)}, {vr(OP+4*w,4)}, {vr(d,4) if w else 0}")
    P = WP
    for v in range(4):
        k(f"v_cvt_pk_f16_f32 v{P+2*v}, v{E+v}, v{E+4+v}\nv_cvt_pk_f16_f32 v{P+2*v+1}, v{E+8+v}, v{E+12+v}")
        k(f"ds_write_b64 v{vWr}, {vr(P+2*v,2)} offset:{OUT+v*1024}")
    k("s_waitcnt lgkmcnt(0)\nB_out:\ns_barrier")
    k.stamp()
    k(f"ds_read_b128 {vr(D,4)}, v{vOr} offset:{OUT}\nds_read_b128 {vr(D+4,4)}, v{vOr} offset:{OUT+8192}")
    k(f"s_lshl_b32 s{sO}, s{sSlot}, 6\ns_add_u32 s{sT}, s{sO}, {128*ZB_PITCH}")
    k("s_waitcnt lgkmcnt(1)")
    k(f"buffer_store_dwordx4 {vr(D,4)}, v{vOs}, {sr(dO,4)}, s{sO} offen {st_flags}")
    k("s_waitcnt lgkmcnt(0)")
    k(f"buffer_store_dwordx4 {vr(D+4,4)}, v{vOs}, {sr(dO,4)}, s{sT} offen {st_flags}")
    k.stamp()
    if k.prof: k("s_waitcnt vmcnt(0)")
    k.stamp_flush()
    k("s_endpgm")
    k("B_idle:")
    k(f"v_lshlrev_b32 v{vOr}, 4, v0")
    k(f"v_lshrrev_b32 v{T}, 2, v0\nv_mul_u32_u24 v{T}, {ZB_PITCH}, v{T}")
    k(f"v_lshrrev_b32 v{T+1}, 4, v0\nv_xor_b32 v{T+1}, v{T+1}, v0\nv_and_b32 v{T+1}, 3, v{T+1}\nv_lshl_add_u32 v{vOs}, v{T+1}, 4, v{T}")
    k("s_waitcnt vmcnt(0)\ns_barrier\ns_branch B_out")
    k.release(m0)
    k("B_side:")
    k(f"s_cmp_lg_u32 s{sU}, 0\ns_cbranch_scc1 B_end\ns_sub_u32 s{sC}, s2, {NM}")
    fin_job(k, pWS, sC, vL, T, "B_end")
    k("B_end:\ns_endpgm")
    return k

def gen_c(l2w=0, pf=(0, 0), pfa=32, st_flags="sc1"):
    TAB = C_TB + 8 * C_TP; MOD = TAB + 16384; MV = C_MV
    k = Kern("fc_kernel", 256, 512, MOD + 14336)
    k.s()
    pX = k.s(2); pWS = k.s(2); pW1 = k.s(2)
    k(f"s_cmp_ge_u32 s2, 256\ns_cbranch_scc1 C_end")
    k("s_and_b32 s3, s2, 3\ns_lshl_b32 s3, s3, 6\ns_and_b32 s4, s2, 4\ns_lshl_b32 s4, s4, 3\ns_add_u32 s3, s3, s4\ns_lshr_b32 s2, s2, 3\ns_add_u32 s2, s2, s3")
    k.stamp(True)
    k(f"s_load_dwordx2 {sr(pX,2)}, s[0:1], 0")
    k(f"s_load_dwordx2 {sr(pWS,2)}, s[0:1], 96")
    k(f"s_load_dwordx2 {sr(pW1,2)}, s[0:1], {pfa}")
    vL, vI, vG, sJ, T = lane_ids(k)
    sMask = k.s(); sT = k.s(); sRow = k.s(); sO = k.s(); sL = k.s(); sQ = k.s()
    vOff = k.v(); vXo = k.v()
    k(f"v_lshlrev_b32 v{vOff}, 4, v{vL}\nv_lshlrev_b32 v{vXo}, 6, v{vI}\nv_lshl_add_u32 v{vXo}, v{vG}, 4, v{vXo}")
    k(f"s_mov_b32 s{sMask}, 0xffff0000")
    k(f"s_lshl_b32 s{sRow}, s{sJ}, 8\ns_add_u32 s{sRow}, s{sRow}, s2\ns_lshl_b32 s{sRow}, s{sRow}, 11")
    k(f"s_mul_i32 s{sO}, s2, {ZB_PITCH}\ns_lshl_b32 s{sL}, s{sJ}, 11")
    k(f"s_add_u32 s{sQ}, s{sL}, {WS_TCC}\ns_lshl_b32 s{sT}, s2, 11\ns_add_u32 s{sT}, s{sT}, {WS_TCS}\ns_cmp_eq_u32 s{sJ}, 7\ns_cselect_b32 s{sQ}, s{sT}, s{sQ}")
    k("s_waitcnt lgkmcnt(0)")
    k.stamp_init2(3, pWS); k.stamp()
    sSc = k.s(2)
    k(f"s_load_dwordx2 {sr(sSc,2)}, {sr(pWS,2)}, {WS_SCAL}")
    dZ = k.srd(pWS, ZB_BYTES, WS_ZB)
    k(f"s_cmp_lg_u32 s{sJ}, 0\ns_cbranch_scc1 C_no17")
    k(f"s_mov_b32 m0, 16384\ns_add_u32 s{sT}, s{sO}, 16384")
    k(f"buffer_load_dwordx4 v{vOff}, {sr(dZ,4)}, s{sT} offen lds")
    k("C_no17:")
    k(f"s_add_u32 s{sO}, s{sO}, s{sL}\ns_mov_b32 m0, s{sL}")
    k(f"buffer_load_dwordx4 v{vOff}, {sr(dZ,4)}, s{sO} offen lds")
    k(f"buffer_load_dwordx4 v{vOff}, {sr(dZ,4)}, s{sO} offen offset:1024 lds")
    dW = k.srd(pWS, WS_ZA)
    AD = k.v(12)
    k(f"s_add_u32 m0, s{sL}, {TAB}\ns_mul_i32 s{sT}, s{sJ}, 3072\ns_add_u32 s{sT}, s{sT}, {WS_TCW}")
    for q in range(3): k(f"buffer_load_dwordx4 {vr(AD+4*q,4)}, v{vOff}, {sr(dW,4)}, s{sT} offen offset:{1024*q}")
    k(f"buffer_load_dwordx4 v{vOff}, {sr(dW,4)}, s{sQ} offen lds")
    k(f"buffer_load_dwordx4 v{vOff}, {sr(dW,4)}, s{sQ} offen offset:1024 lds")
    vR1 = AD; vW1 = AD + 8; vR2 = AD + 10
    dX = k.srd(pX, 2048 * 2048)
    XP = k.v(8)
    k(f"buffer_load_dwordx4 {vr(XP,4)}, v{vXo}, {sr(dX,4)}, s{sRow} offen nt")
    k(f"buffer_load_dwordx4 {vr(XP+4,4)}, v{vXo}, {sr(dX,4)}, s{sRow} offen offset:1024 nt")
    dX1 = k.srd(pWS, 4 << 20, WS_X1); dY2 = k.srd(pWS, 4 << 20, WS_Y2)
    vMr = k.v()
    k(f"v_mad_u32_u24 v{T}, v{vG}, 18, v{vI}\nv_lshlrev_b32 v{vMr}, 4, v{T}\nv_add_u32 v{vMr}, {MOD}, v{vMr}")
    sR = k.s(); sY = k.s(); vYo = k.v()
    k(f"s_lshl_b32 s{sR}, s2, 3\ns_add_u32 s{sR}, s{sR}, s{sJ}")
    k(f"s_lshr_b32 s{sY}, s{sR}, 7\ns_lshl_b32 s{sY}, s{sY}, 18\ns_and_b32 s{sT}, s{sR}, 127\ns_lshl_b32 s{sT}, s{sT}, 7\ns_add_u32 s{sY}, s{sY}, s{sT}")
    k(f"s_bfe_u32 s{sT}, s{sR}, 0x30001\nv_and_b32 v{T}, 1, v{vI}\nv_lshl_add_u32 v{T}, v{T}, 2, v{vG}\nv_xor_b32 v{T}, s{sT}, v{T}\nv_lshlrev_b32 v{T}, 4, v{T}")
    k(f"v_lshrrev_b32 v{T+1}, 1, v{vI}\nv_lshl_add_u32 v{vYo}, v{T+1}, 14, v{T}")
    k(f"s_lshl_b32 s{sR}, s{sR}, 11")
    k.stamp()
    k("s_waitcnt vmcnt(2) lgkmcnt(0)\ns_barrier")
    k.stamp()
    OP = k.v(8); D = k.v(16); F1 = k.v(8); TW = k.v(16); F3 = k.v(32); X = k.v(16); E = k.v(16)
    k(f"ds_read_b128 {vr(F1,4)}, v{vOff} offset:{TAB+14336}\nds_read_b128 {vr(F1+4,4)}, v{vOff} offset:{TAB+15360}")
    for x in range(8): k(f"ds_read_b32 v{OP+x}, v{vR1+x}")
    k(f"s_cmp_eq_u32 s{sJ}, 7\ns_cbranch_scc1 C_nomod")
    k(f"s_add_u32 m0, s{sL}, {MOD}\ns_add_u32 s{sT}, s{sL}, {WS_MODC}")
    k(f"buffer_load_dwordx4 v{vOff}, {sr(dW,4)}, s{sT} offen lds\nbuffer_load_dwordx4 v{vOff}, {sr(dW,4)}, s{sT} offen offset:1024 lds")
    k("C_nomod:")
    sE = k.s()
    k(f"s_add_i32 s{sE}, s{sSc}, s{sSc+1}\ns_sub_i32 s{sE}, 0, s{sE}")
    for q in range(2):
        k(f"s_waitcnt lgkmcnt({4-4*q})")
        k(f"{MF} {vr(D+8*q,4)}, {vr(OP+4*q,4)}, {vr(F1,4)}, 0")
        k(f"{MF} {vr(D+8*q+4,4)}, {vr(OP+4*q,4)}, {vr(F1+4,4)}, 0")
    for q in range(4): k(f"ds_read_b128 {vr(TW+4*q,4)}, v{vOff} offset:{TAB+2048+1024*q}")
    for q in range(2):
        for v in range(4): k(f"v_cvt_pk_f16_f32 v{OP+4*q+v}, v{D+8*q+v}, v{D+8*q+4+v}")
        k(f"ds_write_b128 v{vW1+q}, {vr(OP+4*q,4)}")
    F2 = F1
    k(f"ds_read_b128 {vr(F2,4)}, v{vOff} offset:{TAB}\nds_read_b128 {vr(F2+4,4)}, v{vOff} offset:{TAB+1024}")
    k("s_waitcnt lgkmcnt(0)\ns_barrier")
    for rt in range(2):
        k(f"ds_read2st64_b32 {vr(OP+4*rt,2)}, v{vR2+rt} offset0:0 offset1:2")
        k(f"ds_read2st64_b32 {vr(OP+4*rt+2,2)}, v{vR2+rt} offset0:4 offset1:6")
    for q in (0, 1, 4, 5, 2, 3, 6, 7): k(f"ds_read_b128 {vr(F3+4*q,4)}, v{vOff} offset:{TAB+6144+1024*q}")
    def f3(ct, rt, ri): return F3 + ((ct * 2 + rt) * 2 + ri) * 4
    for rt in range(2):
        k(f"s_waitcnt lgkmcnt({10-2*rt})")
        k(f"{MF} {vr(D+8*rt,4)}, {vr(OP+4*rt,4)}, {vr(F2,4)}, 0")
        k(f"{MF} {vr(D+8*rt+4,4)}, {vr(OP+4*rt,4)}, {vr(F2+4,4)}, 0")
    for rt in range(2):
        for v in range(4):
            re = D + 8 * rt + v; im = re + 4
            cmul_tw(k, re, im, TW + 4 * rt + v, TW + 8 + 4 * rt + v, True, T + v)
            k(f"v_cvt_pk_f16_f32 v{OP+4*rt+v}, v{re}, v{im}")
        k(f"s_waitcnt lgkmcnt({4-4*rt})")
        for ct in range(2):
            for ri in range(2):
                d = E + 8 * ct + 4 * ri
                k(f"{MF} {vr(d,4)}, {vr(OP+4*rt,4)}, {vr(f3(ct,rt,ri),4)}, {vr(d,4) if rt else 0}")
    k("s_waitcnt vmcnt(0)\ns_barrier")
    k.stamp()
    GA = TW
    def mread(dst, vec):
        for ct in range(2):
            for h in range(2): k(f"ds_read_b128 {vr(dst+8*ct+4*h,4)}, v{vMr} offset:{(2*vec+ct)*MV + 73*16*h}")
    mread(GA, 0)
    SB = F3; CB = F3 + 16
    mread(CB, 2); mread(SB, 1)
    code_pf_w(k, "g1_kernel", "g2_kernel", sJ, 7, "s_and_b32 s{0}, s2, 31", vL, T + 4, AD + 2)
    pf_mall(k, pW1, pf[0], pf[1], 2, sJ, AD, T + 4)
    if l2w:
        dP = k.srd(pW1, WBYTES)
        k(f"v_lshrrev_b32 v{T+4}, 5, v0\nv_mul_u32_u24 v{T+4}, {32*7168}, v{T+4}\nv_and_b32 v{T+5}, 31, v0\nv_lshl_add_u32 v{T+4}, v{T+5}, 7, v{T+4}")
        k(f"v_cmp_lt_u32 vcc, 27, v{T+5}\nv_mov_b32 v{T+5}, {OOB}\nv_cndmask_b32 v{T+4}, v{T+4}, v{T+5}, vcc")
        k(f"s_and_b32 s{sT}, s2, 31\ns_mul_i32 s{sO}, s{sT}, 7168\ns_bfe_u32 s{sT}, s2, 0x10005\ns_mul_i32 s{sT}, s{sT}, 3584\ns_add_u32 s{sO}, s{sO}, s{sT}")
        k(f"buffer_load_dword v{AD}, v{T+4}, {sr(dP,4)}, s{sO} offen")
        if l2w > 1:
            nw = int(round((l2w - 1) * 8))
            k(f"s_add_u32 s{sO}, s{sO}, {512*7168}\ns_cmp_lt_u32 s{sJ}, {nw}\ns_cselect_b32 s{dP+2}, s{dP+2}, 0")
            k(f"buffer_load_dword v{AD+1}, v{T+4}, {sr(dP,4)}, s{sO} offen")
    unpack_bf16(k, X, XP, 8, sMask)
    def dreg(n): return E + 8 * (n >> 3) + 4 * (n & 1) + ((n & 7) >> 1)
    for n in range(16): k(f"v_ldexp_f32 v{dreg(n)}, v{dreg(n)}, s{sE}")
    for i in range(8): k(f"v_cvt_pk_bf16_f32 v{OP+i}, v{dreg(2*i)}, v{dreg(2*i+1)}")
    unpack_bf16(k, D, OP, 8, sMask)
    k("s_waitcnt lgkmcnt(8)")
    for n in range(16): k(f"v_mul_f32 v{D+n}, v{D+n}, v{GA+n}")
    for i in range(8): k(f"v_cvt_pk_bf16_f32 v{OP+i}, v{D+2*i}, v{D+2*i+1}")
    unpack_bf16(k, D, OP, 8, sMask)
    for n in range(16): k(f"v_add_f32 v{X+n}, v{X+n}, v{D+n}")
    for i in range(8): k(f"v_cvt_pk_bf16_f32 v{XP+i}, v{X+2*i}, v{X+2*i+1}")
    k(f"buffer_store_dwordx4 {vr(XP,4)}, v{vXo}, {sr(dX1,4)}, s{sR} offen {st_flags}")
    k(f"buffer_store_dwordx4 {vr(XP+4,4)}, v{vXo}, {sr(dX1,4)}, s{sR} offen offset:1024 {st_flags}")
    unpack_bf16(k, X, XP, 8, sMask)
    vSum = k.v(); vM = k.v(); vDl = k.v(); vR = k.v(); sSum = k.s()
    def layernorm(fill2):
        k(f"v_add_f32 v{vSum}, v{X}, v{X+1}\nv_add_f32 v{T}, v{X+2}, v{X+3}")
        for i in range(2, 8): k(f"v_add_f32 v{vSum}, v{vSum}, v{X+2*i}\nv_add_f32 v{T}, v{T}, v{X+2*i+1}")
        k(f"v_add_f32 v{vSum}, v{vSum}, v{T}")
        wave_reduce(k, "v_add_f32", [vSum], [sSum])
        k(f"v_mov_b32 v{vDl}, {fbits(1/1024)}\nv_mul_f32 v{vDl}, s{sSum}, v{vDl}\nv_mov_b32 v{vM}, v{vDl}")
        round_bf16(k, vM)
        k(f"v_sub_f32 v{vDl}, v{vDl}, v{vM}")
        for i in range(16): k(f"v_sub_f32 v{X+i}, v{X+i}, v{vM}")
        k(f"v_mul_f32 v{vSum}, v{X}, v{X}\nv_mul_f32 v{T}, v{X+1}, v{X+1}")
        for i in range(1, 8): k(f"v_fmac_f32 v{vSum}, v{X+2*i}, v{X+2*i}\nv_fmac_f32 v{T}, v{X+2*i+1}, v{X+2*i+1}")
        k(f"v_add_f32 v{vSum}, v{vSum}, v{T}")
        with_fill(k, cap(lambda t: wave_reduce(t, "v_add_f32", [vSum], [sSum])), fill2, 3)
        k(f"v_mov_b32 v{vR}, {fbits(1/1024)}\nv_mul_f32 v{vR}, s{sSum}, v{vR}")
        k(f"v_fma_f32 v{vR}, -v{vDl}, v{vDl}, v{vR}\nv_max_f32 v{vR}, 0, v{vR}")
        round_bf16(k, vR)
        k(f"v_add_f32 v{vR}, {fbits(1e-5)}, v{vR}")
        round_bf16(k, vR)
        k(f"v_sqrt_f32 v{vR}, v{vR}")
        round_bf16(k, vR)
        k(f"v_rcp_f32 v{vR}, v{vR}")
    k("s_waitcnt lgkmcnt(0)")
    k.stamp()
    layernorm([f"v_mul_f32 v{X+i}, v{X+i}, v{CB+i}" for i in range(16)])
    for i in range(16): k(f"v_fma_f32 v{X+i}, v{X+i}, v{vR}, v{SB+i}")
    for i in range(8): k(f"v_cvt_pk_bf16_f32 v{OP+i}, v{X+2*i}, v{X+2*i+1}")
    unpack_bf16(k, X, OP, 8, sMask)
    layernorm([])
    for i in range(16): k(f"v_mul_f32 v{X+i}, v{X+i}, v{vR}")
    for i in range(8): k(f"v_cvt_pk_bf16_f32 v{OP+i}, v{X+2*i}, v{X+2*i+1}")
    k(f"s_add_u32 s{sT}, s{sY}, {8*16384}")
    k(f"buffer_store_dwordx4 {vr(OP,4)}, v{vYo}, {sr(dY2,4)}, s{sY} offen {st_flags}")
    k(f"buffer_store_dwordx4 {vr(OP+4,4)}, v{vYo}, {sr(dY2,4)}, s{sT} offen {st_flags}")
    k.stamp()
    if k.prof: k("s_waitcnt vmcnt(0)")
    k.stamp_flush()
    k("C_end:\ns_endpgm")
    return k
```

```python
from asmlib import *
from kern4 import *
MB = "v_mfma_f32_16x16x32_bf16"
CLK = False

def tile_map(k, mx, sMt, sNt, sT):
    lm = mx.bit_length() - 1
    gm = 16 // mx
    lgm = gm.bit_length() - 1
    k(f"s_and_b32 s{sMt}, s2, {gm-1}\ns_lshl_b32 s{sMt}, s{sMt}, {lm}")
    k(f"s_lshr_b32 s{sT}, s2, 3\ns_and_b32 s{sT}, s{sT}, {mx-1}\ns_add_u32 s{sMt}, s{sMt}, s{sT}")
    k(f"s_and_b32 s{sNt}, s2, 7\ns_lshr_b32 s{sNt}, s{sNt}, {lgm}\ns_lshl_b32 s{sNt}, s{sNt}, {5-lm}")
    k(f"s_lshr_b32 s{sT}, s2, {3+lm}\ns_add_u32 s{sNt}, s{sNt}, s{sT}")

def interleave(k, main, fill, start=0, every=1):
    fill = list(fill)
    for i, m in enumerate(main):
        k(m)
        if i >= start and (i - start) % every == 0 and fill:
            k(fill.pop(0))
    for f in fill: k(f)


FLC = 32768
FLH = 65536

def spread(k, lines, extra, every):
    extra = list(extra)
    for i, l in enumerate(lines):
        k(l)
        if (i + 1) % every == 0 and extra: k(extra.pop(0))
    for e in extra: k(e)

def poll(k, name, dF, sOff, vAddr, vTmp, n, val=1):
    k(f"{name}:")
    k(f"buffer_load_dword v{vTmp}, v{vAddr}, {sr(dF,4)}, s{sOff} offen sc1")
    k("s_waitcnt vmcnt(0)")
    k(f"v_cmp_ne_u32 vcc, {val}, v{vTmp}")
    k(f"s_cbranch_vccz {name}_ok\ns_sleep 1\ns_branch {name}\n{name}_ok:")

def set_flag(k, dF, sOff, vL, vA, vB):
    k(f"v_and_b32 v{vA}, 31, v{vL}\nv_lshlrev_b32 v{vA}, 2, v{vA}\nv_mov_b32 v{vB}, 1")
    k(f"buffer_store_dword v{vB}, v{vA}, {sr(dF,4)}, s{sOff} offen sc1")

CLK = False
GSTAMP = False
def gen_mega(pw1=(0, 224), pfd=3, out_flags="sc1", npre=12, w2c=(0, 0), w1c=(0, 0), w2l=(0, 224), R1=(), noH=False, noW2=False, perm=True, noY=False, noW1=False, pfs=(3, 8), gat2="late", pw1at="w2"):
    TAB = C_TB + 8 * C_TP; MOD = TAB + 16384; MV = C_MV
    pre_st = [0, 1, 2] + list(R1)
    dma_st = [s for s in range(16) if s not in pre_st]
    PI = {s: i for i, s in enumerate(dma_st + pre_st if perm else range(16))}
    WR0 = 65536; WSL = 28672; YSL = 16384
    k = Kern("mega_kernel", 256, 512, 163840)
    k.stv = 255
    pX = k.s(2); pWS = k.s(2); pA = k.s(8); pO = k.s(2)
    pW1 = pA; pB1 = pA + 2; pW2 = pA + 4; pB2 = pA + 6
    k(f"s_cmp_ge_u32 s2, 256\ns_cbranch_scc1 CG_end")
    k.stamp(True)
    k(f"s_load_dwordx2 {sr(pX,2)}, s[0:1], 0")
    k(f"s_load_dwordx2 {sr(pWS,2)}, s[0:1], 96")
    k(f"s_load_dwordx8 {sr(pA,8)}, s[0:1], 32")
    k(f"s_load_dwordx2 {sr(pO,2)}, s[0:1], 80")
    vL, vI, vG, sW, T = lane_ids(k)
    sMask = k.s(); sT = k.s(); sMt = k.s(); sNt = k.s(); sWm = k.s(); sWn = k.s(); sWo = k.s(); sMw = k.s()
    vOff = k.v(); vWo = k.v(7)
    tile_map(k, 4, sMt, sNt, sT)
    k(f"s_and_b32 s{sWm}, s{sW}, 1\ns_bfe_u32 s{sWn}, s{sW}, 0x10001\ns_mov_b32 s{sMask}, 0xffff0000")
    k(f"v_lshlrev_b32 v{vOff}, 4, v{vL}")
    dW1 = k.s(4); dF = k.s(4)
    mC = k.mark()
    sJ = sW
    pF = k.s(4); sS0 = k.s(); sRow = k.s(); sE = k.s(); sCn = k.s(); dW = k.s(4)
    k(f"s_load_dwordx4 {sr(pF,4)}, s[0:1], 8")
    k(f"s_lshl_b32 s{sS0}, s{sMt}, 4\ns_add_u32 s{sS0}, s{sS0}, s{sNt}")
    k(f"s_lshl_b32 s{sRow}, s{sJ}, 8\ns_add_u32 s{sRow}, s{sRow}, s{sS0}\ns_lshl_b32 s{sRow}, s{sRow}, 11")
    mA = k.mark()
    AT = 16640; AM = AT + 18 * 1024; AX = AM + 8192
    BT = 151552; BLC = BT + 6144; BWL = 110592; BWX = BWL + 16384; BOUT = C_TB
    vOfA = k.v(); vOfB = k.v()
    WR = k.v(4); WI = k.v(4); vWw = k.v(); vCp = k.v(); vSp = k.v()
    sRho = k.s(); sC = k.s(); sSlot = k.s()
    mA2 = k.mark()
    sQ0 = k.s(); sQ1 = k.s(); sS = k.s(); sL = k.s()
    k(f"v_lshlrev_b32 v{T}, 4, v0\nv_add_u32 v{vOfA}, {A_BASE}, v{vOff}\nv_add_u32 v{vOfB}, {BT}, v{vOff}")
    k(f"s_lshl_b32 s{sL}, s{sJ}, 10\ns_add_u32 s{sQ0}, s{sL}, {WS_TAC}\ns_add_u32 s{sQ1}, s{sL}, {WS_TAC+8192}")
    k(f"s_lshl_b32 s{sS}, s{sS0}, 12\ns_add_u32 s{sS}, s{sS}, s{sL}\ns_add_u32 s{sT}, s{sS}, {WS_TAS-6*1024}")
    k(f"s_cmp_ge_u32 s{sJ}, 6\ns_cselect_b32 s{sQ1}, s{sT}, s{sQ1}\ns_add_u32 s{sS}, s{sS}, {WS_TAS+2048}")
    k("s_waitcnt lgkmcnt(0)")
    k.stamp_init2(3, pWS)
    dX = k.srd(pX, 2048 * 2048)
    k(f"s_mov_b32 s{dW}, s{pWS}\ns_mov_b32 s{dW+1}, s{pWS+1}\ns_mov_b32 s{dW+2}, {WS_ZA}\ns_mov_b32 s{dW+3}, 0x20000")
    XP = k.v(8); MP = k.v(16); AD = k.v(8)
    k(f"buffer_load_dwordx4 {vr(XP,4)}, v{vOff}, {sr(dX,4)}, s{sRow} offen")
    k(f"buffer_load_dwordx4 {vr(XP+4,4)}, v{vOff}, {sr(dX,4)}, s{sRow} offen offset:1024")
    for p in range(4):
        k(f"s_mov_b32 s{sT}, {WS_MODP + p*8192}\nbuffer_load_dwordx4 {vr(MP+4*p,4)}, v{T}, {sr(dW,4)}, s{sT} offen")
    dZ = k.srd(pWS, ZA_BYTES, WS_ZA)
    vR3 = AD; vSt = AD + 4
    sBase = k.s(); sAdd = k.s(); sF = k.s(); sZo = k.s()
    k(f"s_lshl_b32 s{sBase}, s{sJ}, 11\ns_lshr_b32 s{sT}, s{sJ}, 2\ns_lshl_b32 s{sT}, s{sT}, 6\ns_add_u32 s{sBase}, s{sBase}, s{sT}\ns_add_u32 s{sBase}, s{sBase}, {A_BASE}")
    k(f"s_cmp_ge_u32 s{sJ}, 4\ns_cselect_b32 s{sAdd}, 1.0, 0")
    k(f"s_lshl_b32 s{sF}, s{sS0}, 2\ns_and_b32 s{sF}, s{sF}, 48\ns_lshl_b32 s{sZo}, s{sS0}, 6")
    vW1 = k.v(); vR1 = k.v(); vMw = k.v(); vW2 = k.v(2)
    k(f"v_add_u32 v{vW1}, s{sBase}, v{vOff}\nv_lshl_add_u32 v{vR1}, v{vL}, 2, s{sBase}")
    k(f"v_and_b32 v{T}, 1, v0\nv_lshlrev_b32 v{T}, 10, v{T}\nv_bfe_u32 v{T+1}, v0, 1, 6\nv_lshl_add_u32 v{T}, v{T+1}, 4, v{T}")
    k(f"s_lshr_b32 s{sT}, s{sJ}, 1\ns_lshl_b32 s{sT}, s{sT}, 11\ns_add_u32 s{sT}, s{sT}, {A_BASE+AM}\nv_add_u32 v{vMw}, s{sT}, v{T}")
    k(f"v_and_b32 v{T+1}, 7, v{vL}\nv_xor_b32 v{T}, v{vG}, v{T+1}\nv_lshl_add_u32 v{T}, v{vI}, 3, v{T}")
    k(f"v_lshl_add_u32 v{vW2}, v{T}, 4, s{sBase}\nv_xor_b32 v{T}, 4, v{T}\nv_lshl_add_u32 v{vW2+1}, v{T}, 4, s{sBase}")
    k(f"s_cmp_ge_u32 s{sJ}, 2\ns_cbranch_scc1 A_no3")
    k(f"s_add_u32 m0, s{sL}, {A_BASE+AT+16384}\nbuffer_load_dwordx4 v{vOff}, {sr(dW,4)}, s{sS} offen lds")
    k("A_no3:")
    k(f"s_add_u32 m0, s{sL}, {A_BASE+AT}\nbuffer_load_dwordx4 v{vOff}, {sr(dW,4)}, s{sQ0} offen lds")
    k(f"s_add_u32 m0, s{sL}, {A_BASE+AT+8192}\nbuffer_load_dwordx4 v{vOff}, {sr(dW,4)}, s{sQ1} offen lds")
    k(f"s_lshl_b32 s{sT}, s{sJ}, 11\ns_add_u32 s{sT}, s{sT}, {WS_TAW}")
    k(f"buffer_load_dwordx4 {vr(AD,4)}, v{vOff}, {sr(dW,4)}, s{sT} offen\nbuffer_load_dwordx4 {vr(AD+4,4)}, v{vOff}, {sr(dW,4)}, s{sT} offen offset:1024")
    k(f"s_mov_b32 s{dW1}, s{pW1}\ns_mov_b32 s{dW1+1}, s{pW1+1}\ns_mov_b32 s{dW1+2}, {WBYTES}\ns_mov_b32 s{dW1+3}, 0x20000")
    k(f"s_add_u32 s{dF}, s{pWS}, {WS_FLAG}\ns_addc_u32 s{dF+1}, s{pWS+1}, 0\ns_mov_b32 s{dF+2}, 0x5A000\ns_mov_b32 s{dF+3}, 0x20000")
    k(f"s_and_b32 s{sT}, s2, 7\ns_lshl_b32 s{sSlot}, s{sT}, 5\ns_add_u32 s{sT}, s{sT}, 1\ns_lshr_b32 s{sRho}, s{sT}, 1\ns_and_b32 s{sC}, s{sT}, 1\ns_lshl_b32 s{sC}, s{sC}, 5")
    k(f"s_cmp_eq_u32 s{sRho}, 0\ns_cselect_b32 s{sC}, 0, s{sC}\ns_lshr_b32 s{sT}, s2, 3\ns_add_u32 s{sC}, s{sC}, s{sT}\ns_add_u32 s{sSlot}, s{sSlot}, s{sT}")
    vWa = k.v(); sCol = k.s(); sHi = k.s()
    k(f"v_bfe_u32 v{T}, v0, 4, 4\nv_lshl_add_u32 v{T}, v{vI}, 4, v{T}\nv_lshl_add_u32 v{T+2}, v{T}, 3, s{sRho}")
    k(f"v_sub_u32 v{T+3}, 2048, v{T+2}\nv_and_b32 v{T+3}, 2047, v{T+3}")
    k(f"s_lshl_b32 s{sCol}, s{sC}, 4\ns_sub_u32 s{sT}, 1010, s{sCol}")
    k(f"s_cmp_ge_u32 s{sJ}, 4\ns_cselect_b32 s{sCol}, s{sT}, s{sCol}\ns_cselect_b64 vcc, -1, 0\ns_cselect_b32 s{sHi}, 1024, 0")
    k(f"v_cndmask_b32 v{T}, v{T+2}, v{T+3}, vcc\nv_mul_u32_u24 v{vWa}, 1026, v{T}")
    dR = k.srd(pF, W_BYTES); dI = k.srd(pF + 2, W_BYTES)
    k(f"v_bfe_u32 v{T}, v0, 6, 2\nv_sub_u32 v{T}, 0, v{T}\nv_and_b32 v{T}, 3, v{T}\nv_lshlrev_b32 v{T}, 2, v{T}")
    k(f"v_and_b32 v{T+1}, 255, v0\nv_xor_b32 v{T}, v{T}, v{T+1}\nv_lshlrev_b32 v{T}, 2, v{T}")
    k(f"s_lshl_b32 s{sT}, s{sHi}, 3\ns_add_u32 s{sT}, s{sT}, {BWL}\nv_add_u32 v{vWw}, s{sT}, v{T}")
    vLc = k.v()
    k(f"v_subrev_u32 v{T}, 256, v0\nv_and_b32 v{T+1}, -5, v{T}\nv_cmp_eq_u32 vcc, 0, v{T+1}\nv_mov_b32 v{T+1}, {OOB}\nv_cndmask_b32 v{vLc}, v{T+1}, v{T}, vcc")
    X = k.v(16); RC = k.v(2); vE = k.v(2); vMax = k.v()
    sP = k.s(2); sSum = k.s(2); sMax = k.s()
    k.stamp()
    k("s_waitcnt vmcnt(8)")
    unpack_bf16(k, X, XP, 8, sMask)
    def modfin(k):
        k("s_waitcnt vmcnt(4)")
        for i in (0, 2): k(f"v_pk_add_f32 {P2(MP+i)}, {P2(MP+i)}, {P2(MP+4+i)}\nv_pk_add_f32 {P2(MP+8+i)}, {P2(MP+8+i)}, {P2(MP+12+i)}")
        for i in (0, 2): k(f"v_pk_add_f32 {P2(MP+i)}, {P2(MP+i)}, {P2(MP+8+i)}")
        k(f"v_cvt_pk_bf16_f32 v{MP+4}, v{MP}, v{MP+1}\nv_cvt_pk_bf16_f32 v{MP+5}, v{MP+2}, v{MP+3}")
        unpack_bf16(k, MP, MP + 4, 2, sMask)
        for i in range(4): k(f"v_add_f32 v{MP+i}, s{sAdd}, v{MP+i}")
        k(f"v_cvt_pk_bf16_f32 v{MP+4}, v{MP}, v{MP+1}\nv_cvt_pk_bf16_f32 v{MP+5}, v{MP+2}, v{MP+3}")
        unpack_bf16(k, MP, MP + 4, 2, sMask)
        k(f"ds_write_b128 v{vMw}, {vr(MP,4)}")
        k(f"v_max3_f32 v{vMax}, abs(v{MP}), abs(v{MP+1}), abs(v{MP+2})\nv_max_f32 v{vMax}, abs(v{MP+3}), v{vMax}")
    n0 = len(k.lines)
    ln_pk(k, X, T, RC, sP, sSum, cap(modfin), ("v_max_f32", vMax, sMax))
    idx = max(i for i in range(n0, len(k.lines)) if k.lines[i].startswith("v_readlane_b32")) + 1
    k.lines[idx:idx] = [f"s_lshl_b32 s{sT}, s{sJ}, 2", f"s_add_u32 s{sT}, s{sT}, {A_BASE+AX}", f"v_mov_b32 v{T+5}, s{sT}", f"v_mov_b32 v{vMax}, s{sMax}", f"ds_write_b32 v{T+5}, v{vMax}"]
    k("s_waitcnt vmcnt(0) lgkmcnt(0)\ns_barrier")
    k.stamp()
    SA = k.v(16); CA = k.v(16); FA = k.v(16); FB = k.v(16)
    k(f"v_mov_b32 v{T}, {A_BASE+AX}\nds_read_b128 {vr(MP,4)}, v{T}\nds_read_b128 {vr(MP+4,4)}, v{T} offset:16")
    for q in range(2):
        for h in range(2):
            k(f"ds_read_b128 {vr(CA+8*q+4*h,4)}, v{vOfA} offset:{AM+4096+2048*q+1024*h}")
            k(f"ds_read_b128 {vr(SA+8*q+4*h,4)}, v{vOfA} offset:{AM+2048*q+1024*h}")
    def fq(ct, ks, ri): return AT + 1024 * ((ct * 2 + ks) * 2 + ri)
    for ct in range(2):
        for ri in range(2): k(f"ds_read_b128 {vr(FA+(ct*2+ri)*4,4)}, v{vOfA} offset:{fq(ct,0,ri)}")
    k(f"buffer_load_dwordx4 {vr(WR,4)}, v{vWa}, {sr(dR,4)}, s{sCol} offen")
    if pw1at == "a": pf_uni(k, pW1, pw1[0], pw1[1], 2, sW, vL, vMax, T + 4)
    k("s_waitcnt lgkmcnt(12)")
    k(f"v_max3_f32 v{MP}, v{MP}, v{MP+1}, v{MP+2}\nv_max3_f32 v{MP+4}, v{MP+4}, v{MP+5}, v{MP+6}\nv_max3_f32 v{MP}, v{MP}, v{MP+3}, v{MP+7}\nv_max_f32 v{MP}, v{MP}, v{MP+4}")
    k(f"v_frexp_exp_i32_f32 v{vE}, v{MP}\nv_sub_u32 v{vE}, 3, v{vE}\nv_min_i32 v{vE}, 60, v{vE}\nv_max_i32 v{vE}, {(-60)&0xffffffff}, v{vE}\nv_ldexp_f32 v{RC}, 1.0, v{vE}\nv_readfirstlane_b32 s{sE}, v{vE}")
    Z = XP
    for hq in range(4):
        k(f"s_waitcnt lgkmcnt({10-2*hq + (1 if hq >= 2 else 0)})")
        for i in (2 * hq, 2 * hq + 1): k(f"v_pk_fma_f32 {P2(X+2*i)}, {P2(X+2*i)}, {P2(CA+2*i)}, {P2(SA+2*i)}")
        for i in (2 * hq, 2 * hq + 1): k(f"v_pk_mul_f32 {P2(X+2*i)}, {P2(X+2*i)}, {P2(RC)} op_sel_hi:[1,0]")
        for i in (2 * hq, 2 * hq + 1): k(f"v_cvt_pk_f16_f32 v{Z+i}, v{X+2*i}, v{X+2*i+1}")
        if hq == 1: k(f"ds_write_b128 v{vW1}, {vr(Z,4)}")
    k(f"ds_write_b128 v{vW1}, {vr(Z+4,4)} offset:1024")
    OP = MP
    for h in range(4): k(f"ds_read2st64_b32 {vr(OP+2*h,2)}, v{vR1} offset0:{2*h} offset1:{2*h+1}")
    for ct in range(2):
        for ri in range(2): k(f"ds_read_b128 {vr(FB+(ct*2+ri)*4,4)}, v{vOfA} offset:{fq(ct,1,ri)}")
    TW = SA; F2 = MP + 8
    for q in range(4): k(f"ds_read_b128 {vr(TW+4*q,4)}, v{vOfA} offset:{AT+8192+1024*q}")
    for q in range(2): k(f"ds_read_b128 {vr(F2+4*q,4)}, v{vOfA} offset:{AT+12288+1024*q}")
    if gat2 == "mid": k(f"buffer_load_dwordx4 {vr(WI,4)}, v{vWa}, {sr(dI,4)}, s{sCol} offen")
    D1 = X
    k("s_waitcnt lgkmcnt(12)")
    for o in range(4): k(f"{MF} {vr(D1+o*4,4)}, {vr(OP,4)}, {vr(FA+o*4,4)}, 0")
    k("s_waitcnt lgkmcnt(6)")
    for o in range(4): k(f"{MF} {vr(D1+o*4,4)}, {vr(OP+4,4)}, {vr(FB+o*4,4)}, {vr(D1+o*4,4)}")
    F3 = FA
    for q in range(4): k(f"ds_read_b128 {vr(F3+4*q,4)}, v{vOfA} offset:{AT+14336+1024*q}")
    for q in range(4): k(f"v_xor_b32 v{vSt+q}, s{sF}, v{vSt+q}")
    k("s_waitcnt lgkmcnt(4)")
    D2 = CA
    for ct in range(2):
        tw_block(k, D1 + ct * 8, TW + 4 * ct, TW + 8 + 4 * ct, False, T, OP + 4 * ct)
        k(f"{MF} {vr(D2+ct*8,4)}, {vr(OP+4*ct,4)}, {vr(F2,4)}, 0")
        k(f"{MF} {vr(D2+ct*8+4,4)}, {vr(OP+4*ct,4)}, {vr(F2+4,4)}, 0")
    for ct in range(2):
        for v in range(4): k(f"v_cvt_pk_f16_f32 v{Z+4*ct+v}, v{D2+ct*8+v}, v{D2+ct*8+4+v}")
        k(f"ds_write_b128 v{vW2+ct}, {vr(Z+4*ct,4)}")
    k("s_waitcnt lgkmcnt(0)\ns_barrier")
    O3 = X
    for q in range(2):
        for x in range(2):
            d = O3 + (q * 2 + x) * 4
            k(f"ds_read2st64_b32 {vr(d,2)}, v{vR3+2*q+x} offset0:0 offset1:8")
            k(f"ds_read2st64_b32 {vr(d+2,2)}, v{vR3+2*q+x} offset0:16 offset1:24")
    D3 = SA
    for q in range(2):
        for x in range(2):
            k(f"s_waitcnt lgkmcnt({6-2*(2*q+x)})")
            for ri in range(2):
                d = D3 + ((q * 2 + x) * 2 + ri) * 4
                k(f"{MF} {vr(d,4)}, {vr(O3+(q*2+x)*4,4)}, {vr(F3+(x*2+ri)*4,4)}, 0")
    P = MP
    k(f"s_lshl_b32 s{sT}, s{sS0}, 3\ns_add_u32 s{sT}, s{sT}, {WS_LC}")
    for q in range(2):
        for v in range(4):
            for x in range(2):
                d = D3 + ((q * 2 + x) * 2) * 4 + v
                k(f"v_cvt_pk_f16_f32 v{P+8*q+2*v+x}, v{d}, v{d+4}")
        for e in range(4): k(f"v_permlane32_swap_b32 v{P+8*q+e}, v{P+8*q+4+e}")
        for ins in range(2):
            k(f"buffer_store_dwordx4 {vr(P+8*q+4*ins,4)}, v{vSt+2*q+ins}, {sr(dZ,4)}, s{sZo} offen sc1")
        if q == 0: k(f"buffer_store_dword v{P+1}, v{vLc}, {sr(dW,4)}, s{sT} offen sc1")
    k.stamp()
    G = FB + 16; H = G + 32
    k.nv = max(k.nv, H + 16); k.maxv = max(k.maxv, k.nv)
    def bconsts(G, H, phi_known):
        def g1(ks, o): return G + (ks * 4 + o) * 4
        for e2 in range(2):
            k(f"v_lshl_add_u32 v{T}, v{vG}, 1, {e2}\nv_mul_u32_u24 v{T}, v{T}, v{vI}")
            sincos(k, T + 1, T + 2, T, 16, T + 3)
            k(f"v_mul_f32 v{T+4}, v{vCp}, v{T+1}\nv_mul_f32 v{T+5}, v{vCp}, v{T+2}")
            k(f"v_mul_f32 v{T+6}, v{vSp}, v{T+1}\nv_mul_f32 v{T+7}, v{vSp}, v{T+2}")
            p1 = f"v{T+4}, v{T+5}"; p2 = f"-v{T+5}, v{T+4}"; p3 = f"v{T+7}, -v{T+6}"; p4 = f"v{T+6}, v{T+7}"
            for o, (pa, pb) in enumerate(((p1, p3), (p2, p4), (p3, p1), (p4, p2))):
                k(f"v_cvt_pk_f16_f32 v{g1(0,o)+2*e2}, {pa}\nv_cvt_pk_f16_f32 v{g1(0,o)+2*e2+1}, {pb}")
        k(f"s_mov_b32 s{sT}, 0x80008000\nv_and_b32 v{T}, 1, v{vI}\nv_mul_lo_u32 v{T}, v{T}, s{sT}")
        for x in range(16): k(f"v_xor_b32 v{G+16+x}, v{T}, v{G+x}")
        for v in range(4):
            k(f"v_lshl_add_u32 v{T}, v{vG}, 2, {v}\nv_mul_u32_u24 v{T}, v{T}, v{vI}")
            sincos(k, T + 1, T + 2, T, 16, T + 3)
            k(f"v_mul_f32 v{T+4}, v{vCp}, v{T+1}\nv_mul_f32 v{T+5}, v{vCp}, v{T+2}\nv_mul_f32 v{T+6}, v{vSp}, v{T+1}\nv_mul_f32 v{T+7}, v{vSp}, v{T+2}")
            k(f"v_cvt_pk_f16_f32 v{H+v}, v{T+4}, -v{T+5}\nv_cvt_pk_f16_f32 v{H+4+v}, v{T+5}, v{T+4}")
            k(f"v_cvt_pk_f16_f32 v{H+8+v}, v{T+7}, v{T+6}\nv_cvt_pk_f16_f32 v{H+12+v}, -v{T+6}, v{T+7}")
    k(f"s_lshl_b32 s{sT}, s{sC}, 3\ns_add_u32 s{sT}, s{sT}, s{sW}\ns_add_u32 s{sT}, s{sT}, 256\nv_mov_b32 v{T}, s{sT}")
    sincos(k, vCp, vSp, T, 2048, T + 1)
    k(f"v_mul_f32 v{vCp}, {fbits(0.25)}, v{vCp}\nv_mul_f32 v{vSp}, {fbits(0.25)}, v{vSp}")
    k("s_waitcnt vmcnt(0)\ns_barrier")
    def arrive(n):
        lab = f"ARR{n}"
        k(f"s_cmp_lg_u32 s{sW}, 0\ns_cbranch_scc1 {lab}")
        k(f"s_and_b32 s{sT}, s2, 15\ns_lshl_b32 s{sT}, s{sT}, 7\ns_add_u32 s{sT}, s{sT}, {WS_CNT-WS_FLAG+2048*n}")
        k(f"v_cmp_eq_u32 vcc, 0, v{vL}\nv_mov_b32 v{T}, {OOB}\nv_cndmask_b32 v{T}, v{T}, 0, vcc\nv_mov_b32 v{T+1}, 1")
        k(f"buffer_atomic_add v{T+1}, v{T}, {sr(dF,4)}, s{sT} offen sc1")
        k(f"{lab}:")
    def await_(n):
        lab = f"AW{n}"
        k(f"s_cmp_lg_u32 s{sW}, 0\ns_cbranch_scc1 {lab}")
        k(f"s_mov_b32 s{sCn}, {WS_CNT-WS_FLAG+2048*n}\nv_lshlrev_b32 v{T+2}, 7, v{vI}")
        poll(k, f"AWP{n}", dF, sCn, T + 2, T + 3, 16, 16)
        k(f"{lab}:\ns_barrier")
    arrive(0)
    k.stamp()
    if gat2 != "mid": k(f"buffer_load_dwordx4 {vr(WI,4)}, v{vWa}, {sr(dI,4)}, s{sCol} offen")
    nvG = k.nv
    k.release(mA2)
    ADc = k.v(12); XPc = k.v(8)
    mB = k.mark()
    vRd = k.v(); vWr = k.v(); vOr = k.v(); vOs = k.v(); vWrd = k.v(); WM = k.v(4); WP = k.v(8); Wf = k.v(16); OP = k.v(8); D = k.v(16); TB = k.v(24)
    assert k.nv + 2 <= G, (k.nv, G)
    sL = k.s(); sO = k.s(); sScale = k.s(2); sE2 = k.s(); sSp = k.s(); sPa = k.s(); sPb = k.s()
    k(f"s_mov_b32 s{sT}, {WS_WMAX}\nbuffer_load_dwordx4 {vr(WM,4)}, v{vOff}, {sr(dW,4)}, s{sT} offen")
    k(f"s_min_u32 s{sT}, s{sW}, 5\ns_lshl_b32 s{sT}, s{sT}, 10\ns_add_u32 m0, s{sT}, {BT}\ns_add_u32 s{sT}, s{sT}, {WS_TBC}")
    k(f"buffer_load_dwordx4 v{vOff}, {sr(dW,4)}, s{sT} offen lds")
    FN = D; WE = OP
    k(f"s_or_b32 s{sSp}, s{sC}, s{sW}\ns_cmp_lg_u32 s{sSp}, 0\ns_cbranch_scc1 B_nox")
    k(f"s_mov_b32 s{sPa}, {WS_SPC}\ns_mov_b32 s{sPb}, {WS_SPC+16384}")
    for v in range(4):
        k(f"v_lshl_add_u32 v{T}, v{vG}, 2, {v}\nv_lshl_add_u32 v{T}, v{T}, 4, v{vI}\nv_lshl_add_u32 v{T}, v{T}, 3, s{sRho}\nv_sub_u32 v{T+1}, 2048, v{T}")
        for r in (T, T + 1): k(f"v_and_b32 v{T+2}, 7, v{r}\nv_bfe_u32 v{r}, v{r}, 3, 8\nv_lshlrev_b32 v{r}, 2, v{r}\nv_lshl_add_u32 v{r}, v{T+2}, 10, v{r}")
        k(f"buffer_load_dword v{WE+v}, v{T+1}, {sr(dW,4)}, s{sPa} offen\nbuffer_load_dword v{WE+4+v}, v{T}, {sr(dW,4)}, s{sPb} offen")
    k("B_nox:")
    k(f"s_cmp_lg_u32 s{sW}, 2\ns_cbranch_scc1 B_nofl")
    k(f"v_lshlrev_b32 v{T}, 14, v{vG}\nv_lshl_add_u32 v{T}, v{vI}, 2, v{T}\ns_lshl_b32 s{sT}, s2, 6\ns_add_u32 s{sT}, s{sT}, {WS_MODQ}\ns_add_u32 s{sPa}, s{sT}, 65536")
    k(f"buffer_load_dword v{FN}, v{T}, {sr(dW,4)}, s{sT} offen\nbuffer_load_dword v{FN+1}, v{T}, {sr(dW,4)}, s{sPa} offen")
    k("B_nofl:")
    bconsts(G, H, False)
    k(f"s_lshr_b32 s{sT}, s{sW}, 1")
    k(f"v_lshrrev_b32 v{T}, 2, v{vI}\nv_xor_b32 v{T}, s{sT}, v{T}\nv_lshlrev_b32 v{T}, 4, v{T}\nv_lshl_add_u32 v{T}, v{vI}, 6, v{T}")
    k(f"s_and_b32 s{sT}, s{sW}, 1\ns_lshl_b32 s{sT}, s{sT}, 3\nv_add_u32 v{T}, s{sT}, v{T}")
    k(f"v_lshl_add_u32 v{vRd}, v{vG}, 11, v{T}\nv_lshl_add_u32 v{vWr}, v{vG}, 12, v{T}")
    k(f"v_lshlrev_b32 v{vOr}, 4, v0")
    k(f"v_lshrrev_b32 v{T}, 2, v0\nv_mul_u32_u24 v{T}, {ZB_PITCH}, v{T}")
    k(f"v_lshrrev_b32 v{T+1}, 4, v0\nv_xor_b32 v{T+1}, v{T+1}, v0\nv_and_b32 v{T+1}, 3, v{T+1}\nv_lshl_add_u32 v{vOs}, v{T+1}, 4, v{T}")
    k(f"v_lshrrev_b32 v{T}, 2, v{vI}\nv_sub_u32 v{T}, 0, v{T}\nv_and_b32 v{T}, 3, v{T}\nv_xor_b32 v{T}, v{T}, v{vG}\nv_lshlrev_b32 v{T}, 4, v{T}")
    k(f"v_lshl_add_u32 v{T}, v{vI}, 6, v{T}\ns_lshl_b32 s{sT}, s{sW}, 10\ns_add_u32 s{sT}, s{sT}, {BWL}\nv_add_u32 v{vWrd}, s{sT}, v{T}")
    k(f"s_mov_b32 s{sPa}, 0x05040100\ns_mov_b32 s{sPb}, 0x07060302\ns_or_b32 s{sSp}, s{sC}, s{sW}")
    k(f"s_mul_i32 s{sO}, s{sSlot}, {ZA_PITCH}\ns_lshl_b32 s{sL}, s{sW}, 11\ns_add_u32 s{sO}, s{sO}, s{sL}")
    dZ = k.srd(pWS, ZA_BYTES, WS_ZA); dO = k.srd(pWS, ZB_BYTES, WS_ZB)
    k("s_waitcnt vmcnt(0)")
    for q in range(4): k(f"v_perm_b32 v{WP+2*q}, v{WI+q}, v{WR+q}, s{sPa}\nv_perm_b32 v{WP+2*q+1}, v{WI+q}, v{WR+q}, s{sPb}")
    k(f"s_cmp_ge_u32 s{sW}, 4\ns_cbranch_scc1 B_wrev")
    for e in range(0, 8, 2): k(f"ds_write2st64_b32 v{vWw}, v{WP+e}, v{WP+e+1} offset0:{4*e} offset1:{4*e+4}")
    k("s_branch B_wdone\nB_wrev:")
    for e in range(0, 8, 2): k(f"ds_write2st64_b32 v{vWw}, v{WP+e}, v{WP+e+1} offset0:{4*(7-e)} offset1:{4*(6-e)}")
    k("B_wdone:")
    k(f"v_max3_u32 v{WM}, v{WM}, v{WM+1}, v{WM+2}\nv_max_u32 v{WM}, v{WM}, v{WM+3}")
    wave_reduce(k, "v_max_u32", [WM], [sE2])
    k(f"s_lshr_b32 s{sE2}, s{sE2}, 7\ns_sub_i32 s{sE2}, 125, s{sE2}\ns_min_i32 s{sE2}, s{sE2}, 60\ns_max_i32 s{sE2}, s{sE2}, -60")
    k(f"s_add_u32 s{sScale}, s{sE2}, 127\ns_lshl_b32 s{sScale}, s{sScale}, 23\ns_add_i32 s{sE}, s{sE}, s{sE2}\ns_sub_i32 s{sE}, 0, s{sE}\ns_mov_b32 s{sE2}, s{sScale}")
    k(f"s_cmp_lg_u32 s{sW}, 2\ns_cbranch_scc1 B_nofin")
    k(f"v_add_f32 v{FN}, v{FN}, v{FN+1}\nv_mov_b32 v{FN+1}, v{FN}")
    k(f"v_permlane16_swap_b32 v{FN}, v{FN+1}\nv_add_f32 v{FN}, v{FN}, v{FN+1}\nv_mov_b32 v{FN+1}, v{FN}")
    k(f"v_permlane32_swap_b32 v{FN}, v{FN+1}\nv_add_f32 v{FN}, v{FN}, v{FN+1}")
    round_bf16(k, FN)
    k(f"s_lshr_b32 s{sT}, s2, 6\ns_cmp_eq_u32 s{sT}, 2\ns_cselect_b32 s{sPa}, 1.0, 0\nv_add_f32 v{FN}, s{sPa}, v{FN}")
    k(f"v_cvt_pk_bf16_f32 v{FN}, v{FN}, v{FN}")
    k(f"s_cmp_eq_u32 s{sT}, 3\ns_cbranch_scc1 B_fgb")
    k(f"v_lshlrev_b32 v{FN}, 16, v{FN}\nv_and_b32 v{T}, 1, v{vI}\nv_lshlrev_b32 v{T}, 10, v{T}\nv_lshrrev_b32 v{T+1}, 3, v{vI}\nv_lshl_add_u32 v{T}, v{T+1}, 8, v{T}\nv_and_b32 v{T+1}, 6, v{vI}\nv_lshl_add_u32 v{T}, v{T+1}, 1, v{T}")
    k(f"s_lshr_b32 s{sT}, s2, 5\ns_lshl_b32 s{sT}, s{sT}, 11\ns_and_b32 s{sPa}, s2, 1\ns_lshl_b32 s{sPa}, s{sPa}, 9\ns_add_u32 s{sT}, s{sT}, s{sPa}\ns_bfe_u32 s{sPa}, s2, 0x40001\ns_lshl_b32 s{sPa}, s{sPa}, 4\ns_add_u32 s{sT}, s{sT}, s{sPa}\ns_add_u32 s{sT}, s{sT}, {WS_MODC}")
    k(f"buffer_store_dword v{FN}, v{T}, {sr(dW,4)}, s{sT} offen sc1\ns_branch B_nofin")
    k("B_fgb:")
    k(f"v_lshlrev_b32 v{T}, 1, v{vI}\ns_lshl_b32 s{sT}, s2, 5\ns_add_u32 s{sT}, s{sT}, {WS_GB-6144}")
    k(f"buffer_store_short v{FN}, v{T}, {sr(dW,4)}, s{sT} offen sc1")
    k("B_nofin:")
    k("s_waitcnt lgkmcnt(0)")
    k.stamp()
    await_(0)
    k.stamp()
    k(f"s_mov_b32 m0, s{sL}")
    k(f"buffer_load_dwordx4 v{vOff}, {sr(dZ,4)}, s{sO} offen sc1 lds\nbuffer_load_dwordx4 v{vOff}, {sr(dZ,4)}, s{sO} offen offset:1024 sc1 lds")
    WL2 = WR
    assert WI == WR + 4
    k(f"s_cmp_lg_u32 s{sW}, 1\ns_cbranch_scc1 B_nol1")
    k(f"s_mov_b32 m0, {BLC}\ns_mov_b32 s{sT}, {WS_LC}")
    k(f"buffer_load_dwordx4 v{vOff}, {sr(dW,4)}, s{sT} offen sc1 lds\nbuffer_load_dwordx4 v{vOff}, {sr(dW,4)}, s{sT} offen offset:1024 sc1 lds")
    k(f"v_lshlrev_b32 v{T}, 8, v{vG}\nv_lshl_add_u32 v{T}, v{vI}, 2, v{T}")
    for w in range(2):
        k(f"s_mov_b32 s{sT}, {WS_SPC+8192+4096*w}")
        for v in range(4): k(f"buffer_load_dword v{WL2+4*w+v}, v{T}, {sr(dW,4)}, s{sT} offen offset:{64*v}")
    k("B_nol1:")
    k(f"ds_read_b128 {vr(WP,4)}, v{vWrd}\nds_read_b128 {vr(WP+4,4)}, v{vWrd} offset:8192")
    for q in range(6): k(f"ds_read_b128 {vr(TB+4*q,4)}, v{vOfB} offset:{1024*q}")
    TWC = TB; TWS = TB + 4; FR = TB + 8; FI = TB + 12; CR = TB + 16; CI = TB + 20
    def unpl(dst, src):
        for w in range(2):
            for v in range(4): k(f"v_lshlrev_b32 v{dst+8*w+v}, 16, v{src+4*w+v}\nv_and_b32 v{dst+8*w+4+v}, s{sMask}, v{src+4*w+v}")
    k("s_waitcnt lgkmcnt(6)")
    unpl(Wf, WP)
    k(f"s_cmp_lg_u32 s{sSp}, 0\ns_cbranch_scc1 B_nospec")
    unpl(D, WE)
    k(f"s_sub_u32 s{sScale}, s{sScale}, {1<<23}")
    for i in (0, 1, 2, 3, 8, 9, 10, 11): k(f"v_add_f32 v{Wf+i}, v{Wf+i}, v{D+i}\nv_sub_f32 v{Wf+i+4}, v{Wf+i+4}, v{D+i+4}")
    k("B_nospec:")
    def wscale():
        for i in range(8): k(f"v_pk_mul_f32 {P2(Wf+2*i)}, {P2(Wf+2*i)}, s[{sScale}:{sScale+1}] op_sel_hi:[1,0]")
    wscale()
    k("s_waitcnt vmcnt(0) lgkmcnt(0)\ns_barrier")
    k.stamp()
    def bcore(rd_off, conj2):
        def g1(ks, o): return G + (ks * 4 + o) * 4
        for ks in range(2):
            for e2 in range(2): k(f"ds_read_b64 {vr(OP+4*ks+2*e2,2)}, v{vRd} offset:{rd_off(8*ks+e2)}")
        k("s_waitcnt lgkmcnt(2)")
        for o in range(4): k(f"{MF} {vr(D+4*o,4)}, {vr(OP,4)}, {vr(g1(0,o),4)}, 0")
        k("s_waitcnt lgkmcnt(0)")
        for o in range(4): k(f"{MF} {vr(D+4*o,4)}, {vr(OP+4,4)}, {vr(g1(1,o),4)}, {vr(D+4*o,4)}")
        for w in range(2):
            tw_block(k, D + 8 * w, TWC, TWS, False, T, OP + 4 * w)
            k(f"{MF} {vr(D+8*w,4)}, {vr(FR,4)}, {vr(OP+4*w,4)}, 0")
            k(f"{MF} {vr(D+8*w+4,4)}, {vr(FI,4)}, {vr(OP+4*w,4)}, 0")
        for w in range(2):
            tw_block(k, D + 8 * w, Wf + 8 * w, Wf + 8 * w + 4, (w == 0) or not conj2, T, OP + 4 * w)
            k(f"{MF} {vr(D+8*w,4)}, {vr(OP+4*w,4)}, {vr(CR,4)}, 0")
            k(f"{MF} {vr(D+8*w+4,4)}, {vr(OP+4*w,4)}, {vr(CI,4)}, 0")
        E = Wf
        for w in range(2):
            tw_block(k, D + 8 * w, TWC, TWS, True, T, OP + 4 * w)
            for x in range(2):
                for ri in range(2):
                    d = E + 8 * x + 4 * ri
                    k(f"{MF} {vr(d,4)}, {vr(H+8*(x^w)+4*ri,4)}, {vr(OP+4*w,4)}, {vr(d,4) if w else 0}")
        for v in range(4):
            k(f"v_cvt_pk_f16_f32 v{WP+2*v}, v{E+v}, v{E+4+v}\nv_cvt_pk_f16_f32 v{WP+2*v+1}, v{E+8+v}, v{E+12+v}")
    if pw1at == "b": pf_uni(k, pW1, pw1[0], pw1[1], 2, sW, vL, vSp, T + 4)
    bcore(lambda n: n * 1024, True)
    for v in range(4): k(f"ds_write_b64 v{vWr}, {vr(WP+2*v,2)} offset:{BOUT+v*1024}")
    k("s_waitcnt lgkmcnt(0)\ns_barrier")
    k(f"ds_read_b128 {vr(D,4)}, v{vOr} offset:{BOUT}\nds_read_b128 {vr(D+4,4)}, v{vOr} offset:{BOUT+8192}")
    k(f"s_lshl_b32 s{sO}, s{sSlot}, 6\ns_add_u32 s{sT}, s{sO}, {128*ZB_PITCH}")
    k("s_waitcnt lgkmcnt(1)")
    k(f"buffer_store_dwordx4 {vr(D,4)}, v{vOs}, {sr(dO,4)}, s{sO} offen sc1")
    k("s_waitcnt lgkmcnt(0)")
    k(f"buffer_store_dwordx4 {vr(D+4,4)}, v{vOs}, {sr(dO,4)}, s{sT} offen sc1")
    k.stamp()
    for x in range(7):
        k(f"v_add_u32 v{T}, {64*x}, v{vL}\nv_mul_u32_u24 v{T+1}, 2341, v{T}\nv_lshrrev_b32 v{T+1}, 16, v{T+1}")
        k(f"v_mul_u32_u24 v{T+2}, 28, v{T+1}\nv_sub_u32 v{T}, v{T}, v{T+2}")
        k(f"v_lshrrev_b32 v{T+2}, 2, v{T+1}\nv_and_b32 v{T+2}, 2, v{T+2}\nv_xor_b32 v{T}, v{T}, v{T+2}")
        k(f"v_mul_u32_u24 v{T+1}, 7168, v{T+1}\nv_lshl_add_u32 v{vWo+x}, v{T}, 4, v{T+1}")
    k("s_waitcnt vmcnt(0)\ns_barrier")
    arrive(1)
    k.stamp()
    if pw1at == "w2": pf_uni(k, pW1, pw1[0], pw1[1], 2, sW, vL, WM, T + 4)
    k(f"s_cmp_lg_u32 s{sW}, 1\ns_cbranch_scc1 B_nolight")
    k(f"v_lshlrev_b32 v{vRd}, 9, v{vG}\nv_lshl_add_u32 v{vRd}, v{vI}, 3, v{vRd}\nv_add_u32 v{vRd}, {BLC}, v{vRd}")
    for w in range(2):
        for v in range(4): k(f"ds_read_b32 v{OP+4*w+v}, v{vRd} offset:{128*v+4*w}")
    unpl(Wf, WL2); wscale()
    k("s_waitcnt lgkmcnt(0)")
    for w in range(2): k(f"{MF} {vr(D+8*w,4)}, {vr(OP+4*w,4)}, {vr(FR,4)}, 0\n{MF} {vr(D+8*w+4,4)}, {vr(OP+4*w,4)}, {vr(FI,4)}, 0")
    for w in range(2):
        tw_block(k, D + 8 * w, TWC, TWS, False, T, OP + 4 * w)
        k(f"{MF} {vr(D+8*w,4)}, {vr(FR,4)}, {vr(OP+4*w,4)}, 0\n{MF} {vr(D+8*w+4,4)}, {vr(FI,4)}, {vr(OP+4*w,4)}, 0")
    for w in range(2):
        tw_block(k, D + 8 * w, Wf + 8 * w, Wf + 8 * w + 4, True, T, OP + 4 * w)
        k(f"{MF} {vr(D+8*w,4)}, {vr(OP+4*w,4)}, {vr(CR,4)}, 0\n{MF} {vr(D+8*w+4,4)}, {vr(OP+4*w,4)}, {vr(CI,4)}, 0")
    for w in range(2):
        tw_block(k, D + 8 * w, TWC, TWS, True, T, OP + 4 * w)
        k(f"{MF} {vr(D+8*w,4)}, {vr(CR,4)}, {vr(OP+4*w,4)}, 0\n{MF} {vr(D+8*w+4,4)}, {vr(CI,4)}, {vr(OP+4*w,4)}, 0")
    for v in range(4): k(f"v_cvt_pk_f16_f32 v{WP+2*v}, v{D+v}, v{D+4+v}\nv_cvt_pk_f16_f32 v{WP+2*v+1}, v{D+8+v}, v{D+12+v}")
    k(f"v_lshl_add_u32 v{T}, v{vG}, 6, v{vI}\nv_mov_b32 v{T+2}, {C_SPEC}\nv_mov_b32 v{T+3}, {C_SPEC+64}")
    for v in range(4):
        k(f"v_add_u32 v{T+1}, {16*v}, v{T}\nv_cmp_eq_u32 vcc, s{sS0}, v{T+1}\nv_cndmask_b32 v{T+4+v}, v{T+3}, v{T+2}, vcc")
        k(f"ds_write_b64 v{T+4+v}, {vr(WP+2*v,2)}")
    k("B_nolight:")
    k.release(mB)
    AD = ADc; XP = XPc
    sO = k.s(); sL = k.s(); sQ = k.s()
    vXo = k.v()
    k(f"v_lshlrev_b32 v{vXo}, 6, v{vI}\nv_lshl_add_u32 v{vXo}, v{vG}, 4, v{vXo}")
    k(f"s_mul_i32 s{sO}, s{sS0}, {ZB_PITCH}\ns_lshl_b32 s{sL}, s{sJ}, 11\ns_add_u32 s{sO}, s{sO}, s{sL}")
    k(f"s_add_u32 s{sQ}, s{sL}, {WS_TCC}\ns_lshl_b32 s{sT}, s{sS0}, 11\ns_add_u32 s{sT}, s{sT}, {WS_TCS}\ns_cmp_eq_u32 s{sJ}, 7\ns_cselect_b32 s{sQ}, s{sT}, s{sQ}")
    dZ = k.srd(pWS, ZB_BYTES, WS_ZB)
    k(f"s_add_u32 m0, s{sL}, {TAB}\ns_mul_i32 s{sT}, s{sJ}, 3072\ns_add_u32 s{sT}, s{sT}, {WS_TCW}")
    for q in range(3): k(f"buffer_load_dwordx4 {vr(AD+4*q,4)}, v{vOff}, {sr(dW,4)}, s{sT} offen offset:{1024*q}")
    k(f"buffer_load_dwordx4 v{vOff}, {sr(dW,4)}, s{sQ} offen lds")
    k(f"buffer_load_dwordx4 v{vOff}, {sr(dW,4)}, s{sQ} offen offset:1024 lds")
    vR1 = AD; vW1 = AD + 8; vR2 = AD + 10
    dX = k.srd(pX, 2048 * 2048)
    k(f"buffer_load_dwordx4 {vr(XP,4)}, v{vXo}, {sr(dX,4)}, s{sRow} offen")
    k(f"buffer_load_dwordx4 {vr(XP+4,4)}, v{vXo}, {sr(dX,4)}, s{sRow} offen offset:1024")
    dX1 = k.srd(pWS, 4 << 20, WS_X1); dY2 = k.srd(pWS, 4 << 20, WS_Y2)
    sR = k.s(); sY = k.s(); vYo = k.v()
    k(f"s_lshl_b32 s{sR}, s{sS0}, 3\ns_add_u32 s{sR}, s{sR}, s{sJ}")
    k(f"s_lshl_b32 s{sY}, s{sMt}, 18\ns_and_b32 s{sT}, s{sR}, 127\ns_lshl_b32 s{sT}, s{sT}, 7\ns_add_u32 s{sY}, s{sY}, s{sT}")
    k(f"s_bfe_u32 s{sT}, s{sR}, 0x30001\nv_and_b32 v{T}, 1, v{vI}\nv_lshl_add_u32 v{T}, v{T}, 2, v{vG}\nv_xor_b32 v{T}, s{sT}, v{T}\nv_lshlrev_b32 v{T}, 4, v{T}")
    k(f"v_lshrrev_b32 v{T+1}, 1, v{vI}\nv_lshl_add_u32 v{vYo}, v{T+1}, 14, v{T}")
    k(f"s_lshl_b32 s{sR}, s{sR}, 11")
    k(f"s_and_b32 s{sQ}, s{sW}, 3\ns_mul_i32 s{sWo}, s{sNt}, 448\ns_mul_i32 s{sT}, s{sQ}, {16*7168}\ns_add_u32 s{sWo}, s{sWo}, s{sT}\ns_mul_i32 s{sMw}, s{sQ}, 7168\ns_add_u32 s{sMw}, s{sMw}, {WR0}")
    sPw = k.s(); sPm = k.s()
    k(f"s_lshr_b32 s{sT}, s{sW}, 2\ns_mul_i32 s{sPw}, s{sT}, {64*7168}\ns_add_u32 s{sPw}, s{sPw}, {64*7168*PI[0]}\ns_add_u32 s{sPw}, s{sPw}, s{sWo}\ns_mul_i32 s{sPm}, s{sT}, {WSL}\ns_add_u32 s{sPm}, s{sPm}, s{sMw}")
    wpre = [f"s_add_u32 m0, s{sPm}, {1024*x}\ns_nop 0\nbuffer_load_dwordx4 v{vWo+x}, {sr(dW1,4)}, s{sPw} offen lds" for x in range(7)]
    k("s_waitcnt lgkmcnt(0)")
    await_(1)
    k.stamp()
    k(f"s_mov_b32 m0, s{sL}")
    k(f"buffer_load_dwordx4 v{vOff}, {sr(dZ,4)}, s{sO} offen sc1 lds\nbuffer_load_dwordx4 v{vOff}, {sr(dZ,4)}, s{sO} offen offset:1024 sc1 lds")
    k(f"s_min_u32 s{sT}, s{sL}, {5*2048}\ns_add_u32 m0, s{sT}, {MOD}\ns_add_u32 s{sT}, s{sT}, {WS_MODC}")
    k(f"buffer_load_dwordx4 v{vOff}, {sr(dW,4)}, s{sT} offen sc1 lds\nbuffer_load_dwordx4 v{vOff}, {sr(dW,4)}, s{sT} offen offset:1024 sc1 lds")
    k("s_waitcnt vmcnt(2)\ns_barrier")
    k.stamp()
    OP = k.v(8); D = k.v(16); F1 = k.v(8); TW = k.v(16); F3 = k.v(32); X = k.v(16); E = k.v(16)
    k(f"ds_read_b128 {vr(F1,4)}, v{vOff} offset:{TAB+14336}\nds_read_b128 {vr(F1+4,4)}, v{vOff} offset:{TAB+15360}")
    for x in range(8): k(f"ds_read_b32 v{OP+x}, v{vR1+x}")
    for q in range(2):
        k(f"s_waitcnt lgkmcnt({4-4*q})")
        k(f"{MF} {vr(D+8*q,4)}, {vr(OP+4*q,4)}, {vr(F1,4)}, 0")
        k(f"{MF} {vr(D+8*q+4,4)}, {vr(OP+4*q,4)}, {vr(F1+4,4)}, 0")
    for q in range(4): k(f"ds_read_b128 {vr(TW+4*q,4)}, v{vOff} offset:{TAB+2048+1024*q}")
    for q in range(2):
        for v in range(4): k(f"v_cvt_pk_f16_f32 v{OP+4*q+v}, v{D+8*q+v}, v{D+8*q+4+v}")
        k(f"ds_write_b128 v{vW1+q}, {vr(OP+4*q,4)}")
    F2 = F1
    k(f"ds_read_b128 {vr(F2,4)}, v{vOff} offset:{TAB}\nds_read_b128 {vr(F2+4,4)}, v{vOff} offset:{TAB+1024}")
    k("s_waitcnt vmcnt(0) lgkmcnt(0)\ns_barrier")
    for rt in range(2):
        k(f"ds_read2st64_b32 {vr(OP+4*rt,2)}, v{vR2+rt} offset0:0 offset1:2")
        k(f"ds_read2st64_b32 {vr(OP+4*rt+2,2)}, v{vR2+rt} offset0:4 offset1:6")
    for q in (0, 1, 4, 5, 2, 3, 6, 7): k(f"ds_read_b128 {vr(F3+4*q,4)}, v{vOff} offset:{TAB+6144+1024*q}")
    pf_uni(k, pW1, w1c[0], w1c[1], 2, sW, vL, AD + 1, T + 4)
    pf_uni(k, pW2, w2c[0], w2c[1], 2, sW, vL, AD, T + 4)
    k(wpre.pop(0)); k(wpre.pop(0))
    def f3(ct, rt, ri): return F3 + ((ct * 2 + rt) * 2 + ri) * 4
    for rt in range(2):
        k(f"s_waitcnt lgkmcnt({10-2*rt})")
        k(f"{MF} {vr(D+8*rt,4)}, {vr(OP+4*rt,4)}, {vr(F2,4)}, 0")
        k(f"{MF} {vr(D+8*rt+4,4)}, {vr(OP+4*rt,4)}, {vr(F2+4,4)}, 0")
    for ct in range(2):
        for v in range(4): k(f"v_lshlrev_b32 v{X+8*ct+v}, 16, v{XP+4*ct+v}\nv_and_b32 v{X+8*ct+4+v}, s{sMask}, v{XP+4*ct+v}")
    GA = k.v(16); RC = k.v(2); sP = k.s(2); sSum = k.s(2)
    def mread(dst, vec):
        for q in range(4): k(f"ds_read_b128 {vr(dst+4*q,4)}, v{vOff} offset:{MOD + 4096*vec + 1024*q}")
    mread(GA, 0)
    k(f"v_ldexp_f32 v{RC}, 1.0, s{sE}")
    for rt in range(2):
        tw_block(k, D + 8 * rt, TW + 4 * rt, TW + 8 + 4 * rt, True, T, OP + 4 * rt)
        k(f"s_waitcnt lgkmcnt({8-4*rt})")
        for ct in range(2):
            for ri in range(2):
                d = E + 8 * ct + 4 * ri
                k(f"{MF} {vr(d,4)}, {vr(OP+4*rt,4)}, {vr(f3(ct,rt,ri),4)}, {vr(d,4) if rt else 0}")
    k.stamp()
    SB = TW; CB = D
    k("s_waitcnt lgkmcnt(0)")
    mread(CB, 2); mread(SB, 1)
    k(wpre.pop(0))
    for i in range(8): k(f"v_pk_mul_f32 {P2(GA+2*i)}, {P2(GA+2*i)}, {P2(RC)} op_sel_hi:[1,0]")
    for i in range(8): k(f"v_pk_fma_f32 {P2(X+2*i)}, {P2(E+2*i)}, {P2(GA+2*i)}, {P2(X+2*i)}")
    def pack(dst):
        for ct in range(2):
            for v in range(4): k(f"v_cvt_pk_bf16_f32 v{dst+4*ct+v}, v{X+8*ct+v}, v{X+8*ct+4+v}")
    pack(XP)
    k(f"buffer_store_dwordx4 {vr(XP,4)}, v{vXo}, {sr(dX1,4)}, s{sR} offen sc1")
    k(f"buffer_store_dwordx4 {vr(XP+4,4)}, v{vXo}, {sr(dX1,4)}, s{sR} offen offset:1024 sc1")
    ln_pk(k, X, T, RC, sP, sSum, [wpre.pop(0), wpre.pop(0)])
    k("s_waitcnt lgkmcnt(0)")
    for i in range(8): k(f"v_pk_fma_f32 {P2(X+2*i)}, {P2(X+2*i)}, {P2(CB+2*i)}, {P2(SB+2*i)}")
    ln_pk(k, X, T, RC, sP, sSum, [wpre.pop(0), wpre.pop(0)])
    pack(OP)
    k(f"s_add_u32 s{sT}, s{sY}, {8*16384}")
    k(f"buffer_store_dwordx4 {vr(OP,4)}, v{vYo}, {sr(dY2,4)}, s{sY} offen sc1")
    k(f"buffer_store_dwordx4 {vr(OP+4,4)}, v{vYo}, {sr(dY2,4)}, s{sT} offen sc1")
    k.stamp()
    k.release(mC)
    NS = 16; NB = 3
    k("s_waitcnt vmcnt(0)\ns_barrier")
    k(f"s_cmp_ge_u32 s{sW}, 4\ns_cbranch_scc1 CG_loader")
    m0 = k.mark()
    k.stamp()
    assert PI[1] == PI[0] + 1
    k(f"s_add_u32 s{sT}, s{sWo}, {PI[2]*64*7168}")
    for x in range(7): k(f"s_add_u32 m0, s{sMw}, {2*WSL+1024*x}\nbuffer_load_dwordx4 v{vWo+x}, {sr(dW1,4)}, s{sT} offen lds")
    m1 = k.mark()
    vBo = k.v(); sB0 = k.s(); sB6 = k.s()
    k(f"v_lshlrev_b32 v{vBo}, 3, v{vG}")
    k(f"s_mul_i32 s{sB0}, s{sNt}, 448\ns_lshl_b32 s{sT}, s{sWn}, 5\ns_add_u32 s{sB6}, s{sB0}, s{sT}\ns_mul_i32 s{sT}, s{sWn}, 192\ns_add_u32 s{sB0}, s{sB0}, s{sT}")
    dB = k.srd(pB1, 3584 * 2)
    ACC = k.v(112); FR = [k.v(44), k.v(44)]
    BP = FR[1]
    for t in range(7):
        if t < 6: k(f"buffer_load_dwordx2 {vr(BP+2*t,2)}, v{vBo}, {sr(dB,4)}, s{sB0} offen offset:{32*t}")
        else: k(f"buffer_load_dwordx2 {vr(BP+2*t,2)}, v{vBo}, {sr(dB,4)}, s{sB6} offen offset:{32*12}")
    def acc(t, mt): return ACC + (mt * 7 + t) * 4
    vPf = vWo; vDum = vWo + 1; sPf = k.s()
    dP = k.srd(pW2, WBYTES)
    nl = w2l[1] // (4 * len(pfs))
    k(f"v_lshlrev_b32 v{vPf}, 7, v{vL}\nv_cmp_gt_u32 vcc, {nl}, v{vL}\nv_mov_b32 v{T}, {OOB}\nv_cndmask_b32 v{vPf}, v{T}, v{vPf}, vcc")
    k(f"s_lshl_b32 s{sPf}, s2, 2\ns_add_u32 s{sPf}, s{sPf}, s{sW}\ns_mul_i32 s{sPf}, s{sPf}, {nl*128}\ns_add_u32 s{sPf}, s{sPf}, {w2l[0]*128}")
    pfi = f"buffer_load_dword v{vDum}, v{vPf}, {sr(dP,4)}, s{sPf} offen\ns_add_u32 s{sPf}, s{sPf}, {1024*nl*128}"
    vY = k.v(2); vWa = k.v(3 * NB)
    k(f"v_lshrrev_b32 v{T}, 1, v{vI}\nv_xor_b32 v{T}, v{T}, v{vG}\nv_lshlrev_b32 v{T}, 4, v{T}\nv_lshl_add_u32 v{T}, v{vI}, 7, v{T}")
    k(f"s_lshl_b32 s{sT}, s{sWm}, 13\nv_add_u32 v{vY}, s{sT}, v{T}\nv_xor_b32 v{vY+1}, 64, v{vY}")
    k(f"v_lshrrev_b32 v{T}, 2, v{vI}\nv_lshl_add_u32 v{T}, v{vG}, 3, v{T}\nv_mul_u32_u24 v{T}, 448, v{T}")
    k(f"v_and_b32 v{T+1}, 3, v{vI}\nv_lshl_add_u32 v{T}, v{T+1}, 3, v{T}")
    k(f"v_and_b32 v{T+1}, 1, v{vG}\nv_lshlrev_b32 v{T+1}, 5, v{T+1}")
    k(f"s_mul_i32 s{sT}, s{sWn}, 192\nv_add_u32 v{T+2}, s{sT}, v{T}")
    for b in range(NB):
        k(f"v_add_u32 v{T+3}, {WR0+b*WSL}, v{T+2}\nv_add_u32 v{vWa+3*b}, v{T+3}, v{T+1}\nv_sub_u32 v{vWa+3*b+1}, v{T+3}, v{T+1}")
    k(f"s_lshl_b32 s{sT}, s{sWn}, 5\nv_xor_b32 v{T+1}, s{sT}, v{T+1}\nv_add_u32 v{T+2}, v{T}, v{T+1}")
    for b in range(NB): k(f"v_add_u32 v{vWa+3*b+2}, {WR0+b*WSL+12*32}, v{T+2}")
    k("s_waitcnt vmcnt(0)")
    for t in range(7): unpack_bf16(k, acc(t, 3), BP + 2 * t, 2, sMask)
    k(f"s_cmp_lg_u32 s{sW}, 0\ns_cbranch_scc1 CG_np1")
    k(f"s_lshl_b32 s{sB0}, s{sMt}, 11\ns_add_u32 s{sB0}, s{sB0}, {FLC}\nv_lshlrev_b32 v{T+2}, 7, v{vI}")
    poll(k, "CG_p1", dF, sB0, T + 2, T + 3, 16)
    k("CG_np1:\ns_barrier")
    def reads(s, ks, F):
        b = s % NB
        yy = [f"ds_read_b128 {vr(F+28+4*mt,4)}, v{vY+ks} offset:{b*YSL+2048*mt}" for mt in range(4)]
        ww = []
        for t in range(7):
            a = vWa + 3 * b + (2 if t == 6 else (t & 1))
            off = (0 if t == 6 else 32 * t) + ks * 32 * 448
            ww.append(f"ds_read_b64_tr_b16 {vr(F+4*t,2)}, v{a} offset:{off}")
            ww.append(f"ds_read_b64_tr_b16 {vr(F+4*t+2,2)}, v{a} offset:{off+4*448}")
        return yy[:1] + ww + yy[1:]
    def mfmas(F, first):
        return [f"{MB} {vr(acc(t,mt),4)}, {vr(F+4*t,4)}, {vr(F+28+4*mt,4)}, {vr(acc(t,3),4) if first else vr(acc(t,mt),4)}" for mt in range(4) for t in range(7)]
    k.stamp()
    k("s_barrier")
    if CLK: k._st = k._st[:1]
    k.stamp()
    if CLK: k.stampc()
    for l in reads(0, 0, FR[0]): k(l)
    for s in range(NS):
        k("s_waitcnt lgkmcnt(0)")
        fl = reads(s, 1, FR[1])
        if pfd and s in pfs: fl = fl + [pfi]
        interleave(k, mfmas(FR[0], s == 0), fl)
        k("s_waitcnt lgkmcnt(0)\ns_barrier")
        if s + 1 < NS: interleave(k, mfmas(FR[1], False), reads(s + 1, 0, FR[0]))
        else:
            for l in mfmas(FR[1], False): k(l)
    k.stamp()
    if CLK: k.stampc()
    k("CG_epi1:")
    c1 = -2.0 * LOG2E * math.sqrt(2 / math.pi); c2 = c1 * 0.044715
    CC = FR[0]; E = FR[0] + 8; vHw = vWa; sU2 = sB0
    k(f"v_mov_b32 v{CC}, {fbits(c1)}\nv_mov_b32 v{CC+1}, {fbits(c1)}\nv_mov_b32 v{CC+2}, {fbits(c2)}\nv_mov_b32 v{CC+3}, {fbits(c2)}\nv_mov_b32 v{CC+4}, 1.0\nv_mov_b32 v{CC+5}, 1.0")
    for pr in range(3):
        k(f"s_mul_i32 s{sT}, s{sWn}, 3\ns_add_u32 s{sT}, s{sT}, {pr}\ns_lshr_b32 s{sU2}, s{sT}, 1\ns_lshl_b32 s{sU2}, s{sU2}, 15\ns_and_b32 s{sT}, s{sT}, 1\ns_lshl_b32 s{sT}, s{sT}, 13\ns_add_u32 s{sU2}, s{sU2}, s{sT}")
        k(f"s_lshl_b32 s{sT}, s{sWm}, 12\ns_add_u32 s{sU2}, s{sU2}, s{sT}\nv_add_u32 v{vHw+pr}, s{sU2}, v{vOff}")
    k(f"s_lshl_b32 s{sT}, s{sWm}, 12\ns_lshl_b32 s{sU2}, s{sWn}, 3\ns_add_u32 s{sT}, s{sT}, s{sU2}\ns_add_u32 s{sT}, s{sT}, {3*32768}\nv_add_u32 v{vHw+3}, s{sT}, v{vOff}")
    def gelu_pk(src, e):
        n = len(src) // 2
        P2 = lambda r: vr(r, 2)
        for x in range(n): k(f"v_pk_mul_f32 {P2(e+2*x)}, {P2(src[2*x])}, {P2(src[2*x])}")
        for x in range(n): k(f"v_pk_fma_f32 {P2(e+2*x)}, {P2(e+2*x)}, {P2(CC+2)}, {P2(CC)}")
        for x in range(n): k(f"v_pk_mul_f32 {P2(e+2*x)}, {P2(e+2*x)}, {P2(src[2*x])}")
        for x in range(2 * n): k(f"v_exp_f32 v{e+x}, v{e+x}")
        for x in range(n): k(f"v_pk_add_f32 {P2(e+2*x)}, {P2(e+2*x)}, {P2(CC+4)}")
        for x in range(2 * n): k(f"v_rcp_f32 v{e+x}, v{e+x}")
        for x in range(n): k(f"v_pk_mul_f32 {P2(e+2*x)}, {P2(e+2*x)}, {P2(src[2*x])}")
        for x in range(n): k(f"v_cvt_pk_bf16_f32 v{e+x}, v{e+2*x}, v{e+2*x+1}")
    for pr in range(3):
        for hh in range(2):
            e = E + 16 * hh
            gelu_pk([acc(2 * pr, mt) + x for mt in (2 * hh, 2 * hh + 1) for x in range(8)], e)
            for u in range(2): k(f"ds_write_b128 v{vHw+pr}, {vr(e+4*u,4)} offset:{1024*(2*hh+u)}")
        if pr < 2:
            if GSTAMP: k.stampc()
            k("s_waitcnt lgkmcnt(0)\ns_barrier")
            if GSTAMP: k.stampc()
    gelu_pk([acc(6, mt) + x for mt in range(4) for x in range(4)], E)
    for mt in range(4): k(f"ds_write_b64 v{vHw+3}, {vr(E+2*mt,2)} offset:{1024*mt}")
    k.stamp()
    k.release(m1)
    NS2 = 28; NB2 = 5; BUF = 32768; NH = 3
    sKh = k.s(); sN2 = k.s()
    k(f"s_lshr_b32 s{sKh}, s{sNt}, 3\ns_and_b32 s{sN2}, s{sNt}, 7")
    ACC = k.v(64); vH = k.v(2 * NH); vWa = k.v(4 * NH)
    vXo = k.v(); vOo = k.v(); vNo = k.v(); v4k = k.v()
    def acc(t, ms): return ACC + (ms * 4 + t) * 4
    for sp in range(2):
        k(f"s_xor_b32 s{sT}, s{sKh}, {sp}\ns_lshl_b32 s{sT}, s{sT}, 11\ns_lshl_b32 s{sN2}, s{sWm}, 12\ns_add_u32 s{sT}, s{sT}, s{sN2}\nv_add_u32 v{vH+sp}, s{sT}, v{vOff}")
    k(f"v_lshrrev_b32 v{T}, 2, v{vL}\nv_and_b32 v{T+1}, 7, v{T}\nv_lshlrev_b32 v{T}, 8, v{T}")
    k(f"v_and_b32 v{T+2}, 3, v{vI}\nv_lshl_add_u32 v{T}, v{T+2}, 3, v{T}\nv_add_u32 v{T}, 16384, v{T}")
    k(f"s_lshl_b32 s{sT}, s{sWn}, 2\nv_xor_b32 v{T+1}, s{sT}, v{T+1}")
    for t in range(4): k(f"v_xor_b32 v{T+2}, {t}, v{T+1}\nv_lshl_add_u32 v{vWa+t}, v{T+2}, 5, v{T}")
    FR = [k.v(32), k.v(32)]
    XP = k.v(16); GP = k.v(8); BP = k.v(8)
    sX = k.s(); sN = k.s(); sOo = k.s(); sR = k.s()
    sX2 = k.s(); sPs = k.s(); sPr = k.s(); sFs = k.s(); sFr = k.s()
    n0 = len(k.lines)
    for hh in range(1, NH):
        for sp in range(2): k(f"v_add_u32 v{vH+2*hh+sp}, {65536*hh}, v{vH+sp}")
        for t in range(4): k(f"v_add_u32 v{vWa+4*hh+t}, {65536*hh}, v{vWa+t}")
    k(f"v_and_b32 v{T}, 1, v{vG}\nv_lshlrev_b32 v{T}, 5, v{T}\nv_lshrrev_b32 v{T+1}, 1, v{vG}\nv_lshl_add_u32 v{vNo}, v{T+1}, 4, v{T}")
    k(f"v_lshl_add_u32 v{vXo}, v{vI}, 11, v{vNo}")
    k(f"v_and_b32 v{T}, 7, v{vI}\nv_lshlrev_b32 v{T}, 19, v{T}\nv_lshrrev_b32 v{T+1}, 3, v{vI}\nv_lshl_add_u32 v{T}, v{T+1}, 11, v{T}\nv_add_u32 v{vOo}, v{T}, v{vNo}")
    k(f"v_add_u32 v{v4k}, 4096, v{vOff}")
    dB = k.srd(pB2, 2048); dM = k.srd(pWS, 2048, WS_GB); dX1 = k.srd(pWS, 4 << 20, WS_X1); dO = k.srd(pO, 4 << 20)
    dPa = k.srd(pWS, 256 * 32768, WS_PART)
    k(f"s_and_b32 s{sN2}, s{sNt}, 7\ns_lshl_b32 s{sN}, s{sN2}, 8\ns_lshl_b32 s{sT}, s{sWn}, 7\ns_add_u32 s{sN}, s{sN}, s{sT}")
    k(f"s_lshl_b32 s{sR}, s{sMt}, 2\ns_lshl_b32 s{sT}, s{sWm}, 1\ns_add_u32 s{sR}, s{sR}, s{sT}\ns_add_u32 s{sR}, s{sR}, s{sKh}")
    k(f"s_lshl_b32 s{sX}, s{sR}, 16\ns_add_u32 s{sX}, s{sX}, s{sN}\ns_lshl_b32 s{sOo}, s{sR}, 13\ns_add_u32 s{sOo}, s{sOo}, s{sN}")
    k(f"s_add_u32 s{sX2}, s{sX}, 32768")
    k(f"s_lshl_b32 s{sFs}, s2, 2\ns_add_u32 s{sFs}, s{sFs}, s{sW}\ns_xor_b32 s{sFr}, s{sFs}, 16")
    k(f"s_lshl_b32 s{sPs}, s{sFs}, 13\ns_lshl_b32 s{sPr}, s{sFr}, 13\ns_lshl_b32 s{sFs}, s2, 7\ns_xor_b32 s{sFr}, s{sFs}, 512")
    lazy = k.lines[n0:]; del k.lines[n0:]
    epi = [f"buffer_load_dwordx4 {vr(XP+8*ms+4*P,4)}, v{vXo}, {sr(dX1,4)}, s{sX2 if ms else sX} offen offset:{64*P} sc1" for ms in range(2) for P in range(2)]
    epi += [f"buffer_load_dwordx4 {vr(GP+4*P,4)}, v{vNo}, {sr(dM,4)}, s{sN} offen offset:{64*P} sc1" for P in range(2)]
    epi += [f"buffer_load_dwordx4 {vr(BP+4*P,4)}, v{vNo}, {sr(dB,4)}, s{sN} offen offset:{64*P}" for P in range(2)]
    def reads2(s, ks, F):
        b = s % NB2; hh = b >> 1; o = (b & 1) * BUF
        hr = [f"ds_read_b128 {vr(F+16+4*ms,4)}, v{vH+2*hh+(ms>>1)} offset:{o + 8192*ks + 1024*(ms&1)}" for ms in range(4)]
        ww = [f"ds_read_b64_tr_b16 {vr(F+4*t+2*hf,2)}, v{vWa+4*hh+t} offset:{o + 8192*ks + 4096*hf}" for t in range(4) for hf in range(2)]
        return hr[:1] + ww + hr[1:]
    def mfmas2(F, first):
        return [f"{MB} {vr(acc(t,ms),4)}, {vr(F+4*t,4)}, {vr(F+16+4*ms,4)}, {'0' if first else vr(acc(t,ms),4)}" for ms in range(4) for t in range(4)]
    k("s_waitcnt lgkmcnt(0)\ns_barrier")
    k.stamp()
    if CLK: k.stampc()
    for l in reads2(0, 0, FR[0]): k(l)
    for s in range(NS2):
        k("s_waitcnt lgkmcnt(0)")
        fl = reads2(s, 1, FR[1])
        if lazy: fl = fl + ["\n".join(lazy[0:2]), "\n".join(lazy[2:4]), "\n".join(lazy[4:6]), "\n".join(lazy[6:8])]; del lazy[:8]
        if s >= NS2 - 9 and epi: fl = fl + [epi.pop(0)]
        interleave(k, mfmas2(FR[0], s == 0), fl)
        k("s_waitcnt lgkmcnt(0)")
        if s + 1 < NS2:
            if s + 1 >= 2: k("s_barrier")
            if CLK and s + 1 == 6: k.stamp(); k.stampc()
            interleave(k, mfmas2(FR[1], False), reads2(s + 1, 0, FR[0]))
        else:
            mm = mfmas2(FR[1], False)
            for l in mm[8:] + mm[:8]: k(l)
    k.stamp()
    if CLK: k.stampc()
    k("CG_epi2:")
    for q in range(8):
        k(f"buffer_store_dwordx4 {vr(ACC+32+4*q,4)}, v{v4k if q >= 4 else vOff}, {sr(dPa,4)}, s{sPs} offen offset:{1024*(q&3)} sc1")
    k("s_waitcnt vmcnt(8)")
    for base in (XP, XP + 4, XP + 8, XP + 12, GP, GP + 4, BP, BP + 4):
        k(f"v_permlane16_swap_b32 v{base}, v{base+2}\nv_permlane16_swap_b32 v{base+1}, v{base+3}")
    GB = FR[0]; B2 = FR[0] + 16; X = FR[1]
    unpack_bf16(k, GB, GP, 8, sMask); unpack_bf16(k, B2, BP, 8, sMask); unpack_bf16(k, X, XP, 16, sMask)
    for ms in range(2):
        for e in range(16): k(f"v_add_f32 v{ACC+16*ms+e}, v{ACC+16*ms+e}, v{B2+e}")
    k("s_waitcnt vmcnt(0)\ns_barrier")
    k(f"s_cmp_lg_u32 s{sW}, 0\ns_cbranch_scc1 CG_w3")
    set_flag(k, dF, sFs, vL, T, T + 1)
    k(f"v_mov_b32 v{T+3}, 0")
    poll(k, "CG_p3", dF, sFr, T + 3, T + 2, 1)
    k("CG_w3:\ns_barrier")
    k.stamp()
    for q in range(8):
        k(f"buffer_load_dwordx4 {vr(ACC+32+4*q,4)}, v{v4k if q >= 4 else vOff}, {sr(dPa,4)}, s{sPr} offen offset:{1024*(q&3)} sc1")
    for ms in range(2):
        k(f"s_waitcnt vmcnt({4 if ms == 0 else 2})")
        for e in range(16): k(f"v_add_f32 v{ACC+16*ms+e}, v{ACC+16*ms+e}, v{ACC+32+16*ms+e}")
        for e in range(16): k(f"v_fma_f32 v{X+16*ms+e}, v{ACC+16*ms+e}, v{GB+e}, v{X+16*ms+e}")
        for e in range(8): k(f"v_cvt_pk_bf16_f32 v{XP+8*ms+e}, v{X+16*ms+2*e}, v{X+16*ms+2*e+1}")
        for P in range(2):
            b = XP + 8 * ms + 4 * P
            k(f"v_permlane16_swap_b32 v{b}, v{b+2}\nv_permlane16_swap_b32 v{b+1}, v{b+3}")
        if ms: k(f"s_add_u32 s{sOo}, s{sOo}, 4096")
        for P in range(2):
            k(f"buffer_store_dwordx4 {vr(XP+8*ms+4*P,4)}, v{vOo}, {sr(dO,4)}, s{sOo} offen offset:{64*P} {out_flags}")
    if k.prof: k("s_waitcnt vmcnt(0)")
    k.stamp_flush()
    k("s_endpgm")
    k.release(m0)
    k("CG_loader:")
    if k.prof: k._st = k._st[:1]; k._stidx = 4
    k.stamp()
    sLw = k.s(); sY = k.s(); sYq = k.s(); sMy = k.s(); sFo = k.s()
    k(f"s_sub_u32 s{sLw}, s{sW}, 4")
    k(f"s_cmp_lg_u32 s{sLw}, 0\ns_cbranch_scc1 CG_nf1")
    k(f"s_lshl_b32 s{sFo}, s{sMt}, 11\ns_lshl_b32 s{sT}, s{sNt}, 7\ns_add_u32 s{sT}, s{sT}, s{sFo}\ns_add_u32 s{sT}, s{sT}, {FLC}")
    set_flag(k, dF, sT, vL, T, T + 1)
    k("CG_nf1:")
    RW = k.v(112); CP = k.v(24)
    ops = []
    def vm(line, tag): k(line); ops.append(tag)
    def need(tags):
        last = max([i for i, t in enumerate(ops) if t in tags], default=-1)
        return min(63, len(ops) - 1 - last)
    for j, t in enumerate(R1):
        k(f"s_add_u32 s{sT}, s{sWo}, {64*7168*PI[t]}")
        for x in range(7): vm(f"buffer_load_dwordx4 {vr(RW+28*j+4*x,4)}, v{vWo+x}, {sr(dW1,4)}, s{sT} offen", ("rw", t))
    k(f"s_lshl_b32 s{sY}, s{sMt}, 18\ns_lshl_b32 s{sMy}, s{sLw}, 12\ns_add_u32 s{sY}, s{sY}, s{sMy}")
    dY = k.srd(pWS, 4 << 20, WS_Y2)
    vW2 = k.v(2); vLw = k.v(); vCp = k.v(2)
    sHb = k.s(); sWb = k.s(); sK0 = k.s(); sA = k.s(); sHo = k.s()
    dH = k.srd(pWS, 2048 * 3584 * 2, WS_H)
    k(f"v_add_u32 v{vLw}, s{sMw}, v{vOff}")
    k(f"s_lshl_b32 s{sT}, s{sLw}, 11\nv_add_u32 v{vCp}, s{sT}, v{vOff}\nv_add_u32 v{vCp+1}, 65536, v{vCp}")
    k(f"s_mul_i32 s{sHo}, s{sMt}, {112*8192}\ns_mul_i32 s{sT}, s{sNt}, {7*8192}\ns_add_u32 s{sHo}, s{sHo}, s{sT}")
    for par in range(2):
        k(f"v_add_u32 v{T}, {4*par}, v{vG}\nv_lshlrev_b32 v{T}, 1, v{T}\nv_xor_b32 v{T}, v{T}, v{vI}\nv_lshlrev_b32 v{T}, 4, v{T}\nv_lshl_add_u32 v{vW2+par}, v{vG}, 11, v{T}")
    k(f"s_lshr_b32 s{sA}, s{sNt}, 3\ns_mul_i32 s{sHb}, s{sMt}, {112*8192}\ns_mul_i32 s{sT}, s{sA}, {56*8192}\ns_add_u32 s{sHb}, s{sHb}, s{sT}\ns_lshl_b32 s{sT}, s{sWm}, 12\ns_add_u32 s{sHb}, s{sHb}, s{sT}")
    k(f"s_mul_i32 s{sWb}, s{sA}, {1792*2048}\ns_and_b32 s{sA}, s{sNt}, 7\ns_lshl_b32 s{sT}, s{sA}, 8\ns_add_u32 s{sWb}, s{sWb}, s{sT}\ns_lshl_b32 s{sT}, s{sWm}, 15\ns_add_u32 s{sWb}, s{sWb}, s{sT}")
    k(f"s_mul_i32 s{sK0}, s{sA}, 7\ns_add_u32 s{sK0}, s{sK0}, s{sWn}")
    dW2 = k.srd(pW2, WBYTES)
    k("s_barrier")
    k.stamp()
    def issue_y(s):
        k(f"s_add_u32 s{sYq}, s{sY}, {16384*PI[s]}\ns_add_u32 m0, s{sMy}, {(s%NB)*YSL}")
        for x in range(4): vm(f"buffer_load_dwordx4 v{vOff}, {sr(dY,4)}, s{sYq} offen offset:{1024*x} sc1 lds", ("s1", s))
    def issue_w(s):
        if s in R1:
            j = R1.index(s)
            k(f"s_waitcnt vmcnt({need([('rw', s)])})")
            for x in range(7): k(f"ds_write_b128 v{vLw}, {vr(RW+28*j+4*x,4)} offset:{(s%NB)*WSL + 1024*x}")
            return
        k(f"s_add_u32 s{sT}, s{sWo}, {64*7168*PI[s]}")
        for x in range(7):
            k(f"s_add_u32 m0, s{sMw}, {(s%NB)*WSL + 1024*x}")
            vm(f"buffer_load_dwordx4 v{vWo+x}, {sr(dW1,4)}, s{sT} offen lds", ("s1", s))
    sO7 = k.s()
    k(f"s_sub_u32 s{sO7}, s{sK0}, s{sWn}")
    pos = [None] * 7 + [7 * q + c for q in range(7) for c in (0, 3)] + [7 * q + c for q in range(7) for c in (1, 2, 4, 5, 6)]
    def kap(t, sh, base):
        j0, j1 = pos[2 * t], pos[2 * t + 1]
        if j1 is None: r = f"s_add_u32 s{sA}, s{sK0}, {2*t}\n"
        else:
            r = f"s_cmp_eq_u32 s{sWn}, 0\ns_cselect_b32 s{sA}, {j0 or 0}, {j1}\ns_cmp_ge_u32 s{sA}, s{sO7}\ns_cselect_b32 s{sYq}, 7, 0\ns_add_u32 s{sA}, s{sA}, s{sYq}\n"
            if j0 is None: r += f"s_add_u32 s{sYq}, s{sO7}, 6\ns_cmp_eq_u32 s{sWn}, 0\ns_cselect_b32 s{sA}, s{sYq}, s{sA}\n"
        return r + f"s_lshl_b32 s{sA}, s{sA}, {sh}\ns_add_u32 s{sA}, s{sA}, s{base}\n"
    def w2_items(t):
        b = t % NB2; r = []
        for x in range(4):
            pre = kap(t, 16, sWb) if x == 0 else f"s_add_u32 s{sA}, s{sA}, 8192\n"
            r.append(f"s_add_u32 m0, s{sMy}, {b*BUF + 16384 + 1024*x}\n" + pre + f"buffer_load_dwordx4 v{vW2+(x&1)}, {sr(dW2,4)}, s{sA} offen lds")
        return r
    for s in range(3): issue_y(s)
    for s in range(NS):
        k(f"s_waitcnt vmcnt({need([('s1', s)])}) lgkmcnt(0)")
        if s == 0: k.stamp()
        k("s_barrier")
        if s >= 1 and s + 2 < NS:
            if not noY: issue_y(s + 2)
            if not noW1: issue_w(s + 2)
        if s == 10: code_pf_w(k, "CG_epi1", "CODE_END", sW, 4, IDX_STD, vL, T + 2, T + 4, True)
    def issue_h(s):
        b = s % NB2
        if s == 3: k(f"s_cmp_eq_u32 s{sWn}, 0\ns_cbranch_scc1 CG_h3")
        k(f"s_add_u32 m0, s{sMy}, {b*BUF}\n" + kap(s, 13, sHb))
        for x in range(4): vm(f"buffer_load_dwordx4 v{vOff}, {sr(dH,4)}, s{sA} offen offset:{1024*x} sc1 lds", ("s2", s))
        if s == 3: k("CG_h3:")
    def copy_out(js):
        for n, j in enumerate(js):
            b = j >> 1
            for u in range(2): k(f"ds_read_b128 {vr(CP+8*n+4*u,4)}, v{vCp+(b>>1)} offset:{(b&1)*BUF + (j&1)*8192 + 1024*u}")
        for n, j in enumerate(js):
            k(f"s_add_u32 s{sT}, s{sHo}, {j*8192}\ns_waitcnt lgkmcnt({2*(len(js)-1-n)})")
            for u in range(2): k(f"buffer_store_dwordx4 {vr(CP+8*n+4*u,4)}, v{vCp}, {sr(dH,4)}, s{sT} offen offset:{1024*u} sc1")
    sFw = k.s()
    k(f"s_lshl_b32 s{sFo}, s{sMt}, 1\ns_lshr_b32 s{sT}, s{sNt}, 3\ns_add_u32 s{sFo}, s{sFo}, s{sT}\ns_lshl_b32 s{sFo}, s{sFo}, 12\ns_add_u32 s{sFo}, s{sFo}, {FLH}")
    k(f"s_and_b32 s{sT}, s{sNt}, 7\ns_lshl_b32 s{sT}, s{sT}, 2\ns_add_u32 s{sT}, s{sT}, s{sLw}\ns_lshl_b32 s{sT}, s{sT}, 7\ns_add_u32 s{sFw}, s{sFo}, s{sT}")
    k(f"v_and_b32 v{T+2}, 31, v{vL}\nv_lshlrev_b32 v{T+2}, 7, v{T+2}")
    k("s_barrier")
    for t in range(3):
        for l in w2_items(t): k(l)
    k("s_barrier")
    copy_out([0, 3])
    k("s_barrier")
    k("s_waitcnt vmcnt(0)")
    set_flag(k, dF, sFw, vL, T, T + 1)
    copy_out([1, 4])
    for t in range(3, 5):
        for l in w2_items(t): k(l)
    k.stamp()
    k("s_barrier")
    poll(k, "CG_p2", dF, sFo, T + 2, T + 3, 32)
    k.stamp()
    ops.clear()
    issue_h(3); issue_h(4)
    copy_out([2, 5, 6])
    k(f"s_add_u32 s{sFw}, s{sFw}, 131072\ns_add_u32 s{sFo}, s{sFo}, 131072")
    nxt = 5
    for s in range(2, NS2):
        if s == 2:
            k("s_barrier\ns_waitcnt vmcnt(0)")
            set_flag(k, dF, sFw, vL, T, T + 1); ops.append("flag")
            k.stamp()
        else: k(f"s_waitcnt vmcnt({need([('s2', s)])})\ns_barrier")
        while nxt <= s + 4 and nxt < NS2:
            if nxt == 9: vm(f"buffer_load_dword v{T+3}, v{T+2}, {sr(dF,4)}, s{sFo} offen sc1", "pb")
            if nxt == 10:
                k(f"s_waitcnt vmcnt({need(['pb'])})\nv_cmp_ne_u32 vcc, 1, v{T+3}\ns_cbranch_vccz CG_p2b_ok")
                poll(k, "CG_p2b", dF, sFo, T + 2, T + 3, 32)
                k.stamp()
            if not noH: issue_h(nxt)
            if not noW2:
                for l in w2_items(nxt): vm(l, ("s2", nxt))
            nxt += 1
        if s == 18: code_pf_w(k, "CG_epi2", "CG_loader", sW, 4, IDX_STD, vL, T + 4, T + 6, True)
    k.stamp_flush()
    k("CG_end:\ns_endpgm")
    return k
```

```python
import os, sys, io, contextlib
from asmlib import *
from final import header
import mega as M
def mk(n, **kw):
    ks = [M.gen_k0(), M.gen_mega(**kw)]
    for k in ks: k.lines = [l.replace(" nt", "") for l in k.lines]
    txt = assemble_file(ks, header())
    open(f"dev/{n}.s", "w").write(txt)
    for k in ks: print(k.name, "vgpr", k.maxv, "sgpr", k.maxs, "instr", len(k.lines), "nops", k.nops, "stamps", len(getattr(k, "_st", [])))
if __name__ == "__main__":
    mk("m1")
    Kern.prof = 1
    mk("m1p")
```

```python
from asmlib import *
from kern2 import *
from kern_gemm import tile_map, interleave, MB

def gelu_block(k, src, n, E, sC2, vC1):
    r = range(n)
    for x in r: k(f"v_mul_f32 v{E+x}, v{src[x]}, v{src[x]}")
    for x in r: k(f"v_fma_f32 v{E+x}, v{E+x}, s{sC2}, v{vC1}")
    for x in r: k(f"v_mul_f32 v{E+x}, v{E+x}, v{src[x]}")
    for x in r: k(f"v_exp_f32 v{E+x}, v{E+x}")
    for x in r: k(f"v_add_f32 v{E+x}, 1.0, v{E+x}")
    for x in r: k(f"v_rcp_f32 v{E+x}, v{E+x}")
    for x in r: k(f"v_mul_f32 v{E+x}, v{E+x}, v{src[x]}")

def gen_g1(mx=4, pfd=3, st_flags="", noload=False, nomfma=False, noread=False):
    NS = 16; BUF = 45056; NB = 3
    nx = 32 // mx
    k = Kern("g1_kernel", 256, 512, NB * BUF)
    pW = k.s(4); pWS = k.s(2)
    k(f"s_cmp_ge_u32 s2, 256\ns_cbranch_scc1 G1_end")
    k.stamp(True)
    k(f"s_load_dwordx4 {sr(pW,4)}, s[0:1], 32")
    k(f"s_load_dwordx2 {sr(pWS,2)}, s[0:1], 96")
    vL, vI, vG, sW, T = lane_ids(k)
    sT = k.s(); sMt = k.s(); sNt = k.s(); sWm = k.s(); sWn = k.s()
    tile_map(k, mx, sMt, sNt, sT)
    k(f"s_and_b32 s{sWm}, s{sW}, 1\ns_bfe_u32 s{sWn}, s{sW}, 0x10001")
    vHo = k.v(); sH = k.s(); sC1 = k.s(); sC2 = k.s(); vC1 = k.v(); vXa = k.v()
    k(f"v_lshlrev_b32 v{vHo}, 4, v{vL}")
    k(f"s_mul_i32 s{sH}, s{sMt}, {112*8192}\ns_mul_i32 s{sT}, s{sNt}, {7*8192}\ns_add_u32 s{sH}, s{sH}, s{sT}")
    k(f"s_lshl_b32 s{sT}, s{sWm}, 12\ns_add_u32 s{sH}, s{sH}, s{sT}")
    c1 = -2.0 * LOG2E * math.sqrt(2 / math.pi); c2 = c1 * 0.044715
    k(f"s_mov_b32 s{sC2}, {fbits(c2)}\nv_mov_b32 v{vC1}, {fbits(c1)}")
    k(f"s_and_b32 s{sT}, s{sW}, 3\ns_mul_i32 s{sT}, s{sT}, 14336\nv_add_u32 v{vXa}, s{sT}, v{vHo}")
    k(f"s_cmp_ge_u32 s{sW}, 4\ns_cbranch_scc1 G1_loader")
    m0 = k.mark()
    vBo = k.v()
    k(f"v_lshlrev_b32 v{vBo}, 3, v{vG}")
    sB0 = k.s(); sB6 = k.s()
    k(f"s_mul_i32 s{sB0}, s{sNt}, 448\ns_lshl_b32 s{sT}, s{sWn}, 5\ns_add_u32 s{sB6}, s{sB0}, s{sT}\ns_mul_i32 s{sT}, s{sWn}, 192\ns_add_u32 s{sB0}, s{sB0}, s{sT}")
    k("s_waitcnt lgkmcnt(0)")
    k.stamp_init2(4, pWS); k.stamp()
    dB = k.srd(pW + 2, 3584 * 2); dH = k.srd(pWS, 2048 * 3584 * 2, WS_H)
    ACC = k.v(112); FR = [k.v(44), k.v(44)]
    BP = FR[1]
    for t in range(7):
        if t < 6: k(f"buffer_load_dwordx2 {vr(BP+2*t,2)}, v{vBo}, {sr(dB,4)}, s{sB0} offen offset:{32*t}")
        else: k(f"buffer_load_dwordx2 {vr(BP+2*t,2)}, v{vBo}, {sr(dB,4)}, s{sB6} offen offset:{32*12}")
    def acc(t, mt): return ACC + (mt * 7 + t) * 4
    vPf = k.v(); sPf = k.s(); sPs = k.s(); dP = k.s(4); vDum = k.v()
    if pfd:
        rows = 64 // mx
        assert rows == 16 and nx == 8
        k(f"v_lshrrev_b32 v{T}, 3, v{vL}\nv_mul_u32_u24 v{T}, 7168, v{T}\nv_and_b32 v{T+1}, 7, v{vL}\nv_min_u32 v{T+1}, 3, v{T+1}\nv_lshl_add_u32 v{vPf}, v{T+1}, 7, v{T}")
        k(f"v_and_b32 v{T+1}, 7, v{vL}\nv_cmp_lt_u32 vcc, 3, v{T+1}\nv_mov_b32 v{T+2}, {OOB}\nv_cndmask_b32 v{vPf}, v{vPf}, v{T+2}, vcc")
        k(f"s_mul_i32 s{sPf}, s{sNt}, 448\ns_andn2_b32 s{sPf}, s{sPf}, 127\ns_and_b32 s{sT}, s{sMt}, 3\ns_lshl_b32 s{sT}, s{sT}, 1\ns_add_u32 s{sT}, s{sT}, s{sW}\ns_mul_i32 s{sT}, s{sT}, {8*7168}\ns_add_u32 s{sPf}, s{sPf}, s{sT}")
        k(f"s_mov_b32 s{sPs}, {64*7168}")
        k(f"s_mov_b32 s{dP}, s{pW}\ns_mov_b32 s{dP+1}, s{pW+1}\ns_mov_b32 s{dP+2}, {1024*3584*2}\ns_mov_b32 s{dP+3}, 0x20000")
        k(f"s_cmp_lt_u32 s{sW}, 2\ns_cbranch_scc1 G1_pfw")
        k(f"v_lshlrev_b32 v{vPf}, 11, v{vL}\nv_cmp_lt_u32 vcc, 15, v{vL}\nv_cndmask_b32 v{vPf}, v{vPf}, v{T+2}, vcc")
        k(f"s_lshl_b32 s{sPf}, s{sMt}, 18\ns_and_b32 s{sT}, s{sNt}, 7\ns_lshl_b32 s{sT}, s{sT}, 15\ns_add_u32 s{sPf}, s{sPf}, s{sT}\ns_movk_i32 s{sPs}, 128")
        k(f"s_add_u32 s{dP}, s{pWS}, {WS_Y2}\ns_addc_u32 s{dP+1}, s{pWS+1}, 0\ns_cmp_eq_u32 s{sW}, 2\ns_cselect_b32 s{dP+2}, {4<<20}, 0")
        k("G1_pfw:")
        k(f"s_lshl_b32 s{sT}, s{sPs}, 1\ns_add_u32 s{sPf}, s{sPf}, s{sT}")
    pfi = f"buffer_load_dword v{vDum}, v{vPf}, {sr(dP,4)}, s{sPf} offen\ns_add_u32 s{sPf}, s{sPf}, s{sPs}"
    vY = k.v(2 * NB); vWa = k.v(3 * NB)
    k(f"v_lshrrev_b32 v{T}, 1, v{vI}\nv_xor_b32 v{T}, v{T}, v{vG}\nv_lshlrev_b32 v{T}, 4, v{T}\nv_lshl_add_u32 v{T}, v{vI}, 7, v{T}")
    k(f"s_lshl_b32 s{sT}, s{sWm}, 13\nv_add_u32 v{T}, s{sT}, v{T}")
    for b in range(NB):
        k(f"v_add_u32 v{vY+2*b}, {b*BUF}, v{T}\nv_xor_b32 v{vY+2*b+1}, 64, v{vY+2*b}")
    k(f"v_lshrrev_b32 v{T}, 2, v{vI}\nv_lshl_add_u32 v{T}, v{vG}, 3, v{T}\nv_mul_u32_u24 v{T}, 448, v{T}")
    k(f"v_and_b32 v{T+1}, 3, v{vI}\nv_lshl_add_u32 v{T}, v{T+1}, 3, v{T}")
    k(f"v_and_b32 v{T+1}, 1, v{vG}\nv_lshlrev_b32 v{T+1}, 5, v{T+1}")
    k(f"s_mul_i32 s{sT}, s{sWn}, 192\ns_add_u32 s{sT}, s{sT}, 16384\nv_add_u32 v{T+2}, s{sT}, v{T}")
    for b in range(NB):
        k(f"v_add_u32 v{T+3}, {b*BUF}, v{T+2}\nv_add_u32 v{vWa+3*b}, v{T+3}, v{T+1}\nv_sub_u32 v{vWa+3*b+1}, v{T+3}, v{T+1}")
    k(f"s_lshl_b32 s{sT}, s{sWn}, 5\nv_xor_b32 v{T+1}, s{sT}, v{T+1}\nv_add_u32 v{T+2}, v{T}, v{T+1}")
    for b in range(NB): k(f"v_add_u32 v{vWa+3*b+2}, {b*BUF+16384+12*32}, v{T+2}")
    k(f"s_mul_i32 s{sT}, s{sWn}, {3*8192}\ns_add_u32 s{sH}, s{sH}, s{sT}")
    sMask = k.s()
    k(f"s_mov_b32 s{sMask}, 0xffff0000")
    k("s_waitcnt vmcnt(0)")
    for t in range(7): unpack_bf16(k, acc(t, 3), BP + 2 * t, 2, sMask)
    npf = 2
    if pfd:
        for _ in range(pfd): k(pfi); npf += 1
    def reads(s, ks, F):
        b = s % NB
        yy = [f"ds_read_b128 {vr(F+28+4*mt,4)}, v{vY+2*b+ks} offset:{2048*mt}" for mt in range(4)]
        ww = []
        for t in range(7):
            a = vWa + 3 * b + (2 if t == 6 else (t & 1))
            off = (0 if t == 6 else 32 * t) + ks * 32 * 448
            ww.append(f"ds_read_b64_tr_b16 {vr(F+4*t,2)}, v{a} offset:{off}")
            ww.append(f"ds_read_b64_tr_b16 {vr(F+4*t+2,2)}, v{a} offset:{off+4*448}")
        return [] if noread else yy[:1] + ww + yy[1:]
    def mfmas(F, first):
        r = []
        for mt in range(4):
            for t in range(7):
                c = vr(acc(t, 3), 4) if first else vr(acc(t, mt), 4)
                r.append(f"{MB} {vr(acc(t,mt),4)}, {vr(F+4*t,4)}, {vr(F+28+4*mt,4)}, {c}")
        return r[:2] if nomfma else r
    k.stamp()
    k("s_barrier")
    k.stamp()
    for l in reads(0, 0, FR[0]): k(l)
    for s in range(NS):
        k("s_waitcnt lgkmcnt(0)")
        fl = reads(s, 1, FR[1])
        if pfd and npf < NS: fl = fl + [pfi]; npf += 1
        interleave(k, mfmas(FR[0], s == 0), fl)
        k("s_waitcnt lgkmcnt(0)")
        k("s_barrier")
        if s + 1 < NS: interleave(k, mfmas(FR[1], False), reads(s + 1, 0, FR[0]))
        else:
            for l in mfmas(FR[1], False): k(l)
    k.stamp()
    give = [(2, 1), (2, 2), (3, 0), (3, 1), (3, 2)]
    keep = [(0, 0), (0, 1), (0, 2), (1, 0), (1, 1), (1, 2), (2, 0)]
    q = 0
    for mt in range(4):
        k(f"ds_write_b128 v{vXa}, {vr(acc(6,mt),4)} offset:{1024*(10+mt)}")
    for (mt, pr) in give:
        for h in range(2):
            k(f"ds_write_b128 v{vXa}, {vr(acc(2*pr+h,mt),4)} offset:{1024*q}"); q += 1
    k("s_waitcnt lgkmcnt(0)\ns_barrier")
    E = FR[0]; P = FR[1]
    def finish(units, regs_of, sBase):
        for u0 in range(0, len(units), 2):
            grp = units[u0:u0 + 2]
            src = []
            for u in range(len(grp)): src += regs_of(u0 + u)
            e = E + 16 * ((u0 // 2) & 1)
            gelu_block(k, src, len(src), e, sC2, vC1)
            for u, (sreg, add, imm) in enumerate(grp):
                Q = P + 4 * (u0 + u)
                for x in range(4): k(f"v_cvt_pk_bf16_f32 v{Q+x}, v{e+8*u+2*x}, v{e+8*u+2*x+1}")
                k(f"s_add_u32 s{sT}, s{sreg}, {add}")
                k(f"buffer_store_dwordx4 {vr(Q,4)}, v{vHo}, {sr(dHs[0],4)}, s{sT} offen offset:{imm} {st_flags}")
    dHs = [dH]
    finish([(sH, pr * 8192, 1024 * mt) for (mt, pr) in keep], lambda u: list(range(acc(2 * keep[u][1], keep[u][0]), acc(2 * keep[u][1], keep[u][0]) + 8)), sH)
    k.stamp()
    if k.prof: k("s_waitcnt vmcnt(0)")
    k.stamp_flush()
    k("s_endpgm")
    k.release(m0)
    k("G1_loader:")
    sLw = k.s(); sY = k.s(); sWo = k.s(); sYq = k.s(); sMy = k.s(); sMw = k.s()
    k(f"s_sub_u32 s{sLw}, s{sW}, 4")
    vYo = k.v(); vWo = k.v(7)
    k(f"s_and_b32 s{sT}, s{sLw}, 1\ns_lshl_b32 s{sT}, s{sT}, 2")
    k(f"v_add_u32 v{T}, s{sT}, v{vG}\nv_and_b32 v{T+1}, 7, v{vL}\nv_xor_b32 v{T}, v{T}, v{T+1}\nv_lshlrev_b32 v{T}, 4, v{T}")
    k(f"v_lshrrev_b32 v{T+1}, 3, v{vL}\nv_lshl_add_u32 v{vYo}, v{T+1}, 11, v{T}")
    for x in range(7):
        k(f"v_add_u32 v{T}, {64*x}, v{vL}\nv_mul_u32_u24 v{T+1}, 2341, v{T}\nv_lshrrev_b32 v{T+1}, 16, v{T+1}")
        k(f"v_mul_u32_u24 v{T+2}, 28, v{T+1}\nv_sub_u32 v{T}, v{T}, v{T+2}")
        k(f"v_lshrrev_b32 v{T+2}, 2, v{T+1}\nv_and_b32 v{T+2}, 2, v{T+2}\nv_xor_b32 v{T}, v{T}, v{T+2}")
        k(f"v_mul_u32_u24 v{T+1}, 7168, v{T+1}\nv_lshl_add_u32 v{vWo+x}, v{T}, 4, v{T+1}")
    k(f"s_lshl_b32 s{sY}, s{sMt}, 18\ns_lshl_b32 s{sT}, s{sLw}, 14\ns_add_u32 s{sY}, s{sY}, s{sT}")
    k(f"s_mul_i32 s{sWo}, s{sNt}, 448\ns_mul_i32 s{sT}, s{sLw}, {16*7168}\ns_add_u32 s{sWo}, s{sWo}, s{sT}")
    k(f"s_lshl_b32 s{sMy}, s{sLw}, 10\ns_mul_i32 s{sMw}, s{sLw}, 7168\ns_add_u32 s{sMw}, s{sMw}, 16384")
    k("s_waitcnt lgkmcnt(0)")
    dW = k.srd(pW, 1024 * 3584 * 2); dY = k.srd(pWS, 4 << 20, WS_Y2)
    def issue(s):
        b = s % NB
        if noload and s > 1: return
        k(f"s_add_u32 s{sT}, s{sWo}, {64*7168*s}")
        for x in range(7):
            k(f"s_add_u32 m0, s{sMw}, {b*BUF + 1024*x}")
            if x < 4: k(f"s_add_u32 s{sYq}, s{sY}, {65536*x + 128*s}")
            k(f"buffer_load_dwordx4 v{vWo+x}, {sr(dW,4)}, s{sT} offen lds")
            if x < 4:
                k(f"s_add_u32 m0, s{sMy}, {b*BUF + 4096*x}")
                k(f"buffer_load_dwordx4 v{vYo}, {sr(dY,4)}, s{sYq} offen lds")
    issue(0); issue(1)
    dH2 = k.srd(pWS, 2048 * 3584 * 2, WS_H)
    sH6 = k.s(); vXb = k.v()
    k(f"s_lshl_b32 s{sT}, s{sWn}, 11\ns_add_u32 s{sH6}, s{sH}, s{sT}\ns_add_u32 s{sH6}, s{sH6}, {6*8192}")
    k(f"s_mul_i32 s{sT}, s{sWn}, {3*8192}\ns_add_u32 s{sH}, s{sH}, s{sT}")
    k(f"s_mul_i32 s{sT}, s{sWm}, 14336\ns_lshl_b32 s{sYq}, s{sWn}, 11\ns_add_u32 s{sT}, s{sT}, s{sYq}\nv_add_u32 v{vXb}, s{sT}, v{vHo}")
    for s in range(NS):
        k(f"s_waitcnt vmcnt({11 if s + 1 < NS else 0})\ns_barrier")
        if s + 2 < NS: issue(s + 2)
    k("s_barrier\ns_barrier")
    IN = k.v(56); E = k.v(32); P = k.v(28)
    for q in range(10): k(f"ds_read_b128 {vr(IN+4*q,4)}, v{vXa} offset:{1024*q}")
    for j in range(2):
        for h in range(2): k(f"ds_read_b128 {vr(IN+40+8*j+4*h,4)}, v{vXb} offset:{10240 + 1024*j + 2*14336*h}")
    k("s_waitcnt lgkmcnt(0)")
    dHs[0] = dH2
    finish([(sH, pr * 8192, 1024 * mt) for (mt, pr) in give] + [(sH6, 0, 0), (sH6, 0, 1024)], lambda u: list(range(IN + 8 * u, IN + 8 * u + 8)), sH)
    k("G1_end:\ns_endpgm")
    return k

def gen_g2(pfd=3, NB=4, noload=False, nomfma=False, noread=False, noxchg=False):
    NS = 28; BUF = 32768
    k = Kern("g2_kernel", 256, 512, NB * BUF)
    pW = k.s(4); pO = k.s(2); pWS = k.s(2)
    k(f"s_cmp_ge_u32 s2, 256\ns_cbranch_scc1 G2_end")
    k.stamp(True)
    k(f"s_load_dwordx4 {sr(pW,4)}, s[0:1], 48")
    k(f"s_load_dwordx2 {sr(pO,2)}, s[0:1], 80")
    k(f"s_load_dwordx2 {sr(pWS,2)}, s[0:1], 96")
    vL, vI, vG, sW, T = lane_ids(k)
    sT = k.s(); sMt = k.s(); sNt = k.s(); sKh = k.s()
    k(f"s_and_b32 s{sMt}, s2, 3\ns_lshl_b32 s{sMt}, s{sMt}, 2\ns_bfe_u32 s{sT}, s2, 0x20003\ns_add_u32 s{sMt}, s{sMt}, s{sT}")
    k(f"s_lshr_b32 s{sNt}, s2, 5\ns_bfe_u32 s{sKh}, s2, 0x10002")
    vOff = k.v()
    k(f"v_lshlrev_b32 v{vOff}, 4, v{vL}")
    k(f"s_cmp_ge_u32 s{sW}, 4\ns_cbranch_scc1 G2_loader")
    m0 = k.mark()
    sWm = k.s(); sWn = k.s()
    k(f"s_and_b32 s{sWm}, s{sW}, 1\ns_lshr_b32 s{sWn}, s{sW}, 1")
    ACC = k.v(64); FR = [k.v(32), k.v(32)]
    def acc(t, ms): return ACC + (ms * 4 + t) * 4
    NH = (NB + 1) // 2
    vH = k.v(2 * NH); vWa = k.v(4 * NH)
    for sp in range(2):
        k(f"s_xor_b32 s{sT}, s{sKh}, {sp}\ns_lshl_b32 s{sT}, s{sT}, 11\nv_add_u32 v{vH+sp}, s{sT}, v{vOff}")
        k(f"s_lshl_b32 s{sT}, s{sWm}, 12\nv_add_u32 v{vH+sp}, s{sT}, v{vH+sp}")
        for hh in range(1, NH): k(f"v_add_u32 v{vH+2*hh+sp}, {65536*hh}, v{vH+sp}")
    k(f"v_lshrrev_b32 v{T}, 2, v{vI}\nv_lshl_add_u32 v{T}, v{vG}, 2, v{T}\nv_and_b32 v{T+1}, 7, v{T}\nv_lshlrev_b32 v{T}, 8, v{T}")
    k(f"v_and_b32 v{T+2}, 3, v{vI}\nv_lshl_add_u32 v{T}, v{T+2}, 3, v{T}\nv_add_u32 v{T}, 16384, v{T}")
    k(f"s_lshl_b32 s{sT}, s{sWn}, 2\nv_xor_b32 v{T+1}, s{sT}, v{T+1}")
    for t in range(4):
        k(f"v_xor_b32 v{T+2}, {t}, v{T+1}\nv_lshl_add_u32 v{vWa+t}, v{T+2}, 5, v{T}")
        for hh in range(1, NH): k(f"v_add_u32 v{vWa+4*hh+t}, {65536*hh}, v{vWa+t}")
    k("s_waitcnt lgkmcnt(0)")
    k.stamp_init2(5, pWS); k.stamp()
    vPf = k.v(); sPf = k.s(); vDum = k.v()
    dP = k.srd(pW, 3584 * 1024 * 2)
    if pfd:
        k(f"v_lshrrev_b32 v{T}, 5, v{vL}\nv_lshlrev_b32 v{T}, 17, v{T}\nv_bfe_u32 v{T+1}, v{vL}, 1, 4\nv_lshl_add_u32 v{T}, v{T+1}, 11, v{T}\nv_and_b32 v{T+1}, 1, v{vL}\nv_lshl_add_u32 v{vPf}, v{T+1}, 7, v{T}")
        k(f"s_mul_i32 s{sPf}, s{sKh}, {1792*2048}\ns_lshl_b32 s{sT}, s{sNt}, 8\ns_add_u32 s{sPf}, s{sPf}, s{sT}\ns_and_b32 s{sT}, s{sMt}, 3\ns_lshl_b32 s{sT}, s{sT}, 15\ns_add_u32 s{sPf}, s{sPf}, s{sT}")
        k(f"s_lshl_b32 s{sT}, s{sW}, 18\ns_add_u32 s{sPf}, s{sPf}, s{sT}")
    XP = k.v(16); GP = k.v(8); BP = k.v(8); vXo = k.v(); vOo = k.v(); vNo = k.v()
    sX = k.s(); sN = k.s(); sOo = k.s(); sR = k.s()
    dB = k.srd(pW + 2, 2048); dM = k.srd(pWS, 2048, WS_GB); dX1 = k.srd(pWS, 4 << 20, WS_X1); dO = k.srd(pO, 4 << 20)
    dPa = k.srd(pWS, 256 * 32768, WS_PART); dF = k.srd(pWS, 16384, WS_FLAG)
    k(f"v_and_b32 v{T}, 1, v{vG}\nv_lshlrev_b32 v{T}, 5, v{T}\nv_lshrrev_b32 v{T+1}, 1, v{vG}\nv_lshl_add_u32 v{vNo}, v{T+1}, 4, v{T}")
    k(f"v_lshl_add_u32 v{vXo}, v{vI}, 11, v{vNo}")
    k(f"v_and_b32 v{T}, 7, v{vI}\nv_lshlrev_b32 v{T}, 19, v{T}\nv_lshrrev_b32 v{T+1}, 3, v{vI}\nv_lshl_add_u32 v{T}, v{T+1}, 11, v{T}\nv_add_u32 v{vOo}, v{T}, v{vNo}")
    k(f"s_lshl_b32 s{sN}, s{sNt}, 8\ns_lshl_b32 s{sT}, s{sWn}, 7\ns_add_u32 s{sN}, s{sN}, s{sT}")
    k(f"s_lshl_b32 s{sR}, s{sMt}, 2\ns_lshl_b32 s{sT}, s{sWm}, 1\ns_add_u32 s{sR}, s{sR}, s{sT}\ns_add_u32 s{sR}, s{sR}, s{sKh}")
    k(f"s_lshl_b32 s{sX}, s{sR}, 16\ns_add_u32 s{sX}, s{sX}, s{sN}\ns_lshl_b32 s{sOo}, s{sR}, 13\ns_add_u32 s{sOo}, s{sOo}, s{sN}")
    sX2 = k.s(); sPs = k.s(); sPr = k.s(); sFs = k.s(); sFr = k.s()
    k(f"s_add_u32 s{sX2}, s{sX}, 32768")
    k(f"s_lshl_b32 s{sFs}, s2, 2\ns_add_u32 s{sFs}, s{sFs}, s{sW}\ns_xor_b32 s{sFr}, s{sFs}, 16")
    k(f"s_lshl_b32 s{sPs}, s{sFs}, 13\ns_lshl_b32 s{sPr}, s{sFr}, 13\ns_lshl_b32 s{sFs}, s{sFs}, 4\ns_lshl_b32 s{sFr}, s{sFr}, 4")
    epi = [f"buffer_load_dwordx4 {vr(XP+8*ms+4*P,4)}, v{vXo}, {sr(dX1,4)}, s{sX2 if ms else sX} offen offset:{64*P}" for ms in range(2) for P in range(2)]
    epi += [f"buffer_load_dwordx4 {vr(GP+4*P,4)}, v{vNo}, {sr(dM,4)}, s{sN} offen offset:{64*P}" for P in range(2)]
    epi += [f"buffer_load_dwordx4 {vr(BP+4*P,4)}, v{vNo}, {sr(dB,4)}, s{sN} offen offset:{64*P}" for P in range(2)]
    pfi = f"buffer_load_dword v{vDum}, v{vPf}, {sr(dP,4)}, s{sPf} offen\ns_add_u32 s{sPf}, s{sPf}, {4*262144}"
    if pfd: k(pfi)
    def reads(s, ks, F):
        b = s % NB; hh = b >> 1; o = (b & 1) * BUF
        hr = [f"ds_read_b128 {vr(F+16+4*ms,4)}, v{vH+2*hh+(ms>>1)} offset:{o + 8192*ks + 1024*(ms&1)}" for ms in range(4)]
        ww = []
        for t in range(4):
            for hf in range(2):
                ww.append(f"ds_read_b64_tr_b16 {vr(F+4*t+2*hf,2)}, v{vWa+4*hh+t} offset:{o + 8192*ks + 4096*hf}")
        return [] if noread else hr[:1] + ww + hr[1:]
    def mfmas(F, first):
        r = []
        for ms in range(4):
            for t in range(4):
                r.append(f"{MB} {vr(acc(t,ms),4)}, {vr(F+4*t,4)}, {vr(F+16+4*ms,4)}, {'0' if first else vr(acc(t,ms),4)}")
        return r[:2] if (nomfma and not first) else r
    k.stamp()
    k("s_barrier")
    k.stamp()
    for l in reads(0, 0, FR[0]): k(l)
    for s in range(NS):
        k("s_waitcnt lgkmcnt(0)")
        fl = reads(s, 1, FR[1])
        if pfd and s in (1, 9, 17): fl = fl + [pfi]
        if s >= NS - 9 and epi: fl = fl + [epi.pop(0)]
        interleave(k, mfmas(FR[0], s == 0), fl)
        k("s_waitcnt lgkmcnt(0)")
        if s + 1 < NS:
            k("s_barrier")
            interleave(k, mfmas(FR[1], False), reads(s + 1, 0, FR[0]))
        else:
            mm = mfmas(FR[1], False)
            for l in mm[8:] + mm[:8]: k(l)
    k.stamp()
    sMask = k.s()
    k(f"s_mov_b32 s{sMask}, 0xffff0000")
    v4k = k.v()
    k(f"v_add_u32 v{v4k}, 4096, v{vOff}")
    if not noxchg:
        for q in range(8):
            k(f"buffer_store_dwordx4 {vr(ACC+32+4*q,4)}, v{v4k if q >= 4 else vOff}, {sr(dPa,4)}, s{sPs} offen offset:{1024*(q&3)} sc1")
    k("s_waitcnt vmcnt(8)" if not noxchg else "s_waitcnt vmcnt(0)")
    for base in (XP, XP + 4, XP + 8, XP + 12, GP, GP + 4, BP, BP + 4):
        k(f"v_permlane16_swap_b32 v{base}, v{base+2}\nv_permlane16_swap_b32 v{base+1}, v{base+3}")
    GB = FR[0]; B2 = FR[0] + 16; X = FR[1]
    unpack_bf16(k, GB, GP, 8, sMask); unpack_bf16(k, B2, BP, 8, sMask); unpack_bf16(k, X, XP, 16, sMask)
    for ms in range(2):
        for e in range(16): k(f"v_add_f32 v{ACC+16*ms+e}, v{ACC+16*ms+e}, v{B2+e}")
    if not noxchg:
        k(f"v_mov_b32 v{T}, 1\nv_mov_b32 v{T+1}, 0")
        k("s_waitcnt vmcnt(0)")
        k(f"buffer_store_dword v{T}, v{T+1}, {sr(dF,4)}, s{sFs} offen sc1")
        k.stamp()
        k("G2_poll:")
        k(f"buffer_load_dword v{T+2}, v{T+1}, {sr(dF,4)}, s{sFr} offen sc1")
        k("s_waitcnt vmcnt(0)")
        k(f"v_readfirstlane_b32 s{sT}, v{T+2}")
        k(f"s_cmp_eq_u32 s{sT}, 1\ns_cbranch_scc1 G2_got\ns_sleep 1\ns_branch G2_poll")
        k("G2_got:")
        k.stamp()
        for q in range(8):
            k(f"buffer_load_dwordx4 {vr(ACC+32+4*q,4)}, v{v4k if q >= 4 else vOff}, {sr(dPa,4)}, s{sPr} offen offset:{1024*(q&3)} sc1")
    for ms in range(2):
        if not noxchg:
            k(f"s_waitcnt vmcnt({4 if ms == 0 else 2})")
            for e in range(16): k(f"v_add_f32 v{ACC+16*ms+e}, v{ACC+16*ms+e}, v{ACC+32+16*ms+e}")
        for e in range(16): k(f"v_fma_f32 v{X+16*ms+e}, v{ACC+16*ms+e}, v{GB+e}, v{X+16*ms+e}")
        for e in range(8): k(f"v_cvt_pk_bf16_f32 v{XP+8*ms+e}, v{X+16*ms+2*e}, v{X+16*ms+2*e+1}")
        for P in range(2):
            b = XP + 8 * ms + 4 * P
            k(f"v_permlane16_swap_b32 v{b}, v{b+2}\nv_permlane16_swap_b32 v{b+1}, v{b+3}")
        if ms: k(f"s_add_u32 s{sOo}, s{sOo}, 4096")
        for P in range(2):
            k(f"buffer_store_dwordx4 {vr(XP+8*ms+4*P,4)}, v{vOo}, {sr(dO,4)}, s{sOo} offen offset:{64*P}")
    k.stamp()
    if k.prof: k("s_waitcnt vmcnt(0)")
    k.stamp_flush()
    k("s_endpgm")
    k.release(m0)
    k("G2_loader:")
    sLw = k.s(); sH = k.s(); sWo = k.s(); sA = k.s(); sM = k.s()
    k(f"s_sub_u32 s{sLw}, s{sW}, 4")
    vWo = k.v(2)
    for par in range(2):
        k(f"v_add_u32 v{T}, {4*par}, v{vG}\nv_lshlrev_b32 v{T}, 1, v{T}\nv_xor_b32 v{T}, v{T}, v{vI}\nv_lshlrev_b32 v{T}, 4, v{T}\nv_lshl_add_u32 v{vWo+par}, v{vG}, 11, v{T}")
    k(f"s_mul_i32 s{sH}, s{sMt}, {112*8192}\ns_mul_i32 s{sT}, s{sKh}, {56*8192}\ns_add_u32 s{sH}, s{sH}, s{sT}\ns_lshl_b32 s{sM}, s{sLw}, 12\ns_add_u32 s{sH}, s{sH}, s{sM}")
    k(f"s_mul_i32 s{sWo}, s{sKh}, {1792*2048}\ns_lshl_b32 s{sT}, s{sNt}, 8\ns_add_u32 s{sWo}, s{sWo}, s{sT}\ns_lshl_b32 s{sT}, s{sLw}, 15\ns_add_u32 s{sWo}, s{sWo}, s{sT}")
    k("s_waitcnt lgkmcnt(0)")
    dW = k.srd(pW, 3584 * 1024 * 2); dH = k.srd(pWS, 2048 * 3584 * 2, WS_H)
    def issue(s):
        b = s % NB
        if noload and s >= NB - 1: return
        for x in range(4):
            k(f"s_add_u32 m0, s{sM}, {b*BUF + 16384 + 1024*x}\ns_add_u32 s{sA}, s{sWo}, {131072*s + 8192*x}")
            k(f"buffer_load_dwordx4 v{vWo+(x&1)}, {sr(dW,4)}, s{sA} offen lds")
        k(f"s_add_u32 m0, s{sM}, {b*BUF}\ns_add_u32 s{sA}, s{sH}, {16384*s}")
        for x in range(4):
            k(f"buffer_load_dwordx4 v{vOff}, {sr(dH,4)}, s{sA} offen offset:{1024*x} lds")
    for s in range(NB - 1): issue(s)
    for s in range(NS):
        k(f"s_waitcnt vmcnt({8*min(NB-2, NS-1-s)})\ns_barrier")
        if s + NB - 1 < NS: issue(s + NB - 1)
    k("G2_end:\ns_endpgm")
    return k
```

```python
from asmlib import *
import math

WS_MODP = 0x0
WS_GB = 0x18000
WS_WMAX = 0x19000
WS_SCAL = 0x19400
WS_TAC = 0x20000
WS_TAW = 0x24000
WS_TBC = 0x28000
WS_TCC = 0x2C000
WS_TCW = 0x30000
WS_WX = 0x38000
WS_FLAG = 0x40000
WS_TAS = 0x100000
WS_TCS = 0x200000
WS_ZA = 0x300000
WS_ZB = 0x800000
WS_WB = 0xD00000
WS_X1 = 0x1200000
WS_Y2 = 0x1600000
WS_H = 0x1A00000
WS_PART = 0x2A00000
NSLOT = 258
ZA_BYTES = NSLOT * 16384
ZB_PITCH = NSLOT * 64
ZB_BYTES = 256 * ZB_PITCH
W_BYTES = 2048 * 513 * 2
LOG2E = 1.4426950408889634
DPPM = "row_mask:0xf bank_mask:0xf"
MF = "v_mfma_f32_16x16x32_f16"
OOB = 0x7ffffff0

def wave_reduce(k, op, vs, sdst):
    ops = op if isinstance(op, (list, tuple)) else [op] * len(vs)
    for sh in (1, 2, 4, 8):
        for o, v in zip(ops, vs): k(f"{o}_dpp v{v}, v{v}, v{v} row_ror:{sh} {DPPM}")
    for o, v in zip(ops, vs): k(f"{o}_dpp v{v}, v{v}, v{v} row_bcast:15 row_mask:0xa bank_mask:0xf")
    for o, v in zip(ops, vs): k(f"{o}_dpp v{v}, v{v}, v{v} row_bcast:31 row_mask:0xc bank_mask:0xf")
    for v, s in zip(vs, sdst): k(f"v_readlane_b32 s{s}, v{v}, 63")

def with_fill(k, lines, fill, per=3):
    fill = list(fill)
    for l in lines:
        k(l)
        for _ in range(per):
            if fill: k(fill.pop(0))
    for l in fill: k(l)

def cap(fn):
    t = Kern("x", 0, 0, 0); fn(t); return list(t.lines)

def sincos(k, c, s, vint, n, tmp):
    k(f"v_cvt_f32_u32 v{tmp}, v{vint}")
    k(f"v_mul_f32 v{tmp}, {fbits(1.0/n)}, v{tmp}")
    k(f"v_cos_f32 v{c}, v{tmp}")
    k(f"v_sin_f32 v{s}, v{tmp}")

def round_bf16(k, v):
    k(f"v_cvt_pk_bf16_f32 v{v}, v{v}, v{v}")
    k(f"v_lshlrev_b32 v{v}, 16, v{v}")

def unpack_bf16(k, dst, src, n, smask):
    for i in range(n):
        k(f"v_lshlrev_b32 v{dst+2*i}, 16, v{src+i}")
        k(f"v_and_b32 v{dst+2*i+1}, s{smask}, v{src+i}")

def cmul_tw(k, re, im, c, s, conj, t):
    k(f"v_mul_f32 v{t}, v{re}, v{s}")
    k(f"v_mul_f32 v{re}, v{re}, v{c}")
    if not conj:
        k(f"v_fmac_f32 v{re}, v{im}, v{s}")
        k(f"v_fma_f32 v{im}, v{im}, v{c}, -v{t}")
    else:
        k(f"v_fma_f32 v{re}, -v{im}, v{s}, v{re}")
        k(f"v_fma_f32 v{im}, v{im}, v{c}, v{t}")

def lane_ids(k):
    vL = k.v(); vI = k.v(); vG = k.v(); sW = k.s(); T = k.v(8)
    k(f"v_lshrrev_b32 v{T}, 6, v0\nv_and_b32 v{vL}, 63, v0")
    k(f"v_readfirstlane_b32 s{sW}, v{T}")
    k(f"v_and_b32 v{vI}, 15, v{vL}\nv_lshrrev_b32 v{vG}, 4, v{vL}")
    return vL, vI, vG, sW, T

C_TB = 17 * 1024
C_TP = (512 + 4) * 4

def gemv_job(k, pC, pM, pWS, sStrip, sSplit, vL, sWave, T, endlabel):
    m = k.mark()
    sT = k.s(); sMask = k.s(); sO = k.s(); sCo = k.s()
    vR = k.v(); vOff = k.v(); vOffC = k.v()
    k(f"v_lshrrev_b32 v{vR}, 3, v0")
    k(f"v_mul_u32_u24 v{vOff}, 12288, v{vR}")
    k(f"v_and_b32 v{T}, 7, v0\nv_lshl_add_u32 v{vOff}, v{T}, 4, v{vOff}")
    k(f"v_lshlrev_b32 v{vOffC}, 1, v{vR}")
    k(f"s_mov_b32 s{sMask}, 0xffff0000")
    k(f"s_mul_i32 s{sO}, s{sSplit}, {256*12288}\ns_lshl_b32 s{sT}, s{sStrip}, 7\ns_add_u32 s{sO}, s{sO}, s{sT}\ns_lshl_b32 s{sCo}, s{sSplit}, 9")
    k("s_waitcnt lgkmcnt(0)")
    dM = k.srd(pM, 1024 * 6144 * 2); dC = k.srd(pC, 2048); dO = k.srd(pWS, 4 * 6144 * 4, WS_MODP)
    C = k.v(4); Wv = k.v(16); E = k.v(4); A = k.v(8)
    for i in range(4):
        k(f"buffer_load_ushort v{C+i}, v{vOffC}, {sr(dC,4)}, s{sCo} offen offset:{128*i}")
    for i in range(4):
        k(f"buffer_load_dwordx4 {vr(Wv+4*i,4)}, v{vOff}, {sr(dM,4)}, s{sO} offen nt")
        if i < 3: k(f"s_add_u32 s{sO}, s{sO}, {64*12288}")
    vA = k.v()
    k(f"v_and_b32 v{T}, 7, v{vL}\nv_lshlrev_b32 v{T}, 5, v{T}\nv_lshrrev_b32 v{T+1}, 4, v{vL}\nv_lshl_add_u32 v{T}, v{T+1}, 2, v{T}")
    k(f"s_lshl_b32 s{sT}, s{sWave}, 8\nv_add_u32 v{vA}, s{sT}, v{T}")
    k("s_waitcnt vmcnt(4)")
    for i in range(4): k(f"v_lshlrev_b32 v{C+i}, 16, v{C+i}\nv_mul_f32 v{E+i}, {fbits(-LOG2E)}, v{C+i}")
    for i in range(4): k(f"v_exp_f32 v{E+i}, v{E+i}")
    for i in range(4): k(f"v_add_f32 v{E+i}, 1.0, v{E+i}")
    for i in range(4): k(f"v_rcp_f32 v{E+i}, v{E+i}")
    for i in range(4): k(f"v_mul_f32 v{C+i}, v{C+i}, v{E+i}")
    for i in range(4): round_bf16(k, C + i)
    for i in range(4):
        k(f"s_waitcnt vmcnt({3-i})")
        for q in range(4):
            k(f"v_lshlrev_b32 v{T}, 16, v{Wv+4*i+q}\nv_and_b32 v{T+1}, s{sMask}, v{Wv+4*i+q}")
            if i == 0: k(f"v_mul_f32 v{A+2*q}, v{C}, v{T}\nv_mul_f32 v{A+2*q+1}, v{C}, v{T+1}")
            else: k(f"v_fmac_f32 v{A+2*q}, v{C+i}, v{T}\nv_fmac_f32 v{A+2*q+1}, v{C+i}, v{T+1}")
    for q in range(4): k(f"v_permlane16_swap_b32 v{A+2*q}, v{A+2*q+1}")
    for q in range(4): k(f"v_add_f32 v{A+2*q}, v{A+2*q}, v{A+2*q+1}")
    k(f"v_permlane32_swap_b32 v{A}, v{A+2}\nv_permlane32_swap_b32 v{A+4}, v{A+6}")
    k(f"v_add_f32 v{A}, v{A}, v{A+2}\nv_add_f32 v{A+4}, v{A+4}, v{A+6}")
    k(f"v_add_f32_dpp v{A}, v{A}, v{A} row_ror:8 {DPPM}\nv_add_f32_dpp v{A+4}, v{A+4}, v{A+4} row_ror:8 {DPPM}")
    k(f"ds_write2_b32 v{vA}, v{A}, v{A+4} offset0:0 offset1:4")
    k("s_waitcnt lgkmcnt(0)\ns_barrier")
    k(f"s_cmp_lg_u32 s{sWave}, 0\ns_cbranch_scc1 {endlabel}")
    k(f"v_lshlrev_b32 v{T}, 2, v{vL}")
    for i in range(4): k(f"ds_read2st64_b32 {vr(A+2*i,2)}, v{T} offset0:{2*i} offset1:{2*i+1}")
    k(f"s_mul_i32 s{sO}, s{sSplit}, {6144*4}\ns_lshl_b32 s{sT}, s{sStrip}, 8\ns_add_u32 s{sO}, s{sO}, s{sT}")
    k("s_waitcnt lgkmcnt(0)")
    for i in range(4): k(f"v_add_f32 v{A+2*i}, v{A+2*i}, v{A+2*i+1}")
    k(f"v_add_f32 v{A}, v{A}, v{A+2}\nv_add_f32 v{A+4}, v{A+4}, v{A+6}\nv_add_f32 v{A}, v{A}, v{A+4}")
    k(f"buffer_store_dword v{A}, v{T}, {sr(dO,4)}, s{sO} offen")
    k("s_endpgm")
    k.release(m)

def tab_a_common(k, vI, vG, T, R, part):
    def f1(ct, ks, ri): return R + ((ct * 2 + ks) * 2 + ri) * 4
    sg = 1 / math.sqrt(32)
    for ct in range(2):
        if part != ct: continue
        for ks in range(2):
            for e in range(4):
                k(f"v_add_u32 v{T}, {16*ks+4*e}, v{vG}\nv_add_u32 v{T+1}, {16*ct}, v{vI}")
                k(f"v_mul_u32_u24 v{T}, v{T}, v{T+1}\nv_and_b32 v{T}, 31, v{T}")
                sincos(k, T + 1, T + 2, T, 32, T + 3)
                k(f"v_mul_f32 v{T+1}, {fbits(sg)}, v{T+1}\nv_mul_f32 v{T+2}, {fbits(sg)}, v{T+2}")
                k(f"v_cvt_pk_f16_f32 v{f1(ct,ks,0)+e}, v{T+1}, v{T+2}\nv_cvt_pk_f16_f32 v{f1(ct,ks,1)+e}, -v{T+2}, v{T+1}")
        return (4 * ct, 4)
    for ct in range(2):
        for v in range(4):
            k(f"v_lshl_add_u32 v{T}, v{vG}, 2, {v}\nv_add_u32 v{T+1}, {16*ct}, v{vI}\nv_mul_u32_u24 v{T}, v{T}, v{T+1}")
            sincos(k, R + 32 + 4 * ct + v, R + 40 + 4 * ct + v, T, 512, T + 3)
    for v in range(4):
        k(f"v_lshl_add_u32 v{T}, v{vG}, 2, {v}\nv_mul_u32_u24 v{T}, v{T}, v{vI}\nv_and_b32 v{T}, 15, v{T}")
        sincos(k, T + 1, T + 2, T, 16, T + 3)
        k(f"v_mul_f32 v{T+1}, {fbits(0.25)}, v{T+1}\nv_mul_f32 v{T+2}, {fbits(0.25)}, v{T+2}")
        k(f"v_cvt_pk_f16_f32 v{R+48+v}, v{T+1}, v{T+2}\nv_cvt_pk_f16_f32 v{R+52+v}, -v{T+2}, v{T+1}")
    return (8, 6)

def tab_a_wave(k, vI, vG, T, R, sJ, sT):
    sBase = k.s()
    k(f"s_lshl_b32 s{sBase}, s{sJ}, 11\ns_lshr_b32 s{sT}, s{sJ}, 2\ns_lshl_b32 s{sT}, s{sT}, 6\ns_add_u32 s{sBase}, s{sBase}, s{sT}")
    vRho = T + 7
    k(f"v_and_b32 v{vRho}, 7, v{vI}")
    for ct in range(2):
        k(f"v_add_u32 v{T}, {4*ct}, v{vG}\nv_xor_b32 v{T}, v{T}, v{vRho}\nv_lshlrev_b32 v{T}, 4, v{T}")
        k(f"v_lshl_add_u32 v{T}, v{vI}, 7, v{T}\nv_add_u32 v{R+ct}, s{sBase}, v{T}")
    for q in range(2):
        for x in range(2):
            d = R + 4 + 2 * q + x
            k(f"v_lshrrev_b32 v{T}, 1, v{vG}\nv_lshl_add_u32 v{T}, v{T}, 4, v{vI}")
            k(f"s_lshl_b32 s{sT}, s{sJ}, 6\ns_add_u32 s{sT}, s{sT}, {32*q}\nv_add_u32 v{T}, s{sT}, v{T}")
            if x: k(f"v_sub_u32 v{T}, 512, v{T}\nv_and_b32 v{T}, 511, v{T}")
            k(f"v_lshrrev_b32 v{T+1}, 3, v{T}\nv_and_b32 v{T+1}, 28, v{T+1}\nv_xor_b32 v{T}, v{T}, v{T+1}")
            k(f"v_and_b32 v{T+1}, 1, v{vG}\nv_mul_u32_u24 v{T+1}, {4*2048+64}, v{T+1}")
            k(f"v_lshl_add_u32 v{d}, v{T}, 2, v{T+1}")
    for q in range(2):
        k(f"v_lshrrev_b32 v{T}, 3, v{vI}\nv_lshrrev_b32 v{T+1}, 1, v{vG}\nv_lshl_add_u32 v{T}, v{T}, 1, v{T+1}")
        k(f"s_lshl_b32 s{sT}, s{sJ}, 3\ns_add_u32 s{sT}, s{sT}, {4*q}\nv_add_u32 v{T}, s{sT}, v{T}")
        k(f"v_lshlrev_b32 v{T+1}, 6, v{vRho}\nv_subrev_u32 v{T+1}, 31, v{T+1}\nv_max_i32 v{T+1}, 0, v{T+1}")
        k(f"v_add_u32 v{T+1}, v{T+1}, v{T}\nv_lshlrev_b32 v{T+1}, 14, v{T+1}")
        k(f"v_and_b32 v{T+2}, 1, v{vG}\nv_lshl_add_u32 v{T+1}, v{T+2}, 5, v{T+1}")
        k(f"v_and_b32 v{T+2}, 3, v{vRho}\nv_cmp_eq_u32 vcc, 0, v{T+2}\nv_mov_b32 v{T+3}, 64\nv_cndmask_b32 v{T+3}, v{T+3}, 33, vcc")
        k(f"v_cmp_lt_u32 vcc, 4, v{vRho}\nv_cndmask_b32 v{T+3}, v{T+3}, 0, vcc")
        k(f"v_cmp_lt_u32 vcc, v{T}, v{T+3}\nv_mov_b32 v{T+2}, {OOB}\nv_cndmask_b32 v{R+2+q}, v{T+2}, v{T+1}, vcc")
    return 2

def tab_a_s0(k, vI, vG, T, R, sS0):
    s8 = 1 / math.sqrt(8)
    vSc = T + 6; vRho = T + 7
    k(f"v_lshrrev_b32 v{T}, 3, v{vI}\nv_lshrrev_b32 v{T+1}, 1, v{vG}\nv_cmp_eq_u32 vcc, v{T}, v{T+1}")
    k(f"v_mov_b32 v{T+2}, {fbits(s8)}\nv_cndmask_b32 v{vSc}, 0, v{T+2}, vcc\nv_and_b32 v{vRho}, 7, v{vI}")
    for e in range(4):
        k(f"v_and_b32 v{T}, 1, v{vG}\nv_lshl_add_u32 v{T}, v{T}, 2, {e}\nv_lshl_add_u32 v{T}, v{T}, 8, s{sS0}")
        k(f"v_mul_u32_u24 v{T}, v{T}, v{vRho}\nv_and_b32 v{T}, 0x7ff, v{T}")
        sincos(k, T + 1, T + 2, T, 2048, T + 3)
        k(f"v_mul_f32 v{T+1}, v{vSc}, v{T+1}\nv_mul_f32 v{T+2}, v{vSc}, v{T+2}")
        k(f"v_cvt_pk_f16_f32 v{R+e}, v{T+1}, v{T+2}\nv_cvt_pk_f16_f32 v{R+4+e}, -v{T+2}, v{T+1}")
        k(f"v_cvt_pk_f16_f32 v{R+8+e}, v{T+1}, -v{T+2}\nv_cvt_pk_f16_f32 v{R+12+e}, -v{T+2}, -v{T+1}")
    return 4

def tab_b_common(k, vI, vG, T, R):
    for v in range(4):
        k(f"v_lshl_add_u32 v{T}, v{vG}, 2, {v}\nv_mul_u32_u24 v{T}, v{T}, v{vI}")
        sincos(k, R + v, R + 4 + v, T, 256, T + 3)
        k(f"v_and_b32 v{T}, 15, v{T}")
        sincos(k, R + 24 + v, R + 28 + v, T, 16, T + 3)
        k(f"v_mul_f32 v{T+1}, {fbits(0.25)}, v{R+24+v}\nv_mul_f32 v{T+2}, {fbits(0.25)}, v{R+28+v}")
        k(f"v_cvt_pk_f16_f32 v{R+8+v}, v{T+1}, v{T+2}\nv_cvt_pk_f16_f32 v{R+12+v}, -v{T+2}, v{T+1}")
        k(f"v_cvt_pk_f16_f32 v{R+16+v}, v{T+1}, -v{T+2}\nv_cvt_pk_f16_f32 v{R+20+v}, v{T+2}, v{T+1}")
    return 8

def tab_c_common(k, vI, vG, T, R, part):
    for e in range(4 if part == 2 else 0):
        k(f"v_add_u32 v{T}, {4*e}, v{vG}\nv_mul_u32_u24 v{T}, v{T}, v{vI}\nv_and_b32 v{T}, 15, v{T}")
        sincos(k, T + 1, T + 2, T, 16, T + 3)
        k(f"v_mul_f32 v{T+1}, {fbits(0.25)}, v{T+1}\nv_mul_f32 v{T+2}, {fbits(0.25)}, v{T+2}")
        k(f"v_cvt_pk_f16_f32 v{R+e}, v{T+1}, -v{T+2}\nv_cvt_pk_f16_f32 v{R+4+e}, v{T+2}, v{T+1}")
    for rt in range(2 if part == 2 else 0):
        for v in range(4):
            k(f"v_lshl_add_u32 v{T}, v{vG}, 2, {16*rt+v}\nv_mul_u32_u24 v{T}, v{T}, v{vI}")
            sincos(k, R + 8 + 4 * rt + v, R + 16 + 4 * rt + v, T, 512, T + 3)
    if part == 2: return (0, 6)
    sg = 1 / math.sqrt(32)
    for ct in (part,):
        for rt in range(2):
            for v in range(4):
                k(f"v_lshl_add_u32 v{T}, v{vG}, 2, {16*rt+v}\nv_add_u32 v{T+1}, {16*ct}, v{vI}\nv_mul_u32_u24 v{T}, v{T}, v{T+1}\nv_and_b32 v{T}, 31, v{T}")
                sincos(k, T + 1, T + 2, T, 32, T + 3)
                k(f"v_mul_f32 v{T+1}, {fbits(sg)}, v{T+1}\nv_mul_f32 v{T+2}, {fbits(sg)}, v{T+2}")
                b = R + 24 + ((ct * 2 + rt) * 2) * 4
                k(f"v_cvt_pk_f16_f32 v{b+v}, v{T+1}, -v{T+2}\nv_cvt_pk_f16_f32 v{b+4+v}, v{T+2}, v{T+1}")
    return (6 + 4 * part, 4)

def tab_c_wave(k, vI, vG, T, R, sJ, sT):
    sO = k.s()
    vY = T + 6; vHf = T + 7
    k(f"v_lshrrev_b32 v{vY}, 1, v{vG}\nv_and_b32 v{vHf}, 1, v{vG}")
    for q in range(2):
        k(f"s_lshl_b32 s{sT}, s{sJ}, 5\ns_add_u32 s{sT}, s{sT}, {16*q}")
        k(f"v_lshl_add_u32 v{T}, v{vY}, 8, v{vI}\nv_add_u32 v{T}, s{sT}, v{T}")
        k(f"v_sub_u32 v{T+1}, 512, v{T}\nv_and_b32 v{T+1}, 511, v{T+1}")
        k(f"v_lshlrev_b32 v{T}, 3, v{T}\nv_lshl_add_u32 v{T+1}, v{T+1}, 3, 4")
        for e in range(4):
            if e < 3: k(f"v_xor_b32 v{T+4}, v{vY}, v{vHf}")
            else: k(f"v_mov_b32 v{T+4}, v{vY}")
            k(f"v_cmp_eq_u32 vcc, 0, v{T+4}")
            k(f"v_add_u32 v{T+2}, {e}, v{vHf}\nv_lshlrev_b32 v{T+2}, 6, v{T+2}\nv_subrev_u32 v{T+2}, 31, v{T+2}\nv_max_i32 v{T+2}, 0, v{T+2}")
            k(f"v_cndmask_b32 v{T+3}, v{T+1}, v{T}, vcc")
            k(f"v_lshl_add_u32 v{R+4*q+e}, v{T+2}, 6, v{T+3}")
    for q in range(2):
        k(f"s_and_b32 s{sT}, s{sJ}, 1\ns_xor_b32 s{sT}, s{sT}, {q}\ns_lshl_b32 s{sT}, s{sT}, 6")
        k(f"s_lshl_b32 s{sO}, s{sJ}, 7\ns_add_u32 s{sT}, s{sT}, s{sO}\ns_add_u32 s{sT}, s{sT}, {C_TB}")
        k(f"v_and_b32 v{T}, 7, v{vI}\nv_mul_u32_u24 v{T}, {C_TP}, v{T}")
        k(f"v_lshrrev_b32 v{T+1}, 3, v{vI}\nv_lshl_add_u32 v{T}, v{T+1}, 10, v{T}\nv_lshl_add_u32 v{T}, v{vG}, 4, v{T}")
        k(f"v_add_u32 v{R+8+q}, s{sT}, v{T}")
    k(f"s_mul_i32 s{sT}, s{sJ}, {C_TP}\ns_add_u32 s{sT}, s{sT}, {C_TB}")
    for rt in range(2):
        k(f"v_xor_b32 v{T}, {rt}, v{vHf}\nv_lshl_add_u32 v{T}, v{T}, 4, v{vI}\nv_lshl_add_u32 v{T}, v{vG}, 5, v{T}")
        k(f"v_lshl_add_u32 v{R+10+rt}, v{T}, 2, s{sT}")
    return 3

def tab_c_s0(k, vI, vG, T, R, sS0, sSign):
    s8 = 1 / math.sqrt(8)
    vY = T + 6; vHf = T + 7; vSc = R + 8; vS = R + 9
    k(f"v_lshrrev_b32 v{vY}, 1, v{vG}\nv_and_b32 v{vHf}, 1, v{vG}")
    k(f"v_lshrrev_b32 v{T}, 3, v{vI}\nv_cmp_eq_u32 vcc, v{T}, v{vY}\nv_mov_b32 v{T+2}, {fbits(s8)}\nv_cndmask_b32 v{vSc}, 0, v{T+2}, vcc")
    k(f"v_and_b32 v{vS}, 7, v{vI}\nv_lshl_add_u32 v{vS}, v{vS}, 8, s{sS0}")
    for e in range(4):
        k(f"v_add_u32 v{T+4}, {e}, v{vHf}")
        if e < 3: k(f"v_xor_b32 v{T+5}, v{vY}, v{vHf}")
        else: k(f"v_mov_b32 v{T+5}, v{vY}")
        k(f"v_mul_u32_u24 v{T}, v{vS}, v{T+4}\nv_and_b32 v{T}, 0x7ff, v{T}")
        sincos(k, T + 1, T + 2, T, 2048, T + 3)
        k(f"v_mul_f32 v{T+1}, v{vSc}, v{T+1}\nv_mul_f32 v{T+2}, v{vSc}, v{T+2}")
        k(f"v_cvt_pk_f16_f32 v{R+e}, v{T+1}, -v{T+2}\nv_cvt_pk_f16_f32 v{R+4+e}, v{T+2}, v{T+1}")
        k(f"v_mul_lo_u32 v{T}, v{T+5}, s{sSign}\nv_xor_b32 v{R+4+e}, v{T}, v{R+4+e}")
    return 2

K0_NG = 128; K0_NW = 160; K0_NS = 32
def gen_k0():
    G0 = 10
    G1 = G0 + K0_NG; G2 = G1 + K0_NW; G3 = G2 + K0_NS
    k = Kern("k0_kernel", G3, 512, 2048)
    pCW = k.s(4); pW = k.s(4); pWS = k.s(2)
    k(f"s_cmp_ge_u32 s2, {G3}\ns_cbranch_scc1 K0_end")
    k.stamp(True)
    k(f"s_load_dwordx4 {sr(pCW,4)}, s[0:1], 64")
    k(f"s_load_dwordx4 {sr(pW,4)}, s[0:1], 8")
    k(f"s_load_dwordx2 {sr(pWS,2)}, s[0:1], 96")
    k.stamp_init2(0, pWS)
    vL, vI, vG, sWave, T = lane_ids(k)
    sA = k.s(); sB = k.s(); sT = k.s()
    k(f"s_cmp_lt_u32 s2, {G0}\ns_cbranch_scc1 K0_tab")
    k(f"s_cmp_ge_u32 s2, {G2}\ns_cbranch_scc1 K0_s0")
    k(f"s_cmp_ge_u32 s2, {G1}\ns_cbranch_scc1 K0_w")
    k(f"s_sub_u32 s{sT}, s2, {G0}\ns_lshr_b32 s{sA}, s{sT}, 2\ns_and_b32 s{sB}, s{sT}, 3")
    gemv_job(k, pCW, pCW + 2, pWS, sA, sB, vL, sWave, T, "K0_end")
    k("K0_w:")
    m = k.mark()
    k(f"s_cmp_ge_u32 s{sWave}, 4\ns_cbranch_scc1 K0_end")
    sJob = k.s(); sRho = k.s(); sWh = k.s(); sK1 = k.s(); sRow = k.s(); sStep = k.s(); sO = k.s(); sP0 = k.s(); sP1 = k.s()
    k(f"s_sub_u32 s{sJob}, s2, {G1}\ns_lshr_b32 s{sRho}, s{sJob}, 5\ns_bfe_u32 s{sWh}, s{sJob}, 0x10004\ns_and_b32 s{sK1}, s{sJob}, 15")
    k(f"s_lshl_b32 s{sRow}, s{sK1}, 3\ns_add_u32 s{sRow}, s{sRow}, s{sRho}")
    k(f"s_sub_u32 s{sT}, 2048, s{sRow}\ns_cmp_eq_u32 s{sWh}, 1\ns_cselect_b32 s{sRow}, s{sT}, s{sRow}\ns_movk_i32 s{sStep}, 128\ns_cselect_b32 s{sStep}, -128, s{sStep}")
    k(f"s_mov_b32 s{sA}, 0x05040100\ns_mov_b32 s{sB}, 0x07060302\ns_cselect_b32 s{sP0}, s{sB}, s{sA}\ns_cselect_b32 s{sP1}, s{sA}, s{sB}\ns_cselect_b64 vcc, -1, 0")
    vOff = k.v(); vSt = k.v(); vXo = k.v()
    k(f"v_lshlrev_b32 v{T}, 2, v0\nv_sub_u32 v{T+1}, 1022, v{T}\nv_cndmask_b32 v{vOff}, v{T}, v{T+1}, vcc")
    k(f"s_and_b32 s{sT}, s{sRho}, 3\ns_cmp_eq_u32 s{sT}, 0\ns_movk_i32 s{sT}, 256\ns_cselect_b32 s{sT}, 132, s{sT}")
    k(f"v_cmp_gt_u32 vcc, s{sT}, v0\nv_mov_b32 v{T}, {OOB}\nv_cndmask_b32 v{vOff}, v{T}, v{vOff}, vcc")
    k(f"v_lshlrev_b32 v{T+1}, 12, v0\nv_cndmask_b32 v{vSt}, v{T}, v{T+1}, vcc")
    k(f"v_mul_i32_i24 v{T+1}, s{sStep}, v0\nv_add_u32 v{T+1}, s{sRow}, v{T+1}\nv_and_b32 v{T+1}, 2047, v{T+1}\nv_mul_u32_u24 v{T+1}, 1026, v{T+1}")
    k(f"v_cmp_gt_u32 vcc, 16, v0\nv_cndmask_b32 v{vXo}, v{T}, v{T+1}, vcc")
    k(f"v_lshlrev_b32 v{T+1}, 2, v0\nv_cndmask_b32 v{T+7}, v{T}, v{T+1}, vcc")
    k("s_waitcnt lgkmcnt(0)")
    dR = k.srd(pW, W_BYTES); dI = k.srd(pW + 2, W_BYTES)
    RR = k.v(16); RI = k.v(16); P = k.v(32); XE = k.v(2)
    for r in range(16):
        k(f"s_and_b32 s{sT}, s{sRow}, 2047\ns_mul_i32 s{sO}, s{sT}, 1026\ns_add_u32 s{sRow}, s{sRow}, s{sStep}")
        k(f"buffer_load_dword v{RR+r}, v{vOff}, {sr(dR,4)}, s{sO} offen nt")
        k(f"buffer_load_dword v{RI+r}, v{vOff}, {sr(dI,4)}, s{sO} offen nt")
    k(f"s_xor_b32 s{sT}, s{sWh}, 1\ns_lshl_b32 s{sO}, s{sT}, 10")
    k(f"buffer_load_ushort v{XE}, v{vXo}, {sr(dR,4)}, s{sO} offen\nbuffer_load_ushort v{XE+1}, v{vXo}, {sr(dI,4)}, s{sO} offen")
    dB = k.srd(pWS, NSLOT * 16384, WS_WB); dX = k.srd(pWS, 10240, WS_WX); dMx = k.srd(pWS, 640, WS_WMAX)
    k(f"s_lshl_b32 s{sA}, s{sRho}, 6\ns_sub_i32 s{sA}, s{sA}, 31\ns_max_i32 s{sA}, s{sA}, 0\ns_lshl_b32 s{sA}, s{sA}, 14")
    k(f"s_lshl_b32 s{sB}, s{sWh}, 10\ns_add_u32 s{sA}, s{sA}, s{sB}\ns_lshl_b32 s{sB}, s{sK1}, 6\ns_add_u32 s{sA}, s{sA}, s{sB}")
    k(f"s_lshl_b32 s{sT}, s{sRho}, 11\ns_add_u32 s{sO}, s{sO}, s{sT}\ns_add_u32 s{sO}, s{sO}, s{sB}")
    sM7 = k.s(); vMx = k.v()
    k(f"s_mov_b32 s{sM7}, 0x7fff7fff")
    for q in range(4):
        k(f"s_waitcnt vmcnt({2 + 8*(3-q) + 2*q})")
        for r in range(4 * q, 4 * q + 4):
            k(f"v_perm_b32 v{P+r}, v{RI+r}, v{RR+r}, s{sP0}\nv_perm_b32 v{P+16+r}, v{RI+r}, v{RR+r}, s{sP1}")
        k(f"buffer_store_dwordx4 {vr(P+4*q,4)}, v{vSt}, {sr(dB,4)}, s{sA} offen offset:{16*q}")
        k(f"buffer_store_dwordx4 {vr(P+16+4*q,4)}, v{vSt}, {sr(dB,4)}, s{sA} offen offset:{2048+16*q}")
    k("s_waitcnt vmcnt(8)")
    k(f"v_lshl_or_b32 v{XE}, v{XE+1}, 16, v{XE}")
    k(f"buffer_store_dword v{XE}, v{T+7}, {sr(dX,4)}, s{sO} offen")
    k(f"v_and_b32 v{vMx}, s{sM7}, v{XE}")
    for r in range(32):
        k(f"v_and_b32 v{RR+r}, s{sM7}, v{RR+r}\nv_pk_max_u16 v{vMx}, v{vMx}, v{RR+r}")
    k(f"v_lshrrev_b32 v{T}, 16, v{vMx}\nv_and_b32 v{vMx}, 0xffff, v{vMx}\nv_max_u32 v{vMx}, v{vMx}, v{T}")
    wave_reduce(k, "v_max_u32", [vMx], [sA])
    k(f"s_lshl_b32 s{sT}, s{sWave}, 2\nv_mov_b32 v{T}, s{sT}\nv_mov_b32 v{vMx}, s{sA}\nds_write_b32 v{T}, v{vMx}")
    k("s_waitcnt lgkmcnt(0)\ns_barrier")
    k(f"s_cmp_lg_u32 s{sWave}, 0\ns_cbranch_scc1 K0_end")
    k(f"v_mov_b32 v{T}, 0\nds_read_b128 {vr(RR,4)}, v{T}\ns_lshl_b32 s{sT}, s{sJob}, 2\ns_waitcnt lgkmcnt(0)")
    k(f"v_max3_u32 v{RR}, v{RR}, v{RR+1}, v{RR+2}\nv_max_u32 v{RR}, v{RR}, v{RR+3}")
    k(f"buffer_store_dword v{RR}, v{T}, {sr(dMx,4)}, s{sT} offen")
    k.stamp_flush()
    k("s_endpgm")
    k.release(m)
    R = k.v(56); vOff = k.v(); sO = k.s(); sSign = k.s()
    def store(nq, base_off, soff=None, R0=R):
        d = k.srd(pWS, 0x100000, base_off)
        for q in range(nq):
            if q % 4 == 0 and q: k(f"v_add_u32 v{vOff}, 4096, v{vOff}")
            k(f"buffer_store_dwordx4 {vr(R0+4*q,4)}, v{vOff}, {sr(d,4)}, {'s%d' % soff if soff is not None else 0} offen offset:{1024*(q%4)}")
    k("K0_s0:")
    m = k.mark()
    sS0 = k.s()
    k(f"s_sub_u32 s{sS0}, s2, {G2}\ns_lshl_b32 s{sS0}, s{sS0}, 3\ns_add_u32 s{sS0}, s{sS0}, s{sWave}\ns_mov_b32 s{sSign}, 0x80008000")
    k(f"v_lshlrev_b32 v{vOff}, 4, v{vL}")
    tab_a_s0(k, vI, vG, T, R, sS0)
    k(f"s_lshl_b32 s{sO}, s{sS0}, 12\ns_waitcnt lgkmcnt(0)")
    store(4, WS_TAS, sO)
    tab_c_s0(k, vI, vG, T, R + 16, sS0, sSign)
    k(f"s_lshl_b32 s{sO}, s{sS0}, 11")
    store(2, WS_TCS, sO, R + 16)
    k("s_endpgm")
    k.release(m)
    k("K0_tab:")
    k(f"v_lshlrev_b32 v{vOff}, 4, v{vL}\ns_waitcnt lgkmcnt(0)")
    k(f"s_cmp_eq_u32 s2, 0\ns_cbranch_scc1 K0_tw_a\ns_cmp_eq_u32 s2, 1\ns_cbranch_scc1 K0_tw_c")
    k(f"s_cmp_lg_u32 s{sWave}, 0\ns_cbranch_scc1 K0_end")
    for j in range(3, G0): k(f"s_cmp_eq_u32 s2, {j}\ns_cbranch_scc1 K0_t{j}")
    m = k.mark()
    for i in range(4): k(f"v_mov_b32 v{R+i}, 0")
    d = k.srd(pWS, 0x10000, WS_FLAG)
    for q in range(16):
        if q % 4 == 0 and q: k(f"v_add_u32 v{vOff}, 4096, v{vOff}")
        k(f"buffer_store_dwordx4 {vr(R,4)}, v{vOff}, {sr(d,4)}, 0 offen offset:{1024*(q%4)}")
    k("s_endpgm"); k.release(m)
    for part in range(3):
        k(f"K0_t{3+part}:"); q0, n = tab_a_common(k, vI, vG, T, R, part); store(n, WS_TAC + 1024 * q0, None, R + 4 * q0); k("s_endpgm"); k.release(m)
        k(f"K0_t{6+part}:"); q0, n = tab_c_common(k, vI, vG, T, R, part); store(n, WS_TCC + 1024 * q0, None, R + 4 * q0); k("s_endpgm"); k.release(m)
    k("K0_t9:"); store(tab_b_common(k, vI, vG, T, R), WS_TBC); k("s_endpgm"); k.release(m)
    k("K0_tw_a:")
    n = tab_a_wave(k, vI, vG, T, R, sWave, sT); k(f"s_lshl_b32 s{sO}, s{sWave}, 11"); store(n, WS_TAW, sO); k("s_endpgm"); k.release(m)
    k("K0_tw_c:")
    n = tab_c_wave(k, vI, vG, T, R, sWave, sT); k(f"s_mul_i32 s{sO}, s{sWave}, 3072"); store(n, WS_TCW, sO); k.release(m)
    k("K0_end:\ns_endpgm")
    return k

def prefetch(k, specs, sWave, vDummy, T):
    for (koff, first, n) in specs:
        m = k.mark()
        p = k.s(2); sO = k.s()
        lab = f"PF{len(k.lines)}_{k.name}"
        nw = (n + 63) // 64
        if nw < 8: k(f"s_cmp_ge_u32 s{sWave}, {nw}\ns_cbranch_scc1 {lab}")
        k(f"s_load_dwordx2 {sr(p,2)}, s[0:1], {koff}")
        k(f"v_lshlrev_b32 v{T}, 7, v0\ns_mul_i32 s{sO}, s2, {n*128}\ns_add_u32 s{sO}, s{sO}, {first*128}")
        k("s_waitcnt lgkmcnt(0)")
        d = k.srd(p, min((first + 256 * n) * 128, 1024 * 3584 * 2))
        k(f"buffer_load_dword v{vDummy}, v{T}, {sr(d,4)}, s{sO} offen")
        if nw < 8: k(f"{lab}:")
        k.release(m)

def gen_a(pf=(), st_flags=""):
    TAB = 16640; MOD = TAB + 18 * 1024; MX = MOD + 8192
    k = Kern("fa_kernel", 256, 512, MX + 32)
    pX = k.s(2); pWS = k.s(2)
    k(f"s_cmp_ge_u32 s2, 256\ns_cbranch_scc1 A_end")
    k.stamp(True)
    k(f"s_load_dwordx2 {sr(pX,2)}, s[0:1], 0")
    k(f"s_load_dwordx2 {sr(pWS,2)}, s[0:1], 96")
    sMask = k.s(); sT = k.s(); sRow = k.s(); sJ = k.s(); sA = k.s(); sB = k.s()
    vL = k.v(); vOff = k.v(); vT16 = k.v(); T = k.v(8)
    k(f"v_lshrrev_b32 v{T}, 6, v0\nv_and_b32 v{vL}, 63, v0")
    k(f"v_readfirstlane_b32 s{sJ}, v{T}")
    k(f"v_lshlrev_b32 v{vOff}, 4, v{vL}\nv_lshlrev_b32 v{vT16}, 4, v0")
    k(f"s_mov_b32 s{sMask}, 0xffff0000")
    k(f"s_lshl_b32 s{sRow}, s{sJ}, 8\ns_add_u32 s{sRow}, s{sRow}, s2\ns_lshl_b32 s{sRow}, s{sRow}, 11")
    sQ0 = k.s(); sQ1 = k.s(); sS = k.s(); sL = k.s()
    k(f"s_lshl_b32 s{sL}, s{sJ}, 10\ns_add_u32 s{sQ0}, s{sL}, {WS_TAC}\ns_add_u32 s{sQ1}, s{sL}, {WS_TAC+8192}")
    k(f"s_lshl_b32 s{sS}, s2, 12\ns_add_u32 s{sS}, s{sS}, s{sL}\ns_add_u32 s{sT}, s{sS}, {WS_TAS-6*1024}")
    k(f"s_cmp_ge_u32 s{sJ}, 6\ns_cselect_b32 s{sQ1}, s{sT}, s{sQ1}\ns_add_u32 s{sS}, s{sS}, {WS_TAS+2048}")
    k("s_waitcnt lgkmcnt(0)")
    k.stamp_init2(1, pWS); k.stamp()
    dX = k.srd(pX, 2048 * 2048); dW = k.srd(pWS, WS_ZA)
    XP = k.v(8); MP = k.v(16); AD = k.v(8); WM = k.v(4)
    k(f"buffer_load_dwordx4 {vr(XP,4)}, v{vOff}, {sr(dX,4)}, s{sRow} offen nt")
    k(f"buffer_load_dwordx4 {vr(XP+4,4)}, v{vOff}, {sr(dX,4)}, s{sRow} offen offset:1024 nt")
    for p in range(4):
        k(f"s_mov_b32 s{sT}, {WS_MODP + p*24576}\nbuffer_load_dwordx4 {vr(MP+4*p,4)}, v{vT16}, {sr(dW,4)}, s{sT} offen")
    k(f"s_add_u32 m0, s{sL}, {TAB}\nbuffer_load_dwordx4 v{vOff}, {sr(dW,4)}, s{sQ0} offen lds")
    k(f"s_add_u32 m0, s{sL}, {TAB+8192}\nbuffer_load_dwordx4 v{vOff}, {sr(dW,4)}, s{sQ1} offen lds")
    k(f"s_lshl_b32 s{sT}, s{sJ}, 11\ns_add_u32 s{sT}, s{sT}, {WS_TAW}")
    k(f"buffer_load_dwordx4 {vr(AD,4)}, v{vOff}, {sr(dW,4)}, s{sT} offen\nbuffer_load_dwordx4 {vr(AD+4,4)}, v{vOff}, {sr(dW,4)}, s{sT} offen offset:1024")
    k(f"s_cmp_ge_u32 s{sJ}, 2\ns_cbranch_scc1 A_no3")
    k(f"s_add_u32 m0, s{sL}, {TAB+16384}\nbuffer_load_dwordx4 v{vOff}, {sr(dW,4)}, s{sS} offen lds")
    k("A_no3:")
    dMx = k.srd(pWS, 640, WS_WMAX)
    k(f"s_lshl_b32 s{sT}, s2, 3\ns_add_u32 s{sT}, s{sT}, s{sJ}\ns_cmp_lg_u32 s{sT}, 7\ns_cbranch_scc1 A_nomx")
    k(f"buffer_load_dwordx4 {vr(WM,4)}, v{vOff}, {sr(dMx,4)}, 0 offen")
    k("A_nomx:")
    dZ = k.srd(pWS, ZA_BYTES, WS_ZA)
    vW2 = AD; vSt = AD + 2; vR3 = AD + 4
    sBase = k.s(); sAdd = k.s(); sF = k.s(); sS0 = k.s()
    k(f"s_lshl_b32 s{sBase}, s{sJ}, 11\ns_lshr_b32 s{sT}, s{sJ}, 2\ns_lshl_b32 s{sT}, s{sT}, 6\ns_add_u32 s{sBase}, s{sBase}, s{sT}")
    k(f"s_cmp_ge_u32 s{sJ}, 4\ns_cselect_b32 s{sAdd}, 1.0, 0")
    k(f"s_lshl_b32 s{sF}, s2, 2\ns_and_b32 s{sF}, s{sF}, 48\ns_lshl_b32 s{sS0}, s2, 6")
    vW1 = k.v(); vR1 = k.v(); vMw = k.v(); vXw = k.v()
    k(f"v_add_u32 v{vW1}, s{sBase}, v{vOff}\nv_lshl_add_u32 v{vR1}, v{vL}, 2, s{sBase}")
    k(f"v_and_b32 v{T}, 1, v0\nv_lshlrev_b32 v{T}, 10, v{T}\nv_bfe_u32 v{T+1}, v0, 1, 6\nv_lshl_add_u32 v{T}, v{T+1}, 4, v{T}")
    k(f"s_lshr_b32 s{sT}, s{sJ}, 1\ns_lshl_b32 s{sT}, s{sT}, 11\ns_add_u32 s{sT}, s{sT}, {MOD}\nv_add_u32 v{vMw}, s{sT}, v{T}")
    k(f"s_lshl_b32 s{sT}, s{sJ}, 2\ns_add_u32 s{sT}, s{sT}, {MX}\nv_mov_b32 v{vXw}, s{sT}")
    X = k.v(16); vSum = k.v(); vMax = k.v(); vDum = k.v()
    k.stamp()
    k("s_waitcnt vmcnt(0)")
    k.stamp()
    unpack_bf16(k, X, XP, 8, sMask)
    for i in range(4): k(f"v_add_f32 v{MP+i}, v{MP+i}, v{MP+4+i}\nv_add_f32 v{MP+8+i}, v{MP+8+i}, v{MP+12+i}")
    k(f"v_add_f32 v{vSum}, v{X}, v{X+1}\nv_add_f32 v{T}, v{X+2}, v{X+3}")
    for i in range(4): k(f"v_add_f32 v{MP+i}, v{MP+i}, v{MP+8+i}")
    for i in range(2, 8): k(f"v_add_f32 v{vSum}, v{vSum}, v{X+2*i}\nv_add_f32 v{T}, v{T}, v{X+2*i+1}")
    k(f"v_add_f32 v{vSum}, v{vSum}, v{T}")
    def modfin(k):
        k(f"v_cvt_pk_bf16_f32 v{MP+4}, v{MP}, v{MP+1}\nv_cvt_pk_bf16_f32 v{MP+5}, v{MP+2}, v{MP+3}")
        unpack_bf16(k, MP, MP + 4, 2, sMask)
        for i in range(4): k(f"v_add_f32 v{MP+i}, s{sAdd}, v{MP+i}")
        k(f"v_cvt_pk_bf16_f32 v{MP+4}, v{MP}, v{MP+1}\nv_cvt_pk_bf16_f32 v{MP+5}, v{MP+2}, v{MP+3}")
        unpack_bf16(k, MP, MP + 4, 2, sMask)
        k(f"ds_write_b128 v{vMw}, {vr(MP,4)}")
        k(f"v_max3_f32 v{vMax}, abs(v{MP}), abs(v{MP+1}), abs(v{MP+2})\nv_max_f32 v{vMax}, abs(v{MP+3}), v{vMax}")
    sSum = k.s(); sMax = k.s()
    with_fill(k, cap(lambda t: wave_reduce(t, "v_add_f32", [vSum], [sSum])), cap(modfin), 3)
    vM = k.v(); vDl = k.v(); vE = k.v()
    def meanpart(k):
        k(f"v_mov_b32 v{vDl}, {fbits(1/1024)}\nv_mul_f32 v{vDl}, s{sSum}, v{vDl}\nv_mov_b32 v{vM}, v{vDl}")
        round_bf16(k, vM)
        k(f"v_sub_f32 v{vDl}, v{vDl}, v{vM}")
        for i in range(16): k(f"v_sub_f32 v{X+i}, v{X+i}, v{vM}")
    with_fill(k, cap(lambda t: wave_reduce(t, "v_max_f32", [vMax], [sMax])), cap(meanpart), 3)
    k(f"v_mov_b32 v{vMax}, s{sMax}\nds_write_b32 v{vXw}, v{vMax}")
    k(f"v_mul_f32 v{vSum}, v{X}, v{X}\nv_mul_f32 v{T}, v{X+1}, v{X+1}")
    for i in range(1, 8): k(f"v_fmac_f32 v{vSum}, v{X+2*i}, v{X+2*i}\nv_fmac_f32 v{T}, v{X+2*i+1}, v{X+2*i+1}")
    k(f"v_add_f32 v{vSum}, v{vSum}, v{T}")
    k("s_waitcnt lgkmcnt(0)\ns_barrier")
    SA = k.v(16); CA = k.v(16); F1 = k.v(32)
    k(f"v_mov_b32 v{T}, {MX}\nds_read_b128 {vr(MP,4)}, v{T}\nds_read_b128 {vr(MP+4,4)}, v{T} offset:16")
    for q in range(2):
        for h in range(2):
            k(f"ds_read_b128 {vr(CA+8*q+4*h,4)}, v{vOff} offset:{MOD+4096+2048*q+1024*h}")
    for q in range(2):
        for h in range(2):
            k(f"ds_read_b128 {vr(SA+8*q+4*h,4)}, v{vOff} offset:{MOD+2048*q+1024*h}")
    prefetch(k, pf, sJ, vDum, T + 4) if False else None
    wave_reduce(k, "v_add_f32", [vSum], [sSum])
    k("s_waitcnt lgkmcnt(8)")
    k(f"v_max3_f32 v{MP}, v{MP}, v{MP+1}, v{MP+2}\nv_max3_f32 v{MP+4}, v{MP+4}, v{MP+5}, v{MP+6}\nv_max3_f32 v{MP}, v{MP}, v{MP+3}, v{MP+7}\nv_max_f32 v{MP}, v{MP}, v{MP+4}")
    k(f"v_frexp_exp_i32_f32 v{vE}, v{MP}\nv_sub_u32 v{vE}, 3, v{vE}\nv_min_i32 v{vE}, 60, v{vE}\nv_max_i32 v{vE}, {(-100)&0xffffffff}, v{vE}")
    vR = k.v()
    def rpart(k):
        k(f"v_mov_b32 v{vR}, {fbits(1/1024)}\nv_mul_f32 v{vR}, s{sSum}, v{vR}\nv_fma_f32 v{vR}, -v{vDl}, v{vDl}, v{vR}\nv_max_f32 v{vR}, 0, v{vR}")
        round_bf16(k, vR)
        k(f"v_add_f32 v{vR}, {fbits(1e-5)}, v{vR}")
        round_bf16(k, vR)
        k(f"v_sqrt_f32 v{vR}, v{vR}")
        round_bf16(k, vR)
        k(f"v_rcp_f32 v{vR}, v{vR}")
        k(f"v_ldexp_f32 v{vR}, v{vR}, v{vE}")
    k("s_waitcnt lgkmcnt(0)")
    for q in range(8): k(f"ds_read_b128 {vr(F1+4*q,4)}, v{vOff} offset:{TAB+1024*q}")
    fill = [f"v_mul_f32 v{X+i}, v{X+i}, v{CA+i}" for i in range(16)] + [f"v_ldexp_f32 v{SA+i}, v{SA+i}, v{vE}" for i in range(16)]
    with_fill(k, cap(rpart), fill, 2)
    Z = XP
    for i in range(8):
        k(f"v_fma_f32 v{X+2*i}, v{X+2*i}, v{vR}, v{SA+2*i}\nv_fma_f32 v{X+2*i+1}, v{X+2*i+1}, v{vR}, v{SA+2*i+1}")
        k(f"v_cvt_pk_f16_f32 v{Z+i}, v{X+2*i}, v{X+2*i+1}")
        if i == 3: k(f"ds_write_b128 v{vW1}, {vr(Z,4)}")
    k(f"ds_write_b128 v{vW1}, {vr(Z+4,4)} offset:1024")
    k.stamp()
    OP = MP
    for h in range(4): k(f"ds_read2st64_b32 {vr(OP+2*h,2)}, v{vR1} offset0:{2*h} offset1:{2*h+1}")
    TW = CA; F2 = MP + 8
    for q in range(4): k(f"ds_read_b128 {vr(TW+4*q,4)}, v{vOff} offset:{TAB+8192+1024*q}")
    for q in range(2): k(f"ds_read_b128 {vr(F2+4*q,4)}, v{vOff} offset:{TAB+12288+1024*q}")
    def f1(ct, ks, ri): return F1 + ((ct * 2 + ks) * 2 + ri) * 4
    D1 = X
    k("s_waitcnt lgkmcnt(8)")
    for ct in range(2):
        for ri in range(2): k(f"{MF} {vr(D1+(ct*2+ri)*4,4)}, {vr(OP,4)}, {vr(f1(ct,0,ri),4)}, 0")
    k("s_waitcnt lgkmcnt(6)")
    for ct in range(2):
        for ri in range(2):
            d = D1 + (ct * 2 + ri) * 4
            k(f"{MF} {vr(d,4)}, {vr(OP+4,4)}, {vr(f1(ct,1,ri),4)}, {vr(d,4)}")
    k(f"v_xor_b32 v{vSt}, s{sF}, v{vSt}\nv_xor_b32 v{vSt+1}, s{sF}, v{vSt+1}")
    k("s_waitcnt lgkmcnt(0)")
    D2 = SA
    for ct in range(2):
        for v in range(4):
            re = D1 + ct * 8 + v; im = re + 4
            cmul_tw(k, re, im, TW + 4 * ct + v, TW + 8 + 4 * ct + v, False, T + v)
            k(f"v_cvt_pk_f16_f32 v{OP+4*ct+v}, v{re}, v{im}")
        k(f"{MF} {vr(D2+ct*8,4)}, {vr(OP+4*ct,4)}, {vr(F2,4)}, 0")
        k(f"{MF} {vr(D2+ct*8+4,4)}, {vr(OP+4*ct,4)}, {vr(F2+4,4)}, 0")
    F3 = CA
    for q in range(4): k(f"ds_read_b128 {vr(F3+4*q,4)}, v{vOff} offset:{TAB+14336+1024*q}")
    for ct in range(2):
        for v in range(4): k(f"v_cvt_pk_f16_f32 v{Z+4*ct+v}, v{D2+ct*8+v}, v{D2+ct*8+4+v}")
        k(f"ds_write_b128 v{vW2+ct}, {vr(Z+4*ct,4)}")
    k.stamp()
    k("s_waitcnt lgkmcnt(0)\ns_barrier")
    k.stamp()
    O3 = X
    for q in range(2):
        for x in range(2):
            d = O3 + (q * 2 + x) * 4
            k(f"ds_read2st64_b32 {vr(d,2)}, v{vR3+2*q+x} offset0:0 offset1:8")
            k(f"ds_read2st64_b32 {vr(d+2,2)}, v{vR3+2*q+x} offset0:16 offset1:24")
    D3 = F1
    for q in range(2):
        for x in range(2):
            k(f"s_waitcnt lgkmcnt({6-2*(2*q+x)})")
            for ri in range(2):
                d = D3 + ((q * 2 + x) * 2 + ri) * 4
                k(f"{MF} {vr(d,4)}, {vr(O3+(q*2+x)*4,4)}, {vr(F3+(x*2+ri)*4,4)}, 0")
    P = SA
    k(f"v_xor_b32 v{T}, 16, v{vSt}\nv_xor_b32 v{T+1}, 16, v{vSt+1}")
    for q in range(2):
        for v in range(4):
            for x in range(2):
                d = D3 + ((q * 2 + x) * 2) * 4 + v
                k(f"v_cvt_pk_f16_f32 v{P+8*q+2*v+x}, v{d}, v{d+4}")
            if v == 1: k(f"buffer_store_dwordx4 {vr(P+8*q,4)}, v{vSt+q}, {sr(dZ,4)}, s{sS0} offen {st_flags}")
        k(f"buffer_store_dwordx4 {vr(P+8*q+4,4)}, v{T+q}, {sr(dZ,4)}, s{sS0} offen {st_flags}")
    k(f"s_lshl_b32 s{sT}, s2, 3\ns_add_u32 s{sT}, s{sT}, s{sJ}\ns_cmp_lg_u32 s{sT}, 7\ns_cbranch_scc1 A_noscal")
    k(f"v_max3_u32 v{WM}, v{WM}, v{WM+1}, v{WM+2}\nv_max_u32 v{WM}, v{WM}, v{WM+3}")
    wave_reduce(k, "v_max_u32", [WM], [sA])
    k(f"s_lshr_b32 s{sA}, s{sA}, 7\ns_sub_i32 s{sA}, 125, s{sA}\ns_min_i32 s{sA}, s{sA}, 60\ns_max_i32 s{sA}, s{sA}, -100")
    k(f"v_mov_b32 v{WM}, v{vE}\nv_mov_b32 v{WM+1}, s{sA}\nv_mov_b32 v{T}, {WS_SCAL}")
    k(f"buffer_store_dwordx2 {vr(WM,2)}, v{T}, {sr(dW,4)}, 0 offen")
    k("A_noscal:")
    k.stamp()
    if k.prof: k("s_waitcnt vmcnt(0)")
    k.stamp_flush()
    k("A_end:\ns_endpgm")
    return k

def gen_b(st_flags=""):
    TAB = 16384; OUT = 24576
    NM = 264
    k = Kern("fb_kernel", NM + 256, 512, OUT + 16384)
    pCW = k.s(4); pWS = k.s(2)
    sSlot = k.s(); sT = k.s(); sRho = k.s(); sC = k.s()
    k.stamp(True)
    k(f"s_load_dwordx2 {sr(pWS,2)}, s[0:1], 96")
    k(f"s_cmp_ge_u32 s2, {NM+256}\ns_cbranch_scc1 B_end")
    vL, vI, vG, sU, T = lane_ids(k)
    k(f"s_cmp_ge_u32 s2, {NM}\ns_cbranch_scc1 B_side")
    k(f"s_and_b32 s{sSlot}, s2, 7\ns_mul_i32 s{sSlot}, s{sSlot}, 33\ns_lshr_b32 s{sT}, s2, 3\ns_add_u32 s{sSlot}, s{sSlot}, s{sT}")
    k(f"s_cmp_ge_u32 s{sSlot}, {NSLOT}\ns_cbranch_scc1 B_end")
    k(f"s_add_u32 s{sT}, s{sSlot}, 31\ns_lshr_b32 s{sRho}, s{sT}, 6\ns_and_b32 s{sC}, s{sT}, 63")
    k(f"s_cmp_lt_u32 s{sSlot}, 33\ns_cselect_b32 s{sC}, s{sSlot}, s{sC}")
    m0 = k.mark()
    vOff = k.v(); vWo = k.v()
    k(f"v_lshlrev_b32 v{vOff}, 4, v{vL}\nv_lshlrev_b32 v{vWo}, 6, v{vI}\nv_lshl_add_u32 v{vWo}, v{vG}, 4, v{vWo}")
    sO = k.s(); sL = k.s(); sSc = k.s(2)
    k(f"s_lshl_b32 s{sO}, s{sSlot}, 14\ns_lshl_b32 s{sL}, s{sU}, 11\ns_add_u32 s{sO}, s{sO}, s{sL}\ns_mov_b32 m0, s{sL}")
    k("s_waitcnt lgkmcnt(0)")
    k.stamp_init2(2, pWS); k.stamp()
    dZ = k.srd(pWS, ZA_BYTES, WS_ZA)
    k(f"buffer_load_dwordx4 v{vOff}, {sr(dZ,4)}, s{sO} offen lds")
    k(f"buffer_load_dwordx4 v{vOff}, {sr(dZ,4)}, s{sO} offen offset:1024 lds")
    dW = k.srd(pWS, WS_ZA)
    k(f"s_lshl_b32 s{sT}, s{sU}, 10\ns_add_u32 m0, s{sT}, {TAB}\ns_add_u32 s{sT}, s{sT}, {WS_TBC}")
    k(f"buffer_load_dwordx4 v{vOff}, {sr(dW,4)}, s{sT} offen lds")
    k(f"s_load_dwordx2 {sr(sSc,2)}, {sr(pWS,2)}, {WS_SCAL}")
    dB = k.srd(pWS, NSLOT * 16384, WS_WB)
    WP = k.v(8); WE = k.v(8)
    k(f"buffer_load_dwordx4 {vr(WP,4)}, v{vWo}, {sr(dB,4)}, s{sO} offen")
    k(f"buffer_load_dwordx4 {vr(WP+4,4)}, v{vWo}, {sr(dB,4)}, s{sO} offen offset:1024")
    dO = k.srd(pWS, ZB_BYTES, WS_ZB)
    vCp = k.v(); vSp = k.v()
    k(f"s_lshl_b32 s{sT}, s{sC}, 3\ns_add_u32 s{sT}, s{sT}, s{sU}\ns_add_u32 s{sT}, s{sT}, 256\nv_mov_b32 v{T}, s{sT}")
    sincos(k, vCp, vSp, T, 2048, T + 1)
    k(f"v_mul_f32 v{vCp}, {fbits(0.25)}, v{vCp}\nv_mul_f32 v{vSp}, {fbits(0.25)}, v{vSp}")
    G = k.v(32)
    def g1(ks, o): return G + (ks * 4 + o) * 4
    for e2 in range(2):
        k(f"v_lshl_add_u32 v{T}, v{vG}, 1, {e2}\nv_mul_u32_u24 v{T}, v{T}, v{vI}")
        sincos(k, T + 1, T + 2, T, 16, T + 3)
        k(f"v_mul_f32 v{T+4}, v{vCp}, v{T+1}\nv_mul_f32 v{T+5}, v{vCp}, v{T+2}")
        k(f"v_mul_f32 v{T+6}, v{vSp}, v{T+1}\nv_mul_f32 v{T+7}, v{vSp}, v{T+2}")
        p1 = f"v{T+4}, v{T+5}"; p2 = f"-v{T+5}, v{T+4}"; p3 = f"v{T+7}, -v{T+6}"; p4 = f"v{T+6}, v{T+7}"
        for o, (pa, pb) in enumerate(((p1, p3), (p2, p4), (p3, p1), (p4, p2))):
            k(f"v_cvt_pk_f16_f32 v{g1(0,o)+2*e2}, {pa}\nv_cvt_pk_f16_f32 v{g1(0,o)+2*e2+1}, {pb}")
    sSign = k.s()
    k(f"s_mov_b32 s{sSign}, 0x80008000")
    k(f"v_and_b32 v{T}, 1, v{vI}\nv_mul_lo_u32 v{T}, v{T}, s{sSign}")
    for x in range(16): k(f"v_xor_b32 v{G+16+x}, v{T}, v{G+x}")
    vRd = k.v(); vWr = k.v(); vOr = k.v(); vOs = k.v()
    k(f"s_lshr_b32 s{sT}, s{sU}, 1")
    k(f"v_lshrrev_b32 v{T}, 2, v{vI}\nv_xor_b32 v{T}, s{sT}, v{T}\nv_lshlrev_b32 v{T}, 4, v{T}\nv_lshl_add_u32 v{T}, v{vI}, 6, v{T}")
    k(f"s_and_b32 s{sT}, s{sU}, 1\ns_lshl_b32 s{sT}, s{sT}, 3\nv_add_u32 v{T}, s{sT}, v{T}")
    k(f"v_lshl_add_u32 v{vRd}, v{vG}, 11, v{T}\nv_lshl_add_u32 v{vWr}, v{vG}, 12, v{T}")
    k(f"v_lshlrev_b32 v{vOr}, 4, v0")
    k(f"v_lshrrev_b32 v{T}, 2, v0\nv_mul_u32_u24 v{T}, {ZB_PITCH}, v{T}")
    k(f"v_lshrrev_b32 v{T+1}, 4, v0\nv_xor_b32 v{T+1}, v{T+1}, v0\nv_and_b32 v{T+1}, 3, v{T+1}\nv_lshl_add_u32 v{vOs}, v{T+1}, 4, v{T}")
    sMask = k.s(); sScale = k.s()
    k(f"s_mov_b32 s{sMask}, 0xffff0000")
    k.stamp()
    k("s_waitcnt vmcnt(2) lgkmcnt(0)\ns_barrier")
    k.stamp()
    OP = k.v(8); D = k.v(16); TB = k.v(24)
    for ks in range(2):
        for e2 in range(2): k(f"ds_read_b64 {vr(OP+4*ks+2*e2,2)}, v{vRd} offset:{(8*ks+e2)*1024}")
    for q in range(6): k(f"ds_read_b128 {vr(TB+4*q,4)}, v{vOff} offset:{TAB+1024*q}")
    TWC = TB; TWS = TB + 4; FR = TB + 8; FI = TB + 12; CR = TB + 16; CI = TB + 20
    k(f"s_add_u32 s{sScale}, s{sSc+1}, 127\ns_lshl_b32 s{sScale}, s{sScale}, 23")
    k(f"s_or_b32 s{sT}, s{sC}, s{sU}\ns_cmp_lg_u32 s{sT}, 0\ns_cbranch_scc1 B_nox")
    k(f"s_lshl_b32 s{sT}, s{sRho}, 11\ns_add_u32 s{sT}, s{sT}, {WS_WX}")
    k(f"buffer_load_dwordx4 {vr(WE,4)}, v{vWo}, {sr(dW,4)}, s{sT} offen\nbuffer_load_dwordx4 {vr(WE+4,4)}, v{vWo}, {sr(dW,4)}, s{sT} offen offset:1024")
    k("B_nox:")
    k("s_waitcnt lgkmcnt(8)")
    for o in range(4): k(f"{MF} {vr(D+4*o,4)}, {vr(OP,4)}, {vr(g1(0,o),4)}, 0")
    k("s_waitcnt lgkmcnt(6)")
    for o in range(4): k(f"{MF} {vr(D+4*o,4)}, {vr(OP+4,4)}, {vr(g1(1,o),4)}, {vr(D+4*o,4)}")
    k("s_waitcnt lgkmcnt(0)")
    HCS = T
    for w in range(2):
        for v in range(4):
            re = D + 8 * w + v; im = re + 4
            cmul_tw(k, re, im, TWC + v, TWS + v, False, T + v)
            k(f"v_cvt_pk_f16_f32 v{OP+4*w+v}, v{re}, v{im}")
        k(f"{MF} {vr(D+8*w,4)}, {vr(FR,4)}, {vr(OP+4*w,4)}, 0")
        k(f"{MF} {vr(D+8*w+4,4)}, {vr(FI,4)}, {vr(OP+4*w,4)}, 0")
    Wf = G; H = G + 16
    k("s_waitcnt vmcnt(0)")
    k.stamp()
    unpack_bf16(k, Wf, WP, 8, sMask)
    k(f"s_or_b32 s{sT}, s{sC}, s{sU}\ns_cmp_lg_u32 s{sT}, 0\ns_cbranch_scc1 B_nospec")
    unpack_bf16(k, H, WE, 8, sMask)
    for i in range(8): k(f"v_add_f32 v{Wf+2*i}, v{Wf+2*i}, v{H+2*i}\nv_sub_f32 v{Wf+2*i+1}, v{Wf+2*i+1}, v{H+2*i+1}")
    k(f"s_sub_u32 s{sScale}, s{sScale}, {1<<23}")
    k("B_nospec:")
    k(f"ds_read_b128 {vr(WE,4)}, v{vOff} offset:{TAB+6144}\nds_read_b128 {vr(WE+4,4)}, v{vOff} offset:{TAB+7168}")
    for i in range(16): k(f"v_mul_f32 v{Wf+i}, s{sScale}, v{Wf+i}")
    for w in range(2):
        for v in range(4):
            re = D + 8 * w + v; im = re + 4
            cmul_tw(k, re, im, Wf + 8 * w + 2 * v, Wf + 8 * w + 2 * v + 1, w == 0, T + v)
            k(f"v_cvt_pk_f16_f32 v{OP+4*w+v}, v{re}, v{im}")
        k(f"{MF} {vr(D+8*w,4)}, {vr(OP+4*w,4)}, {vr(CR,4)}, 0")
        k(f"{MF} {vr(D+8*w+4,4)}, {vr(OP+4*w,4)}, {vr(CI,4)}, 0")
    k("s_waitcnt lgkmcnt(0)")
    for v in range(4):
        k(f"v_mul_f32 v{T+4}, v{vCp}, v{WE+v}\nv_mul_f32 v{T+5}, v{vCp}, v{WE+4+v}\nv_mul_f32 v{T+6}, v{vSp}, v{WE+v}\nv_mul_f32 v{T+7}, v{vSp}, v{WE+4+v}")
        k(f"v_cvt_pk_f16_f32 v{H+v}, v{T+4}, -v{T+5}\nv_cvt_pk_f16_f32 v{H+4+v}, v{T+5}, v{T+4}")
        k(f"v_cvt_pk_f16_f32 v{H+8+v}, v{T+7}, v{T+6}\nv_cvt_pk_f16_f32 v{H+12+v}, -v{T+6}, v{T+7}")
    E = Wf
    for w in range(2):
        for v in range(4):
            re = D + 8 * w + v; im = re + 4
            cmul_tw(k, re, im, TWC + v, TWS + v, True, T + v)
            k(f"v_cvt_pk_f16_f32 v{OP+4*w+v}, v{re}, v{im}")
        for x in range(2):
            for ri in range(2):
                d = E + 8 * x + 4 * ri
                k(f"{MF} {vr(d,4)}, {vr(H+8*(x^w)+4*ri,4)}, {vr(OP+4*w,4)}, {vr(d,4) if w else 0}")
    P = WP
    for v in range(4):
        k(f"v_cvt_pk_f16_f32 v{P+2*v}, v{E+v}, v{E+4+v}\nv_cvt_pk_f16_f32 v{P+2*v+1}, v{E+8+v}, v{E+12+v}")
        k(f"ds_write_b64 v{vWr}, {vr(P+2*v,2)} offset:{OUT+v*1024}")
    k("s_waitcnt lgkmcnt(0)\ns_barrier")
    k.stamp()
    k(f"ds_read_b128 {vr(D,4)}, v{vOr} offset:{OUT}\nds_read_b128 {vr(D+4,4)}, v{vOr} offset:{OUT+8192}")
    k(f"s_lshl_b32 s{sO}, s{sSlot}, 6\ns_add_u32 s{sT}, s{sO}, {128*ZB_PITCH}")
    k("s_waitcnt lgkmcnt(1)")
    k(f"buffer_store_dwordx4 {vr(D,4)}, v{vOs}, {sr(dO,4)}, s{sO} offen {st_flags}")
    k("s_waitcnt lgkmcnt(0)")
    k(f"buffer_store_dwordx4 {vr(D+4,4)}, v{vOs}, {sr(dO,4)}, s{sT} offen {st_flags}")
    k.stamp()
    if k.prof: k("s_waitcnt vmcnt(0)")
    k.stamp_flush()
    k("s_endpgm")
    k.release(m0)
    k("B_side:")
    k(f"s_load_dwordx4 {sr(pCW,4)}, s[0:1], 64")
    k(f"s_sub_u32 s{sT}, s2, {NM}\ns_lshr_b32 s{sRho}, s{sT}, 2\ns_add_u32 s{sRho}, s{sRho}, 32\ns_and_b32 s{sC}, s{sT}, 3")
    gemv_job(k, pCW, pCW + 2, pWS, sRho, sC, vL, sU, T, "B_end")
    k("B_end:\ns_endpgm")
    return k

def gen_c(pf=(), st_flags=""):
    TAB = C_TB + 8 * C_TP; MOD = TAB + 16384; MV = 146 * 16
    k = Kern("fc_kernel", 256, 512, MOD + 8 * MV)
    k.s()
    pX = k.s(2); pWS = k.s(2)
    k(f"s_cmp_ge_u32 s2, 256\ns_cbranch_scc1 C_end")
    k("s_and_b32 s3, s2, 3\ns_lshl_b32 s3, s3, 6\ns_and_b32 s4, s2, 4\ns_lshl_b32 s4, s4, 3\ns_add_u32 s3, s3, s4\ns_lshr_b32 s2, s2, 3\ns_add_u32 s2, s2, s3")
    k.stamp(True)
    k(f"s_load_dwordx2 {sr(pX,2)}, s[0:1], 0")
    k(f"s_load_dwordx2 {sr(pWS,2)}, s[0:1], 96")
    vL, vI, vG, sJ, T = lane_ids(k)
    sMask = k.s(); sT = k.s(); sRow = k.s(); sO = k.s(); sL = k.s(); sQ = k.s()
    vOff = k.v(); vXo = k.v()
    k(f"v_lshlrev_b32 v{vOff}, 4, v{vL}\nv_lshlrev_b32 v{vXo}, 6, v{vI}\nv_lshl_add_u32 v{vXo}, v{vG}, 4, v{vXo}")
    k(f"s_mov_b32 s{sMask}, 0xffff0000")
    k(f"s_lshl_b32 s{sRow}, s{sJ}, 8\ns_add_u32 s{sRow}, s{sRow}, s2\ns_lshl_b32 s{sRow}, s{sRow}, 11")
    k(f"s_mul_i32 s{sO}, s2, {ZB_PITCH}\ns_lshl_b32 s{sL}, s{sJ}, 11")
    k(f"s_add_u32 s{sQ}, s{sL}, {WS_TCC}\ns_lshl_b32 s{sT}, s2, 11\ns_add_u32 s{sT}, s{sT}, {WS_TCS}\ns_cmp_eq_u32 s{sJ}, 7\ns_cselect_b32 s{sQ}, s{sT}, s{sQ}")
    k("s_waitcnt lgkmcnt(0)")
    k.stamp_init2(3, pWS); k.stamp()
    sSc = k.s(2)
    k(f"s_load_dwordx2 {sr(sSc,2)}, {sr(pWS,2)}, {WS_SCAL}")
    dZ = k.srd(pWS, ZB_BYTES, WS_ZB)
    k(f"s_cmp_lg_u32 s{sJ}, 0\ns_cbranch_scc1 C_no17")
    k(f"s_mov_b32 m0, 16384\ns_add_u32 s{sT}, s{sO}, 16384")
    k(f"buffer_load_dwordx4 v{vOff}, {sr(dZ,4)}, s{sT} offen lds")
    k("C_no17:")
    k(f"s_add_u32 s{sO}, s{sO}, s{sL}\ns_mov_b32 m0, s{sL}")
    k(f"buffer_load_dwordx4 v{vOff}, {sr(dZ,4)}, s{sO} offen lds")
    k(f"buffer_load_dwordx4 v{vOff}, {sr(dZ,4)}, s{sO} offen offset:1024 lds")
    dW = k.srd(pWS, WS_ZA)
    AD = k.v(12)
    k(f"s_add_u32 m0, s{sL}, {TAB}\ns_mul_i32 s{sT}, s{sJ}, 3072\ns_add_u32 s{sT}, s{sT}, {WS_TCW}")
    k(f"buffer_load_dwordx4 v{vOff}, {sr(dW,4)}, s{sQ} offen lds")
    k(f"buffer_load_dwordx4 v{vOff}, {sr(dW,4)}, s{sQ} offen offset:1024 lds")
    for q in range(3): k(f"buffer_load_dwordx4 {vr(AD+4*q,4)}, v{vOff}, {sr(dW,4)}, s{sT} offen offset:{1024*q}")
    vR1 = AD; vW1 = AD + 8; vR2 = AD + 10
    dM = k.srd(pWS, 4 * 24576, WS_MODP)
    k(f"s_lshr_b32 s{sT}, s{sJ}, 1\ns_cmp_eq_u32 s{sT}, 3\ns_cselect_b32 s{sT}, s2, 0\ns_cmp_lg_u32 s{sT}, 0\ns_cselect_b32 s{dM+2}, 0, s{dM+2}")
    MP = k.v(32); XP = k.v(8)
    for p in range(4):
        k(f"s_add_u32 s{sT}, s{sL}, {8192 + p*24576}")
        for h in range(2): k(f"buffer_load_dwordx4 {vr(MP+8*p+4*h,4)}, v{vOff}, {sr(dM,4)}, s{sT} offen offset:{1024*h}")
    dX = k.srd(pX, 2048 * 2048)
    k(f"buffer_load_dwordx4 {vr(XP,4)}, v{vXo}, {sr(dX,4)}, s{sRow} offen nt")
    k(f"buffer_load_dwordx4 {vr(XP+4,4)}, v{vXo}, {sr(dX,4)}, s{sRow} offen offset:1024 nt")
    dX1 = k.srd(pWS, 4 << 20, WS_X1); dY2 = k.srd(pWS, 4 << 20, WS_Y2)
    vMw = k.v(); vMr = k.v(); sAdd = k.s()
    k(f"v_and_b32 v{T}, 1, v{vL}\nv_mul_u32_u24 v{T}, 73, v{T}\nv_bfe_u32 v{T+1}, v{vL}, 1, 2\nv_mad_u32_u24 v{T}, v{T+1}, 18, v{T}")
    k(f"v_lshrrev_b32 v{T+1}, 3, v{vL}\nv_add_u32 v{T}, v{T}, v{T+1}\ns_mul_i32 s{sT}, s{sJ}, {MV}\ns_add_u32 s{sT}, s{sT}, {MOD}\nv_lshl_add_u32 v{vMw}, v{T}, 4, s{sT}")
    k(f"v_mad_u32_u24 v{T}, v{vG}, 18, v{vI}\nv_lshlrev_b32 v{vMr}, 4, v{T}\nv_add_u32 v{vMr}, {MOD}, v{vMr}")
    k(f"s_lshr_b32 s{sT}, s{sJ}, 1\ns_cmp_eq_u32 s{sT}, 2\ns_cselect_b32 s{sAdd}, 1.0, 0")
    sR = k.s()
    k(f"s_lshl_b32 s{sR}, s2, 3\ns_add_u32 s{sR}, s{sR}, s{sJ}\ns_lshl_b32 s{sR}, s{sR}, 11")
    k.stamp()
    k("s_waitcnt vmcnt(10) lgkmcnt(0)\ns_barrier")
    k.stamp()
    OP = k.v(8); D = k.v(16); F1 = k.v(8); TW = k.v(16); F3 = k.v(32); vDum = k.v()
    k(f"ds_read_b128 {vr(F1,4)}, v{vOff} offset:{TAB+14336}\nds_read_b128 {vr(F1+4,4)}, v{vOff} offset:{TAB+15360}")
    for x in range(8): k(f"ds_read_b32 v{OP+x}, v{vR1+x}")
    sE = k.s()
    k(f"s_add_i32 s{sE}, s{sSc}, s{sSc+1}\ns_sub_i32 s{sE}, 0, s{sE}")
    for q in range(2):
        k(f"s_waitcnt lgkmcnt({4-4*q})")
        k(f"{MF} {vr(D+8*q,4)}, {vr(OP+4*q,4)}, {vr(F1,4)}, 0")
        k(f"{MF} {vr(D+8*q+4,4)}, {vr(OP+4*q,4)}, {vr(F1+4,4)}, 0")
    for q in range(4): k(f"ds_read_b128 {vr(TW+4*q,4)}, v{vOff} offset:{TAB+2048+1024*q}")
    for q in range(2):
        for v in range(4): k(f"v_cvt_pk_f16_f32 v{OP+4*q+v}, v{D+8*q+v}, v{D+8*q+4+v}")
        k(f"ds_write_b128 v{vW1+q}, {vr(OP+4*q,4)}")
    F2 = F1
    k(f"ds_read_b128 {vr(F2,4)}, v{vOff} offset:{TAB}\nds_read_b128 {vr(F2+4,4)}, v{vOff} offset:{TAB+1024}")
    k("s_waitcnt vmcnt(2)")
    for i in range(8): k(f"v_add_f32 v{MP+i}, v{MP+i}, v{MP+8+i}\nv_add_f32 v{MP+16+i}, v{MP+16+i}, v{MP+24+i}")
    for i in range(8): k(f"v_add_f32 v{MP+i}, v{MP+i}, v{MP+16+i}")
    for i in range(4): k(f"v_cvt_pk_bf16_f32 v{MP+8+i}, v{MP+2*i}, v{MP+2*i+1}")
    unpack_bf16(k, MP, MP + 8, 4, sMask)
    for i in range(8): k(f"v_add_f32 v{MP+i}, s{sAdd}, v{MP+i}")
    for i in range(4): k(f"v_cvt_pk_bf16_f32 v{MP+8+i}, v{MP+2*i}, v{MP+2*i+1}")
    unpack_bf16(k, MP, MP + 8, 4, sMask)
    k(f"ds_write_b128 v{vMw}, {vr(MP,4)}\nds_write_b128 v{vMw}, {vr(MP+4,4)} offset:128")
    k(f"s_cmp_lt_u32 s{sJ}, 6\ns_cbranch_scc1 C_nogb\ns_cmp_lg_u32 s2, 0\ns_cbranch_scc1 C_nogb")
    k(f"s_lshl_b32 s{sT}, s{sJ}, 10\ns_add_u32 s{sT}, s{sT}, {WS_GB-6144}\nv_lshlrev_b32 v{T}, 3, v{vL}")
    k(f"buffer_store_dwordx2 {vr(MP+8,2)}, v{T}, {sr(dW,4)}, s{sT} offen\nbuffer_store_dwordx2 {vr(MP+10,2)}, v{T}, {sr(dW,4)}, s{sT} offen offset:512")
    k("C_nogb:")
    k("s_waitcnt lgkmcnt(0)\ns_barrier")
    for rt in range(2):
        k(f"ds_read2st64_b32 {vr(OP+4*rt,2)}, v{vR2+rt} offset0:0 offset1:2")
        k(f"ds_read2st64_b32 {vr(OP+4*rt+2,2)}, v{vR2+rt} offset0:4 offset1:6")
    for q in (0, 1, 4, 5, 2, 3, 6, 7): k(f"ds_read_b128 {vr(F3+4*q,4)}, v{vOff} offset:{TAB+6144+1024*q}")
    def f3(ct, rt, ri): return F3 + ((ct * 2 + rt) * 2 + ri) * 4
    for rt in range(2):
        k(f"s_waitcnt lgkmcnt({10-2*rt})")
        k(f"{MF} {vr(D+8*rt,4)}, {vr(OP+4*rt,4)}, {vr(F2,4)}, 0")
        k(f"{MF} {vr(D+8*rt+4,4)}, {vr(OP+4*rt,4)}, {vr(F2+4,4)}, 0")
    E = MP + 16
    X = MP
    k("s_waitcnt vmcnt(0)")
    unpack_bf16(k, X, XP, 8, sMask)
    k("s_waitcnt lgkmcnt(0)")
    for rt in range(2):
        for v in range(4):
            re = D + 8 * rt + v; im = re + 4
            cmul_tw(k, re, im, TW + 4 * rt + v, TW + 8 + 4 * rt + v, True, T + v)
            k(f"v_cvt_pk_f16_f32 v{OP+4*rt+v}, v{re}, v{im}")
        for ct in range(2):
            for ri in range(2):
                d = E + 8 * ct + 4 * ri
                k(f"{MF} {vr(d,4)}, {vr(OP+4*rt,4)}, {vr(f3(ct,rt,ri),4)}, {vr(d,4) if rt else 0}")
    GA = TW
    def mread(dst, vec):
        for ct in range(2):
            for h in range(2): k(f"ds_read_b128 {vr(dst+8*ct+4*h,4)}, v{vMr} offset:{(2*vec+ct)*MV + 73*16*h}")
    mread(GA, 0)
    SB = F3; CB = F3 + 16
    prefetch(k, pf, sJ, vDum, T + 4)
    k.stamp()
    def dreg(n): return E + 8 * (n >> 3) + 4 * (n & 1) + ((n & 7) >> 1)
    for n in range(16): k(f"v_ldexp_f32 v{dreg(n)}, v{dreg(n)}, s{sE}")
    mread(CB, 2); mread(SB, 1)
    for i in range(8): k(f"v_cvt_pk_bf16_f32 v{OP+i}, v{dreg(2*i)}, v{dreg(2*i+1)}")
    unpack_bf16(k, D, OP, 8, sMask)
    k("s_waitcnt lgkmcnt(8)")
    for n in range(16): k(f"v_mul_f32 v{D+n}, v{D+n}, v{GA+n}")
    for i in range(8): k(f"v_cvt_pk_bf16_f32 v{OP+i}, v{D+2*i}, v{D+2*i+1}")
    unpack_bf16(k, D, OP, 8, sMask)
    for n in range(16): k(f"v_add_f32 v{X+n}, v{X+n}, v{D+n}")
    for i in range(8): k(f"v_cvt_pk_bf16_f32 v{XP+i}, v{X+2*i}, v{X+2*i+1}")
    k(f"buffer_store_dwordx4 {vr(XP,4)}, v{vXo}, {sr(dX1,4)}, s{sR} offen {st_flags}")
    k(f"buffer_store_dwordx4 {vr(XP+4,4)}, v{vXo}, {sr(dX1,4)}, s{sR} offen offset:1024 {st_flags}")
    unpack_bf16(k, X, XP, 8, sMask)
    vSum = k.v(); vM = k.v(); vDl = k.v(); vR = k.v(); sSum = k.s()
    def layernorm(fill2):
        k(f"v_add_f32 v{vSum}, v{X}, v{X+1}\nv_add_f32 v{T}, v{X+2}, v{X+3}")
        for i in range(2, 8): k(f"v_add_f32 v{vSum}, v{vSum}, v{X+2*i}\nv_add_f32 v{T}, v{T}, v{X+2*i+1}")
        k(f"v_add_f32 v{vSum}, v{vSum}, v{T}")
        wave_reduce(k, "v_add_f32", [vSum], [sSum])
        k(f"v_mov_b32 v{vDl}, {fbits(1/1024)}\nv_mul_f32 v{vDl}, s{sSum}, v{vDl}\nv_mov_b32 v{vM}, v{vDl}")
        round_bf16(k, vM)
        k(f"v_sub_f32 v{vDl}, v{vDl}, v{vM}")
        for i in range(16): k(f"v_sub_f32 v{X+i}, v{X+i}, v{vM}")
        k(f"v_mul_f32 v{vSum}, v{X}, v{X}\nv_mul_f32 v{T}, v{X+1}, v{X+1}")
        for i in range(1, 8): k(f"v_fmac_f32 v{vSum}, v{X+2*i}, v{X+2*i}\nv_fmac_f32 v{T}, v{X+2*i+1}, v{X+2*i+1}")
        k(f"v_add_f32 v{vSum}, v{vSum}, v{T}")
        with_fill(k, cap(lambda t: wave_reduce(t, "v_add_f32", [vSum], [sSum])), fill2, 3)
        k(f"v_mov_b32 v{vR}, {fbits(1/1024)}\nv_mul_f32 v{vR}, s{sSum}, v{vR}")
        k(f"v_fma_f32 v{vR}, -v{vDl}, v{vDl}, v{vR}\nv_max_f32 v{vR}, 0, v{vR}")
        round_bf16(k, vR)
        k(f"v_add_f32 v{vR}, {fbits(1e-5)}, v{vR}")
        round_bf16(k, vR)
        k(f"v_sqrt_f32 v{vR}, v{vR}")
        round_bf16(k, vR)
        k(f"v_rcp_f32 v{vR}, v{vR}")
    k("s_waitcnt lgkmcnt(0)")
    k.stamp()
    layernorm([f"v_mul_f32 v{X+i}, v{X+i}, v{CB+i}" for i in range(16)])
    for i in range(16): k(f"v_fma_f32 v{X+i}, v{X+i}, v{vR}, v{SB+i}")
    for i in range(8): k(f"v_cvt_pk_bf16_f32 v{OP+i}, v{X+2*i}, v{X+2*i+1}")
    unpack_bf16(k, X, OP, 8, sMask)
    layernorm([])
    for i in range(16): k(f"v_mul_f32 v{X+i}, v{X+i}, v{vR}")
    for i in range(8): k(f"v_cvt_pk_bf16_f32 v{OP+i}, v{X+2*i}, v{X+2*i+1}")
    k(f"buffer_store_dwordx4 {vr(OP,4)}, v{vXo}, {sr(dY2,4)}, s{sR} offen {st_flags}")
    k(f"buffer_store_dwordx4 {vr(OP+4,4)}, v{vXo}, {sr(dY2,4)}, s{sR} offen offset:1024 {st_flags}")
    k.stamp()
    if k.prof: k("s_waitcnt vmcnt(0)")
    k.stamp_flush()
    k("C_end:\ns_endpgm")
    return k

def gen_pf():
    k = Kern("pf_kernel", 256, 512, 0)
    p1 = k.s(2); p2 = k.s(2)
    k(f"s_cmp_ge_u32 s2, 256\ns_cbranch_scc1 PF_end")
    k(f"s_load_dwordx2 {sr(p1,2)}, s[0:1], 32\ns_load_dwordx2 {sr(p2,2)}, s[0:1], 48")
    v = k.v(); X = k.v(32); sO = k.s()
    k(f"v_lshlrev_b32 v{v}, 4, v0\ns_mul_i32 s{sO}, s2, 28672\ns_waitcnt lgkmcnt(0)")
    d1 = k.srd(p1, 1024*3584*2); d2 = k.srd(p2, 1024*3584*2)
    for i in range(4):
        k(f"buffer_load_dwordx4 {vr(X+8*i,4)}, v{v}, {sr(d1,4)}, s{sO} offen")
        k(f"buffer_load_dwordx4 {vr(X+8*i+4,4)}, v{v}, {sr(d2,4)}, s{sO} offen")
        k(f"s_add_u32 s{sO}, s{sO}, 8192")
    k("s_waitcnt vmcnt(0)")
    k("PF_end:\ns_endpgm")
    return k
```

```python
from asmlib import *
from kern2 import *

MB = "v_mfma_f32_16x16x32_bf16"

def tile_map(k, mx, sMt, sNt, sT):
    lm = mx.bit_length() - 1
    gm = 16 // mx
    lgm = gm.bit_length() - 1
    k(f"s_and_b32 s{sMt}, s2, {gm-1}\ns_lshl_b32 s{sMt}, s{sMt}, {lm}")
    k(f"s_lshr_b32 s{sT}, s2, 3\ns_and_b32 s{sT}, s{sT}, {mx-1}\ns_add_u32 s{sMt}, s{sMt}, s{sT}")
    k(f"s_and_b32 s{sNt}, s2, 7\ns_lshr_b32 s{sNt}, s{sNt}, {lgm}\ns_lshl_b32 s{sNt}, s{sNt}, {5-lm}")
    k(f"s_lshr_b32 s{sT}, s2, {3+lm}\ns_add_u32 s{sNt}, s{sNt}, s{sT}")

def interleave(k, main, fill, start=0, every=1):
    fill = list(fill)
    for i, m in enumerate(main):
        k(m)
        if i >= start and (i - start) % every == 0 and fill:
            k(fill.pop(0))
    for f in fill: k(f)

def gen_g1(mx=8, noload=False, nomfma=False, noread=False):
    NS = 16; BUF = 45056; NB = 3
    k = Kern("g1_kernel", 256, 512, NB * BUF)
    pW = k.s(4); pWS = k.s(2)
    k(f"s_cmp_ge_u32 s2, 256\ns_cbranch_scc1 G1_end")
    k.stamp(True)
    k(f"s_load_dwordx4 {sr(pW,4)}, s[0:1], 32")
    k(f"s_load_dwordx2 {sr(pWS,2)}, s[0:1], 96")
    sW = k.s(); sT = k.s(); sMt = k.s(); sNt = k.s()
    vL = k.v(); vI = k.v(); vG = k.v()
    T = k.v(4)
    k(f"v_lshrrev_b32 v{T}, 6, v0\nv_and_b32 v{vL}, 63, v0")
    k(f"v_readfirstlane_b32 s{sW}, v{T}")
    k(f"v_and_b32 v{vI}, 15, v{vL}\nv_lshrrev_b32 v{vG}, 4, v{vL}")
    tile_map(k, mx, sMt, sNt, sT)
    k(f"s_cmp_ge_u32 s{sW}, 4\ns_cbranch_scc1 G1_loader")
    m0 = k.mark()
    sWm = k.s(); sWn = k.s()
    k(f"s_and_b32 s{sWm}, s{sW}, 1\ns_lshr_b32 s{sWn}, s{sW}, 1")
    vBo = k.v()
    k(f"v_lshlrev_b32 v{vBo}, 3, v{vG}")
    sB0 = k.s(); sB6 = k.s()
    k(f"s_mul_i32 s{sB0}, s{sNt}, 448\ns_lshl_b32 s{sT}, s{sWn}, 5\ns_add_u32 s{sB6}, s{sB0}, s{sT}\ns_mul_i32 s{sT}, s{sWn}, 192\ns_add_u32 s{sB0}, s{sB0}, s{sT}")
    k("s_waitcnt lgkmcnt(0)")
    k.stamp_init2(4, pWS); k.stamp()
    dB = k.srd(pW + 2, 3584 * 2); dH = k.srd(pWS, 2048 * 3584 * 2, WS_H)
    ACC = k.v(112); FR = [k.v(44), k.v(44)]
    BP = FR[1]
    BI = ACC + 84
    for t in range(7):
        if t < 6: k(f"buffer_load_dwordx2 {vr(BP+2*t,2)}, v{vBo}, {sr(dB,4)}, s{sB0} offen offset:{32*t}")
        else: k(f"buffer_load_dwordx2 {vr(BP+2*t,2)}, v{vBo}, {sr(dB,4)}, s{sB6} offen offset:{32*12}")
    def acc(t, mt): return ACC + (mt * 7 + t) * 4
    vY = k.v(2 * NB); vWa = k.v(3 * NB)
    k(f"v_lshrrev_b32 v{T}, 1, v{vI}\nv_xor_b32 v{T}, v{T}, v{vG}\nv_lshlrev_b32 v{T}, 4, v{T}\nv_lshl_add_u32 v{T}, v{vI}, 7, v{T}")
    k(f"s_lshl_b32 s{sT}, s{sWm}, 13\nv_add_u32 v{T}, s{sT}, v{T}")
    for b in range(NB):
        k(f"v_add_u32 v{vY+2*b}, {b*BUF}, v{T}\nv_xor_b32 v{vY+2*b+1}, 64, v{vY+2*b}")
    k(f"v_lshrrev_b32 v{T}, 2, v{vI}\nv_lshl_add_u32 v{T}, v{vG}, 3, v{T}\nv_mul_u32_u24 v{T}, 448, v{T}")
    k(f"v_and_b32 v{T+1}, 3, v{vI}\nv_lshl_add_u32 v{T}, v{T+1}, 3, v{T}")
    k(f"v_and_b32 v{T+1}, 1, v{vG}\nv_lshlrev_b32 v{T+1}, 5, v{T+1}")
    k(f"s_mul_i32 s{sT}, s{sWn}, 192\ns_add_u32 s{sT}, s{sT}, 16384")
    k(f"v_add_u32 v{T+2}, s{sT}, v{T}")
    for b in range(NB):
        k(f"v_add_u32 v{T+3}, {b*BUF}, v{T+2}")
        k(f"v_add_u32 v{vWa+3*b}, v{T+3}, v{T+1}\nv_sub_u32 v{vWa+3*b+1}, v{T+3}, v{T+1}")
    k(f"s_lshl_b32 s{sT}, s{sWn}, 5\nv_xor_b32 v{T+1}, s{sT}, v{T+1}\nv_add_u32 v{T+2}, v{T}, v{T+1}")
    for b in range(NB):
        k(f"v_add_u32 v{vWa+3*b+2}, {b*BUF+16384+12*32}, v{T+2}")
    assert BUF % 128 == 0
    vHo = k.v(); sH = k.s(); sH6 = k.s()
    k(f"v_lshlrev_b32 v{vHo}, 4, v{vL}")
    k(f"s_mul_i32 s{sH}, s{sMt}, {112*8192}\ns_mul_i32 s{sT}, s{sNt}, {7*8192}\ns_add_u32 s{sH}, s{sH}, s{sT}")
    k(f"s_lshl_b32 s{sT}, s{sWm}, 12\ns_add_u32 s{sH}, s{sH}, s{sT}")
    k(f"s_lshl_b32 s{sT}, s{sWn}, 3\ns_add_u32 s{sH6}, s{sH}, s{sT}\ns_add_u32 s{sH6}, s{sH6}, {6*8192}")
    k(f"s_mul_i32 s{sT}, s{sWn}, {3*8192}\ns_add_u32 s{sH}, s{sH}, s{sT}")
    sMask = k.s()
    k(f"s_mov_b32 s{sMask}, 0xffff0000")
    k("s_waitcnt vmcnt(0)")
    for t in range(7): unpack_bf16(k, acc(t, 3), BP + 2 * t, 2, sMask)
    def reads(s, ks, F):
        b = s % NB
        r = []
        yy = [f"ds_read_b128 {vr(F+28+4*mt,4)}, v{vY+2*b+ks} offset:{2048*mt}" for mt in range(4)]
        ww = []
        for t in range(7):
            a = vWa + 3 * b + (2 if t == 6 else (t & 1))
            off = (0 if t == 6 else 32 * t) + ks * 32 * 448
            ww.append(f"ds_read_b64_tr_b16 {vr(F+4*t,2)}, v{a} offset:{off}")
            ww.append(f"ds_read_b64_tr_b16 {vr(F+4*t+2,2)}, v{a} offset:{off+4*448}")
        return [] if noread else yy + ww
    def mfmas(F, first):
        r = []
        for mt in range(4):
            for t in range(7):
                c = vr(acc(t, 3), 4) if first else vr(acc(t, mt), 4)
                r.append(f"{MB} {vr(acc(t,mt),4)}, {vr(F+4*t,4)}, {vr(F+28+4*mt,4)}, {c}")
        return r[:2] if nomfma else r
    k.stamp()
    k("s_barrier")
    k.stamp()
    for l in reads(0, 0, FR[0]): k(l)
    for s in range(NS):
        k("s_waitcnt lgkmcnt(0)")
        interleave(k, mfmas(FR[0], s == 0), reads(s, 1, FR[1]))
        k("s_waitcnt lgkmcnt(0)")
        if s + 1 < NS:
            k("s_barrier")
            interleave(k, mfmas(FR[1], False), reads(s + 1, 0, FR[0]))
        else:
            for l in mfmas(FR[1], False): k(l)
    k.stamp()
    c1 = -2.0 * LOG2E * math.sqrt(2 / math.pi); c2 = c1 * 0.044715
    sC1 = k.s(); sC2 = k.s()
    k(f"s_mov_b32 s{sC1}, {fbits(c1)}\ns_mov_b32 s{sC2}, {fbits(c2)}")
    vC1 = k.v()
    k(f"v_mov_b32 v{vC1}, s{sC1}")
    E = FR[0]; P = FR[1]
    for mt in range(4):
        base = ACC + mt * 28
        for h in range(0, 28, 14):
            n = range(h, h + 14)
            for x in n: k(f"v_mul_f32 v{E+x}, v{base+x}, v{base+x}")
            for x in n: k(f"v_fma_f32 v{E+x}, v{E+x}, s{sC2}, v{vC1}")
            for x in n: k(f"v_mul_f32 v{E+x}, v{E+x}, v{base+x}")
            for x in n: k(f"v_exp_f32 v{E+x}, v{E+x}")
            for x in n: k(f"v_add_f32 v{E+x}, 1.0, v{E+x}")
            for x in n: k(f"v_rcp_f32 v{E+x}, v{E+x}")
            for x in n: k(f"v_mul_f32 v{E+x}, v{E+x}, v{base+x}")
        Q = P + 16 * (mt & 1)
        for x in range(14): k(f"v_cvt_pk_bf16_f32 v{Q+x}, v{E+2*x}, v{E+2*x+1}")
        for pr in range(3):
            k(f"s_add_u32 s{sT}, s{sH}, {pr*8192}")
            k(f"buffer_store_dwordx4 {vr(Q+4*pr,4)}, v{vHo}, {sr(dH,4)}, s{sT} offen offset:{1024*mt}")
        k(f"buffer_store_dwordx2 {vr(Q+12,2)}, v{vHo}, {sr(dH,4)}, s{sH6} offen offset:{1024*mt}")
    k.stamp()
    if k.prof: k("s_waitcnt vmcnt(0)")
    k.stamp_flush()
    k("s_endpgm")
    k.release(m0)
    k("G1_loader:")
    sLw = k.s(); sY = k.s(); sWo = k.s(); sYq = k.s(); sMy = k.s(); sMw = k.s()
    k(f"s_sub_u32 s{sLw}, s{sW}, 4")
    vYo = k.v(); vWo = k.v(7)
    k(f"s_and_b32 s{sT}, s{sLw}, 1\ns_lshl_b32 s{sT}, s{sT}, 2")
    k(f"v_add_u32 v{T}, s{sT}, v{vG}\nv_and_b32 v{T+1}, 7, v{vL}\nv_xor_b32 v{T}, v{T}, v{T+1}\nv_lshlrev_b32 v{T}, 4, v{T}")
    k(f"v_lshrrev_b32 v{T+1}, 3, v{vL}\nv_lshl_add_u32 v{vYo}, v{T+1}, 11, v{T}")
    for x in range(448): assert (x * 2341) >> 16 == x // 28
    for x in range(7):
        k(f"v_add_u32 v{T}, {64*x}, v{vL}\nv_mul_u32_u24 v{T+1}, 2341, v{T}\nv_lshrrev_b32 v{T+1}, 16, v{T+1}")
        k(f"v_mul_u32_u24 v{T+2}, 28, v{T+1}\nv_sub_u32 v{T}, v{T}, v{T+2}")
        k(f"v_lshrrev_b32 v{T+2}, 2, v{T+1}\nv_and_b32 v{T+2}, 2, v{T+2}\nv_xor_b32 v{T}, v{T}, v{T+2}")
        k(f"v_mul_u32_u24 v{T+1}, 7168, v{T+1}\nv_lshl_add_u32 v{vWo+x}, v{T}, 4, v{T+1}")
    k(f"s_lshl_b32 s{sY}, s{sMt}, 18\ns_lshl_b32 s{sT}, s{sLw}, 14\ns_add_u32 s{sY}, s{sY}, s{sT}")
    k(f"s_mul_i32 s{sWo}, s{sNt}, 448\ns_mul_i32 s{sT}, s{sLw}, {16*7168}\ns_add_u32 s{sWo}, s{sWo}, s{sT}")
    k(f"s_lshl_b32 s{sMy}, s{sLw}, 10\ns_mul_i32 s{sMw}, s{sLw}, 7168\ns_add_u32 s{sMw}, s{sMw}, 16384")
    k("s_waitcnt lgkmcnt(0)")
    dW = k.srd(pW, 1024 * 3584 * 2); dY = k.srd(pWS, 4 << 20, WS_Y2)
    def issue(s):
        b = s % NB
        if noload and s > 1: return
        for x in range(4):
            k(f"s_add_u32 m0, s{sMy}, {b*BUF + 4096*x}\ns_add_u32 s{sYq}, s{sY}, {65536*x + 128*s}")
            k(f"buffer_load_dwordx4 v{vYo}, {sr(dY,4)}, s{sYq} offen lds")
        k(f"s_add_u32 s{sYq}, s{sWo}, {64*7168*s}")
        for x in range(7):
            k(f"s_add_u32 m0, s{sMw}, {b*BUF + 1024*x}")
            k(f"buffer_load_dwordx4 v{vWo+x}, {sr(dW,4)}, s{sYq} offen lds")
    issue(0); issue(1)
    for s in range(NS):
        k(f"s_waitcnt vmcnt({11 if s + 1 < NS else 0})\ns_barrier")
        if s + 2 < NS: issue(s + 2)
    k("G1_end:\ns_endpgm")
    return k

def gen_g2(mx=4, PD=3, noload=False, nomfma=False):
    NX = 28; NSL = PD + 1
    k = Kern("g2_kernel", 256, 256, 96 * 1024)
    pW = k.s(4); pO = k.s(2); pWS = k.s(2)
    k(f"s_cmp_ge_u32 s2, 256\ns_cbranch_scc1 G2_end")
    k.stamp(True)
    k(f"s_load_dwordx4 {sr(pW,4)}, s[0:1], 48")
    k(f"s_load_dwordx2 {sr(pO,2)}, s[0:1], 80")
    k(f"s_load_dwordx2 {sr(pWS,2)}, s[0:1], 96")
    sW = k.s(); sT = k.s(); sMt = k.s(); sNt = k.s()
    vL = k.v(); vI = k.v(); vG = k.v(); T = k.v(4)
    k(f"v_lshrrev_b32 v{T}, 6, v0\nv_and_b32 v{vL}, 63, v0")
    k(f"v_readfirstlane_b32 s{sW}, v{T}")
    k(f"v_and_b32 v{vI}, 15, v{vL}\nv_lshrrev_b32 v{vG}, 4, v{vL}")
    tile_map(k, mx, sMt, sNt, sT)
    vHo = k.v(4); vWo = k.v(); vWr = k.v(2)
    for p in range(4):
        k(f"s_add_u32 s{sT}, s{sW}, {p}\ns_and_b32 s{sT}, s{sT}, 3\ns_lshl_b32 s{sT}, s{sT}, 11")
        k(f"v_lshl_add_u32 v{vHo+p}, v{vL}, 4, s{sT}")
    k(f"v_and_b32 v{T}, 1, v{vG}\nv_lshlrev_b32 v{T}, 2, v{T}\nv_and_b32 v{T+1}, 7, v{vL}\nv_xor_b32 v{T}, v{T}, v{T+1}\nv_lshlrev_b32 v{T}, 4, v{T}")
    k(f"v_lshrrev_b32 v{T+1}, 3, v{vL}\nv_lshl_add_u32 v{vWo}, v{T+1}, 11, v{T}")
    sLb = k.s()
    k(f"s_mul_i32 s{sLb}, s{sW}, {NSL*4096}")
    k(f"v_lshrrev_b32 v{T}, 2, v{vI}\nv_lshl_add_u32 v{T}, v{vG}, 2, v{T}\nv_lshlrev_b32 v{T}, 7, v{T}")
    k(f"v_and_b32 v{T+1}, 3, v{vI}\nv_lshl_add_u32 v{T}, v{T+1}, 4, v{T}")
    k(f"v_lshrrev_b32 v{T+1}, 3, v{vI}\nv_lshl_add_u32 v{T}, v{T+1}, 6, v{T}")
    k(f"v_add_u32 v{vWr}, s{sLb}, v{T}\nv_xor_b32 v{vWr+1}, 64, v{vWr}")
    sH = k.s(); sW2 = k.s(); sA = k.s(); sB = k.s()
    k(f"s_mul_i32 s{sH}, s{sMt}, {112*8192}\ns_lshl_b32 s{sT}, s{sW}, 13\ns_add_u32 s{sH}, s{sH}, s{sT}")
    k(f"s_lshl_b32 s{sW2}, s{sNt}, 7\ns_lshl_b32 s{sT}, s{sW}, 16\ns_add_u32 s{sW2}, s{sW2}, s{sT}")
    k("s_waitcnt lgkmcnt(0)")
    k.stamp_init2(5, pWS); k.stamp()
    dW = k.srd(pW, 3584 * 1024 * 2); dH = k.srd(pWS, 2048 * 3584 * 2, WS_H)
    HB = [k.v(32) for _ in range(PD)]
    WF = [k.v(16), k.v(16)]
    OWN = k.v(32)
    k.agpr = 96
    def acc(t, ms):
        if ms < 2: return vr(OWN + (ms * 4 + t) * 4, 4)
        return ar(((ms - 2) * 4 + t) * 4, 4)
    def h_loads(x):
        r = []
        for ms in range(8):
            pre = f"s_add_u32 s{sA}, s{sH}, {x*32768}\n" if ms == 0 else ""
            r.append(pre + f"buffer_load_dwordx4 {vr(HB[x%PD]+4*ms,4)}, v{vHo+(ms>>1)}, {sr(dH,4)}, s{sA} offen offset:{1024*(ms&1)}")
        return r
    def w_loads(x):
        r = []
        for q in range(4):
            r.append(f"s_add_u32 m0, s{sLb}, {(x%NSL)*4096 + 1024*q}\ns_add_u32 s{sB}, s{sW2}, {x*262144 + q*16384}\n"
                     f"buffer_load_dwordx4 v{vWo}, {sr(dW,4)}, s{sB} offen lds")
        return r
    def w_reads(x):
        r = []
        for t in range(4):
            for hf in range(2):
                r.append(f"ds_read_b64_tr_b16 {vr(WF[x&1]+4*t+2*hf,2)}, v{vWr+(t>>1)} offset:{(x%NSL)*4096 + hf*2048 + (t&1)*8}")
        return r
    for l in w_loads(0): k(l)
    for x in range(PD):
        for l in h_loads(x): k(l)
        for l in w_loads(x + 1): k(l)
    dB = k.srd(pW + 2, 2048); dM = k.srd(pWS, 2048, WS_GB); dX1 = k.srd(pWS, 4 << 20, WS_X1); dO = k.srd(pO, 4 << 20)
    k(f"s_waitcnt vmcnt({PD*12})")
    for l in w_reads(0): k(l)
    k.stamp()
    XP = k.v(16); GP = k.v(8); BP = k.v(8); vXo = k.v(); vOo = k.v(); vNo = k.v()
    sX = k.s(); sN = k.s(); sOo = k.s(); sGb = k.s()
    extra = 0
    for x in range(NX):
        young = 0
        for y in range(x - PD + 1, x):
            young += (8 if y + PD < NX else 0) + (4 if y + PD + 1 < NX else 0) + (8 if y == NX - PD else 0)
        k(f"s_waitcnt vmcnt({young}) lgkmcnt(0)")
        hl = h_loads(x + PD) if x + PD < NX else []
        wl = w_loads(x + PD + 1) if x + PD + 1 < NX else []
        wr = w_reads(x + 1) if x + 1 < NX else []
        if noload: hl = []; wl = []
        if x == NX - PD:
            k(f"v_lshlrev_b32 v{vNo}, 4, v{vG}\nv_lshl_add_u32 v{vXo}, v{vI}, 11, v{vNo}")
            k(f"s_lshl_b32 s{sN}, s{sNt}, 7\ns_lshl_b32 s{sX}, s{sMt}, 18\ns_lshl_b32 s{sT}, s{sW}, 16\ns_add_u32 s{sX}, s{sX}, s{sT}\ns_add_u32 s{sX}, s{sX}, s{sN}")
            k(f"s_add_u32 s{sT}, s{sX}, 32768\ns_mov_b32 s{sGb}, s{sN}")
            hl = [f"buffer_load_dwordx4 {vr(XP+8*ms+4*P,4)}, v{vXo}, {sr(dX1,4)}, s{sT if ms else sX} offen offset:{64*P}" for ms in range(2) for P in range(2)]
            hl += [f"buffer_load_dwordx4 {vr(GP+4*P,4)}, v{vNo}, {sr(dM,4)}, s{sGb} offen offset:{64*P}" for P in range(2)]
            hl += [f"buffer_load_dwordx4 {vr(BP+4*P,4)}, v{vNo}, {sr(dB,4)}, s{sN} offen offset:{64*P}" for P in range(2)]
        for ms in range(8):
            for t in range(4):
                c = "0" if x == 0 else acc(t, ms)
                if not (nomfma and x > 0 and t > 0): k(f"{MB} {acc(t,ms)}, {vr(WF[x&1]+4*t,4)}, {vr(HB[x%PD]+4*ms,4)}, {c}")
                if t == 0 and wr: k(wr.pop(0))
                if t == 1 and (ms & 1) and wl: k(wl.pop(0))
            if hl: k(hl.pop(0))
    k.stamp()
    vRw = k.v(3); vRr = k.v()
    for p in range(1, 4):
        k(f"s_add_u32 s{sT}, s{sW}, {p}\ns_and_b32 s{sT}, s{sT}, 3\ns_mul_i32 s{sT}, s{sT}, 24576\ns_add_u32 s{sT}, s{sT}, {(p-1)*8192}")
        k(f"v_lshl_add_u32 v{vRw+p-1}, v{vL}, 4, s{sT}")
    k(f"s_mul_i32 s{sT}, s{sW}, 24576\nv_lshl_add_u32 v{vRr}, v{vL}, 4, s{sT}")
    k("s_barrier")
    for p in range(1, 4):
        for q in range(8):
            k(f"ds_write_b128 v{vRw+p-1}, {ar(((p-1)*8+q)*4,4)} offset:{1024*q}")
    k(f"v_and_b32 v{T}, 7, v{vI}\nv_lshlrev_b32 v{T}, 19, v{T}\nv_lshrrev_b32 v{T+1}, 3, v{vI}\nv_lshl_add_u32 v{T}, v{T+1}, 11, v{T}\nv_add_u32 v{vOo}, v{T}, v{vNo}")
    k(f"s_lshl_b32 s{sOo}, s{sMt}, 15\ns_lshl_b32 s{sT}, s{sW}, 13\ns_add_u32 s{sOo}, s{sOo}, s{sT}\ns_add_u32 s{sOo}, s{sOo}, s{sN}")
    sMask = k.s()
    k(f"s_mov_b32 s{sMask}, 0xffff0000")
    GB = WF[0]; B2 = WF[1]
    k("s_waitcnt vmcnt(0)")
    unpack_bf16(k, GB, GP, 8, sMask); unpack_bf16(k, B2, BP, 8, sMask)
    for ms in range(2):
        for e in range(16): k(f"v_add_f32 v{OWN+16*ms+e}, v{OWN+16*ms+e}, v{B2+e}")
    k("s_waitcnt lgkmcnt(0)\ns_barrier")
    R = HB[0]
    assert PD >= 3
    for p in range(3):
        for q in range(8):
            k(f"ds_read_b128 {vr(HB[p]+4*q,4)}, v{vRr} offset:{p*8192+1024*q}")
    X = B2
    for p in range(3):
        k(f"s_waitcnt lgkmcnt({min(15, 16-8*p)})" if p < 2 else "s_waitcnt lgkmcnt(0)")
        if p == 0: k("s_waitcnt lgkmcnt(15)\ns_waitcnt lgkmcnt(8)") if False else None
        for e in range(32): k(f"v_add_f32 v{OWN+e}, v{OWN+e}, v{HB[p]+e}")
    for ms in range(2):
        unpack_bf16(k, X, XP + 8 * ms, 8, sMask)
        for e in range(16): k(f"v_fma_f32 v{X+e}, v{OWN+16*ms+e}, v{GB+e}, v{X+e}")
        for e in range(8): k(f"v_cvt_pk_bf16_f32 v{XP+8*ms+e}, v{X+2*e}, v{X+2*e+1}")
        if ms: k(f"s_add_u32 s{sOo}, s{sOo}, 4096")
        for P in range(2):
            k(f"buffer_store_dwordx4 {vr(XP+8*ms+4*P,4)}, v{vOo}, {sr(dO,4)}, s{sOo} offen offset:{64*P}")
    k.stamp()
    if k.prof: k("s_waitcnt vmcnt(0)")
    k.stamp_flush()
    k("G2_end:\ns_endpgm")
    return k
```

```python
import os
from final import *
import gemm2 as G
Kern.prof = 1
pre = lambda: [K.gen_pf(), K.gen_k0(), K.gen_a(), K.gen_b(), K.gen_c()]
make(f"v3.s", pre() + [G.gen_g1(), G.gen_g2()])
make(f"v3_nopf.s", pre() + [G.gen_g1(pfd=0), G.gen_g2(pfd=0)])
make(f"v3_sc1.s", pre() + [G.gen_g1(st_flags="sc1"), G.gen_g2(noload=True)])
make(f"v3_nomfma.s", pre() + [G.gen_g1(nomfma=True), G.gen_g2(nomfma=True)])
```

```python
import re, struct

TRANS = ("v_exp_f32", "v_log_f32", "v_rcp_f32", "v_rsq_f32", "v_sqrt_f32", "v_sin_f32", "v_cos_f32", "v_rcp_iflag_f32")
RMW = ("v_fmac_f32", "v_pk_fmac_f16", "v_dot2c_f32_bf16", "v_fmac_f16")

def fbits(x):
    return "0x%08x" % struct.unpack("<I", struct.pack("<f", x))[0]

_reg_re = re.compile(r"^(-|abs\(|\|)*([vsa])(\d+|\[(\d+):(\d+)\])\)?\|?$")
def parse_reg(tok):
    tok = tok.strip()
    if tok in ("vcc",): return ("s", 106, 107)
    if tok == "vcc_lo": return ("s", 106, 106)
    if tok == "vcc_hi": return ("s", 107, 107)
    if tok == "exec": return ("x", 0, 1)
    if tok == "m0": return ("m", 0, 0)
    m = _reg_re.match(tok)
    if not m: return None
    if m.group(4) is not None:
        return (m.group(2), int(m.group(4)), int(m.group(5)))
    return (m.group(2), int(m.group(3)), int(m.group(3)))

def regs(r):
    return [(r[0], i) for i in range(r[1], r[2] + 1)]

class Ins:
    def __init__(self, text):
        self.text = text
        t = text.split(";")[0].strip()
        self.label = t.endswith(":")
        self.directive = t.startswith(".")
        self.empty = (t == "")
        self.op = ""; self.dst = []; self.src = []
        self.ops = []
        if self.label or self.directive or self.empty: return
        parts = t.split(None, 1)
        self.op = parts[0]
        rest = parts[1] if len(parts) > 1 else ""
        toks = []; depth = 0; cur = ""
        for ch in rest:
            if ch in "[(": depth += 1
            if ch in "])": depth -= 1
            if ch == "," and depth == 0:
                toks.append(cur.strip()); cur = ""
            else: cur += ch
        if cur.strip(): toks.append(cur.strip())
        mods = ""
        if toks:
            sp = toks[-1].split(None, 1)
            toks[-1] = sp[0]
            mods = sp[1] if len(sp) > 1 else ""
        self.mods = mods
        self.ops = [parse_reg(x) for x in toks]
        op = self.op
        base = re.sub(r"_(e32|e64|dpp|sdwa)$", "", op)
        self.base = base
        self.is_mfma = op.startswith("v_mfma")
        self.is_valu = op.startswith("v_") and not self.is_mfma
        self.is_trans = base in TRANS
        self.is_dpp = self.is_valu and any(k in mods for k in ("row_", "quad_perm", "wave_"))
        self.is_vmem = op.startswith(("buffer_", "global_", "flat_"))
        self.is_ds = op.startswith("ds_")
        self.is_salu = op.startswith("s_")
        self.is_branch = op.startswith(("s_cbranch", "s_branch", "s_setpc", "s_swappc"))
        self.is_lds_dma = self.is_vmem and (" lds" in " " + mods or "load_lds" in op)
        R = [r for r in self.ops]
        def add(lst, r):
            if r is not None: lst.extend(regs(r))
        if self.is_mfma:
            add(self.dst, R[0]); add(self.src, R[1]); add(self.src, R[2]); add(self.src, R[3])
            self.passes = 8 if "32x32" in op else 4
        elif self.is_valu:
            if base.startswith("v_permlane") or base == "v_swap_b32":
                for r in R[:2]: add(self.dst, r); add(self.src, r)
            elif base in ("v_add_co_u32", "v_sub_co_u32", "v_subrev_co_u32", "v_addc_co_u32", "v_subb_co_u32", "v_mad_u64_u32"):
                add(self.dst, R[0]); add(self.dst, R[1])
                for r in R[2:]: add(self.src, r)
            elif base == "v_nop":
                pass
            else:
                add(self.dst, R[0])
                for r in R[1:]: add(self.src, r)
                if base in RMW or self.is_dpp or "sdwa" in op or base == "v_writelane_b32": add(self.src, R[0])
        elif self.is_vmem:
            if op.startswith(("buffer_inv", "buffer_wbl2")): pass
            elif self.is_lds_dma:
                for r in R: add(self.src, r)
                self.src.append(("m", 0))
            elif "_load" in op:
                add(self.dst, R[0])
                for r in R[1:]: add(self.src, r)
                if "d16" in op: add(self.src, R[0])
            elif "atomic" in op:
                for r in R: add(self.src, r)
                if "sc0" in mods: add(self.dst, R[0])
            else:
                for r in R: add(self.src, r)
                self.store_data = regs(R[0]) if op.startswith("buffer_") else regs(R[1])
                self.wide_store = ("x4" in op or "x3" in op)
        elif self.is_ds:
            if op.startswith(("ds_read", "ds_bpermute", "ds_permute", "ds_swizzle")):
                add(self.dst, R[0])
                for r in R[1:]: add(self.src, r)
                if "d16" in op: add(self.src, R[0])
            else:
                for r in R: add(self.src, r)
        elif self.is_salu:
            if op.startswith(("s_cmp", "s_cbranch", "s_branch", "s_waitcnt", "s_barrier", "s_nop", "s_endpgm", "s_setprio", "s_sleep", "s_bitcmp", "s_setreg")):
                for r in R: add(self.src, r)
            else:
                add(self.dst, R[0])
                for r in R[1:]: add(self.src, r)
                if "saveexec" in op: self.dst += [("x", 0), ("x", 1)]
    def states(self):
        if self.op == "s_nop":
            return int(self.text.split(";")[0].split()[1], 0) + 1
        return 1

def fix_hazards(lines):
    out = []
    pos = 0
    valu_v = {}; trans_v = {}; mfma_d = {}; valu_s = {}; m0w = [-99]; stdata = {}; mfma_c = {}
    nops = 0
    for text in lines:
        I = Ins(text)
        if I.label or I.directive or I.empty:
            out.append(text); continue
        need = 0
        def req(p, ws):
            nonlocal need
            need = max(need, p + ws + 1)
        if I.is_branch or I.op == "s_endpgm" and False:
            for d, ws in ((valu_v, 2), (valu_s, 5), (stdata, 2)):
                for p in d.values(): req(p, ws)
            for (p, passes, rng, op) in mfma_d.values(): req(p, 12 if passes == 8 else 8)
            req(m0w[0], 1)
        vsrc = [r for r in I.src if r[0] in "va"]
        vdst = [r for r in I.dst if r[0] in "va"]
        ssrc = [r for r in I.src if r[0] == "s"]
        if I.is_mfma:
            A = regs(I.ops[1]); B = regs(I.ops[2]); C = regs(I.ops[3]) if I.ops[3] else []
            for r in A + B + C:
                if r in valu_v: req(valu_v[r], 2)
            for r in A + B:
                if r in mfma_d:
                    p, passes, rng, op = mfma_d[r]; req(p, 12 if passes == 8 else 8)
            for r in C + vdst:
                if r in mfma_d:
                    p, passes, rng, op = mfma_d[r]
                    if I.ops[3] == rng and I.ops[0] == rng and op == I.op: pass
                    else: req(p, 10 if passes == 8 else 6)
        else:
            for r in vsrc + vdst:
                if r in mfma_d:
                    p, passes, rng, op = mfma_d[r]; req(p, 12 if passes == 8 else 8)
        if I.is_valu:
            for r in vdst:
                if r in mfma_c:
                    p, passes = mfma_c[r]; req(p, 7 if passes == 8 else 3)
                if r in stdata: req(stdata[r], 2)
            if not I.is_trans or True:
                for r in vsrc:
                    if r in trans_v and not I.is_trans: req(trans_v[r], 1)
            if I.is_dpp or I.base.startswith("v_permlane"):
                for r in vsrc:
                    if r in valu_v: req(valu_v[r], 2)
            if I.base in ("v_readlane_b32", "v_readfirstlane_b32"):
                for r in vsrc:
                    if r in valu_v: req(valu_v[r], 1)
                for r in ssrc:
                    if r in valu_s: req(valu_s[r], 4)
            if I.base == "v_writelane_b32":
                for r in ssrc:
                    if r in valu_s: req(valu_s[r], 4)
            for r in ssrc:
                if r in valu_s: req(valu_s[r], 2)
        if I.is_vmem or I.is_ds:
            for r in ssrc:
                if r in valu_s: req(valu_s[r], 5)
            for r in vsrc:
                if r in trans_v: req(trans_v[r], 1)
            for r in vdst:
                if r in stdata: req(stdata[r], 1)
            if I.is_lds_dma: req(m0w[0], 1)
        if I.is_salu:
            for r in ssrc:
                if r in valu_s: req(valu_s[r], 1)
        if need > pos:
            n = need - pos
            while n > 0:
                k = min(n, 16)
                out.append(f"s_nop {k-1}"); pos += k; n -= k; nops += k
        out.append(text)
        if I.is_mfma:
            for r in vdst:
                mfma_d[r] = (pos, I.passes, I.ops[0], I.op); valu_v.pop(r, None); trans_v.pop(r, None)
            if I.ops[3]:
                for r in regs(I.ops[3]): mfma_c[r] = (pos, I.passes)
        elif I.is_valu:
            for r in I.dst:
                if r[0] in "va":
                    valu_v[r] = pos; mfma_d.pop(r, None)
                    if I.is_trans: trans_v[r] = pos
                    else: trans_v.pop(r, None)
                elif r[0] == "s": valu_s[r] = pos
                elif r[0] == "x": raise Exception("VALU exec write not supported: " + text)
        else:
            for r in I.dst:
                if r[0] in "va":
                    valu_v.pop(r, None); trans_v.pop(r, None); mfma_d.pop(r, None)
                elif r[0] == "s": valu_s.pop(r, None)
                elif r[0] == "m": m0w[0] = pos
            if I.is_vmem and getattr(I, "wide_store", False):
                for r in I.store_data: stdata[r] = pos
        pos += I.states()
    return out, nops

class Kern:
    def __init__(self, name, grid, block, lds):
        self.name = name; self.grid = grid; self.block = block; self.lds = lds
        self.lines = []
        self.nv = 1; self.ns = 3
        self.maxv = 1; self.maxs = 3
        self.agpr = 0
    def __call__(self, text):
        for l in text.split("\n"):
            l = l.strip()
            if l: self.lines.append(l)
    def v(self, n=1, align=None):
        a = align or (1 if n == 1 else (2 if n == 2 else 4))
        self.nv = (self.nv + a - 1) // a * a
        r = self.nv; self.nv += n; self.maxv = max(self.maxv, self.nv)
        assert self.nv <= 256, "out of arch VGPRs"
        return r
    def s(self, n=1, align=None):
        a = align or (1 if n == 1 else (2 if n == 2 else 4))
        self.ns = (self.ns + a - 1) // a * a
        r = self.ns; self.ns += n; self.maxs = max(self.maxs, self.ns)
        assert self.ns <= 98, "out of SGPRs"
        return r
    prof = None
    def stamp_init(self, idx, pWS):
        if self.prof is None: return
        self._st = []; self._stidx = idx; self._pWS = pWS
    def stamp_init2(self, idx, pWS):
        self._stidx = idx; self._pWS = pWS
    def stampc(self):
        self.stamp(ins="s_memtime")
    stv = None
    only = None
    def stamp(self, early=False, ins="s_memrealtime", force=False):
        if self.prof is None: return
        if not hasattr(self, "_st"): self._st = []
        self._cnt = getattr(self, "_cnt", -1) + 1
        if self.only is not None and self._cnt not in self.only and not force: return
        self.maxs = 102
        if self.stv is not None and not early:
            self.maxv = max(self.maxv, self.stv + 1)
            self(f"{ins} s[100:101]\ns_waitcnt lgkmcnt(0)\nv_writelane_b32 v{self.stv}, s100, {len(self._st)}")
            self._st.append(None)
            return
        r = 100 - 2 * (len(self._st) + 1)
        assert r >= 66
        self._st.append(r)
        self(f"{ins} s[{r}:{r+1}]")
        if not early: self("s_waitcnt lgkmcnt(0)")
    def stamp_flush(self):
        if self.prof is None: return
        self.stamp(force=True)
        d = 60
        off = (64 << 20) + self._stidx * (1 << 20)
        self(f"s_add_u32 s{d}, s{self._pWS}, {off}\ns_addc_u32 s{d+1}, s{self._pWS+1}, 0\ns_mov_b32 s{d+2}, 0x100000\ns_mov_b32 s{d+3}, 0x20000")
        self(f"v_lshrrev_b32 v1, 6, v0\nv_lshlrev_b32 v1, 7, v1\ns_lshl_b32 s64, s2, 11")
        for i, r in enumerate(self._st):
            if r is None: self(f"v_readlane_b32 s100, v{self.stv}, {i}"); r = 100
            self(f"v_mov_b32 v2, s{r}\nbuffer_store_dword v2, v1, s[{d}:{d+3}], s64 offen offset:{4*i}")
    def mark(self): return (self.nv, self.ns)
    def release(self, m): self.nv, self.ns = m
    def srd(self, ptr, nbytes, off=0):
        d = self.s(4)
        if off:
            self(f"s_add_u32 s{d}, s{ptr}, {off}\ns_addc_u32 s{d+1}, s{ptr+1}, 0")
        else:
            self(f"s_mov_b32 s{d}, s{ptr}\ns_mov_b32 s{d+1}, s{ptr+1}")
        self(f"s_mov_b32 s{d+2}, {nbytes}\ns_mov_b32 s{d+3}, 0x20000")
        return d
    def text(self):
        body, nops = fix_hazards(self.lines)
        self.nops = nops
        o = [f".p2align 8", f".globl {self.name}", f".type {self.name},@function", f"{self.name}:"]
        o += [("" if l.endswith(":") else "  ") + l for l in body]
        return "\n".join(o)
    def desc(self):
        acc = (self.maxv + 3) // 4 * 4
        nfv = acc + self.agpr if self.agpr else self.maxv
        return f""".p2align 6
.amdhsa_kernel {self.name}
  .amdhsa_next_free_vgpr {nfv}
  .amdhsa_next_free_sgpr {max(self.maxs, 16)}
  .amdhsa_accum_offset {acc}
  .amdhsa_group_segment_fixed_size 0
  .amdhsa_kernarg_size 104
  .amdhsa_user_sgpr_count 2
  .amdhsa_user_sgpr_kernarg_segment_ptr 1
  .amdhsa_system_sgpr_workgroup_id_x 1
.end_amdhsa_kernel"""
    def launch(self):
        return f"; @launch kernel={self.name} grid=({self.grid},1,1) block=({self.block},1,1) lds={self.lds}"

def vr(a, n): return f"v[{a}:{a+n-1}]" if n > 1 else f"v{a}"
def sr(a, n): return f"s[{a}:{a+n-1}]" if n > 1 else f"s{a}"
def ar(a, n): return f"a[{a}:{a+n-1}]" if n > 1 else f"a{a}"

def assemble_file(kerns, header="", order=None):
    order = order or kerns
    o = [header.rstrip()] if header else []
    o += [k.launch() for k in order]
    o.append('.amdgcn_target "amdgcn-amd-amdhsa--gfx950"')
    o.append(".text")
    for k in kerns: o.append(k.text())
    o.append("CODE_END:\n  s_endpgm")
    o.append('.section .rodata,"a"')
    for k in kerns: o.append(k.desc())
    return "\n".join(o) + "\n"
```

```python
import os, sys, io, contextlib
from asmlib import *
from final import header
import uni as U
def mk(n, **kw):
    ks = [U.gen_uni(**kw)]
    for k in ks: k.lines = [l.replace(" nt", "").replace(" NT", " nt") for l in k.lines]
    txt = assemble_file(ks, header())
    open(f"dev/{n}.s", "w").write(txt)
    for k in ks: print(k.name, "vgpr", k.maxv, "sgpr", k.maxs, "instr", len(k.lines), "nops", k.nops)
if __name__ == "__main__":
    mk("u1")
    Kern.prof = 1
    mk("u1p")
```

```python
from asmlib import *
from kern4 import *
MB = "v_mfma_f32_16x16x32_bf16"
CLK = False

def tile_map(k, mx, sMt, sNt, sT):
    lm = mx.bit_length() - 1
    gm = 16 // mx
    lgm = gm.bit_length() - 1
    k(f"s_and_b32 s{sMt}, s2, {gm-1}\ns_lshl_b32 s{sMt}, s{sMt}, {lm}")
    k(f"s_lshr_b32 s{sT}, s2, 3\ns_and_b32 s{sT}, s{sT}, {mx-1}\ns_add_u32 s{sMt}, s{sMt}, s{sT}")
    k(f"s_and_b32 s{sNt}, s2, 7\ns_lshr_b32 s{sNt}, s{sNt}, {lgm}\ns_lshl_b32 s{sNt}, s{sNt}, {5-lm}")
    k(f"s_lshr_b32 s{sT}, s2, {3+lm}\ns_add_u32 s{sNt}, s{sNt}, s{sT}")

def interleave(k, main, fill, start=0, every=1):
    fill = list(fill)
    for i, m in enumerate(main):
        k(m)
        if i >= start and (i - start) % every == 0 and fill:
            k(fill.pop(0))
    for f in fill: k(f)


MXO = 0x5A000
FLB = 0xC0000
FLC = 32768
FLH = 65536

def spread(k, lines, extra, every):
    extra = list(extra)
    for i, l in enumerate(lines):
        k(l)
        if (i + 1) % every == 0 and extra: k(extra.pop(0))
    for e in extra: k(e)

POLLMODE = ("NT", "NT", "NT", "sc1")
def poll(k, name, dF, sOff, vAddr, vTmp, n, val=1, slp=1, modes=("sc1",), cmp="ne"):
    k(f"{name}:")
    for m in modes:
        k(f"buffer_load_dword v{vTmp}, v{vAddr}, {sr(dF,4)}, s{sOff} offen {m}")
        k("s_waitcnt vmcnt(0)")
        k(f"v_cmp_{cmp}_u32 vcc, {val}, v{vTmp}")
        k(f"s_cbranch_vccz {name}_ok\ns_sleep {slp}")
    k(f"s_branch {name}\n{name}_ok:")

EP = [0]
def set_flag(k, dF, sOff, vL, vA, vB):
    k(f"v_and_b32 v{vA}, 31, v{vL}\nv_lshlrev_b32 v{vA}, 2, v{vA}\nv_mov_b32 v{vB}, s{EP[0]}")
    k(f"buffer_store_dword v{vB}, v{vA}, {sr(dF,4)}, s{sOff} offen sc1")

CLK = False
GSTAMP = False
def gen_uni(pw1=(0, 224), pfd=3, out_flags="sc1", npre=12, w2c=(0, 0), w1c=(0, 0), w2l=(0, 224), R1=(), noH=False, noW2=False, perm=True, noY=False, noW1=False, pfs=(8, 12), gat2="mid", pw1at="p0", pm=("sc1",), slp0=4, slpe=8, slp1=6, pre_slp=(0, 0), dbgwg=None, early=0, psp=(28, 0), prio=(0, 2), wsch=(3, 3, 1), mpf="", slpx=(0, 4), slpz=(-1, 8), slpa=(0, 8), fine=False, dbgwave=0):
    TAB = C_TB + 8 * C_TP; MOD = TAB + 16384; MV = C_MV
    pre_st = [0, 1, 2] + list(R1)
    dma_st = [s for s in range(16) if s not in pre_st]
    PI = {s: i for i, s in enumerate(dma_st + pre_st if perm else range(16))}
    WR0 = 65536; WSL = 28672; YSL = 16384
    k = Kern("uni_kernel", 256, 512, 163840)
    k.stv = 255
    pX = k.s(2); pWS = k.s(2); pA = k.s(8); pO = k.s(2)
    pW1 = pA; pB1 = pA + 2; pW2 = pA + 4; pB2 = pA + 6
    k(f"s_cmp_ge_u32 s2, 256\ns_cbranch_scc1 CG_end")
    k.stamp(True)
    PRE0 = len(k.lines)
    k(f"s_load_dwordx2 {sr(pX,2)}, s[0:1], 0")
    k(f"s_load_dwordx2 {sr(pWS,2)}, s[0:1], 96")
    k(f"s_load_dwordx8 {sr(pA,8)}, s[0:1], 32")
    k(f"s_load_dwordx2 {sr(pO,2)}, s[0:1], 80")
    vL, vI, vG, sW, T = lane_ids(k)
    sMask = k.s(); sT = k.s(); sMt = k.s(); sNt = k.s(); sWm = k.s(); sWn = k.s(); sWo = k.s(); sMw = k.s()
    vOff = k.v(); vWo = k.v(7)
    tile_map(k, 4, sMt, sNt, sT)
    k(f"s_and_b32 s{sWm}, s{sW}, 1\ns_bfe_u32 s{sWn}, s{sW}, 0x10001\ns_mov_b32 s{sMask}, 0xffff0000")
    k(f"v_lshlrev_b32 v{vOff}, 4, v{vL}")
    dW1 = k.s(4); dF = k.s(4); sEp = k.s()
    mC = k.mark()
    EP[0] = sEp
    sJ = sW
    sS0 = k.s(); sRow = k.s(); sE = k.s(); sCn = k.s(); dW = k.s(4); sIdx = k.s()
    k(f"s_lshr_b32 s{sIdx}, s2, 3")
    k(f"s_lshl_b32 s{sS0}, s{sMt}, 4\ns_add_u32 s{sS0}, s{sS0}, s{sNt}")
    k(f"s_lshl_b32 s{sRow}, s{sJ}, 8\ns_add_u32 s{sRow}, s{sRow}, s{sS0}\ns_lshl_b32 s{sRow}, s{sRow}, 11")
    mA = k.mark()
    AT = 16640; AM = AT + 18 * 1024; AX = AM + 8192
    BT = 151552; BLC = BT + 6144; BWL = 110592; BWX = BWL + 16384; BOUT = C_TB
    vOfA = k.v(); TGC = k.v(4); sLsb = k.s()
    WR = k.v(4); WI = k.v(4); vWw = k.v(); vCp = k.v(); vSp = k.v()
    sRho = k.s(); sC = k.s(); sSlot = k.s()
    mA2 = k.mark()
    GL = 0
    XP = k.v(8); MP = k.v(32); AD = k.v(8); SP = k.v(4); vWa = k.v(); sCol = k.s(); sHi = k.s()
    dR = k.s(4); dI = k.s(4); sOut = k.s(3, 1); dD = k.s(4)
    m00 = k.mark()
    dM = k.s(4); dC = k.s(4); sTm = k.s(2)
    sGo = k.s(3, 1); sCo = k.s(); sSt = k.s(); sRb = k.s(); sU = k.s(); sV = k.s()
    vGo = k.v(); vGc = k.v(); vGa = k.v()
    CV = k.v(2); EV = k.v(2); Wv = k.v(24); GA_ = k.v(8); R = k.v(16)
    slow = k.lines[PRE0:]; del k.lines[PRE0:]
    sl_loads = [l for l in slow if l.startswith("s_load")]; slow = [l for l in slow if not l.startswith("s_load")]
    for d, off in ((dM, 72), (dC, 64), (dD, 88)): k(f"s_load_dwordx2 {sr(d,2)}, s[0:1], {off}")
    k(f"s_memrealtime {sr(sTm,2)}")
    k(f"s_lshr_b32 s{sIdx}, s2, 3\nv_subrev_u32 v{R+4}, 448, v0\nv_min_u32 v{R+4}, 64, v{R+4}")
    code_pf(k, "PRE_A", "CODE_END", sIdx, R + 4, R + 6, R + 15)
    k("PRE_A:")
    k(f"v_lshrrev_b32 v{T+1}, 3, v0\nv_mul_u32_u24 v{vGo}, 12288, v{T+1}\nv_and_b32 v{T}, 7, v0\nv_lshl_add_u32 v{vGo}, v{T}, 4, v{vGo}\nv_lshlrev_b32 v{vGc}, 1, v{T+1}")
    k(f"s_and_b32 s{sSt}, s2, 31\ns_lshr_b32 s{sRb}, s2, 5\ns_mul_i32 s{sGo}, s{sRb}, {128*12288}\ns_lshl_b32 s{sT}, s{sSt}, 7\ns_add_u32 s{sGo}, s{sGo}, s{sT}\ns_lshl_b32 s{sCo}, s{sRb}, 8")
    for d, n in ((dC, 2048), (dM, 1024 * 6144 * 2), (dD, 256)): k(f"s_mov_b32 s{d+2}, {n}\ns_mov_b32 s{d+3}, 0x20000")
    def wl(g):
        k(f"buffer_load_dwordx4 {vr(Wv+8*g,4)}, v{vGo}, {sr(dM,4)}, s{sGo+g} offen\ns_add_u32 s{sGo+g}, s{sGo+g}, {64*12288}")
        k(f"buffer_load_dwordx4 {vr(Wv+8*g+4,4)}, v{vGo}, {sr(dM,4)}, s{sGo+g} offen")
    k(f"v_lshlrev_b32 v{R+1}, 2, v0\ns_cmp_lg_u32 s2, 0\ns_waitcnt lgkmcnt(0)\ns_cbranch_scc1 EP_np")
    k(f"s_or_b32 s{sEp}, s{sTm}, 1\ns_mul_i32 s{sEp}, s{sEp}, 0x9e3779b1\ns_lshr_b32 s{sT}, s{sEp}, 15\ns_xor_b32 s{sEp}, s{sEp}, s{sT}\ns_mul_i32 s{sEp}, s{sEp}, 0x85ebca6b\ns_lshr_b32 s{sT}, s{sEp}, 13\ns_xor_b32 s{sEp}, s{sEp}, s{sT}\nv_mov_b32 v{R}, s{sEp}\ns_movk_i32 s{dD+2}, 192\nbuffer_store_dword v{R}, v{R+1}, {sr(dD,4)}, 0 offen sc1\ns_movk_i32 s{dD+2}, 256\nEP_np:")
    for i in range(2): k(f"buffer_load_ushort v{CV+i}, v{vGc}, {sr(dC,4)}, s{sCo} offen offset:{128*i}")
    wl(0)
    if fine: k.stamp(force=True)
    for l in sl_loads: k(l)
    for d, off in ((dR, 8), (dI, 16)): k(f"s_load_dwordx2 {sr(d,2)}, s[0:1], {off}")
    for l in slow: k(l)
    for d, n in ((dR, W_BYTES), (dI, W_BYTES)): k(f"s_mov_b32 s{d+2}, {n}\ns_mov_b32 s{d+3}, 0x20000")
    k(f"v_add_u32 v{vOfA}, {A_BASE}, v{vOff}")
    k(f"s_lshl_b32 s{sOut}, s{sRb}, 13\ns_lshl_b32 s{sT}, s{sSt}, 8\ns_add_u32 s{sOut}, s{sOut}, s{sT}")
    for g in (1, 2):
        k(f"s_and_b32 s{sSt}, s2, 31\ns_lshl_b32 s{sSt}, s{sSt}, 1\ns_add_u32 s{sSt}, s{sSt}, {g-1}")
        k(f"s_lshl_b32 s{sOut+g}, s{sRb}, 14\ns_lshl_b32 s{sT}, s{sSt}, 8\ns_add_u32 s{sOut+g}, s{sOut+g}, s{sT}\ns_add_u32 s{sOut+g}, s{sOut+g}, {WS_MODQ}\ns_add_u32 s{sSt}, s{sSt}, 32")
        k(f"s_mul_i32 s{sGo+g}, s{sRb}, {128*12288}\ns_lshl_b32 s{sT}, s{sSt}, 7\ns_add_u32 s{sGo+g}, s{sGo+g}, s{sT}")
    k("s_waitcnt lgkmcnt(0)")
    k.stamp_init2(3, pWS)
    dX = k.srd(pX, 2048 * 2048)
    k(f"s_mov_b32 s{dW}, s{pWS}\ns_mov_b32 s{dW+1}, s{pWS+1}\ns_mov_b32 s{dW+2}, {WS_ZA}\ns_mov_b32 s{dW+3}, 0x20000")
    k(f"s_add_u32 s{dF}, s{pWS}, {WS_FLAG}\ns_addc_u32 s{dF+1}, s{pWS+1}, 0\ns_mov_b32 s{dF+2}, 0x100000\ns_mov_b32 s{dF+3}, 0x20000")
    if fine: k.stamp(force=True)
    k(f"buffer_load_dwordx4 {vr(XP,4)}, v{vOff}, {sr(dX,4)}, s{sRow} offen")
    k(f"buffer_load_dwordx4 {vr(XP+4,4)}, v{vOff}, {sr(dX,4)}, s{sRow} offen offset:1024\nv_mov_b32 v{R+9}, 0")
    if psp[0] and early:
        ne = (psp[0] * 8 + 6) // 7
        k(f"s_mov_b32 s{dW1}, s{pW1}\ns_mov_b32 s{dW1+1}, s{pW1+1}\ns_mov_b32 s{dW1+3}, 0x20000\ns_cmp_eq_u32 s{sW}, 0\ns_cselect_b32 s{dW1+2}, 0, {WBYTES}")
        k(f"s_mul_i32 s{sT}, s2, {psp[0]*8*128}\ns_mul_i32 s{sU}, s{sW}, {ne*128}\ns_add_u32 s{sT}, s{sT}, s{sU}\ns_sub_u32 s{sT}, s{sT}, {ne*128}\ns_max_i32 s{sT}, s{sT}, 0\nv_min_u32 v{T+7}, {ne-1}, v{vL}\nv_lshlrev_b32 v{T+7}, 7, v{T+7}")
        k(f"buffer_load_dword v{vSp}, v{T+7}, {sr(dW1,4)}, s{sT} offen")
    def tstore(q0, n, soff=None):
        for q in range(n): k(f"ds_write_b128 v{T+7}, {vr(R+4*q,4)} offset:{1024*(q0+q)}")
    k(f"s_cmp_ge_u32 s{sW}, 4\ns_cbranch_scc1 TA_hi")
    sg = 1 / math.sqrt(32)
    k(f"s_lshl_b32 s{sU}, s{sWm}, 4\ns_lshl_b32 s{sV}, s{sWn}, 4\nv_add_u32 v{T+4}, s{sV}, v{vI}\nv_add_u32 v{T+5}, s{sU}, v{vG}")
    k(f"s_lshl_b32 s{sT}, s{sW}, 11\ns_add_u32 s{sT}, s{sT}, {A_BASE+AT}\nv_add_u32 v{T+7}, s{sT}, v{vOff}")
    for e in range(4):
        k(f"v_add_u32 v{T}, {4*e}, v{T+5}\nv_mul_u32_u24 v{T}, v{T}, v{T+4}")
        sincos(k, T + 1, T + 2, T, 32, T + 3)
        k(f"v_mul_f32 v{T+1}, {fbits(sg)}, v{T+1}\nv_mul_f32 v{T+2}, {fbits(sg)}, v{T+2}")
        k(f"v_cvt_pk_f16_f32 v{R+e}, v{T+1}, v{T+2}\nv_cvt_pk_f16_f32 v{R+4+e}, -v{T+2}, v{T+1}")
    tstore(0, 2)
    k(f"s_cmp_lg_u32 s{sW}, 0\ns_cbranch_scc1 TA_done")
    k(f"s_and_b32 s{sU}, s2, 1\ns_lshl_b32 s{sU}, s{sU}, 7\nbuffer_load_dword v{R+8}, v{R+9}, {sr(dD,4)}, s{sU} offen sc1")
    k("s_branch TA_done\nTA_hi:")
    k(f"s_cmp_eq_u32 s{sW}, 5\ns_cbranch_scc1 TA_5\ns_cmp_eq_u32 s{sW}, 6\ns_cbranch_scc1 TA_6\ns_cmp_eq_u32 s{sW}, 7\ns_cbranch_scc1 TA_7")
    for ct in range(2):
        for v in range(4):
            k(f"v_lshl_add_u32 v{T}, v{vG}, 2, {v}\nv_add_u32 v{T+1}, {16*ct}, v{vI}\nv_mul_u32_u24 v{T}, v{T}, v{T+1}")
            sincos(k, R + 4 * ct + v, R + 8 + 4 * ct + v, T, 512, T + 3)
    k(f"v_add_u32 v{T+7}, {AT}, v{vOfA}"); tstore(8, 4)
    k("s_branch TA_done\nTA_5:")
    for v in range(4):
        k(f"v_lshl_add_u32 v{T}, v{vG}, 2, {v}\nv_mul_u32_u24 v{T}, v{T}, v{vI}")
        sincos(k, T + 1, T + 2, T, 16, T + 3)
        k(f"v_mul_f32 v{T+1}, {fbits(0.25)}, v{T+1}\nv_mul_f32 v{T+2}, {fbits(0.25)}, v{T+2}")
        k(f"v_cvt_pk_f16_f32 v{R+v}, v{T+1}, v{T+2}\nv_cvt_pk_f16_f32 v{R+4+v}, -v{T+2}, v{T+1}")
    k(f"v_add_u32 v{T+7}, {AT}, v{vOfA}"); tstore(12, 2)
    k("s_branch TA_done\nTA_6:")
    tab_a_s0(k, vI, vG, T, R, sS0)
    k(f"v_add_u32 v{T+7}, {AT}, v{vOfA}"); tstore(14, 4)
    k("s_branch TA_done\nTA_7:\ns_cmp_lg_u32 s2, 1\ns_cbranch_scc1 TA_done")
    for i in range(4): k(f"v_mov_b32 v{R+i}, 0")
    k(f"s_mov_b32 s{sT}, {WS_CNT-WS_FLAG}\ns_mov_b32 s{sU}, {MXO}")
    for q in range(4): k(f"buffer_store_dwordx4 {vr(R,4)}, v{vOff}, {sr(dF,4)}, s{sT} offen offset:{1024*q} sc1")
    for q in range(2): k(f"buffer_store_dwordx4 {vr(R,4)}, v{vOff}, {sr(dF,4)}, s{sU} offen offset:{1024*q} sc1")
    k("TA_done:")
    if fine: k.stamp(force=True)
    k(f"v_and_b32 v{T}, 7, v{vL}\nv_lshlrev_b32 v{T}, 5, v{T}\nv_lshl_add_u32 v{T}, v{vG}, 2, v{T}\ns_lshl_b32 s{sT}, s{sW}, 8\nv_add_u32 v{vGa}, s{sT}, v{T}")
    k(f"s_and_b32 s{sT}, s2, 7\ns_lshl_b32 s{sSlot}, s{sT}, 5\ns_add_u32 s{sT}, s{sT}, 1\ns_lshr_b32 s{sRho}, s{sT}, 1\ns_and_b32 s{sC}, s{sT}, 1\ns_lshl_b32 s{sC}, s{sC}, 5")
    k(f"s_cmp_eq_u32 s{sRho}, 0\ns_cselect_b32 s{sC}, 0, s{sC}\ns_lshr_b32 s{sT}, s2, 3\ns_add_u32 s{sC}, s{sC}, s{sT}\ns_add_u32 s{sSlot}, s{sSlot}, s{sT}")
    k(f"v_bfe_u32 v{T}, v0, 4, 4\nv_lshl_add_u32 v{T}, v{vI}, 4, v{T}\nv_lshl_add_u32 v{T+2}, v{T}, 3, s{sRho}")
    k(f"v_sub_u32 v{T+3}, 2048, v{T+2}\nv_and_b32 v{T+3}, 2047, v{T+3}")
    k(f"s_lshl_b32 s{sCol}, s{sC}, 4\ns_sub_u32 s{sT}, 1010, s{sCol}")
    k(f"s_cmp_ge_u32 s{sJ}, 4\ns_cselect_b32 s{sCol}, s{sT}, s{sCol}\ns_cselect_b64 vcc, -1, 0\ns_cselect_b32 s{sHi}, 1024, 0")
    k(f"v_cndmask_b32 v{T}, v{T+2}, v{T+3}, vcc\nv_mul_u32_u24 v{vWa}, 1026, v{T}")
    if fine: k.stamp(force=True)
    k(f"s_lshl_b32 s{sT}, s2, 3\ns_add_u32 s{sT}, s{sT}, s{sW}\ns_cmp_eq_u32 s{sT}, 15\ns_cbranch_scc1 W_z\ns_cmp_eq_u32 s{sW}, 0\ns_cbranch_scc1 W_e")
    k(f"s_waitcnt vmcnt({2+early})\nW_e:\ns_waitcnt vmcnt({3+early})\nW_z:\ns_waitcnt vmcnt({8+early})")
    if fine: k.stamp(force=True)
    for i in range(2): k(f"v_lshlrev_b32 v{CV+i}, 16, v{CV+i}\nv_mul_f32 v{EV+i}, {fbits(-LOG2E)}, v{CV+i}")
    for i in range(2): k(f"v_exp_f32 v{EV+i}, v{EV+i}")
    for i in range(2): k(f"v_add_f32 v{EV+i}, 1.0, v{EV+i}")
    for i in range(2): k(f"v_rcp_f32 v{EV+i}, v{EV+i}")
    for i in range(2): k(f"v_mul_f32 v{CV+i}, v{CV+i}, v{EV+i}")
    k(f"v_cvt_pk_bf16_f32 v{EV}, v{CV}, v{CV+1}")
    unpack_bf16(k, CV, EV, 1, sMask)
    def gacc(g):
        A = GA_
        for i in range(2):
            for q in range(4):
                t = T + 2 * (q & 1)
                k(f"v_lshlrev_b32 v{t}, 16, v{Wv+8*g+4*i+q}\nv_and_b32 v{t+1}, s{sMask}, v{Wv+8*g+4*i+q}")
                if i == 0: k(f"v_pk_mul_f32 {P2(A+2*q)}, {P2(t)}, {P2(CV)} op_sel_hi:[1,0]")
                else: k(f"v_pk_fma_f32 {P2(A+2*q)}, {P2(t)}, {P2(CV)}, {P2(A+2*q)} op_sel:[0,1,0] op_sel_hi:[1,1,1]")
        for q in range(4): k(f"v_permlane16_swap_b32 v{A+2*q}, v{A+2*q+1}")
        for q in range(4): k(f"v_add_f32 v{A+2*q}, v{A+2*q}, v{A+2*q+1}")
        k(f"v_permlane32_swap_b32 v{A}, v{A+2}\nv_permlane32_swap_b32 v{A+4}, v{A+6}")
        k(f"v_add_f32 v{A}, v{A}, v{A+2}\nv_add_f32 v{A+4}, v{A+4}, v{A+6}")
        k(f"v_add_f32_dpp v{A}, v{A}, v{A} row_ror:8 {DPPM}\nv_add_f32_dpp v{A+4}, v{A+4}, v{A+4} row_ror:8 {DPPM}")
        k(f"ds_write_b32 v{vGa}, v{A} offset:{GL+2048*g}\nds_write_b32 v{vGa}, v{A+4} offset:{GL+2048*g+16}")
    def gsum(g, dst):
        for i in range(4): k(f"ds_read2st64_b32 {vr(dst+2*i,2)}, v{T+6} offset0:{8*g+2*i} offset1:{8*g+2*i+1}")
    def gadd(dst):
        for n in (4, 2):
            for i in range(0, n, 2): k(f"v_pk_add_f32 {P2(dst+i)}, {P2(dst+i)}, {P2(dst+n+i)}")
        k(f"v_add_f32 v{dst}, v{dst}, v{dst+1}")
    def rest():
        wl(1); wl(2)
        if psp[0] and not early:
            k(f"s_mov_b32 s{dW1}, s{pW1}\ns_mov_b32 s{dW1+1}, s{pW1+1}\ns_mov_b32 s{dW1+2}, {WBYTES}\ns_mov_b32 s{dW1+3}, 0x20000")
            k(f"s_lshl_b32 s{sT}, s2, 3\ns_add_u32 s{sT}, s{sT}, s{sW}\ns_mul_i32 s{sT}, s{sT}, {psp[0]*128}\nv_min_u32 v{T+7}, {psp[0]-1}, v{vL}\nv_lshlrev_b32 v{T+7}, 7, v{T+7}")
            k(f"buffer_load_dword v{vSp}, v{T+7}, {sr(dW1,4)}, s{sT} offen")
        k(f"s_mul_i32 s{sT}, s2, 8208\nv_lshlrev_b32 v{T+7}, 4, v0")
        k(f"buffer_load_dwordx4 {vr(WR,4)}, v{T+7}, {sr(dR,4)}, s{sT} offen\nbuffer_load_dwordx4 {vr(WI,4)}, v{T+7}, {sr(dI,4)}, s{sT} offen")
    if fine: k.stamp(force=True)
    gacc(0)
    if fine: k.stamp(force=True)
    k("s_waitcnt lgkmcnt(0)\ns_barrier")
    k.stamp()
    k(f"s_cmp_lg_u32 s{sW}, 0\ns_cbranch_scc1 G0_nf")
    k(f"v_lshlrev_b32 v{T+6}, 2, v{vL}")
    gsum(0, R)
    k(f"v_lshlrev_b32 v{T}, 1, v{vL}\nv_and_b32 v{T}, 24, v{T}\nv_and_b32 v{T+1}, 3, v{vL}\nv_cmp_eq_u32 vcc, 0, v{T+1}\nv_mov_b32 v{T+1}, 0xff\nv_cndmask_b32 v{T+1}, 0, v{T+1}, vcc")
    k("s_waitcnt lgkmcnt(0)")
    gadd(R)
    k(f"s_waitcnt vmcnt(0)\nv_cmp_eq_u32 vcc, 0, v{R+8}\ns_cbranch_vccz EP_poll_ok")
    poll(k, "EP_poll", dD, sU, R + 9, R + 8, 1, 0, 2, ("sc1",), "eq")
    k(f"v_lshrrev_b32 v{T}, v{T}, v{R+8}\nv_bfi_b32 v{R}, v{T+1}, v{T}, v{R}")
    k(f"buffer_store_dword v{R}, v{T+6}, {sr(dW,4)}, s{sOut} offen sc1")
    k(f"v_mov_b32 v{R+9}, {GL+6144}\nds_write_b32 v{R+9}, v{R+8}")
    k("G0_nf:")
    if fine: k.stamp(force=True)
    k(f"s_lshl_b32 s{sT}, s2, 3\ns_add_u32 s{sT}, s{sT}, s{sW}\ns_cmp_lg_u32 s{sT}, 15\ns_cbranch_scc1 Z_np")
    k(f"v_lshlrev_b32 v{T}, 2, v{vI}\nv_mov_b32 v{T+1}, 1\ns_waitcnt vmcnt(0)\nbuffer_store_dword v{T+1}, v{T}, {sr(dD,4)}, 0 offen offset:192 sc1\nZ_np:")
    rest()
    tab_a_wave(k, vI, vG, T, AD, sW, sT)
    k(f"v_and_b32 v{T+2}, 7, v{vL}\nv_lshrrev_b32 v{T+3}, 3, v{vL}\nv_mul_u32_u24 v{SP+2}, 1026, v{T+2}\nv_lshl_add_u32 v{SP+2}, v{T+3}, 9, v{SP+2}\nv_lshlrev_b32 v{SP+3}, 10, v{vL}")
    k(f"v_lshl_add_u32 v{T+3}, v{T+2}, 1, 0\nv_add_u32 v{T+3}, 8192, v{T+3}\nv_cmp_gt_u32 vcc, 24, v{vL}\nv_cndmask_b32 v{SP+2}, v{T+3}, v{SP+2}, vcc\nv_mov_b32 v{T+2}, {OOB}\nv_cndmask_b32 v{SP+3}, v{T+2}, v{SP+3}, vcc")
    k(f"v_subrev_u32 v{T+3}, 384, v0\nv_cmp_gt_u32 vcc, 32, v{T+3}\nv_cndmask_b32 v{SP+2}, v{T+2}, v{SP+2}, vcc\nv_cndmask_b32 v{SP+3}, v{T+2}, v{SP+3}, vcc")
    k(f"s_mul_i32 s{sT}, s2, 8208\nbuffer_load_ushort v{SP}, v{SP+2}, {sr(dR,4)}, s{sT} offen\nbuffer_load_ushort v{SP+1}, v{SP+2}, {sr(dI,4)}, s{sT} offen")
    def cstore(q0, n):
        for q in range(n): k(f"ds_write_b128 v{T+7}, {vr(R+4*q,4)} offset:{TAB+1024*(q0+q)}")
    k(f"s_cmp_lt_u32 s{sW}, 4\ns_cbranch_scc1 TC_lo")
    sg = 1 / math.sqrt(32)
    k(f"s_lshl_b32 s{sU}, s{sWm}, 4\ns_lshl_b32 s{sV}, s{sWn}, 4\nv_add_u32 v{T+4}, s{sV}, v{vI}\nv_lshl_add_u32 v{T+5}, v{vG}, 2, s{sU}")
    k(f"s_and_b32 s{sT}, s{sW}, 3\ns_lshl_b32 s{sT}, s{sT}, 11\nv_add_u32 v{T+7}, s{sT}, v{vOff}")
    for v in range(4):
        k(f"v_add_u32 v{T}, {v}, v{T+5}\nv_mul_u32_u24 v{T}, v{T}, v{T+4}")
        sincos(k, T + 1, T + 2, T, 32, T + 3)
        k(f"v_mul_f32 v{T+1}, {fbits(sg)}, v{T+1}\nv_mul_f32 v{T+2}, {fbits(sg)}, v{T+2}")
        k(f"v_cvt_pk_f16_f32 v{R+v}, v{T+1}, -v{T+2}\nv_cvt_pk_f16_f32 v{R+4+v}, v{T+2}, v{T+1}")
    cstore(6, 2)
    k(f"s_branch TC_done\nTC_lo:\ns_cmp_lt_u32 s{sW}, 2\ns_cbranch_scc1 TC_done\ns_cmp_eq_u32 s{sW}, 3\ns_cbranch_scc1 TC_3")
    for rt in range(2):
        for v in range(4):
            k(f"v_lshl_add_u32 v{T}, v{vG}, 2, {16*rt+v}\nv_mul_u32_u24 v{T}, v{T}, v{vI}")
            sincos(k, R + 4 * rt + v, R + 8 + 4 * rt + v, T, 512, T + 3)
    k(f"v_mov_b32 v{T+7}, v{vOff}"); cstore(2, 4)
    k("s_branch TC_done\nTC_3:")
    k(f"s_mov_b32 s{sU}, 0x80008000")
    tab_c_s0(k, vI, vG, T, R, sS0, sU)
    k(f"v_mov_b32 v{T+7}, v{vOff}"); cstore(14, 2)
    for e in range(4):
        k(f"v_add_u32 v{T}, {4*e}, v{vG}\nv_mul_u32_u24 v{T}, v{T}, v{vI}")
        sincos(k, T + 1, T + 2, T, 16, T + 3)
        k(f"v_mul_f32 v{T+1}, {fbits(0.25)}, v{T+1}\nv_mul_f32 v{T+2}, {fbits(0.25)}, v{T+2}")
        k(f"v_cvt_pk_f16_f32 v{R+8+e}, v{T+1}, -v{T+2}\nv_cvt_pk_f16_f32 v{R+12+e}, v{T+2}, v{T+1}")
    for q in range(2): k(f"ds_write_b128 v{T+7}, {vr(R+8+4*q,4)} offset:{TAB+1024*q}")
    k("TC_done:")
    for x in range(7):
        k(f"v_add_u32 v{T}, {64*x}, v{vL}\nv_mul_u32_u24 v{T+1}, 2341, v{T}\nv_lshrrev_b32 v{T+1}, 16, v{T+1}")
        k(f"v_mul_u32_u24 v{T+2}, 28, v{T+1}\nv_sub_u32 v{T}, v{T}, v{T+2}")
        k(f"v_lshrrev_b32 v{T+2}, 2, v{T+1}\nv_and_b32 v{T+2}, 2, v{T+2}\nv_xor_b32 v{T}, v{T}, v{T+2}")
        k(f"v_mul_u32_u24 v{T+1}, 7168, v{T+1}\nv_lshl_add_u32 v{vWo+x}, v{T}, 4, v{T+1}")
    g12 = len(k.lines)
    k("s_waitcnt vmcnt(4)")
    gacc(1); gacc(2)
    g12l = k.lines[g12:]; del k.lines[g12:]
    nv0 = k.nv
    k.release(m00); k.nv = nv0
    dZ = k.srd(pWS, ZA_BYTES, WS_ZA)
    vR3 = AD; vSt = AD + 4
    sBase = k.s(); sAdd = k.s(); sF = k.s(); sZo = k.s()
    k(f"s_lshl_b32 s{sBase}, s{sJ}, 11\ns_lshr_b32 s{sT}, s{sJ}, 2\ns_lshl_b32 s{sT}, s{sT}, 6\ns_add_u32 s{sBase}, s{sBase}, s{sT}\ns_add_u32 s{sBase}, s{sBase}, {A_BASE}")
    k(f"s_cmp_ge_u32 s{sJ}, 4\ns_cselect_b32 s{sAdd}, 1.0, 0")
    k(f"s_lshl_b32 s{sF}, s{sS0}, 2\ns_and_b32 s{sF}, s{sF}, 48\ns_lshl_b32 s{sZo}, s{sS0}, 6")
    vW1 = k.v(); vR1 = k.v(); vMw = k.v(); vW2 = k.v(2)
    k(f"v_add_u32 v{vW1}, s{sBase}, v{vOff}\nv_lshl_add_u32 v{vR1}, v{vL}, 2, s{sBase}")
    k(f"v_and_b32 v{T}, 1, v0\nv_lshlrev_b32 v{T}, 10, v{T}\nv_bfe_u32 v{T+1}, v0, 1, 6\nv_lshl_add_u32 v{T}, v{T+1}, 4, v{T}")
    k(f"s_lshr_b32 s{sT}, s{sJ}, 1\ns_lshl_b32 s{sT}, s{sT}, 11\ns_add_u32 s{sT}, s{sT}, {A_BASE+AM}\nv_add_u32 v{vMw}, s{sT}, v{T}")
    k(f"v_and_b32 v{T+1}, 7, v{vL}\nv_xor_b32 v{T}, v{vG}, v{T+1}\nv_lshl_add_u32 v{T}, v{vI}, 3, v{T}")
    k(f"v_lshl_add_u32 v{vW2}, v{T}, 4, s{sBase}\nv_xor_b32 v{T}, 4, v{T}\nv_lshl_add_u32 v{vW2+1}, v{T}, 4, s{sBase}")
    k(f"s_mov_b32 s{dW1}, s{pW1}\ns_mov_b32 s{dW1+1}, s{pW1+1}\ns_mov_b32 s{dW1+2}, {WBYTES}\ns_mov_b32 s{dW1+3}, 0x20000")
    k(f"v_bfe_u32 v{T}, v0, 6, 2\nv_sub_u32 v{T}, 0, v{T}\nv_and_b32 v{T}, 3, v{T}\nv_lshlrev_b32 v{T}, 2, v{T}")
    k(f"v_and_b32 v{T+1}, 255, v0\nv_xor_b32 v{T}, v{T}, v{T+1}\nv_lshlrev_b32 v{T}, 2, v{T}")
    k(f"s_lshl_b32 s{sT}, s{sHi}, 3\ns_add_u32 s{sT}, s{sT}, {BWL}\nv_add_u32 v{vWw}, s{sT}, v{T}")
    vLc = k.v()
    k(f"v_subrev_u32 v{T}, 256, v0\nv_and_b32 v{T+1}, -5, v{T}\nv_cmp_eq_u32 vcc, 0, v{T+1}\nv_mov_b32 v{T+1}, {OOB>>1}\nv_cndmask_b32 v{vLc}, v{T+1}, v{T}, vcc")
    TGA = k.v(4); LCV = k.v(2)
    X = k.v(16); RC = k.v(2); vE = k.v(2); vMax = k.v()
    sP = k.s(2); sSum = k.s(2); sMax = k.s()
    k(f"s_waitcnt vmcnt({9 if psp[0] else 8})")
    unpack_bf16(k, X, XP, 8, sMask)
    k(f"s_cmp_lg_u32 s{sW}, 3\ns_cbranch_scc1 ZC_n\nv_mov_b32 v{T+4}, 0\nbuffer_load_dword v{vMax}, v{T+4}, {sr(dD,4)}, 0 offen offset:192 sc1\nZC_n:")
    ln_pk(k, X, T, RC, sP, sSum)
    sMw_ = k.s()
    k(f"s_waitcnt vmcnt(0)\ns_mov_b32 s{sCn}, 0x7fff7fff\nv_lshlrev_b32 v{T+7}, 4, v0")
    def mpl(fl="sc1"):
        for p in range(8):
            k(f"s_mov_b32 s{sT}, {WS_MODP + p*8192}\nbuffer_load_dwordx4 {vr(MP+4*p,4)}, v{T+7}, {sr(dW,4)}, s{sT} offen {fl}")
    k.stamp()
    mpl(mpf)
    for l in g12l[1:]: k(l)
    k(f"v_lshl_or_b32 v{SP}, v{SP+1}, 16, v{SP}\nv_and_b32 v{SP+1}, s{sCn}, v{SP}")
    for i in range(8): k(f"v_and_b32 v{WR+i}, s{sCn}, v{WR+i}\nv_pk_max_u16 v{SP+1}, v{SP+1}, v{WR+i}")
    k(f"v_lshrrev_b32 v{T}, 16, v{SP+1}\nv_and_b32 v{SP+1}, 0xffff, v{SP+1}\nv_max_u32 v{SP+1}, v{SP+1}, v{T}")
    wave_reduce(k, "v_max_u32", [SP + 1], [sMw_])
    k(f"s_lshl_b32 s{sT}, s{sW}, 2\ns_add_u32 s{sT}, s{sT}, {GL+6144+32}\nv_mov_b32 v{T}, s{sT}\nv_mov_b32 v{T+1}, s{sMw_}\nds_write_b32 v{T}, v{T+1}")
    k(f"s_lshl_b32 s{sT}, s2, 2\ns_add_u32 s{sT}, s{sT}, {WS_SPC}\nbuffer_store_dword v{SP}, v{SP+3}, {sr(dW,4)}, s{sT} offen sc1")
    k("s_waitcnt lgkmcnt(0)\ns_barrier")
    k(f"s_sub_u32 s{sT}, s{sW}, 1\ns_cmp_ge_u32 s{sT}, 2\ns_cbranch_scc1 G2_nf")
    k(f"s_cmp_eq_u32 s{sT}, 0\ns_cselect_b32 s{sCn}, s{sOut+1}, s{sOut+2}\ns_lshl_b32 s{sT}, s{sT}, 11\nv_lshlrev_b32 v{T+5}, 2, v{vL}\nv_add_u32 v{T+6}, s{sT}, v{T+5}")
    gsum(1, XP)
    k("s_waitcnt lgkmcnt(0)")
    gadd(XP)
    k(f"buffer_store_dword v{XP}, v{T+5}, {sr(dW,4)}, s{sCn} offen sc1\nG2_nf:")
    k(f"s_cmp_lg_u32 s{sW}, 3\ns_cbranch_scc1 G3_nf")
    k(f"v_cmp_ne_u32 vcc, 1, v{vMax}\ns_cbranch_vccz ZC_ok\ns_movk_i32 s{sT}, 192\nv_mov_b32 v{T}, 0")
    poll(k, "ZC", dD, sT, T, vMax, 1, 1, 4)
    k(f"v_mov_b32 v{T}, {GL+6144+32}\nds_read_b128 {vr(XP,4)}, v{T}\nds_read_b128 {vr(XP+4,4)}, v{T} offset:16\ns_waitcnt lgkmcnt(0)")
    k(f"v_max3_u32 v{XP}, v{XP}, v{XP+1}, v{XP+2}\nv_max3_u32 v{XP+4}, v{XP+4}, v{XP+5}, v{XP+6}\nv_max3_u32 v{XP}, v{XP}, v{XP+3}, v{XP+7}\nv_max_u32 v{XP}, v{XP}, v{XP+4}")
    k(f"s_and_b32 s{sT}, s2, 15\ns_lshl_b32 s{sT}, s{sT}, 7\ns_add_u32 s{sT}, s{sT}, {MXO}")
    k(f"v_cmp_eq_u32 vcc, 0, v{vL}\nv_mov_b32 v{T}, {OOB}\nv_cndmask_b32 v{T}, v{T}, 0, vcc")
    k(f"buffer_atomic_umax v{XP}, v{T}, {sr(dF,4)}, s{sT} offen sc1\nG3_nf:")
    k(f"v_mov_b32 v{T+5}, {GL+6144}\nds_read_b32 v{T+4}, v{T+5}\ns_waitcnt lgkmcnt(0)\nv_readfirstlane_b32 s{sEp}, v{T+4}")
    k(f"v_and_b32 v{T}, 1, v{vG}\nv_lshlrev_b32 v{T}, 3, v{T}\nv_lshrrev_b32 v{T+1}, 1, v{vG}\nv_lshl_add_u32 v{T}, v{T+1}, 2, v{T}\ns_lshr_b32 s{sT}, s{sF}, 2\nv_xor_b32 v{T}, s{sT}, v{T}")
    k(f"v_and_b32 v{T+1}, 3, v0\nv_lshlrev_b32 v{T+1}, 2, v{T+1}\ns_mov_b32 s{sLsb}, 0x00010001\nv_mov_b32 v{LCV+1}, s{sEp}\nv_lshlrev_b32 v{vLc}, 1, v{vLc}")
    for e in range(4):
        k(f"v_add_u32 v{T+2}, {e}, v{T}\nv_lshrrev_b32 v{TGA+e}, v{T+2}, s{sEp}\nv_add_u32 v{T+2}, {e}, v{T+1}\nv_lshrrev_b32 v{TGC+e}, v{T+2}, s{sEp}\nv_and_b32 v{TGC+e}, s{sLsb}, v{TGC+e}")
    k(f"v_lshlrev_b32 v{T+1}, 3, v{vL}\nv_and_b32 v{T+1}, 24, v{T+1}\nv_lshrrev_b32 v{T+1}, v{T+1}, s{sEp}")
    k("MP_chk:\ns_waitcnt vmcnt(0)")
    k(f"v_xor_b32 v{T+2}, v{T+1}, v{MP}")
    for p in range(1, 8): k(f"v_xor_b32 v{T+3}, v{T+1}, v{MP+4*p}\nv_or_b32 v{T+2}, v{T+2}, v{T+3}")
    k(f"v_and_b32 v{T+2}, 0xff, v{T+2}\nv_cmp_ne_u32 vcc, 0, v{T+2}\ns_cbranch_vccz MP_ok\ns_sleep {slp0}")
    mpl()
    k("s_branch MP_chk\nMP_ok:")
    k.stamp()
    for p in range(8): k(f"v_and_b32 v{MP+4*p}, 0xffffff00, v{MP+4*p}")
    for n in (16, 8, 4):
        for i in range(0, n, 2): k(f"v_pk_add_f32 {P2(MP+i)}, {P2(MP+i)}, {P2(MP+n+i)}")
    k(f"v_cvt_pk_bf16_f32 v{MP+4}, v{MP}, v{MP+1}\nv_cvt_pk_bf16_f32 v{MP+5}, v{MP+2}, v{MP+3}")
    unpack_bf16(k, MP, MP + 4, 2, sMask)
    for i in range(4): k(f"v_add_f32 v{MP+i}, s{sAdd}, v{MP+i}")
    k(f"v_cvt_pk_bf16_f32 v{MP+4}, v{MP}, v{MP+1}\nv_cvt_pk_bf16_f32 v{MP+5}, v{MP+2}, v{MP+3}")
    unpack_bf16(k, MP, MP + 4, 2, sMask)
    k(f"ds_write_b128 v{vMw}, {vr(MP,4)}")
    k(f"v_max3_f32 v{vMax}, abs(v{MP}), abs(v{MP+1}), abs(v{MP+2})\nv_max_f32 v{vMax}, abs(v{MP+3}), v{vMax}")
    wave_reduce(k, "v_max_f32", [vMax], [sMax])
    k(f"s_lshl_b32 s{sT}, s{sJ}, 2\ns_add_u32 s{sT}, s{sT}, {A_BASE+AX}\nv_mov_b32 v{T+5}, s{sT}\nv_mov_b32 v{vMax}, s{sMax}\nds_write_b32 v{T+5}, v{vMax}")
    def arrive(n, wait):
        lab = f"ARR{n}"
        k(f"s_and_b32 s{sCn}, s2, 15\ns_lshl_b32 s{sCn}, s{sCn}, 7\ns_add_u32 s{sCn}, s{sCn}, {WS_CNT-WS_FLAG+2048*n}")
        k(f"v_cmp_eq_u32 vcc, 0, v{vL}\nv_mov_b32 v{T}, {OOB}\nv_cndmask_b32 v{T}, v{T}, 0, vcc\nv_mov_b32 v{T+1}, 1\ns_cmp_lg_u32 s{sW}, 0")
        k(f"{wait}\ns_barrier\ns_cbranch_scc1 {lab}")
        k(f"buffer_atomic_add v{T+1}, v{T}, {sr(dF,4)}, s{sCn} offen sc1")
        k(f"{lab}:")
    def await_(n):
        lab = f"AW{n}"
        k(f"s_cmp_lg_u32 s{sW}, 0\ns_cbranch_scc1 {lab}")
        k(f"s_mov_b32 s{sCn}, {WS_CNT-WS_FLAG+2048*n}\nv_lshlrev_b32 v{T+2}, 7, v{vI}")
        if pre_slp[n]: k(f"s_sleep {pre_slp[n]}")
        poll(k, f"AWP{n}", dF, sCn, T + 2, T + 3, 16, 16, slp1, pm)
        k(f"{lab}:\ns_barrier")
    arrive(0, "s_waitcnt lgkmcnt(0)")
    k.stamp()
    SA = Wv; CA = Wv + 16; FA = Wv + 32; assert R == Wv + 32 and Wv % 4 == 0
    FB = k.v(16)
    k(f"v_mov_b32 v{T}, {A_BASE+AX}\nds_read_b128 {vr(MP,4)}, v{T}\nds_read_b128 {vr(MP+4,4)}, v{T} offset:16")
    for q in range(2):
        for h in range(2):
            k(f"ds_read_b128 {vr(CA+8*q+4*h,4)}, v{vOfA} offset:{AM+4096+2048*q+1024*h}")
            k(f"ds_read_b128 {vr(SA+8*q+4*h,4)}, v{vOfA} offset:{AM+2048*q+1024*h}")
    def fq(ct, ks, ri): return AT + 1024 * ((ct * 2 + ks) * 2 + ri)
    for ct in range(2):
        for ri in range(2): k(f"ds_read_b128 {vr(FA+(ct*2+ri)*4,4)}, v{vOfA} offset:{fq(ct,0,ri)}")
    k(f"buffer_load_dwordx4 {vr(WR,4)}, v{vWa}, {sr(dR,4)}, s{sCol} offen")
    k("s_waitcnt lgkmcnt(12)")
    k(f"v_max3_f32 v{MP}, v{MP}, v{MP+1}, v{MP+2}\nv_max3_f32 v{MP+4}, v{MP+4}, v{MP+5}, v{MP+6}\nv_max3_f32 v{MP}, v{MP}, v{MP+3}, v{MP+7}\nv_max_f32 v{MP}, v{MP}, v{MP+4}")
    k(f"v_frexp_exp_i32_f32 v{vE}, v{MP}\nv_sub_u32 v{vE}, 3, v{vE}\nv_min_i32 v{vE}, 60, v{vE}\nv_max_i32 v{vE}, {(-60)&0xffffffff}, v{vE}\nv_ldexp_f32 v{RC}, 1.0, v{vE}\nv_readfirstlane_b32 s{sE}, v{vE}")
    Z = XP
    for hq in range(4):
        k(f"s_waitcnt lgkmcnt({10-2*hq + (1 if hq >= 2 else 0)})")
        for i in (2 * hq, 2 * hq + 1): k(f"v_pk_fma_f32 {P2(X+2*i)}, {P2(X+2*i)}, {P2(CA+2*i)}, {P2(SA+2*i)}")
        for i in (2 * hq, 2 * hq + 1): k(f"v_pk_mul_f32 {P2(X+2*i)}, {P2(X+2*i)}, {P2(RC)} op_sel_hi:[1,0]")
        for i in (2 * hq, 2 * hq + 1): k(f"v_cvt_pk_f16_f32 v{Z+i}, v{X+2*i}, v{X+2*i+1}")
        if hq == 1: k(f"ds_write_b128 v{vW1}, {vr(Z,4)}")
    k(f"ds_write_b128 v{vW1}, {vr(Z+4,4)} offset:1024")
    OP = MP
    for h in range(4): k(f"ds_read2st64_b32 {vr(OP+2*h,2)}, v{vR1} offset0:{2*h} offset1:{2*h+1}")
    for ct in range(2):
        for ri in range(2): k(f"ds_read_b128 {vr(FB+(ct*2+ri)*4,4)}, v{vOfA} offset:{fq(ct,1,ri)}")
    TW = SA; F2 = MP + 8
    for q in range(4): k(f"ds_read_b128 {vr(TW+4*q,4)}, v{vOfA} offset:{AT+8192+1024*q}")
    for q in range(2): k(f"ds_read_b128 {vr(F2+4*q,4)}, v{vOfA} offset:{AT+12288+1024*q}")
    D1 = X
    k("s_waitcnt lgkmcnt(12)")
    for o in range(4): k(f"{MF} {vr(D1+o*4,4)}, {vr(OP,4)}, {vr(FA+o*4,4)}, 0")
    k("s_waitcnt lgkmcnt(6)")
    for o in range(4): k(f"{MF} {vr(D1+o*4,4)}, {vr(OP+4,4)}, {vr(FB+o*4,4)}, {vr(D1+o*4,4)}")
    F3 = FA
    for q in range(4): k(f"ds_read_b128 {vr(F3+4*q,4)}, v{vOfA} offset:{AT+14336+1024*q}")
    for q in range(4): k(f"v_xor_b32 v{vSt+q}, s{sF}, v{vSt+q}")
    k("s_waitcnt lgkmcnt(4)")
    D2 = CA
    for ct in range(2):
        tw_block(k, D1 + ct * 8, TW + 4 * ct, TW + 8 + 4 * ct, False, T, OP + 4 * ct)
        k(f"{MF} {vr(D2+ct*8,4)}, {vr(OP+4*ct,4)}, {vr(F2,4)}, 0")
        k(f"{MF} {vr(D2+ct*8+4,4)}, {vr(OP+4*ct,4)}, {vr(F2+4,4)}, 0")
    for ct in range(2):
        for v in range(4): k(f"v_cvt_pk_f16_f32 v{Z+4*ct+v}, v{D2+ct*8+v}, v{D2+ct*8+4+v}")
        k(f"ds_write_b128 v{vW2+ct}, {vr(Z+4*ct,4)}")
    k("s_waitcnt lgkmcnt(0)\ns_barrier")
    O3 = X
    for q in range(2):
        for x in range(2):
            d = O3 + (q * 2 + x) * 4
            k(f"ds_read2st64_b32 {vr(d,2)}, v{vR3+2*q+x} offset0:0 offset1:8")
            k(f"ds_read2st64_b32 {vr(d+2,2)}, v{vR3+2*q+x} offset0:16 offset1:24")
    D3 = SA
    for q in range(2):
        for x in range(2):
            k(f"s_waitcnt lgkmcnt({6-2*(2*q+x)})")
            for ri in range(2):
                d = D3 + ((q * 2 + x) * 2 + ri) * 4
                k(f"{MF} {vr(d,4)}, {vr(O3+(q*2+x)*4,4)}, {vr(F3+(x*2+ri)*4,4)}, 0")
    P = MP
    k(f"s_lshl_b32 s{sT}, s{sS0}, 4\ns_add_u32 s{sT}, s{sT}, {WS_LC}")
    for q in range(2):
        for v in range(4):
            for x in range(2):
                d = D3 + ((q * 2 + x) * 2) * 4 + v
                k(f"v_cvt_pk_f16_f32 v{P+8*q+2*v+x}, v{d}, v{d+4}")
        for e in range(4): k(f"v_permlane32_swap_b32 v{P+8*q+e}, v{P+8*q+4+e}")
        if q == 0: k(f"v_mov_b32 v{LCV}, v{P+1}")
        for ins in range(2):
            for e in range(4): k(f"v_bfi_b32 v{P+8*q+4*ins+e}, s{sLsb}, v{TGA+e}, v{P+8*q+4*ins+e}")
            k(f"buffer_store_dwordx4 {vr(P+8*q+4*ins,4)}, v{vSt+2*q+ins}, {sr(dZ,4)}, s{sZo} offen sc1")
    k(f"buffer_store_dwordx2 {vr(LCV,2)}, v{vLc}, {sr(dW,4)}, s{sT} offen sc1")
    k(f"buffer_load_dwordx4 {vr(WI,4)}, v{vWa}, {sr(dI,4)}, s{sCol} offen")
    k.stamp()
    G = 176; H = G + 32; TWT = H + 16
    k.maxv = max(k.maxv, TWT + 8)
    def bconsts(G, H, phi_known):
        def g1(ks, o): return G + (ks * 4 + o) * 4
        for e2 in range(2):
            k(f"v_lshl_add_u32 v{T}, v{vG}, 1, {e2}\nv_mul_u32_u24 v{T}, v{T}, v{vI}")
            sincos(k, T + 1, T + 2, T, 16, T + 3)
            k(f"v_mul_f32 v{T+4}, v{vCp}, v{T+1}\nv_mul_f32 v{T+5}, v{vCp}, v{T+2}")
            k(f"v_mul_f32 v{T+6}, v{vSp}, v{T+1}\nv_mul_f32 v{T+7}, v{vSp}, v{T+2}")
            p1 = f"v{T+4}, v{T+5}"; p2 = f"-v{T+5}, v{T+4}"; p3 = f"v{T+7}, -v{T+6}"; p4 = f"v{T+6}, v{T+7}"
            for o, (pa, pb) in enumerate(((p1, p3), (p2, p4), (p3, p1), (p4, p2))):
                k(f"v_cvt_pk_f16_f32 v{g1(0,o)+2*e2}, {pa}\nv_cvt_pk_f16_f32 v{g1(0,o)+2*e2+1}, {pb}")
        k(f"s_mov_b32 s{sT}, 0x80008000\nv_and_b32 v{T}, 1, v{vI}\nv_mul_lo_u32 v{T}, v{T}, s{sT}")
        for x in range(16): k(f"v_xor_b32 v{G+16+x}, v{T}, v{G+x}")
        for v in range(4):
            k(f"v_lshl_add_u32 v{T}, v{vG}, 2, {v}\nv_mul_u32_u24 v{T}, v{T}, v{vI}")
            sincos(k, T + 1, T + 2, T, 16, T + 3)
            k(f"v_mul_f32 v{T+4}, v{vCp}, v{T+1}\nv_mul_f32 v{T+5}, v{vCp}, v{T+2}\nv_mul_f32 v{T+6}, v{vSp}, v{T+1}\nv_mul_f32 v{T+7}, v{vSp}, v{T+2}")
            k(f"v_cvt_pk_f16_f32 v{H+v}, v{T+4}, -v{T+5}\nv_cvt_pk_f16_f32 v{H+4+v}, v{T+5}, v{T+4}")
            k(f"v_cvt_pk_f16_f32 v{H+8+v}, v{T+7}, v{T+6}\nv_cvt_pk_f16_f32 v{H+12+v}, -v{T+6}, v{T+7}")
            k(f"v_mul_f32 v{T+1}, {fbits(0.25)}, v{T+1}\nv_mul_f32 v{T+2}, {fbits(0.25)}, v{T+2}")
            k(f"v_cvt_pk_f16_f32 v{FR+v}, v{T+1}, v{T+2}\nv_cvt_pk_f16_f32 v{FI+v}, -v{T+2}, v{T+1}\nv_cvt_pk_f16_f32 v{CR+v}, v{T+1}, -v{T+2}\nv_cvt_pk_f16_f32 v{CI+v}, v{T+2}, v{T+1}")
    k(f"s_lshl_b32 s{sT}, s{sC}, 3\ns_add_u32 s{sT}, s{sT}, s{sW}\ns_add_u32 s{sT}, s{sT}, 256\nv_mov_b32 v{T}, s{sT}")
    sincos(k, vCp, vSp, T, 2048, T + 1)
    k(f"v_mul_f32 v{vCp}, {fbits(0.25)}, v{vCp}\nv_mul_f32 v{vSp}, {fbits(0.25)}, v{vSp}")
    for v in range(4):
        k(f"v_lshl_add_u32 v{T+2}, v{vG}, 2, {v}\nv_mul_u32_u24 v{T+2}, v{T+2}, v{vI}")
        sincos(k, TWT + v, TWT + 4 + v, T + 2, 256, T + 3)
    nvG = k.nv
    k.release(mA2)
    ADc = k.v(12); XPc = k.v(8)
    mB = k.mark()
    vRd = k.v(); vWr = k.v(); vOr = k.v(); vOs = k.v(); vWrd = k.v(); WM = k.v(4); WP = k.v(8); Wf = k.v(16); OP = k.v(8); D = k.v(16); TB = k.v(24)
    assert k.nv + 2 <= G, (k.nv, G)
    sL = k.s(); sO = k.s(); sScale = k.s(2); sE2 = k.s(); sSp = k.s(); sPa = k.s(); sPb = k.s()
    TWC = TWT; TWS = TWT + 4; FR = TB + 8; FI = TB + 12; CR = TB + 16; CI = TB + 20; TB2 = D; TGP = TB
    bconsts(G, H, False)
    k(f"s_lshr_b32 s{sT}, s{sW}, 1")
    k(f"v_lshrrev_b32 v{T}, 2, v{vI}\nv_xor_b32 v{T}, s{sT}, v{T}\nv_lshlrev_b32 v{T}, 4, v{T}\nv_lshl_add_u32 v{T}, v{vI}, 6, v{T}")
    k(f"s_and_b32 s{sT}, s{sW}, 1\ns_lshl_b32 s{sT}, s{sT}, 3\nv_add_u32 v{T}, s{sT}, v{T}")
    k(f"v_lshl_add_u32 v{vRd}, v{vG}, 11, v{T}\nv_lshl_add_u32 v{vWr}, v{vG}, 12, v{T}")
    k(f"v_lshlrev_b32 v{vOr}, 4, v0")
    k(f"v_lshrrev_b32 v{T}, 2, v0\nv_mul_u32_u24 v{T}, {ZB_PITCH}, v{T}")
    k(f"v_lshrrev_b32 v{T+1}, 4, v0\nv_xor_b32 v{T+1}, v{T+1}, v0\nv_and_b32 v{T+1}, 3, v{T+1}\nv_lshl_add_u32 v{vOs}, v{T+1}, 4, v{T}")
    k(f"v_lshrrev_b32 v{T}, 2, v{vI}\nv_sub_u32 v{T}, 0, v{T}\nv_and_b32 v{T}, 3, v{T}\nv_xor_b32 v{T}, v{T}, v{vG}\nv_lshlrev_b32 v{T}, 4, v{T}")
    k(f"v_lshl_add_u32 v{T}, v{vI}, 6, v{T}\ns_lshl_b32 s{sT}, s{sW}, 10\ns_add_u32 s{sT}, s{sT}, {BWL}\nv_add_u32 v{vWrd}, s{sT}, v{T}")
    k(f"s_mov_b32 s{sPa}, 0x05040100\ns_mov_b32 s{sPb}, 0x07060302\ns_or_b32 s{sSp}, s{sC}, s{sW}")
    k(f"s_mul_i32 s{sO}, s{sSlot}, {ZA_PITCH}\ns_lshl_b32 s{sL}, s{sW}, 11\ns_add_u32 s{sO}, s{sO}, s{sL}")
    dZ = k.srd(pWS, ZA_BYTES, WS_ZA); dO = k.srd(pWS, ZB_BYTES, WS_ZB)
    def unpl(dst, src):
        for w in range(2):
            for v in range(4): k(f"v_lshlrev_b32 v{dst+8*w+v}, 16, v{src+4*w+v}\nv_and_b32 v{dst+8*w+4+v}, s{sMask}, v{src+4*w+v}")
    k("s_waitcnt vmcnt(0)")
    for q in range(4): k(f"v_perm_b32 v{WP+2*q}, v{WI+q}, v{WR+q}, s{sPa}\nv_perm_b32 v{WP+2*q+1}, v{WI+q}, v{WR+q}, s{sPb}")
    k(f"s_cmp_ge_u32 s{sW}, 4\ns_cbranch_scc1 B_wrev")
    for e in range(0, 8, 2): k(f"ds_write2st64_b32 v{vWw}, v{WP+e}, v{WP+e+1} offset0:{4*e} offset1:{4*e+4}")
    k("s_branch B_wdone\nB_wrev:")
    for e in range(0, 8, 2): k(f"ds_write2st64_b32 v{vWw}, v{WP+e}, v{WP+e+1} offset0:{4*(7-e)} offset1:{4*(6-e)}")
    k("B_wdone:")
    k(f"v_lshrrev_b32 v{T}, 4, v0\nv_xor_b32 v{T}, v{T}, v0\nv_and_b32 v{T}, 3, v{T}\nv_lshlrev_b32 v{T}, 2, v{T}")
    for e in range(4): k(f"v_add_u32 v{T+2}, {e}, v{T}\nv_lshrrev_b32 v{TGP+e}, v{T+2}, s{sEp}")
    k("s_waitcnt lgkmcnt(0)")
    k.stamp()
    await_(0)
    k.stamp()
    def ztry(name, n, ZR, dZ, sO, vZw, slp):
        k((f"s_sleep {slp[0]}\n" if slp[0] > 0 else ("s_waitcnt vmcnt(0)\n" if slp[0] < 0 else "")) + f"{name}:")
        for q in range(n): k(f"buffer_load_dwordx4 {vr(ZR+4*q,4)}, v{vOff}, {sr(dZ,4)}, s{sO} offen offset:{1024*q} sc1")
        k("s_waitcnt vmcnt(0)")
        for e in range(4 * n): k(f"v_xor_b32 v{ZR+e}, v{TGC+(e&3)}, v{ZR+e}")
        k(f"v_or_b32 v{T}, v{ZR}, v{ZR+1}")
        for e in range(2, 4 * n, 2): k(f"v_or3_b32 v{T}, v{T}, v{ZR+e}, v{ZR+e+1}")
        k(f"v_and_b32 v{T}, s{sLsb}, v{T}\nv_cmp_ne_u32 vcc, 0, v{T}\ns_cbranch_vccz {name}_ok\ns_sleep {slp[1]}\ns_branch {name}\n{name}_ok:")
        for q in range(n): k(f"ds_write_b128 v{vZw}, {vr(ZR+4*q,4)} offset:{1024*q}")
    k(f"ds_read_b128 {vr(TB2,4)}, v{vWrd}\nds_read_b128 {vr(TB2+4,4)}, v{vWrd} offset:8192")
    WL2 = WR
    assert WI == WR + 4
    k(f"s_cmp_lg_u32 s{sW}, 1\ns_cbranch_scc1 B_nol1")
    k(f"v_lshlrev_b32 v{T}, 8, v{vG}\nv_lshl_add_u32 v{T}, v{vI}, 2, v{T}")
    for w in range(2):
        k(f"s_mov_b32 s{sT}, {WS_SPC+8192+4096*w}")
        for v in range(4): k(f"buffer_load_dword v{WL2+4*w+v}, v{T}, {sr(dW,4)}, s{sT} offen offset:{64*v} sc1")
    k("B_nol1:")
    k(f"s_mov_b32 s{sT}, {MXO}\nv_lshlrev_b32 v{T}, 7, v{vI}\nbuffer_load_dword v{WM}, v{T}, {sr(dF,4)}, s{sT} offen sc1")
    FN = WM + 2; WE = WP
    k(f"s_or_b32 s{sSp}, s{sC}, s{sW}\ns_cmp_lg_u32 s{sSp}, 0\ns_cbranch_scc1 B_nox")
    k(f"s_mov_b32 s{sPa}, {WS_SPC}\ns_mov_b32 s{sPb}, {WS_SPC+16384}")
    for v in range(4):
        k(f"v_lshl_add_u32 v{T}, v{vG}, 2, {v}\nv_lshl_add_u32 v{T}, v{T}, 4, v{vI}\nv_lshl_add_u32 v{T}, v{T}, 3, s{sRho}\nv_sub_u32 v{T+1}, 2048, v{T}")
        for r in (T, T + 1): k(f"v_and_b32 v{T+2}, 7, v{r}\nv_bfe_u32 v{r}, v{r}, 3, 8\nv_lshlrev_b32 v{r}, 2, v{r}\nv_lshl_add_u32 v{r}, v{T+2}, 10, v{r}")
        k(f"buffer_load_dword v{WE+v}, v{T+1}, {sr(dW,4)}, s{sPa} offen sc1\nbuffer_load_dword v{WE+4+v}, v{T}, {sr(dW,4)}, s{sPb} offen sc1")
    k("B_nox:")
    k(f"s_cmp_lg_u32 s{sW}, 2\ns_cbranch_scc1 B_nofl")
    k(f"v_lshlrev_b32 v{T}, 14, v{vG}\nv_lshl_add_u32 v{T}, v{vI}, 2, v{T}\ns_lshl_b32 s{sT}, s2, 6\ns_add_u32 s{sT}, s{sT}, {WS_MODQ}\ns_add_u32 s{sPa}, s{sT}, 65536")
    k(f"buffer_load_dword v{FN}, v{T}, {sr(dW,4)}, s{sT} offen sc1\nbuffer_load_dword v{FN+1}, v{T}, {sr(dW,4)}, s{sPa} offen sc1")
    k("B_nofl:")
    def wscale():
        for i in range(8): k(f"v_pk_mul_f32 {P2(Wf+2*i)}, {P2(Wf+2*i)}, s[{sScale}:{sScale+1}] op_sel_hi:[1,0]")
    def wprep():
        wave_reduce(k, "v_max_u32", [WM], [sE2])
        k(f"s_lshr_b32 s{sE2}, s{sE2}, 7\ns_sub_i32 s{sE2}, 125, s{sE2}\ns_min_i32 s{sE2}, s{sE2}, 60\ns_max_i32 s{sE2}, s{sE2}, -60")
        k(f"s_add_u32 s{sScale}, s{sE2}, 127\ns_lshl_b32 s{sScale}, s{sScale}, 23\ns_add_i32 s{sE}, s{sE}, s{sE2}\ns_sub_i32 s{sE}, 0, s{sE}")
    def wspec():
        k(f"s_cmp_lg_u32 s{sSp}, 0\ns_cbranch_scc1 B_nospec")
        unpl(G, WE)
        k(f"s_sub_u32 s{sScale}, s{sScale}, {1<<23}")
        for i in (0, 1, 2, 3, 8, 9, 10, 11): k(f"v_add_f32 v{Wf+i}, v{Wf+i}, v{G+i}\nv_sub_f32 v{Wf+i+4}, v{Wf+i+4}, v{G+i+4}")
        k("B_nospec:")
        wscale()
    k("s_waitcnt lgkmcnt(0)")
    unpl(Wf, TB2)
    k(f"v_add_u32 v{TB+4}, s{sL}, v{vOff}")
    ztry("ZA_a", 2, D, dZ, sO, TB + 4, slpa)
    k("s_waitcnt lgkmcnt(0)\ns_barrier")
    k.stamp()
    def bcore(rd_off, conj2):
        def g1(ks, o): return G + (ks * 4 + o) * 4
        for ks in range(2):
            for e2 in range(2): k(f"ds_read_b64 {vr(OP+4*ks+2*e2,2)}, v{vRd} offset:{rd_off(8*ks+e2)}")
        wprep()
        k("s_waitcnt lgkmcnt(2)")
        for o in range(4): k(f"{MF} {vr(D+4*o,4)}, {vr(OP,4)}, {vr(g1(0,o),4)}, 0")
        k("s_waitcnt lgkmcnt(0)")
        for o in range(4): k(f"{MF} {vr(D+4*o,4)}, {vr(OP+4,4)}, {vr(g1(1,o),4)}, {vr(D+4*o,4)}")
        for w in range(2):
            tw_block(k, D + 8 * w, TWC, TWS, False, T, OP + 4 * w)
            k(f"{MF} {vr(D+8*w,4)}, {vr(FR,4)}, {vr(OP+4*w,4)}, 0")
            k(f"{MF} {vr(D+8*w+4,4)}, {vr(FI,4)}, {vr(OP+4*w,4)}, 0")
        wspec()
        for w in range(2):
            tw_block(k, D + 8 * w, Wf + 8 * w, Wf + 8 * w + 4, (w == 0) or not conj2, T, OP + 4 * w)
            k(f"{MF} {vr(D+8*w,4)}, {vr(OP+4*w,4)}, {vr(CR,4)}, 0")
            k(f"{MF} {vr(D+8*w+4,4)}, {vr(OP+4*w,4)}, {vr(CI,4)}, 0")
        E = Wf
        for w in range(2):
            tw_block(k, D + 8 * w, TWC, TWS, True, T, OP + 4 * w)
            for x in range(2):
                for ri in range(2):
                    d = E + 8 * x + 4 * ri
                    k(f"{MF} {vr(d,4)}, {vr(H+8*(x^w)+4*ri,4)}, {vr(OP+4*w,4)}, {vr(d,4) if w else 0}")
        for v in range(4):
            k(f"v_cvt_pk_f16_f32 v{WP+2*v}, v{E+v}, v{E+4+v}\nv_cvt_pk_f16_f32 v{WP+2*v+1}, v{E+8+v}, v{E+12+v}")
    k(f"s_cmp_lg_u32 s{sW}, 2\ns_cbranch_scc1 B_nofin")
    k(f"v_add_f32 v{FN}, v{FN}, v{FN+1}\nv_mov_b32 v{FN+1}, v{FN}")
    k(f"v_permlane16_swap_b32 v{FN}, v{FN+1}\nv_add_f32 v{FN}, v{FN}, v{FN+1}\nv_mov_b32 v{FN+1}, v{FN}")
    k(f"v_permlane32_swap_b32 v{FN}, v{FN+1}\nv_add_f32 v{FN}, v{FN}, v{FN+1}")
    round_bf16(k, FN)
    k(f"s_lshr_b32 s{sT}, s2, 6\ns_cmp_eq_u32 s{sT}, 2\ns_cselect_b32 s{sPa}, 1.0, 0\nv_add_f32 v{FN}, s{sPa}, v{FN}")
    k(f"v_cvt_pk_bf16_f32 v{FN}, v{FN}, v{FN}")
    k(f"s_cmp_eq_u32 s{sT}, 3\ns_cbranch_scc1 B_fgb")
    k(f"v_lshlrev_b32 v{FN}, 16, v{FN}\nv_and_b32 v{T}, 1, v{vI}\nv_lshlrev_b32 v{T}, 10, v{T}\nv_lshrrev_b32 v{T+1}, 3, v{vI}\nv_lshl_add_u32 v{T}, v{T+1}, 8, v{T}\nv_and_b32 v{T+1}, 6, v{vI}\nv_lshl_add_u32 v{T}, v{T+1}, 1, v{T}")
    k(f"s_lshr_b32 s{sT}, s2, 5\ns_lshl_b32 s{sT}, s{sT}, 11\ns_and_b32 s{sPa}, s2, 1\ns_lshl_b32 s{sPa}, s{sPa}, 9\ns_add_u32 s{sT}, s{sT}, s{sPa}\ns_bfe_u32 s{sPa}, s2, 0x40001\ns_lshl_b32 s{sPa}, s{sPa}, 4\ns_add_u32 s{sT}, s{sT}, s{sPa}\ns_add_u32 s{sT}, s{sT}, {WS_MODC}")
    k(f"buffer_store_dword v{FN}, v{T}, {sr(dW,4)}, s{sT} offen sc1\ns_branch B_nofin")
    k("B_fgb:")
    k(f"v_lshlrev_b32 v{T}, 1, v{vI}\ns_lshl_b32 s{sT}, s2, 5\ns_add_u32 s{sT}, s{sT}, {WS_GB-6144}")
    k(f"buffer_store_short v{FN}, v{T}, {sr(dW,4)}, s{sT} offen sc1")
    k("B_nofin:")
    if psp[1]:
        n4 = psp[1] * 2
        k(f"s_cmp_lt_u32 s{sW}, 4\ns_cbranch_scc1 PW1_skip")
        k(f"s_lshl_b32 s{sT}, s2, 2\ns_add_u32 s{sT}, s{sT}, s{sW}\ns_sub_u32 s{sT}, s{sT}, 4\ns_mul_i32 s{sT}, s{sT}, {n4*128}\ns_add_u32 s{sT}, s{sT}, {psp[0]*2048*128}\nv_min_u32 v{T+4}, {n4-1}, v{vL}\nv_lshlrev_b32 v{T+4}, 7, v{T+4}")
        k(f"buffer_load_dword v{vSp}, v{T+4}, {sr(dW1,4)}, s{sT} offen\nPW1_skip:")
    bcore(lambda n: n * 1024, True)
    for v in range(4): k(f"ds_write_b64 v{vWr}, {vr(WP+2*v,2)} offset:{BOUT+v*1024}")
    def lcl(fl="sc1"):
        k(f"v_lshlrev_b32 v{vRd}, 10, v{vG}\nv_lshl_add_u32 v{vRd}, v{vI}, 4, v{vRd}\ns_mov_b32 s{sPb}, {WS_LC}")
        for v in range(4): k(f"buffer_load_dwordx4 {vr(G+4*v,4)}, v{vRd}, {sr(dW,4)}, s{sPb} offen offset:{256*v} {fl}")
    k(f"s_cmp_lg_u32 s{sW}, 1\ns_cbranch_scc1 LC_n")
    lcl(mpf)
    k("LC_n:")
    k(f"s_cmp_lg_u32 s{sW}, 2\ns_cbranch_scc1 F_na\ns_waitcnt vmcnt(0)\nF_na:")
    k("s_waitcnt lgkmcnt(0)\ns_barrier")
    k(f"ds_read_b128 {vr(D,4)}, v{vOr} offset:{BOUT}\nds_read_b128 {vr(D+4,4)}, v{vOr} offset:{BOUT+8192}")
    k(f"s_lshl_b32 s{sO}, s{sSlot}, 6\ns_add_u32 s{sT}, s{sO}, {128*ZB_PITCH}")
    k("s_waitcnt lgkmcnt(1)")
    for e in range(4): k(f"v_bfi_b32 v{D+e}, s{sLsb}, v{TGP+e}, v{D+e}")
    k(f"buffer_store_dwordx4 {vr(D,4)}, v{vOs}, {sr(dO,4)}, s{sO} offen sc1")
    k("s_waitcnt lgkmcnt(0)")
    for e in range(4): k(f"v_bfi_b32 v{D+4+e}, s{sLsb}, v{TGP+e}, v{D+4+e}")
    k(f"buffer_store_dwordx4 {vr(D+4,4)}, v{vOs}, {sr(dO,4)}, s{sT} offen sc1")
    k.stamp()
    k(f"s_cmp_lg_u32 s{sW}, 1\ns_cbranch_scc1 B_nolight")
    k("LC_chk:\ns_waitcnt vmcnt(0)")
    k(f"v_xor_b32 v{T}, s{sEp}, v{G+1}")
    for x in range(3, 16, 2): k(f"v_xor_b32 v{T+1}, s{sEp}, v{G+x}\nv_or_b32 v{T}, v{T}, v{T+1}")
    k(f"v_cmp_ne_u32 vcc, 0, v{T}\ns_cbranch_vccz LC_ok\ns_sleep 4")
    lcl()
    k("s_branch LC_chk\nLC_ok:")
    for v in range(4): k(f"v_mov_b32 v{OP+v}, v{G+4*v}\nv_mov_b32 v{OP+4+v}, v{G+4*v+2}")
    unpl(Wf, WL2); wscale()
    for w in range(2): k(f"{MF} {vr(D+8*w,4)}, {vr(OP+4*w,4)}, {vr(FR,4)}, 0\n{MF} {vr(D+8*w+4,4)}, {vr(OP+4*w,4)}, {vr(FI,4)}, 0")
    for w in range(2):
        tw_block(k, D + 8 * w, TWC, TWS, False, T, OP + 4 * w)
        k(f"{MF} {vr(D+8*w,4)}, {vr(FR,4)}, {vr(OP+4*w,4)}, 0\n{MF} {vr(D+8*w+4,4)}, {vr(FI,4)}, {vr(OP+4*w,4)}, 0")
    for w in range(2):
        tw_block(k, D + 8 * w, Wf + 8 * w, Wf + 8 * w + 4, True, T, OP + 4 * w)
        k(f"{MF} {vr(D+8*w,4)}, {vr(OP+4*w,4)}, {vr(CR,4)}, 0\n{MF} {vr(D+8*w+4,4)}, {vr(OP+4*w,4)}, {vr(CI,4)}, 0")
    for w in range(2):
        tw_block(k, D + 8 * w, TWC, TWS, True, T, OP + 4 * w)
        k(f"{MF} {vr(D+8*w,4)}, {vr(CR,4)}, {vr(OP+4*w,4)}, 0\n{MF} {vr(D+8*w+4,4)}, {vr(CI,4)}, {vr(OP+4*w,4)}, 0")
    for v in range(4): k(f"v_cvt_pk_f16_f32 v{WP+2*v}, v{D+v}, v{D+4+v}\nv_cvt_pk_f16_f32 v{WP+2*v+1}, v{D+8+v}, v{D+12+v}")
    k(f"v_lshl_add_u32 v{T}, v{vG}, 6, v{vI}\nv_mov_b32 v{T+2}, {C_SPEC}\nv_mov_b32 v{T+3}, {C_SPEC+64}")
    for v in range(4):
        k(f"v_add_u32 v{T+1}, {16*v}, v{T}\nv_cmp_eq_u32 vcc, s{sS0}, v{T+1}\nv_cndmask_b32 v{T+4+v}, v{T+3}, v{T+2}, vcc")
        k(f"ds_write_b64 v{T+4+v}, {vr(WP+2*v,2)}")
    k("B_nolight:")
    k.release(mB)
    AD = ADc; XP = XPc
    sO = k.s(); sL = k.s(); sQ = k.s()
    vXo = k.v()
    k(f"v_lshlrev_b32 v{vXo}, 6, v{vI}\nv_lshl_add_u32 v{vXo}, v{vG}, 4, v{vXo}")
    k(f"s_mul_i32 s{sO}, s{sS0}, {ZB_PITCH}\ns_lshl_b32 s{sL}, s{sJ}, 11\ns_add_u32 s{sO}, s{sO}, s{sL}")
    dZ = k.srd(pWS, ZB_BYTES, WS_ZB)
    vR1 = AD; vW1 = AD + 8; vR2 = AD + 10
    dX = k.srd(pX, 2048 * 2048)
    k(f"buffer_load_dwordx4 {vr(XP,4)}, v{vXo}, {sr(dX,4)}, s{sRow} offen")
    k(f"buffer_load_dwordx4 {vr(XP+4,4)}, v{vXo}, {sr(dX,4)}, s{sRow} offen offset:1024")
    dX1 = k.srd(pWS, 4 << 20, WS_X1); dY2 = k.srd(pWS, 4 << 20, WS_Y2)
    sR = k.s(); sY = k.s(); vYo = k.v()
    k(f"s_lshl_b32 s{sR}, s{sS0}, 3\ns_add_u32 s{sR}, s{sR}, s{sJ}")
    k(f"s_lshl_b32 s{sY}, s{sMt}, 18\ns_and_b32 s{sT}, s{sR}, 127\ns_lshl_b32 s{sT}, s{sT}, 7\ns_add_u32 s{sY}, s{sY}, s{sT}")
    k(f"s_bfe_u32 s{sT}, s{sR}, 0x30001\nv_and_b32 v{T}, 1, v{vI}\nv_lshl_add_u32 v{T}, v{T}, 2, v{vG}\nv_xor_b32 v{T}, s{sT}, v{T}\nv_lshlrev_b32 v{T}, 4, v{T}")
    k(f"v_lshrrev_b32 v{T+1}, 1, v{vI}\nv_lshl_add_u32 v{vYo}, v{T+1}, 14, v{T}")
    k(f"s_lshl_b32 s{sR}, s{sR}, 11")
    k(f"s_and_b32 s{sQ}, s{sW}, 3\ns_mul_i32 s{sWo}, s{sNt}, 448\ns_mul_i32 s{sT}, s{sQ}, {16*7168}\ns_add_u32 s{sWo}, s{sWo}, s{sT}\ns_mul_i32 s{sMw}, s{sQ}, 7168\ns_add_u32 s{sMw}, s{sMw}, {WR0}")
    sPw = k.s(); sPm = k.s()
    k(f"s_lshr_b32 s{sT}, s{sW}, 2\ns_mul_i32 s{sPw}, s{sT}, {64*7168}\ns_add_u32 s{sPw}, s{sPw}, {64*7168*PI[0]}\ns_add_u32 s{sPw}, s{sPw}, s{sWo}\ns_mul_i32 s{sPm}, s{sT}, {WSL}\ns_add_u32 s{sPm}, s{sPm}, s{sMw}")
    wpre = [f"s_add_u32 m0, s{sPm}, {1024*x}\ns_nop 0\nbuffer_load_dwordx4 v{vWo+x}, {sr(dW1,4)}, s{sPw} offen lds" for x in range(7)]
    mt = k.mark(); tab_c_wave(k, vI, vG, T, ADc, sW, sT); k.release(mt)
    ZR = k.v(16); vZw = k.v()
    k(f"v_add_u32 v{vZw}, s{sL}, v{vOff}")
    k.stamp()
    k(f"s_cmp_eq_u32 s{sW}, 1\ns_cbranch_scc1 ZB_done\ns_cmp_eq_u32 s{sW}, 0\ns_cbranch_scc1 ZB_w0")
    ztry("ZB_a", 2, ZR, dZ, sO, vZw, slpz)
    k("s_branch ZB_done\nZB_w0:")
    ztry("ZB_b", 4, ZR, dZ, sO, vZw, slpz)
    k("ZB_done:\ns_waitcnt vmcnt(0)")
    k.stamp()
    k("s_waitcnt lgkmcnt(0)\ns_barrier")
    k(f"s_min_u32 s{sT}, s{sL}, {5*2048}\ns_add_u32 m0, s{sT}, {MOD}\ns_add_u32 s{sT}, s{sT}, {WS_MODC}")
    k(f"buffer_load_dwordx4 v{vOff}, {sr(dW,4)}, s{sT} offen sc1 lds\nbuffer_load_dwordx4 v{vOff}, {sr(dW,4)}, s{sT} offen offset:1024 sc1 lds")
    k.stamp()
    OP = k.v(8); D = k.v(16); F1 = k.v(8); TW = k.v(16); F3 = k.v(32); X = k.v(16); E = k.v(16)
    k(f"ds_read_b128 {vr(F1,4)}, v{vOff} offset:{TAB+14336}\nds_read_b128 {vr(F1+4,4)}, v{vOff} offset:{TAB+15360}")
    for x in range(8): k(f"ds_read_b32 v{OP+x}, v{vR1+x}")
    for _ in range(wsch[0]): k(wpre.pop(0))
    for q in range(2):
        k(f"s_waitcnt lgkmcnt({4-4*q})")
        k(f"{MF} {vr(D+8*q,4)}, {vr(OP+4*q,4)}, {vr(F1,4)}, 0")
        k(f"{MF} {vr(D+8*q+4,4)}, {vr(OP+4*q,4)}, {vr(F1+4,4)}, 0")
    for q in range(4): k(f"ds_read_b128 {vr(TW+4*q,4)}, v{vOff} offset:{TAB+2048+1024*q}")
    for q in range(2):
        for v in range(4): k(f"v_cvt_pk_f16_f32 v{OP+4*q+v}, v{D+8*q+v}, v{D+8*q+4+v}")
        k(f"ds_write_b128 v{vW1+q}, {vr(OP+4*q,4)}")
    F2 = F1
    k(f"ds_read_b128 {vr(F2,4)}, v{vOff} offset:{TAB}\nds_read_b128 {vr(F2+4,4)}, v{vOff} offset:{TAB+1024}")
    k("s_waitcnt lgkmcnt(0)\ns_barrier")
    for rt in range(2):
        k(f"ds_read2st64_b32 {vr(OP+4*rt,2)}, v{vR2+rt} offset0:0 offset1:2")
        k(f"ds_read2st64_b32 {vr(OP+4*rt+2,2)}, v{vR2+rt} offset0:4 offset1:6")
    for q in (0, 1, 4, 5, 2, 3, 6, 7): k(f"ds_read_b128 {vr(F3+4*q,4)}, v{vOff} offset:{TAB+6144+1024*q}")
    pf_uni(k, pW1, w1c[0], w1c[1], 2, sW, vL, AD + 1, T + 4)
    pf_uni(k, pW2, w2c[0], w2c[1], 2, sW, vL, AD, T + 4)
    for _ in range(wsch[1]): k(wpre.pop(0))
    def f3(ct, rt, ri): return F3 + ((ct * 2 + rt) * 2 + ri) * 4
    for rt in range(2):
        k(f"s_waitcnt lgkmcnt({10-2*rt})")
        k(f"{MF} {vr(D+8*rt,4)}, {vr(OP+4*rt,4)}, {vr(F2,4)}, 0")
        k(f"{MF} {vr(D+8*rt+4,4)}, {vr(OP+4*rt,4)}, {vr(F2+4,4)}, 0")
    for ct in range(2):
        for v in range(4): k(f"v_lshlrev_b32 v{X+8*ct+v}, 16, v{XP+4*ct+v}\nv_and_b32 v{X+8*ct+4+v}, s{sMask}, v{XP+4*ct+v}")
    GA = k.v(16); RC = k.v(2); sP = k.s(2); sSum = k.s(2)
    def mread(dst, vec):
        for q in range(4): k(f"ds_read_b128 {vr(dst+4*q,4)}, v{vOff} offset:{MOD + 4096*vec + 1024*q}")
    k(f"v_ldexp_f32 v{RC}, 1.0, s{sE}")
    for rt in range(2):
        tw_block(k, D + 8 * rt, TW + 4 * rt, TW + 8 + 4 * rt, True, T, OP + 4 * rt)
        k(f"s_waitcnt lgkmcnt({4-4*rt})")
        for ct in range(2):
            for ri in range(2):
                d = E + 8 * ct + 4 * ri
                k(f"{MF} {vr(d,4)}, {vr(OP+4*rt,4)}, {vr(f3(ct,rt,ri),4)}, {vr(d,4) if rt else 0}")
    k.stamp()
    SB = TW; CB = D
    k(f"s_waitcnt vmcnt({wsch[0] + wsch[1] + (1 if w1c[1] else 0)})\ns_barrier")
    mread(GA, 0); mread(CB, 2); mread(SB, 1)
    for _ in range(wsch[2]): k(wpre.pop(0))
    for i in range(8): k(f"v_pk_mul_f32 {P2(E+2*i)}, {P2(E+2*i)}, {P2(RC)} op_sel_hi:[1,0]")
    k("s_waitcnt lgkmcnt(8)")
    for i in range(8): k(f"v_pk_fma_f32 {P2(X+2*i)}, {P2(E+2*i)}, {P2(GA+2*i)}, {P2(X+2*i)}")
    def pack(dst):
        for ct in range(2):
            for v in range(4): k(f"v_cvt_pk_bf16_f32 v{dst+4*ct+v}, v{X+8*ct+v}, v{X+8*ct+4+v}")
    pack(XP)
    k(f"buffer_store_dwordx4 {vr(XP,4)}, v{vXo}, {sr(dX1,4)}, s{sR} offen sc1")
    k(f"buffer_store_dwordx4 {vr(XP+4,4)}, v{vXo}, {sr(dX1,4)}, s{sR} offen offset:1024 sc1")
    ln_pk(k, X, T, RC, sP, sSum, [wpre.pop(0) for _ in range(min(2, len(wpre)))])
    k("s_waitcnt lgkmcnt(0)")
    for i in range(8): k(f"v_pk_fma_f32 {P2(X+2*i)}, {P2(X+2*i)}, {P2(CB+2*i)}, {P2(SB+2*i)}")
    ln_pk(k, X, T, RC, sP, sSum, [wpre.pop(0) for _ in range(min(2, len(wpre)))])
    pack(OP)
    k(f"s_add_u32 s{sT}, s{sY}, {8*16384}")
    k(f"buffer_store_dwordx4 {vr(OP,4)}, v{vYo}, {sr(dY2,4)}, s{sY} offen sc1")
    k(f"buffer_store_dwordx4 {vr(OP+4,4)}, v{vYo}, {sr(dY2,4)}, s{sT} offen sc1")
    k.stamp()
    k.release(mC)
    NS = 16; NB = 3
    mz = k.mark(); sZ = k.s()
    k(f"s_lshl_b32 s{sZ}, s{sMt}, 11\ns_lshl_b32 s{sT}, s{sNt}, 7\ns_add_u32 s{sT}, s{sT}, s{sZ}\ns_add_u32 s{sT}, s{sT}, {FLC}")
    k(f"v_and_b32 v{T}, 31, v{vL}\nv_lshlrev_b32 v{T}, 2, v{T}\nv_mov_b32 v{T+1}, s{sEp}\ns_cmp_lg_u32 s{sW}, 4")
    k(f"s_waitcnt vmcnt(0)\ns_barrier\ns_cbranch_scc1 CG_nf1\nbuffer_store_dword v{T+1}, v{T}, {sr(dF,4)}, s{sT} offen sc1\nCG_nf1:")
    k.release(mz)
    k(f"s_cmp_ge_u32 s{sW}, 4\ns_cbranch_scc1 CG_loader")
    m0 = k.mark()
    k.stamp()
    if prio[0]: k(f"s_setprio {prio[0]}")
    m1 = k.mark()
    vBo = k.v(); sB0 = k.s(); sB6 = k.s()
    k(f"v_lshlrev_b32 v{vBo}, 3, v{vG}")
    k(f"s_mul_i32 s{sB0}, s{sNt}, 448\ns_lshl_b32 s{sT}, s{sWn}, 5\ns_add_u32 s{sB6}, s{sB0}, s{sT}\ns_mul_i32 s{sT}, s{sWn}, 192\ns_add_u32 s{sB0}, s{sB0}, s{sT}")
    dB = k.srd(pB1, 3584 * 2)
    ACC = k.v(112); FR = [k.v(44), k.v(44)]
    BP = FR[1]
    for t in range(7):
        if t < 6: k(f"buffer_load_dwordx2 {vr(BP+2*t,2)}, v{vBo}, {sr(dB,4)}, s{sB0} offen offset:{32*t}")
        else: k(f"buffer_load_dwordx2 {vr(BP+2*t,2)}, v{vBo}, {sr(dB,4)}, s{sB6} offen offset:{32*12}")
    def acc(t, mt): return ACC + (mt * 7 + t) * 4
    assert PI[1] == PI[0] + 1
    k(f"s_add_u32 s{sT}, s{sWo}, {PI[2]*64*7168}")
    for x in range(7): k(f"s_add_u32 m0, s{sMw}, {2*WSL+1024*x}\nbuffer_load_dwordx4 v{vWo+x}, {sr(dW1,4)}, s{sT} offen lds")
    vPf = vWo; vDum = vWo + 1; sPf = k.s()
    dP = k.srd(pW2, WBYTES)
    nl = w2l[1] // (4 * len(pfs))
    k(f"v_lshlrev_b32 v{vPf}, 7, v{vL}\nv_cmp_gt_u32 vcc, {nl}, v{vL}\nv_mov_b32 v{T}, {OOB}\nv_cndmask_b32 v{vPf}, v{T}, v{vPf}, vcc")
    k(f"s_lshl_b32 s{sPf}, s2, 2\ns_add_u32 s{sPf}, s{sPf}, s{sW}\ns_mul_i32 s{sPf}, s{sPf}, {nl*128}\ns_add_u32 s{sPf}, s{sPf}, {w2l[0]*128}")
    pfi = f"buffer_load_dword v{vDum}, v{vPf}, {sr(dP,4)}, s{sPf} offen\ns_add_u32 s{sPf}, s{sPf}, {1024*nl*128}"
    vY = k.v(2); vWa = k.v(3 * NB)
    k(f"v_lshrrev_b32 v{T}, 1, v{vI}\nv_xor_b32 v{T}, v{T}, v{vG}\nv_lshlrev_b32 v{T}, 4, v{T}\nv_lshl_add_u32 v{T}, v{vI}, 7, v{T}")
    k(f"s_lshl_b32 s{sT}, s{sWm}, 13\nv_add_u32 v{vY}, s{sT}, v{T}\nv_xor_b32 v{vY+1}, 64, v{vY}")
    k(f"v_lshrrev_b32 v{T}, 2, v{vI}\nv_lshl_add_u32 v{T}, v{vG}, 3, v{T}\nv_mul_u32_u24 v{T}, 448, v{T}")
    k(f"v_and_b32 v{T+1}, 3, v{vI}\nv_lshl_add_u32 v{T}, v{T+1}, 3, v{T}")
    k(f"v_and_b32 v{T+1}, 1, v{vG}\nv_lshlrev_b32 v{T+1}, 5, v{T+1}")
    k(f"s_mul_i32 s{sT}, s{sWn}, 192\nv_add_u32 v{T+2}, s{sT}, v{T}")
    for b in range(NB):
        k(f"v_add_u32 v{T+3}, {WR0+b*WSL}, v{T+2}\nv_add_u32 v{vWa+3*b}, v{T+3}, v{T+1}\nv_sub_u32 v{vWa+3*b+1}, v{T+3}, v{T+1}")
    k(f"s_lshl_b32 s{sT}, s{sWn}, 5\nv_xor_b32 v{T+1}, s{sT}, v{T+1}\nv_add_u32 v{T+2}, v{T}, v{T+1}")
    for b in range(NB): k(f"v_add_u32 v{vWa+3*b+2}, {WR0+b*WSL+12*32}, v{T+2}")
    k("s_waitcnt vmcnt(0)")
    for t in range(7): unpack_bf16(k, acc(t, 3), BP + 2 * t, 2, sMask)
    k(f"s_cmp_lg_u32 s{sW}, 0\ns_cbranch_scc1 CG_np1")
    k(f"s_lshl_b32 s{sB0}, s{sMt}, 11\ns_add_u32 s{sB0}, s{sB0}, {FLC}\nv_lshlrev_b32 v{T+2}, 7, v{vI}")
    poll(k, "CG_p1", dF, sB0, T + 2, T + 3, 16, f"s{sEp}")
    k("CG_np1:\ns_barrier")
    def reads(s, ks, F):
        b = s % NB
        yy = [f"ds_read_b128 {vr(F+28+4*mt,4)}, v{vY+ks} offset:{b*YSL+2048*mt}" for mt in range(4)]
        ww = []
        for t in range(7):
            a = vWa + 3 * b + (2 if t == 6 else (t & 1))
            off = (0 if t == 6 else 32 * t) + ks * 32 * 448
            ww.append(f"ds_read_b64_tr_b16 {vr(F+4*t,2)}, v{a} offset:{off}")
            ww.append(f"ds_read_b64_tr_b16 {vr(F+4*t+2,2)}, v{a} offset:{off+4*448}")
        return yy[:1] + ww + yy[1:]
    def mfmas(F, first):
        return [f"{MB} {vr(acc(t,mt),4)}, {vr(F+4*t,4)}, {vr(F+28+4*mt,4)}, {vr(acc(t,3),4) if first else vr(acc(t,mt),4)}" for mt in range(4) for t in range(7)]
    k.stamp()
    k("s_barrier")
    if CLK: k._st = k._st[:1]
    k.stamp()
    if CLK: k.stampc()
    for l in reads(0, 0, FR[0]): k(l)
    for s in range(NS):
        k("s_waitcnt lgkmcnt(0)")
        fl = reads(s, 1, FR[1])
        if pfd and s in pfs: fl = fl + [pfi]
        interleave(k, mfmas(FR[0], s == 0), fl)
        k("s_waitcnt lgkmcnt(0)\ns_barrier")
        if s + 1 < NS: interleave(k, mfmas(FR[1], False), reads(s + 1, 0, FR[0]))
        else:
            for l in mfmas(FR[1], False): k(l)
    k.stamp()
    if CLK: k.stampc()
    k("CG_epi1:")
    c1 = -2.0 * LOG2E * math.sqrt(2 / math.pi); c2 = c1 * 0.044715
    CC = FR[0]; E = FR[0] + 8; vHw = vWa; sU2 = sB0
    k(f"v_mov_b32 v{CC}, {fbits(c1)}\nv_mov_b32 v{CC+1}, {fbits(c1)}\nv_mov_b32 v{CC+2}, {fbits(c2)}\nv_mov_b32 v{CC+3}, {fbits(c2)}\nv_mov_b32 v{CC+4}, 1.0\nv_mov_b32 v{CC+5}, 1.0")
    for pr in range(3):
        k(f"s_mul_i32 s{sT}, s{sWn}, 3\ns_add_u32 s{sT}, s{sT}, {pr}\ns_lshr_b32 s{sU2}, s{sT}, 1\ns_lshl_b32 s{sU2}, s{sU2}, 15\ns_and_b32 s{sT}, s{sT}, 1\ns_lshl_b32 s{sT}, s{sT}, 13\ns_add_u32 s{sU2}, s{sU2}, s{sT}")
        k(f"s_lshl_b32 s{sT}, s{sWm}, 12\ns_add_u32 s{sU2}, s{sU2}, s{sT}\nv_add_u32 v{vHw+pr}, s{sU2}, v{vOff}")
    k(f"s_lshl_b32 s{sT}, s{sWm}, 12\ns_lshl_b32 s{sU2}, s{sWn}, 3\ns_add_u32 s{sT}, s{sT}, s{sU2}\ns_add_u32 s{sT}, s{sT}, {3*32768}\nv_add_u32 v{vHw+3}, s{sT}, v{vOff}")
    def gelu_pk(src, e):
        n = len(src) // 2
        P2 = lambda r: vr(r, 2)
        for x in range(n): k(f"v_pk_mul_f32 {P2(e+2*x)}, {P2(src[2*x])}, {P2(src[2*x])}")
        for x in range(n): k(f"v_pk_fma_f32 {P2(e+2*x)}, {P2(e+2*x)}, {P2(CC+2)}, {P2(CC)}")
        for x in range(n): k(f"v_pk_mul_f32 {P2(e+2*x)}, {P2(e+2*x)}, {P2(src[2*x])}")
        for x in range(2 * n): k(f"v_exp_f32 v{e+x}, v{e+x}")
        for x in range(n): k(f"v_pk_add_f32 {P2(e+2*x)}, {P2(e+2*x)}, {P2(CC+4)}")
        for x in range(2 * n): k(f"v_rcp_f32 v{e+x}, v{e+x}")
        for x in range(n): k(f"v_pk_mul_f32 {P2(e+2*x)}, {P2(e+2*x)}, {P2(src[2*x])}")
        for x in range(n): k(f"v_cvt_pk_bf16_f32 v{e+x}, v{e+2*x}, v{e+2*x+1}")
    dHm = k.srd(pWS, 2048 * 3584 * 2, WS_H)
    k(f"s_mul_i32 s{sU2}, s{sMt}, {112*8192}\ns_mul_i32 s{sT}, s{sNt}, {7*8192}\ns_add_u32 s{sU2}, s{sU2}, s{sT}\ns_mul_i32 s{sT}, s{sWn}, {3*8192}\ns_add_u32 s{sU2}, s{sU2}, s{sT}\ns_lshl_b32 s{sT}, s{sWm}, 12\ns_add_u32 s{sU2}, s{sU2}, s{sT}\ns_add_u32 s{sU2}, s{sU2}, {2*8192}")
    gelu_pk([acc(6, mt) + x for mt in range(4) for x in range(4)], E + 16)
    for mt in range(4): k(f"ds_write_b64 v{vHw+3}, {vr(E+16+2*mt,2)} offset:{1024*mt}")
    for pr in range(3):
        for hh in range(2):
            e = E + 16 * hh
            gelu_pk([acc(2 * pr, mt) + x for mt in (2 * hh, 2 * hh + 1) for x in range(8)], e)
            for u in range(2):
                k(f"ds_write_b128 v{vHw+pr}, {vr(e+4*u,4)} offset:{1024*(2*hh+u)}")
                if pr == 2: k(f"buffer_store_dwordx4 {vr(e+4*u,4)}, v{vOff}, {sr(dHm,4)}, s{sU2} offen offset:{1024*(2*hh+u)} sc1")
        if pr < 2: k("s_waitcnt lgkmcnt(0)\ns_barrier")
    k.stamp()
    k.release(m1)
    NS2 = 28; NB2 = 5; BUF = 32768; NH = 3
    sKh = k.s(); sN2 = k.s()
    k(f"s_lshr_b32 s{sKh}, s{sNt}, 3\ns_and_b32 s{sN2}, s{sNt}, 7")
    ACC = k.v(64); vH = k.v(2 * NH); vWa = k.v(4 * NH)
    vXo = k.v(); vOo = k.v(); vNo = k.v(); v4k = k.v(); vTg = k.v(); vPb = k.v()
    def acc(t, ms): return ACC + (ms * 4 + t) * 4
    for sp in range(2):
        k(f"s_xor_b32 s{sT}, s{sKh}, {sp}\ns_lshl_b32 s{sT}, s{sT}, 11\ns_lshl_b32 s{sN2}, s{sWm}, 12\ns_add_u32 s{sT}, s{sT}, s{sN2}\nv_add_u32 v{vH+sp}, s{sT}, v{vOff}")
    k(f"v_lshrrev_b32 v{T}, 2, v{vL}\nv_and_b32 v{T+1}, 7, v{T}\nv_lshlrev_b32 v{T}, 8, v{T}")
    k(f"v_and_b32 v{T+2}, 3, v{vI}\nv_lshl_add_u32 v{T}, v{T+2}, 3, v{T}\nv_add_u32 v{T}, 16384, v{T}")
    k(f"s_lshl_b32 s{sT}, s{sWn}, 2\nv_xor_b32 v{T+1}, s{sT}, v{T+1}")
    for t in range(4): k(f"v_xor_b32 v{T+2}, {t}, v{T+1}\nv_lshl_add_u32 v{vWa+t}, v{T+2}, 5, v{T}")
    FR = [k.v(32), k.v(32)]
    XP = k.v(16); GP = k.v(8); BP = k.v(8)
    sX = k.s(); sN = k.s(); sOo = k.s(); sR = k.s()
    sX2 = k.s(); sPs = k.s(); sPr = k.s(); sFs = k.s(); sFr = k.s()
    n0 = len(k.lines)
    for hh in range(1, NH):
        for sp in range(2): k(f"v_add_u32 v{vH+2*hh+sp}, {65536*hh}, v{vH+sp}")
        for t in range(4): k(f"v_add_u32 v{vWa+4*hh+t}, {65536*hh}, v{vWa+t}")
    k(f"v_and_b32 v{T}, 1, v{vG}\nv_lshlrev_b32 v{T}, 5, v{T}\nv_lshrrev_b32 v{T+1}, 1, v{vG}\nv_lshl_add_u32 v{vNo}, v{T+1}, 4, v{T}")
    k(f"v_lshl_add_u32 v{vXo}, v{vI}, 11, v{vNo}")
    k(f"v_and_b32 v{T}, 7, v{vI}\nv_lshlrev_b32 v{T}, 19, v{T}\nv_lshrrev_b32 v{T+1}, 3, v{vI}\nv_lshl_add_u32 v{T}, v{T+1}, 11, v{T}\nv_add_u32 v{vOo}, v{T}, v{vNo}")
    k(f"v_add_u32 v{v4k}, 4096, v{vOff}")
    dB = k.srd(pB2, 2048); dM = k.srd(pWS, 2048, WS_GB); dX1 = k.srd(pWS, 4 << 20, WS_X1); dO = k.srd(pO, 4 << 20)
    dPa = k.srd(pWS, 256 * 32768, WS_PART)
    k(f"s_and_b32 s{sN2}, s{sNt}, 7\ns_lshl_b32 s{sN}, s{sN2}, 8\ns_lshl_b32 s{sT}, s{sWn}, 7\ns_add_u32 s{sN}, s{sN}, s{sT}")
    k(f"s_lshl_b32 s{sR}, s{sMt}, 2\ns_lshl_b32 s{sT}, s{sWm}, 1\ns_add_u32 s{sR}, s{sR}, s{sT}\ns_add_u32 s{sR}, s{sR}, s{sKh}")
    k(f"s_lshl_b32 s{sX}, s{sR}, 16\ns_add_u32 s{sX}, s{sX}, s{sN}\ns_lshl_b32 s{sOo}, s{sR}, 13\ns_add_u32 s{sOo}, s{sOo}, s{sN}")
    k(f"s_add_u32 s{sX2}, s{sX}, 32768")
    k(f"s_lshl_b32 s{sFs}, s2, 2\ns_add_u32 s{sFs}, s{sFs}, s{sW}\ns_xor_b32 s{sFr}, s{sFs}, 16")
    k(f"s_lshl_b32 s{sPs}, s{sFs}, 13\ns_lshl_b32 s{sPr}, s{sFr}, 13\ns_movk_i32 s{sFs}, 0xff")
    k(f"v_lshlrev_b32 v{vTg}, 3, v{vL}\nv_and_b32 v{vTg}, 24, v{vTg}\nv_lshrrev_b32 v{vTg}, v{vTg}, s{sEp}\nv_and_b32 v{vTg}, 0xff, v{vTg}")
    k(f"v_and_b32 v{vPb}, 7, v{vL}\nv_lshlrev_b32 v{vPb}, 4, v{vPb}\nv_add_u32 v{vPb}, 8064, v{vPb}")
    lazy = k.lines[n0:]; del k.lines[n0:]
    probe = f"buffer_load_dword v{T+2}, v{vPb}, {sr(dPa,4)}, s{sPr} offen sc1"
    epi = [f"buffer_load_dwordx4 {vr(XP+8*ms+4*P,4)}, v{vXo}, {sr(dX1,4)}, s{sX2 if ms else sX} offen offset:{64*P} sc1" for ms in range(2) for P in range(2)]
    epi += [f"buffer_load_dwordx4 {vr(GP+4*P,4)}, v{vNo}, {sr(dM,4)}, s{sN} offen offset:{64*P} sc1" for P in range(2)]
    epi += [f"buffer_load_dwordx4 {vr(BP+4*P,4)}, v{vNo}, {sr(dB,4)}, s{sN} offen offset:{64*P}" for P in range(2)]
    def reads2(s, ks, F):
        b = s % NB2; hh = b >> 1; o = (b & 1) * BUF
        hr = [f"ds_read_b128 {vr(F+16+4*ms,4)}, v{vH+2*hh+(ms>>1)} offset:{o + 8192*ks + 1024*(ms&1)}" for ms in range(4)]
        ww = [f"ds_read_b64_tr_b16 {vr(F+4*t+2*hf,2)}, v{vWa+4*hh+t} offset:{o + 8192*ks + 4096*hf}" for t in range(4) for hf in range(2)]
        return hr[:1] + ww + hr[1:]
    def mfmas2(F, first):
        return [f"{MB} {vr(acc(t,ms),4)}, {vr(F+4*t,4)}, {vr(F+16+4*ms,4)}, {'0' if first else vr(acc(t,ms),4)}" for ms in range(4) for t in range(4)]
    k("s_waitcnt lgkmcnt(0)\ns_barrier")
    k.stamp()
    if CLK: k.stampc()
    for l in reads2(0, 0, FR[0]): k(l)
    for s in range(NS2):
        k("s_waitcnt lgkmcnt(0)")
        fl = reads2(s, 1, FR[1])
        if s == 2:
            k(f"s_lshl_b32 s{sR}, s{sMt}, 1\ns_add_u32 s{sR}, s{sR}, s{sKh}\ns_lshl_b32 s{sR}, s{sR}, 13\ns_and_b32 s{sX}, s{sNt}, 7\ns_lshl_b32 s{sX}, s{sX}, 2\ns_add_u32 s{sX}, s{sX}, s{sW}\ns_lshl_b32 s{sX}, s{sX}, 7\ns_add_u32 s{sR}, s{sR}, s{sX}\ns_add_u32 s{sR}, s{sR}, {FLB+4096}\ns_waitcnt vmcnt(0)")
            set_flag(k, dF, sR, vL, T + 4, T + 5)
        if lazy: fl = fl + ["\n".join(lazy[0:2]), "\n".join(lazy[2:4]), "\n".join(lazy[4:6]), "\n".join(lazy[6:8])]; del lazy[:8]
        if s >= NS2 - 9 and epi: fl = fl + [epi.pop(0)]
        interleave(k, mfmas2(FR[0], s == 0), fl)
        k("s_waitcnt lgkmcnt(0)")
        if s + 1 < NS2:
            k("s_barrier")
            if CLK and s + 1 == 6: k.stamp(); k.stampc()
            interleave(k, mfmas2(FR[1], False), reads2(s + 1, 0, FR[0]))
        else:
            mm = mfmas2(FR[1], False)
            k(probe)
            for l in mm[8:] + mm[:8]: k(l)
    k.stamp()
    if CLK: k.stampc()
    k("CG_epi2:")
    RX = ACC + 32
    def exl():
        for q in range(8):
            k(f"buffer_load_dwordx4 {vr(RX+4*q,4)}, v{v4k if q >= 4 else vOff}, {sr(dPa,4)}, s{sPr} offen offset:{1024*(q&3)} sc1")
    for q in range(8):
        k(f"v_bfi_b32 v{ACC+32+4*q}, s{sFs}, v{vTg}, v{ACC+32+4*q}")
        k(f"buffer_store_dwordx4 {vr(ACC+32+4*q,4)}, v{v4k if q >= 4 else vOff}, {sr(dPa,4)}, s{sPs} offen offset:{1024*(q&3)} sc1")
    k("s_waitcnt vmcnt(9)")
    for base in (XP, XP + 4, XP + 8, XP + 12, GP, GP + 4, BP, BP + 4):
        k(f"v_permlane16_swap_b32 v{base}, v{base+2}\nv_permlane16_swap_b32 v{base+1}, v{base+3}")
    k(f"s_waitcnt vmcnt(8)\nv_xor_b32 v{T+2}, v{vTg}, v{T+2}\nv_and_b32 v{T+2}, 0xff, v{T+2}\nv_cmp_ne_u32 vcc, 0, v{T+2}\ns_mov_b32 s{sFr}, 0\ns_cbranch_vccnz EX_ne")
    exl()
    k(f"s_mov_b32 s{sFr}, 1\nEX_ne:")
    GB = FR[0]; B2 = FR[0] + 16; X = FR[1]
    unpack_bf16(k, GB, GP, 8, sMask); unpack_bf16(k, B2, BP, 8, sMask); unpack_bf16(k, X, XP, 16, sMask)
    for ms in range(2):
        for e in range(0, 16, 2): k(f"v_pk_add_f32 {P2(ACC+16*ms+e)}, {P2(ACC+16*ms+e)}, {P2(B2+e)}")
    for ms in range(2):
        for e in range(0, 16, 2): k(f"v_pk_fma_f32 {P2(X+16*ms+e)}, {P2(ACC+16*ms+e)}, {P2(GB+e)}, {P2(X+16*ms+e)}")
    k.stamp()
    k(f"s_cmp_eq_u32 s{sFr}, 1\ns_cbranch_scc1 EX_chk")
    k("EX_probe:")
    k(probe)
    k(f"s_waitcnt vmcnt(0)\nv_xor_b32 v{T+2}, v{vTg}, v{T+2}\nv_and_b32 v{T+2}, 0xff, v{T+2}\nv_cmp_ne_u32 vcc, 0, v{T+2}\ns_cbranch_vccz EX_try\ns_sleep {slpx[1]}\ns_branch EX_probe")
    k("EX_try:")
    exl()
    k("EX_chk:\ns_waitcnt vmcnt(0)")
    for q in range(8): k(f"v_xor_b32 v{RX+4*q}, v{vTg}, v{RX+4*q}")
    k(f"v_or3_b32 v{T}, v{RX}, v{RX+4}, v{RX+8}\nv_or3_b32 v{T+1}, v{RX+12}, v{RX+16}, v{RX+20}\nv_or3_b32 v{T}, v{T}, v{RX+24}, v{RX+28}\nv_or_b32 v{T}, v{T}, v{T+1}\nv_and_b32 v{T}, 0xff, v{T}")
    k(f"v_cmp_ne_u32 vcc, 0, v{T}\ns_cbranch_vccz EX_ok\ns_sleep {slpx[1]}\ns_branch EX_try\nEX_ok:")
    ACC = RX
    for ms in range(2):
        for e in range(0, 16, 2): k(f"v_pk_fma_f32 {P2(X+16*ms+e)}, {P2(ACC+16*ms+e)}, {P2(GB+e)}, {P2(X+16*ms+e)}")
        for e in range(8): k(f"v_cvt_pk_bf16_f32 v{XP+8*ms+e}, v{X+16*ms+2*e}, v{X+16*ms+2*e+1}")
        for P in range(2):
            b = XP + 8 * ms + 4 * P
            k(f"v_permlane16_swap_b32 v{b}, v{b+2}\nv_permlane16_swap_b32 v{b+1}, v{b+3}")
        if ms: k(f"s_add_u32 s{sOo}, s{sOo}, 4096")
        for P in range(2):
            k(f"buffer_store_dwordx4 {vr(XP+8*ms+4*P,4)}, v{vOo}, {sr(dO,4)}, s{sOo} offen offset:{64*P} {out_flags}")
    if k.prof: k("s_waitcnt vmcnt(0)")
    if dbgwg is not None:
        k.stamp(force=True)
        k(f"s_lshl_b32 s60, s2, 3\ns_add_u32 s60, s60, s{sW}\ns_cmp_lg_u32 s60, {dbgwg*8+dbgwave}\ns_cbranch_scc1 CG_end")
        k(f"s_load_dwordx2 s[60:61], s[0:1], 88\ns_mov_b32 s62, 64\ns_mov_b32 s63, 0x20000\nv_subrev_u32 v2, s98, v{k.stv}\nv_lshlrev_b32 v1, 2, v{vL}\ns_waitcnt lgkmcnt(0)")
        k("buffer_store_dword v2, v1, s[60:63], 0 offen sc1")
    else: k.stamp_flush()
    k("s_endpgm")
    if dbgwg is not None: k.prof = None
    k.release(m0)
    k("CG_loader:")
    if prio[1]: k(f"s_setprio {prio[1]}")
    if k.prof: k._st = k._st[:1]; k._stidx = 4
    k.stamp()
    sLw = k.s(); sY = k.s(); sYq = k.s(); sMy = k.s(); sFo = k.s()
    k(f"s_sub_u32 s{sLw}, s{sW}, 4")
    RW = k.v(112); CP = k.v(24)
    ops = []
    def vm(line, tag): k(line); ops.append(tag)
    def need(tags):
        last = max([i for i, t in enumerate(ops) if t in tags], default=-1)
        return min(63, len(ops) - 1 - last)
    for j, t in enumerate(R1):
        k(f"s_add_u32 s{sT}, s{sWo}, {64*7168*PI[t]}")
        for x in range(7): vm(f"buffer_load_dwordx4 {vr(RW+28*j+4*x,4)}, v{vWo+x}, {sr(dW1,4)}, s{sT} offen", ("rw", t))
    k(f"s_lshl_b32 s{sY}, s{sMt}, 18\ns_lshl_b32 s{sMy}, s{sLw}, 12\ns_add_u32 s{sY}, s{sY}, s{sMy}")
    dY = k.srd(pWS, 4 << 20, WS_Y2)
    vW2 = k.v(2); vLw = k.v(); vCp = k.v(2)
    sHb = k.s(); sWb = k.s(); sK0 = k.s(); sA = k.s(); sHo = k.s()
    dH = k.srd(pWS, 2048 * 3584 * 2, WS_H)
    k(f"v_add_u32 v{vLw}, s{sMw}, v{vOff}")
    k(f"s_lshl_b32 s{sT}, s{sLw}, 11\nv_add_u32 v{vCp}, s{sT}, v{vOff}\nv_add_u32 v{vCp+1}, 65536, v{vCp}")
    k(f"s_mul_i32 s{sHo}, s{sMt}, {112*8192}\ns_mul_i32 s{sT}, s{sNt}, {7*8192}\ns_add_u32 s{sHo}, s{sHo}, s{sT}")
    for par in range(2):
        k(f"v_add_u32 v{T}, {4*par}, v{vG}\nv_lshlrev_b32 v{T}, 1, v{T}\nv_xor_b32 v{T}, v{T}, v{vI}\nv_lshlrev_b32 v{T}, 4, v{T}\nv_lshl_add_u32 v{vW2+par}, v{vG}, 11, v{T}")
    k(f"s_lshr_b32 s{sA}, s{sNt}, 3\ns_mul_i32 s{sHb}, s{sMt}, {112*8192}\ns_mul_i32 s{sT}, s{sA}, {56*8192}\ns_add_u32 s{sHb}, s{sHb}, s{sT}\ns_lshl_b32 s{sT}, s{sWm}, 12\ns_add_u32 s{sHb}, s{sHb}, s{sT}")
    k(f"s_mul_i32 s{sWb}, s{sA}, {1792*2048}\ns_and_b32 s{sA}, s{sNt}, 7\ns_lshl_b32 s{sT}, s{sA}, 8\ns_add_u32 s{sWb}, s{sWb}, s{sT}\ns_lshl_b32 s{sT}, s{sWm}, 15\ns_add_u32 s{sWb}, s{sWb}, s{sT}")
    k(f"s_mul_i32 s{sK0}, s{sA}, 7\ns_add_u32 s{sK0}, s{sK0}, s{sWn}")
    dW2 = k.srd(pW2, WBYTES)
    k("s_barrier")
    k.stamp()
    def issue_y(s):
        k(f"s_add_u32 s{sYq}, s{sY}, {16384*PI[s]}\ns_add_u32 m0, s{sMy}, {(s%NB)*YSL}")
        for x in range(4): vm(f"buffer_load_dwordx4 v{vOff}, {sr(dY,4)}, s{sYq} offen offset:{1024*x} sc1 lds", ("s1", s))
    def issue_w(s):
        if s in R1:
            j = R1.index(s)
            k(f"s_waitcnt vmcnt({need([('rw', s)])})")
            for x in range(7): k(f"ds_write_b128 v{vLw}, {vr(RW+28*j+4*x,4)} offset:{(s%NB)*WSL + 1024*x}")
            return
        k(f"s_add_u32 s{sT}, s{sWo}, {64*7168*PI[s]}")
        for x in range(7):
            k(f"s_add_u32 m0, s{sMw}, {(s%NB)*WSL + 1024*x}")
            vm(f"buffer_load_dwordx4 v{vWo+x}, {sr(dW1,4)}, s{sT} offen lds", ("s1", s))
    sO7 = k.s()
    k(f"s_sub_u32 s{sO7}, s{sK0}, s{sWn}")
    pos = [None] * 7 + [7 * q + c for q in range(7) for c in (0, 3, 6)] + [7 * q + c for q in range(7) for c in (1, 2, 4, 5)]
    def kap(t, sh, base):
        j0, j1 = pos[2 * t], pos[2 * t + 1]
        if j1 is None: r = f"s_add_u32 s{sA}, s{sK0}, {2*t}\n"
        else:
            r = f"s_cmp_eq_u32 s{sWn}, 0\ns_cselect_b32 s{sA}, {j0 or 0}, {j1}\ns_cmp_ge_u32 s{sA}, s{sO7}\ns_cselect_b32 s{sYq}, 7, 0\ns_add_u32 s{sA}, s{sA}, s{sYq}\n"
            if j0 is None: r += f"s_add_u32 s{sYq}, s{sO7}, 6\ns_cmp_eq_u32 s{sWn}, 0\ns_cselect_b32 s{sA}, s{sYq}, s{sA}\n"
        return r + f"s_lshl_b32 s{sA}, s{sA}, {sh}\ns_add_u32 s{sA}, s{sA}, s{base}\n"
    def w2_items(t):
        b = t % NB2; r = []
        for x in range(4):
            pre = kap(t, 16, sWb) if x == 0 else f"s_add_u32 s{sA}, s{sA}, 8192\n"
            r.append(f"s_add_u32 m0, s{sMy}, {b*BUF + 16384 + 1024*x}\n" + pre + f"buffer_load_dwordx4 v{vW2+(x&1)}, {sr(dW2,4)}, s{sA} offen lds")
        return r
    for s in range(3): issue_y(s)
    for s in range(NS):
        k(f"s_waitcnt vmcnt({need([('s1', s)])}) lgkmcnt(0)")
        if s == 0: k.stamp()
        k("s_barrier")
        if s >= 1 and s + 2 < NS:
            if not noY: issue_y(s + 2)
            if not noW1: issue_w(s + 2)
        if s == 10: code_pf_w(k, "CG_epi1", "CODE_END", sW, 4, IDX_STD, vL, T + 2, T + 4, True)
    def issue_h(s):
        b = s % NB2
        if s == 3: k(f"s_cmp_eq_u32 s{sWn}, 0\ns_cbranch_scc1 CG_h3")
        k(f"s_add_u32 m0, s{sMy}, {b*BUF}\n" + kap(s, 13, sHb))
        for x in range(4): vm(f"buffer_load_dwordx4 v{vOff}, {sr(dH,4)}, s{sA} offen offset:{1024*x} sc1 lds", ("s2", s))
        if s == 3: k("CG_h3:")
    def copy_out(js):
        for n, j in enumerate(js):
            b = j >> 1
            for u in range(2): k(f"ds_read_b128 {vr(CP+8*n+4*u,4)}, v{vCp+(b>>1)} offset:{(b&1)*BUF + (j&1)*8192 + 1024*u}")
        for n, j in enumerate(js):
            k(f"s_add_u32 s{sT}, s{sHo}, {j*8192}\ns_waitcnt lgkmcnt({2*(len(js)-1-n)})")
            for u in range(2): k(f"buffer_store_dwordx4 {vr(CP+8*n+4*u,4)}, v{vCp}, {sr(dH,4)}, s{sT} offen offset:{1024*u} sc1")
    sFw = k.s()
    k(f"s_lshl_b32 s{sFo}, s{sMt}, 1\ns_lshr_b32 s{sT}, s{sNt}, 3\ns_add_u32 s{sFo}, s{sFo}, s{sT}\ns_lshl_b32 s{sFo}, s{sFo}, 12\ns_add_u32 s{sFo}, s{sFo}, {FLH}")
    k(f"s_and_b32 s{sT}, s{sNt}, 7\ns_lshl_b32 s{sT}, s{sT}, 2\ns_add_u32 s{sT}, s{sT}, s{sLw}\ns_lshl_b32 s{sT}, s{sT}, 7\ns_add_u32 s{sFw}, s{sFo}, s{sT}")
    k(f"v_and_b32 v{T+2}, 31, v{vL}\nv_lshlrev_b32 v{T+2}, 7, v{T+2}")
    k("s_barrier")
    for t in range(3):
        for l in w2_items(t): k(l)
    k("s_barrier")
    copy_out([6, 0, 3])
    k("s_barrier")
    k("s_waitcnt vmcnt(0)")
    set_flag(k, dF, sFw, vL, T, T + 1)
    copy_out([1, 4])
    for t in range(3, 5):
        for l in w2_items(t): k(l)
    k.stamp()
    k("s_barrier")
    k(f"buffer_load_dword v{T+3}, v{T+2}, {sr(dF,4)}, s{sFo} offen sc1")
    k("s_barrier")
    k(f"s_waitcnt vmcnt(0)\nv_cmp_ne_u32 vcc, s{sEp}, v{T+3}\ns_cbranch_vccz CG_p2_ok")
    poll(k, "CG_p2", dF, sFo, T + 2, T + 3, 32, f"s{sEp}")
    k.stamp()
    ops.clear()
    issue_h(3); issue_h(4)
    k(f"s_sub_u32 s{sFw}, s{sFw}, s{sFo}\ns_sub_u32 s{sFo}, s{sFo}, {FLH}\ns_lshl_b32 s{sFo}, s{sFo}, 1\ns_add_u32 s{sFo}, s{sFo}, {FLB}\ns_add_u32 s{sFw}, s{sFw}, s{sFo}\nv_lshlrev_b32 v{T+2}, 7, v{vL}")
    set_flag(k, dF, sFw, vL, T, T + 1); ops.append("flag")
    nxt = 5
    for s in range(1, NS2):
        if s > 1: k(f"s_waitcnt vmcnt({need([('s2', s)])})\ns_barrier")
        while nxt <= s + 4 and nxt < NS2:
            if nxt == 11: vm(f"buffer_load_dword v{T+3}, v{T+2}, {sr(dF,4)}, s{sFo} offen sc1", "pb")
            if nxt == 14:
                k(f"s_waitcnt vmcnt({need(['pb'])})\nv_cmp_ne_u32 vcc, s{sEp}, v{T+3}\ns_cbranch_vccz CG_p2b_ok")
                poll(k, "CG_p2b", dF, sFo, T + 2, T + 3, 32, f"s{sEp}")
                k.stamp()
            if not noH: issue_h(nxt)
            if not noW2:
                for l in w2_items(nxt): vm(l, ("s2", nxt))
            nxt += 1
        if s == 18: code_pf_w(k, "CG_epi2", "CG_loader", sW, 4, IDX_STD, vL, T + 4, T + 6, True)
    k.stamp_flush()
    k("CG_end:\ns_endpgm")
    return k
```

```python
import exp50, contextlib, io
from asmlib import *
with contextlib.redirect_stdout(io.StringIO()):
    exp50.mk("q0"); exp50.mk("q1", early=1); exp50.mk("q2", early=1, psp=(14,14))
    Kern.prof = 1
    exp50.mk("q1p", fine=True)
```
